```python
import torch

def _softmax(x, axis=-1):
    return torch.softmax(x, dim=axis)
def _gelu(x):
    return torch.nn.functional.gelu(x, approximate="tanh")
def _silu(x):
    return torch.nn.functional.silu(x)
def _sigmoid(x):
    return torch.sigmoid(x)
def _layernorm(x, axis=-1, eps=1e-5):
    m = x.mean(dim=axis, keepdim=True)
    v = x.var(dim=axis, keepdim=True, unbiased=False)
    return (x - m) / torch.sqrt(v + eps)
def _scatter_add(tgt, idx, src, axis=0):
    return tgt.clone().index_add_(axis, idx, src)
def _segment_sum(src, seg, n):
    out = torch.zeros((n,) + src.shape[1:], dtype=src.dtype)
    return out.index_add_(0, seg, src)
def _pad(x, pw):
    flat = tuple(v for pair in reversed(pw) for v in pair)
    return torch.nn.functional.pad(x, flat)

kernel_name = 'standalone__edge_featured_mpnn_mpnn__graph'

def setup_inputs():

    _w = (lambda a: (lambda t: t.to(torch.bfloat16) if t.is_floating_point() else t)(torch.as_tensor(a)))
    N, deg, D, De = 50000, 16, 64, max(4, 1)
    E = N * deg
    H = 2 * D
    return {
        "x": _w((lambda *s: torch.randn(*s, dtype=torch.bfloat16) * 0.05)(N, D)),
        "e_attr": _w((lambda *s: torch.randn(*s, dtype=torch.bfloat16) * 1.6)(E, De)),
        "src": _w((lambda lo, hi, *s: torch.randint(lo, hi, s))(0, N, E).to(torch.int64)),
        "dst": _w((lambda lo, hi, *s: torch.randint(lo, hi, s))(0, N, E).to(torch.int64)),
        "w1": _w((lambda *s: torch.randn(*s, dtype=torch.bfloat16) * 1.6)(2 * D + De, H) * (1.0 / (2 * D + De) ** 0.5)),
        "b1": _w((lambda *s: torch.randn(*s, dtype=torch.bfloat16) * 3.2)(H) * 0.01),
        "w2": _w((lambda *s: torch.randn(*s, dtype=torch.bfloat16) * 0.05)(H, D) * (1.0 / H ** 0.5)),
        "b2": _w((lambda *s: torch.randn(*s, dtype=torch.bfloat16) * 0.1)(D) * 0.01),
    }

def reference(x, e_attr, src, dst, w1, b1, w2, b2):
    N, D = x.shape
    h_src = x[src]
    h_dst = x[dst]
    m_in = torch.concatenate([h_src, h_dst, e_attr], axis=-1)
    h = _silu(m_in @ w1 + b1)
    msg = h @ w2 + b2
    return _segment_sum(msg, dst, N)
```

```python
import sys, struct, math
NAME = "standalone__edge_featured_mpnn_mpnn__graph"
OPT = dict(stamp=0)
for a in sys.argv[2:]:
    k, v = a.split("="); OPT[k] = int(v)

N_NODES = 50000; E = 800000
CH = 3128; CH_LAST = E - 255*CH; CHS = 3168
TAB_OFF = 0; WP_OFF = 0x40000; KEY_OFF = 0x50000; EA_OFF = 0x370000; STAMP_OFF = 0x1000000
WS_SIZE = 0x10000000
def f32(x): return "0x%08x" % struct.unpack("<I", struct.pack("<f", x))[0]
NLOG2E = f32(-math.log2(math.e)); NLN2 = f32(-math.log(2.0))

out = []
def I(*ls):
    for l in ls:
        for x in l.split("\n"):
            x = x.strip()
            if x: out.append(x if x.endswith(":") or x.startswith(".") else "    " + x)
def srd(d, lo, hi, size, stride=0):
    I(f"s_mov_b32 s{d}, s{lo}")
    if stride: I(f"s_or_b32 s{d+1}, s{hi}, {hex(stride << 16)}")
    else: I(f"s_mov_b32 s{d+1}, s{hi}")
    I(f"s_mov_b32 s{d+2}, {size}", f"s_mov_b32 s{d+3}, 0x20000")
def scan64(v):
    for op in ("row_shr:1", "row_shr:2", "row_shr:4", "row_shr:8"):
        I("s_nop 1", f"v_add_u32_dpp v{v}, v{v}, v{v} {op} row_mask:0xf bank_mask:0xf bound_ctrl:0")
    I("s_nop 1", f"v_add_u32_dpp v{v}, v{v}, v{v} row_bcast:15 row_mask:0xa bank_mask:0xf")
    I("s_nop 1", f"v_add_u32_dpp v{v}, v{v}, v{v} row_bcast:31 row_mask:0xc bank_mask:0xf")

K1_T = 832
L1_CNT = 0; L1_BASE = 1024; L1_KEY = 2048; L1_EA = L1_KEY + CHS*4; L1_SIZE = L1_EA + CHS*8
NPREP = 16
def k1():
    I(f".globl mpnn_sort_kernel", ".p2align 8", ".type mpnn_sort_kernel,@function", "mpnn_sort_kernel:")
    I("s_cmp_ge_u32 s2, 256", "s_cbranch_scc1 K1_PREP")
    I("s_load_dwordx4 s[4:7], s[0:1], 8", "s_load_dwordx2 s[8:9], s[0:1], 24", "s_load_dwordx2 s[10:11], s[0:1], 80")
    I("v_lshlrev_b32 v1, 2, v0", "v_mov_b32 v2, 0", "ds_write_b32 v1, v2")
    I(f"s_mul_i32 s3, s2, {CH}", f"s_movk_i32 s28, {CH}", "s_cmp_eq_u32 s2, 255", f"s_cselect_b32 s28, {CH_LAST}, s28")
    I("v_add_u32 v2, s3, v1", "v_lshlrev_b32 v3, 3, v2", "v_lshlrev_b32 v2, 2, v2")
    I("v_lshrrev_b32 v20, 6, v0", "v_mov_b32 v21, 1", "v_cmp_gt_u32 vcc, s28, v1")
    I("v_readfirstlane_b32 s29, v20", "s_mov_b32 s30, 0x05040001")
    I("s_waitcnt lgkmcnt(0)")
    srd(12, 8, 9, E*4); srd(16, 6, 7, E*4); srd(20, 4, 5, E*8); srd(24, 10, 11, WS_SIZE)
    I("buffer_load_dwordx4 v[4:7], v2, s[12:15], 0 offen",
      "buffer_load_dwordx4 v[8:11], v2, s[16:19], 0 offen",
      "buffer_load_dwordx4 v[12:15], v3, s[20:23], 0 offen",
      "buffer_load_dwordx4 v[16:19], v3, s[20:23], 0 offen offset:16")
    I("s_and_b64 exec, exec, vcc", "s_barrier", "s_waitcnt vmcnt(3)")
    for i in range(4):
        I(f"v_lshlrev_b32_sdwa v{24+i}, 2, v{4+i} dst_sel:DWORD dst_unused:UNUSED_PAD src0_sel:DWORD src1_sel:BYTE_0")
    for i in range(4): I(f"ds_add_rtn_u32 v{28+i}, v{24+i}, v21")
    I("s_waitcnt lgkmcnt(0)", "s_barrier")
    I("s_cmp_lg_u32 s29, 0", "s_cbranch_scc1 K1_NOSCAN")
    I("v_lshlrev_b32 v22, 4, v0", "ds_read_b128 v[32:35], v22")
    I("s_lshl_b32 s31, s28, 2", "v_add_u32 v23, s31, v1", "v_mov_b32 v40, -1", "s_lshl_b32 s31, s2, 10")
    I("s_waitcnt lgkmcnt(0)")
    I("v_add_u32 v38, v32, v33", "v_add_u32 v39, v38, v34", "v_add_u32 v41, v39, v35", "v_mov_b32 v36, v41")
    scan64(36)
    I("v_sub_u32 v36, v36, v41", "v_add_u32 v37, v36, v32", "v_add_u32 v38, v36, v38", "v_add_u32 v39, v36, v39")
    I(f"ds_write_b128 v22, v[36:39] offset:{L1_BASE}")
    for i in range(4): I(f"v_lshl_or_b32 v{32+i}, v{32+i}, 16, v{36+i}")
    I(f"buffer_store_dwordx4 v[32:35], v22, s[24:27], s31 offen")
    I("s_mov_b64 exec, 0xffff", f"ds_write_b32 v23, v40 offset:{L1_KEY}", "s_mov_b64 exec, -1", "s_waitcnt lgkmcnt(0)")
    I("K1_NOSCAN:", "s_barrier")
    for i in range(4): I(f"ds_read_b32 v{24+i}, v{24+i} offset:{L1_BASE}")
    I("s_waitcnt vmcnt(2)")
    for i in range(4): I(f"v_perm_b32 v{4+i}, v{8+i}, v{4+i}, s30")
    I("s_waitcnt lgkmcnt(0)")
    for i in range(4): I(f"v_add_lshl_u32 v{24+i}, v{24+i}, v{28+i}, 2")
    for i in range(4): I(f"ds_write_b32 v{24+i}, v{4+i} offset:{L1_KEY}", f"v_lshlrev_b32 v{28+i}, 1, v{24+i}")
    I("s_waitcnt vmcnt(0)")
    for i in range(4): I(f"ds_write_b64 v{28+i}, v[{12+2*i}:{13+2*i}] offset:{L1_EA}")
    I("s_mov_b64 exec, -1", "v_lshlrev_b32 v22, 4, v0")
    I(f"s_mul_i32 s31, s2, {CHS*4}", f"s_add_u32 s31, s31, {KEY_OFF}")
    I(f"s_mul_i32 s32, s2, {CHS*8}", f"s_add_u32 s32, s32, {EA_OFF}", f"s_add_u32 s33, s32, {K1_T*16}")
    I(f"v_cmp_gt_u32 vcc, {(CH+16)//4}, v0", f"s_movk_i32 s34, {CH//2 - K1_T}", "v_cmp_gt_u32 s[36:37], s34, v0")
    I("s_waitcnt lgkmcnt(0)", "s_barrier")
    I(f"ds_read_b128 v[4:7], v22 offset:{L1_KEY}", f"ds_read_b128 v[8:11], v22 offset:{L1_EA}",
      f"ds_read_b128 v[12:15], v22 offset:{L1_EA + K1_T*16}")
    I("s_waitcnt lgkmcnt(1)", "buffer_store_dwordx4 v[8:11], v22, s[24:27], s32 offen")
    I("s_mov_b64 exec, vcc", "buffer_store_dwordx4 v[4:7], v22, s[24:27], s31 offen")
    I("s_mov_b64 exec, s[36:37]", "s_cbranch_execz K1_END", "s_waitcnt lgkmcnt(0)", "buffer_store_dwordx4 v[12:15], v22, s[24:27], s33 offen")
    I("K1_END:", "s_endpgm")
    I("K1_PREP:")
    I(f"s_cmp_ge_u32 s2, {256+NPREP}", "s_cbranch_scc1 K1_END")
    I("s_load_dwordx8 s[4:11], s[0:1], 32", "s_load_dwordx2 s[24:25], s[0:1], 80")
    I("v_lshrrev_b32 v1, 6, v0", "v_and_b32 v0, 63, v0", "s_sub_u32 s3, s2, 256", "v_readfirstlane_b32 s29, v1", "s_mul_i32 s3, s3, 13")
    I("s_nop 2", "s_add_u32 s3, s3, s29", "s_cmp_ge_u32 s3, 204", "s_cbranch_scc1 K1_END")
    I("s_mov_b32 s26, %d" % WS_SIZE, "s_mov_b32 s27, 0x20000", "s_mov_b32 s15, 0x20000")
    I(f"s_mov_b32 s30, {NLOG2E}", "s_mov_b32 s31, 0")
    I("s_waitcnt lgkmcnt(0)")
    I("s_cmp_ge_u32 s3, 200", "s_cbranch_scc1 K1_PB")
    I("s_and_b32 s16, s3, 1", "s_lshl_b32 s16, s16, 4", "v_lshrrev_b32 v1, 2, v0", "v_add_u32 v1, s16, v1", "v_and_b32 v2, 3, v0")
    I("s_bfe_u32 s17, s3, 0x10001", "s_lshr_b32 s18, s3, 2")
    I("s_cmp_ge_u32 s18, 48", "s_cbranch_scc1 K1_PC", "s_cmp_ge_u32 s18, 32", "s_cbranch_scc1 K1_P2")
    I("s_lshr_b32 s19, s18, 4", "s_lshl_b32 s19, s19, 1", "s_add_u32 s19, s19, s17", "s_lshl_b32 s19, s19, 2",
      "s_and_b32 s20, s18, 3", "s_add_u32 s19, s19, s20", "s_lshl_b32 s19, s19, 11",
      "s_bfe_u32 s20, s18, 0x20002", "s_lshl_b32 s20, s20, 6", "s_add_u32 s19, s19, s20")
    I("v_lshlrev_b32 v2, 9, v2", "v_lshl_add_u32 v3, v1, 1, v2", "v_add_u32 v3, s19, v3")
    I("s_mov_b32 s12, s4", "s_mov_b32 s13, s5", f"s_mov_b32 s14, {132*256}", "s_movk_i32 s21, 256", "s_branch K1_PT")
    I("K1_PC:")
    I("s_and_b32 s19, s18, 1", "s_lshl_b32 s19, s19, 7", f"s_add_u32 s19, s19, {128*256}")
    I("v_and_b32 v3, 1, v2", "v_lshlrev_b32 v3, 9, v3", "v_lshrrev_b32 v2, 1, v2", "v_lshl_add_u32 v3, v2, 6, v3",
      "v_lshl_add_u32 v3, v1, 1, v3", "v_add_u32 v3, s19, v3")
    I("s_mov_b32 s12, s4", "s_mov_b32 s13, s5", f"s_mov_b32 s14, {132*256}", "s_movk_i32 s21, 256", "s_mov_b32 s31, s17", "s_branch K1_PT")
    def dcol2(dst, m, t):
        I(f"v_bfe_u32 v{dst}, v{m}, 2, 1", f"v_lshlrev_b32 v{dst}, 6, v{dst}", f"v_lshrrev_b32 v{t}, 3, v{m}",
          f"v_lshl_add_u32 v{dst}, v{t}, 3, v{dst}", f"v_and_b32 v{t}, 3, v{m}", f"v_lshl_add_u32 v{dst}, v{t}, 1, v{dst}")
    I("K1_P2:")
    I("s_bfe_u32 s19, s18, 0x30001", "s_lshl_b32 s19, s19, 2", "s_add_u32 s19, s19, s17", "s_lshl_b32 s19, s19, 9",
      "s_and_b32 s20, s18, 1", "s_lshl_b32 s20, s20, 5", "s_add_u32 s19, s19, s20")
    dcol2(3, 1, 4)
    I("v_lshrrev_b32 v4, 1, v2", "v_lshl_add_u32 v3, v4, 10, v3", "v_and_b32 v4, 1, v2", "v_lshl_add_u32 v3, v4, 8, v3", "v_add_u32 v3, s19, v3")
    I("s_mov_b32 s12, s8", "s_mov_b32 s13, s9", f"s_mov_b32 s14, {128*128}", "s_movk_i32 s21, 128", "s_mov_b32 s30, 1.0", "s_branch K1_PT")
    I("K1_PB:")
    I("s_and_b32 s31, s3, 1", "v_lshrrev_b32 v1, 1, v0", "v_and_b32 v2, 1, v0")
    I("s_cmp_ge_u32 s3, 202", "s_cbranch_scc1 K1_PB2")
    I("v_lshlrev_b32 v2, 7, v2", "v_lshl_add_u32 v3, v1, 1, v2")
    I("s_mov_b32 s12, s6", "s_mov_b32 s13, s7", "s_movk_i32 s14, 256", "s_movk_i32 s21, 64", "s_branch K1_PT")
    I("K1_PB2:")
    dcol2(3, 1, 4)
    I("v_lshl_add_u32 v3, v2, 10, v3")
    I("s_mov_b32 s12, s10", "s_mov_b32 s13, s11", "s_movk_i32 s14, 128", "s_movk_i32 s21, 32")
    I("K1_PT:")
    I("buffer_load_ushort v4, v3, s[12:15], 0 offen", "buffer_load_ushort v5, v3, s[12:15], s21 offen")
    I("s_lshl_b32 s3, s3, 8", f"s_add_u32 s3, s3, {WP_OFF}", "v_lshlrev_b32 v0, 2, v0", "s_waitcnt vmcnt(0)")
    I("v_lshlrev_b32 v4, 16, v4", "v_lshlrev_b32 v5, 16, v5", "v_mul_f32 v4, s30, v4", "v_mul_f32 v5, s30, v5", "v_cvt_pk_bf16_f32 v6, v4, v5")
    I("s_cmp_eq_u32 s31, 0", "s_cbranch_scc1 K1_PS")
    I("v_lshlrev_b32 v7, 16, v6", "v_and_b32 v8, 0xffff0000, v6", "v_sub_f32 v4, v4, v7", "v_sub_f32 v5, v5, v8", "v_cvt_pk_bf16_f32 v6, v4, v5")
    I("K1_PS:", "buffer_store_dword v6, v0, s[24:27], s3 offen", "s_endpgm")

CAP = 48; NS = 4 + 4*CAP
NIT = 7
L_STG = 0; STG_W = NIT*2048
L_H1 = 4*STG_W; L_H2 = L_H1 + 256; L_SN = L_H2 + 256; L_FLAG = L_SN + 256; L_TBL = L_H1 + 1024
L_SPL = L_TBL + 1024; SPL_S = 272
L_NODE = L_SPL + 122*SPL_S
L2_SIZE = L_NODE + 196*NS
assert L_NODE % 16 == 0
T0, T1, EE, NN, DD, QQ = 16, 32, 48, 64, 128, 192
AX, AW1A, AW1B, AW2, AW1C, AEA, AB1 = 0, 48, 112, 176, 240, 248, 254
BIG = 0x1000000

def isz(s):
    s = s.strip(); op = s.split()[0]
    if s.endswith(":") or s.startswith("."): return 0
    if op.endswith(("_e64", "_sdwa", "_dpp")): return 8
    if op.startswith(("v_mfma", "v_pk_", "buffer_", "ds_", "v_cvt_pk", "v_min3", "v_fma_")): return 8
    if op.startswith(("v_exp", "v_rcp", "v_add_f32", "v_mul_f32", "v_add_u32", "v_cmpx", "v_mov", "s_")):
        assert "0x" not in s, s
        return 4
    raise Exception("size? " + s)
def align8(seg):
    off = 0; last4 = None
    seg = list(seg)
    for i, s in enumerate(seg + ["v_pk_x"]):
        z = isz(s)
        if z == 8 and off % 8:
            assert last4 is not None, seg
            op = seg[last4].split()[0]
            seg[last4] = seg[last4].replace(op, op + "_e64", 1); off += 4
        if z == 8: last4 = None
        if z == 4 and s.startswith(("v_exp", "v_rcp", "v_add_f32", "v_mul_f32")) and off % 8 == 0: last4 = i
        off += z
    return seg
def xload(buf, kk): return f"buffer_load_dwordx4 a[{AX+16*buf+4*kk}:{AX+16*buf+4*kk+3}], v[0:1], s[4:7], 0 idxen offen offset:{16*kk}"
def chain(dst, blk, buf, c):
    L = [f"v_mfma_f32_32x32x8_bf16 v[{dst}:{dst+15}], a[{AW1C+2*blk}:{AW1C+2*blk+1}], a[{AEA+2*buf}:{AEA+2*buf+1}], v[{c}:{c+15}]"]
    for kk in range(4):
        w = AW1A + 16*blk + 4*kk; x = AX + 16*buf + 4*kk
        L.append(f"v_mfma_f32_32x32x16_bf16 v[{dst}:{dst+15}], a[{w}:{w+3}], a[{x}:{x+3}], v[{dst}:{dst+15}]")
    return L
def qchain(dst, blk, onehot):
    L = [f"v_mfma_f32_32x32x8_bf16 v[{dst}:{dst+15}], a[{AB1}:{AB1+1}], v[{onehot+2*blk}:{onehot+2*blk+1}], 0"]
    for kk in range(4):
        w = AW1B + 16*blk + 4*kk; x = AX + 32 + 4*kk
        L.append(f"v_mfma_f32_32x32x16_bf16 v[{dst}:{dst+15}], a[{w}:{w+3}], a[{x}:{x+3}], v[{dst}:{dst+15}]")
    return L
def onehot_init(r):
    I(f"v_mov_b32 v{r}, 0x3f80", f"v_mov_b32 v{r+1}, 0", f"v_mov_b32 v{r+2}, 1.0", f"v_mov_b32 v{r+3}, 0",
      f"v_mov_b32 v{r+4}, 0", f"v_mov_b32 v{r+5}, 0x3f80", f"v_mov_b32 v{r+6}, 0", f"v_mov_b32 v{r+7}, 1.0")
def gemm2(blk, hb):
    L = []
    for p in range(2):
        for ob in range(2):
            w = AW2 + 4*((blk*2+p)*2+ob); o = T0 + 16*ob
            L.append(f"v_mfma_f32_32x32x16_bf16 v[{o}:{o+15}], a[{w}:{w+3}], v[{hb+4*p}:{hb+4*p+3}], v[{o}:{o+15}]")
    return L
def weave(ms, fill, cnts, extra=None):
    L = []; fill = list(fill)
    for k, m in enumerate(ms):
        L.append(m)
        if extra: L += extra.get(k, [])
        L += fill[:cnts[k]]; fill = fill[cnts[k]:]
    assert not fill
    return L
nstamp = [0]
def stamp():
    if not OPT["stamp"]: return
    i = nstamp[0]; nstamp[0] += 1
    I(f"s_memtime s[{60+2*i}:{61+2*i}]", "s_waitcnt lgkmcnt(0)", "s_nop 0")

def k2():
    K = NAME + "_kernel"
    I(f".globl {K}", ".p2align 8", f".type {K},@function", f"{K}:")
    I("s_cmp_ge_u32 s2, 256", "s_cbranch_scc1 K2_END")
    stamp()
    I("s_load_dwordx2 s[28:29], s[0:1], 0", "s_load_dwordx2 s[30:31], s[0:1], 64", "s_load_dwordx2 s[32:33], s[0:1], 80")
    I("s_and_b32 s16, s2, 7", "s_lshl_b32 s16, s16, 5", "s_lshr_b32 s3, s2, 3", "s_add_u32 s16, s16, s3")
    I("s_movk_i32 s17, 195", "s_cmp_lt_u32 s16, 80", "s_addc_u32 s17, s17, 0")
    I("v_lshrrev_b32 v2, 6, v0", "v_lshlrev_b32 v3, 10, v0", "s_lshl_b32 s3, s16, 2", "v_readfirstlane_b32 s18, v2")
    I("v_and_b32 v6, 63, v0", "v_lshlrev_b32 v4, 4, v6")
    I("s_waitcnt lgkmcnt(0)")
    srd(12, 32, 33, WS_SIZE)
    I("buffer_load_dword v8, v3, s[12:15], s3 offen")
    srd(4, 28, 29, N_NODES, 128); srd(8, 30, 31, N_NODES, 128)
    def wload(areg, frag):
        off = frag*1024
        if off % 4096 == 0 or frag in (16,): I(f"s_mov_b32 s3, {WP_OFF + (off & ~4095)}")
        I(f"buffer_load_dwordx4 a[{areg}:{areg+3}], v4, s[12:15], s3 offen offset:{off & 4095}")
    for f in range(16): wload(AW1B + 4*f, 16 + f)
    wload(AW1C, 48); wload(AW1C+4, 49)
    I("v_lshlrev_b32 v5, 3, v6")
    I(f"buffer_load_dwordx2 a[{AB1}:{AB1+1}], v5, s[12:15], s3 offen offset:2048",
      f"buffer_load_dwordx2 v[14:15], v5, s[12:15], s3 offen offset:2560")
    I("v_mov_b32 v20, 0", "v_mov_b32 v21, 0", "v_mov_b32 v22, 0", "v_mov_b32 v23, 0", "v_lshlrev_b32 v5, 4, v0", f"v_add_u32 v5, {L_NODE}, v5")
    for i in range(10): I(f"ds_write_b128 v5, v[20:23] offset:{4096*i}")
    I("v_lshlrev_b32 v5, 2, v0", "v_mov_b32 v24, 0xff0000ff", "v_mov_b32 v25, 0xffff",
      "v_cmp_eq_u32 vcc, 2, v2", f"ds_write_b32 v5, v24 offset:{L_TBL}", "s_nop 0", "v_cndmask_b32 v25, v20, v25, vcc",
      f"ds_write_b32 v5, v25 offset:{L_H1}")
    for i in range(10): I(f"s_movk_i32 s{40+i}, {1024*i}")
    I(f"s_mul_i32 s23, s18, {STG_W}", "v_add_u32 v26, s23, v4", "v_add_u32 v27, 8, v26")
    I(f"s_mul_i32 s22, s16, {256*NS}", f"s_sub_u32 s22, {L_NODE}, s22", f"v_mov_b32 v28, {NS}", "v_mov_b32 v29, 1")
    I(f"s_mov_b32 s24, {NLN2}", f"s_mov_b32 s25, {NLN2}", f"s_mov_b32 s26, {N_NODES}", f"s_mov_b32 s34, {KEY_OFF}", f"s_mov_b32 s35, {EA_OFF}")
    I("v_and_b32 v30, 48, v4", f"v_add_u32 v31, {CH*4}, v30", f"v_mul_u32_u24 v32, {CHS}, v0")
    I("v_lshrrev_b32 v1, 5, v6", "v_lshlrev_b32 v1, 6, v1")
    I("s_waitcnt lgkmcnt(0)", "s_barrier", "s_waitcnt vmcnt(20)")
    stamp()
    I("v_and_b32 v33, 0xffff, v8", "v_add_lshl_u32 v32, v32, v33, 2", "v_lshrrev_b32 v33, 16, v8", "v_subrev_u32 v33, 16, v33")
    KEY, AD, RK, O4 = 64, 96, 128, 40
    def compact(dst):
        I("v_cmp_lt_i32 vcc, 0, v33", "s_nop 1", "v_mbcnt_lo_u32_b32 v35, vcc_lo, 0", "v_mbcnt_hi_u32_b32 v35, vcc_hi, v35",
          "v_cmp_gt_u32 s[36:37], 16, v35", "v_lshlrev_b32 v35, 4, v35", "s_nop 0", "s_and_b64 vcc, vcc, s[36:37]",
          "v_cndmask_b32 v35, 4, v35, vcc", f"ds_permute_b32 v{dst}, v35, v34",
          "v_cndmask_b32_e64 v35, 0, 16, vcc", "v_sub_u32 v33, v33, v35", "v_lshl_add_u32 v34, v35, 2, v34")
    I(f"v_add_u32 v34, {hex((64 - CH*4) & 0xffffffff)}, v32")
    compact(36)
    for i in range(4):
        I(f"v_add_u32_dpp v{O4+i}, v32, v30 quad_perm:[{i},{i},{i},{i}] row_mask:0xf bank_mask:0xf",
          f"buffer_load_dwordx4 v[{KEY+4*i}:{KEY+4*i+3}], v{O4+i}, s[12:15], s34 offen")
    I("s_waitcnt lgkmcnt(0)", f"v_add_u32_dpp v{O4+4}, v36, v31 quad_perm:[0,0,0,0] row_mask:0xf bank_mask:0xf",
      f"buffer_load_dwordx4 v[{KEY+16}:{KEY+19}], v{O4+4}, s[12:15], s34 offen")
    for i in range(5):
        I(f"s_add_u32 m0, s23, {2048*i}", f"v_lshlrev_b32 v{O4+i}, 1, v{O4+i}", f"buffer_load_dwordx4 v{O4+i}, s[12:15], s35 offen lds",
          f"s_add_u32 m0, s23, {2048*i+1024-16}", "s_nop 0", f"buffer_load_dwordx4 v{O4+i}, s[12:15], s35 offen offset:16 lds")
    def phaseB(k, a, r, sreg):
        for j in range(4): I(f"v_mad_u32_u16 v{a+j}, v{k+j}, v28, s22")
        for j in range(4):
            I(f"ds_add_rtn_u32 v{r+j}, v{a+j}, v29",
              f"v_add_u32_sdwa v{k+j}, v{26+(j&1)}, s{sreg+(j>>1)} dst_sel:WORD_0 dst_unused:UNUSED_PRESERVE src0_sel:DWORD src1_sel:DWORD")
    def phaseC(k, a, r):
        for j in range(4): I(f"v_min_u32 v{r+j}, {CAP-1}, v{r+j}", f"v_lshl_add_u32 v{a+j}, v{r+j}, 2, v{a+j}", f"ds_write_b32 v{a+j}, v{k+j} offset:4")
    for i in range(5):
        I(f"s_waitcnt vmcnt({14-i})")
        if i == 0: stamp()
        phaseB(KEY+4*i, AD+4*i, RK+4*i, 40+2*i)
    for f in range(16): wload(AW1A + 4*f, f)
    for f in range(16): wload(AW2 + 4*f, 32 + f)
    I("s_waitcnt lgkmcnt(0)")
    for i in range(5): phaseC(KEY+4*i, AD+4*i, RK+4*i)
    I("v_cmp_lt_i32 vcc, 0, v33", "s_cbranch_vccnz K2_MORE", "K2_MORE_RET:")
    I(f"v_mul_u32_u24 v20, {NS}, v0", f"v_add_u32 v20, {L_NODE}, v20", "v_cmp_gt_u32 s[38:39], s17, v0", "v_lshlrev_b32 v21, 2, v6")
    I("s_sub_u32 s27, 256, s17", "s_sub_u32 s3, s27, 32")
    I("s_waitcnt lgkmcnt(0)", "s_barrier")
    stamp()
    I("s_mov_b64 exec, s[38:39]", "ds_read_b32 v20, v20", "s_waitcnt lgkmcnt(0)")
    I(f"v_cmp_lt_u32 vcc, {CAP}, v20", "v_min_u32 v20, 63, v20", "v_sub_u32 v22, 63, v20", "v_lshlrev_b32 v22, 2, v22",
      f"ds_add_rtn_u32 v23, v22, v29 offset:{L_H1}")
    I("s_cbranch_vccz K2_A1", "v_mov_b32 v24, 0", f"ds_write_b32 v24, v29 offset:{L_FLAG}", "K2_A1:")
    I("s_mov_b64 exec, -1", "v_mov_b32 v24, 0", "s_waitcnt lgkmcnt(0)", "s_barrier")
    I(f"ds_read_b32 v25, v21 offset:{L_H1}", f"ds_read_b32 v24, v24 offset:{L_FLAG}", "s_waitcnt lgkmcnt(0)")
    I("v_mov_b32 v26, v25", "v_readfirstlane_b32 s36, v24")
    scan64(26)
    I("s_cmp_lg_u32 s36, 0", "s_cbranch_scc1 K2_SLOW")
    I("v_sub_u32 v26, v26, v25", "ds_bpermute_b32 v26, v22, v26")
    I("v_lshrrev_b32 v30, 1, v20", "v_cmp_lt_u32 s[36:37], 25, v20", "s_waitcnt lgkmcnt(0)")
    I("v_add_u32 v23, v23, v26", "v_cmp_gt_u32 vcc, s3, v23", "v_lshlrev_b32 v33, 1, v23", "v_lshlrev_b32 v34, 2, v23",
      "v_cndmask_b32_e64 v31, 8, 10, vcc", "v_cndmask_b32 v31, v31, v30, s[36:37]")
    I("v_cmp_gt_u32 vcc, s27, v23", "v_cmp_gt_u32 s[36:37], v20, v31", "v_mov_b32 v35, 0xff", "s_nop 0",
      "s_and_b64 vcc, vcc, s[36:37]", "s_and_b64 vcc, vcc, s[38:39]")
    I("v_cndmask_b32 v32, 0, v31, vcc", "v_sub_u32 v32, v20, v32", "v_cndmask_b32 v35, v35, v33, vcc")
    I("v_sub_u32 v36, 63, v32", "v_lshlrev_b32 v36, 2, v36", "v_sub_u32 v37, 63, v31", "v_lshlrev_b32 v37, 2, v37")
    I("s_mov_b64 exec, s[38:39]", f"ds_add_rtn_u32 v38, v36, v29 offset:{L_H2}")
    I("v_lshl_add_u32 v40, v0, 8, s16")
    I("s_mov_b64 exec, vcc", f"ds_add_rtn_u32 v39, v37, v29 offset:{L_H2}", f"ds_write_b32 v34, v40 offset:{L_SN}")
    I("s_mov_b64 exec, -1")
    I("v_lshl_or_b32 v41, v35, 8, v32", "v_lshl_or_b32 v41, v41, 16, v0")
    I("v_or_b32 v33, 1, v33", "v_lshl_or_b32 v42, v33, 8, v31", "v_lshl_or_b32 v42, v42, 8, v32", "v_lshl_or_b32 v42, v42, 8, v0")
    I("s_waitcnt lgkmcnt(0)", "s_barrier")
    I(f"ds_read_b32 v25, v21 offset:{L_H2}", "s_waitcnt lgkmcnt(0)", "v_mov_b32 v26, v25")
    scan64(26)
    I("v_sub_u32 v26, v26, v25", "ds_bpermute_b32 v36, v36, v26", "ds_bpermute_b32 v37, v37, v26")
    I("v_and_b32 v20, 31, v6", "s_lshl_b32 s3, s18, 7", "v_lshl_add_u32 v22, v20, 2, s3", "s_sub_u32 s3, 896, s3", "v_lshl_add_u32 v23, v20, 2, s3")
    I("s_waitcnt lgkmcnt(0)", "v_add_lshl_u32 v36, v36, v38, 2", "v_add_lshl_u32 v37, v37, v39, 2")
    I("s_mov_b64 exec, s[38:39]", f"ds_write_b32 v36, v41 offset:{L_TBL}", "s_mov_b64 exec, vcc", f"ds_write_b32 v37, v42 offset:{L_TBL}",
      "s_mov_b64 exec, -1")
    I("s_waitcnt vmcnt(32) lgkmcnt(0)", "s_barrier")
    stamp()
    I(f"ds_read_b32 v7, v22 offset:{L_TBL}", f"ds_read_b32 v6, v23 offset:{L_TBL}", "s_mov_b32 s21, 0", "s_mov_b32 s27, %d" % (L_NODE+4), "s_waitcnt lgkmcnt(0)")
    I("K2_GSTART:")
    I("v_and_b32 v9, 0xff, v7", "v_lshl_add_u32 v0, v9, 8, s16", f"v_mul_u32_u24 v2, {NS}, v9", "v_bfe_u32 v9, v7, 8, 8",
      "v_lshl_add_u32 v2, v9, 2, v2", "v_add_u32 v2, s27, v2", "v_bfe_u32 v3, v7, 16, 8", "s_mov_b32 s6, s26")
    I("ds_read_u16 v9, v2 offset:2", "ds_read_u16 v10, v2 offset:6", "ds_read_u16 v4, v2", "ds_read_u16 v13, v2 offset:4",
      "ds_read_u16 v11, v2 offset:10", "ds_read_u16 v12, v2 offset:14")
    I(*[xload(2, k) for k in range(4)])
    I("v_readfirstlane_b32 s20, v3", "s_waitcnt lgkmcnt(2)", "v_mov_b32 v0, v9")
    I(*[xload(0, k) for k in range(4)])
    I("v_mov_b32 v0, v10")
    I(*[xload(1, k) for k in range(4)])
    I(f"ds_read_b64 a[{AEA}:{AEA+1}], v4", f"ds_read_b64 a[{AEA+2}:{AEA+3}], v13", "ds_read_u16 v4, v2 offset:8")
    I("s_cmp_lg_u32 s21, 0", "s_cbranch_scc1 K2_FIN")
    I("K2_FIRST:")
    I("v_mov_b32 v5, v7", "v_mov_b32 v7, v6", "s_sub_u32 s37, s20, 3", "s_mov_b32 s19, 1")
    onehot_init(EE)
    I("s_cmp_eq_u32 s21, 0", "s_cbranch_scc1 K2_F0", "s_waitcnt vmcnt(4) lgkmcnt(0)", "s_branch K2_F1", "K2_F0:", "s_waitcnt vmcnt(8) lgkmcnt(0)", "K2_F1:")
    stamp()
    for b in range(4): I(*qchain(QQ+16*b, b, EE))
    I("v_mov_b32 v0, v11", "s_waitcnt vmcnt(4)")
    c0 = chain(NN, 0, 0, QQ)
    I(c0[0], c0[1], xload(2, 0), c0[2], xload(2, 1), c0[3], xload(2, 2), c0[4], xload(2, 3))
    I("s_nop 7", "v_mov_b32 v0, v12", "s_nop 0", ".p2align 3")
    for b in range(4):
        ex = [f"v_exp_f32 v{DD+16*b+i}, v{NN+16*b+i}" for i in range(16)]
        if b < 3: seg = weave(chain(NN+16*(b+1), b+1, 0, QQ+16*(b+1)), ex, (3,3,3,3,4), {4: ["s_waitcnt vmcnt(4)"]} if b == 2 else None)
        else: seg = weave(chain(T0, 0, 1, QQ), ex, (3,3,3,3,4), {0: [xload(0, 0)], 1: ["s_cmp_ge_u32 s19, s20"], 4: [xload(0, 1)]})
        seg += [f"v_pk_add_f32 v[{DD+16*b+2*i}:{DD+16*b+2*i+1}], v[{DD+16*b+2*i}:{DD+16*b+2*i+1}], 1.0 op_sel_hi:[1,0]" for i in range(8)]
        I(*align8(seg))
    I("s_cbranch_scc1 K2_EXIT", "s_nop 0")
    I(".p2align 3", "K2_LOOP:")
    for t in range(3):
        cur = (1+t) % 3; nxt = (2+t) % 3; prv = t % 3
        for b in range(4):
            tc = T0 + 16*(b % 2); tn = T0 + 16*((b+1) % 2)
            ex = [f"v_exp_f32 v{EE+i}, v{tc+i}" for i in range(16)]
            if b == 0: extra = {0: [xload(prv, 2)], 4: [xload(prv, 3), "v_cmpx_lt_u32 vcc, s19, v3"]}
            elif b == 1: extra = {0: [f"ds_read_u16 v0, v2 offset:{4*(t+4)+2}"], 1: ["s_cmp_lt_i32 s19, s37"], 2: ["s_cselect_b32 s6, s26, 0"],
                                  4: [f"ds_read_b64 a[{AEA+2*nxt}:{AEA+2*nxt+1}], v4"]}
            elif b == 2:
                extra = {0: [f"ds_read_u16 v4, v2 offset:{4*(t+3)}"], 4: ["s_waitcnt vmcnt(4) lgkmcnt(0)"]}
                if t == 2: extra[4].append("v_add_u32 v2, 12, v2")
            else: extra = {0: [xload(cur, 0)], 1: ["s_add_u32 s19, s19, 1"], 2: ["s_cmp_ge_u32 s19, s20"], 4: [xload(cur, 1)]}
            ms = chain(tn, b+1, cur, QQ+16*(b+1)) if b < 3 else chain(tn, 0, nxt, QQ)
            seg = weave(ms, ex, (3,3,3,3,4), extra)
            n = NN+16*b; d = DD+16*b
            seg += [f"v_pk_fma_f32 v[{n+2*i}:{n+2*i+1}], v[{n+2*i}:{n+2*i+1}], v[{EE+2*i}:{EE+2*i+1}], v[{n+2*i}:{n+2*i+1}]" for i in range(8)]
            seg += [f"v_pk_fma_f32 v[{n+2*i}:{n+2*i+1}], v[{tc+2*i}:{tc+2*i+1}], v[{d+2*i}:{d+2*i+1}], v[{n+2*i}:{n+2*i+1}]" for i in range(8)]
            seg += [f"v_pk_fma_f32 v[{d+2*i}:{d+2*i+1}], v[{d+2*i}:{d+2*i+1}], v[{EE+2*i}:{EE+2*i+1}], v[{d+2*i}:{d+2*i+1}]" for i in range(8)]
            I(*align8(seg))
        if t < 2: I("s_cbranch_scc1 K2_EXIT", "s_nop 0")
        else: I("s_cbranch_scc0 K2_LOOP")
    I("K2_EXIT:")
    stamp()
    I("s_mov_b64 exec, -1", "s_add_u32 s21, s21, 1", "s_cmp_eq_u32 s21, 1", "s_cbranch_scc1 K2_GSTART")
    I("K2_FIN:")
    HB = QQ; LB = QQ+32; RM = QQ+36
    I(f"v_cvt_f32_ubyte2 v{LB+2}, v5", f"v_mov_b32 v{LB+1}, 0", f"v_mov_b32 v{LB+3}, 0", f"v_lshrrev_b32 v{LB}, 16, v{LB+2}", f"v_mov_b32 v{RM}, 1.0", "s_nop 0", ".p2align 3")
    def rc(b):
        r = [f"v_rcp_f32 v{DD+16*b+i}, v{DD+16*b+i}" for i in range(16)]
        return r + [f"v_min3_f32 v{RM}, v{DD+16*b+2*i}, v{DD+16*b+2*i+1}, v{RM}" for i in range(8)]
    def mc(b):
        n = NN+16*b; d = DD+16*b
        return [f"v_pk_mul_f32 v[{n+2*i}:{n+2*i+1}], v[{n+2*i}:{n+2*i+1}], v[{d+2*i}:{d+2*i+1}]" for i in range(8)] + \
               [f"v_cvt_pk_bf16_f32 v{HB+8*b+i}, v{n+2*i}, v{n+2*i+1}" for i in range(8)]
    binit = [f"v_mfma_f32_32x32x8_bf16 v[{T0+16*ob}:{T0+16*ob+15}], v[14:15], v[{LB+2*ob}:{LB+2*ob+1}], 0" for ob in range(2)]
    I(*align8(weave(binit, rc(0), (4, 20)) + mc(0)))
    for b in range(3): I(*align8(weave(gemm2(b, HB+8*b), rc(b+1), (3,3,3,15)) + mc(b+1)))
    I(*gemm2(3, HB+24))
    OA = EE
    I(f"v_and_b32 v{OA}, 0xff, v5", f"v_lshl_add_u32 v0, v{OA}, 8, s16", f"v_lshrrev_b32 v{OA}, 24, v5", f"v_cmp_eq_u32 vcc, 0xff, v{OA}",
      f"v_mul_u32_u24 v{OA}, {SPL_S}, v{OA}", f"v_lshl_add_u32 v{OA}, v1, 1, v{OA}", f"v_mov_b32 v{OA+1}, {hex(BIG)}",
      f"v_cndmask_b32 v{OA}, v{OA}, v{OA+1}, vcc", f"v_cndmask_b32 v0, v{OA+1}, v0, vcc",
      f"v_cmp_eq_u32 s[38:39], 0, v{LB+2}", f"v_mov_b32 v{OA+2}, 0x207", f"v_cmp_lt_f32 vcc, {f32(2.0**-100)}, v{RM}", "s_nop 1")
    for i in range(16): I(f"v_pk_mul_f32 v[{T0+2*i}:{T0+2*i+1}], v[{T0+2*i}:{T0+2*i+1}], s[24:25]")
    I(f"v_cmp_class_f32 s[40:41], v{T0}, v{OA+2}", "s_nop 1", "s_andn2_b64 vcc, vcc, s[40:41]", "s_andn2_b64 s[40:41], vcc, s[38:39]",
      "s_cmp_eq_u64 s[40:41], -1", "s_cbranch_scc0 K2_RARE", "K2_RARE_RET:")
    for i in range(8): I(f"ds_write_b128 v{OA}, v[{T0+4*i}:{T0+4*i+3}] offset:{L_SPL+16*i}")
    for i in range(16): I(f"v_cvt_pk_bf16_f32 v{HB+i}, v{T0+2*i}, v{T0+2*i+1}")
    for i in range(4): I(f"buffer_store_dwordx4 v[{HB+4*i}:{HB+4*i+3}], v[0:1], s[8:11], 0 idxen offen offset:{16*i}")
    I("s_cmp_eq_u32 s21, 1", "s_cbranch_scc1 K2_FIRST")
    stamp()
    I("v_mbcnt_lo_u32_b32 v6, -1, 0", "v_mbcnt_hi_u32_b32 v6, -1, v6", "s_lshl_b32 s3, s18, 6", "v_add_u32 v6, s3, v6")
    I("v_and_b32 v2, 0xfc, v6", "v_and_b32 v3, 3, v6", f"v_mul_u32_u24 v4, {SPL_S//2}, v2", "v_lshl_add_u32 v4, v3, 6, v4", "v_lshlrev_b32 v11, 5, v3", "v_mov_b32 v9, 0")
    I("s_waitcnt lgkmcnt(0)", "s_barrier")
    I(f"ds_read_b32 v9, v9 offset:{L_FLAG}", f"ds_read_b32 v10, v2 offset:{L_SN}")
    for i in range(4): I(f"ds_read_b128 v[{16+4*i}:{19+4*i}], v4 offset:{L_SPL+16*i}", f"ds_read_b128 v[{32+4*i}:{35+4*i}], v4 offset:{L_SPL+SPL_S+16*i}")
    I("s_waitcnt lgkmcnt(0)", "v_readfirstlane_b32 s36, v9")
    for i in range(8): I(f"v_pk_add_f32 v[{16+2*i}:{17+2*i}], v[{16+2*i}:{17+2*i}], v[{32+2*i}:{33+2*i}]")
    I("s_cmp_lg_u32 s36, 0", "s_cbranch_scc1 K2_SLOW")
    for i in range(8): I(f"v_cvt_pk_bf16_f32 v{32+i}, v{16+2*i}, v{17+2*i}")
    for i in range(2): I(f"buffer_store_dwordx4 v[{32+4*i}:{35+4*i}], v[10:11], s[8:11], 0 idxen offen offset:{16*i}")
    if OPT["stamp"]:
        I("s_waitcnt vmcnt(0)"); stamp(); I("s_waitcnt lgkmcnt(0)")
        I("s_lshl_b32 s3, s2, 2", "s_add_u32 s3, s3, s18", "s_lshl_b32 s3, s3, 6", f"s_add_u32 s3, s3, {STAMP_OFF}", "v_mov_b32 v0, 0")
        for i in range(nstamp[0]): I(f"v_mov_b32 v1, s{60+2*i}", f"buffer_store_dword v1, v0, s[12:15], s3 offen offset:{4*i}")
    I("K2_END:", "s_endpgm")
    I("K2_RARE:")
    I("s_or_b64 vcc, vcc, s[38:39]", "s_cmp_eq_u64 vcc, -1", "s_cbranch_scc1 K2_RARE2")
    I(f"v_mov_b32 v{OA+2}, 0", f"v_mov_b32 v{OA+3}, 1", f"ds_write_b32 v{OA+2}, v{OA+3} offset:{L_FLAG}")
    I("K2_RARE2:", "s_mov_b64 exec, s[38:39]")
    for i in range(32): I(f"v_mov_b32 v{T0+i}, 0")
    I("s_mov_b64 exec, -1", "s_branch K2_RARE_RET")
    I("K2_MORE:", f"s_movk_i32 s40, {2048*5}")
    I("K2_MORE_L:")
    compact(36)
    I("s_add_u32 s41, s40, 1024", "s_add_u32 s3, s23, s40", "s_waitcnt lgkmcnt(0)",
      f"v_add_u32_dpp v{O4}, v36, v31 quad_perm:[0,0,0,0] row_mask:0xf bank_mask:0xf",
      f"buffer_load_dwordx4 v[{KEY}:{KEY+3}], v{O4}, s[12:15], s34 offen",
      "s_mov_b32 m0, s3", f"v_lshlrev_b32 v{O4}, 1, v{O4}", f"buffer_load_dwordx4 v{O4}, s[12:15], s35 offen lds",
      f"s_add_u32 m0, s3, {1024-16}", "s_nop 0", f"buffer_load_dwordx4 v{O4}, s[12:15], s35 offen offset:16 lds", "s_waitcnt vmcnt(0)")
    phaseB(KEY, AD, RK, 40)
    I("s_waitcnt lgkmcnt(0)")
    phaseC(KEY, AD, RK)
    I("v_cmp_lt_i32 vcc, 0, v33", "s_cbranch_vccz K2_MORE_RET", "s_add_u32 s40, s40, 2048", f"s_cmp_lt_u32 s40, {STG_W}", "s_cbranch_scc1 K2_MORE_L")
    I("v_mov_b32 v24, 0", f"ds_write_b32 v24, v29 offset:{L_FLAG}", "s_branch K2_MORE_RET")
    I("K2_SLOW:")
    I("s_mov_b64 exec, -1", "s_waitcnt vmcnt(0) lgkmcnt(0)", "s_barrier")
    I("v_mbcnt_lo_u32_b32 v6, -1, 0", "v_mbcnt_hi_u32_b32 v6, -1, v6", "s_lshl_b32 s3, s18, 6", "v_add_u32 v7, s3, v6")
    I("v_lshrrev_b32 v1, 5, v6", "v_lshlrev_b32 v1, 6, v1", "v_and_b32 v6, 31, v6", "v_lshlrev_b32 v2, 4, v7")
    for i in range(4): I(f"v_mov_b32 v{16+i}, 0")
    for i in range(13): I(f"ds_write_b128 v2, v[16:19] offset:{4096*i}")
    onehot_init(EE)
    I("s_mov_b32 s6, s26", "s_mov_b32 s19, 0", "s_waitcnt lgkmcnt(0)", "s_barrier")
    I("K2_S_SEG:")
    I("v_readlane_b32 s36, v8, s19", "s_lshl_b32 s3, s18, 6", "s_add_u32 s3, s3, s19", f"s_mul_i32 s3, s3, {CHS}", "s_nop 0",
      "s_lshr_b32 s20, s36, 16", "s_and_b32 s36, s36, 0xffff", "s_add_u32 s36, s36, s3")
    I("K2_S_TILE:")
    I("s_cmp_le_i32 s20, 0", "s_cbranch_scc1 K2_S_NEXT")
    I("v_add_lshl_u32 v2, s36, v6, 2", "v_lshlrev_b32 v3, 1, v2", "v_cmp_gt_i32 s[38:39], s20, v6")
    I("buffer_load_dword v9, v2, s[12:15], s34 offen", f"buffer_load_dwordx2 a[{AEA}:{AEA+1}], v3, s[12:15], s35 offen", "s_waitcnt vmcnt(0)")
    I("v_lshrrev_b32 v0, 16, v9"); I(*[xload(0, k) for k in range(4)])
    I("v_and_b32 v9, 0xff, v9", "v_lshl_add_u32 v0, v9, 8, s16"); I(*[xload(2, k) for k in range(4)])
    I("v_mul_u32_u24 v9, 260, v9", "v_lshl_add_u32 v9, v1, 1, v9", "s_waitcnt vmcnt(0)")
    for b in range(4): I(*qchain(NN+16*b, b, EE)); I(*chain(NN+16*b, b, 0, NN+16*b))
    for ob in range(2): I(f"v_mfma_f32_32x32x8_bf16 v[{T0+16*ob}:{T0+16*ob+15}], v[14:15], v[{EE+2*ob}:{EE+2*ob+1}], 0")
    I("s_nop 15")
    for i in range(64): I(f"v_exp_f32 v{DD+i}, v{NN+i}")
    for i in range(32): I(f"v_pk_add_f32 v[{DD+2*i}:{DD+2*i+1}], v[{DD+2*i}:{DD+2*i+1}], 1.0 op_sel_hi:[1,0]")
    for i in range(64): I(f"v_rcp_f32 v{DD+i}, v{DD+i}")
    for b in range(4): I(*mc(b))
    I("s_nop 1")
    for b in range(4): I(*gemm2(b, HB+8*b))
    I("s_nop 15")
    for i in range(16): I(f"v_pk_mul_f32 v[{T0+2*i}:{T0+2*i+1}], v[{T0+2*i}:{T0+2*i+1}], s[24:25]")
    I("s_mov_b64 exec, s[38:39]")
    for i in range(32): I(f"ds_add_f32 v9, v{T0+i} offset:{4*i}")
    I("s_mov_b64 exec, -1", "s_waitcnt lgkmcnt(0)", "s_sub_u32 s20, s20, 32", "s_add_u32 s36, s36, 32", "s_branch K2_S_TILE")
    I("K2_S_NEXT:", "s_add_u32 s19, s19, 1", "s_cmp_lt_u32 s19, 64", "s_cbranch_scc1 K2_S_SEG")
    I("s_barrier", "v_and_b32 v3, 7, v7", "v_lshlrev_b32 v1, 4, v3", "v_lshrrev_b32 v7, 3, v7", "s_mov_b32 s19, 0")
    I("K2_S_OUT:")
    I("v_mul_u32_u24 v2, 260, v7", "v_lshl_add_u32 v2, v3, 5, v2", "v_lshl_add_u32 v0, v7, 8, s16")
    for i in range(8): I(f"ds_read_b32 v{16+i}, v2 offset:{4*i}")
    I("s_waitcnt lgkmcnt(0)")
    for i in range(4): I(f"v_cvt_pk_bf16_f32 v{24+i}, v{16+2*i}, v{17+2*i}")
    I("buffer_store_dwordx4 v[24:27], v[0:1], s[8:11], 0 idxen offen", "v_add_u32 v7, 32, v7", "s_waitcnt vmcnt(0)")
    I("s_add_u32 s19, s19, 1", "s_cmp_lt_u32 s19, 7", "s_cbranch_scc1 K2_S_OUT", "s_endpgm")

def desc(name, vgpr, accum, sgpr):
    I(".p2align 6", f".amdhsa_kernel {name}")
    for l in (f"next_free_vgpr {vgpr}", f"next_free_sgpr {sgpr}", f"accum_offset {accum}", "group_segment_fixed_size 0", "kernarg_size 88",
              "user_sgpr_count 2", "user_sgpr_kernarg_segment_ptr 1", "system_sgpr_workgroup_id_x 1", "float_denorm_mode_32 3"):
        out.append("  .amdhsa_" + l)
    I(".end_amdhsa_kernel")

hdr = [l.rstrip("\n") for l in open(f"cdna_kernels/{NAME}.s.ref") if l.startswith(";") and "@launch" not in l][:12]
hdr += [f"; @launch kernel=mpnn_sort_kernel grid=({256+NPREP},1,1) block=({K1_T},1,1) lds={L1_SIZE}",
        f"; @launch kernel={NAME}_kernel grid=(256,1,1) block=(256,1,1) lds={L2_SIZE}"]
I('.amdgcn_target "amdgcn-amd-amdhsa--gfx950"', ".text")
k1(); k2()
I('.section .rodata,"a"')
desc("mpnn_sort_kernel", 48, 48, 48)
desc(NAME + "_kernel", 512, 256, 102)
open(sys.argv[1], "w").write("\n".join(hdr + out) + "\n")
```

```python
import sys, struct, math
NAME = "standalone__edge_featured_mpnn_mpnn__graph"
OPT = dict(stamp=0, strip=0, diag=0)
for a in sys.argv[2:]:
    k, v = a.split("="); OPT[k] = int(v)

N_NODES = 50000; E = 800000
CH = 3125; CHS = 3168
TS = 1152
TAB_OFF = 0; WP_OFF = 0x48000; KEY_OFF = 0x58000; EA_OFF = 0x370000; STAMP_OFF = 0x1000000
WS_SIZE = 0x10000000
SPIN = 400000
def f32(x): return "0x%08x" % struct.unpack("<I", struct.pack("<f", x))[0]
NLOG2E = f32(-math.log2(math.e)); NLN2 = f32(-math.log(2.0))

out = []
def I(*ls):
    for l in ls:
        for x in l.split("\n"):
            x = x.strip()
            if x: out.append(x if x.endswith(":") or x.startswith(".") else "    " + x)
def srd(d, lo, hi, size, stride=0):
    I(f"s_mov_b32 s{d}, s{lo}")
    if stride: I(f"s_or_b32 s{d+1}, s{hi}, {hex(stride << 16)}")
    else: I(f"s_mov_b32 s{d+1}, s{hi}")
    I(f"s_mov_b32 s{d+2}, {size}", f"s_mov_b32 s{d+3}, 0x20000")
def scan64(v, fill=None):
    fill = list(fill or [])
    def gap():
        n = 0
        while fill and n < 2: I(fill.pop(0)); n += 1
        if n < 2: I(f"s_nop {1-n}")
    for op in ("row_shr:1", "row_shr:2", "row_shr:4", "row_shr:8"):
        gap(); I(f"v_add_u32_dpp v{v}, v{v}, v{v} {op} row_mask:0xf bank_mask:0xf bound_ctrl:0")
    gap(); I(f"v_add_u32_dpp v{v}, v{v}, v{v} row_bcast:15 row_mask:0xa bank_mask:0xf")
    gap(); I(f"v_add_u32_dpp v{v}, v{v}, v{v} row_bcast:31 row_mask:0xc bank_mask:0xf")
    I(*fill)
SLOTS = list(range(86, 98)) + list(range(64, 84))
stamps = []
def stamp(name, twice=False):
    if not OPT["stamp"]: return
    if twice:
        stamps.append(name + "1")
        I(f"s_mov_b32 s{SLOTS[len(stamps)-1]}, s{SLOTS[len(stamps)]}", "s_nop 0")
        name += "2"
    stamps.append(name)
    I(f"{'s_memtime' if OPT['stamp']==1 else 's_memrealtime'} s[98:99]", "s_waitcnt lgkmcnt(0)", f"s_mov_b32 s{SLOTS[len(stamps)-1]}, s98")

CAP = 48; NS = 4 + 4*CAP
NIT = 7
STG_W = NIT*2048
L1_KEY = 0; L1_EA = CHS*4; L1_CNT = 45056; L1_BASE = L1_CNT + 1024
L_H1 = 4*STG_W; L_H2 = L_H1 + 256; L_SN = L_H2 + 256; L_FLAG = L_SN + 256; L_TBL = L_H1 + 1024
L_SPL = L_TBL + 1024; SPL_S = 272
L_W = L_SPL; WQ = 13*1024
L_NODE = L_W + 4*WQ
L_SIZE = L_NODE + 196*NS
T0, T1, EE, NN, DD, QQ = 16, 32, 48, 64, 128, 192
AX, AW1A, AW1B, AW2, AW1C, AEA, AB1 = 0, 48, 112, 176, 240, 248, 254
BIG = 0x1000000

def isz(s):
    s = s.strip(); op = s.split()[0]
    if s.endswith(":") or s.startswith("."): return 0
    if op.endswith(("_e64", "_sdwa", "_dpp")): return 8
    if op.startswith(("v_mfma", "v_pk_", "buffer_", "ds_", "v_cvt_pk", "v_min3", "v_fma_")): return 8
    if op.startswith(("v_exp", "v_rcp", "v_add_f32", "v_mul_f32", "v_add_u32", "v_cmpx", "v_mov", "s_")):
        assert "0x" not in s, s
        return 4
    raise Exception("size? " + s)
def align8(seg):
    off = 0; last4 = None
    seg = list(seg)
    for i, s in enumerate(seg + ["v_pk_x"]):
        z = isz(s)
        if z == 8 and off % 8:
            assert last4 is not None, seg
            op = seg[last4].split()[0]
            seg[last4] = seg[last4].replace(op, op + "_e64", 1); off += 4
        if z == 8: last4 = None
        if z == 4 and s.startswith(("v_exp", "v_rcp", "v_add_f32", "v_mul_f32")) and off % 8 == 0: last4 = i
        off += z
    return seg
def xload(buf, kk): return f"buffer_load_dwordx4 a[{AX+16*buf+4*kk}:{AX+16*buf+4*kk+3}], v[0:1], s[4:7], 0 idxen offen offset:{16*kk}"
def chain(dst, blk, buf, c):
    L = [f"v_mfma_f32_32x32x8_bf16 v[{dst}:{dst+15}], a[{AW1C+2*blk}:{AW1C+2*blk+1}], a[{AEA+2*buf}:{AEA+2*buf+1}], v[{c}:{c+15}]"]
    for kk in range(4):
        w = AW1A + 16*blk + 4*kk; x = AX + 16*buf + 4*kk
        L.append(f"v_mfma_f32_32x32x16_bf16 v[{dst}:{dst+15}], a[{w}:{w+3}], a[{x}:{x+3}], v[{dst}:{dst+15}]")
    return L
def qchain(dst, blk, onehot):
    L = [f"v_mfma_f32_32x32x8_bf16 v[{dst}:{dst+15}], a[{AB1}:{AB1+1}], v[{onehot+2*blk}:{onehot+2*blk+1}], 0"]
    for kk in range(4):
        w = AW1B + 16*blk + 4*kk; x = AX + 32 + 4*kk
        L.append(f"v_mfma_f32_32x32x16_bf16 v[{dst}:{dst+15}], a[{w}:{w+3}], a[{x}:{x+3}], v[{dst}:{dst+15}]")
    return L
def onehot_init(r):
    I(f"v_mov_b32 v{r}, 0x3f80", f"v_mov_b32 v{r+1}, 0", f"v_mov_b32 v{r+2}, 1.0", f"v_mov_b32 v{r+3}, 0",
      f"v_mov_b32 v{r+4}, 0", f"v_mov_b32 v{r+5}, 0x3f80", f"v_mov_b32 v{r+6}, 0", f"v_mov_b32 v{r+7}, 1.0")
def gemm2(blk, hb):
    L = []
    for p in range(2):
        for ob in range(2):
            w = AW2 + 4*((blk*2+p)*2+ob); o = T0 + 16*ob
            L.append(f"v_mfma_f32_32x32x16_bf16 v[{o}:{o+15}], a[{w}:{w+3}], v[{hb+4*p}:{hb+4*p+3}], v[{o}:{o+15}]")
    return L
def weave(ms, fill, cnts, extra=None):
    L = []; fill = list(fill)
    for k, m in enumerate(ms):
        L.append(m)
        if extra: L += extra.get(k, [])
        L += fill[:cnts[k]]; fill = fill[cnts[k]:]
    assert not fill
    return L
def repoll(tag, load, cmp):
    I(f"{tag}:", f"s_mov_b32 s3, {SPIN}", f"{tag}_L:", "s_sleep 4", load, "s_sub_u32 s3, s3, 1", "s_cbranch_scc1 K_END",
      "s_waitcnt vmcnt(0)", cmp, f"s_cbranch_vccnz {tag}_L", f"s_branch {tag}_RET")

def prep_addr():
    I(f"s_mov_b32 s63, {NLOG2E}", "s_mov_b32 s27, 0")
    I("s_cmp_ge_u32 s3, 200", "s_cbranch_scc1 P_B")
    I("s_and_b32 s36, s3, 1", "s_lshl_b32 s36, s36, 4", "v_lshrrev_b32 v21, 2, v6", "v_add_u32 v21, s36, v21", "v_and_b32 v22, 3, v6")
    I("s_bfe_u32 s37, s3, 0x10001", "s_lshr_b32 s38, s3, 2")
    I("s_cmp_ge_u32 s38, 48", "s_cbranch_scc1 P_C", "s_cmp_ge_u32 s38, 32", "s_cbranch_scc1 P_2")
    I("s_lshr_b32 s39, s38, 4", "s_lshl_b32 s39, s39, 1", "s_add_u32 s39, s39, s37", "s_lshl_b32 s39, s39, 2",
      "s_and_b32 s36, s38, 3", "s_add_u32 s39, s39, s36", "s_lshl_b32 s39, s39, 11",
      "s_bfe_u32 s36, s38, 0x20002", "s_lshl_b32 s36, s36, 6", "s_add_u32 s39, s39, s36")
    I("v_lshlrev_b32 v22, 9, v22", "v_lshl_add_u32 v20, v21, 1, v22", "v_add_u32 v20, s39, v20")
    I("s_waitcnt lgkmcnt(0)", "s_mov_b32 s56, s72", "s_mov_b32 s57, s73", f"s_mov_b32 s58, {132*256}", "s_movk_i32 s62, 256", "s_branch P_T")
    I("P_C:")
    I("s_and_b32 s39, s38, 1", "s_lshl_b32 s39, s39, 7", f"s_add_u32 s39, s39, {128*256}")
    I("v_and_b32 v20, 1, v22", "v_lshlrev_b32 v20, 9, v20", "v_lshrrev_b32 v22, 1, v22", "v_lshl_add_u32 v20, v22, 6, v20",
      "v_lshl_add_u32 v20, v21, 1, v20", "v_add_u32 v20, s39, v20")
    I("s_waitcnt lgkmcnt(0)", "s_mov_b32 s56, s72", "s_mov_b32 s57, s73", f"s_mov_b32 s58, {132*256}", "s_movk_i32 s62, 256", "s_mov_b32 s27, s37", "s_branch P_T")
    def dcol2(dst, m, t):
        I(f"v_bfe_u32 v{dst}, v{m}, 2, 1", f"v_lshlrev_b32 v{dst}, 6, v{dst}", f"v_lshrrev_b32 v{t}, 3, v{m}",
          f"v_lshl_add_u32 v{dst}, v{t}, 3, v{dst}", f"v_and_b32 v{t}, 3, v{m}", f"v_lshl_add_u32 v{dst}, v{t}, 1, v{dst}")
    I("P_2:")
    I("s_bfe_u32 s39, s38, 0x30001", "s_lshl_b32 s39, s39, 2", "s_add_u32 s39, s39, s37", "s_lshl_b32 s39, s39, 9",
      "s_and_b32 s36, s38, 1", "s_lshl_b32 s36, s36, 5", "s_add_u32 s39, s39, s36")
    dcol2(20, 21, 23)
    I("v_lshrrev_b32 v23, 1, v22", "v_lshl_add_u32 v20, v23, 10, v20", "v_and_b32 v23, 1, v22", "v_lshl_add_u32 v20, v23, 8, v20", "v_add_u32 v20, s39, v20")
    I("s_waitcnt lgkmcnt(0)", "s_mov_b32 s56, s76", "s_mov_b32 s57, s77", f"s_mov_b32 s58, {128*128}", "s_movk_i32 s62, 128", "s_mov_b32 s63, 1.0", "s_branch P_T")
    I("P_B:")
    I("s_and_b32 s27, s3, 1", "v_lshrrev_b32 v21, 1, v6", "v_and_b32 v22, 1, v6")
    I("s_cmp_ge_u32 s3, 202", "s_cbranch_scc1 P_B2")
    I("v_lshlrev_b32 v22, 7, v22", "v_lshl_add_u32 v20, v21, 1, v22")
    I("s_waitcnt lgkmcnt(0)", "s_mov_b32 s56, s74", "s_mov_b32 s57, s75", "s_movk_i32 s58, 256", "s_movk_i32 s62, 64", "s_branch P_T")
    I("P_B2:")
    dcol2(20, 21, 23)
    I("v_lshl_add_u32 v20, v22, 10, v20")
    I("s_waitcnt lgkmcnt(0)", "s_mov_b32 s56, s78", "s_mov_b32 s57, s79", "s_movk_i32 s58, 128", "s_movk_i32 s62, 32")
    I("P_T:")

def kernel():
    K = NAME + "_kernel"
    I(f".globl {K}", ".p2align 8", f".type {K},@function", f"{K}:")
    I("s_cmp_ge_u32 s2, 256", "s_cbranch_scc1 K_END")
    stamp("start")
    if OPT["diag"]: I("s_memrealtime s[100:101]")
    I("s_load_dwordx16 s[64:79], s[0:1], 0", "s_load_dwordx4 s[80:83], s[0:1], 64", "s_load_dwordx2 s[84:85], s[0:1], 80")
    I("v_lshrrev_b32 v2, 6, v0", "v_and_b32 v6, 63, v0", "v_lshlrev_b32 v17, 2, v0", "v_readfirstlane_b32 s18, v2")
    I("v_mov_b32 v24, 0", f"ds_write_b32 v17, v24 offset:{L1_CNT}", "v_lshlrev_b32 v16, 4, v0", "v_lshlrev_b32 v4, 4, v6")
    I(f"s_mul_i32 s60, s2, {CH*4}", "s_mov_b32 s59, 0x20000")
    DST, SRC, EAR, AD, RK, P8, CP = 64, 80, 96, 128, 144, 160, 176
    I("s_mov_b32 s61, 0", "s_cmp_lg_u32 s18, 0", "s_cbranch_scc1 R_NOT0")
    I("s_and_b32 s36, s2, 63", "s_lshr_b32 s3, s2, 6", "s_mul_i32 s3, s3, 52", "s_add_u32 s3, s3, s36",
      "s_cmp_ge_u32 s36, 52", "s_cbranch_scc1 R_NOT0", "s_cmp_ge_u32 s3, 204", "s_cbranch_scc1 R_NOT0")
    prep_addr()
    I("buffer_load_ushort v21, v20, s[56:59], 0 offen", "buffer_load_ushort v22, v20, s[56:59], s62 offen")
    I("s_lshl_b32 s62, s3, 8", f"s_add_u32 s62, s62, {WP_OFF}", "s_mov_b32 s61, 1")
    I("R_NOT0:", "s_waitcnt lgkmcnt(0)")
    srd(28, 70, 71, E*4); srd(12, 84, 85, WS_SIZE)
    I("s_cmp_lg_u32 s18, 1", "s_cbranch_scc1 R_NOT1", "s_cmp_ge_u32 s2, 64", "s_cbranch_scc1 R_NOT1")
    I(f"s_mul_i32 s3, s2, {4*TS}", "v_mov_b32 v20, -1", "v_mov_b32 v21, -1", "v_mov_b32 v22, -1", "v_mov_b32 v23, -1", "s_add_u32 s36, s3, 512")
    I("buffer_store_dwordx4 v[20:23], v4, s[12:15], s3 offen sc1")
    for i in range(4): I(f"buffer_store_dwordx4 v[20:23], v4, s[12:15], s36 offen offset:{1024*i} sc1")
    I("s_mov_b32 s61, 2", "R_NOT1:")
    I("s_add_u32 s36, s60, 4096", "s_add_u32 s37, s60, 8192", f"s_add_u32 s38, s60, {(3072-192)*4}")
    so = ("s60", "s36", "s37")
    for i in range(3): I(f"buffer_load_dwordx4 v[{DST+4*i}:{DST+4*i+3}], v16, s[28:31], {so[i]} offen")
    I(f"buffer_load_dword v{DST+12}, v17, s[28:31], s38 offen")
    srd(32, 68, 69, E*4)
    for i in range(3): I(f"buffer_load_dwordx4 v[{SRC+4*i}:{SRC+4*i+3}], v16, s[32:35], {so[i]} offen")
    I(f"buffer_load_dword v{SRC+12}, v17, s[32:35], s38 offen")
    stamp("issued")
    I("s_barrier")
    srd(52, 66, 67, E*8); srd(4, 64, 65, N_NODES, 128); srd(8, 80, 81, N_NODES, 128)
    I("s_mov_b32 s56, s82", "s_mov_b32 s57, s83", "s_movk_i32 s58, 256")
    I(f"s_mul_i32 s3, s2, {CHS*4}", f"s_add_u32 s3, s3, {KEY_OFF}", "s_add_u32 s28, s12, s3", "s_addc_u32 s29, s13, 0", f"s_movk_i32 s30, {(CH+19)*4}")
    I(f"s_mul_i32 s3, s2, {CHS*8}", f"s_add_u32 s3, s3, {EA_OFF}", "s_add_u32 s32, s12, s3", "s_addc_u32 s33, s13, 0", f"s_movk_i32 s34, {(CH+1)*8}")
    I("s_and_b32 s16, s2, 7", "s_lshl_b32 s16, s16, 5", "s_lshr_b32 s3, s2, 3", "s_add_u32 s16, s16, s3")
    I("s_movk_i32 s17, 195", "s_cmp_lt_u32 s16, 80", "s_addc_u32 s17, s17, 0")
    I("v_mov_b32 v25, 0", "v_mov_b32 v26, 0", "v_mov_b32 v27, 0", f"v_add_u32 v5, {L_NODE}, v16")
    for i in range(10): I(f"ds_write_b128 v5, v[24:27] offset:{4096*i}")
    I("v_mov_b32 v28, 0xff0000ff", "v_mov_b32 v29, 0xffff",
      "v_cmp_eq_u32 vcc, 2, v2", f"ds_write_b32 v17, v28 offset:{L_TBL}", "v_mov_b32 v28, -1", "v_cndmask_b32 v29, v24, v29, vcc",
      f"ds_write_b32 v17, v29 offset:{L_H1}")
    I("v_and_b32 v29, 31, v6", f"v_lshlrev_b32 v29, 2, v29", f"ds_write_b32 v29, v28 offset:{L1_KEY + CH*4}")
    for i in range(10): I(f"s_movk_i32 s{40+i}, {1024*i}")
    I(f"s_mul_i32 s23, s18, {STG_W}", "v_add_u32 v26, s23, v4", "v_add_u32 v27, 8, v26")
    I(f"s_mul_i32 s22, s16, {256*NS}", f"s_sub_u32 s22, {L_NODE}, s22", f"v_mov_b32 v28, {NS}", "v_mov_b32 v29, 1")
    I(f"s_mov_b32 s24, {NLN2}", f"s_mov_b32 s25, {NLN2}", f"s_mov_b32 s26, {N_NODES}", f"s_mov_b32 s50, {KEY_OFF}", f"s_mov_b32 s51, {EA_OFF}")
    I("v_and_b32 v30, 48, v4", f"s_mul_i32 s21, s18, {64*CHS*4}", f"s_add_u32 s21, s21, {CH*4}", "v_add_u32 v31, s21, v30", "s_sub_u32 s21, 64, s21", f"v_mul_u32_u24 v44, {CHS}, v0", f"v_mul_u32_u24 v3, {TS}, v0")
    I("v_lshrrev_b32 v1, 5, v6", "v_lshlrev_b32 v1, 6, v1", "v_lshlrev_b32 v18, 5, v0", "v_lshlrev_b32 v19, 3, v0")
    I("v_subrev_u32 v45, 192, v0", f"v_cmp_gt_u32 vcc, {CH-3072}, v45", f"v_mov_b32 v45, {hex(BIG)}", "s_mov_b32 s39, 0x05040001", "v_cndmask_b32 v45, v45, v24, vcc")
    I("s_waitcnt vmcnt(4)")
    stamp("dst")
    I("s_cmp_eq_u32 s61, 0", "s_cbranch_scc1 R_DONE", "s_cmp_eq_u32 s61, 2", "s_cbranch_scc1 R_CLR")
    I("v_lshlrev_b32 v21, 16, v21", "v_lshlrev_b32 v22, 16, v22", "v_mul_f32 v21, s63, v21", "v_mul_f32 v22, s63, v22", "v_cvt_pk_bf16_f32 v20, v21, v22")
    I("s_cmp_eq_u32 s27, 0", "s_cbranch_scc1 R_WS")
    I("v_lshlrev_b32 v23, 16, v20", "v_and_b32 v20, 0xffff0000, v20", "v_sub_f32 v21, v21, v23", "v_sub_f32 v22, v22, v20", "v_cvt_pk_bf16_f32 v20, v21, v22")
    I("R_WS:", "buffer_store_dword v20, v17, s[12:15], s62 offen sc1", "s_branch R_DONE")
    I("R_CLR:", "s_and_b32 s3, s2, 3", "s_lshl_b32 s3, s3, 6", "s_mov_b64 exec, 1", "buffer_atomic_add v29, v24, s[56:59], s3 offen", "s_mov_b64 exec, -1")
    I("R_DONE:")
    for i in range(3):
        I(f"s_lshl_b32 s3, {so[i]}, 1", f"buffer_load_dwordx4 v[{EAR+8*i}:{EAR+8*i+3}], v18, s[52:55], s3 offen",
          f"buffer_load_dwordx4 v[{EAR+8*i+4}:{EAR+8*i+7}], v18, s[52:55], s3 offen offset:16")
    I("s_lshl_b32 s3, s38, 1", f"buffer_load_dwordx2 v[{EAR+24}:{EAR+25}], v19, s[52:55], s3 offen")
    for i in range(13):
        I(f"v_lshlrev_b32_sdwa v{AD+i}, 2, v{DST+i} dst_sel:DWORD dst_unused:UNUSED_PAD src0_sel:DWORD src1_sel:BYTE_0")
        if i == 12: I(f"v_or_b32 v{AD+i}, v45, v{AD+i}")
        I(f"ds_add_rtn_u32 v{RK+i}, v{AD+i}, v29 offset:{L1_CNT}")
    I("s_waitcnt lgkmcnt(0)", "s_barrier")
    stamp("barA")
    I("s_cmp_lg_u32 s18, 0", "s_cbranch_scc1 K_NOSCAN")
    I(f"ds_read_b128 v[32:35], v4 offset:{L1_CNT}", "s_waitcnt lgkmcnt(0)")
    I("v_add_u32 v38, v32, v33", "v_add_u32 v39, v38, v34", "v_add_u32 v41, v39, v35", "v_mov_b32 v36, v41")
    scan64(36)
    I("v_sub_u32 v36, v36, v41", "v_add_u32 v37, v36, v32", "v_add_u32 v38, v36, v38", "v_add_u32 v39, v36, v39")
    I(f"ds_write_b128 v4, v[36:39] offset:{L1_BASE}")
    for i in range(4): I(f"v_lshl_or_b32 v{32+i}, v{32+i}, 16, v{36+i}")
    I("s_waitcnt lgkmcnt(0)", "K_NOSCAN:", "s_barrier")
    stamp("barB")
    for i in range(13): I(f"ds_read_b32 v{AD+i}, v{AD+i} offset:{L1_BASE}")
    I("s_waitcnt vmcnt(7)")
    for i in range(13): I(f"v_perm_b32 v{DST+i}, v{SRC+i}, v{DST+i}, s39")
    I("s_waitcnt lgkmcnt(0)")
    for i in range(13):
        I(f"v_add_lshl_u32 v{AD+i}, v{AD+i}, v{RK+i}, 2")
        if i == 12: I(f"v_or_b32 v{AD+i}, v45, v{AD+i}")
        I(f"ds_write_b32 v{AD+i}, v{DST+i} offset:{L1_KEY}")
    I("s_waitcnt lgkmcnt(0)", "s_barrier")
    stamp("barC")
    for i in range(4): I(f"ds_read_b128 v[{CP+4*i}:{CP+4*i+3}], v16 offset:{L1_KEY+4096*i}")
    for i in range(13): I(f"v_lshlrev_b32 v{P8+i}, 1, v{AD+i}")
    for i in range(4): I(f"s_waitcnt lgkmcnt({3-i})", f"buffer_store_dwordx4 v[{CP+4*i}:{CP+4*i+3}], v16, s[28:31], s{40+4*i if i < 3 else 36} offen sc1", *(["s_movk_i32 s36, 12288"] if i == 0 else []))
    F1LD = "buffer_load_dword v20, v21, s[56:59], 0 offen sc1"
    I("v_lshlrev_b32 v21, 2, v6", "s_waitcnt vmcnt(4)", "s_cmp_lg_u32 s18, 2", "s_cbranch_scc1 K_NOF1")
    I(F1LD, "K_NOF1:")
    stamp("ea_in")
    for i in range(13): I(f"ds_write_b64 v{P8+i}, v[{EAR+2*i}:{EAR+2*i+1}] offset:{L1_EA}")
    I("s_waitcnt vmcnt(0)", "s_cbranch_scc1 K_F1_RET")
    I("v_and_b32 v22, 15, v6", "v_cmp_eq_u32 vcc, 0, v22", "s_nop 1", "v_cndmask_b32_e64 v22, 0, 16, vcc", "v_cmp_ne_u32 vcc, v20, v22", "s_cbranch_vccnz K_F1", "K_F1_RET:")
    I("s_waitcnt lgkmcnt(0)", "s_barrier")
    stamp("barD")
    I(f"s_mul_i32 s37, s2, {TS}", "s_cmp_lg_u32 s18, 0", "s_cbranch_scc1 K_NOTAB", "buffer_store_dwordx4 v[32:35], v4, s[12:15], s37 offen sc1", "K_NOTAB:")
    for i in range(7): I(f"ds_read_b128 v[{CP+4*i}:{CP+4*i+3}], v16 offset:{L1_EA+4096*i}")
    for i in range(7): I(f"s_movk_i32 s3, {4096*i}", f"s_waitcnt lgkmcnt({6-i})", f"buffer_store_dwordx4 v[{CP+4*i}:{CP+4*i+3}], v16, s[32:35], s3 offen sc1")
    TABLD = "buffer_load_dword v8, v3, s[12:15], s38 offen sc1"
    I("s_lshl_b32 s38, s16, 2", "s_waitcnt vmcnt(0)", TABLD, "s_barrier")
    stamp("barE")
    I("s_cmp_lg_u32 s18, 1", "s_cbranch_scc1 K_NOF3", "s_mov_b64 exec, 1", "buffer_store_dword v24, v24, s[12:15], s37 offen offset:1024 sc1", "s_mov_b64 exec, -1",
      "s_waitcnt vmcnt(1)", "s_branch K_F3D", "K_NOF3:", "s_waitcnt vmcnt(0)", "K_F3D:")
    I("v_cmp_eq_u32 vcc, -1, v8", "s_cbranch_vccnz K_TAB", "K_TAB_RET:")
    stamp("tab")
    I("v_and_b32 v33, 0xffff, v8", "v_add_lshl_u32 v32, v44, v33, 2", "v_lshrrev_b32 v33, 16, v8", "v_subrev_u32 v33, 16, v33")
    KEY, AD, RK, O4 = 64, 96, 128, 40
    def compact(dst):
        I("v_cmp_lt_i32 vcc, 0, v33", "s_nop 1", "v_mbcnt_lo_u32_b32 v35, vcc_lo, 0", "v_mbcnt_hi_u32_b32 v35, vcc_hi, v35",
          "v_cmp_gt_u32 s[36:37], 16, v35", "v_lshlrev_b32 v35, 4, v35", "s_nop 0", "s_and_b64 vcc, vcc, s[36:37]",
          "v_cndmask_b32 v35, 4, v35, vcc", f"ds_permute_b32 v{dst}, v35, v34",
          "v_cndmask_b32_e64 v35, 0, 16, vcc", "v_sub_u32 v33, v33, v35", "v_lshl_add_u32 v34, v35, 2, v34")
    for i in range(4):
        I(f"v_add_u32_dpp v{O4+i}, v32, v30 quad_perm:[{i},{i},{i},{i}] row_mask:0xf bank_mask:0xf",
          f"buffer_load_dwordx4 v[{KEY+4*i}:{KEY+4*i+3}], v{O4+i}, s[12:15], s50 offen sc1")
    I(f"v_add_u32 v34, s21, v32")
    compact(36)
    I(f"s_mul_i32 s36, s18, {WQ}", f"s_add_u32 s37, s36, {WP_OFF}", f"s_add_u32 s36, s36, {L_W}")
    I("s_waitcnt lgkmcnt(0)", f"v_add_u32_dpp v{O4+4}, v36, v31 quad_perm:[0,0,0,0] row_mask:0xf bank_mask:0xf",
      f"buffer_load_dwordx4 v[{KEY+16}:{KEY+19}], v{O4+4}, s[12:15], s50 offen sc1")
    for i in range(13):
        if i % 4 == 0: I(f"s_add_u32 m0, s36, {1024*i}", f"s_add_u32 s3, s37, {1024*i}")
        I(f"buffer_load_dwordx4 v4, s[12:15], s3 offen offset:{1024*(i%4)} sc1 lds")
    for i in range(5): I(f"v_lshlrev_b32 v{O4+i}, 1, v{O4+i}")
    def phaseB(k, a, r, sreg):
        for j in range(4): I(f"v_mad_u32_u16 v{a+j}, v{k+j}, v28, s22")
        for j in range(4):
            I(f"ds_add_rtn_u32 v{r+j}, v{a+j}, v29",
              f"v_add_u32_sdwa v{k+j}, v{26+(j&1)}, s{sreg+(j>>1)} dst_sel:WORD_0 dst_unused:UNUSED_PRESERVE src0_sel:DWORD src1_sel:DWORD")
    def phaseC(k, a, r):
        L = []
        for j in range(4): L += [f"v_min_u32 v{r+j}, {CAP-1}, v{r+j}", f"v_lshl_add_u32 v{a+j}, v{r+j}, 2, v{a+j}", f"ds_write_b32 v{a+j}, v{k+j} offset:4"]
        return L
    for i in range(5):
        I(f"s_waitcnt vmcnt({17-i})")
        if i == 0: stamp("key0")
        phaseB(KEY+4*i, AD+4*i, RK+4*i, 40+2*i)
    F3LD = "buffer_load_dword v9, v3, s[12:15], 0 offen offset:1024 sc1"
    I(F3LD)
    I("v_cmp_lt_i32 vcc, 0, v33", "s_cbranch_vccnz K_MORE", "K_MORE_RET:")
    I(f"v_mul_u32_u24 v20, {NS}, v0", f"v_add_u32 v20, {L_NODE}, v20", "v_cmp_gt_u32 s[38:39], s17, v0", "v_lshlrev_b32 v21, 2, v6")
    I("s_sub_u32 s27, 256, s17", "s_sub_u32 s19, s27, 32", f"v_add_u32 v5, {L_W}, v4", f"v_lshlrev_b32 v7, 3, v6", f"v_add_u32 v7, {L_W}, v7")
    I("s_waitcnt vmcnt(1) lgkmcnt(0)", "s_barrier")
    stamp("bar1")
    wr = [f"ds_read_b128 a[{AW1A+4*f}:{AW1A+4*f+3}], v5 offset:{1024*f}" for f in range(50)]
    wr += [f"ds_read_b64 a[{AB1}:{AB1+1}], v7 offset:{50*1024}", f"ds_read_b64 v[14:15], v7 offset:{50*1024+512}"]
    I("s_mov_b64 exec, s[38:39]", "ds_read_b32 v20, v20", "s_mov_b64 exec, -1")
    I(*phaseC(KEY, AD, RK)); I(*phaseC(KEY+4, AD+4, RK+4))
    I("s_waitcnt lgkmcnt(8)", "s_mov_b64 exec, s[38:39]")
    I(f"v_cmp_lt_u32 vcc, {CAP}, v20", "v_min_u32 v20, 63, v20", "v_sub_u32 v22, 63, v20", "v_lshlrev_b32 v22, 2, v22",
      f"ds_add_rtn_u32 v23, v22, v29 offset:{L_H1}")
    I("s_cbranch_vccz K_A1", f"ds_write_b32 v24, v29 offset:{L_FLAG}", "K_A1:")
    I("s_mov_b64 exec, -1", "s_waitcnt lgkmcnt(0)", "s_barrier")
    I(f"ds_read_b32 v25, v21 offset:{L_H1}")
    I(*phaseC(KEY+8, AD+8, RK+8))
    I("s_waitcnt lgkmcnt(4)", "v_mov_b32 v46, v25")
    scan64(46, phaseC(KEY+12, AD+12, RK+12))
    I("v_sub_u32 v46, v46, v25", "ds_bpermute_b32 v46, v22, v46")
    I("v_lshrrev_b32 v30, 1, v20", "v_cmp_lt_u32 s[36:37], 25, v20")
    I(*phaseC(KEY+16, AD+16, RK+16))
    I("s_waitcnt lgkmcnt(4)")
    I("v_add_u32 v23, v23, v46", "v_cmp_gt_u32 vcc, s19, v23", "v_lshlrev_b32 v33, 1, v23", "v_lshlrev_b32 v34, 2, v23",
      "v_cndmask_b32_e64 v31, 8, 10, vcc", "v_cndmask_b32 v31, v31, v30, s[36:37]")
    I("v_cmp_gt_u32 vcc, s27, v23", "v_cmp_gt_u32 s[36:37], v20, v31", "v_mov_b32 v35, 0xff", "s_nop 0",
      "s_and_b64 vcc, vcc, s[36:37]", "s_and_b64 vcc, vcc, s[38:39]")
    I("v_cndmask_b32 v32, 0, v31, vcc", "v_sub_u32 v32, v20, v32", "v_cndmask_b32 v35, v35, v33, vcc")
    I("v_sub_u32 v36, 63, v32", "v_lshlrev_b32 v36, 2, v36", "v_sub_u32 v37, 63, v31", "v_lshlrev_b32 v37, 2, v37")
    I("s_mov_b64 exec, s[38:39]", f"ds_add_rtn_u32 v38, v36, v29 offset:{L_H2}")
    I("v_lshl_add_u32 v47, v0, 8, s16", "s_mov_b64 s[60:61], vcc")
    I("s_mov_b64 exec, vcc", f"ds_add_rtn_u32 v39, v37, v29 offset:{L_H2}", f"ds_write_b32 v34, v47 offset:{L_SN}")
    I("s_mov_b64 exec, -1")
    I("v_lshl_or_b32 v48, v35, 8, v32", "v_lshl_or_b32 v48, v48, 16, v0")
    I("v_or_b32 v33, 1, v33", "v_lshl_or_b32 v49, v33, 8, v31", "v_lshl_or_b32 v49, v49, 8, v32", "v_lshl_or_b32 v49, v49, 8, v0")
    I("s_waitcnt vmcnt(0)", "v_cmp_eq_u32 vcc, -1, v9", "s_cbranch_vccnz K_F3", "K_F3_RET:")
    stamp("f3")
    for i in range(5):
        I(f"s_add_u32 m0, s23, {2048*i}", "s_nop 0", f"buffer_load_dwordx4 v{O4+i}, s[12:15], s51 offen sc1 lds",
          f"s_add_u32 m0, s23, {2048*i+1024-16}", "s_nop 0", f"buffer_load_dwordx4 v{O4+i}, s[12:15], s51 offen offset:16 sc1 lds")
    I("s_waitcnt lgkmcnt(0)", "s_barrier")
    I(f"ds_read_b32 v25, v21 offset:{L_H2}", *wr[:8]); I("s_waitcnt lgkmcnt(8)", "v_mov_b32 v46, v25")
    scan64(46, wr[8:20])
    I("v_sub_u32 v46, v46, v25", "ds_bpermute_b32 v36, v36, v46", "ds_bpermute_b32 v37, v37, v46")
    I("v_and_b32 v20, 31, v6", "s_lshl_b32 s3, s18, 7", "v_lshl_add_u32 v22, v20, 2, s3", "s_sub_u32 s3, 896, s3", "v_lshl_add_u32 v23, v20, 2, s3")
    I(*wr[20:26]); I("s_waitcnt lgkmcnt(6)", "v_add_lshl_u32 v36, v36, v38, 2", "v_add_lshl_u32 v37, v37, v39, 2")
    I("s_mov_b64 exec, s[38:39]", f"ds_write_b32 v36, v48 offset:{L_TBL}", "s_mov_b64 exec, s[60:61]", f"ds_write_b32 v37, v49 offset:{L_TBL}",
      "s_mov_b64 exec, -1")
    I(*wr[26:])
    I("s_waitcnt vmcnt(0) lgkmcnt(0)", "s_barrier")
    stamp("bar4")
    I(f"ds_read_b32 v7, v22 offset:{L_TBL}", f"ds_read_b32 v6, v23 offset:{L_TBL}", f"ds_read_b32 v24, v24 offset:{L_FLAG}",
      "s_mov_b32 s21, 0", "s_mov_b32 s27, %d" % (L_NODE+4), "s_waitcnt lgkmcnt(0)", "v_cmp_ne_u32 vcc, 0, v24", "s_cbranch_vccnz K_SLOW")
    I("K_GSTART:")
    I("v_and_b32 v9, 0xff, v7", "v_lshl_add_u32 v0, v9, 8, s16", f"v_mul_u32_u24 v2, {NS}, v9", "v_bfe_u32 v9, v7, 8, 8",
      "v_lshl_add_u32 v2, v9, 2, v2", "v_add_u32 v2, s27, v2", "v_bfe_u32 v3, v7, 16, 8", "s_mov_b32 s6, s26")
    I("ds_read_u16 v9, v2 offset:2", "ds_read_u16 v10, v2 offset:6", "ds_read_u16 v4, v2", "ds_read_u16 v13, v2 offset:4",
      "ds_read_u16 v11, v2 offset:10", "ds_read_u16 v12, v2 offset:14")
    I(*[xload(2, k) for k in range(4)])
    I("v_readfirstlane_b32 s20, v3", "s_waitcnt lgkmcnt(2)", "v_mov_b32 v0, v9")
    I(*[xload(0, k) for k in range(4)])
    I("v_mov_b32 v0, v10")
    I(*[xload(1, k) for k in range(4)])
    I(f"ds_read_b64 a[{AEA}:{AEA+1}], v4", f"ds_read_b64 a[{AEA+2}:{AEA+3}], v13", "ds_read_u16 v4, v2 offset:8")
    I("s_cmp_lg_u32 s21, 0", "s_cbranch_scc1 K_FIN")
    I("K_FIRST:")
    I("v_mov_b32 v5, v7", "v_mov_b32 v7, v6", "s_sub_u32 s37, s20, 3", "s_mov_b32 s19, 1")
    onehot_init(EE)
    I("s_cmp_eq_u32 s21, 0", "s_cbranch_scc1 K_F0", "s_waitcnt vmcnt(4) lgkmcnt(0)", "s_branch K_F1X", "K_F0:", "s_waitcnt vmcnt(8) lgkmcnt(0)", "K_F1X:")
    stamp("q", True)
    if OPT["stamp"]: I("s_mov_b32 s62, s63", "s_mov_b32 s63, s20")
    for b in range(4): I(*qchain(QQ+16*b, b, EE))
    I("v_mov_b32 v0, v11", "s_waitcnt vmcnt(4)")
    c0 = chain(NN, 0, 0, QQ)
    I(c0[0], c0[1], xload(2, 0), c0[2], xload(2, 1), c0[3], xload(2, 2), c0[4], xload(2, 3))
    I("s_nop 7", "v_mov_b32 v0, v12", "s_nop 0", ".p2align 3")
    for b in range(4):
        ex = [f"v_exp_f32 v{DD+16*b+i}, v{NN+16*b+i}" for i in range(16)]
        if b < 3: seg = weave(chain(NN+16*(b+1), b+1, 0, QQ+16*(b+1)), ex, (3,3,3,3,4), {4: ["s_waitcnt vmcnt(4)"]} if b == 2 else None)
        else: seg = weave(chain(T0, 0, 1, QQ), ex, (3,3,3,3,4), {0: [xload(0, 0)], 1: ["s_cmp_ge_u32 s19, s20"], 4: [xload(0, 1)]})
        seg += [f"v_pk_add_f32 v[{DD+16*b+2*i}:{DD+16*b+2*i+1}], v[{DD+16*b+2*i}:{DD+16*b+2*i+1}], 1.0 op_sel_hi:[1,0]" for i in range(8)]
        I(*align8(seg))
    stamp("loop", True)
    I("s_cbranch_scc1 K_EXIT", "s_nop 0")
    I(".p2align 3", "K_LOOP:")
    for t in range(3):
        cur = (1+t) % 3; nxt = (2+t) % 3; prv = t % 3
        for b in range(4):
            tc = T0 + 16*(b % 2); tn = T0 + 16*((b+1) % 2)
            ex = [f"v_exp_f32 v{EE+i}, v{tc+i}" for i in range(16)]
            if b == 0: extra = {0: [xload(prv, 2)], 4: [xload(prv, 3), "v_cmpx_lt_u32 vcc, s19, v3"]}
            elif b == 1: extra = {0: [f"ds_read_u16 v0, v2 offset:{4*(t+4)+2}"], 1: ["s_cmp_lt_i32 s19, s37"], 2: ["s_cselect_b32 s6, s26, 0"],
                                  4: [f"ds_read_b64 a[{AEA+2*nxt}:{AEA+2*nxt+1}], v4"]}
            elif b == 2:
                extra = {0: [f"ds_read_u16 v4, v2 offset:{4*(t+3)}"], 4: ["s_waitcnt vmcnt(4) lgkmcnt(0)"]}
                if t == 2: extra[4].append("v_add_u32 v2, 12, v2")
            else: extra = {0: [xload(cur, 0)], 1: ["s_add_u32 s19, s19, 1"], 2: ["s_cmp_ge_u32 s19, s20"], 4: [xload(cur, 1)]}
            ms = chain(tn, b+1, cur, QQ+16*(b+1)) if b < 3 else chain(tn, 0, nxt, QQ)
            seg = weave(ms, ex, (3,3,3,3,4), extra)
            n = NN+16*b; d = DD+16*b
            seg += [f"v_pk_fma_f32 v[{n+2*i}:{n+2*i+1}], v[{n+2*i}:{n+2*i+1}], v[{EE+2*i}:{EE+2*i+1}], v[{n+2*i}:{n+2*i+1}]" for i in range(8)]
            seg += [f"v_pk_fma_f32 v[{n+2*i}:{n+2*i+1}], v[{tc+2*i}:{tc+2*i+1}], v[{d+2*i}:{d+2*i+1}], v[{n+2*i}:{n+2*i+1}]" for i in range(8)]
            seg += [f"v_pk_fma_f32 v[{d+2*i}:{d+2*i+1}], v[{d+2*i}:{d+2*i+1}], v[{EE+2*i}:{EE+2*i+1}], v[{d+2*i}:{d+2*i+1}]" for i in range(8)]
            I(*align8(seg))
        if t < 2: I("s_cbranch_scc1 K_EXIT", "s_nop 0")
        else: I("s_cbranch_scc0 K_LOOP")
    I("K_EXIT:")
    stamp("exit", True)
    I("s_mov_b64 exec, -1", "s_add_u32 s21, s21, 1", "s_cmp_eq_u32 s21, 1", "s_cbranch_scc1 K_GSTART")
    I("K_FIN:")
    stamp("fin", True)
    HB = QQ; LB = QQ+32; RM = QQ+36
    I(f"v_cvt_f32_ubyte2 v{LB+2}, v5", f"v_mov_b32 v{LB+1}, 0", f"v_mov_b32 v{LB+3}, 0", f"v_lshrrev_b32 v{LB}, 16, v{LB+2}", f"v_mov_b32 v{RM}, 1.0", "s_nop 0", ".p2align 3")
    def rc(b):
        r = [f"v_rcp_f32 v{DD+16*b+i}, v{DD+16*b+i}" for i in range(16)]
        return r + [f"v_min3_f32 v{RM}, v{DD+16*b+2*i}, v{DD+16*b+2*i+1}, v{RM}" for i in range(8)]
    def mc(b):
        n = NN+16*b; d = DD+16*b
        return [f"v_pk_mul_f32 v[{n+2*i}:{n+2*i+1}], v[{n+2*i}:{n+2*i+1}], v[{d+2*i}:{d+2*i+1}]" for i in range(8)] + \
               [f"v_cvt_pk_bf16_f32 v{HB+8*b+i}, v{n+2*i}, v{n+2*i+1}" for i in range(8)]
    binit = [f"v_mfma_f32_32x32x8_bf16 v[{T0+16*ob}:{T0+16*ob+15}], v[14:15], v[{LB+2*ob}:{LB+2*ob+1}], 0" for ob in range(2)]
    I(*align8(weave(binit, rc(0), (4, 20)) + mc(0)))
    for b in range(3): I(*align8(weave(gemm2(b, HB+8*b), rc(b+1), (3,3,3,15)) + mc(b+1)))
    I(*gemm2(3, HB+24))
    OA = EE
    I(f"v_and_b32 v{OA}, 0xff, v5", f"v_lshl_add_u32 v0, v{OA}, 8, s16", f"v_lshrrev_b32 v{OA}, 24, v5", f"v_cmp_eq_u32 vcc, 0xff, v{OA}",
      f"v_mul_u32_u24 v{OA}, {SPL_S}, v{OA}", f"v_lshl_add_u32 v{OA}, v1, 1, v{OA}", f"v_mov_b32 v{OA+1}, {hex(BIG)}",
      f"v_cndmask_b32 v{OA}, v{OA}, v{OA+1}, vcc", f"v_cndmask_b32 v0, v{OA+1}, v0, vcc",
      f"v_cmp_eq_u32 s[38:39], 0, v{LB+2}", f"v_mov_b32 v{OA+2}, 0x207", f"v_cmp_lt_f32 vcc, {f32(2.0**-100)}, v{RM}", "s_nop 1")
    for i in range(16): I(f"v_pk_mul_f32 v[{T0+2*i}:{T0+2*i+1}], v[{T0+2*i}:{T0+2*i+1}], s[24:25]")
    I(f"v_cmp_class_f32 s[40:41], v{T0}, v{OA+2}", "s_nop 1", "s_andn2_b64 vcc, vcc, s[40:41]", "s_andn2_b64 s[40:41], vcc, s[38:39]",
      "s_cmp_eq_u64 s[40:41], -1", "s_cbranch_scc0 K_RARE", "K_RARE_RET:")
    for i in range(8): I(f"ds_write_b128 v{OA}, v[{T0+4*i}:{T0+4*i+3}] offset:{L_SPL+16*i}")
    for i in range(16): I(f"v_cvt_pk_bf16_f32 v{HB+i}, v{T0+2*i}, v{T0+2*i+1}")
    for i in range(4): I(f"buffer_store_dwordx4 v[{HB+4*i}:{HB+4*i+3}], v[0:1], s[8:11], 0 idxen offen offset:{16*i}")
    I("s_cmp_eq_u32 s21, 1", "s_cbranch_scc1 K_FIRST")
    stamp("tail")
    I("v_mbcnt_lo_u32_b32 v6, -1, 0", "v_mbcnt_hi_u32_b32 v6, -1, v6", "s_lshl_b32 s3, s18, 6", "v_add_u32 v6, s3, v6")
    I("v_and_b32 v2, 0xfc, v6", "v_and_b32 v3, 3, v6", f"v_mul_u32_u24 v4, {SPL_S//2}, v2", "v_lshl_add_u32 v4, v3, 6, v4", "v_lshlrev_b32 v11, 5, v3", "v_mov_b32 v9, 0")
    I("s_waitcnt lgkmcnt(0)", "s_barrier")
    I(f"ds_read_b32 v9, v9 offset:{L_FLAG}", f"ds_read_b32 v10, v2 offset:{L_SN}")
    for i in range(4): I(f"ds_read_b128 v[{16+4*i}:{19+4*i}], v4 offset:{L_SPL+16*i}", f"ds_read_b128 v[{32+4*i}:{35+4*i}], v4 offset:{L_SPL+SPL_S+16*i}")
    I("s_waitcnt lgkmcnt(0)", "v_readfirstlane_b32 s36, v9")
    for i in range(8): I(f"v_pk_add_f32 v[{16+2*i}:{17+2*i}], v[{16+2*i}:{17+2*i}], v[{32+2*i}:{33+2*i}]")
    I("s_cmp_lg_u32 s36, 0", "s_cbranch_scc1 K_SLOW")
    for i in range(8): I(f"v_cvt_pk_bf16_f32 v{32+i}, v{16+2*i}, v{17+2*i}")
    for i in range(2): I(f"buffer_store_dwordx4 v[{32+4*i}:{35+4*i}], v[10:11], s[8:11], 0 idxen offen offset:{16*i}")
    if OPT["diag"]:
        I("s_mov_b32 s52, 0", "K_SPIN:", "s_memrealtime s[54:55]", "s_waitcnt lgkmcnt(0)", "s_add_u32 s52, s52, 1", "s_cmp_gt_u32 s52, 20000", "s_cbranch_scc1 K_END",
          "s_sub_u32 s54, s54, s100", "s_cmp_lt_u32 s54, 6000", "s_cbranch_scc1 K_SPIN")
    if OPT["stamp"]:
        I("s_waitcnt vmcnt(0)"); stamp("end")
        I("s_lshl_b32 s3, s2, 2", "s_add_u32 s3, s3, s18", "s_lshl_b32 s3, s3, 7", f"s_add_u32 s3, s3, {STAMP_OFF}", "v_mov_b32 v0, 0")
        for i in range(len(stamps)): I(f"v_mov_b32 v1, s{SLOTS[i]}", f"buffer_store_dword v1, v0, s[12:15], s3 offen offset:{4*i}")
        I("s_lshl_b32 s62, s62, 8", "s_or_b32 s62, s62, s63", "v_mov_b32 v1, s62", "buffer_store_dword v1, v0, s[12:15], s3 offen offset:124")
    I("K_END:", "s_endpgm")
    repoll("K_F1", F1LD, "v_cmp_ne_u32 vcc, v20, v22")
    repoll("K_TAB", TABLD, "v_cmp_eq_u32 vcc, -1, v8")
    repoll("K_F3", F3LD, "v_cmp_eq_u32 vcc, -1, v9")
    repoll("K_F3M", F3LD, "v_cmp_eq_u32 vcc, -1, v9")
    I("K_RARE:")
    I("s_or_b64 vcc, vcc, s[38:39]", "s_cmp_eq_u64 vcc, -1", "s_cbranch_scc1 K_RARE2")
    I(f"v_mov_b32 v{OA+2}, 0", f"v_mov_b32 v{OA+3}, 1", f"ds_write_b32 v{OA+2}, v{OA+3} offset:{L_FLAG}")
    I("K_RARE2:", "s_mov_b64 exec, s[38:39]")
    for i in range(32): I(f"v_mov_b32 v{T0+i}, 0")
    I("s_mov_b64 exec, -1", "s_branch K_RARE_RET")
    K2, A2, R2, O2 = 160, 164, 168, 172
    I("K_MORE:", f"s_movk_i32 s40, {2048*5}", "s_waitcnt vmcnt(0)", "v_cmp_eq_u32 vcc, -1, v9", "s_cbranch_vccnz K_F3M", "K_F3M_RET:")
    I("K_MORE_L:")
    compact(36)
    I("s_add_u32 s41, s40, 1024", "s_add_u32 s3, s23, s40", "s_waitcnt lgkmcnt(0)",
      f"v_add_u32_dpp v{O2}, v36, v31 quad_perm:[0,0,0,0] row_mask:0xf bank_mask:0xf",
      f"buffer_load_dwordx4 v[{K2}:{K2+3}], v{O2}, s[12:15], s50 offen sc1",
      "s_mov_b32 m0, s3", f"v_lshlrev_b32 v{O2}, 1, v{O2}", f"buffer_load_dwordx4 v{O2}, s[12:15], s51 offen sc1 lds",
      f"s_add_u32 m0, s3, {1024-16}", "s_nop 0", f"buffer_load_dwordx4 v{O2}, s[12:15], s51 offen offset:16 sc1 lds", "s_waitcnt vmcnt(0)")
    phaseB(K2, A2, R2, 40)
    I("s_waitcnt lgkmcnt(0)")
    I(*phaseC(K2, A2, R2))
    I("v_cmp_lt_i32 vcc, 0, v33", "s_cbranch_vccz K_MORE_RET", "s_add_u32 s40, s40, 2048", f"s_cmp_lt_u32 s40, {STG_W}", "s_cbranch_scc1 K_MORE_L")
    I(f"ds_write_b32 v24, v29 offset:{L_FLAG}", "s_branch K_MORE_RET")
    I("K_SLOW:")
    I("s_mov_b64 exec, -1", "s_waitcnt vmcnt(0) lgkmcnt(0)", "s_barrier")
    I("v_mbcnt_lo_u32_b32 v6, -1, 0", "v_mbcnt_hi_u32_b32 v6, -1, v6", "s_lshl_b32 s3, s18, 6", "v_add_u32 v7, s3, v6")
    I("v_lshrrev_b32 v1, 5, v6", "v_lshlrev_b32 v1, 6, v1", "v_and_b32 v6, 31, v6", "v_lshlrev_b32 v2, 4, v7")
    for i in range(4): I(f"v_mov_b32 v{16+i}, 0")
    for i in range(13): I(f"ds_write_b128 v2, v[16:19] offset:{4096*i}")
    onehot_init(EE)
    I("s_mov_b32 s6, s26", "s_mov_b32 s19, 0", "s_waitcnt lgkmcnt(0)", "s_barrier")
    I("K_S_SEG:")
    I("v_readlane_b32 s36, v8, s19", "s_lshl_b32 s3, s18, 6", "s_add_u32 s3, s3, s19", f"s_mul_i32 s3, s3, {CHS}", "s_nop 0",
      "s_lshr_b32 s20, s36, 16", "s_and_b32 s36, s36, 0xffff", "s_add_u32 s36, s36, s3")
    I("K_S_TILE:")
    I("s_cmp_le_i32 s20, 0", "s_cbranch_scc1 K_S_NEXT")
    I("v_add_lshl_u32 v2, s36, v6, 2", "v_lshlrev_b32 v3, 1, v2", "v_cmp_gt_i32 s[38:39], s20, v6")
    I("buffer_load_dword v9, v2, s[12:15], s50 offen sc1", f"buffer_load_dwordx2 a[{AEA}:{AEA+1}], v3, s[12:15], s51 offen sc1", "s_waitcnt vmcnt(0)")
    I("v_lshrrev_b32 v0, 16, v9"); I(*[xload(0, k) for k in range(4)])
    I("v_and_b32 v9, 0xff, v9", "v_lshl_add_u32 v0, v9, 8, s16"); I(*[xload(2, k) for k in range(4)])
    I("v_mul_u32_u24 v9, 260, v9", "v_lshl_add_u32 v9, v1, 1, v9", "s_waitcnt vmcnt(0)")
    for b in range(4): I(*qchain(NN+16*b, b, EE)); I(*chain(NN+16*b, b, 0, NN+16*b))
    for ob in range(2): I(f"v_mfma_f32_32x32x8_bf16 v[{T0+16*ob}:{T0+16*ob+15}], v[14:15], v[{EE+2*ob}:{EE+2*ob+1}], 0")
    I("s_nop 15")
    for i in range(64): I(f"v_exp_f32 v{DD+i}, v{NN+i}")
    for i in range(32): I(f"v_pk_add_f32 v[{DD+2*i}:{DD+2*i+1}], v[{DD+2*i}:{DD+2*i+1}], 1.0 op_sel_hi:[1,0]")
    for i in range(64): I(f"v_rcp_f32 v{DD+i}, v{DD+i}")
    for b in range(4): I(*mc(b))
    I("s_nop 1")
    for b in range(4): I(*gemm2(b, HB+8*b))
    I("s_nop 15")
    for i in range(16): I(f"v_pk_mul_f32 v[{T0+2*i}:{T0+2*i+1}], v[{T0+2*i}:{T0+2*i+1}], s[24:25]")
    I("s_mov_b64 exec, s[38:39]")
    for i in range(32): I(f"ds_add_f32 v9, v{T0+i} offset:{4*i}")
    I("s_mov_b64 exec, -1", "s_waitcnt lgkmcnt(0)", "s_sub_u32 s20, s20, 32", "s_add_u32 s36, s36, 32", "s_branch K_S_TILE")
    I("K_S_NEXT:", "s_add_u32 s19, s19, 1", "s_cmp_lt_u32 s19, 64", "s_cbranch_scc1 K_S_SEG")
    I("s_barrier", "v_and_b32 v3, 7, v7", "v_lshlrev_b32 v1, 4, v3", "v_lshrrev_b32 v7, 3, v7", "s_mov_b32 s19, 0")
    I("K_S_OUT:")
    I("v_mul_u32_u24 v2, 260, v7", "v_lshl_add_u32 v2, v3, 5, v2", "v_lshl_add_u32 v0, v7, 8, s16")
    for i in range(8): I(f"ds_read_b32 v{16+i}, v2 offset:{4*i}")
    I("s_waitcnt lgkmcnt(0)")
    for i in range(4): I(f"v_cvt_pk_bf16_f32 v{24+i}, v{16+2*i}, v{17+2*i}")
    I("buffer_store_dwordx4 v[24:27], v[0:1], s[8:11], 0 idxen offen", "v_add_u32 v7, 32, v7", "s_waitcnt vmcnt(0)")
    I("s_add_u32 s19, s19, 1", "s_cmp_lt_u32 s19, 7", "s_cbranch_scc1 K_S_OUT", "s_endpgm")

def desc(name, vgpr, accum, sgpr):
    I(".p2align 6", f".amdhsa_kernel {name}")
    for l in (f"next_free_vgpr {vgpr}", f"next_free_sgpr {sgpr}", f"accum_offset {accum}", "group_segment_fixed_size 0", "kernarg_size 88",
              "user_sgpr_count 2", "user_sgpr_kernarg_segment_ptr 1", "system_sgpr_workgroup_id_x 1", "float_denorm_mode_32 3"):
        out.append("  .amdhsa_" + l)
    I(".end_amdhsa_kernel")

hdr = [l.rstrip("\n") for l in open(f"cdna_kernels/{NAME}.s.ref") if l.startswith(";") and "@launch" not in l][:12]
hdr += [f"; @launch grid=(256,1,1) block=(256,1,1) lds={L_SIZE}"]
I('.amdgcn_target "amdgcn-amd-amdhsa--gfx950"', ".text")
kernel()
I('.section .rodata,"a"')
desc(NAME + "_kernel", 512, 256, 102)
if OPT["stamp"]: hdr.append("; stamps: " + " ".join(stamps))
open(sys.argv[1], "w").write("\n".join(hdr + out) + "\n")
```

```python
import sys, struct, math
NAME = "standalone__edge_featured_mpnn_mpnn__graph"
OPT = dict(stamp=0, diag=0, tw=3, tp=64, xpos=1, pb=20)
for a in sys.argv[2:]:
    k, v = a.split("="); OPT[k] = int(v)

N_NODES = 50000; E = 800000
CH = 3125; CHS = 3168
TP = OPT['tp']; FL_OFF = 0x40000
TAB_OFF = 0; WP_OFF = 0x48000; KEY_OFF = 0x58000; EA_OFF = 0x370000; STAMP_OFF = 0x1000000
WS_SIZE = 0x10000000
SPIN = 400000
def f32(x): return "0x%08x" % struct.unpack("<I", struct.pack("<f", x))[0]
NLOG2E = f32(-math.log2(math.e)); NLN2 = f32(-math.log(2.0))

out = []
def I(*ls):
    for l in ls:
        for x in l.split("\n"):
            x = x.strip()
            if x: out.append(x if x.endswith(":") or x.startswith(".") else "    " + x)
def srd(d, lo, hi, size, stride=0):
    I(f"s_mov_b32 s{d}, s{lo}")
    if stride: I(f"s_or_b32 s{d+1}, s{hi}, {hex(stride << 16)}")
    else: I(f"s_mov_b32 s{d+1}, s{hi}")
    I(f"s_mov_b32 s{d+2}, {size}", f"s_mov_b32 s{d+3}, 0x20000")
def scan64(v, fill=None):
    fill = list(fill or [])
    def gap():
        n = 0
        while fill and n < 2: I(fill.pop(0)); n += 1
        if n < 2: I(f"s_nop {1-n}")
    for op in ("row_shr:1", "row_shr:2", "row_shr:4", "row_shr:8"):
        gap(); I(f"v_add_u32_dpp v{v}, v{v}, v{v} {op} row_mask:0xf bank_mask:0xf bound_ctrl:0")
    gap(); I(f"v_add_u32_dpp v{v}, v{v}, v{v} row_bcast:15 row_mask:0xa bank_mask:0xf")
    gap(); I(f"v_add_u32_dpp v{v}, v{v}, v{v} row_bcast:31 row_mask:0xc bank_mask:0xf")
    I(*fill)
SLOTS = list(range(86, 98)) + list(range(64, 84))
stamps = []
def stamp(name, twice=False):
    if not OPT["stamp"] or (OPT.get("sl", 3) == 1 and name not in ("start", "q1", "loop1", "exit1", "loop2", "exit2", "tail", "end")): return
    if twice:
        stamps.append(name + "1")
        I(f"s_mov_b32 s{SLOTS[len(stamps)-1]}, s{SLOTS[len(stamps)]}", "s_nop 0")
        name += "2"
    stamps.append(name)
    I(f"{'s_memtime' if OPT['stamp']==1 else 's_memrealtime'} s[98:99]", "s_waitcnt lgkmcnt(0)", f"s_mov_b32 s{SLOTS[len(stamps)-1]}, s98")

CAP = 48; NS = 4 + 4*CAP
NIT = 7
STG_W = NIT*2048
L1_KEY = 0; L1_EA = CHS*4; L1_CNT = 38912; L1_BASE = L1_CNT + 1024; L_W2 = 40960
L_H1 = 4*STG_W; L_H2 = L_H1 + 256; L_SN = L_H2 + 256; L_FLAG = L_SN + 256; L_TBL = L_H1 + 1024
L_SPL = L_TBL + 1024; SPL_S = 272
L_W = L_SPL; WQ = 9*1024
L_S = L_W + 32768
L_X = L_W + 4*WQ
L_NODE = L_X + 200*128
L_SIZE = L_NODE + 196*NS
assert L_SIZE <= 163840 and 122*SPL_S <= 4*WQ
T0, T1, EE, NN, DD, QQ = 16, 32, 48, 64, 128, 192
AX, AW1A, AW1B, AW1C, AW2, AEA, AB1 = 0, 48, 112, 176, 184, 248, 254
BIG = 0x1000000

import re
V4 = ("v_exp_f32", "v_rcp_f32", "v_add_f32", "v_mul_f32", "v_add_u32", "v_mov_b32", "v_and_b32", "v_lshrrev_b32", "v_lshlrev_b32", "v_cvt_f32_ubyte2",
      "v_mul_u32_u24", "v_cndmask_b32", "v_readfirstlane_b32", "v_or_b32", "v_sub_u32")
def has_lit(s):
    for t in re.split(r"[,\s]+", s.strip())[1:]:
        if re.fullmatch(r"0x[0-9a-fA-F]+|-?\d+", t):
            v = int(t, 0)
            if not -16 <= v <= 64: return True
    return False
def isz(s):
    s = s.strip(); op = s.split()[0]
    if s.endswith(":") or s.startswith("."): return 0
    if op.startswith(("s_waitcnt", "s_nop", "s_cbranch", "s_branch", "s_movk", "s_barrier")): return 4
    if op.startswith("s_memtime") or op.startswith("s_memrealtime"): return 8
    if op.startswith("s_"): return 8 if has_lit(s) else 4
    if op.startswith("v_cmp") and not op.endswith("_e64"): return (8 if has_lit(s) else 4) if s.split()[1] == "vcc," else 8
    if op == "v_cndmask_b32" and not s.endswith("vcc"): return 8
    if op in V4: return 8 if has_lit(s) else 4
    return 8
def align8(seg):
    off = 0; last4 = None
    seg = list(seg); i = 0
    while i <= len(seg):
        s = seg[i] if i < len(seg) else "v_pk_x"
        z = isz(s)
        if z == 8 and off % 8:
            if last4 is not None:
                op = seg[last4].split()[0]
                seg[last4] = seg[last4].replace(op, op + "_e64", 1); off += 4
            elif i == len(seg) or sum(1 for x in seg[i:i+5] if isz(x) == 8) == 5:
                if i < len(seg): print("pad before", s, file=sys.stderr)
                seg.insert(i, "s_nop 0"); off += 4; i += 1
        if z == 8: last4 = None
        if z == 4 and s.split()[0] in V4 and s.split()[0] != "v_readfirstlane_b32" and off % 8 == 0: last4 = i
        off += z; i += 1
    return seg
def xload(buf, kk): return f"buffer_load_dwordx4 a[{AX+16*buf+4*kk}:{AX+16*buf+4*kk+3}], v[0:1], s[4:7], 0 idxen offen offset:{16*kk}"
def chain(dst, blk, buf, c):
    L = [f"v_mfma_f32_32x32x8_bf16 v[{dst}:{dst+15}], a[{AW1C+2*blk}:{AW1C+2*blk+1}], a[{AEA+2*buf}:{AEA+2*buf+1}], v[{c}:{c+15}]"]
    for kk in range(4):
        w = AW1A + 16*blk + 4*kk; x = AX + 16*buf + 4*kk
        L.append(f"v_mfma_f32_32x32x16_bf16 v[{dst}:{dst+15}], a[{w}:{w+3}], a[{x}:{x+3}], v[{dst}:{dst+15}]")
    return L
def qchain(dst, blk, oh):
    L = [f"v_mfma_f32_32x32x8_bf16 v[{dst}:{dst+15}], a[{AB1}:{AB1+1}], v[{oh}:{oh+1}], 0"]
    for kk in range(4):
        w = AW1B + 16*blk + 4*kk; x = AX + 32 + 4*kk
        L.append(f"v_mfma_f32_32x32x16_bf16 v[{dst}:{dst+15}], a[{w}:{w+3}], a[{x}:{x+3}], v[{dst}:{dst+15}]")
    return L
def onehot(r, blk):
    c = "1.0" if blk & 1 else "s53"
    return [f"v_mov_b32 v{r+(blk>>1)}, {c}", f"v_mov_b32 v{r+1-(blk>>1)}, 0"]
def gemm2(blk, hb):
    L = []
    for p in range(2):
        for ob in range(2):
            w = AW2 + 4*((blk*2+p)*2+ob); o = T0 + 16*ob
            L.append(f"v_mfma_f32_32x32x16_bf16 v[{o}:{o+15}], a[{w}:{w+3}], v[{hb+4*p}:{hb+4*p+3}], v[{o}:{o+15}]")
    return L
def weave(ms, fill, cnts, extra=None):
    L = []; fill = list(fill)
    for k, m in enumerate(ms):
        L.append(m)
        if extra: L += extra.get(k, [])
        L += fill[:cnts[k]]; fill = fill[cnts[k]:]
    assert not fill
    return L
def repoll(tag, load, cmp):
    I(f"{tag}:", f"s_mov_b32 s3, {SPIN}", f"{tag}_L:", "s_sleep 4", load, "s_sub_u32 s3, s3, 1", "s_cbranch_scc1 K_END",
      "s_waitcnt vmcnt(0)", cmp, f"s_cbranch_vccnz {tag}_L", f"s_branch {tag}_RET")

def spread(ms, fill, tail=32, pre=None):
    pre = pre or {}
    L = []; fill = list(fill); n = len(ms)
    for k, m in enumerate(ms):
        while any(f == ("@", k) for f in fill):
            f = fill.pop(0)
            if f[0] != "@": L.append(f[0])
        L.append(m); L += pre.get(k, [])
        if k == n-1: break
        rem = sum(c for f, c in fill if f != "@")
        budget = max(24 if "x16" in m else 28, (rem - tail)/(n-1-k))
        budget -= sum(max(cost(x)-4, 0) if j == 0 else cost(x) for j, x in enumerate(pre.get(k, [])))
        used = 0
        while fill and (fill[0][0] == "@" or used + fill[0][1] <= budget + 3) and sum(c for f, c in fill if f != "@") > tail:
            f = fill.pop(0)
            if f[0] != "@": L.append(f[0]); used += f[1]
    L += [f for f, c in fill if f != "@"]
    return L
def cost(x):
    op = x.split()[0]
    if op.startswith(("v_exp", "v_rcp")): return 8
    if op.startswith("buffer_"): return 15
    if op.startswith("ds_write_b128"): return 14
    if op.startswith("ds_"): return 10
    return 4
def C(l): return [(x, cost(x)) for x in l]
def page(n):
    I(f"s_branch PG{n}", ".p2align 12", f"PG{n}:", "s_cbranch_execz K_WARM_RET", "s_nop 0")
def pk3(b, tc):
    n = NN+16*b; d = DD+16*b
    return [f"v_pk_fma_f32 v[{n+2*i}:{n+2*i+1}], v[{n+2*i}:{n+2*i+1}], v[{EE+2*i}:{EE+2*i+1}], v[{n+2*i}:{n+2*i+1}]" for i in range(8)] + \
           [f"v_pk_fma_f32 v[{n+2*i}:{n+2*i+1}], v[{tc+2*i}:{tc+2*i+1}], v[{d+2*i}:{d+2*i+1}], v[{n+2*i}:{n+2*i+1}]" for i in range(8)] + \
           [f"v_pk_fma_f32 v[{d+2*i}:{d+2*i+1}], v[{d+2*i}:{d+2*i+1}], v[{EE+2*i}:{EE+2*i+1}], v[{d+2*i}:{d+2*i+1}]" for i in range(8)]
def exps(tc): return [f"v_exp_f32 v{EE+i}, v{tc+i}" for i in range(16)]
def E0(b): return [f"v_exp_f32 v{DD+16*b+i}, v{NN+16*b+i}" for i in range(16)]
def A0(b): return [f"v_pk_add_f32 v[{DD+16*b+2*i}:{DD+16*b+2*i+1}], v[{DD+16*b+2*i}:{DD+16*b+2*i+1}], 1.0 op_sel_hi:[1,0]" for i in range(8)]
LB, RM, OA, OH3 = EE, EE+4, EE+5, EE+8
def R(b): return [f"v_rcp_f32 v{DD+16*b+i}, v{DD+16*b+i}" for i in range(16)]
def M(b): return [f"v_min3_f32 v{RM}, v{DD+16*b+2*i}, v{DD+16*b+2*i+1}, " + ("1.0" if b == 0 and i == 0 else f"v{RM}") for i in range(8)]
def U(b): return [f"v_pk_mul_f32 v[{NN+16*b+2*i}:{NN+16*b+2*i+1}], v[{NN+16*b+2*i}:{NN+16*b+2*i+1}], v[{DD+16*b+2*i}:{DD+16*b+2*i+1}]" for i in range(8)]
def V(b): return [f"v_cvt_pk_bf16_f32 v{NN+16*b+i}, v{NN+16*b+2*i}, v{NN+16*b+2*i+1}" for i in range(8)]
def G(b): return gemm2(b, NN+16*b)
def lbinit(r): return [f"v_cvt_f32_ubyte2 v{r+2}, v5", f"v_mov_b32 v{r+1}, 0", f"v_mov_b32 v{r+3}, 0", f"v_lshrrev_b32 v{r}, 16, v{r+2}"]
def binit(r): return [f"v_mfma_f32_32x32x8_bf16 v[{T0+16*ob}:{T0+16*ob+15}], v[14:15], v[{r+2*ob}:{r+2*ob+1}], 0" for ob in range(2)]
def dec2(lb):
    return [f"v_and_b32 v{OA}, s54, v5", f"v_lshl_add_u32 v0, v{OA}, 8, s16", f"v_lshrrev_b32 v{OA}, 24, v5", f"v_cmp_eq_u32 vcc, s54, v{OA}",
            f"v_mul_u32_u24 v{OA}, s55, v{OA}", f"v_lshl_add_u32 v{OA}, v1, 1, v{OA}", f"v_mov_b32 v{OA+1}, s56",
            f"v_cndmask_b32 v{OA}, v{OA}, v{OA+1}, vcc", f"v_cndmask_b32 v0, v{OA+1}, v0, vcc",
            f"v_cmp_eq_u32 s[38:39], 0, v{lb+2}"]
SCL = [f"v_pk_mul_f32 v[{T0+2*i}:{T0+2*i+1}], v[{T0+2*i}:{T0+2*i+1}], s[24:25]" for i in range(16)]
def check(tag):
    return [f"v_cmp_class_f32 s[40:41], v{T0}, s58", f"v_cmp_lt_f32 vcc, s57, v{RM}", "s_nop 0", "s_andn2_b64 vcc, vcc, s[40:41]", "s_andn2_b64 s[40:41], vcc, s[38:39]",
            "s_cmp_eq_u64 s[40:41], -1", f"s_cbranch_scc0 {tag}", f"{tag}_RET:"]
DSW = [f"ds_write_b128 v{OA}, v[{T0+4*i}:{T0+4*i+3}] offset:{L_SPL+16*i}" for i in range(8)]
def ocvt(r): return [f"v_cvt_pk_bf16_f32 v{r+i}, v{T0+2*i}, v{T0+2*i+1}" for i in range(16)]
def ost(r): return [f"buffer_store_dwordx4 v[{r+4*i}:{r+4*i+3}], v[0:1], s[8:11], 0 idxen offen offset:{16*i}" for i in range(4)]
DEC1 = ["v_and_b32 v9, s54, v7", "v_bfe_u32 v10, v7, 8, 8", "v_mad_u32_u24 v2, v9, v6, s27", "v_lshl_add_u32 v9, v9, 7, v8", "v_lshl_add_u32 v2, v10, 2, v2", "v_bfe_u32 v3, v7, 16, 8"]
RD1 = ["ds_read_u16 v0, v2 offset:2"] + [f"ds_read_b128 a[{AX+32+4*k}:{AX+35+4*k}], v9 offset:{16*k}" for k in range(4)]
RD2 = ["ds_read_u16 v10, v2 offset:6", "ds_read_u16 v4, v2", "ds_read_u16 v13, v2 offset:4", "ds_read_u16 v11, v2 offset:10", "ds_read_u16 v12, v2 offset:14"]
RD3 = [f"ds_read_b64 a[{AEA}:{AEA+1}], v4", f"ds_read_b64 a[{AEA+2}:{AEA+3}], v13", "ds_read_u16 v4, v2 offset:8"]
LSET = ["s_max_u32 s20, s20, 2", "s_sub_u32 s37, s20, 3", "s_mov_b32 s19, 1"]

def kernel():
    K = NAME + "_kernel"
    I(".p2align 12", f".globl {K}", ".p2align 8", f".type {K},@function", f"{K}:")
    I("s_cmp_ge_u32 s2, 256", "s_cbranch_scc1 K_END0")
    stamp("start")
    if OPT["diag"]: I("s_memrealtime s[100:101]")
    I("s_load_dwordx16 s[64:79], s[0:1], 0", "s_load_dwordx4 s[80:83], s[0:1], 64", "s_load_dwordx2 s[84:85], s[0:1], 80")
    I("v_lshrrev_b32 v2, 6, v0", "v_and_b32 v6, 63, v0", "v_lshlrev_b32 v17, 2, v0", "v_readfirstlane_b32 s18, v2")
    I("v_mov_b32 v24, 0", f"ds_write_b32 v17, v24 offset:{L1_CNT}", "v_lshlrev_b32 v16, 4, v0", "v_lshlrev_b32 v4, 4, v6")
    I(f"s_mul_i32 s60, s2, {CH*4}", "s_mov_b32 s31, 0x20000", f"s_mov_b32 s30, {E*4}", "s_mov_b32 s15, 0x20000", f"s_mov_b32 s14, {WS_SIZE}")
    I("s_add_u32 s19, s60, 4096", "s_add_u32 s20, s60, 8192", f"s_add_u32 s21, s60, {(3072-192)*4}")
    I("s_mov_b32 s35, 0x20000", f"s_mov_b32 s34, {E*4}")
    I("v_mov_b32 v20, -1", "v_mov_b32 v21, -1", "v_mov_b32 v22, -1", "v_mov_b32 v23, -1")
    I("s_lshl_b32 s3, s2, 12", "s_lshl_b32 s36, s2, 6", f"s_add_u32 s36, s36, {FL_OFF}")
    I("s_cmp_lt_u32 s2, 64", "s_cselect_b32 s61, s18, 0")
    DST, SRC, EAR, AD, RK, P8, CP, WR = 64, 80, 96, 128, 144, 160, 176, 208
    I("s_cmp_lg_u32 s61, 1", "s_waitcnt lgkmcnt(0)")
    I("s_mov_b32 s28, s70", "s_mov_b32 s29, s71", "s_mov_b32 s12, s84", "s_mov_b32 s13, s85", "s_cbranch_scc1 R_NOT1")
    for i in range(4): I(f"buffer_store_dwordx4 v[20:23], v4, s[12:15], s3 offen offset:{1024*i} sc1")
    I("s_mov_b64 exec, 15", "buffer_store_dwordx4 v[20:23], v4, s[12:15], s36 offen sc1", "s_mov_b64 exec, -1", "R_NOT1:")
    so = ("s60", "s19", "s20")
    for i in range(3): I(f"buffer_load_dwordx4 v[{DST+4*i}:{DST+4*i+3}], v16, s[28:31], {so[i]} offen")
    I(f"buffer_load_dword v{DST+12}, v17, s[28:31], s21 offen", "s_mov_b32 s32, s68", "s_mov_b32 s33, s69")
    for i in range(3): I(f"buffer_load_dwordx4 v[{SRC+4*i}:{SRC+4*i+3}], v16, s[32:35], {so[i]} offen")
    I(f"buffer_load_dword v{SRC+12}, v17, s[32:35], s21 offen")
    stamp("issued")
    I("s_mov_b64 exec, 0")
    for w in range(3): I(f"s_cmp_eq_u32 s18, {w}", f"s_cbranch_scc1 PG{w+1}")
    I("s_branch PG4", "K_WARM_RET:", "s_mov_b64 exec, -1", "s_barrier")
    srd(52, 66, 67, E*8); srd(4, 64, 65, N_NODES, 128); srd(8, 80, 81, N_NODES, 128); srd(56, 82, 83, 256)
    srd(40, 72, 73, 132*256); srd(44, 76, 77, 128*128)
    I("s_cmp_eq_u32 s18, 0", "s_cselect_b32 s48, s74, s78", "s_cselect_b32 s49, s75, s79", "s_cselect_b32 s50, 2, 1", "s_lshl_b32 s50, s50, 7", "s_mov_b32 s51, 0x20000")
    I(f"s_mul_i32 s3, s2, {CHS*4}", f"s_add_u32 s3, s3, {KEY_OFF}", "s_add_u32 s28, s12, s3", "s_addc_u32 s29, s13, 0", f"s_movk_i32 s30, {(CH+19)*4}")
    I(f"s_mul_i32 s3, s2, {CHS*8}", f"s_add_u32 s3, s3, {EA_OFF}", "s_add_u32 s32, s12, s3", "s_addc_u32 s33, s13, 0", f"s_movk_i32 s34, {(CH+1)*8}")
    I("s_and_b32 s16, s2, 7", "s_lshl_b32 s16, s16, 5", "s_lshr_b32 s3, s2, 3", "s_add_u32 s16, s16, s3")
    I("s_movk_i32 s17, 195", "s_cmp_lt_u32 s16, 80", "s_addc_u32 s17, s17, 0")
    I("v_mov_b32 v25, 0", "v_mov_b32 v26, 0", "v_mov_b32 v27, 0", f"v_add_u32 v5, {L_NODE}, v16")
    for i in range(10): I(f"ds_write_b128 v5, v[24:27] offset:{4096*i}")
    I("v_mov_b32 v28, 0xff0000ff", "v_mov_b32 v29, 0xffff",
      "v_cmp_eq_u32 vcc, 2, v2", f"ds_write_b32 v17, v28 offset:{L_TBL}", "v_lshlrev_b32 v21, 2, v6", "v_cndmask_b32 v29, v24, v29, vcc",
      f"ds_write_b32 v17, v29 offset:{L_H1}")
    I("v_and_b32 v29, 0x7c, v21", f"ds_write_b32 v29, v20 offset:{L1_KEY + CH*4}")
    I("v_mov_b32 v29, 1", "v_lshlrev_b32 v18, 5, v0", "v_lshlrev_b32 v19, 3, v0")
    I("v_subrev_u32 v45, 192, v0", f"v_cmp_gt_u32 vcc, {CH-3072}, v45", f"v_mov_b32 v45, {hex(BIG)}", "s_mov_b32 s39, 0x05040001", "v_cndmask_b32 v45, v45, v24, vcc")
    I("s_waitcnt vmcnt(4)")
    stamp("dst")
    for i in range(13):
        I(f"v_lshlrev_b32_sdwa v{AD+i}, 2, v{DST+i} dst_sel:DWORD dst_unused:UNUSED_PAD src0_sel:DWORD src1_sel:BYTE_0")
        if i == 12: I(f"v_or_b32 v{AD+i}, v45, v{AD+i}")
        I(f"ds_add_rtn_u32 v{RK+i}, v{AD+i}, v29 offset:{L1_CNT}")
    I("s_cmp_lg_u32 s61, 1", "s_waitcnt vmcnt(0)", "s_cbranch_scc1 R_DONE")
    I("s_and_b32 s3, s2, 3", "s_lshl_b32 s3, s3, 6", "s_mov_b64 exec, 1", "buffer_atomic_add v29, v24, s[56:59], s3 offen", "s_mov_b64 exec, -1")
    I("R_DONE:")
    stamp("src")
    for i in range(3):
        I(f"s_lshl_b32 s3, {so[i]}, 1", f"buffer_load_dwordx4 v[{EAR+8*i}:{EAR+8*i+3}], v18, s[52:55], s3 offen",
          f"buffer_load_dwordx4 v[{EAR+8*i+4}:{EAR+8*i+7}], v18, s[52:55], s3 offen offset:16")
    I("s_lshl_b32 s3, s21, 1", f"buffer_load_dwordx2 v[{EAR+24}:{EAR+25}], v19, s[52:55], s3 offen")
    I("s_waitcnt lgkmcnt(0)", "s_barrier")
    stamp("barA")
    perm = [f"v_perm_b32 v{DST+i}, v{SRC+i}, v{DST+i}, s39" for i in range(13)]
    I("s_cmp_lg_u32 s18, 0", "s_cbranch_scc1 K_NOSCAN")
    I(f"ds_read_b128 v[32:35], v4 offset:{L1_CNT}", "s_waitcnt lgkmcnt(0)")
    I("v_add_u32 v38, v32, v33", "v_add_u32 v39, v38, v34", "v_add_u32 v41, v39, v35", "v_mov_b32 v36, v41")
    scan64(36)
    I("v_sub_u32 v36, v36, v41", "v_add_u32 v37, v36, v32", "v_add_u32 v38, v36, v38", "v_add_u32 v39, v36, v39")
    I(f"ds_write_b128 v4, v[36:39] offset:{L1_BASE}")
    for i in range(4): I(f"v_lshl_or_b32 v{32+i}, v{32+i}, 16, v{36+i}")
    I("s_waitcnt lgkmcnt(0)", "K_NOSCAN:", "s_barrier")
    stamp("barB")
    for i in range(13): I(f"ds_read_b32 v{AD+i}, v{AD+i} offset:{L1_BASE}", perm[i])
    for i in range(13):
        if i in (0, 6): I(f"s_waitcnt lgkmcnt({7 if i == 0 else 6})")
        I(f"v_add_lshl_u32 v{AD+i}, v{AD+i}, v{RK+i}, 2")
        if i == 12: I(f"v_or_b32 v{AD+i}, v45, v{AD+i}")
        I(f"ds_write_b32 v{AD+i}, v{DST+i} offset:{L1_KEY}")
    for i in range(13): I(f"v_lshlrev_b32 v{P8+i}, 1, v{AD+i}")
    I("s_waitcnt lgkmcnt(0)", "s_barrier")
    stamp("barC")
    for i in range(4): I(f"ds_read_b128 v[{CP+4*i}:{CP+4*i+3}], v16 offset:{L1_KEY+4096*i}")
    for i in range(4): I(f"s_movk_i32 s3, {4096*i}", f"s_waitcnt lgkmcnt({3-i})", f"buffer_store_dwordx4 v[{CP+4*i}:{CP+4*i+3}], v16, s[28:31], s3 offen sc1")
    F1LD = "buffer_load_dword v20, v21, s[56:59], 0 offen sc1"
    lt = TP.bit_length() - 1
    I(f"v_lshrrev_b32 v36, {lt-4}, v6", f"v_lshlrev_b32 v36, {lt+8}, v36", f"v_and_b32 v37, {TP-1}, v4", "v_add_u32 v36, v36, v37")
    I("s_lshl_b32 s38, s18, 12", f"s_add_u32 m0, s38, {L_W2}")
    I("s_waitcnt vmcnt(4)", "s_cmp_lg_u32 s18, 2", "s_cbranch_scc1 K_NOF1")
    I(F1LD, "K_NOF1:")
    stamp("ea_in")
    wl = [[f"s_movk_i32 s3, {4096*i}", f"buffer_load_dwordx4 v[{WR+4*i}:{WR+4*i+3}], v16, s[40:43], s3 offen"] for i in range(8)]
    wl += [["s_mov_b32 s3, 0x8000", f"buffer_load_dword v{WR+32}, v17, s[40:43], s3 offen", f"buffer_load_dword v{WR+33}, v21, s[48:51], 0 offen"]]
    wl += [[f"buffer_load_dwordx4 v4, s[44:47], s38 offen offset:{1024*i} lds"] for i in range(4)]
    for i in range(13): I(f"ds_write_b64 v{P8+i}, v[{EAR+2*i}:{EAR+2*i+1}] offset:{L1_EA}", *wl[i])
    I("s_waitcnt vmcnt(14)", "s_cbranch_scc1 K_F1_RET")
    F1CMP = "v_cmp_lt_u32 vcc, v20, v22"
    I("v_and_b32 v22, 15, v6", "v_cmp_eq_u32 vcc, 0, v22", "s_nop 1", "v_cndmask_b32_e64 v22, 0, 16, vcc", F1CMP, "s_cbranch_vccnz K_F1", "K_F1_RET:")
    I("s_waitcnt lgkmcnt(0)", "s_barrier")
    stamp("barD")
    I(f"s_lshl_b32 s37, s2, {lt}", "s_cmp_lg_u32 s18, 0", "s_cbranch_scc1 K_NOTAB", "buffer_store_dwordx4 v[32:35], v36, s[12:15], s37 offen sc1", "K_NOTAB:")
    for i in range(7): I(f"ds_read_b128 v[{CP+4*i}:{CP+4*i+3}], v16 offset:{L1_EA+4096*i}")
    for i in range(7): I(f"s_movk_i32 s3, {4096*i}", f"s_waitcnt lgkmcnt({6-i})", f"buffer_store_dwordx4 v[{CP+4*i}:{CP+4*i+3}], v16, s[32:35], s3 offen sc1")
    I("v_lshrrev_b32 v46, 3, v0", "v_lshl_add_u32 v46, v46, 8, s16", "v_and_b32 v47, 0x70, v4", "s_lshl_b32 s62, s18, 10", f"s_add_u32 s62, s62, {L_X}")
    I("s_cmp_eq_u32 s18, 0", "s_mov_b32 s63, 0x3f000", f"s_cselect_b32 s63, {L_X + 6*4096}, s63")
    def xdma():
        for i in range(7):
            I(f"s_add_u32 m0, s62, {4096*i}" if i < 6 else "s_mov_b32 m0, s63", "v_add_u32 v46, 0x2000, v46" if i else "s_nop 0", "buffer_load_dwordx4 v[46:47], s[4:7], 0 idxen offen lds")
    x0 = 7 if OPT["xpos"] == 0 else 0; x1 = 7 - x0
    if x0: xdma()
    I(f"s_mov_b32 s24, {NLOG2E}", f"s_mov_b32 s25, {NLOG2E}", "s_mov_b32 s27, 0xffff0000", "v_and_b32 v5, 0x300, v16", "v_lshrrev_b32 v5, 2, v5", "v_xor_b32 v5, v5, v16", f"v_add_u32 v5, {L_W}, v5")
    I(f"v_lshl_add_u32 v7, v2, 8, v17", f"v_add_u32 v7, {L_S + 2048}, v7", f"v_add_u32 v9, {L_S}, v17", f"s_waitcnt vmcnt({11 + x0})")
    I(".p2align 3")
    for i in range(34):
        if i == OPT["pb"]:
            I("s_branch PG1")
            repoll("K_F1", F1LD, F1CMP)
            I(".p2align 12", "PG1:", "s_cbranch_execz K_WARM_RET", "s_nop 0")
        t = 64 + 2*(i % 4) if i < 32 else 72 + 2*(i-32)
        I(f"v_lshlrev_b32 v{t}, 16, v{WR+i}", f"v_and_b32 v{t+1}, s27, v{WR+i}", f"v_pk_mul_f32 v[{t}:{t+1}], v[{t}:{t+1}], s[24:25]", f"v_cvt_pk_bf16_f32 v{WR+i}, v{t}, v{t+1}")
        if i % 4 == 3: I(f"ds_write_b128 v5, v[{WR+i-3}:{WR+i}] offset:{1024*(i-3)}")
    I(f"ds_write_b32 v9, v{WR+32}", f"ds_write_b32 v7, v{WR+33}")
    for i in (32, 33):
        t = 72 + 2*(i-32)
        I(f"v_lshlrev_b32 v64, 16, v{WR+i}", f"v_and_b32 v65, s27, v{WR+i}", f"v_sub_f32 v64, v{t}, v64", f"v_sub_f32 v65, v{t+1}, v65", f"v_cvt_pk_bf16_f32 v{66+i-32}, v64, v65")
    I("ds_write_b32 v9, v66 offset:1024", "ds_write_b32 v7, v67 offset:256")
    TABLD = "buffer_load_dword v8, v3, s[12:15], s36 offen sc1"
    TABA = [f"s_lshr_b32 s36, s16, {lt-2}", f"s_lshl_b32 s36, s36, {lt+8}", f"s_and_b32 s3, s16, {TP//4-1}", "s_lshl2_add_u32 s36, s3, s36"]
    I(*TABA); I(f"v_lshlrev_b32 v3, {lt}, v0", f"s_waitcnt vmcnt({OPT['tw'] + x0})", TABLD)
    for i in range(5): I(f"s_mov_b32 s{40+i}, {16384 + 8192*i}")
    I(f"s_lshl_b32 s23, s18, 11", "v_and_b32 v48, 0x380, v4", "v_bfe_u32 v49, v6, 2, 1", "v_lshl_add_u32 v48, v49, 10, v48", "v_and_b32 v30, 48, v4",
      "v_lshl_add_u32 v48, v30, 1, v48", "v_add_u32 v48, s23, v48", "v_add_u32 v49, 8, v48", "v_add_u32 v50, 16, v48", "v_add_u32 v51, 24, v48")
    I(f"s_mul_i32 s22, s16, {256*NS}", f"s_sub_u32 s22, {L_NODE}, s22", f"v_mov_b32 v28, {NS}")
    I(f"s_mov_b32 s24, {NLN2}", f"s_mov_b32 s25, {NLN2}", f"s_mov_b32 s26, {N_NODES}", f"s_mov_b32 s50, {KEY_OFF}", f"s_mov_b32 s51, {EA_OFF}", f"s_mov_b32 s52, {FL_OFF}")
    I("v_add_u32 v31, 2.0, v30", f"v_mul_u32_u24 v44, {CHS}, v0", "v_add_u32 v27, 0x80000000, v47", "v_lshrrev_b32 v1, 5, v6")
    I("v_bfe_u32 v52, v6, 2, 2", "v_and_b32 v53, 3, v6", "v_bfe_u32 v54, v6, 4, 1",
      "v_lshlrev_b32 v55, 3, v53", "v_lshl_add_u32 v55, v54, 5, v55",
      "v_lshl_add_u32 v56, v52, 8, v55", "v_lshl_add_u32 v60, v1, 10, v56", f"v_add_u32 v60, {L_S}, v60",
      "v_lshl_add_u32 v56, v1, 13, v56", "v_lshl_add_u32 v56, v52, 6, v56", f"v_add_u32 v56, {L_W}, v56",
      "v_xor_b32 v57, 64, v56", "v_xor_b32 v58, 0x80, v56", "v_xor_b32 v59, 0xc0, v56",
      "v_lshl_add_u32 v61, v52, 6, v55", "v_lshl_add_u32 v61, v1, 8, v61", f"v_add_u32 v61, {L_S + 2048}, v61",
      "v_and_b32 v55, 1, v53", "v_lshlrev_b32 v55, 6, v55", "v_lshl_add_u32 v55, v54, 4, v55", "v_lshrrev_b32 v53, 1, v53", "v_lshl_add_u32 v55, v53, 3, v55",
      "v_lshl_add_u32 v62, v52, 7, v55", "v_lshl_add_u32 v62, v1, 9, v62",
      "v_and_b32 v52, 1, v52", "v_lshl_add_u32 v63, v52, 5, v55", "v_lshl_add_u32 v63, v1, 8, v63", f"v_add_u32 v63, {L_S + 2560}, v63",
      "v_lshlrev_b32 v1, 6, v1")
    assert L_W % 256 == 0
    tr = []
    for f in range(32):
        for jh in range(2): tr.append(f"ds_read_b64_tr_b16 a[{AW1A+4*f+2*jh}:{AW1A+4*f+2*jh+1}], v{56+((f>>2)&3)} offset:{(64*(f>>4) + 8*(f&3) + 4*jh)*256}")
    for b in range(4): tr.append(f"ds_read_b64_tr_b16 a[{AW1C+2*b}:{AW1C+2*b+1}], v60 offset:{64*b}")
    tr += [f"ds_read_b64_tr_b16 a[{AB1}:{AB1+1}], v61", "ds_read_b64_tr_b16 v[14:15], v63"]
    tr2 = []
    for f in range(16):
        for jh in range(2): tr2.append(f"ds_read_b64_tr_b16 a[{AW2+4*f+2*jh}:{AW2+4*f+2*jh+1}], v62 offset:{L_W2 + (16*(f>>1) + 8*jh)*128 + 32*(f&1)}")
    I(f"s_lshl_b32 s37, s2, 4", f"s_add_u32 s37, s37, {FL_OFF}", f"s_waitcnt vmcnt({1 + x0}) lgkmcnt(0)", "s_barrier")
    stamp("barE")
    I("s_cmp_lg_u32 s18, 1", "s_cbranch_scc1 K_NOF3", "s_mov_b64 exec, 1", "buffer_store_dword v24, v24, s[12:15], s37 offen sc1", "s_mov_b64 exec, -1",
      "s_waitcnt vmcnt(1)", "s_branch K_F3D", "K_NOF3:", "s_waitcnt vmcnt(0)", "K_F3D:")
    I("v_cmp_eq_u32 vcc, -1, v8", "s_cbranch_vccnz K_TAB", "K_TAB_RET:")
    stamp("tab")
    I("v_and_b32 v33, 0xffff, v8", "v_add_lshl_u32 v32, v44, v33, 2", "v_lshrrev_b32 v33, 16, v8", "v_subrev_u32 v33, 16, v33")
    KEY, AD, RK, O4, O8 = 64, 96, 128, 40, 160
    def compact(dst):
        I("v_cmp_lt_i32 vcc, 0, v33", "s_nop 1", "v_mbcnt_lo_u32_b32 v35, vcc_lo, 0", "v_mbcnt_hi_u32_b32 v35, vcc_hi, v35",
          "v_cmp_gt_u32 s[36:37], 16, v35", "v_lshlrev_b32 v35, 4, v35", "s_nop 0", "s_and_b64 vcc, vcc, s[36:37]",
          "v_cndmask_b32 v35, 4, v35, vcc", f"ds_permute_b32 v{dst}, v35, v34",
          "v_cndmask_b32_e64 v35, 0, 16, vcc", "v_sub_u32 v33, v33, v35", "v_lshl_add_u32 v34, v35, 2, v34")
    def octets(src, its, off, o8):
        I(f"v_lshlrev_b32 v39, 1, v{src}", f"v_lshlrev_b32 v37, 1, v{src}", f"v_lshlrev_b32 v38, 1, v{src}", "s_nop 0",
          "v_mov_b32_dpp v37, v39 row_shr:4 row_mask:0xf bank_mask:0xa", "v_mov_b32_dpp v38, v39 row_shl:4 row_mask:0xf bank_mask:0x5", "s_nop 0")
        for n, i in enumerate(its):
            for h in range(2): I(f"v_add_u32_dpp v{o8+2*n+h}, v{37+h}, v{off} quad_perm:[{i},{i},{i},{i}] row_mask:0xf bank_mask:0xf")
    for i in range(4):
        I(f"v_add_u32_dpp v{O4+i}, v32, v30 quad_perm:[{i},{i},{i},{i}] row_mask:0xf bank_mask:0xf",
          f"buffer_load_dwordx4 v[{KEY+4*i}:{KEY+4*i+3}], v{O4+i}, s[12:15], s50 offen sc1")
    I(f"v_add_u32 v34, 0xc0000040, v32")
    compact(36)
    octets(32, range(4), 47, O8)
    I("s_waitcnt lgkmcnt(0)", f"v_add_u32_dpp v{O4+4}, v36, v31 quad_perm:[0,0,0,0] row_mask:0xf bank_mask:0xf",
      f"buffer_load_dwordx4 v[{KEY+16}:{KEY+19}], v{O4+4}, s[12:15], s50 offen sc1")
    if x1: xdma()
    octets(36, [0], 27, O8+8)
    I(f"v_bfe_i32 v{O4+4}, v{O4+4}, 30, 1")
    I(f"v_mul_u32_u24 v20, {NS}, v0", f"v_add_u32 v20, {L_NODE}, v20", "v_cmp_gt_u32 s[38:39], s17, v0")
    I("s_sub_u32 s27, 256, s17", "s_sub_u32 s19, s27, 32")
    I(*tr2); I(*tr)
    F3LD = "buffer_load_dword v9, v16, s[12:15], s52 offen sc1"
    def phaseB(k, a, r, sreg, m=None):
        if m:
            for j in range(4): I(f"v_or_b32 v{k+j}, v{m}, v{k+j}")
        for j in range(4): I(f"v_mad_u32_u16 v{a+j}, v{k+j}, v28, s22")
        for j in range(4):
            I(f"ds_add_rtn_u32 v{r+j}, v{a+j}, v29",
              f"v_add_u32_sdwa v{k+j}, v{48+j}, s{sreg} dst_sel:WORD_0 dst_unused:UNUSED_PRESERVE src0_sel:DWORD src1_sel:DWORD")
    def phaseC(k, a, r):
        L = []
        for j in range(4): L += [f"v_min_u32 v{r+j}, {CAP-1}, v{r+j}", f"v_lshl_add_u32 v{a+j}, v{r+j}, 2, v{a+j}", f"ds_write_b32 v{a+j}, v{k+j} offset:4"]
        return L
    def eadma(o, base, imm): return [f"s_add_u32 m0, {base}, {imm}", "s_nop 0", f"buffer_load_dwordx4 v{o}, s[12:15], s51 offen sc1 lds"]
    ea = [eadma(O8+n, "s23", 16384 + 8192*(n>>1) + 1024*(n&1)) for n in range(10)]
    I(F3LD)
    for i in range(5):
        I(f"s_waitcnt vmcnt({5 - i + x1})")
        if i == 0: stamp("key0")
        phaseB(KEY+4*i, AD+4*i, RK+4*i, 40+i, O4+4 if i == 4 else None)
    I("v_cmp_lt_i32 vcc, 0, v33", "s_cbranch_vccnz K_MORE", "K_MORE_RET:")
    I("s_waitcnt lgkmcnt(0)", "s_barrier")
    stamp("bar1")
    I("s_mov_b64 exec, s[38:39]", "ds_read_b32 v20, v20", "s_mov_b64 exec, -1")
    I("s_waitcnt vmcnt(0)", "v_cmp_eq_u32 vcc, -1, v9", "s_cbranch_vccnz K_F3", "K_F3_RET:")
    stamp("f3")
    I(*(ea[0] + ea[1]))
    I("s_waitcnt lgkmcnt(0)", "s_mov_b64 exec, s[38:39]")
    I(f"v_cmp_lt_u32 vcc, {CAP}, v20", "v_min_u32 v20, 63, v20", "v_sub_u32 v22, 63, v20", "v_lshlrev_b32 v22, 2, v22",
      f"ds_add_rtn_u32 v23, v22, v29 offset:{L_H1}")
    I("s_cbranch_vccz K_A1", f"ds_write_b32 v24, v29 offset:{L_FLAG}", "K_A1:")
    I("s_mov_b64 exec, -1")
    I(*(ea[2] + ea[3]))
    I("s_waitcnt lgkmcnt(0)", "s_barrier")
    I(f"ds_read_b32 v25, v21 offset:{L_H1}")
    I(*phaseC(KEY, AD, RK))
    I("s_waitcnt lgkmcnt(4)", "v_mov_b32 v46, v25")
    scan64(46, phaseC(KEY+4, AD+4, RK+4))
    I("v_sub_u32 v46, v46, v25", "ds_bpermute_b32 v46, v22, v46")
    I("v_lshrrev_b32 v30, 1, v20", "v_cmp_lt_u32 s[36:37], 25, v20")
    I(*(ea[4] + ea[5]))
    I("s_waitcnt lgkmcnt(0)")
    I("v_add_u32 v23, v23, v46", "v_cmp_gt_u32 vcc, s19, v23", "v_lshlrev_b32 v33, 1, v23", "v_lshlrev_b32 v34, 2, v23",
      "v_cndmask_b32_e64 v31, 8, 10, vcc", "v_cndmask_b32 v31, v31, v30, s[36:37]")
    I("v_cmp_gt_u32 vcc, s27, v23", "v_cmp_gt_u32 s[36:37], v20, v31", "v_mov_b32 v35, 0xff", "v_sub_u32 v37, 63, v31",
      "s_and_b64 vcc, vcc, s[36:37]", "s_and_b64 vcc, vcc, s[38:39]")
    I("v_cndmask_b32 v32, 0, v31, vcc", "v_sub_u32 v32, v20, v32", "v_sub_u32 v36, 63, v32", "v_lshlrev_b32 v36, 2, v36", "v_lshlrev_b32 v37, 2, v37")
    I("s_mov_b64 exec, s[38:39]", f"ds_add_rtn_u32 v38, v36, v29 offset:{L_H2}")
    I("s_mov_b64 exec, vcc", f"ds_add_rtn_u32 v39, v37, v29 offset:{L_H2}", "v_lshl_add_u32 v47, v0, 8, s16", f"ds_write_b32 v34, v47 offset:{L_SN}")
    I("s_mov_b64 exec, -1", "v_cndmask_b32 v35, v35, v33, vcc")
    I("v_lshl_or_b32 v48, v35, 8, v32", "v_lshl_or_b32 v48, v48, 16, v0")
    I("v_or_b32 v33, 1, v33", "v_lshl_or_b32 v49, v33, 8, v31", "v_lshl_or_b32 v49, v49, 8, v32", "v_lshl_or_b32 v49, v49, 8, v0")
    I(*(ea[6] + ea[7]))
    I("s_waitcnt lgkmcnt(0)", "s_barrier")
    stamp("bar3")
    I(f"ds_read_b32 v25, v21 offset:{L_H2}"); I(*phaseC(KEY+8, AD+8, RK+8)); I("s_waitcnt lgkmcnt(4)", "v_mov_b32 v46, v25")
    scan64(46, phaseC(KEY+12, AD+12, RK+12))
    I("v_sub_u32 v46, v46, v25", "ds_bpermute_b32 v36, v36, v46", "ds_bpermute_b32 v37, v37, v46")
    I(*phaseC(KEY+16, AD+16, RK+16))
    I("s_waitcnt lgkmcnt(4)", "v_add_lshl_u32 v36, v36, v38, 2", "v_add_lshl_u32 v37, v37, v39, 2")
    I("s_mov_b64 exec, s[38:39]", f"ds_write_b32 v36, v48 offset:{L_TBL}", "s_mov_b64 exec, vcc", f"ds_write_b32 v37, v49 offset:{L_TBL}",
      "s_mov_b64 exec, -1")
    I("v_and_b32 v20, 31, v6", "s_lshl_b32 s3, s18, 7", "v_lshl_add_u32 v22, v20, 2, s3", "s_sub_u32 s3, 896, s3", "v_lshl_add_u32 v23, v20, 2, s3")
    I(*(ea[8] + ea[9]))
    I("s_waitcnt lgkmcnt(0)", "s_barrier")
    stamp("bar4")
    I(f"ds_read_b32 v7, v22 offset:{L_TBL}", f"ds_read_b32 v25, v23 offset:{L_TBL}", f"ds_read_b32 v24, v24 offset:{L_FLAG}", "s_branch K_START")
    repoll("K_TAB", TABLD, "v_cmp_eq_u32 vcc, -1, v8")
    repoll("K_F3", F3LD, "v_cmp_eq_u32 vcc, -1, v9")
    def first_tail(b0):
        seg = []
        for b in range(b0, 4):
            if b < 3: seg += weave(chain(NN+16*(b+1), b+1, 0, QQ+16*(b+1)), E0(b), (3,3,3,3,4), {4: ["s_waitcnt vmcnt(4)"]} if b == 2 else None)
            else: seg += weave(chain(T0, 0, 1, QQ), E0(b), (3,3,3,3,4), {0: [xload(0, 0)], 4: [xload(0, 1), "v_cmp_lt_u32 vcc, s19, v3"]})
            seg += A0(b)
        return seg
    I(".p2align 12", "PG2:", "s_branch K_WARM_RET", "s_nop 0", "K_LOOP:")
    def partA(t):
        cur = (1+t) % 3; nxt = (2+t) % 3; prv = t % 3
        seg = []
        for b in range(3):
            tc = T0 + 16*(b % 2); tn = T0 + 16*((b+1) % 2)
            if b == 0: extra = {0: [xload(prv, 2)], 1: ["s_mov_b64 exec, vcc"], 4: [xload(prv, 3)]}
            elif b == 1: extra = {0: [f"ds_read_u16 v0, v2 offset:{4*(t+4)+2}"], 1: ["s_cmp_lt_i32 s19, s37"], 2: ["s_cselect_b32 s6, s26, 0"],
                                  3: ["s_waitcnt lgkmcnt(1)"], 4: [f"ds_read_b64 a[{AEA+2*nxt}:{AEA+2*nxt+1}], v4"]}
            else: extra = {0: [f"ds_read_u16 v4, v2 offset:{4*(t+3)}"], 1: ["s_add_u32 s19, s19, 1"], 2: ["s_cmp_ge_u32 s19, s20"], 3: ["s_waitcnt vmcnt(4) lgkmcnt(1)"],
                           4: ["s_cbranch_scc1 K_EXIT" if t < 2 else "s_cbranch_scc0 K_LOOP"]}
            ms = chain(tn, b+1, cur, QQ+16*(b+1))
            if b < 2: seg += weave(ms, exps(tc), (3,3,3,3,4), extra) + pk3(b, tc)
            else: seg += weave(ms, exps(tc)[:12], (3,3,3,3,0), extra)
        return seg
    def partB(t):
        cur = (1+t) % 3; nxt = (2+t) % 3
        seg = ["v_cmp_lt_u32 vcc, s19, v3"] + (["v_add_u32 v2, 12, v2"] if t == 2 else []) + exps(T0)[12:] + pk3(2, T0)
        seg += weave(chain(T0, 0, nxt, QQ), exps(T1), (3,3,3,3,4), {0: [xload(cur, 0)], 4: [xload(cur, 1)]}) + pk3(3, T1)
        return seg
    I(*align8(partB(2)))
    I("K_A0:")
    I(*align8(partA(0) + partB(0) + partA(1) + partB(1) + partA(2))[:-1])
    I("K_EXIT:", "s_cmp_lg_u32 s21, 0", "s_cbranch_scc1 K_LAST", "s_branch K_MID")
    I(".p2align 12", "PG3:", "s_branch K_WARM_RET", "s_nop 0", "K_MID:")
    stamp("exit1")
    OH = QQ+48
    seg = exps(T0)[12:] + ["s_mov_b64 s[60:61], exec", "s_mov_b64 exec, -1"] + ["s_waitcnt vmcnt(0)"] + DEC1 + RD1 + RD2
    seg += onehot(OH, 0) + ["v_readfirstlane_b32 s20, v3", "s_mov_b32 s6, s26", "s_mov_b64 exec, s[60:61]"] + pk3(2, T0) + ["s_waitcnt lgkmcnt(5)", "s_mov_b64 exec, -1"]
    seg += weave(qchain(QQ, 0, OH), exps(T1), (3,3,3,3,4), {0: [xload(0, 0)], 1: [LSET[0]], 2: [xload(0, 1)], 3: [xload(0, 2)],
                                                             4: [xload(0, 3)] + onehot(OH+2, 1) + ["s_mov_b64 exec, s[60:61]"]})
    seg += pk3(3, T1) + ["s_mov_b64 exec, -1", "s_waitcnt lgkmcnt(0)"]
    seg += spread(qchain(QQ+16, 1, OH+2) + binit(LB), C(["v_mov_b32 v0, v10"] + lbinit(LB) + R(0) + onehot(OH+4, 2) + M(0)),
                  pre={1: [xload(1, 0)], 2: [xload(1, 1)], 3: [xload(1, 2)], 4: [xload(1, 3)], 5: [LSET[1]]}) + U(0)
    seg += spread(qchain(QQ+32, 2, OH+4) + G(0), C(V(0) + R(1) + onehot(OH3, 3) + M(1)), pre={1: [RD3[0]], 2: [RD3[1]], 3: [RD3[2]], 4: [LSET[2]], 5: ["s_mov_b32 s21, 1"]}) + U(1)
    seg += spread(qchain(QQ+48, 3, OH3) + G(1), C(V(1) + ["v_mov_b32 v0, v11"] + R(2) + M(2)),
                  pre={4: ["s_waitcnt vmcnt(4) lgkmcnt(0)"], 5: [xload(2, 0)], 6: [xload(2, 1)], 7: [xload(2, 2)], 8: [xload(2, 3)]}) + U(2)
    seg += spread(chain(NN, 0, 0, QQ) + G(2), C(V(2) + R(3) + M(3))) + U(3)
    seg += spread(chain(NN+16, 1, 0, QQ+16) + G(3), C(V(3) + dec2(LB) + E0(0))) + A0(0) + SCL
    seg += check("K_RARE_A")
    seg += spread(chain(NN+32, 2, 0, QQ+32), C(E0(1)[:4] + DSW[:2] + E0(1)[4:8] + DSW[2:4] + E0(1)[8:]), pre={1: [DSW[4]], 2: [DSW[5]], 3: [DSW[6]], 4: [DSW[7]]}) + A0(1)
    o = ocvt(EE); st = ost(EE)
    seg += spread(chain(NN+48, 3, 0, QQ+48), C(o[:4] + [("@")] * 0 + E0(2)[:2] + o[4:8] + E0(2)[2:4] + o[8:12] + E0(2)[4:6] + o[12:] + E0(2)[6:8]) + [("@", 4)] + C(E0(2)[8:]),
                  pre={4: st + ["v_mov_b32 v5, v7", "s_waitcnt vmcnt(8)"]}) + A0(2) + ["v_mov_b32 v0, v12"]
    seg += first_tail(3)
    I(*align8(seg))
    stamp("loop2")
    if OPT["stamp"]: I("s_mov_b32 s63, s20")
    I("s_branch K_A0")
    I(".p2align 12", "PG4:", "s_branch K_WARM_RET", "s_nop 0", "K_START:")
    I("s_mov_b32 s21, 0", "s_mov_b32 s27, %d" % (L_NODE+4), "s_movk_i32 s53, 0x3f80", "s_movk_i32 s54, 0xff", f"s_movk_i32 s55, {SPL_S}",
      f"s_mov_b32 s56, {hex(BIG)}", f"s_mov_b32 s57, {f32(2.0**-100)}", "s_movk_i32 s58, 0x207", f"v_mov_b32 v6, {NS}", f"v_add_u32 v8, {L_X}, v1")
    I("s_waitcnt lgkmcnt(0)")
    I(*DEC1); I(*RD1); I(*RD2)
    I("v_cmp_ne_u32 vcc, 0, v24", "v_readfirstlane_b32 s20, v3")
    for b in range(4): I(*onehot(EE+2*b, b))
    I("s_waitcnt lgkmcnt(9)")
    I(*[xload(0, k) for k in range(4)])
    I("v_mov_b32 v5, v7", "v_mov_b32 v7, v25", *LSET)
    I("s_waitcnt lgkmcnt(0)", "v_mov_b32 v0, v10", "s_cbranch_vccnz K_SLOW", ".p2align 3")
    stamp("q1")
    q = sum([qchain(QQ+16*b, b, EE+2*b) for b in range(4)], [])
    I(*weave(q, [], [0]*20, {4: [xload(1, 0)], 7: [xload(1, 1)], 10: [xload(1, 2)], 13: [xload(1, 3)], 15: ["s_waitcnt vmcnt(8)", "s_barrier"], 16: [RD3[0]], 17: [RD3[1]], 18: [RD3[2]]}))
    I("v_mov_b32 v0, v11", "s_waitcnt vmcnt(4) lgkmcnt(0)")
    c0 = chain(NN, 0, 0, QQ)
    I(c0[0], c0[1], xload(2, 0), c0[2], xload(2, 1), c0[3], xload(2, 2), c0[4], xload(2, 3))
    I("s_nop 8", "v_mov_b32 v0, v12")
    I(*align8(first_tail(0)))
    stamp("loop1")
    if OPT["stamp"]: I("s_mov_b32 s62, s20")
    I("s_branch K_A0")
    I(".p2align 3", "K_LAST:")
    stamp("exit2")
    L2 = QQ
    seg = exps(T0)[12:] + pk3(2, T0) + exps(T1) + pk3(3, T1) + ["s_mov_b64 exec, -1"] + lbinit(LB)
    seg += R(0)[:2] + weave(binit(LB), R(0)[2:], (4, 10)) + U(0) + V(0)
    for b in range(3): seg += weave(G(b), R(b+1), (3,3,3,7)) + U(b+1) + V(b+1)
    seg += spread(G(3), C(M(0) + M(1) + M(2) + M(3) + dec2(LB)), tail=48) + SCL + check("K_RARE_B") + DSW + ocvt(QQ) + ost(QQ)
    I(*align8(seg))
    stamp("tail")
    I("v_mbcnt_lo_u32_b32 v6, -1, 0", "v_mbcnt_hi_u32_b32 v6, -1, v6", "s_lshl_b32 s3, s18, 6", "v_add_u32 v6, s3, v6")
    I("v_and_b32 v2, 0xfc, v6", "v_and_b32 v3, 3, v6", f"v_mul_u32_u24 v4, {SPL_S//2}, v2", "v_lshl_add_u32 v4, v3, 6, v4", "v_lshlrev_b32 v11, 5, v3", "v_mov_b32 v9, 0")
    I("s_waitcnt lgkmcnt(0)", "s_barrier")
    I(f"ds_read_b32 v9, v9 offset:{L_FLAG}", f"ds_read_b32 v10, v2 offset:{L_SN}")
    for i in range(4): I(f"ds_read_b128 v[{16+4*i}:{19+4*i}], v4 offset:{L_SPL+16*i}", f"ds_read_b128 v[{32+4*i}:{35+4*i}], v4 offset:{L_SPL+SPL_S+16*i}")
    I("s_waitcnt lgkmcnt(4)", "v_cmp_ne_u32 vcc, 0, v9")
    for h in range(2):
        if h: I("s_waitcnt lgkmcnt(0)")
        for i in range(4*h, 4*h+4): I(f"v_pk_add_f32 v[{16+2*i}:{17+2*i}], v[{16+2*i}:{17+2*i}], v[{32+2*i}:{33+2*i}]")
        for i in range(4*h, 4*h+4): I(f"v_cvt_pk_bf16_f32 v{48+i}, v{16+2*i}, v{17+2*i}")
        I(f"buffer_store_dwordx4 v[{48+4*h}:{51+4*h}], v[10:11], s[8:11], 0 idxen offen offset:{16*h}")
    I("s_cbranch_vccnz K_SLOW")
    if OPT["diag"]:
        I("s_mov_b32 s52, 0", "K_SPIN:", "s_memrealtime s[54:55]", "s_waitcnt lgkmcnt(0)", "s_add_u32 s52, s52, 1", "s_cmp_gt_u32 s52, 20000", "s_cbranch_scc1 K_END",
          "s_sub_u32 s54, s54, s100", "s_cmp_lt_u32 s54, 6000", "s_cbranch_scc1 K_SPIN")
    if OPT["stamp"]:
        I("s_waitcnt vmcnt(0)"); stamp("end")
        I("s_lshl_b32 s3, s2, 2", "s_add_u32 s3, s3, s18", "s_lshl_b32 s3, s3, 7", f"s_add_u32 s3, s3, {STAMP_OFF}", "v_mov_b32 v0, 0")
        for i in range(len(stamps)): I(f"v_mov_b32 v1, s{SLOTS[i]}", f"buffer_store_dword v1, v0, s[12:15], s3 offen offset:{4*i}")
        I("s_lshl_b32 s62, s62, 8", "s_or_b32 s62, s62, s63", "v_mov_b32 v1, s62", "buffer_store_dword v1, v0, s[12:15], s3 offen offset:124")
    I("K_END:", "K_END0:", "s_endpgm")
    repoll("K_F3M", F3LD, "v_cmp_eq_u32 vcc, -1, v9")
    for tag in ("K_RARE_A", "K_RARE_B"):
        I(f"{tag}:")
        I("s_or_b64 vcc, vcc, s[38:39]", "s_cmp_eq_u64 vcc, -1", f"s_cbranch_scc1 {tag}2")
        I(f"v_mov_b32 v{OA+1}, 0", f"v_mov_b32 v{OA+2}, 1", f"ds_write_b32 v{OA+1}, v{OA+2} offset:{L_FLAG}")
        I(f"{tag}2:", "s_mov_b64 exec, s[38:39]")
        for i in range(32): I(f"v_mov_b32 v{T0+i}, 0")
        I("s_mov_b64 exec, -1", f"s_branch {tag}_RET")
    K2, A2, R2, O2 = 176, 180, 184, 188
    I("K_MORE:", "s_mov_b32 s40, 0", "s_waitcnt vmcnt(0)", "v_cmp_eq_u32 vcc, -1, v9", "s_cbranch_vccnz K_F3M", "K_F3M_RET:")
    I("K_MORE_L:")
    compact(36)
    I("s_add_u32 s3, s23, s40", "s_waitcnt lgkmcnt(0)",
      f"v_add_u32_dpp v{O2}, v36, v31 quad_perm:[0,0,0,0] row_mask:0xf bank_mask:0xf",
      f"buffer_load_dwordx4 v[{K2}:{K2+3}], v{O2}, s[12:15], s50 offen sc1", f"v_bfe_i32 v{O2}, v{O2}, 30, 1")
    octets(36, [0], 27, O2+2)
    I(*eadma(O2+2, "s3", 0)); I(*eadma(O2+3, "s3", 1024)); I("s_waitcnt vmcnt(0)")
    phaseB(K2, A2, R2, 40, O2)
    I("s_waitcnt lgkmcnt(0)")
    I(*phaseC(K2, A2, R2))
    I("s_waitcnt lgkmcnt(0)", "v_cmp_lt_i32 vcc, 0, v33", "s_cbranch_vccz K_MORE_RET", "s_add_u32 s40, s40, 8192", f"s_cmp_lt_u32 s40, 16384", "s_cbranch_scc1 K_MORE_L")
    I(f"ds_write_b32 v24, v29 offset:{L_FLAG}", "s_waitcnt lgkmcnt(0)", "s_branch K_MORE_RET")
    I("K_SLOW:")
    I("s_mov_b64 exec, -1", "s_waitcnt vmcnt(0) lgkmcnt(0)", "s_barrier")
    I("v_mbcnt_lo_u32_b32 v6, -1, 0", "v_mbcnt_hi_u32_b32 v6, -1, v6", "s_lshl_b32 s3, s18, 6", "v_add_u32 v7, s3, v6")
    I(*TABA); I(f"v_lshlrev_b32 v3, {lt}, v7", TABLD)
    I("v_lshrrev_b32 v1, 5, v6", "v_lshlrev_b32 v1, 6, v1", "v_and_b32 v6, 31, v6", "v_lshlrev_b32 v2, 4, v7")
    for i in range(4): I(f"v_mov_b32 v{16+i}, 0")
    for i in range(13): I(f"ds_write_b128 v2, v[16:19] offset:{4096*i}")
    for b in range(4): I(*onehot(EE+2*b, b))
    I("s_mov_b32 s6, s26", "s_mov_b32 s19, 0", "s_waitcnt vmcnt(0) lgkmcnt(0)", "s_barrier")
    I("K_S_SEG:")
    I("v_readlane_b32 s36, v8, s19", "s_lshl_b32 s3, s18, 6", "s_add_u32 s3, s3, s19", f"s_mul_i32 s3, s3, {CHS}", "s_nop 0",
      "s_lshr_b32 s20, s36, 16", "s_and_b32 s36, s36, 0xffff", "s_add_u32 s36, s36, s3")
    I("K_S_TILE:")
    I("s_cmp_le_i32 s20, 0", "s_cbranch_scc1 K_S_NEXT")
    I("v_add_lshl_u32 v2, s36, v6, 2", "v_lshlrev_b32 v3, 1, v2", "v_cmp_gt_i32 s[38:39], s20, v6")
    I("buffer_load_dword v9, v2, s[12:15], s50 offen sc1", f"buffer_load_dwordx2 a[{AEA}:{AEA+1}], v3, s[12:15], s51 offen sc1", "s_waitcnt vmcnt(0)")
    I("v_lshrrev_b32 v0, 16, v9"); I(*[xload(0, k) for k in range(4)])
    I("v_and_b32 v9, 0xff, v9", "v_lshl_add_u32 v0, v9, 8, s16"); I(*[xload(2, k) for k in range(4)])
    I("v_mul_u32_u24 v9, 260, v9", "v_lshl_add_u32 v9, v1, 1, v9", "s_waitcnt vmcnt(0)")
    for b in range(4): I(*qchain(NN+16*b, b, EE+2*b)); I(*chain(NN+16*b, b, 0, NN+16*b))
    I(*binit(EE)); I("s_nop 15")
    for b in range(4): I(*E0(b))
    for b in range(4): I(*A0(b))
    for b in range(4): I(*R(b))
    for b in range(4): I(*(U(b) + V(b)))
    I("s_nop 1")
    for b in range(4): I(*G(b))
    I("s_nop 15"); I(*SCL)
    I("s_mov_b64 exec, s[38:39]")
    for i in range(32): I(f"ds_add_f32 v9, v{T0+i} offset:{4*i}")
    I("s_mov_b64 exec, -1", "s_waitcnt lgkmcnt(0)", "s_sub_u32 s20, s20, 32", "s_add_u32 s36, s36, 32", "s_branch K_S_TILE")
    I("K_S_NEXT:", "s_add_u32 s19, s19, 1", "s_cmp_lt_u32 s19, 64", "s_cbranch_scc1 K_S_SEG")
    I("s_barrier", "v_and_b32 v3, 7, v7", "v_lshlrev_b32 v1, 4, v3", "v_lshrrev_b32 v7, 3, v7", "s_mov_b32 s19, 0")
    I("K_S_OUT:")
    I("v_mul_u32_u24 v2, 260, v7", "v_lshl_add_u32 v2, v3, 5, v2", "v_lshl_add_u32 v0, v7, 8, s16")
    for i in range(8): I(f"ds_read_b32 v{16+i}, v2 offset:{4*i}")
    I("s_waitcnt lgkmcnt(0)")
    for i in range(4): I(f"v_cvt_pk_bf16_f32 v{24+i}, v{16+2*i}, v{17+2*i}")
    I("buffer_store_dwordx4 v[24:27], v[0:1], s[8:11], 0 idxen offen", "v_add_u32 v7, 32, v7", "s_waitcnt vmcnt(0)")
    I("s_add_u32 s19, s19, 1", "s_cmp_lt_u32 s19, 7", "s_cbranch_scc1 K_S_OUT", "s_endpgm")

def desc(name, vgpr, accum, sgpr):
    I(".p2align 6", f".amdhsa_kernel {name}")
    for l in (f"next_free_vgpr {vgpr}", f"next_free_sgpr {sgpr}", f"accum_offset {accum}", "group_segment_fixed_size 0", "kernarg_size 88",
              "user_sgpr_count 2", "user_sgpr_kernarg_segment_ptr 1", "system_sgpr_workgroup_id_x 1", "float_denorm_mode_32 3"):
        out.append("  .amdhsa_" + l)
    I(".end_amdhsa_kernel")

hdr = [l.rstrip("\n") for l in open(f"cdna_kernels/{NAME}.s.ref") if l.startswith(";") and "@launch" not in l][:12]
hdr += [f"; @launch grid=(256,1,1) block=(256,1,1) lds={L_SIZE}"]
I('.amdgcn_target "amdgcn-amd-amdhsa--gfx950"', ".text")
kernel()
I('.section .rodata,"a"')
desc(NAME + "_kernel", 512, 256, 102)
if OPT["stamp"]: hdr.append("; stamps: " + " ".join(stamps))
open(sys.argv[1], "w").write("\n".join(hdr + out) + "\n")
```

```python
import sys, struct, math
NAME = "standalone__edge_featured_mpnn_mpnn__graph"
OPT = dict(stamp=0, diag=0, tp=32, ntr=102, xpos=0, sl=3)
for a in sys.argv[2:]:
    k, v = a.split("="); OPT[k] = int(v) if v.lstrip("-").isdigit() else v

N_NODES = 50000; E = 800000
CH = 3125; CHS = 3168
TP = OPT['tp']; FL_OFF = 0x40000
TAB_OFF = 0; WP_OFF = 0x48000; KEY_OFF = 0x58000; EA_OFF = 0x370000; STAMP_OFF = 0x1000000
WS_SIZE = 0x10000000
SPIN = 400000
def f32(x): return "0x%08x" % struct.unpack("<I", struct.pack("<f", x))[0]
NLOG2E = f32(-math.log2(math.e)); NLN2 = f32(-math.log(2.0))

out = []
def I(*ls):
    for l in ls:
        for x in l.split("\n"):
            x = x.strip()
            if x: out.append(x if x.endswith(":") or x.startswith(".") else "    " + x)
def srd(d, lo, hi, size, stride=0):
    I(f"s_mov_b32 s{d}, s{lo}")
    if stride: I(f"s_or_b32 s{d+1}, s{hi}, {hex(stride << 16)}")
    else: I(f"s_mov_b32 s{d+1}, s{hi}")
    I(f"s_mov_b32 s{d+2}, {size}", f"s_mov_b32 s{d+3}, 0x20000")
def scan64(v, fill=None):
    fill = list(fill or [])
    def gap():
        n = 0
        while fill and n < 2: I(fill.pop(0)); n += 1
        if n < 2: I(f"s_nop {1-n}")
    for op in ("row_shr:1", "row_shr:2", "row_shr:4", "row_shr:8"):
        gap(); I(f"v_add_u32_dpp v{v}, v{v}, v{v} {op} row_mask:0xf bank_mask:0xf bound_ctrl:0")
    gap(); I(f"v_add_u32_dpp v{v}, v{v}, v{v} row_bcast:15 row_mask:0xa bank_mask:0xf")
    gap(); I(f"v_add_u32_dpp v{v}, v{v}, v{v} row_bcast:31 row_mask:0xc bank_mask:0xf")
    I(*fill)
SLOTS = list(range(86, 98)) + list(range(64, 84))
stamps = []
def stamp(name, twice=False, lvl=1):
    if OPT["diag"] == name: I("s_memrealtime s[100:101]", "s_waitcnt lgkmcnt(0)", "s_nop 0")
    if not OPT["stamp"] or lvl > OPT["sl"]: return
    if twice:
        stamps.append(name + "1")
        I(f"s_mov_b32 s{SLOTS[len(stamps)-1]}, s{SLOTS[len(stamps)]}", "s_nop 0")
        name += "2"
    stamps.append(name)
    I(f"{'s_memtime' if OPT['stamp']==1 else 's_memrealtime'} s[98:99]", "s_waitcnt lgkmcnt(0)", f"s_mov_b32 s{SLOTS[len(stamps)-1]}, s98")

CAP = 48; NS = 4 + 4*CAP
NIT = 7
STG_W = NIT*2048
L1_KEY = 0; L1_EA = CHS*4; L1_CNT = 38912; L1_BASE = L1_CNT + 1024; L_W2 = 40960
L_H1 = 4*STG_W; L_H2 = L_H1 + 256; L_SN = L_H2 + 256; L_FLAG = L_SN + 256; L_TBL = L_H1 + 1024
L_TB2 = L_TBL + 1024; L_SPL = L_TB2 + 1024; SPL_S = 272
L_W = L_SPL; WQ = 9*1024
L_S = L_W + 32768
L_X = L_W + 4*WQ
L_NODE = L_X + 200*128
L_SIZE = L_NODE + 196*NS
assert L_SIZE <= 163840 and 122*SPL_S <= 4*WQ
T0, T1, EE, NN, DD, QQ = 16, 32, 48, 64, 128, 192
AX, AW1A, AW1B, AW1C, AW2, AEA, AB1 = 0, 48, 112, 176, 184, 248, 254
BIG = 0x1000000

import re
V4 = ("v_exp_f32", "v_rcp_f32", "v_add_f32", "v_mul_f32", "v_add_u32", "v_mov_b32", "v_and_b32", "v_lshrrev_b32", "v_lshlrev_b32", "v_cvt_f32_ubyte2",
      "v_mul_u32_u24", "v_cndmask_b32", "v_readfirstlane_b32", "v_or_b32", "v_sub_u32", "v_xor_b32")
def has_lit(s):
    for t in re.split(r"[,\s]+", s.strip())[1:]:
        if re.fullmatch(r"0x[0-9a-fA-F]+|-?\d+", t):
            v = int(t, 0)
            if not -16 <= v <= 64: return True
    return False
def isz(s):
    s = s.strip(); op = s.split()[0]
    if s.endswith(":") or s.startswith("."): return 0
    if op.startswith(("s_waitcnt", "s_nop", "s_cbranch", "s_branch", "s_movk", "s_barrier")): return 4
    if op.startswith("s_memtime") or op.startswith("s_memrealtime"): return 8
    if op.startswith("s_"): return 8 if has_lit(s) else 4
    if op.startswith("v_cmp") and not op.endswith("_e64"): return (8 if has_lit(s) else 4) if s.split()[1] == "vcc," else 8
    if op == "v_cndmask_b32" and not s.endswith("vcc"): return 8
    if op in V4: return 8 if has_lit(s) else 4
    return 8
def align8(seg):
    off = 0; last4 = None
    seg = list(seg); i = 0
    while i <= len(seg):
        s = seg[i] if i < len(seg) else "v_pk_x"
        z = isz(s)
        if z == 8 and off % 8:
            if last4 is not None:
                op = seg[last4].split()[0]
                seg[last4] = seg[last4].replace(op, op + "_e64", 1); off += 4
            elif i == len(seg) or sum(1 for x in seg[i:i+5] if isz(x) == 8) == 5:
                if i < len(seg): print("pad before", s, file=sys.stderr)
                seg.insert(i, "s_nop 0"); off += 4; i += 1
        if z == 8: last4 = None
        if z == 4 and s.split()[0] in V4 and s.split()[0] != "v_readfirstlane_b32" and off % 8 == 0: last4 = i
        off += z; i += 1
    return seg
def xload(buf, kk): return f"buffer_load_dwordx4 a[{AX+16*buf+4*kk}:{AX+16*buf+4*kk+3}], v[0:1], s[4:7], 0 idxen offen offset:{16*kk}"
def chain(dst, blk, buf, c):
    L = [f"v_mfma_f32_32x32x8_bf16 v[{dst}:{dst+15}], a[{AW1C+2*blk}:{AW1C+2*blk+1}], a[{AEA+2*buf}:{AEA+2*buf+1}], v[{c}:{c+15}]"]
    for kk in range(4):
        w = AW1A + 16*blk + 4*kk; x = AX + 16*buf + 4*kk
        L.append(f"v_mfma_f32_32x32x16_bf16 v[{dst}:{dst+15}], a[{w}:{w+3}], a[{x}:{x+3}], v[{dst}:{dst+15}]")
    return L
def qchain(dst, blk, oh):
    L = [f"v_mfma_f32_32x32x8_bf16 v[{dst}:{dst+15}], a[{AB1}:{AB1+1}], v[{oh}:{oh+1}], 0"]
    for kk in range(4):
        w = AW1B + 16*blk + 4*kk; x = AX + 32 + 4*kk
        L.append(f"v_mfma_f32_32x32x16_bf16 v[{dst}:{dst+15}], a[{w}:{w+3}], a[{x}:{x+3}], v[{dst}:{dst+15}]")
    return L
def onehot(r, blk):
    c = "1.0" if blk & 1 else "s53"
    return [f"v_mov_b32 v{r+(blk>>1)}, {c}", f"v_mov_b32 v{r+1-(blk>>1)}, 0"]
def gemm2(blk, hb):
    L = []
    for p in range(2):
        for ob in range(2):
            w = AW2 + 4*((blk*2+p)*2+ob); o = T0 + 16*ob
            L.append(f"v_mfma_f32_32x32x16_bf16 v[{o}:{o+15}], a[{w}:{w+3}], v[{hb+4*p}:{hb+4*p+3}], v[{o}:{o+15}]")
    return L
def weave(ms, fill, cnts, extra=None):
    L = []; fill = list(fill)
    for k, m in enumerate(ms):
        L.append(m)
        if extra: L += extra.get(k, [])
        L += fill[:cnts[k]]; fill = fill[cnts[k]:]
    assert not fill
    return L
def repoll(tag, load, cmp):
    I(f"{tag}:", f"s_mov_b32 s3, {SPIN}", f"{tag}_L:", "s_sleep 4", load, "s_sub_u32 s3, s3, 1", "s_cbranch_scc1 K_END",
      "s_waitcnt vmcnt(0)", cmp, f"s_cbranch_vccnz {tag}_L", f"s_branch {tag}_RET")

def spread(ms, fill, tail=32, pre=None):
    pre = pre or {}
    L = []; fill = list(fill); n = len(ms)
    for k, m in enumerate(ms):
        while any(f == ("@", k) for f in fill):
            f = fill.pop(0)
            if f[0] != "@": L.append(f[0])
        L.append(m); L += pre.get(k, [])
        if k == n-1: break
        rem = sum(c for f, c in fill if f != "@")
        budget = max(24 if "x16" in m else 28, (rem - tail)/(n-1-k))
        budget -= sum(max(cost(x)-4, 0) if j == 0 else cost(x) for j, x in enumerate(pre.get(k, [])))
        used = 0
        while fill and (fill[0][0] == "@" or used + fill[0][1] <= budget + 3) and sum(c for f, c in fill if f != "@") > tail:
            f = fill.pop(0)
            if f[0] != "@": L.append(f[0]); used += f[1]
    L += [f for f, c in fill if f != "@"]
    return L
def cost(x):
    op = x.split()[0]
    if op.startswith(("v_exp", "v_rcp")): return 8
    if op.startswith("buffer_"): return 15
    if op.startswith("ds_write_b128"): return 14
    if op.startswith("ds_"): return 10
    return 4
def C(l): return [(x, cost(x)) for x in l]
def page(n):
    I(f"s_branch PG{n}", ".p2align 12", f"PG{n}:", "s_cbranch_execz K_WARM_RET", "s_nop 0")
def pk3(b, tc):
    n = NN+16*b; d = DD+16*b
    return [f"v_pk_fma_f32 v[{n+2*i}:{n+2*i+1}], v[{n+2*i}:{n+2*i+1}], v[{EE+2*i}:{EE+2*i+1}], v[{n+2*i}:{n+2*i+1}]" for i in range(8)] + \
           [f"v_pk_fma_f32 v[{n+2*i}:{n+2*i+1}], v[{tc+2*i}:{tc+2*i+1}], v[{d+2*i}:{d+2*i+1}], v[{n+2*i}:{n+2*i+1}]" for i in range(8)] + \
           [f"v_pk_fma_f32 v[{d+2*i}:{d+2*i+1}], v[{d+2*i}:{d+2*i+1}], v[{EE+2*i}:{EE+2*i+1}], v[{d+2*i}:{d+2*i+1}]" for i in range(8)]
def exps(tc): return [f"v_exp_f32 v{EE+i}, v{tc+i}" for i in range(16)]
def E0(b): return [f"v_exp_f32 v{DD+16*b+i}, v{NN+16*b+i}" for i in range(16)]
def A0(b): return [f"v_pk_add_f32 v[{DD+16*b+2*i}:{DD+16*b+2*i+1}], v[{DD+16*b+2*i}:{DD+16*b+2*i+1}], 1.0 op_sel_hi:[1,0]" for i in range(8)]
LB, RM, OA, OH3 = EE, EE+4, EE+5, EE+8
def R(b): return [f"v_rcp_f32 v{DD+16*b+i}, v{DD+16*b+i}" for i in range(16)]
def M(b): return [f"v_min3_f32 v{RM}, v{DD+16*b+2*i}, v{DD+16*b+2*i+1}, " + ("1.0" if b == 0 and i == 0 else f"v{RM}") for i in range(8)]
def U(b): return [f"v_pk_mul_f32 v[{NN+16*b+2*i}:{NN+16*b+2*i+1}], v[{NN+16*b+2*i}:{NN+16*b+2*i+1}], v[{DD+16*b+2*i}:{DD+16*b+2*i+1}]" for i in range(8)]
def V(b): return [f"v_cvt_pk_bf16_f32 v{NN+16*b+i}, v{NN+16*b+2*i}, v{NN+16*b+2*i+1}" for i in range(8)]
def G(b): return gemm2(b, NN+16*b)
def lbinit(r): return [f"v_cvt_f32_ubyte2 v{r+2}, v5", f"v_mov_b32 v{r+1}, 0", f"v_mov_b32 v{r+3}, 0", f"v_lshrrev_b32 v{r}, 16, v{r+2}"]
def binit(r): return [f"v_mfma_f32_32x32x8_bf16 v[{T0+16*ob}:{T0+16*ob+15}], v[14:15], v[{r+2*ob}:{r+2*ob+1}], 0" for ob in range(2)]
def dec2(lb):
    return [f"v_and_b32 v{OA}, s54, v5", f"v_add_u32 v0, s16, v{OA}", f"v_lshrrev_b32 v{OA}, 24, v5", f"v_cmp_eq_u32 vcc, s54, v{OA}",
            f"v_mul_u32_u24 v{OA}, s55, v{OA}", f"v_lshl_add_u32 v{OA}, v1, 1, v{OA}", f"v_mov_b32 v{OA+1}, s56",
            f"v_cndmask_b32 v{OA}, v{OA}, v{OA+1}, vcc", f"v_cndmask_b32 v0, v{OA+1}, v0, vcc",
            f"v_cmp_eq_u32 s[38:39], 0, v{lb+2}"]
SCL = [f"v_pk_mul_f32 v[{T0+2*i}:{T0+2*i+1}], v[{T0+2*i}:{T0+2*i+1}], s[24:25]" for i in range(16)]
def check(tag):
    return [f"v_cmp_class_f32 s[40:41], v{T0}, s58", f"v_cmp_lt_f32 vcc, s57, v{RM}", "s_nop 0", "s_andn2_b64 vcc, vcc, s[40:41]", "s_andn2_b64 s[40:41], vcc, s[38:39]",
            "s_cmp_eq_u64 s[40:41], -1", f"s_cbranch_scc0 {tag}", f"{tag}_RET:"]
DSW = [f"ds_write_b128 v{OA}, v[{T0+4*i}:{T0+4*i+3}] offset:{L_SPL+16*i}" for i in range(8)]
def ocvt(r): return [f"v_cvt_pk_bf16_f32 v{r+i}, v{T0+2*i}, v{T0+2*i+1}" for i in range(16)]
def ost(r): return [f"buffer_store_dwordx4 v[{r+4*i}:{r+4*i+3}], v[0:1], s[8:11], 0 idxen offen offset:{16*i}" for i in range(4)]
DEC1 = ["v_and_b32 v9, s54, v7", "v_bfe_u32 v10, v7, 8, 8", "v_mad_u32_u24 v2, v9, v6, s27", "v_and_b32 v11, 7, v9", "v_lshl_add_u32 v2, v10, 2, v2", "v_lshl_add_u32 v9, v9, 7, v8", "v_lshlrev_b32 v11, 4, v11",
        "v_bfe_u32 v3, v7, 16, 8", "v_xor_b32 v9, v9, v11", "v_xor_b32 v11, 16, v9", "v_xor_b32 v12, 32, v9", "v_xor_b32 v13, 48, v9"]
RD1 = ["ds_read_u16 v0, v2 offset:2"] + [f"ds_read_b128 a[{AX+32+4*k}:{AX+35+4*k}], v{(9,11,12,13)[k]}" for k in range(4)]
RD2 = ["ds_read_u16 v10, v2 offset:6", "ds_read_u16 v4, v2", "ds_read_u16 v13, v2 offset:4", "ds_read_u16 v11, v2 offset:10", "ds_read_u16 v12, v2 offset:14"]
RD3 = [f"ds_read_b64 a[{AEA}:{AEA+1}], v4", f"ds_read_b64 a[{AEA+2}:{AEA+3}], v13", "ds_read_u16 v4, v2 offset:8"]
LSET = ["s_max_u32 s20, s20, 2", "s_sub_u32 s37, s20, 3", "s_mov_b32 s19, 1"]

FI, FR = 192, 208
def kernel():
    K = NAME + "_kernel"
    lt = TP.bit_length() - 1
    assert L_W % 256 == 0 and L_X % 128 == 0
    I(".p2align 12", f".globl {K}", ".p2align 8", f".type {K},@function", f"{K}:")
    I("s_cmp_ge_u32 s2, 256", "s_cbranch_scc1 K_END0")
    stamp("start")
    I("s_load_dwordx16 s[64:79], s[0:1], 0", "s_load_dwordx4 s[80:83], s[0:1], 64", "s_load_dwordx2 s[12:13], s[0:1], 80")
    DST, SRC, EAR, AD, RK, P8, CP, WR = 64, 80, 96, 128, 144, 160, 176, 208
    I("v_lshrrev_b32 v2, 6, v0", "v_and_b32 v6, 63, v0", "v_lshlrev_b32 v17, 2, v0", "v_readfirstlane_b32 s18, v2")
    I("v_mov_b32 v24, 0", f"ds_write_b32 v17, v24 offset:{L1_CNT}", "v_lshlrev_b32 v16, 4, v0", "v_lshlrev_b32 v4, 4, v6")
    I(f"s_mul_i32 s60, s2, {CH*4}", "s_mov_b32 s15, 0x20000", f"s_mov_b32 s14, {WS_SIZE}", f"s_mov_b32 s30, {E*4}", "s_mov_b32 s34, s30")
    for r in (31, 35, 43, 47, 51, 55, 59, 7, 11): I(f"s_mov_b32 s{r}, s15")
    I(f"s_mov_b32 s42, {132*256}", f"s_movk_i32 s46, {128*128}", f"s_mov_b32 s54, {E*8}", "s_movk_i32 s58, 256", f"s_mov_b32 s26, {N_NODES}", "s_mov_b32 s6, s26", "s_mov_b32 s10, s26")
    I("s_add_u32 s19, s60, 4096", "s_add_u32 s20, s60, 8192", f"s_add_u32 s21, s60, {(3072-192)*4}")
    I("v_mov_b32 v20, -1", "v_mov_b32 v21, -1", "v_mov_b32 v22, -1", "v_mov_b32 v23, -1")
    I("s_and_b32 s84, s2, 7", "s_lshl_b32 s84, s84, 5", "s_lshr_b32 s3, s2, 3", "s_add_u32 s84, s84, s3")
    I("s_mul_i32 s16, s84, 12800051", "s_add_u32 s16, s16, 0xffff", "s_add_u32 s17, s16, 12800051", "s_lshr_b32 s16, s16, 16", "s_lshr_b32 s17, s17, 16",
      "s_min_u32 s17, s17, s26", "s_sub_u32 s17, s17, s16", "s_mov_b32 s85, 85899")
    I("v_mov_b32 v29, 1", "v_lshlrev_b32 v18, 5, v0", "v_lshlrev_b32 v19, 3, v0", "v_lshlrev_b32 v43, 2, v6")
    I("v_subrev_u32 v45, 192, v0", f"v_cmp_gt_u32 vcc, {CH-3072}, v45", f"v_mov_b32 v45, {hex(BIG)}", "s_mov_b32 s39, 0x05040100", "v_cndmask_b32 v45, v45, v24, vcc")
    I(f"v_lshrrev_b32 v42, {lt-4}, v6", f"v_lshlrev_b32 v42, {lt+8}, v42", f"v_and_b32 v37, {TP-1}, v4", "v_add_u32 v42, v42, v37")
    I("v_lshrrev_b32 v1, 5, v6", "v_bfe_u32 v52, v6, 2, 2", "v_and_b32 v53, 3, v6", "v_bfe_u32 v54, v6, 4, 1",
      "v_lshlrev_b32 v55, 3, v53", "v_lshl_add_u32 v55, v54, 5, v55",
      "v_lshl_add_u32 v56, v52, 8, v55", "v_lshl_add_u32 v60, v1, 10, v56", f"v_add_u32 v60, {L_S}, v60",
      "v_lshl_add_u32 v56, v1, 13, v56", "v_lshl_add_u32 v56, v52, 6, v56", f"v_add_u32 v56, {L_W}, v56",
      "v_xor_b32 v57, 64, v56", "v_xor_b32 v58, 0x80, v56", "v_xor_b32 v59, 0xc0, v56",
      "v_lshl_add_u32 v61, v52, 6, v55", "v_lshl_add_u32 v61, v1, 8, v61", f"v_add_u32 v61, {L_S + 2048}, v61",
      "v_and_b32 v55, 1, v53", "v_lshlrev_b32 v55, 6, v55", "v_lshl_add_u32 v55, v54, 4, v55", "v_lshrrev_b32 v53, 1, v53", "v_lshl_add_u32 v55, v53, 3, v55",
      "v_lshl_add_u32 v62, v52, 7, v55", "v_lshl_add_u32 v62, v1, 9, v62",
      "v_and_b32 v52, 1, v52", "v_lshl_add_u32 v63, v52, 5, v55", "v_lshl_add_u32 v63, v1, 8, v63", f"v_add_u32 v63, {L_S + 2560}, v63",
      "v_lshlrev_b32 v1, 6, v1")
    I("s_cmp_lt_u32 s2, 64", "s_cselect_b32 s61, s18, 0", "s_cmp_lg_u32 s61, 1")
    I("s_waitcnt lgkmcnt(0)")
    I("s_mov_b64 s[28:29], s[70:71]")
    so = ("s60", "s19", "s20")
    for i in range(3): I(f"buffer_load_dwordx4 v[{DST+4*i}:{DST+4*i+3}], v16, s[28:31], {so[i]} offen")
    I(f"buffer_load_dword v{DST+12}, v17, s[28:31], s21 offen", "s_mov_b64 s[32:33], s[68:69]", "s_cbranch_scc1 R_NOT1")
    I("s_lshl_b32 s3, s2, 12", "s_lshl_b32 s36, s2, 6", f"s_add_u32 s36, s36, {FL_OFF}")
    for i in range(4): I(f"buffer_store_dwordx4 v[20:23], v4, s[12:15], s3 offen offset:{1024*i} sc1")
    I("s_mov_b64 exec, 15", "buffer_store_dwordx4 v[20:23], v4, s[12:15], s36 offen sc1", "s_mov_b64 exec, -1", "R_NOT1:")
    stamp("issued", lvl=2)
    for i in range(3): I(f"buffer_load_dwordx4 v[{SRC+4*i}:{SRC+4*i+3}], v16, s[32:35], {so[i]} offen")
    I(f"buffer_load_dword v{SRC+12}, v17, s[32:35], s21 offen", "s_barrier", "s_cmp_eq_u32 s18, 2", "s_cbranch_scc1 PG1", "K_WARM_RET:")
    I("s_mov_b64 s[40:41], s[72:73]", "s_mov_b64 s[44:45], s[76:77]", "s_mov_b64 s[52:53], s[66:67]", "s_mov_b64 s[56:57], s[82:83]",
      "s_mov_b32 s4, s64", "s_or_b32 s5, s65, 0x800000", "s_mov_b32 s8, s80", "s_or_b32 s9, s81, 0x800000")
    I("s_cmp_eq_u32 s18, 0", "s_cselect_b64 s[48:49], s[74:75], s[78:79]", "s_cselect_b32 s50, 2, 1", "s_lshl_b32 s50, s50, 7")
    wl = [[f"s_movk_i32 s3, {4096*i}", f"buffer_load_dwordx4 v[{WR+4*i}:{WR+4*i+3}], v16, s[40:43], s3 offen"] for i in range(8)]
    wl += [["s_mov_b32 s3, 0x8000", f"buffer_load_dword v{WR+32}, v17, s[40:43], s3 offen"], [f"buffer_load_dword v{WR+33}, v43, s[48:51], 0 offen"]]
    I("v_mov_b32 v25, 0", "v_mov_b32 v26, 0", "v_mov_b32 v27, 0", f"v_add_u32 v5, {L_NODE}, v16")
    for i in range(10): I(f"ds_write_b128 v5, v[24:27] offset:{4096*i}", *(wl[i-5] if i >= 5 else []))
    I("v_mov_b32 v28, 0x7e0000ff", "v_mov_b32 v3, 0xffff",
      "v_cmp_eq_u32 vcc, 2, v2", f"ds_write_b32 v17, v28 offset:{L_TBL}", f"v_mov_b32 v28, {hex(BIG)}", "v_cndmask_b32 v3, v24, v3, vcc",
      f"ds_write_b32 v17, v3 offset:{L_H1}", f"ds_write_b32 v17, v28 offset:{L_TB2}")
    I("v_and_b32 v3, 0x7c, v43", f"ds_write_b32 v3, v20 offset:{L1_KEY + CH*4}")
    I(f"s_mul_i32 s3, s2, {CHS*4}", f"s_add_u32 s3, s3, {KEY_OFF}", "s_add_u32 s28, s12, s3", "s_addc_u32 s29, s13, 0", f"s_movk_i32 s30, {(CH+19)*4}")
    I(f"s_mul_i32 s3, s2, {CHS*8}", f"s_add_u32 s3, s3, {EA_OFF}", "s_add_u32 s32, s12, s3", "s_addc_u32 s33, s13, 0", f"s_movk_i32 s34, {(CH+1)*8}")
    for r in ("s60", "s19", "s20", "s21"): I(f"s_lshl_b32 {r}, {r}, 1")
    I("s_lshl_b32 s38, s18, 12", f"s_add_u32 m0, s38, {L_W2}")
    I(f"s_mov_b32 s24, {NLOG2E}", f"s_mov_b32 s25, {NLOG2E}", "s_mov_b32 s27, 0xffff0000", "v_and_b32 v5, 0x300, v16", "v_lshrrev_b32 v5, 2, v5", "v_xor_b32 v5, v5, v16", f"v_add_u32 v5, {L_W}, v5")
    I(f"v_lshl_add_u32 v7, v2, 8, v17", f"v_add_u32 v7, {L_S + 2048}, v7", f"v_add_u32 v9, {L_S}, v17")
    I("s_cmp_lg_u32 s61, 1", "s_waitcnt vmcnt(14)", "s_cbranch_scc0 R_W", "s_waitcnt vmcnt(9)", "R_W:")
    stamp("dst", lvl=2)
    el = []
    for i in range(3): el += [f"buffer_load_dwordx4 v[{EAR+8*i}:{EAR+8*i+3}], v18, s[52:55], {so[i]} offen", f"buffer_load_dwordx4 v[{EAR+8*i+4}:{EAR+8*i+7}], v18, s[52:55], {so[i]} offen offset:16"]
    el.append(f"buffer_load_dwordx2 v[{EAR+24}:{EAR+25}], v19, s[52:55], s21 offen")
    q = wl[5:] + [[x] for x in el]
    for i in range(13):
        I(f"v_mul_u32_u24 v{AD+i}, s85, v{DST+i}", f"v_lshlrev_b32_sdwa v{AD+i}, 2, v{AD+i} dst_sel:DWORD dst_unused:UNUSED_PAD src0_sel:DWORD src1_sel:BYTE_3")
        if i == 12: I(f"v_or_b32 v{AD+i}, v45, v{AD+i}")
        I(f"ds_add_rtn_u32 v{RK+i}, v{AD+i}, v29 offset:{L1_CNT}")
        if i >= 8: I(*q.pop(0))
    I("s_waitcnt lgkmcnt(0)", "s_barrier")
    stamp("barA", lvl=3)
    perm = [f"v_perm_b32 v{DST+i}, v{SRC+i}, v{DST+i}, s39" for i in range(13)]
    I("s_cmp_eq_u32 s18, 0", "s_cbranch_scc1 K_SCAN")
    I(*el)
    I("s_and_b32 s3, s2, 3", "s_lshl_b32 s3, s3, 6", "s_cmp_eq_u32 s61, 1", "s_cselect_b32 s3, s3, 0x1000")
    I("s_waitcnt vmcnt(17)", "s_mov_b64 exec, 1", "buffer_atomic_add v29, v24, s[56:59], s3 offen", "s_mov_b64 exec, -1")
    I(*perm); I("s_barrier", "s_branch K_NOSCAN")
    I("K_SCAN:", f"ds_read_b128 v[32:35], v4 offset:{L1_CNT}", *el[:3]); I("s_waitcnt lgkmcnt(0)")
    I("v_add_u32 v38, v32, v33", "v_add_u32 v39, v38, v34", "v_add_u32 v41, v39, v35", "v_mov_b32 v36, v41")
    scan64(36)
    I("v_sub_u32 v36, v36, v41", "v_add_u32 v37, v36, v32", "v_add_u32 v38, v36, v38", "v_add_u32 v39, v36, v39")
    I(f"ds_write_b128 v4, v[36:39] offset:{L1_BASE}")
    for i in range(4): I(f"v_lshl_or_b32 v{32+i}, v{32+i}, 16, v{36+i}")
    I("s_waitcnt lgkmcnt(0)", "s_barrier", *el[3:]); I("s_movk_i32 s3, 0x1000", "s_waitcnt vmcnt(17)", "buffer_load_dword v20, v43, s[56:59], s3 offen", *perm)
    I("K_NOSCAN:")
    stamp("barB", lvl=3)
    for i in range(13): I(f"ds_read_b32 v{AD+i}, v{AD+i} offset:{L1_BASE}")
    for i in range(13):
        if i in (0, 6): I(f"s_waitcnt lgkmcnt({7 if i == 0 else 6})")
        I(f"v_add_lshl_u32 v{AD+i}, v{AD+i}, v{RK+i}, 2")
        if i == 12: I(f"v_or_b32 v{AD+i}, v45, v{AD+i}")
        I(f"ds_write_b32 v{AD+i}, v{DST+i} offset:{L1_KEY}")
    for i in range(13): I(f"v_lshlrev_b32 v{P8+i}, 1, v{AD+i}")
    I("s_waitcnt lgkmcnt(0)", "s_barrier")
    stamp("barC", lvl=2)
    for i in range(4): I(f"ds_read_b128 v[{CP+4*i}:{CP+4*i+3}], v16 offset:{L1_KEY+4096*i}")
    for i in range(4): I(f"s_movk_i32 s3, {4096*i}", f"s_waitcnt lgkmcnt({3-i})", f"buffer_store_dwordx4 v[{CP+4*i}:{CP+4*i+3}], v16, s[28:31], s3 offen sc1")
    F1LD = "buffer_load_dword v20, v43, s[56:59], s37 offen sc1"
    F1CMP = "v_cmp_lt_u32 vcc, v20, v22"
    I("s_cmp_eq_u32 s18, 2", "s_cselect_b32 s37, 0, 0x1000", "s_waitcnt vmcnt(12)", ".p2align 3")
    for i in range(34):
        if i == OPT.get("pb", 12):
            I("s_branch PG1E")
            I(".p2align 12", "PG1:", "s_branch K_WARM_RET", "s_nop 0", "PG1E:")
        t = 64 + 2*(i % 4) if i < 32 else 72 + 2*(i-32)
        I(f"v_lshlrev_b32 v{t}, 16, v{WR+i}", f"v_and_b32 v{t+1}, s27, v{WR+i}", f"v_pk_mul_f32 v[{t}:{t+1}], v[{t}:{t+1}], s[24:25]", f"v_cvt_pk_bf16_f32 v{WR+i}, v{t}, v{t+1}")
        if i % 4 == 3: I(f"ds_write_b128 v5, v[{WR+i-3}:{WR+i}] offset:{1024*(i-3)}")
        if i == 13: I(F1LD)
        if i in (17, 21, 25, 29): I(f"buffer_load_dwordx4 v4, s[44:47], s38 offen offset:{256*(i-17)} lds")
    I(f"ds_write_b32 v9, v{WR+32}", f"ds_write_b32 v7, v{WR+33}")
    for i in (32, 33):
        t = 72 + 2*(i-32)
        I(f"v_lshlrev_b32 v64, 16, v{WR+i}", f"v_and_b32 v65, s27, v{WR+i}", f"v_sub_f32 v64, v{t}, v64", f"v_sub_f32 v65, v{t+1}, v65", f"v_cvt_pk_bf16_f32 v{66+i-32}, v64, v65")
    I("ds_write_b32 v9, v66 offset:1024", "ds_write_b32 v7, v67 offset:256")
    stamp("wdone", lvl=3)
    I("s_waitcnt vmcnt(10)")
    stamp("ea_in", lvl=3)
    TABLD = "buffer_load_dword v8, v3, s[12:15], s36 offen sc1"
    TABA = [f"s_lshr_b32 s36, s84, {lt-2}", f"s_lshl_b32 s36, s36, {lt+8}", f"s_and_b32 s3, s84, {TP//4-1}", "s_lshl2_add_u32 s36, s3, s36"]
    cst = TABA + [f"v_lshlrev_b32 v3, {lt}, v0"] + [f"s_mov_b32 s{40+i}, {16384 + 8192*i}" for i in range(5)]
    cst += ["s_lshl_b32 s23, s18, 11", "v_and_b32 v48, 0x380, v4", "v_bfe_u32 v49, v6, 2, 1", "v_lshl_add_u32 v48, v49, 10, v48", "v_and_b32 v30, 48, v4",
            "v_lshl_add_u32 v48, v30, 1, v48", "v_add_u32 v48, s23, v48", "v_add_u32 v49, 8, v48", "v_add_u32 v50, 16, v48", "v_add_u32 v51, 24, v48",
            f"s_mul_i32 s22, s16, {NS}", f"s_sub_u32 s22, {L_NODE}, s22", f"v_mov_b32 v28, {NS}",
            f"s_mov_b32 s24, {NLN2}", f"s_mov_b32 s25, {NLN2}", f"s_mov_b32 s50, {KEY_OFF}", f"s_mov_b32 s51, {EA_OFF}", f"s_mov_b32 s52, {FL_OFF}",
            "v_add_u32 v31, 2.0, v30", f"v_mul_u32_u24 v44, {CHS}, v0", "v_and_b32 v26, 0x70, v4", "v_add_u32 v27, 0x80000000, v26",
            "v_lshrrev_b32 v46, 3, v0", "v_lshlrev_b32 v47, 4, v46", "v_xor_b32 v47, v47, v4", "v_and_b32 v47, 0x70, v47", "v_add_u32 v46, s16, v46",
            "s_lshl_b32 s62, s18, 10", f"s_add_u32 s62, s62, {L_X}", "s_cmp_eq_u32 s18, 0", "s_mov_b32 s63, 0x3f000", f"s_cselect_b32 s63, {L_X + 6*4096}, s63",
            "v_and_b32 v22, 0xcf, v0", "v_cmp_eq_u32 vcc, 0x80, v22", f"s_lshl_b32 s60, s2, {lt}", "s_lshl_b32 s61, s2, 4", "v_cndmask_b32_e64 v22, 0, 16, vcc", f"s_add_u32 s61, s61, {FL_OFF}"]
    for i in range(13): I(f"ds_write_b64 v{P8+i}, v[{EAR+2*i}:{EAR+2*i+1}] offset:{L1_EA}", *cst[4*i:4*i+4])
    assert len(cst) <= 52
    I("s_waitcnt vmcnt(0)", F1CMP, "s_cbranch_vccnz K_F1", "K_F1_RET:")
    I("s_cmp_lg_u32 s18, 0", "s_waitcnt lgkmcnt(0)", "s_barrier")
    stamp("barD", lvl=2)
    I("s_cbranch_scc1 K_NOTAB", "buffer_store_dwordx4 v[32:35], v42, s[12:15], s60 offen sc1", "K_NOTAB:")
    for i in range(7): I(f"ds_read_b128 v[{CP+4*i}:{CP+4*i+3}], v16 offset:{L1_EA+4096*i}")
    for i in range(7): I(f"s_movk_i32 s3, {4096*i}", f"s_waitcnt lgkmcnt({6-i})", f"buffer_store_dwordx4 v[{CP+4*i}:{CP+4*i+3}], v16, s[32:35], s3 offen sc1")
    stamp("eaout", lvl=3)
    tr = []
    for f in range(16):
        for jh in range(2): tr.append(f"ds_read_b64_tr_b16 a[{AW2+4*f+2*jh}:{AW2+4*f+2*jh+1}], v62 offset:{L_W2 + (16*(f>>1) + 8*jh)*128 + 32*(f&1)}")
    for f in range(32):
        for jh in range(2): tr.append(f"ds_read_b64_tr_b16 a[{AW1A+4*f+2*jh}:{AW1A+4*f+2*jh+1}], v{56+((f>>2)&3)} offset:{(64*(f>>4) + 8*(f&3) + 4*jh)*256}")
    for b in range(4): tr.append(f"ds_read_b64_tr_b16 a[{AW1C+2*b}:{AW1C+2*b+1}], v60 offset:{64*b}")
    tr += [f"ds_read_b64_tr_b16 a[{AB1}:{AB1+1}], v61", "ds_read_b64_tr_b16 v[14:15], v63"]
    I(*tr[:OPT["ntr"]]); I(TABLD); I(*tr[OPT["ntr"]:])
    stamp("trdone", lvl=3)
    for w in range(3): I(f"s_cmp_eq_u32 s18, {w}", f"s_cbranch_scc1 PG{w+2}")
    I("s_branch PG5", "K_WARM_RET2:")
    I("s_cmp_lg_u32 s18, 1", f"s_waitcnt vmcnt(1) lgkmcnt(0)", "s_barrier")
    stamp("barE", lvl=2)
    I("s_cbranch_scc1 K_NOF3", "s_mov_b64 exec, 1", "buffer_store_dword v24, v24, s[12:15], s61 offen sc1", "s_mov_b64 exec, -1",
      "s_waitcnt vmcnt(1)", "s_branch K_F3D", "K_NOF3:", "s_waitcnt vmcnt(0)", "K_F3D:")
    I("v_cmp_eq_u32 vcc, -1, v8", "s_cbranch_vccnz K_TAB", "K_TAB_RET:")
    stamp("tab", lvl=2)
    I("v_and_b32 v33, 0xffff, v8", "v_add_lshl_u32 v32, v44, v33, 2", "v_lshrrev_b32 v33, 16, v8", "v_subrev_u32 v33, 16, v33")
    KEY, AD, RK, O4, O8 = 64, 96, 128, 52, 160
    xd = [[f"s_add_u32 m0, s62, {4096*i}" if i < 6 else "s_mov_b32 m0, s63", "v_add_u32 v46, 32, v46" if i else "s_nop 0",
           "buffer_load_dwordx4 v[46:47], s[4:7], 0 idxen offen lds"] for i in range(7)]
    def compact(dst):
        I("v_cmp_lt_i32 vcc, 0, v33", "s_nop 1", "v_mbcnt_lo_u32_b32 v35, vcc_lo, 0", "v_mbcnt_hi_u32_b32 v35, vcc_hi, v35",
          "v_cmp_gt_u32 s[36:37], 16, v35", "v_lshlrev_b32 v35, 4, v35", "s_nop 0", "s_and_b64 vcc, vcc, s[36:37]",
          "v_cndmask_b32 v35, 4, v35, vcc", f"ds_permute_b32 v{dst}, v35, v34",
          "v_cndmask_b32_e64 v35, 0, 16, vcc", "v_sub_u32 v33, v33, v35", "v_lshl_add_u32 v34, v35, 2, v34")
    def octets(src, its, off, o8):
        I(f"v_lshlrev_b32 v39, 1, v{src}", f"v_lshlrev_b32 v37, 1, v{src}", f"v_lshlrev_b32 v38, 1, v{src}", "s_nop 0",
          "v_mov_b32_dpp v37, v39 row_shr:4 row_mask:0xf bank_mask:0xa", "v_mov_b32_dpp v38, v39 row_shl:4 row_mask:0xf bank_mask:0x5", "s_nop 0")
        for n, i in enumerate(its):
            for h in range(2): I(f"v_add_u32_dpp v{o8+2*n+h}, v{37+h}, v{off} quad_perm:[{i},{i},{i},{i}] row_mask:0xf bank_mask:0xf")
    for i in range(4):
        I(f"v_add_u32_dpp v{O4+i}, v32, v30 quad_perm:[{i},{i},{i},{i}] row_mask:0xf bank_mask:0xf",
          f"buffer_load_dwordx4 v[{KEY+4*i}:{KEY+4*i+3}], v{O4+i}, s[12:15], s50 offen sc1")
    I(f"v_add_u32 v34, 0xc0000040, v32")
    compact(36)
    octets(32, range(4), 26, O8)
    I("s_waitcnt lgkmcnt(0)", f"v_add_u32_dpp v{O4+4}, v36, v31 quad_perm:[0,0,0,0] row_mask:0xf bank_mask:0xf",
      f"buffer_load_dwordx4 v[{KEY+16}:{KEY+19}], v{O4+4}, s[12:15], s50 offen sc1")
    octets(36, [0], 27, O8+8)
    I(f"v_bfe_i32 v{O4+4}, v{O4+4}, 30, 1")
    I(f"v_mul_u32_u24 v21, {NS}, v0", f"v_add_u32 v21, {L_NODE}, v21", "v_cmp_gt_u32 s[38:39], s17, v0")
    I("s_sub_u32 s27, 256, s17", "s_sub_u32 s19, s27, 32")
    I("v_bfe_u32 v35, v6, 4, 1", "v_lshlrev_b32 v35, 4, v35", f"v_xor_b32 v{FI+1}, v35, v26")
    for j in range(1, 8): I(f"v_xor_b32 v{FI+1+2*j}, {32*(j&3)}, v{FI+1}")
    I("v_and_b32 v35, 3, v6", f"v_mul_u32_u24 v{FR}, 0x420, v35", "v_bfe_u32 v35, v6, 2, 3", f"v_lshl_add_u32 v{FR}, v35, 7, v{FR}", "v_bfe_u32 v35, v6, 3, 1",
      f"v_lshl_add_u32 v{FR}, v35, 4, v{FR}", f"v_xor_b32 v{FR}, v{FR}, v1", "s_lshl_b32 s45, s18, 13", f"s_add_u32 s45, s45, {L_W}", f"v_add_u32 v{FR}, s45, v{FR}")
    for k in range(1, 4): I(f"v_xor_b32 v{FR+k}, {16*k}, v{FR}")
    I("v_and_b32 v20, 31, v6", "s_lshl_b32 s3, s18, 7", "v_lshl_add_u32 v57, v20, 2, s3", "v_and_b32 v59, 0x38, v6", "v_lshl_add_u32 v59, v59, 1, s3",
      "s_sub_u32 s3, 896, s3", "v_lshl_add_u32 v58, v20, 2, s3")
    F3LD = "buffer_load_dword v9, v16, s[12:15], s52 offen sc1"
    def phaseB(k, a, r, sreg, m=None):
        if m:
            for j in range(4): I(f"v_or_b32 v{k+j}, v{m}, v{k+j}")
        for j in range(4): I(f"v_mad_u32_u16 v{a+j}, v{k+j}, v28, s22")
        for j in range(4):
            I(f"ds_add_rtn_u32 v{r+j}, v{a+j}, v29",
              f"v_add_u32_sdwa v{k+j}, v{48+j}, s{sreg} dst_sel:WORD_0 dst_unused:UNUSED_PRESERVE src0_sel:DWORD src1_sel:DWORD")
    def phaseC(k, a, r):
        L = []
        for j in range(4): L += [f"v_min_u32 v{r+j}, {CAP-1}, v{r+j}", f"v_lshl_add_u32 v{a+j}, v{r+j}, 2, v{a+j}", f"ds_write_b32 v{a+j}, v{k+j} offset:4"]
        return L
    def eadma(o, base, imm): return [f"s_add_u32 m0, {base}, {imm}", "s_nop 0", f"buffer_load_dwordx4 v{o}, s[12:15], s51 offen sc1 lds"]
    ea = [eadma(O8+n, "s23", 16384 + 8192*(n>>1) + 1024*(n&1)) for n in range(10)]
    nx = [0, 1, 2, 2, 2]; done = 0; q = list(xd)
    for i in range(5):
        I(f"s_waitcnt vmcnt({4 - i + done})")
        if i == 0: stamp("key0", lvl=2); I(F3LD); done += 1
        for k in range(nx[i]): I(*q.pop(0)); done += 1
        phaseB(KEY+4*i, AD+4*i, RK+4*i, 40+i, O4+4 if i == 4 else None)
    I("v_cmp_lt_i32 vcc, 0, v33", "s_cbranch_vccnz K_MORE", "K_MORE_RET:", "s_branch PG2E")
    repoll("K_F1", F1LD, F1CMP)
    repoll("K_TAB", TABLD, "v_cmp_eq_u32 vcc, -1, v8")
    I(".p2align 12", "PG2:", "s_branch K_WARM_RET2")
    repoll("K_F3", F3LD, "v_cmp_eq_u32 vcc, -1, v9")
    I("PG2E:", "s_waitcnt lgkmcnt(0)", "s_barrier")
    stamp("bar1", lvl=2)
    I("s_mov_b64 exec, s[38:39]", "ds_read_b32 v20, v21", "s_mov_b64 exec, -1")
    I("s_waitcnt vmcnt(7)", "v_cmp_eq_u32 vcc, -1, v9", "s_cbranch_vccnz K_F3", "K_F3_RET:")
    stamp("f3", lvl=3)
    I(*(ea[0] + ea[1]))
    I("s_waitcnt lgkmcnt(0)", "s_mov_b64 exec, s[38:39]")
    I(f"v_cmp_lt_u32 vcc, {CAP}, v20", "v_min_u32 v20, 63, v20", "v_sub_u32 v22, 63, v20", "v_lshlrev_b32 v22, 2, v22",
      f"ds_add_rtn_u32 v23, v22, v29 offset:{L_H1}")
    I("s_cbranch_vccz K_A1", f"ds_write_b32 v24, v29 offset:{L_FLAG}", "K_A1:")
    I("s_mov_b64 exec, -1")
    I(*(ea[2] + ea[3]))
    I("s_waitcnt lgkmcnt(0)", "s_barrier")
    I(f"ds_read_b32 v25, v43 offset:{L_H1}")
    I(*phaseC(KEY, AD, RK))
    I("s_waitcnt lgkmcnt(4)", "v_mov_b32 v46, v25")
    scan64(46, phaseC(KEY+4, AD+4, RK+4))
    I("v_sub_u32 v46, v46, v25", "ds_bpermute_b32 v46, v22, v46")
    I("v_lshrrev_b32 v30, 1, v20", "v_cmp_lt_u32 s[36:37], 25, v20")
    I(*(ea[4] + ea[5]))
    I("s_waitcnt lgkmcnt(0)")
    I("v_add_u32 v23, v23, v46", "v_cmp_gt_u32 vcc, s19, v23", "v_lshlrev_b32 v33, 1, v23", "v_lshlrev_b32 v34, 2, v23",
      "v_cndmask_b32_e64 v31, 8, 10, vcc", "v_cndmask_b32 v31, v31, v30, s[36:37]")
    I("v_cmp_gt_u32 vcc, s27, v23", "v_cmp_gt_u32 s[36:37], v20, v31", "v_mov_b32 v35, 0xff", "v_sub_u32 v37, 63, v31",
      "s_and_b64 vcc, vcc, s[36:37]", "s_and_b64 vcc, vcc, s[38:39]")
    I("v_cndmask_b32 v32, 0, v31, vcc", "v_sub_u32 v32, v20, v32", "v_sub_u32 v36, 63, v32", "v_lshlrev_b32 v36, 2, v36", "v_lshlrev_b32 v37, 2, v37")
    I("s_mov_b64 exec, s[38:39]", f"ds_add_rtn_u32 v38, v36, v29 offset:{L_H2}")
    I("s_mov_b64 exec, vcc", f"ds_add_rtn_u32 v39, v37, v29 offset:{L_H2}", "v_add_u32 v47, s16, v0", f"ds_write_b32 v34, v47 offset:{L_SN}")
    I("s_mov_b64 exec, -1", "v_cndmask_b32 v35, v35, v33, vcc")
    I("v_lshl_or_b32 v48, v35, 8, v32", "v_lshl_or_b32 v48, v48, 16, v0")
    I("v_or_b32 v33, 1, v33", "v_lshl_or_b32 v49, v33, 8, v31", "v_lshl_or_b32 v49, v49, 8, v32", "v_lshl_or_b32 v49, v49, 8, v0", "v_lshl_add_u32 v50, v32, 2, v21")
    I(*(ea[6] + ea[7]))
    I("s_waitcnt lgkmcnt(0)", "s_barrier")
    stamp("bar3", lvl=3)
    I(f"ds_read_b32 v25, v43 offset:{L_H2}"); I(*phaseC(KEY+8, AD+8, RK+8)); I("s_waitcnt lgkmcnt(4)", "v_mov_b32 v46, v25")
    scan64(46, phaseC(KEY+12, AD+12, RK+12))
    I("v_sub_u32 v46, v46, v25", "ds_bpermute_b32 v36, v36, v46", "ds_bpermute_b32 v37, v37, v46")
    I(*phaseC(KEY+16, AD+16, RK+16))
    I("s_waitcnt lgkmcnt(4)", "v_add_lshl_u32 v36, v36, v38, 2", "v_add_lshl_u32 v37, v37, v39, 2")
    o0 = L_TBL // 256
    I("s_mov_b64 exec, s[38:39]", f"ds_write2st64_b32 v36, v48, v21 offset0:{o0} offset1:{o0+4}", "s_mov_b64 exec, vcc", f"ds_write2st64_b32 v37, v49, v50 offset0:{o0} offset1:{o0+4}",
      "s_mov_b64 exec, -1")
    I(*(ea[8] + ea[9]))
    def first_tail(b0):
        seg = []
        for b in range(b0, 4):
            if b < 3: seg += weave(chain(NN+16*(b+1), b+1, 0, QQ+16*(b+1)), E0(b), (3,3,3,3,4), {3: ["s_waitcnt lgkmcnt(0)"], 4: ["s_barrier"]} if b == 2 else None)
            else: seg += weave(chain(T0, 0, 1, QQ), E0(b), (3,3,3,3,4), {0: [xload(0, 0)], 4: [xload(0, 1), "v_cmp_lt_u32 vcc, s19, v3"]})
            seg += A0(b)
        return seg
    I("s_mov_b32 s21, 0", "s_mov_b32 s27, %d" % (L_NODE+4), "s_movk_i32 s53, 0x3f80", "s_movk_i32 s54, 0xff", f"s_movk_i32 s55, {SPL_S}",
      f"s_mov_b32 s56, {hex(BIG)}", f"s_mov_b32 s57, {f32(2.0**-100)}", "s_movk_i32 s58, 0x207", f"v_mov_b32 v6, {NS}", f"v_add_u32 v8, {L_X}, v1")
    I("s_waitcnt vmcnt(10) lgkmcnt(0)", "s_barrier")
    stamp("bar4", lvl=2)
    I(f"ds_read_b128 v[20:23], v59 offset:{L_TB2}", f"ds_read_b32 v7, v57 offset:{L_TBL}", f"ds_read_b32 v25, v58 offset:{L_TBL}", f"ds_read_b32 v24, v24 offset:{L_FLAG}")
    for b in range(4): I(*onehot(EE+2*b, b))
    for k in range(4): I(f"v_mov_b32 v{26+k}, v{FR+k}")
    I("s_waitcnt lgkmcnt(3)")
    for j in range(8): I(f"ds_read_u16 v{FI+2*j}, v{20+(j&3)} offset:{6 + 4*(j>>2)}")
    I("s_waitcnt lgkmcnt(8)"); I(*DEC1); I(*RD1[1:])
    I("s_waitcnt lgkmcnt(8)")
    for j in range(8):
        I(f"s_add_u32 m0, s45, {1024*j}", "s_waitcnt lgkmcnt(4)" if j == 4 else RD2[1+j-5] if j > 4 else "s_nop 0", f"buffer_load_dwordx4 v[{FI+2*j}:{FI+2*j+1}], s[4:7], 0 idxen offen lds")
    I(RD2[4], "v_cmp_ne_u32 vcc, 0, v24", "v_readfirstlane_b32 s20, v3", "v_mov_b32 v5, v7", "v_mov_b32 v7, v25", *LSET)
    I("s_waitcnt lgkmcnt(0)", "v_mov_b32 v0, v11", "s_cbranch_vccnz K_SLOW", ".p2align 3")
    stamp("q1")
    q = sum([qchain(QQ+16*b, b, EE+2*b) for b in range(4)], [])
    sr = [f"ds_read_b128 a[{AX+4*k}:{AX+4*k+3}], v{26+(k&3)} offset:{4096*(k>>2)}" for k in range(8)]
    I(*weave(q, [], [0]*20, {14: ["s_waitcnt vmcnt(4)", "s_barrier"], 15: [RD3[0]], 16: sr[0:2], 17: sr[2:4], 18: [RD3[1]], 19: [RD3[2]]}))
    I("s_waitcnt vmcnt(0) lgkmcnt(2)", "s_nop 0")
    c0 = chain(NN, 0, 0, QQ)
    I(c0[0], sr[4], c0[1], xload(2, 0), sr[5], c0[2], xload(2, 1), sr[6], c0[3], xload(2, 2), sr[7], c0[4], xload(2, 3))
    I("s_nop 8", "v_mov_b32 v0, v12")
    I(*align8(first_tail(0)))
    stamp("loop1")
    if OPT["stamp"]: I("s_mov_b32 s62, s20")
    I("s_branch K_A0")
    I(".p2align 12", "PG3:", "s_branch K_WARM_RET2", "s_nop 0", "K_LOOP:")
    def partA(t):
        cur = (1+t) % 3; nxt = (2+t) % 3; prv = t % 3
        seg = []
        for b in range(3):
            tc = T0 + 16*(b % 2); tn = T0 + 16*((b+1) % 2)
            if b == 0: extra = {0: [xload(prv, 2)], 1: ["s_mov_b64 exec, vcc"], 4: [xload(prv, 3)]}
            elif b == 1: extra = {0: [f"ds_read_u16 v0, v2 offset:{4*(t+4)+2}"], 1: ["s_cmp_lt_i32 s19, s37"], 2: ["s_cselect_b32 s6, s26, 0"],
                                  3: ["s_waitcnt lgkmcnt(1)"], 4: [f"ds_read_b64 a[{AEA+2*nxt}:{AEA+2*nxt+1}], v4"]}
            else: extra = {0: [f"ds_read_u16 v4, v2 offset:{4*(t+3)}"], 1: ["s_add_u32 s19, s19, 1"], 2: ["s_cmp_ge_u32 s19, s20"], 3: ["s_waitcnt vmcnt(4) lgkmcnt(1)"],
                           4: ["s_cbranch_scc1 K_EXIT" if t < 2 else "s_cbranch_scc0 K_LOOP"]}
            ms = chain(tn, b+1, cur, QQ+16*(b+1))
            if b < 2: seg += weave(ms, exps(tc), (3,3,3,3,4), extra) + pk3(b, tc)
            else: seg += weave(ms, exps(tc)[:12], (3,3,3,3,0), extra)
        return seg
    def partB(t):
        cur = (1+t) % 3; nxt = (2+t) % 3
        seg = ["v_cmp_lt_u32 vcc, s19, v3"] + (["v_add_u32 v2, 12, v2"] if t == 2 else []) + exps(T0)[12:] + pk3(2, T0)
        seg += weave(chain(T0, 0, nxt, QQ), exps(T1), (3,3,3,3,4), {0: [xload(cur, 0)], 4: [xload(cur, 1)]}) + pk3(3, T1)
        return seg
    I(*align8(partB(2)))
    I("K_A0:")
    I(*align8(partA(0) + partB(0) + partA(1) + partB(1) + partA(2))[:-1])
    I("K_EXIT:", "s_cmp_lg_u32 s21, 0", "s_cbranch_scc1 K_LAST", "s_branch K_MID")
    I(".p2align 12", "PG4:", "s_branch K_WARM_RET2", "s_nop 0", "K_MID:")
    stamp("exit1")
    OH = QQ+48
    seg = exps(T0)[12:] + ["s_mov_b64 s[60:61], exec", "s_mov_b64 exec, -1"] + ["s_waitcnt vmcnt(0)"] + DEC1 + RD1 + RD2
    seg += onehot(OH, 0) + ["v_readfirstlane_b32 s20, v3", "s_mov_b32 s6, s26", "s_mov_b64 exec, s[60:61]"] + pk3(2, T0) + ["s_waitcnt lgkmcnt(5)", "s_mov_b64 exec, -1"]
    seg += weave(qchain(QQ, 0, OH), exps(T1), (3,3,3,3,4), {0: [xload(0, 0)], 1: [LSET[0]], 2: [xload(0, 1)], 3: [xload(0, 2)],
                                                             4: [xload(0, 3)] + onehot(OH+2, 1) + ["s_mov_b64 exec, s[60:61]"]})
    seg += pk3(3, T1) + ["s_mov_b64 exec, -1", "s_waitcnt lgkmcnt(0)"]
    seg += spread(qchain(QQ+16, 1, OH+2) + binit(LB), C(["v_mov_b32 v0, v10"] + lbinit(LB) + R(0) + onehot(OH+4, 2) + M(0)),
                  pre={1: [xload(1, 0)], 2: [xload(1, 1)], 3: [xload(1, 2)], 4: [xload(1, 3)], 5: [LSET[1]]}) + U(0)
    seg += spread(qchain(QQ+32, 2, OH+4) + G(0), C(V(0) + R(1) + onehot(OH3, 3) + M(1)), pre={1: [RD3[0]], 2: [RD3[1]], 3: [RD3[2]], 4: [LSET[2]], 5: ["s_mov_b32 s21, 1"]}) + U(1)
    seg += spread(qchain(QQ+48, 3, OH3) + G(1), C(V(1) + ["v_mov_b32 v0, v11"] + R(2) + M(2)),
                  pre={4: ["s_waitcnt vmcnt(4) lgkmcnt(0)"], 5: [xload(2, 0)], 6: [xload(2, 1)], 7: [xload(2, 2)], 8: [xload(2, 3)]}) + U(2)
    seg += spread(chain(NN, 0, 0, QQ) + G(2), C(V(2) + R(3) + M(3))) + U(3)
    seg += spread(chain(NN+16, 1, 0, QQ+16) + G(3), C(V(3) + dec2(LB) + E0(0))) + A0(0) + SCL
    seg += check("K_RARE_A")
    seg += spread(chain(NN+32, 2, 0, QQ+32), C(E0(1)[:4] + DSW[:2] + E0(1)[4:8] + DSW[2:4] + E0(1)[8:]), pre={1: [DSW[4]], 2: [DSW[5]], 3: [DSW[6]], 4: [DSW[7]]}) + A0(1)
    o = ocvt(EE); st = ost(EE)
    seg += spread(chain(NN+48, 3, 0, QQ+48), C(o[:4] + [("@")] * 0 + E0(2)[:2] + o[4:8] + E0(2)[2:4] + o[8:12] + E0(2)[4:6] + o[12:] + E0(2)[6:8]) + [("@", 4)] + C(E0(2)[8:]),
                  pre={4: st + ["v_mov_b32 v5, v7", "s_waitcnt vmcnt(8)"]}) + A0(2) + ["v_mov_b32 v0, v12"]
    seg += first_tail(3)
    I(*align8(seg))
    stamp("loop2")
    if OPT["stamp"]: I("s_mov_b32 s63, s20")
    I("s_branch K_A0")
    I(".p2align 12", "PG5:", "s_branch K_WARM_RET2", "s_nop 0", "K_LAST:")
    stamp("exit2")
    L2 = QQ
    seg = exps(T0)[12:] + pk3(2, T0) + exps(T1) + pk3(3, T1) + ["s_mov_b64 exec, -1"] + lbinit(LB)
    seg += R(0)[:2] + weave(binit(LB), R(0)[2:], (4, 10)) + U(0) + V(0)
    for b in range(3): seg += weave(G(b), R(b+1), (3,3,3,7)) + U(b+1) + V(b+1)
    seg += spread(G(3), C(M(0) + M(1) + M(2) + M(3) + dec2(LB)), tail=48) + SCL + check("K_RARE_B") + DSW + ocvt(QQ) + ost(QQ)
    I(*align8(seg))
    stamp("tail")
    I("v_mbcnt_lo_u32_b32 v6, -1, 0", "v_mbcnt_hi_u32_b32 v6, -1, v6", "s_lshl_b32 s3, s18, 6", "v_add_u32 v6, s3, v6")
    I("v_and_b32 v2, 0xfc, v6", "v_and_b32 v3, 3, v6", f"v_mul_u32_u24 v4, {SPL_S//2}, v2", "v_lshl_add_u32 v4, v3, 6, v4", "v_lshlrev_b32 v11, 5, v3", "v_mov_b32 v9, 0")
    I("s_waitcnt lgkmcnt(0)", "s_barrier")
    I(f"ds_read_b32 v9, v9 offset:{L_FLAG}", f"ds_read_b32 v10, v2 offset:{L_SN}")
    for i in range(4): I(f"ds_read_b128 v[{16+4*i}:{19+4*i}], v4 offset:{L_SPL+16*i}", f"ds_read_b128 v[{32+4*i}:{35+4*i}], v4 offset:{L_SPL+SPL_S+16*i}")
    I("s_waitcnt lgkmcnt(4)", "v_cmp_ne_u32 vcc, 0, v9")
    for h in range(2):
        if h: I("s_waitcnt lgkmcnt(0)")
        for i in range(4*h, 4*h+4): I(f"v_pk_add_f32 v[{16+2*i}:{17+2*i}], v[{16+2*i}:{17+2*i}], v[{32+2*i}:{33+2*i}]")
        for i in range(4*h, 4*h+4): I(f"v_cvt_pk_bf16_f32 v{48+i}, v{16+2*i}, v{17+2*i}")
        I(f"buffer_store_dwordx4 v[{48+4*h}:{51+4*h}], v[10:11], s[8:11], 0 idxen offen offset:{16*h}")
    I("s_cbranch_vccnz K_SLOW")
    if OPT["diag"]:
        I("s_mov_b32 s52, 0", "K_SPIN:", "s_memrealtime s[54:55]", "s_waitcnt lgkmcnt(0)", "s_add_u32 s52, s52, 1", "s_cmp_gt_u32 s52, 20000", "s_cbranch_scc1 K_END",
          "s_sub_u32 s54, s54, s100", "s_cmp_lt_u32 s54, 4000", "s_cbranch_scc1 K_SPIN")
    if OPT["stamp"]:
        I("s_waitcnt vmcnt(0)"); stamp("end")
        I("s_lshl_b32 s3, s2, 2", "s_add_u32 s3, s3, s18", "s_lshl_b32 s3, s3, 7", f"s_add_u32 s3, s3, {STAMP_OFF}", "v_mov_b32 v0, 0")
        for i in range(len(stamps)): I(f"v_mov_b32 v1, s{SLOTS[i]}", f"buffer_store_dword v1, v0, s[12:15], s3 offen offset:{4*i}")
        I("s_lshl_b32 s62, s62, 8", "s_or_b32 s62, s62, s63", "v_mov_b32 v1, s62", "buffer_store_dword v1, v0, s[12:15], s3 offen offset:124")
    I("K_END:", "K_END0:", "s_endpgm")
    repoll("K_F3M", F3LD, "v_cmp_eq_u32 vcc, -1, v9")
    for tag in ("K_RARE_A", "K_RARE_B"):
        I(f"{tag}:")
        I("s_or_b64 vcc, vcc, s[38:39]", "s_cmp_eq_u64 vcc, -1", f"s_cbranch_scc1 {tag}2")
        I(f"v_mov_b32 v{OA+1}, 0", f"v_mov_b32 v{OA+2}, 1", f"ds_write_b32 v{OA+1}, v{OA+2} offset:{L_FLAG}")
        I(f"{tag}2:", "s_mov_b64 exec, s[38:39]")
        for i in range(32): I(f"v_mov_b32 v{T0+i}, 0")
        I("s_mov_b64 exec, -1", f"s_branch {tag}_RET")
    K2, A2, R2, O2 = 176, 180, 184, 188
    I("K_MORE:", "s_mov_b32 s40, 0", "s_waitcnt vmcnt(0)", "v_cmp_eq_u32 vcc, -1, v9", "s_cbranch_vccnz K_F3M", "K_F3M_RET:")
    I("K_MORE_L:")
    compact(36)
    I("s_add_u32 s3, s23, s40", "s_waitcnt lgkmcnt(0)",
      f"v_add_u32_dpp v{O2}, v36, v31 quad_perm:[0,0,0,0] row_mask:0xf bank_mask:0xf",
      f"buffer_load_dwordx4 v[{K2}:{K2+3}], v{O2}, s[12:15], s50 offen sc1", f"v_bfe_i32 v{O2}, v{O2}, 30, 1")
    octets(36, [0], 27, O2+2)
    I(*eadma(O2+2, "s3", 0)); I(*eadma(O2+3, "s3", 1024)); I("s_waitcnt vmcnt(0)")
    phaseB(K2, A2, R2, 40, O2)
    I("s_waitcnt lgkmcnt(0)")
    I(*phaseC(K2, A2, R2))
    I("s_waitcnt lgkmcnt(0)", "v_cmp_lt_i32 vcc, 0, v33", "s_cbranch_vccz K_MORE_RET", "s_add_u32 s40, s40, 8192", f"s_cmp_lt_u32 s40, 16384", "s_cbranch_scc1 K_MORE_L")
    I(f"ds_write_b32 v24, v29 offset:{L_FLAG}", "s_waitcnt lgkmcnt(0)", "s_branch K_MORE_RET")
    I("K_SLOW:")
    I("s_mov_b64 exec, -1", "s_waitcnt vmcnt(0) lgkmcnt(0)", "s_barrier")
    I("v_mbcnt_lo_u32_b32 v6, -1, 0", "v_mbcnt_hi_u32_b32 v6, -1, v6", "s_lshl_b32 s3, s18, 6", "v_add_u32 v7, s3, v6")
    I(*TABA); I(f"v_lshlrev_b32 v3, {lt}, v7", TABLD)
    I("v_lshrrev_b32 v1, 5, v6", "v_lshlrev_b32 v1, 6, v1", "v_and_b32 v6, 31, v6", "v_lshlrev_b32 v2, 4, v7")
    for i in range(4): I(f"v_mov_b32 v{16+i}, 0")
    for i in range(13): I(f"ds_write_b128 v2, v[16:19] offset:{4096*i}")
    for b in range(4): I(*onehot(EE+2*b, b))
    I("s_mov_b32 s6, s26", "s_mov_b32 s19, 0", "s_waitcnt vmcnt(0) lgkmcnt(0)", "s_barrier")
    I("K_S_SEG:")
    I("v_readlane_b32 s36, v8, s19", "s_lshl_b32 s3, s18, 6", "s_add_u32 s3, s3, s19", f"s_mul_i32 s3, s3, {CHS}", "s_nop 0",
      "s_lshr_b32 s20, s36, 16", "s_and_b32 s36, s36, 0xffff", "s_add_u32 s36, s36, s3")
    I("K_S_TILE:")
    I("s_cmp_le_i32 s20, 0", "s_cbranch_scc1 K_S_NEXT")
    I("v_add_lshl_u32 v2, s36, v6, 2", "v_lshlrev_b32 v3, 1, v2", "v_cmp_gt_i32 s[38:39], s20, v6")
    I("buffer_load_dword v9, v2, s[12:15], s50 offen sc1", f"buffer_load_dwordx2 a[{AEA}:{AEA+1}], v3, s[12:15], s51 offen sc1", "s_waitcnt vmcnt(0)")
    I("v_lshrrev_b32 v0, 16, v9"); I(*[xload(0, k) for k in range(4)])
    I("v_and_b32 v0, 0xffff, v9", "v_subrev_u32 v9, s16, v0"); I(*[xload(2, k) for k in range(4)])
    I("v_mul_u32_u24 v9, 260, v9", "v_lshl_add_u32 v9, v1, 1, v9", "s_waitcnt vmcnt(0)")
    for b in range(4): I(*qchain(NN+16*b, b, EE+2*b)); I(*chain(NN+16*b, b, 0, NN+16*b))
    I(*binit(EE)); I("s_nop 15")
    for b in range(4): I(*E0(b))
    for b in range(4): I(*A0(b))
    for b in range(4): I(*R(b))
    for b in range(4): I(*(U(b) + V(b)))
    I("s_nop 1")
    for b in range(4): I(*G(b))
    I("s_nop 15"); I(*SCL)
    I("s_mov_b64 exec, s[38:39]")
    for i in range(32): I(f"ds_add_f32 v9, v{T0+i} offset:{4*i}")
    I("s_mov_b64 exec, -1", "s_waitcnt lgkmcnt(0)", "s_sub_u32 s20, s20, 32", "s_add_u32 s36, s36, 32", "s_branch K_S_TILE")
    I("K_S_NEXT:", "s_add_u32 s19, s19, 1", "s_cmp_lt_u32 s19, 64", "s_cbranch_scc1 K_S_SEG")
    I("s_barrier", "v_and_b32 v3, 7, v7", "v_lshlrev_b32 v1, 4, v3", "v_lshrrev_b32 v7, 3, v7", "s_mov_b32 s19, 0")
    I("K_S_OUT:")
    I("v_mul_u32_u24 v2, 260, v7", "v_cmp_gt_u32 vcc, s17, v7", "v_lshl_add_u32 v2, v3, 5, v2", "v_add_u32 v0, s16, v7", "v_cndmask_b32 v0, -1, v0, vcc")
    for i in range(8): I(f"ds_read_b32 v{16+i}, v2 offset:{4*i}")
    I("s_waitcnt lgkmcnt(0)")
    for i in range(4): I(f"v_cvt_pk_bf16_f32 v{24+i}, v{16+2*i}, v{17+2*i}")
    I("buffer_store_dwordx4 v[24:27], v[0:1], s[8:11], 0 idxen offen", "v_add_u32 v7, 32, v7", "s_waitcnt vmcnt(0)")
    I("s_add_u32 s19, s19, 1", "s_cmp_lt_u32 s19, 7", "s_cbranch_scc1 K_S_OUT", "s_endpgm")

def desc(name, vgpr, accum, sgpr):
    I(".p2align 6", f".amdhsa_kernel {name}")
    for l in (f"next_free_vgpr {vgpr}", f"next_free_sgpr {sgpr}", f"accum_offset {accum}", "group_segment_fixed_size 0", "kernarg_size 88",
              "user_sgpr_count 2", "user_sgpr_kernarg_segment_ptr 1", "system_sgpr_workgroup_id_x 1", "float_denorm_mode_32 3"):
        out.append("  .amdhsa_" + l)
    I(".end_amdhsa_kernel")

hdr = [l.rstrip("\n") for l in open(f"cdna_kernels/{NAME}.s.ref") if l.startswith(";") and "@launch" not in l][:12]
hdr += [f"; @launch grid=(256,1,1) block=(256,1,1) lds={L_SIZE}"]
I('.amdgcn_target "amdgcn-amd-amdhsa--gfx950"', ".text")
kernel()
I('.section .rodata,"a"')
desc(NAME + "_kernel", 512, 256, 102)
if OPT["stamp"]: hdr.append("; stamps: " + " ".join(stamps))
open(sys.argv[1], "w").write("\n".join(hdr + out) + "\n")
```

```python
import sys, struct, math
NAME = "standalone__edge_featured_mpnn_mpnn__graph"
OPT = dict(stamp=0, diag=0, tp=32, ntr=102, xpos=0, sl=3, cw=1)
for a in sys.argv[2:]:
    k, v = a.split("="); OPT[k] = int(v) if v.lstrip("-").isdigit() else v

N_NODES = 50000; E = 800000
CH = 3125; CHS = 3168
TP = OPT['tp']; FL_OFF = 0x40000
TAB_OFF = 0; WP_OFF = 0x48000; KEY_OFF = 0x58000; EA_OFF = 0x370000; STAMP_OFF = 0x1000000
WS_SIZE = 0x10000000
SPIN = 400000
def f32(x): return "0x%08x" % struct.unpack("<I", struct.pack("<f", x))[0]
NLOG2E = f32(-math.log2(math.e)); NLN2 = f32(-math.log(2.0))

out = []
def I(*ls):
    for l in ls:
        for x in l.split("\n"):
            x = x.strip()
            if x: out.append(x if x.endswith(":") or x.startswith(".") else "    " + x)
def srd(d, lo, hi, size, stride=0):
    I(f"s_mov_b32 s{d}, s{lo}")
    if stride: I(f"s_or_b32 s{d+1}, s{hi}, {hex(stride << 16)}")
    else: I(f"s_mov_b32 s{d+1}, s{hi}")
    I(f"s_mov_b32 s{d+2}, {size}", f"s_mov_b32 s{d+3}, 0x20000")
def scan64(v, fill=None):
    fill = list(fill or [])
    def gap():
        n = 0
        while fill and n < 2: I(fill.pop(0)); n += 1
        if n < 2: I(f"s_nop {1-n}")
    for op in ("row_shr:1", "row_shr:2", "row_shr:4", "row_shr:8"):
        gap(); I(f"v_add_u32_dpp v{v}, v{v}, v{v} {op} row_mask:0xf bank_mask:0xf bound_ctrl:0")
    gap(); I(f"v_add_u32_dpp v{v}, v{v}, v{v} row_bcast:15 row_mask:0xa bank_mask:0xf")
    gap(); I(f"v_add_u32_dpp v{v}, v{v}, v{v} row_bcast:31 row_mask:0xc bank_mask:0xf")
    I(*fill)
SLOTS = list(range(86, 98)) + list(range(64, 84))
stamps = []
def stamp(name, twice=False, lvl=1):
    if OPT["diag"] == name: I("s_memrealtime s[100:101]", "s_waitcnt lgkmcnt(0)", "s_nop 0")
    if not OPT["stamp"] or lvl > OPT["sl"]: return
    if twice:
        stamps.append(name + "1")
        I(f"s_mov_b32 s{SLOTS[len(stamps)-1]}, s{SLOTS[len(stamps)]}", "s_nop 0")
        name += "2"
    stamps.append(name)
    I(f"{'s_memtime' if OPT['stamp']==1 else 's_memrealtime'} s[98:99]", "s_waitcnt lgkmcnt(0)", f"s_mov_b32 s{SLOTS[len(stamps)-1]}, s98")

CAP = 48; NS = 4 + 4*CAP
NIT = 7
STG_W = NIT*2048
L1_KEY = 0; L1_EA = CHS*4; L1_CNT = 38912; L1_BASE = L1_CNT + 1024; L_W2 = 40960
L_H1 = 4*STG_W; L_H2 = L_H1 + 256; L_SN = L_H2 + 256; L_FLAG = L_SN + 256; L_TBL = L_H1 + 1024
L_TB2 = L_TBL + 1024; L_SPL = L_TB2 + 1024; SPL_S = 272
L_W = L_SPL; WQ = 9*1024
L_S = L_W + 32768
L_X = L_W + 4*WQ
L_NODE = L_X + 200*128
L_SIZE = L_NODE + 196*NS
assert L_SIZE <= 163840 and 122*SPL_S <= 4*WQ
T0, T1, EE, NN, DD, QQ = 16, 32, 48, 64, 128, 192
AX, AW1A, AW1B, AW1C, AW2, AEA, AB1 = 0, 48, 112, 176, 184, 248, 254
BIG = 0x1000000

import re
V4 = ("v_exp_f32", "v_rcp_f32", "v_add_f32", "v_mul_f32", "v_add_u32", "v_mov_b32", "v_and_b32", "v_lshrrev_b32", "v_lshlrev_b32", "v_cvt_f32_ubyte2",
      "v_mul_u32_u24", "v_cndmask_b32", "v_readfirstlane_b32", "v_or_b32", "v_sub_u32", "v_xor_b32")
def has_lit(s):
    for t in re.split(r"[,\s]+", s.strip())[1:]:
        if re.fullmatch(r"0x[0-9a-fA-F]+|-?\d+", t):
            v = int(t, 0)
            if not -16 <= v <= 64: return True
    return False
def isz(s):
    s = s.strip(); op = s.split()[0]
    if s.endswith(":") or s.startswith("."): return 0
    if op.startswith(("s_waitcnt", "s_nop", "s_cbranch", "s_branch", "s_movk", "s_barrier")): return 4
    if op.startswith("s_memtime") or op.startswith("s_memrealtime"): return 8
    if op.startswith("s_"): return 8 if has_lit(s) else 4
    if op.startswith("v_cmp") and not op.endswith("_e64"): return (8 if has_lit(s) else 4) if s.split()[1] == "vcc," else 8
    if op == "v_cndmask_b32" and not s.endswith("vcc"): return 8
    if op in V4: return 8 if has_lit(s) else 4
    return 8
def align8(seg):
    off = 0; last4 = None
    seg = list(seg); i = 0
    while i <= len(seg):
        s = seg[i] if i < len(seg) else "v_pk_x"
        z = isz(s)
        if z == 8 and off % 8:
            if last4 is not None:
                op = seg[last4].split()[0]
                seg[last4] = seg[last4].replace(op, op + "_e64", 1); off += 4
            elif i == len(seg) or sum(1 for x in seg[i:i+5] if isz(x) == 8) == 5:
                if i < len(seg): print("pad before", s, file=sys.stderr)
                seg.insert(i, "s_nop 0"); off += 4; i += 1
        if z == 8: last4 = None
        if z == 4 and s.split()[0] in V4 and s.split()[0] != "v_readfirstlane_b32" and off % 8 == 0: last4 = i
        off += z; i += 1
    return seg
def xload(buf, kk): return f"buffer_load_dwordx4 a[{AX+16*buf+4*kk}:{AX+16*buf+4*kk+3}], v[0:1], s[4:7], 0 idxen offen offset:{16*kk}"
def chain(dst, blk, buf, c):
    L = [f"v_mfma_f32_32x32x8_bf16 v[{dst}:{dst+15}], a[{AW1C+2*blk}:{AW1C+2*blk+1}], a[{AEA+2*buf}:{AEA+2*buf+1}], v[{c}:{c+15}]"]
    for kk in range(4):
        w = AW1A + 16*blk + 4*kk; x = AX + 16*buf + 4*kk
        L.append(f"v_mfma_f32_32x32x16_bf16 v[{dst}:{dst+15}], a[{w}:{w+3}], a[{x}:{x+3}], v[{dst}:{dst+15}]")
    return L
def qchain(dst, blk, oh):
    L = [f"v_mfma_f32_32x32x8_bf16 v[{dst}:{dst+15}], a[{AB1}:{AB1+1}], v[{oh}:{oh+1}], 0"]
    for kk in range(4):
        w = AW1B + 16*blk + 4*kk; x = AX + 32 + 4*kk
        L.append(f"v_mfma_f32_32x32x16_bf16 v[{dst}:{dst+15}], a[{w}:{w+3}], a[{x}:{x+3}], v[{dst}:{dst+15}]")
    return L
def onehot(r, blk):
    c = "1.0" if blk & 1 else "s53"
    return [f"v_mov_b32 v{r+(blk>>1)}, {c}", f"v_mov_b32 v{r+1-(blk>>1)}, 0"]
def gemm2(blk, hb):
    L = []
    for p in range(2):
        for ob in range(2):
            w = AW2 + 4*((blk*2+p)*2+ob); o = T0 + 16*ob
            L.append(f"v_mfma_f32_32x32x16_bf16 v[{o}:{o+15}], a[{w}:{w+3}], v[{hb+4*p}:{hb+4*p+3}], v[{o}:{o+15}]")
    return L
def weave(ms, fill, cnts, extra=None):
    L = []; fill = list(fill)
    for k, m in enumerate(ms):
        L.append(m)
        if extra: L += extra.get(k, [])
        L += fill[:cnts[k]]; fill = fill[cnts[k]:]
    assert not fill
    return L
def repoll(tag, load, cmp):
    I(f"{tag}:", f"s_mov_b32 s3, {SPIN}", f"{tag}_L:", "s_sleep 4", load, "s_sub_u32 s3, s3, 1", "s_cbranch_scc1 K_END",
      "s_waitcnt vmcnt(0)", cmp, f"s_cbranch_vccnz {tag}_L", f"s_branch {tag}_RET")

def spread(ms, fill, tail=32, pre=None):
    pre = pre or {}
    L = []; fill = list(fill); n = len(ms)
    for k, m in enumerate(ms):
        while any(f == ("@", k) for f in fill):
            f = fill.pop(0)
            if f[0] != "@": L.append(f[0])
        L.append(m); L += pre.get(k, [])
        if k == n-1: break
        rem = sum(c for f, c in fill if f != "@")
        budget = max(24 if "x16" in m else 28, (rem - tail)/(n-1-k))
        budget -= sum(max(cost(x)-4, 0) if j == 0 else cost(x) for j, x in enumerate(pre.get(k, [])))
        used = 0
        while fill and (fill[0][0] == "@" or used + fill[0][1] <= budget + 3) and sum(c for f, c in fill if f != "@") > tail:
            f = fill.pop(0)
            if f[0] != "@": L.append(f[0]); used += f[1]
    L += [f for f, c in fill if f != "@"]
    return L
def cost(x):
    op = x.split()[0]
    if op.startswith(("v_exp", "v_rcp")): return 8
    if op.startswith("buffer_"): return 15
    if op.startswith("ds_write_b128"): return 14
    if op.startswith("ds_"): return 10
    return 4
def C(l): return [(x, cost(x)) for x in l]
def page(n):
    I(f"s_branch PG{n}", ".p2align 12", f"PG{n}:", "s_cbranch_execz K_WARM_RET", "s_nop 0")
def pk3(b, tc):
    n = NN+16*b; d = DD+16*b
    return [f"v_pk_fma_f32 v[{n+2*i}:{n+2*i+1}], v[{n+2*i}:{n+2*i+1}], v[{EE+2*i}:{EE+2*i+1}], v[{n+2*i}:{n+2*i+1}]" for i in range(8)] + \
           [f"v_pk_fma_f32 v[{n+2*i}:{n+2*i+1}], v[{tc+2*i}:{tc+2*i+1}], v[{d+2*i}:{d+2*i+1}], v[{n+2*i}:{n+2*i+1}]" for i in range(8)] + \
           [f"v_pk_fma_f32 v[{d+2*i}:{d+2*i+1}], v[{d+2*i}:{d+2*i+1}], v[{EE+2*i}:{EE+2*i+1}], v[{d+2*i}:{d+2*i+1}]" for i in range(8)]
def exps(tc): return [f"v_exp_f32 v{EE+i}, v{tc+i}" for i in range(16)]
def E0(b): return [f"v_exp_f32 v{DD+16*b+i}, v{NN+16*b+i}" for i in range(16)]
def A0(b): return [f"v_pk_add_f32 v[{DD+16*b+2*i}:{DD+16*b+2*i+1}], v[{DD+16*b+2*i}:{DD+16*b+2*i+1}], 1.0 op_sel_hi:[1,0]" for i in range(8)]
LB, RM, OA, OH3 = EE, EE+4, EE+5, EE+8
def R(b): return [f"v_rcp_f32 v{DD+16*b+i}, v{DD+16*b+i}" for i in range(16)]
def M(b): return [f"v_min3_f32 v{RM}, v{DD+16*b+2*i}, v{DD+16*b+2*i+1}, " + ("1.0" if b == 0 and i == 0 else f"v{RM}") for i in range(8)]
def U(b): return [f"v_pk_mul_f32 v[{NN+16*b+2*i}:{NN+16*b+2*i+1}], v[{NN+16*b+2*i}:{NN+16*b+2*i+1}], v[{DD+16*b+2*i}:{DD+16*b+2*i+1}]" for i in range(8)]
def V(b): return [f"v_cvt_pk_bf16_f32 v{NN+16*b+i}, v{NN+16*b+2*i}, v{NN+16*b+2*i+1}" for i in range(8)]
def G(b): return gemm2(b, NN+16*b)
def lbinit(r): return [f"v_cvt_f32_ubyte2 v{r+2}, v5", f"v_mov_b32 v{r+1}, 0", f"v_mov_b32 v{r+3}, 0", f"v_lshrrev_b32 v{r}, 16, v{r+2}"]
def binit(r): return [f"v_mfma_f32_32x32x8_bf16 v[{T0+16*ob}:{T0+16*ob+15}], v[14:15], v[{r+2*ob}:{r+2*ob+1}], 0" for ob in range(2)]
def dec2(lb):
    return [f"v_and_b32 v{OA}, s54, v5", f"v_add_u32 v0, s16, v{OA}", f"v_lshrrev_b32 v{OA}, 24, v5", f"v_cmp_eq_u32 vcc, s54, v{OA}",
            f"v_mul_u32_u24 v{OA}, s55, v{OA}", f"v_lshl_add_u32 v{OA}, v1, 1, v{OA}", f"v_mov_b32 v{OA+1}, s56",
            f"v_cndmask_b32 v{OA}, v{OA}, v{OA+1}, vcc", f"v_cndmask_b32 v0, v{OA+1}, v0, vcc",
            f"v_cmp_eq_u32 s[38:39], 0, v{lb+2}"]
SCL = [f"v_pk_mul_f32 v[{T0+2*i}:{T0+2*i+1}], v[{T0+2*i}:{T0+2*i+1}], s[24:25]" for i in range(16)]
def check(tag):
    return [f"v_cmp_class_f32 s[40:41], v{T0}, s58", f"v_cmp_lt_f32 vcc, s57, v{RM}", "s_nop 0", "s_andn2_b64 vcc, vcc, s[40:41]", "s_andn2_b64 s[40:41], vcc, s[38:39]",
            "s_cmp_eq_u64 s[40:41], -1", f"s_cbranch_scc0 {tag}", f"{tag}_RET:"]
DSW = [f"ds_write_b128 v{OA}, v[{T0+4*i}:{T0+4*i+3}] offset:{L_SPL+16*i}" for i in range(8)]
def ocvt(r): return [f"v_cvt_pk_bf16_f32 v{r+i}, v{T0+2*i}, v{T0+2*i+1}" for i in range(16)]
def ost(r): return [f"buffer_store_dwordx4 v[{r+4*i}:{r+4*i+3}], v[0:1], s[8:11], 0 idxen offen offset:{16*i}" for i in range(4)]
DEC1 = ["v_and_b32 v9, s54, v7", "v_bfe_u32 v10, v7, 8, 8", "v_mad_u32_u24 v2, v9, v6, s27", "v_and_b32 v11, 7, v9", "v_lshl_add_u32 v2, v10, 2, v2", "v_lshl_add_u32 v9, v9, 7, v8", "v_lshlrev_b32 v11, 4, v11",
        "v_bfe_u32 v3, v7, 16, 8", "v_xor_b32 v9, v9, v11", "v_xor_b32 v11, 16, v9", "v_xor_b32 v12, 32, v9", "v_xor_b32 v13, 48, v9"]
RD1 = ["ds_read_u16 v0, v2 offset:2"] + [f"ds_read_b128 a[{AX+32+4*k}:{AX+35+4*k}], v{(9,11,12,13)[k]}" for k in range(4)]
RD2 = ["ds_read_u16 v10, v2 offset:6", "ds_read_u16 v4, v2", "ds_read_u16 v13, v2 offset:4", "ds_read_u16 v11, v2 offset:10", "ds_read_u16 v12, v2 offset:14"]
RD3 = [f"ds_read_b64 a[{AEA}:{AEA+1}], v4", f"ds_read_b64 a[{AEA+2}:{AEA+3}], v13", "ds_read_u16 v4, v2 offset:8"]
LSET = ["s_max_u32 s20, s20, 2", "s_sub_u32 s37, s20, 3", "s_mov_b32 s19, 1"]

FI, FR = 192, 208
def kernel():
    K = NAME + "_kernel"
    lt = TP.bit_length() - 1
    assert L_W % 256 == 0 and L_X % 128 == 0
    I(".p2align 12", f".globl {K}", ".p2align 8", f".type {K},@function", f"{K}:")
    I("s_cmp_ge_u32 s2, 256", "s_cbranch_scc1 K_END0")
    stamp("start")
    I("s_load_dwordx16 s[64:79], s[0:1], 0", "s_load_dwordx4 s[80:83], s[0:1], 64", "s_load_dwordx2 s[12:13], s[0:1], 80")
    DST, SRC, EAR, AD, RK, P8, CP, WR = 64, 80, 96, 128, 144, 160, 176, 208
    if OPT["cw"]:
        I("s_getpc_b64 s[62:63]", "K_PC:", "s_bfe_u32 s3, s2, 0x30003", "v_and_b32 v2, 0xf8, v0", "v_add_lshl_u32 v2, v2, s3, 7",
          "v_min_u32 v2, K_END0-K_PC, v2", "global_load_dword v10, v2, s[62:63]")
    I("v_lshrrev_b32 v2, 6, v0", "v_and_b32 v6, 63, v0", "v_lshlrev_b32 v17, 2, v0", "v_readfirstlane_b32 s18, v2")
    I("v_mov_b32 v24, 0", f"ds_write_b32 v17, v24 offset:{L1_CNT}", "v_lshlrev_b32 v16, 4, v0", "v_lshlrev_b32 v4, 4, v6")
    I(f"s_mul_i32 s60, s2, {CH*4}", "s_mov_b32 s15, 0x20000", f"s_mov_b32 s14, {WS_SIZE}", f"s_mov_b32 s30, {E*4}", "s_mov_b32 s34, s30")
    for r in (31, 35, 43, 47, 51, 55, 59, 7, 11): I(f"s_mov_b32 s{r}, s15")
    I(f"s_mov_b32 s42, {132*256}", f"s_movk_i32 s46, {128*128}", f"s_mov_b32 s54, {E*8}", "s_movk_i32 s58, 256", f"s_mov_b32 s26, {N_NODES}", "s_mov_b32 s6, s26", "s_mov_b32 s10, s26")
    I("s_add_u32 s19, s60, 4096", "s_add_u32 s20, s60, 8192", f"s_add_u32 s21, s60, {(3072-192)*4}")
    I("v_mov_b32 v20, -1", "v_mov_b32 v21, -1", "v_mov_b32 v22, -1", "v_mov_b32 v23, -1")
    I("s_and_b32 s84, s2, 7", "s_lshl_b32 s84, s84, 5", "s_lshr_b32 s3, s2, 3", "s_add_u32 s84, s84, s3")
    I("s_mul_i32 s16, s84, 12800051", "s_add_u32 s16, s16, 0xffff", "s_add_u32 s17, s16, 12800051", "s_lshr_b32 s16, s16, 16", "s_lshr_b32 s17, s17, 16",
      "s_min_u32 s17, s17, s26", "s_sub_u32 s17, s17, s16", "s_mov_b32 s85, 85899")
    I("v_mov_b32 v29, 1", "v_lshlrev_b32 v18, 5, v0", "v_lshlrev_b32 v19, 3, v0", "v_lshlrev_b32 v43, 2, v6")
    I("v_subrev_u32 v45, 192, v0", f"v_cmp_gt_u32 vcc, {CH-3072}, v45", f"v_mov_b32 v45, {hex(BIG)}", "s_mov_b32 s39, 0x05040100", "v_cndmask_b32 v45, v45, v24, vcc")
    I(f"v_lshrrev_b32 v42, {lt-4}, v6", f"v_lshlrev_b32 v42, {lt+8}, v42", f"v_and_b32 v37, {TP-1}, v4", "v_add_u32 v42, v42, v37")
    I("v_lshrrev_b32 v1, 5, v6", "v_bfe_u32 v52, v6, 2, 2", "v_and_b32 v53, 3, v6", "v_bfe_u32 v54, v6, 4, 1",
      "v_lshlrev_b32 v55, 3, v53", "v_lshl_add_u32 v55, v54, 5, v55",
      "v_lshl_add_u32 v56, v52, 8, v55", "v_lshl_add_u32 v60, v1, 10, v56", f"v_add_u32 v60, {L_S}, v60",
      "v_lshl_add_u32 v56, v1, 13, v56", "v_lshl_add_u32 v56, v52, 6, v56", f"v_add_u32 v56, {L_W}, v56",
      "v_xor_b32 v57, 64, v56", "v_xor_b32 v58, 0x80, v56", "v_xor_b32 v59, 0xc0, v56",
      "v_lshl_add_u32 v61, v52, 6, v55", "v_lshl_add_u32 v61, v1, 8, v61", f"v_add_u32 v61, {L_S + 2048}, v61",
      "v_and_b32 v55, 1, v53", "v_lshlrev_b32 v55, 6, v55", "v_lshl_add_u32 v55, v54, 4, v55", "v_lshrrev_b32 v53, 1, v53", "v_lshl_add_u32 v55, v53, 3, v55",
      "v_lshl_add_u32 v62, v52, 7, v55", "v_lshl_add_u32 v62, v1, 9, v62",
      "v_and_b32 v52, 1, v52", "v_lshl_add_u32 v63, v52, 5, v55", "v_lshl_add_u32 v63, v1, 8, v63", f"v_add_u32 v63, {L_S + 2560}, v63",
      "v_lshlrev_b32 v1, 6, v1")
    I("s_cmp_lt_u32 s2, 64", "s_cselect_b32 s61, s18, 0", "s_cmp_lg_u32 s61, 1")
    I("s_waitcnt lgkmcnt(0)")
    I("s_mov_b64 s[28:29], s[70:71]")
    so = ("s60", "s19", "s20")
    for i in range(3): I(f"buffer_load_dwordx4 v[{DST+4*i}:{DST+4*i+3}], v16, s[28:31], {so[i]} offen")
    I(f"buffer_load_dword v{DST+12}, v17, s[28:31], s21 offen", "s_mov_b64 s[32:33], s[68:69]", "s_cbranch_scc1 R_NOT1")
    I("s_lshl_b32 s3, s2, 12", "s_lshl_b32 s36, s2, 6", f"s_add_u32 s36, s36, {FL_OFF}")
    for i in range(4): I(f"buffer_store_dwordx4 v[20:23], v4, s[12:15], s3 offen offset:{1024*i} sc1")
    I("s_mov_b64 exec, 15", "buffer_store_dwordx4 v[20:23], v4, s[12:15], s36 offen sc1", "s_mov_b64 exec, -1", "R_NOT1:")
    stamp("issued", lvl=2)
    for i in range(3): I(f"buffer_load_dwordx4 v[{SRC+4*i}:{SRC+4*i+3}], v16, s[32:35], {so[i]} offen")
    I(f"buffer_load_dword v{SRC+12}, v17, s[32:35], s21 offen", "s_barrier")
    I("s_mov_b64 s[40:41], s[72:73]", "s_mov_b64 s[44:45], s[76:77]", "s_mov_b64 s[52:53], s[66:67]", "s_mov_b64 s[56:57], s[82:83]",
      "s_mov_b32 s4, s64", "s_or_b32 s5, s65, 0x800000", "s_mov_b32 s8, s80", "s_or_b32 s9, s81, 0x800000")
    I("s_cmp_eq_u32 s18, 0", "s_cselect_b64 s[48:49], s[74:75], s[78:79]", "s_cselect_b32 s50, 2, 1", "s_lshl_b32 s50, s50, 7")
    wl = [[f"s_movk_i32 s3, {4096*i}", f"buffer_load_dwordx4 v[{WR+4*i}:{WR+4*i+3}], v16, s[40:43], s3 offen"] for i in range(8)]
    wl += [["s_mov_b32 s3, 0x8000", f"buffer_load_dword v{WR+32}, v17, s[40:43], s3 offen"], [f"buffer_load_dword v{WR+33}, v43, s[48:51], 0 offen"]]
    I("v_mov_b32 v25, 0", "v_mov_b32 v26, 0", "v_mov_b32 v27, 0", f"v_add_u32 v5, {L_NODE}, v16")
    for i in range(10): I(f"ds_write_b128 v5, v[24:27] offset:{4096*i}", *(wl[i-5] if i >= 5 else []))
    I("v_mov_b32 v28, 0x7e0000ff", "v_mov_b32 v3, 0xffff",
      "v_cmp_eq_u32 vcc, 2, v2", f"ds_write_b32 v17, v28 offset:{L_TBL}", f"v_mov_b32 v28, {hex(BIG)}", "v_cndmask_b32 v3, v24, v3, vcc",
      f"ds_write_b32 v17, v3 offset:{L_H1}", f"ds_write_b32 v17, v28 offset:{L_TB2}")
    I("v_and_b32 v3, 0x7c, v43", f"ds_write_b32 v3, v20 offset:{L1_KEY + CH*4}")
    I(f"s_mul_i32 s3, s2, {CHS*4}", f"s_add_u32 s3, s3, {KEY_OFF}", "s_add_u32 s28, s12, s3", "s_addc_u32 s29, s13, 0", f"s_movk_i32 s30, {(CH+19)*4}")
    I(f"s_mul_i32 s3, s2, {CHS*8}", f"s_add_u32 s3, s3, {EA_OFF}", "s_add_u32 s32, s12, s3", "s_addc_u32 s33, s13, 0", f"s_movk_i32 s34, {(CH+1)*8}")
    for r in ("s60", "s19", "s20", "s21"): I(f"s_lshl_b32 {r}, {r}, 1")
    I("s_lshl_b32 s38, s18, 12", f"s_add_u32 m0, s38, {L_W2}")
    I(f"s_mov_b32 s24, {NLOG2E}", f"s_mov_b32 s25, {NLOG2E}", "s_mov_b32 s27, 0xffff0000", "v_and_b32 v5, 0x300, v16", "v_lshrrev_b32 v5, 2, v5", "v_xor_b32 v5, v5, v16", f"v_add_u32 v5, {L_W}, v5")
    I(f"v_lshl_add_u32 v7, v2, 8, v17", f"v_add_u32 v7, {L_S + 2048}, v7", f"v_add_u32 v9, {L_S}, v17")
    I("s_cmp_lg_u32 s61, 1", "s_waitcnt vmcnt(14)", "s_cbranch_scc0 R_W", "s_waitcnt vmcnt(9)", "R_W:")
    stamp("dst", lvl=2)
    el = []
    for i in range(3): el += [f"buffer_load_dwordx4 v[{EAR+8*i}:{EAR+8*i+3}], v18, s[52:55], {so[i]} offen", f"buffer_load_dwordx4 v[{EAR+8*i+4}:{EAR+8*i+7}], v18, s[52:55], {so[i]} offen offset:16"]
    el.append(f"buffer_load_dwordx2 v[{EAR+24}:{EAR+25}], v19, s[52:55], s21 offen")
    q = wl[5:] + [[x] for x in el]
    for i in range(13):
        I(f"v_mul_u32_u24 v{AD+i}, s85, v{DST+i}", f"v_lshlrev_b32_sdwa v{AD+i}, 2, v{AD+i} dst_sel:DWORD dst_unused:UNUSED_PAD src0_sel:DWORD src1_sel:BYTE_3")
        if i == 12: I(f"v_or_b32 v{AD+i}, v45, v{AD+i}")
        I(f"ds_add_rtn_u32 v{RK+i}, v{AD+i}, v29 offset:{L1_CNT}")
        if i >= 8: I(*q.pop(0))
    I("s_waitcnt lgkmcnt(0)", "s_barrier")
    stamp("barA", lvl=3)
    perm = [f"v_perm_b32 v{DST+i}, v{SRC+i}, v{DST+i}, s39" for i in range(13)]
    I("s_cmp_eq_u32 s18, 0", "s_cbranch_scc1 K_SCAN")
    I(*el)
    I("s_and_b32 s3, s2, 3", "s_lshl_b32 s3, s3, 6", "s_cmp_eq_u32 s61, 1", "s_cselect_b32 s3, s3, 0x1000")
    I("s_waitcnt vmcnt(17)", "s_mov_b64 exec, 1", "buffer_atomic_add v29, v24, s[56:59], s3 offen", "s_mov_b64 exec, -1")
    I(*perm)
    I("s_cmp_eq_u32 s18, 1", "s_cbranch_scc1 PG1", "s_cmp_eq_u32 s18, 2", "s_cbranch_scc1 PG2", "s_branch PG3", "K_WARM_RET:", "s_barrier", "s_branch K_NOSCAN")
    I("K_SCAN:", f"ds_read_b128 v[32:35], v4 offset:{L1_CNT}", *el[:3]); I("s_waitcnt lgkmcnt(0)")
    I("v_add_u32 v38, v32, v33", "v_add_u32 v39, v38, v34", "v_add_u32 v41, v39, v35", "v_mov_b32 v36, v41")
    scan64(36)
    I("v_sub_u32 v36, v36, v41", "v_add_u32 v37, v36, v32", "v_add_u32 v38, v36, v38", "v_add_u32 v39, v36, v39")
    I(f"ds_write_b128 v4, v[36:39] offset:{L1_BASE}")
    for i in range(4): I(f"v_lshl_or_b32 v{32+i}, v{32+i}, 16, v{36+i}")
    I("s_waitcnt lgkmcnt(0)", "s_barrier", *el[3:]); I("s_movk_i32 s3, 0x1000", "s_waitcnt vmcnt(17)", "buffer_load_dword v20, v43, s[56:59], s3 offen", *perm)
    I("K_NOSCAN:")
    stamp("barB", lvl=3)
    for i in range(13): I(f"ds_read_b32 v{AD+i}, v{AD+i} offset:{L1_BASE}")
    for i in range(13):
        if i in (0, 6): I(f"s_waitcnt lgkmcnt({7 if i == 0 else 6})")
        I(f"v_add_lshl_u32 v{AD+i}, v{AD+i}, v{RK+i}, 2")
        if i == 12: I(f"v_or_b32 v{AD+i}, v45, v{AD+i}")
        I(f"ds_write_b32 v{AD+i}, v{DST+i} offset:{L1_KEY}")
    for i in range(13): I(f"v_lshlrev_b32 v{P8+i}, 1, v{AD+i}")
    I("s_waitcnt lgkmcnt(0)", "s_barrier")
    stamp("barC", lvl=2)
    for i in range(4): I(f"ds_read_b128 v[{CP+4*i}:{CP+4*i+3}], v16 offset:{L1_KEY+4096*i}")
    for i in range(4): I(f"s_movk_i32 s3, {4096*i}", f"s_waitcnt lgkmcnt({3-i})", f"buffer_store_dwordx4 v[{CP+4*i}:{CP+4*i+3}], v16, s[28:31], s3 offen sc1")
    F1LD = "buffer_load_dword v20, v43, s[56:59], s37 offen sc1"
    F1CMP = "v_cmp_lt_u32 vcc, v20, v22"
    I("s_cmp_eq_u32 s18, 2", "s_cselect_b32 s37, 0, 0x1000", "s_waitcnt vmcnt(12)", ".p2align 3")
    for i in range(34):
        if i == OPT.get("pb", 12):
            I("s_branch PG1E")
            I(".p2align 12", "PG1:", "s_branch K_WARM_RET", "s_nop 0", "PG1E:")
        t = 64 + 2*(i % 4) if i < 32 else 72 + 2*(i-32)
        I(f"v_lshlrev_b32 v{t}, 16, v{WR+i}", f"v_and_b32 v{t+1}, s27, v{WR+i}", f"v_pk_mul_f32 v[{t}:{t+1}], v[{t}:{t+1}], s[24:25]", f"v_cvt_pk_bf16_f32 v{WR+i}, v{t}, v{t+1}")
        if i % 4 == 3: I(f"ds_write_b128 v5, v[{WR+i-3}:{WR+i}] offset:{1024*(i-3)}")
        if i == 13: I(F1LD)
        if i in (17, 21, 25, 29): I(f"buffer_load_dwordx4 v4, s[44:47], s38 offen offset:{256*(i-17)} lds")
    I(f"ds_write_b32 v9, v{WR+32}", f"ds_write_b32 v7, v{WR+33}")
    for i in (32, 33):
        t = 72 + 2*(i-32)
        I(f"v_lshlrev_b32 v64, 16, v{WR+i}", f"v_and_b32 v65, s27, v{WR+i}", f"v_sub_f32 v64, v{t}, v64", f"v_sub_f32 v65, v{t+1}, v65", f"v_cvt_pk_bf16_f32 v{66+i-32}, v64, v65")
    I("ds_write_b32 v9, v66 offset:1024", "ds_write_b32 v7, v67 offset:256")
    stamp("wdone", lvl=3)
    I("s_waitcnt vmcnt(10)")
    stamp("ea_in", lvl=3)
    TABLD = "buffer_load_dword v8, v3, s[12:15], s36 offen sc1"
    TABA = [f"s_lshr_b32 s36, s84, {lt-2}", f"s_lshl_b32 s36, s36, {lt+8}", f"s_and_b32 s3, s84, {TP//4-1}", "s_lshl2_add_u32 s36, s3, s36"]
    cst = TABA + [f"v_lshlrev_b32 v3, {lt}, v0"] + [f"s_mov_b32 s{40+i}, {16384 + 8192*i}" for i in range(5)]
    cst += ["s_lshl_b32 s23, s18, 11", "v_and_b32 v48, 0x380, v4", "v_bfe_u32 v49, v6, 2, 1", "v_lshl_add_u32 v48, v49, 10, v48", "v_and_b32 v30, 48, v4",
            "v_lshl_add_u32 v48, v30, 1, v48", "v_add_u32 v48, s23, v48", "v_add_u32 v49, 8, v48", "v_add_u32 v50, 16, v48", "v_add_u32 v51, 24, v48",
            f"s_mul_i32 s22, s16, {NS}", f"s_sub_u32 s22, {L_NODE}, s22", f"v_mov_b32 v28, {NS}",
            f"s_mov_b32 s24, {NLN2}", f"s_mov_b32 s25, {NLN2}", f"s_mov_b32 s50, {KEY_OFF}", f"s_mov_b32 s51, {EA_OFF}", f"s_mov_b32 s52, {FL_OFF}",
            "v_add_u32 v31, 2.0, v30", f"v_mul_u32_u24 v44, {CHS}, v0", "v_and_b32 v26, 0x70, v4", "v_add_u32 v27, 0x80000000, v26",
            "v_lshrrev_b32 v46, 3, v0", "v_lshlrev_b32 v47, 4, v46", "v_xor_b32 v47, v47, v4", "v_and_b32 v47, 0x70, v47", "v_add_u32 v46, s16, v46",
            "s_lshl_b32 s62, s18, 10", f"s_add_u32 s62, s62, {L_X}", "s_cmp_eq_u32 s18, 0", "s_mov_b32 s63, 0x3f000", f"s_cselect_b32 s63, {L_X + 6*4096}, s63",
            "v_and_b32 v22, 0xcf, v0", "v_cmp_eq_u32 vcc, 0x80, v22", f"s_lshl_b32 s60, s2, {lt}", "s_lshl_b32 s61, s2, 4", "v_cndmask_b32_e64 v22, 0, 16, vcc", f"s_add_u32 s61, s61, {FL_OFF}"]
    for i in range(13): I(f"ds_write_b64 v{P8+i}, v[{EAR+2*i}:{EAR+2*i+1}] offset:{L1_EA}", *cst[4*i:4*i+4])
    assert len(cst) <= 52
    I("s_waitcnt vmcnt(0)", F1CMP, "s_cbranch_vccnz K_F1", "K_F1_RET:")
    I("s_cmp_lg_u32 s18, 0", "s_waitcnt lgkmcnt(0)", "s_barrier")
    stamp("barD", lvl=2)
    I("s_cbranch_scc1 K_NOTAB", "buffer_store_dwordx4 v[32:35], v42, s[12:15], s60 offen sc1", "K_NOTAB:")
    for i in range(7): I(f"ds_read_b128 v[{CP+4*i}:{CP+4*i+3}], v16 offset:{L1_EA+4096*i}")
    for i in range(7): I(f"s_movk_i32 s3, {4096*i}", f"s_waitcnt lgkmcnt({6-i})", f"buffer_store_dwordx4 v[{CP+4*i}:{CP+4*i+3}], v16, s[32:35], s3 offen sc1")
    stamp("eaout", lvl=3)
    tr = []
    for f in range(16):
        for jh in range(2): tr.append(f"ds_read_b64_tr_b16 a[{AW2+4*f+2*jh}:{AW2+4*f+2*jh+1}], v62 offset:{L_W2 + (16*(f>>1) + 8*jh)*128 + 32*(f&1)}")
    for f in range(32):
        for jh in range(2): tr.append(f"ds_read_b64_tr_b16 a[{AW1A+4*f+2*jh}:{AW1A+4*f+2*jh+1}], v{56+((f>>2)&3)} offset:{(64*(f>>4) + 8*(f&3) + 4*jh)*256}")
    for b in range(4): tr.append(f"ds_read_b64_tr_b16 a[{AW1C+2*b}:{AW1C+2*b+1}], v60 offset:{64*b}")
    tr += [f"ds_read_b64_tr_b16 a[{AB1}:{AB1+1}], v61", "ds_read_b64_tr_b16 v[14:15], v63"]
    I(*tr[:OPT["ntr"]]); I(TABLD); I(*tr[OPT["ntr"]:])
    stamp("trdone", lvl=3)
    for w in range(2): I(f"s_cmp_eq_u32 s18, {w+2}", f"s_cbranch_scc1 PG{w+4}")
    I("K_WARM_RET2:")
    I("s_cmp_lg_u32 s18, 1", f"s_waitcnt vmcnt(1) lgkmcnt(0)", "s_barrier")
    stamp("barE", lvl=2)
    I("s_cbranch_scc1 K_NOF3", "s_mov_b64 exec, 1", "buffer_store_dword v24, v24, s[12:15], s61 offen sc1", "s_mov_b64 exec, -1",
      "s_waitcnt vmcnt(1)", "s_branch K_F3D", "K_NOF3:", "s_waitcnt vmcnt(0)", "K_F3D:")
    I("v_cmp_eq_u32 vcc, -1, v8", "s_cbranch_vccnz K_TAB", "K_TAB_RET:")
    stamp("tab", lvl=2)
    I("v_and_b32 v33, 0xffff, v8", "v_add_lshl_u32 v32, v44, v33, 2", "v_lshrrev_b32 v33, 16, v8", "v_subrev_u32 v33, 16, v33")
    KEY, AD, RK, O4, O8 = 64, 96, 128, 52, 160
    xd = [[f"s_add_u32 m0, s62, {4096*i}" if i < 6 else "s_mov_b32 m0, s63", "v_add_u32 v46, 32, v46" if i else "s_nop 0",
           "buffer_load_dwordx4 v[46:47], s[4:7], 0 idxen offen lds"] for i in range(7)]
    def compact(dst):
        I("v_cmp_lt_i32 vcc, 0, v33", "s_nop 1", "v_mbcnt_lo_u32_b32 v35, vcc_lo, 0", "v_mbcnt_hi_u32_b32 v35, vcc_hi, v35",
          "v_cmp_gt_u32 s[36:37], 16, v35", "v_lshlrev_b32 v35, 4, v35", "s_nop 0", "s_and_b64 vcc, vcc, s[36:37]",
          "v_cndmask_b32 v35, 4, v35, vcc", f"ds_permute_b32 v{dst}, v35, v34",
          "v_cndmask_b32_e64 v35, 0, 16, vcc", "v_sub_u32 v33, v33, v35", "v_lshl_add_u32 v34, v35, 2, v34")
    def octets(src, its, off, o8):
        I(f"v_lshlrev_b32 v39, 1, v{src}", f"v_lshlrev_b32 v37, 1, v{src}", f"v_lshlrev_b32 v38, 1, v{src}", "s_nop 0",
          "v_mov_b32_dpp v37, v39 row_shr:4 row_mask:0xf bank_mask:0xa", "v_mov_b32_dpp v38, v39 row_shl:4 row_mask:0xf bank_mask:0x5", "s_nop 0")
        for n, i in enumerate(its):
            for h in range(2): I(f"v_add_u32_dpp v{o8+2*n+h}, v{37+h}, v{off} quad_perm:[{i},{i},{i},{i}] row_mask:0xf bank_mask:0xf")
    for i in range(4):
        I(f"v_add_u32_dpp v{O4+i}, v32, v30 quad_perm:[{i},{i},{i},{i}] row_mask:0xf bank_mask:0xf",
          f"buffer_load_dwordx4 v[{KEY+4*i}:{KEY+4*i+3}], v{O4+i}, s[12:15], s50 offen sc1")
    I(f"v_add_u32 v34, 0xc0000040, v32")
    compact(36)
    octets(32, range(4), 26, O8)
    I("s_waitcnt lgkmcnt(0)", f"v_add_u32_dpp v{O4+4}, v36, v31 quad_perm:[0,0,0,0] row_mask:0xf bank_mask:0xf",
      f"buffer_load_dwordx4 v[{KEY+16}:{KEY+19}], v{O4+4}, s[12:15], s50 offen sc1")
    octets(36, [0], 27, O8+8)
    I(f"v_bfe_i32 v{O4+4}, v{O4+4}, 30, 1")
    I(f"v_mul_u32_u24 v21, {NS}, v0", f"v_add_u32 v21, {L_NODE}, v21", "v_cmp_gt_u32 s[38:39], s17, v0")
    I("s_sub_u32 s27, 256, s17", "s_sub_u32 s19, s27, 32")
    I("v_bfe_u32 v35, v6, 4, 1", "v_lshlrev_b32 v35, 4, v35", f"v_xor_b32 v{FI+1}, v35, v26")
    for j in range(1, 8): I(f"v_xor_b32 v{FI+1+2*j}, {32*(j&3)}, v{FI+1}")
    I("v_and_b32 v35, 3, v6", f"v_mul_u32_u24 v{FR}, 0x420, v35", "v_bfe_u32 v35, v6, 2, 3", f"v_lshl_add_u32 v{FR}, v35, 7, v{FR}", "v_bfe_u32 v35, v6, 3, 1",
      f"v_lshl_add_u32 v{FR}, v35, 4, v{FR}", f"v_xor_b32 v{FR}, v{FR}, v1", "s_lshl_b32 s45, s18, 13", f"s_add_u32 s45, s45, {L_W}", f"v_add_u32 v{FR}, s45, v{FR}")
    for k in range(1, 4): I(f"v_xor_b32 v{FR+k}, {16*k}, v{FR}")
    I("v_and_b32 v20, 31, v6", "s_lshl_b32 s3, s18, 7", "v_lshl_add_u32 v57, v20, 2, s3", "v_and_b32 v59, 0x38, v6", "v_lshl_add_u32 v59, v59, 1, s3",
      "s_sub_u32 s3, 896, s3", "v_lshl_add_u32 v58, v20, 2, s3")
    F3LD = "buffer_load_dword v9, v16, s[12:15], s52 offen sc1"
    def phaseB(k, a, r, sreg, m=None):
        if m:
            for j in range(4): I(f"v_or_b32 v{k+j}, v{m}, v{k+j}")
        for j in range(4): I(f"v_mad_u32_u16 v{a+j}, v{k+j}, v28, s22")
        for j in range(4):
            I(f"ds_add_rtn_u32 v{r+j}, v{a+j}, v29",
              f"v_add_u32_sdwa v{k+j}, v{48+j}, s{sreg} dst_sel:WORD_0 dst_unused:UNUSED_PRESERVE src0_sel:DWORD src1_sel:DWORD")
    def phaseC(k, a, r):
        L = []
        for j in range(4): L += [f"v_min_u32 v{r+j}, {CAP-1}, v{r+j}", f"v_lshl_add_u32 v{a+j}, v{r+j}, 2, v{a+j}", f"ds_write_b32 v{a+j}, v{k+j} offset:4"]
        return L
    def eadma(o, base, imm): return [f"s_add_u32 m0, {base}, {imm}", "s_nop 0", f"buffer_load_dwordx4 v{o}, s[12:15], s51 offen sc1 lds"]
    ea = [eadma(O8+n, "s23", 16384 + 8192*(n>>1) + 1024*(n&1)) for n in range(10)]
    nx = [0, 1, 2, 2, 2]; done = 0; q = list(xd)
    for i in range(5):
        I(f"s_waitcnt vmcnt({4 - i + done})")
        if i == 0: stamp("key0", lvl=2); I(F3LD); done += 1
        for k in range(nx[i]): I(*q.pop(0)); done += 1
        phaseB(KEY+4*i, AD+4*i, RK+4*i, 40+i, O4+4 if i == 4 else None)
    I("v_cmp_lt_i32 vcc, 0, v33", "s_cbranch_vccnz K_MORE", "K_MORE_RET:", "s_branch PG2E")
    repoll("K_F1", F1LD, F1CMP)
    repoll("K_TAB", TABLD, "v_cmp_eq_u32 vcc, -1, v8")
    I(".p2align 12", "PG2:", "s_branch K_WARM_RET")
    repoll("K_F3", F3LD, "v_cmp_eq_u32 vcc, -1, v9")
    I("PG2E:", "s_waitcnt lgkmcnt(0)", "s_barrier")
    stamp("bar1", lvl=2)
    I("s_mov_b64 exec, s[38:39]", "ds_read_b32 v20, v21", "s_mov_b64 exec, -1")
    I("s_waitcnt vmcnt(7)", "v_cmp_eq_u32 vcc, -1, v9", "s_cbranch_vccnz K_F3", "K_F3_RET:")
    stamp("f3", lvl=3)
    I(*(ea[0] + ea[1]))
    I("s_waitcnt lgkmcnt(0)", "s_mov_b64 exec, s[38:39]")
    I(f"v_cmp_lt_u32 vcc, {CAP}, v20", "v_min_u32 v20, 63, v20", "v_sub_u32 v22, 63, v20", "v_lshlrev_b32 v22, 2, v22",
      f"ds_add_rtn_u32 v23, v22, v29 offset:{L_H1}")
    I("s_cbranch_vccz K_A1", f"ds_write_b32 v24, v29 offset:{L_FLAG}", "K_A1:")
    I("s_mov_b64 exec, -1")
    I(*(ea[2] + ea[3]))
    I("s_waitcnt lgkmcnt(0)", "s_barrier")
    I(f"ds_read_b32 v25, v43 offset:{L_H1}")
    I(*phaseC(KEY, AD, RK))
    I("s_waitcnt lgkmcnt(4)", "v_mov_b32 v46, v25")
    scan64(46, phaseC(KEY+4, AD+4, RK+4))
    I("v_sub_u32 v46, v46, v25", "ds_bpermute_b32 v46, v22, v46")
    I("v_lshrrev_b32 v30, 1, v20", "v_cmp_lt_u32 s[36:37], 26, v20")
    I(*(ea[4] + ea[5]))
    I("s_waitcnt lgkmcnt(0)")
    I("v_add_u32 v23, v23, v46", "v_cmp_gt_u32 vcc, s19, v23", "v_lshlrev_b32 v33, 1, v23", "v_lshlrev_b32 v34, 2, v23",
      "v_cndmask_b32_e64 v31, 8, 10, vcc", "v_cndmask_b32 v31, v31, v30, s[36:37]")
    I("v_cmp_gt_u32 vcc, s27, v23", "v_cmp_gt_u32 s[36:37], v20, v31", "v_mov_b32 v35, 0xff", "v_sub_u32 v37, 63, v31",
      "s_and_b64 vcc, vcc, s[36:37]", "s_and_b64 vcc, vcc, s[38:39]")
    I("v_cndmask_b32 v32, 0, v31, vcc", "v_sub_u32 v32, v20, v32", "v_sub_u32 v36, 63, v32", "v_lshlrev_b32 v36, 2, v36", "v_lshlrev_b32 v37, 2, v37")
    I("s_mov_b64 exec, s[38:39]", f"ds_add_rtn_u32 v38, v36, v29 offset:{L_H2}")
    I("s_mov_b64 exec, vcc", f"ds_add_rtn_u32 v39, v37, v29 offset:{L_H2}", "v_add_u32 v47, s16, v0", f"ds_write_b32 v34, v47 offset:{L_SN}")
    I("s_mov_b64 exec, -1", "v_cndmask_b32 v35, v35, v33, vcc")
    I("v_lshl_or_b32 v48, v35, 8, v32", "v_lshl_or_b32 v48, v48, 16, v0")
    I("v_or_b32 v33, 1, v33", "v_lshl_or_b32 v49, v33, 8, v31", "v_lshl_or_b32 v49, v49, 8, v32", "v_lshl_or_b32 v49, v49, 8, v0", "v_lshl_add_u32 v50, v32, 2, v21")
    I(*(ea[6] + ea[7]))
    I("s_waitcnt lgkmcnt(0)", "s_barrier")
    stamp("bar3", lvl=3)
    I(f"ds_read_b32 v25, v43 offset:{L_H2}"); I(*phaseC(KEY+8, AD+8, RK+8)); I("s_waitcnt lgkmcnt(4)", "v_mov_b32 v46, v25")
    scan64(46, phaseC(KEY+12, AD+12, RK+12))
    I("v_sub_u32 v46, v46, v25", "ds_bpermute_b32 v36, v36, v46", "ds_bpermute_b32 v37, v37, v46")
    I(*phaseC(KEY+16, AD+16, RK+16))
    I("s_waitcnt lgkmcnt(4)", "v_add_lshl_u32 v36, v36, v38, 2", "v_add_lshl_u32 v37, v37, v39, 2")
    o0 = L_TBL // 256
    I("s_mov_b64 exec, s[38:39]", f"ds_write2st64_b32 v36, v48, v21 offset0:{o0} offset1:{o0+4}", "s_mov_b64 exec, vcc", f"ds_write2st64_b32 v37, v49, v50 offset0:{o0} offset1:{o0+4}",
      "s_mov_b64 exec, -1")
    I(*(ea[8] + ea[9]))
    def first_tail(b0):
        seg = []
        for b in range(b0, 4):
            if b < 3: seg += weave(chain(NN+16*(b+1), b+1, 0, QQ+16*(b+1)), E0(b), (3,3,3,3,4), {3: ["s_waitcnt lgkmcnt(0)"], 4: ["s_barrier"]} if b == 2 else None)
            else: seg += weave(chain(T0, 0, 1, QQ), E0(b), (3,3,3,3,4), {0: [xload(0, 0)], 4: [xload(0, 1), "v_cmp_lt_u32 vcc, s19, v3"]})
            seg += A0(b)
        return seg
    I("s_mov_b32 s21, 0", "s_mov_b32 s27, %d" % (L_NODE+4), "s_movk_i32 s53, 0x3f80", "s_movk_i32 s54, 0xff", f"s_movk_i32 s55, {SPL_S}",
      f"s_mov_b32 s56, {hex(BIG)}", f"s_mov_b32 s57, {f32(2.0**-100)}", "s_movk_i32 s58, 0x207", f"v_mov_b32 v6, {NS}", f"v_add_u32 v8, {L_X}, v1")
    I("s_waitcnt vmcnt(10) lgkmcnt(0)", "s_barrier")
    stamp("bar4", lvl=2)
    I(f"ds_read_b128 v[20:23], v59 offset:{L_TB2}", f"ds_read_b32 v7, v57 offset:{L_TBL}", f"ds_read_b32 v25, v58 offset:{L_TBL}", f"ds_read_b32 v24, v24 offset:{L_FLAG}")
    for b in range(4): I(*onehot(EE+2*b, b))
    for k in range(4): I(f"v_mov_b32 v{26+k}, v{FR+k}")
    I("s_waitcnt lgkmcnt(3)")
    for j in range(8): I(f"ds_read_u16 v{FI+2*j}, v{20+(j&3)} offset:{6 + 4*(j>>2)}")
    I("s_waitcnt lgkmcnt(8)"); I(*DEC1); I(*RD1[1:])
    I("s_waitcnt lgkmcnt(8)")
    for j in range(8):
        I(f"s_add_u32 m0, s45, {1024*j}", "s_waitcnt lgkmcnt(4)" if j == 4 else RD2[1+j-5] if j > 4 else "s_nop 0", f"buffer_load_dwordx4 v[{FI+2*j}:{FI+2*j+1}], s[4:7], 0 idxen offen lds")
    I(RD2[4], "v_cmp_ne_u32 vcc, 0, v24", "v_readfirstlane_b32 s20, v3", "v_mov_b32 v5, v7", "v_mov_b32 v7, v25", *LSET)
    I("s_waitcnt lgkmcnt(0)", "v_mov_b32 v0, v11", "s_cbranch_vccnz K_SLOW", ".p2align 3")
    stamp("q1")
    q = sum([qchain(QQ+16*b, b, EE+2*b) for b in range(4)], [])
    sr = [f"ds_read_b128 a[{AX+4*k}:{AX+4*k+3}], v{26+(k&3)} offset:{4096*(k>>2)}" for k in range(8)]
    I(*weave(q, [], [0]*20, {14: ["s_waitcnt vmcnt(4)", "s_barrier"], 15: [RD3[0]], 16: sr[0:2], 17: sr[2:4], 18: [RD3[1]], 19: [RD3[2]]}))
    I("s_waitcnt vmcnt(0) lgkmcnt(2)", "s_nop 0")
    c0 = chain(NN, 0, 0, QQ)
    I(c0[0], sr[4], c0[1], xload(2, 0), sr[5], c0[2], xload(2, 1), sr[6], c0[3], xload(2, 2), sr[7], c0[4], xload(2, 3))
    I("s_nop 8", "v_mov_b32 v0, v12")
    I(*align8(first_tail(0)))
    stamp("loop1")
    if OPT["stamp"]: I("s_mov_b32 s62, s20")
    I("s_branch K_A0")
    I(".p2align 12", "PG3:", "s_branch K_WARM_RET", "s_nop 0", "K_LOOP:")
    def partA(t):
        cur = (1+t) % 3; nxt = (2+t) % 3; prv = t % 3
        seg = []
        for b in range(3):
            tc = T0 + 16*(b % 2); tn = T0 + 16*((b+1) % 2)
            if b == 0: extra = {0: [xload(prv, 2)], 1: ["s_mov_b64 exec, vcc"], 4: [xload(prv, 3)]}
            elif b == 1: extra = {0: [f"ds_read_u16 v0, v2 offset:{4*(t+4)+2}"], 1: ["s_cmp_lt_i32 s19, s37"], 2: ["s_cselect_b32 s6, s26, 0"],
                                  3: ["s_waitcnt lgkmcnt(1)"], 4: [f"ds_read_b64 a[{AEA+2*nxt}:{AEA+2*nxt+1}], v4"]}
            else: extra = {0: [f"ds_read_u16 v4, v2 offset:{4*(t+3)}"], 1: ["s_add_u32 s19, s19, 1"], 2: ["s_cmp_ge_u32 s19, s20"], 3: ["s_waitcnt vmcnt(4) lgkmcnt(1)"],
                           4: ["s_cbranch_scc1 K_EXIT" if t < 2 else "s_cbranch_scc0 K_LOOP"]}
            ms = chain(tn, b+1, cur, QQ+16*(b+1))
            if b < 2: seg += weave(ms, exps(tc), (3,3,3,3,4), extra) + pk3(b, tc)
            else: seg += weave(ms, exps(tc)[:12], (3,3,3,3,0), extra)
        return seg
    def partB(t):
        cur = (1+t) % 3; nxt = (2+t) % 3
        seg = ["v_cmp_lt_u32 vcc, s19, v3"] + (["v_add_u32 v2, 12, v2"] if t == 2 else []) + exps(T0)[12:] + pk3(2, T0)
        seg += weave(chain(T0, 0, nxt, QQ), exps(T1), (3,3,3,3,4), {0: [xload(cur, 0)], 4: [xload(cur, 1)]}) + pk3(3, T1)
        return seg
    I(*align8(partB(2)))
    I("K_A0:")
    I(*align8(partA(0) + partB(0) + partA(1) + partB(1) + partA(2))[:-1])
    I("K_EXIT:", "s_cmp_lg_u32 s21, 0", "s_cbranch_scc1 K_LAST", "s_branch K_MID")
    I(".p2align 12", "PG4:", "s_branch K_WARM_RET2", "s_nop 0", "K_MID:")
    stamp("exit1")
    OH = QQ+48
    seg = exps(T0)[12:] + ["s_mov_b64 s[60:61], exec", "s_mov_b64 exec, -1"] + ["s_waitcnt vmcnt(0)"] + DEC1 + RD1 + RD2
    seg += onehot(OH, 0) + ["v_readfirstlane_b32 s20, v3", "s_mov_b32 s6, s26", "s_mov_b64 exec, s[60:61]"] + pk3(2, T0) + ["s_waitcnt lgkmcnt(5)", "s_mov_b64 exec, -1"]
    seg += weave(qchain(QQ, 0, OH), exps(T1), (3,3,3,3,4), {0: [xload(0, 0)], 1: [LSET[0]], 2: [xload(0, 1)], 3: [xload(0, 2)],
                                                             4: [xload(0, 3)] + onehot(OH+2, 1) + ["s_mov_b64 exec, s[60:61]"]})
    seg += pk3(3, T1) + ["s_mov_b64 exec, -1", "s_waitcnt lgkmcnt(0)"]
    seg += spread(qchain(QQ+16, 1, OH+2) + binit(LB), C(["v_mov_b32 v0, v10"] + lbinit(LB) + R(0) + onehot(OH+4, 2) + M(0)),
                  pre={1: [xload(1, 0)], 2: [xload(1, 1)], 3: [xload(1, 2)], 4: [xload(1, 3)], 5: [LSET[1]]}) + U(0)
    seg += spread(qchain(QQ+32, 2, OH+4) + G(0), C(V(0) + R(1) + onehot(OH3, 3) + M(1)), pre={1: [RD3[0]], 2: [RD3[1]], 3: [RD3[2]], 4: [LSET[2]], 5: ["s_mov_b32 s21, 1"]}) + U(1)
    seg += spread(qchain(QQ+48, 3, OH3) + G(1), C(V(1) + ["v_mov_b32 v0, v11"] + R(2) + M(2)),
                  pre={4: ["s_waitcnt vmcnt(4) lgkmcnt(0)"], 5: [xload(2, 0)], 6: [xload(2, 1)], 7: [xload(2, 2)], 8: [xload(2, 3)]}) + U(2)
    seg += spread(chain(NN, 0, 0, QQ) + G(2), C(V(2) + R(3) + M(3))) + U(3)
    seg += spread(chain(NN+16, 1, 0, QQ+16) + G(3), C(V(3) + dec2(LB) + E0(0))) + A0(0) + SCL
    seg += check("K_RARE_A")
    seg += spread(chain(NN+32, 2, 0, QQ+32), C(E0(1)[:4] + DSW[:2] + E0(1)[4:8] + DSW[2:4] + E0(1)[8:]), pre={1: [DSW[4]], 2: [DSW[5]], 3: [DSW[6]], 4: [DSW[7]]}) + A0(1)
    o = ocvt(EE); st = ost(EE)
    seg += spread(chain(NN+48, 3, 0, QQ+48), C(o[:4] + [("@")] * 0 + E0(2)[:2] + o[4:8] + E0(2)[2:4] + o[8:12] + E0(2)[4:6] + o[12:] + E0(2)[6:8]) + [("@", 4)] + C(E0(2)[8:]),
                  pre={4: st + ["v_mov_b32 v5, v7", "s_waitcnt vmcnt(8)"]}) + A0(2) + ["v_mov_b32 v0, v12"]
    seg += first_tail(3)
    I(*align8(seg))
    stamp("loop2")
    if OPT["stamp"]: I("s_mov_b32 s63, s20")
    I("s_branch K_A0")
    I(".p2align 12", "PG5:", "s_branch K_WARM_RET2", "s_nop 0", "K_LAST:")
    stamp("exit2")
    L2 = QQ
    seg = exps(T0)[12:] + pk3(2, T0) + exps(T1) + pk3(3, T1) + ["s_mov_b64 exec, -1"] + lbinit(LB)
    seg += R(0)[:2] + weave(binit(LB), R(0)[2:], (4, 10)) + U(0) + V(0)
    for b in range(3): seg += weave(G(b), R(b+1), (3,3,3,7)) + U(b+1) + V(b+1)
    seg += spread(G(3), C(M(0) + M(1) + M(2) + M(3) + dec2(LB)), tail=48) + SCL + check("K_RARE_B") + DSW + ocvt(QQ) + ost(QQ)
    I(*align8(seg))
    stamp("tail")
    I("v_mbcnt_lo_u32_b32 v6, -1, 0", "v_mbcnt_hi_u32_b32 v6, -1, v6", "s_lshl_b32 s3, s18, 6", "v_add_u32 v6, s3, v6")
    I("v_and_b32 v2, 0xfc, v6", "v_and_b32 v3, 3, v6", f"v_mul_u32_u24 v4, {SPL_S//2}, v2", "v_lshl_add_u32 v4, v3, 6, v4", "v_lshlrev_b32 v11, 5, v3", "v_mov_b32 v9, 0")
    I("s_waitcnt lgkmcnt(0)", "s_barrier")
    I(f"ds_read_b32 v9, v9 offset:{L_FLAG}", f"ds_read_b32 v10, v2 offset:{L_SN}")
    for i in range(4): I(f"ds_read_b128 v[{16+4*i}:{19+4*i}], v4 offset:{L_SPL+16*i}", f"ds_read_b128 v[{32+4*i}:{35+4*i}], v4 offset:{L_SPL+SPL_S+16*i}")
    I("s_waitcnt lgkmcnt(4)", "v_cmp_ne_u32 vcc, 0, v9")
    for h in range(2):
        if h: I("s_waitcnt lgkmcnt(0)")
        for i in range(4*h, 4*h+4): I(f"v_pk_add_f32 v[{16+2*i}:{17+2*i}], v[{16+2*i}:{17+2*i}], v[{32+2*i}:{33+2*i}]")
        for i in range(4*h, 4*h+4): I(f"v_cvt_pk_bf16_f32 v{48+i}, v{16+2*i}, v{17+2*i}")
        I(f"buffer_store_dwordx4 v[{48+4*h}:{51+4*h}], v[10:11], s[8:11], 0 idxen offen offset:{16*h}")
    I("s_cbranch_vccnz K_SLOW")
    if OPT["diag"]:
        I("s_mov_b32 s52, 0", "K_SPIN:", "s_memrealtime s[54:55]", "s_waitcnt lgkmcnt(0)", "s_add_u32 s52, s52, 1", "s_cmp_gt_u32 s52, 20000", "s_cbranch_scc1 K_END",
          "s_sub_u32 s54, s54, s100", "s_cmp_lt_u32 s54, 4000", "s_cbranch_scc1 K_SPIN")
    if OPT["stamp"]:
        I("s_waitcnt vmcnt(0)"); stamp("end")
        I("s_lshl_b32 s3, s2, 2", "s_add_u32 s3, s3, s18", "s_lshl_b32 s3, s3, 7", f"s_add_u32 s3, s3, {STAMP_OFF}", "v_mov_b32 v0, 0")
        for i in range(len(stamps)): I(f"v_mov_b32 v1, s{SLOTS[i]}", f"buffer_store_dword v1, v0, s[12:15], s3 offen offset:{4*i}")
        I("s_lshl_b32 s62, s62, 8", "s_or_b32 s62, s62, s63", "v_mov_b32 v1, s62", "buffer_store_dword v1, v0, s[12:15], s3 offen offset:124")
    I("K_END:", "K_END0:", "s_endpgm")
    repoll("K_F3M", F3LD, "v_cmp_eq_u32 vcc, -1, v9")
    for tag in ("K_RARE_A", "K_RARE_B"):
        I(f"{tag}:")
        I("s_or_b64 vcc, vcc, s[38:39]", "s_cmp_eq_u64 vcc, -1", f"s_cbranch_scc1 {tag}2")
        I(f"v_mov_b32 v{OA+1}, 0", f"v_mov_b32 v{OA+2}, 1", f"ds_write_b32 v{OA+1}, v{OA+2} offset:{L_FLAG}")
        I(f"{tag}2:", "s_mov_b64 exec, s[38:39]")
        for i in range(32): I(f"v_mov_b32 v{T0+i}, 0")
        I("s_mov_b64 exec, -1", f"s_branch {tag}_RET")
    K2, A2, R2, O2 = 176, 180, 184, 188
    I("K_MORE:", "s_mov_b32 s40, 0", "s_waitcnt vmcnt(0)", "v_cmp_eq_u32 vcc, -1, v9", "s_cbranch_vccnz K_F3M", "K_F3M_RET:")
    I("K_MORE_L:")
    compact(36)
    I("s_add_u32 s3, s23, s40", "s_waitcnt lgkmcnt(0)",
      f"v_add_u32_dpp v{O2}, v36, v31 quad_perm:[0,0,0,0] row_mask:0xf bank_mask:0xf",
      f"buffer_load_dwordx4 v[{K2}:{K2+3}], v{O2}, s[12:15], s50 offen sc1", f"v_bfe_i32 v{O2}, v{O2}, 30, 1")
    octets(36, [0], 27, O2+2)
    I(*eadma(O2+2, "s3", 0)); I(*eadma(O2+3, "s3", 1024)); I("s_waitcnt vmcnt(0)")
    phaseB(K2, A2, R2, 40, O2)
    I("s_waitcnt lgkmcnt(0)")
    I(*phaseC(K2, A2, R2))
    I("s_waitcnt lgkmcnt(0)", "v_cmp_lt_i32 vcc, 0, v33", "s_cbranch_vccz K_MORE_RET", "s_add_u32 s40, s40, 8192", f"s_cmp_lt_u32 s40, 16384", "s_cbranch_scc1 K_MORE_L")
    I(f"ds_write_b32 v24, v29 offset:{L_FLAG}", "s_waitcnt lgkmcnt(0)", "s_branch K_MORE_RET")
    I("K_SLOW:")
    I("s_mov_b64 exec, -1", "s_waitcnt vmcnt(0) lgkmcnt(0)", "s_barrier")
    I("v_mbcnt_lo_u32_b32 v6, -1, 0", "v_mbcnt_hi_u32_b32 v6, -1, v6", "s_lshl_b32 s3, s18, 6", "v_add_u32 v7, s3, v6")
    I(*TABA); I(f"v_lshlrev_b32 v3, {lt}, v7", TABLD)
    I("v_lshrrev_b32 v1, 5, v6", "v_lshlrev_b32 v1, 6, v1", "v_and_b32 v6, 31, v6", "v_lshlrev_b32 v2, 4, v7")
    for i in range(4): I(f"v_mov_b32 v{16+i}, 0")
    for i in range(13): I(f"ds_write_b128 v2, v[16:19] offset:{4096*i}")
    for b in range(4): I(*onehot(EE+2*b, b))
    I("s_mov_b32 s6, s26", "s_mov_b32 s19, 0", "s_waitcnt vmcnt(0) lgkmcnt(0)", "s_barrier")
    I("K_S_SEG:")
    I("v_readlane_b32 s36, v8, s19", "s_lshl_b32 s3, s18, 6", "s_add_u32 s3, s3, s19", f"s_mul_i32 s3, s3, {CHS}", "s_nop 0",
      "s_lshr_b32 s20, s36, 16", "s_and_b32 s36, s36, 0xffff", "s_add_u32 s36, s36, s3")
    I("K_S_TILE:")
    I("s_cmp_le_i32 s20, 0", "s_cbranch_scc1 K_S_NEXT")
    I("v_add_lshl_u32 v2, s36, v6, 2", "v_lshlrev_b32 v3, 1, v2", "v_cmp_gt_i32 s[38:39], s20, v6")
    I("buffer_load_dword v9, v2, s[12:15], s50 offen sc1", f"buffer_load_dwordx2 a[{AEA}:{AEA+1}], v3, s[12:15], s51 offen sc1", "s_waitcnt vmcnt(0)")
    I("v_lshrrev_b32 v0, 16, v9"); I(*[xload(0, k) for k in range(4)])
    I("v_and_b32 v0, 0xffff, v9", "v_subrev_u32 v9, s16, v0"); I(*[xload(2, k) for k in range(4)])
    I("v_mul_u32_u24 v9, 260, v9", "v_lshl_add_u32 v9, v1, 1, v9", "s_waitcnt vmcnt(0)")
    for b in range(4): I(*qchain(NN+16*b, b, EE+2*b)); I(*chain(NN+16*b, b, 0, NN+16*b))
    I(*binit(EE)); I("s_nop 15")
    for b in range(4): I(*E0(b))
    for b in range(4): I(*A0(b))
    for b in range(4): I(*R(b))
    for b in range(4): I(*(U(b) + V(b)))
    I("s_nop 1")
    for b in range(4): I(*G(b))
    I("s_nop 15"); I(*SCL)
    I("s_mov_b64 exec, s[38:39]")
    for i in range(32): I(f"ds_add_f32 v9, v{T0+i} offset:{4*i}")
    I("s_mov_b64 exec, -1", "s_waitcnt lgkmcnt(0)", "s_sub_u32 s20, s20, 32", "s_add_u32 s36, s36, 32", "s_branch K_S_TILE")
    I("K_S_NEXT:", "s_add_u32 s19, s19, 1", "s_cmp_lt_u32 s19, 64", "s_cbranch_scc1 K_S_SEG")
    I("s_barrier", "v_and_b32 v3, 7, v7", "v_lshlrev_b32 v1, 4, v3", "v_lshrrev_b32 v7, 3, v7", "s_mov_b32 s19, 0")
    I("K_S_OUT:")
    I("v_mul_u32_u24 v2, 260, v7", "v_cmp_gt_u32 vcc, s17, v7", "v_lshl_add_u32 v2, v3, 5, v2", "v_add_u32 v0, s16, v7", "v_cndmask_b32 v0, -1, v0, vcc")
    for i in range(8): I(f"ds_read_b32 v{16+i}, v2 offset:{4*i}")
    I("s_waitcnt lgkmcnt(0)")
    for i in range(4): I(f"v_cvt_pk_bf16_f32 v{24+i}, v{16+2*i}, v{17+2*i}")
    I("buffer_store_dwordx4 v[24:27], v[0:1], s[8:11], 0 idxen offen", "v_add_u32 v7, 32, v7", "s_waitcnt vmcnt(0)")
    I("s_add_u32 s19, s19, 1", "s_cmp_lt_u32 s19, 7", "s_cbranch_scc1 K_S_OUT", "s_endpgm")

def desc(name, vgpr, accum, sgpr):
    I(".p2align 6", f".amdhsa_kernel {name}")
    for l in (f"next_free_vgpr {vgpr}", f"next_free_sgpr {sgpr}", f"accum_offset {accum}", "group_segment_fixed_size 0", "kernarg_size 88",
              "user_sgpr_count 2", "user_sgpr_kernarg_segment_ptr 1", "system_sgpr_workgroup_id_x 1", "float_denorm_mode_32 3"):
        out.append("  .amdhsa_" + l)
    I(".end_amdhsa_kernel")

hdr = [l.rstrip("\n") for l in open(f"cdna_kernels/{NAME}.s.ref") if l.startswith(";") and "@launch" not in l][:12]
hdr += [f"; @launch grid=(256,1,1) block=(256,1,1) lds={L_SIZE}"]
I('.amdgcn_target "amdgcn-amd-amdhsa--gfx950"', ".text")
kernel()
I('.section .rodata,"a"')
desc(NAME + "_kernel", 512, 256, 102)
if OPT["stamp"]: hdr.append("; stamps: " + " ".join(stamps))
open(sys.argv[1], "w").write("\n".join(hdr + out) + "\n")
```

```python
import sys, struct, math
NAME = "standalone__edge_featured_mpnn_mpnn__graph"
OPT = dict(stamp=0, diag=0, tp=64, ntr=32, xpos=0, sl=3, cw=1, ost='sc1', w2q=1, up=4, wpos=1, tw=2, f1pos=0, xa=2, xb=0, slp=4, a1=12, pb=0)
for a in sys.argv[2:]:
    k, v = a.split("="); OPT[k] = int(v) if v.lstrip("-").isdigit() else v

N_NODES = 50000; E = 800000
CH = 3125; CHS = 3168
TP = OPT['tp']; FL_OFF = 0x40000
TAB_OFF = 0; WP_OFF = 0x48000; KEY_OFF = 0x58000; EA_OFF = 0x370000; STAMP_OFF = 0x1000000
WS_SIZE = 0x10000000
SPIN = 400000
def f32(x): return "0x%08x" % struct.unpack("<I", struct.pack("<f", x))[0]
NLOG2E = f32(-math.log2(math.e)); NLN2 = f32(-math.log(2.0))

out = []
def I(*ls):
    for l in ls:
        for x in l.split("\n"):
            x = x.strip()
            if x: out.append(x if x.endswith(":") or x.startswith(".") else "    " + x)
vm = []
def VM(tag, *ls):
    for l in ls:
        if l.startswith(("buffer_", "global_")): vm.append(tag)
        I(l)
def vw(tag, k=0):
    idx = [i for i, t in enumerate(vm) if t == tag]
    return len(vm) - 1 - idx[-1-k]
def srd(d, lo, hi, size, stride=0):
    I(f"s_mov_b32 s{d}, s{lo}")
    if stride: I(f"s_or_b32 s{d+1}, s{hi}, {hex(stride << 16)}")
    else: I(f"s_mov_b32 s{d+1}, s{hi}")
    I(f"s_mov_b32 s{d+2}, {size}", f"s_mov_b32 s{d+3}, 0x20000")
def scan64(v, fill=None):
    fill = list(fill or [])
    def gap():
        n = 0
        while fill and n < 2: I(fill.pop(0)); n += 1
        if n < 2: I(f"s_nop {1-n}")
    for op in ("row_shr:1", "row_shr:2", "row_shr:4", "row_shr:8"):
        gap(); I(f"v_add_u32_dpp v{v}, v{v}, v{v} {op} row_mask:0xf bank_mask:0xf bound_ctrl:0")
    gap(); I(f"v_add_u32_dpp v{v}, v{v}, v{v} row_bcast:15 row_mask:0xa bank_mask:0xf")
    gap(); I(f"v_add_u32_dpp v{v}, v{v}, v{v} row_bcast:31 row_mask:0xc bank_mask:0xf")
    I(*fill)
SLOTS = list(range(86, 98)) + list(range(64, 84))
stamps = []
def stamp(name, twice=False, lvl=1):
    if OPT["diag"] == name: I("s_memrealtime s[100:101]", "s_waitcnt lgkmcnt(0)", "s_nop 0")
    if not OPT["stamp"] or lvl > OPT["sl"]: return
    if twice:
        stamps.append(name + "1")
        I(f"s_mov_b32 s{SLOTS[len(stamps)-1]}, s{SLOTS[len(stamps)]}", "s_nop 0")
        name += "2"
    stamps.append(name)
    I(f"{'s_memtime' if OPT['stamp']==1 else 's_memrealtime'} s[98:99]", "s_waitcnt lgkmcnt(0)", f"s_mov_b32 s{SLOTS[len(stamps)-1]}, s98")

CAP = 48; NS = 4 + 4*CAP
STG0 = 2048
L1_KEY = 0; L1_EA = CHS*4; L1_CNT = 38912; L1_BASE = L1_CNT + 1024
L_H1 = STG0 + 5*8192; L_H2 = L_H1 + 256; L_SN = L_H2 + 256; L_FLAG = L_SN + 256; L_TBL = L_H1 + 1024
L_TB2 = L_TBL + 1024; L_SPL = L_TB2 + 1024; SPL_S = 144
L_W = L_SPL; L_S = L_W + 32768; L_W2 = L_S + 4096
L_OST = L_SPL + 128*SPL_S; OST_W = 32*SPL_S
L_X = L_W2 + 16384
L_NODE = L_X + 200*128
L_SIZE = L_NODE + 196*NS
assert L_SIZE <= 163840 and L_SPL + 123*SPL_S <= L_OST and L_OST + 4*OST_W <= L_W2
OSTF = "" if OPT["ost"] == "plain" else " " + OPT["ost"]
T0, T1, EE, NN, DD, QQ = 16, 32, 48, 64, 128, 192
AX, AW1A, AW1B, AW1C, AW2, AEA, AB1 = 0, 48, 112, 176, 184, 248, 254
BIG = 0x1000000

import re
V4 = ("v_exp_f32", "v_rcp_f32", "v_add_f32", "v_mul_f32", "v_add_u32", "v_mov_b32", "v_and_b32", "v_lshrrev_b32", "v_lshlrev_b32", "v_cvt_f32_ubyte2",
      "v_mul_u32_u24", "v_cndmask_b32", "v_readfirstlane_b32", "v_or_b32", "v_sub_u32", "v_xor_b32")
def has_lit(s):
    for t in re.split(r"[,\s]+", s.strip())[1:]:
        if re.fullmatch(r"0x[0-9a-fA-F]+|-?\d+", t):
            v = int(t, 0)
            if not -16 <= v <= 64: return True
    return False
def isz(s):
    s = s.strip(); op = s.split()[0]
    if s.endswith(":") or s.startswith("."): return 0
    if op.startswith(("s_waitcnt", "s_nop", "s_cbranch", "s_branch", "s_movk", "s_barrier")): return 4
    if op.startswith("s_memtime") or op.startswith("s_memrealtime"): return 8
    if op.startswith("s_"): return 8 if has_lit(s) else 4
    if op.startswith("v_cmp") and not op.endswith("_e64"): return (8 if has_lit(s) else 4) if s.split()[1] == "vcc," else 8
    if op == "v_cndmask_b32" and not s.endswith("vcc"): return 8
    if op in V4: return 8 if has_lit(s) else 4
    return 8
def align8(seg):
    off = 0; last4 = None
    seg = list(seg); i = 0
    while i <= len(seg):
        s = seg[i] if i < len(seg) else "v_pk_x"
        z = isz(s)
        if z == 8 and off % 8:
            if last4 is not None:
                op = seg[last4].split()[0]
                seg[last4] = seg[last4].replace(op, op + "_e64", 1); off += 4
            elif i == len(seg) or sum(1 for x in seg[i:i+5] if isz(x) == 8) == 5:
                if i < len(seg): print("pad before", s, file=sys.stderr)
                seg.insert(i, "s_nop 0"); off += 4; i += 1
        if z == 8: last4 = None
        if z == 4 and s.split()[0] in V4 and s.split()[0] != "v_readfirstlane_b32" and off % 8 == 0: last4 = i
        off += z; i += 1
    return seg
def xload(buf, kk): return f"buffer_load_dwordx4 a[{AX+16*buf+4*kk}:{AX+16*buf+4*kk+3}], v0, s[4:7], 0 offen offset:{16*kk}"
def xaddr(rec): return f"v_mad_u32_u16 v0, v{rec}, s59, v1 op_sel:[1,0,0,0]"
def eaddr(d, rec): return f"v_and_b32 v{d}, s49, v{rec}"
def earead(buf, r): return f"ds_read_b64 a[{AEA+2*buf}:{AEA+2*buf+1}], v{r}"
def chain(dst, blk, buf, c):
    L = []
    for kk in range(4):
        w = AW1A + 16*blk + 4*kk; x = AX + 16*buf + 4*kk; ci = c if kk == 0 else dst
        L.append(f"v_mfma_f32_32x32x16_bf16 v[{dst}:{dst+15}], a[{w}:{w+3}], a[{x}:{x+3}], v[{ci}:{ci+15}]")
    return L + [f"v_mfma_f32_32x32x8_bf16 v[{dst}:{dst+15}], a[{AW1C+2*blk}:{AW1C+2*blk+1}], a[{AEA+2*buf}:{AEA+2*buf+1}], v[{dst}:{dst+15}]"]
def qchain(dst, blk, oh, order=(0, 1, 2, 3)):
    L = []
    for kk in order:
        w = AW1B + 16*blk + 4*kk; x = AX + 32 + 4*kk
        L.append(f"v_mfma_f32_32x32x16_bf16 v[{dst}:{dst+15}], a[{w}:{w+3}], a[{x}:{x+3}], " + ("0" if kk == order[0] else f"v[{dst}:{dst+15}]"))
    return L + [f"v_mfma_f32_32x32x8_bf16 v[{dst}:{dst+15}], a[{AB1}:{AB1+1}], v[{oh}:{oh+1}], v[{dst}:{dst+15}]"]
def onehot(r, blk):
    c = "1.0" if blk & 1 else "s53"
    return [f"v_mov_b32 v{r+(blk>>1)}, {c}", f"v_mov_b32 v{r+1-(blk>>1)}, 0"]
def gemm2(blk, hb):
    L = []
    for p in range(2):
        for ob in range(2):
            w = AW2 + 4*((blk*2+p)*2+ob); o = T0 + 16*ob
            L.append(f"v_mfma_f32_32x32x16_bf16 v[{o}:{o+15}], a[{w}:{w+3}], v[{hb+4*p}:{hb+4*p+3}], v[{o}:{o+15}]")
    return L
def weave(ms, fill, cnts, extra=None):
    L = []; fill = list(fill)
    for k, m in enumerate(ms):
        L.append(m)
        if extra: L += extra.get(k, [])
        L += fill[:cnts[k]]; fill = fill[cnts[k]:]
    assert not fill
    return L
def repoll(tag, load, cmp):
    I(f"{tag}:", f"s_mov_b32 s3, {SPIN}", f"{tag}_L:", "s_mov_b64 exec, vcc", f"s_sleep {OPT['slp']}", load, "s_sub_u32 s3, s3, 1", "s_cbranch_scc1 K_END",
      "s_waitcnt vmcnt(0)", cmp, f"s_cbranch_vccnz {tag}_L", "s_mov_b64 exec, -1", f"s_branch {tag}_RET")

def cost(x):
    op = x.split()[0]
    if op.startswith(("v_exp", "v_rcp")): return 8
    if op.startswith("ds_write"): return {"b32": 8, "b64": 12, "b128": 20}[op.split("_")[-1]]
    if op.startswith("buffer_store"): return 12
    return 4
def spread(ms, fill, pre=None, tail=None):
    pre = pre or {}
    L = []; fill = list(fill); n = len(ms)
    if tail is None: tail = 36
    for k, m in enumerate(ms):
        L.append(m); P = pre.get(k, []); L += P
        if k == n-1: break
        room = 32 - (8 if "x16" in m else 4) - sum(cost(x) for x in P)
        if P and P[0].startswith("s_") and "x16" in m: room += 4
        if P and not P[0].startswith(("s_", "v_")) and "x16" not in m: room -= 4
        while fill and room > 0 and sum(map(cost, fill)) - cost(fill[0]) >= tail - sum(cost(x) for x in pre.get(n-1, [])):
            room -= cost(fill[0]); L.append(fill.pop(0))
    return L + fill
def pk3(b, tc):
    n = NN+16*b; d = DD+16*b
    return [f"v_pk_fma_f32 v[{n+2*i}:{n+2*i+1}], v[{n+2*i}:{n+2*i+1}], v[{EE+2*i}:{EE+2*i+1}], v[{n+2*i}:{n+2*i+1}]" for i in range(8)] + \
           [f"v_pk_fma_f32 v[{n+2*i}:{n+2*i+1}], v[{tc+2*i}:{tc+2*i+1}], v[{d+2*i}:{d+2*i+1}], v[{n+2*i}:{n+2*i+1}]" for i in range(8)] + \
           [f"v_pk_fma_f32 v[{d+2*i}:{d+2*i+1}], v[{d+2*i}:{d+2*i+1}], v[{EE+2*i}:{EE+2*i+1}], v[{d+2*i}:{d+2*i+1}]" for i in range(8)]
def exps(tc): return [f"v_exp_f32 v{EE+i}, v{tc+i}" for i in range(16)]
def E0(b): return [f"v_exp_f32 v{DD+16*b+i}, v{NN+16*b+i}" for i in range(16)]
def A0(b): return [f"v_pk_add_f32 v[{DD+16*b+2*i}:{DD+16*b+2*i+1}], v[{DD+16*b+2*i}:{DD+16*b+2*i+1}], 1.0 op_sel_hi:[1,0]" for i in range(8)]
def A1(b): return [f"v_add_f32 v{DD+16*b+i}, 1.0, v{DD+16*b+i}" for i in range(16)]
LB, RM, OA, OH3 = EE, EE+4, EE+5, EE+8
def R(b): return [f"v_rcp_f32 v{DD+16*b+i}, v{DD+16*b+i}" for i in range(16)]
def M(b): return [f"v_min3_f32 v{RM}, v{DD+16*b+2*i}, v{DD+16*b+2*i+1}, " + ("1.0" if b == 0 and i == 0 else f"v{RM}") for i in range(8)]
def U(b): return [f"v_pk_mul_f32 v[{NN+16*b+2*i}:{NN+16*b+2*i+1}], v[{NN+16*b+2*i}:{NN+16*b+2*i+1}], v[{DD+16*b+2*i}:{DD+16*b+2*i+1}]" for i in range(8)]
def V(b): return [f"v_cvt_pk_bf16_f32 v{NN+16*b+i}, v{NN+16*b+2*i}, v{NN+16*b+2*i+1}" for i in range(8)]
def G(b): return gemm2(b, NN+16*b)
def lbinit(r): return [f"v_cvt_f32_ubyte2 v{r+2}, v5", f"v_mov_b32 v{r+1}, 0", f"v_mov_b32 v{r+3}, 0", f"v_lshrrev_b32 v{r}, 16, v{r+2}"]
def binit(r): return [f"v_mfma_f32_32x32x8_bf16 v[{T0+16*ob}:{T0+16*ob+15}], v[14:15], v[{r+2*ob}:{r+2*ob+1}], 0" for ob in range(2)]
def dec2(lb):
    return [f"v_lshrrev_b32 v{OA}, 24, v5", f"v_and_b32 v{OA+2}, s54, v5", f"v_cmp_eq_u32 vcc, s54, v{OA}", f"v_mad_u32_u24 v{OA}, v{OA}, s55, v1",
            f"v_add_lshl_u32 v{OA+2}, s16, v{OA+2}, 7", f"v_cndmask_b32 v{OA}, v{OA}, v8, vcc", f"v_cndmask_b32 v{OA+2}, 2.0, v{OA+2}, vcc",
            f"v_cmp_eq_u32 s[38:39], 0, v{lb+2}"]
SCL = [f"v_pk_mul_f32 v[{T0+2*i}:{T0+2*i+1}], v[{T0+2*i}:{T0+2*i+1}], s[24:25]" for i in range(16)]
def check(tag):
    return [f"v_cmp_class_f32 s[40:41], v{T0}, s58", f"v_cmp_lt_f32 vcc, s57, v{RM}", "s_nop 0", "s_andn2_b64 vcc, vcc, s[40:41]", "s_andn2_b64 s[40:41], vcc, s[38:39]",
            "s_cmp_eq_u64 s[40:41], -1", f"s_cbranch_scc0 {tag}", f"{tag}_RET:"]
OCV = [f"v_cvt_pk_bf16_f32 v{T0+i}, v{T0+2*i}, v{T0+2*i+1}" for i in range(16)]
OCON = ["v_mbcnt_lo_u32_b32 v11, -1, 0", "v_mbcnt_hi_u32_b32 v11, -1, v11", "v_and_or_b32 v8, v11, 31, s45", "v_lshrrev_b32 v9, 3, v11", "v_mad_u32_u24 v8, v8, s55, v1",
        "v_mul_u32_u24 v9, s47, v9", "v_and_b32 v11, 7, v11", "v_add_u32 v9, s46, v9", "v_lshlrev_b32 v11, 4, v11", "v_add_u32 v10, v9, v11"]
OIW = f"ds_write_b32 v8, v{OA+2} offset:{L_SPL+64}"
OSW = [f"ds_write_b128 v{OA}, v[{T0+4*k}:{T0+4*k+3}] offset:{L_SPL+16*k}" for k in range(4)]
OSR = [f"ds_read2_b32 v[{EE+2*k}:{EE+2*k+1}], v9 offset0:{32+72*k} offset1:{68+72*k}" for k in range(2)] + \
      [f"ds_read_b128 v[{T1+4*j}:{T1+4*j+3}], v10 offset:{144*j}" for j in range(4)]
OOR = [f"v_or_b32 v{EE+j}, v{EE+j}, v11" for j in range(4)]
OST = [f"buffer_store_dwordx4 v[{T1+4*j}:{T1+4*j+3}], v{EE+j}, s[8:11], 0 offen{OSTF}" for j in range(4)]
def xrow(d, e, t, base): return [f"v_and_b32 v{d}, s54, v{e}", f"v_and_b32 v{t}, 7, v{e}", f"v_lshl_add_u32 v{d}, v{d}, 7, v{base}", f"v_lshlrev_b32 v{t}, 4, v{t}", f"v_xor_b32 v{d}, v{d}, v{t}"]
def xrd(r): return [f"v_xor_b32 v{r[k]}, {16*k}, v{r[0]}" for k in range(1, 4)], [f"ds_read_b128 a[{AX+32+4*k}:{AX+35+4*k}], v{r[k]}" for k in range(4)]
def recs(d, p): return [f"ds_read2_b32 v[{d}:{d+1}], v{p} offset0:1 offset1:2", f"ds_read2_b32 v[{d+2}:{d+3}], v{p} offset0:3 offset1:4"]
LSET = ["s_max_u32 s20, s20, 2", "s_sub_u32 s37, s20, 3", "s_sub_u32 s20, s20, 1", "s_mov_b32 s19, 1"]

FI, FR = 192, 208
def kernel():
    K = NAME + "_kernel"
    lt = TP.bit_length() - 1
    assert L_W % 256 == 0 and L_X % 128 == 0
    I(".p2align 12", f".globl {K}", ".p2align 8", f".type {K},@function", f"{K}:")
    I("s_cmp_ge_u32 s2, 256", "s_cbranch_scc1 K_END0")
    stamp("start")
    I("s_load_dwordx16 s[64:79], s[0:1], 0", "s_load_dwordx4 s[80:83], s[0:1], 64", "s_load_dwordx2 s[12:13], s[0:1], 80")
    DST, SRC, EAR, AD, RK, P8, CP, WR = 64, 80, 96, 128, 144, 160, 176, 208
    if OPT["cw"]:
        I("s_getpc_b64 s[62:63]", "K_PC:", "s_bfe_u32 s3, s2, 0x30003", "v_and_b32 v2, 0xf8, v0", "v_add_lshl_u32 v2, v2, s3, 7",
          "v_min_u32 v2, K_SLOW0-K_PC, v2", "global_load_dword v10, v2, s[62:63]")
    I("v_lshrrev_b32 v2, 6, v0", "v_and_b32 v6, 63, v0", "v_lshlrev_b32 v17, 2, v0", "v_readfirstlane_b32 s18, v2")
    I("v_mov_b32 v24, 0", f"ds_write_b32 v17, v24 offset:{L1_CNT}", "v_lshlrev_b32 v16, 4, v0", "v_lshlrev_b32 v4, 4, v6")
    I(f"s_mul_i32 s60, s2, {CH*4}", "s_mov_b32 s15, 0x20000", f"s_mov_b32 s14, {WS_SIZE}", f"s_mov_b32 s30, {E*4}", "s_mov_b32 s34, s30")
    for r in (31, 35, 43, 47, 51, 55, 59, 7, 11): I(f"s_mov_b32 s{r}, s15")
    I(f"s_mov_b32 s42, {132*256}", f"s_movk_i32 s46, {128*128}", f"s_mov_b32 s54, {E*8}", "s_movk_i32 s58, 256", f"s_mov_b32 s26, {N_NODES*128}", "s_mov_b32 s6, s26", "s_mov_b32 s10, s26")
    I("s_add_u32 s19, s60, 4096", "s_add_u32 s20, s60, 8192", f"s_add_u32 s21, s60, {(3072-192)*4}")
    I("v_mov_b32 v20, -1", "v_mov_b32 v21, -1", "v_mov_b32 v22, -1", "v_mov_b32 v23, -1")
    I("s_and_b32 s84, s2, 7", "s_lshl_b32 s84, s84, 5", "s_lshr_b32 s3, s2, 3", "s_add_u32 s84, s84, s3")
    I("s_mul_i32 s16, s84, 12800051", "s_add_u32 s16, s16, 0xffff", "s_add_u32 s17, s16, 12800051", "s_lshr_b32 s16, s16, 16", "s_lshr_b32 s17, s17, 16",
      f"s_min_u32 s17, s17, {N_NODES}", "s_sub_u32 s17, s17, s16", "s_mov_b32 s85, 85899")
    I("v_mov_b32 v29, 1", "v_lshlrev_b32 v18, 5, v0", "v_lshlrev_b32 v19, 3, v0", "v_lshlrev_b32 v43, 2, v6")
    I("v_subrev_u32 v45, 192, v0", f"v_cmp_gt_u32 vcc, {CH-3072}, v45", f"v_mov_b32 v45, {hex(BIG)}", "s_mov_b32 s39, 0x05040100", "v_cndmask_b32 v45, v45, v24, vcc")
    I(f"v_lshrrev_b32 v42, {lt-4}, v6", f"v_lshlrev_b32 v42, {lt+8}, v42", f"v_and_b32 v37, {TP-1}, v4", "v_add_u32 v42, v42, v37")
    I("v_lshrrev_b32 v1, 5, v6", "v_bfe_u32 v52, v6, 2, 2", "v_and_b32 v53, 3, v6", "v_bfe_u32 v54, v6, 4, 1",
      "v_lshlrev_b32 v55, 3, v53", "v_lshl_add_u32 v55, v54, 5, v55",
      "v_lshl_add_u32 v56, v52, 8, v55", "v_lshl_add_u32 v60, v1, 10, v56", f"v_add_u32 v60, {L_S}, v60",
      "v_lshl_add_u32 v56, v1, 13, v56", "v_lshl_add_u32 v56, v52, 6, v56", f"v_add_u32 v56, {L_W}, v56",
      "v_xor_b32 v57, 64, v56", "v_xor_b32 v58, 0x80, v56", "v_xor_b32 v59, 0xc0, v56",
      "v_lshl_add_u32 v61, v52, 6, v55", "v_lshl_add_u32 v61, v1, 8, v61", f"v_add_u32 v61, {L_S + 2048}, v61",
      "v_and_b32 v55, 1, v53", "v_lshlrev_b32 v55, 6, v55", "v_lshl_add_u32 v55, v54, 4, v55", "v_lshrrev_b32 v53, 1, v53", "v_lshl_add_u32 v55, v53, 3, v55",
      "v_lshl_add_u32 v62, v52, 7, v55", "v_lshl_add_u32 v62, v1, 9, v62", f"v_add_u32 v62, {L_W2}, v62",
      "v_and_b32 v52, 1, v52", "v_lshl_add_u32 v63, v52, 5, v55", "v_lshl_add_u32 v63, v1, 8, v63", f"v_add_u32 v63, {L_S + 2560}, v63",
      "v_lshlrev_b32 v1, 6, v1")
    I("s_cmp_lt_u32 s2, 64", "s_cselect_b32 s61, s18, 0", "s_cmp_lg_u32 s61, 1")
    I("s_waitcnt lgkmcnt(0)")
    I("s_mov_b64 s[28:29], s[70:71]")
    so = ("s60", "s19", "s20")
    for i in range(3): I(f"buffer_load_dwordx4 v[{DST+4*i}:{DST+4*i+3}], v16, s[28:31], {so[i]} offen")
    I(f"buffer_load_dword v{DST+12}, v17, s[28:31], s21 offen", "s_mov_b64 s[32:33], s[68:69]", "s_cbranch_scc1 R_NOT1")
    I("s_lshl_b32 s3, s2, 12", "s_lshl_b32 s36, s2, 6", f"s_add_u32 s36, s36, {FL_OFF}")
    for i in range(4): I(f"buffer_store_dwordx4 v[20:23], v4, s[12:15], s3 offen offset:{1024*i} sc1")
    I("s_mov_b64 exec, 15", "buffer_store_dwordx4 v[20:23], v4, s[12:15], s36 offen sc1", "s_mov_b64 exec, -1", "R_NOT1:")
    stamp("issued", lvl=2)
    vm.append("dst")
    for i in range(3): VM("src", f"buffer_load_dwordx4 v[{SRC+4*i}:{SRC+4*i+3}], v16, s[32:35], {so[i]} offen")
    VM("src", f"buffer_load_dword v{SRC+12}, v17, s[32:35], s21 offen", "s_barrier")
    I("s_mov_b64 s[52:53], s[66:67]")
    for r in ("s60", "s19", "s20", "s21"): I(f"s_lshl_b32 {r}, {r}, 1")
    el = []
    for i in range(3): el += [f"buffer_load_dwordx4 v[{EAR+8*i}:{EAR+8*i+3}], v18, s[52:55], {so[i]} offen", f"buffer_load_dwordx4 v[{EAR+8*i+4}:{EAR+8*i+7}], v18, s[52:55], {so[i]} offen offset:16"]
    el.append(f"buffer_load_dwordx2 v[{EAR+24}:{EAR+25}], v19, s[52:55], s21 offen")
    up = OPT["up"]
    I("v_mov_b32 v25, 0", "v_mov_b32 v26, 0", "v_mov_b32 v27, 0", f"v_add_u32 v5, {L_NODE}, v16")
    for i in range(10): VM("ea", f"ds_write_b128 v5, v[24:27] offset:{4096*i}", *(el[i-10+up:i-9+up] if i >= 10-up else []))
    I("v_mov_b32 v28, 0x7a0000ff",
      "v_cmp_eq_u32 vcc, 2, v2", f"ds_write_b32 v17, v28 offset:{L_TBL}", f"v_mov_b32 v28, {hex(BIG)}", "v_cndmask_b32 v3, v24, v28, vcc",
      f"ds_write_b32 v17, v3 offset:{L_H1}", f"ds_write_b32 v17, v28 offset:{L_TB2}")
    I("v_and_b32 v3, 0x7c, v43", f"ds_write_b32 v3, v20 offset:{L1_KEY + CH*4}")
    I("s_mov_b64 s[40:41], s[72:73]", "s_mov_b64 s[44:45], s[76:77]", "s_mov_b64 s[56:57], s[82:83]",
      "s_mov_b64 s[4:5], s[64:65]", "s_mov_b64 s[8:9], s[80:81]")
    I("s_cmp_eq_u32 s18, 0", "s_cselect_b64 s[48:49], s[74:75], s[78:79]", "s_cselect_b32 s50, 2, 1", "s_lshl_b32 s50, s50, 7")
    I(f"s_mul_i32 s3, s2, {CHS*4}", f"s_add_u32 s3, s3, {KEY_OFF}", "s_add_u32 s28, s12, s3", "s_addc_u32 s29, s13, 0", f"s_movk_i32 s30, {(CH+19)*4}")
    I(f"s_mul_i32 s3, s2, {CHS*8}", f"s_add_u32 s3, s3, {EA_OFF}", "s_add_u32 s32, s12, s3", "s_addc_u32 s33, s13, 0", f"s_movk_i32 s34, {(CH+1)*8}")
    I("s_lshl_b32 s38, s18, 12", f"s_add_u32 m0, s38, {L_W2}")
    I("s_cmp_lg_u32 s61, 1", f"s_waitcnt vmcnt({vw('dst')+5})", "s_cbranch_scc0 R_W", f"s_waitcnt vmcnt({vw('dst')})", "R_W:")
    stamp("dst", lvl=2)
    for i in range(13):
        I(f"v_mul_u32_u24 v{AD+i}, s85, v{DST+i}", f"v_lshlrev_b32_sdwa v{AD+i}, 2, v{AD+i} dst_sel:DWORD dst_unused:UNUSED_PAD src0_sel:DWORD src1_sel:BYTE_3")
        if i == 12: I(f"v_or_b32 v{AD+i}, v45, v{AD+i}")
        I(f"ds_add_rtn_u32 v{RK+i}, v{AD+i}, v29 offset:{L1_CNT}")
        if i >= 6 + up: VM("ea", el[i-6])
    I("s_cmp_eq_u32 s18, 0", "s_waitcnt lgkmcnt(0)", "s_barrier")
    stamp("barA", lvl=3)
    perm = [f"v_perm_b32 v{DST+i}, v{SRC+i}, v{DST+i}, s39" for i in range(13)]
    I("s_cbranch_scc1 K_SCAN")
    I("s_cmp_eq_u32 s18, 2", "s_cbranch_scc1 PG1", "s_cmp_eq_u32 s18, 3", "s_cbranch_scc1 PG2", "s_cmp_lg_u32 s61, 1", "s_cbranch_scc1 K_NOSCAN")
    I("s_and_b32 s3, s2, 3", "s_lshl_b32 s3, s3, 6", f"s_waitcnt vmcnt({vw('dst')})", "s_mov_b64 exec, 1", "buffer_atomic_add v29, v24, s[56:59], s3 offen", "s_mov_b64 exec, -1", "s_branch K_NOSCAN")
    I("K_SCAN:", f"ds_read_b128 v[32:35], v4 offset:{L1_CNT}", "s_waitcnt lgkmcnt(0)")
    I("v_add_u32 v38, v32, v33", "v_add_u32 v39, v38, v34", "v_add_u32 v41, v39, v35", "v_mov_b32 v36, v41")
    scan64(36)
    I("v_sub_u32 v36, v36, v41", "v_add_u32 v37, v36, v32", "v_add_u32 v38, v36, v38", "v_add_u32 v39, v36, v39")
    I(f"ds_write_b128 v4, v[36:39] offset:{L1_BASE}")
    for i in range(4): I(f"v_lshl_or_b32 v{32+i}, v{32+i}, 16, v{36+i}")
    I("s_waitcnt lgkmcnt(0)", "K_WARM_RET:", "K_NOSCAN:", "s_barrier")
    stamp("barB", lvl=3)
    wl = [[f"s_movk_i32 s3, {4096*i}", f"buffer_load_dwordx4 v[{WR+4*i}:{WR+4*i+3}], v16, s[40:43], s3 offen"] for i in range(8)]
    wl += [["s_mov_b32 s3, 0x8000", f"buffer_load_dword v{WR+32}, v17, s[40:43], s3 offen"], [f"buffer_load_dword v{WR+33}, v43, s[48:51], 0 offen"]]
    wl += [[f"buffer_load_dwordx4 v4, s[44:47], s38 offen offset:{1024*i} lds"] for i in range(4)]
    nw = {0: (10, 0, 4), 1: (5, 5, 4), 2: (0, 10, 4), 3: (0, 0, 14), 4: (5, 9, 0)}[OPT["wpos"]]
    for i in range(13): I(f"ds_read_b32 v{AD+i}, v{AD+i} offset:{L1_BASE}")
    I("s_cmp_lg_u32 s61, 1", f"s_waitcnt vmcnt({vw('src')+1})", "s_cbranch_scc0 R_W2", f"s_waitcnt vmcnt({vw('src')})", "R_W2:", *perm)
    for i in range(13):
        if i in (0, 6): I(f"s_waitcnt lgkmcnt({7 if i == 0 else 6})")
        I(f"v_add_lshl_u32 v{AD+i}, v{AD+i}, v{RK+i}, 2")
        if i == 12: I(f"v_or_b32 v{AD+i}, v45, v{AD+i}")
        I(f"ds_write_b32 v{AD+i}, v{DST+i} offset:{L1_KEY}")
        if i >= 13 - nw[0]: VM("w", *wl.pop(0))
    I("s_waitcnt lgkmcnt(0)", "s_barrier")
    stamp("barC", lvl=2)
    for i in range(4): I(f"ds_read_b128 v[{CP+4*i}:{CP+4*i+3}], v16 offset:{L1_KEY+4096*i}")
    for i in range(13): I(f"v_lshlrev_b32 v{P8+i}, 1, v{AD+i}")
    for i in range(4): VM("kst", f"s_movk_i32 s3, {4096*i}", f"s_waitcnt lgkmcnt({3-i})", f"buffer_store_dwordx4 v[{CP+4*i}:{CP+4*i+3}], v16, s[28:31], s3 offen sc1")
    F1LD = "buffer_load_dword v20, v43, s[56:59], s37 offen sc1"
    F1CMP = "v_cmp_lt_u32 vcc, v20, v22"
    TABLD = "buffer_load_dword v8, v3, s[12:15], s36 offen sc1"
    TABA = [f"s_lshr_b32 s36, s84, {lt-2}", f"s_lshl_b32 s36, s36, {lt+8}", f"s_and_b32 s3, s84, {TP//4-1}", "s_lshl2_add_u32 s36, s3, s36"]
    I("s_cmp_eq_u32 s18, 2", "s_cselect_b32 s37, 0, 0x1000", *TABA); I(f"v_lshlrev_b32 v3, {lt}, v0")
    I("v_and_b32 v22, 0xcf, v0", "v_cmp_eq_u32 vcc, 0x80, v22", f"s_lshl_b32 s60, s2, {lt}", "s_lshl_b32 s61, s2, 4", "v_cndmask_b32_e64 v22, 0, 16, vcc", f"s_add_u32 s61, s61, {FL_OFF}")
    I(f"s_mov_b32 s24, {NLOG2E}", f"s_mov_b32 s25, {NLOG2E}", "s_mov_b32 s27, 0xffff0000", "v_and_b32 v5, 0x300, v16", "v_lshrrev_b32 v5, 2, v5", "v_xor_b32 v5, v5, v16", f"v_add_u32 v5, {L_W}, v5")
    I(f"v_lshl_add_u32 v7, v2, 8, v17", f"v_add_u32 v7, {L_S + 2048}, v7", f"v_add_u32 v9, {L_S}, v17")
    I("s_lshl_b32 s23, s18, 11", "v_and_b32 v48, 0x380, v4", "v_bfe_u32 v49, v6, 2, 1", "v_lshl_add_u32 v48, v49, 10, v48", "v_and_b32 v30, 48, v4",
      "v_lshl_add_u32 v48, v30, 1, v48", "v_add_u32 v48, s23, v48", "v_add_u32 v49, 8, v48", "v_add_u32 v50, 16, v48", "v_add_u32 v51, 24, v48",
      f"s_mul_i32 s22, s16, {NS}", f"s_sub_u32 s22, {L_NODE}, s22", f"v_mov_b32 v28, {NS}",
      "v_add_u32 v31, 2.0, v30", f"v_mul_u32_u24 v44, {CHS}, v0", "v_and_b32 v26, 0x70, v4", "v_add_u32 v27, 0x80000000, v26",
      "v_lshrrev_b32 v46, 3, v0", "v_lshlrev_b32 v47, 4, v46", "v_xor_b32 v47, v47, v4", "v_and_b32 v47, 0x70, v47", "v_add_u32 v46, s16, v46", "v_lshl_add_u32 v46, v46, 7, v47",
      "s_lshl_b32 s62, s18, 10", f"s_add_u32 s62, s62, {L_X}", "s_cmp_eq_u32 s18, 0", "s_mov_b32 s63, 0x3f000", f"s_cselect_b32 s63, {L_X + 6*4096}, s63")
    stamp("kout", lvl=3)
    xd = [[f"s_add_u32 m0, s62, {4096*i}" if i < 6 else "s_mov_b32 m0, s63", "v_add_u32 v46, 0x1000, v46" if i else "s_nop 0",
           "buffer_load_dwordx4 v46, s[4:7], 0 offen lds"] for i in range(7)]
    for i in range(13):
        if i in (0, 4, 8): I(f"s_waitcnt vmcnt({vw('ea', {0: 5, 4: 3, 8: 0}[i])})")
        if i == 8: stamp("ea_in", lvl=3)
        if i == OPT["f1pos"]: VM("f1", F1LD)
        I(f"ds_write_b64 v{P8+i}, v[{EAR+2*i}:{EAR+2*i+1}] offset:{L1_EA}")
        if i >= 13 - nw[1]: VM("w", *wl.pop(0))
    for k in range(OPT["xa"]): VM("x", *xd.pop(0))
    I(f"s_add_u32 m0, s38, {L_W2}", f"s_waitcnt vmcnt({vw('f1')})", F1CMP, "s_cbranch_vccnz K_F1", "K_F1_RET:")
    I("s_cmp_lg_u32 s18, 0", "s_waitcnt lgkmcnt(0)", "s_barrier")
    stamp("barD", lvl=2)
    I("s_cbranch_scc1 K_NOTAB", "buffer_store_dwordx4 v[32:35], v42, s[12:15], s60 offen sc1", "K_NOTAB:")
    for i in range(7): I(f"ds_read_b128 v[{CP+4*i}:{CP+4*i+3}], v16 offset:{L1_EA+4096*i}")
    I("s_branch PG1E", ".p2align 12", "PG1:", "s_branch K_WARM_RET", "s_nop 0", "PG1E:")
    for i in range(7): VM("est", f"s_movk_i32 s3, {4096*i}", f"s_waitcnt lgkmcnt({6-i})", f"buffer_store_dwordx4 v[{CP+4*i}:{CP+4*i+3}], v16, s[32:35], s3 offen sc1")
    while len(wl) > 4: VM("w", *wl.pop(0))
    stamp("eaout", lvl=3)
    I(f"s_waitcnt vmcnt({vw('w')})", ".p2align 3")
    for i in range(34):
        t = 64 + 2*(i % 4) if i < 32 else 72 + 2*(i-32)
        I(f"v_lshlrev_b32 v{t}, 16, v{WR+i}", f"v_and_b32 v{t+1}, s27, v{WR+i}", f"v_pk_mul_f32 v[{t}:{t+1}], v[{t}:{t+1}], s[24:25]", f"v_cvt_pk_bf16_f32 v{WR+i}, v{t}, v{t+1}")
        if i % 4 == 3: I(f"ds_write_b128 v5, v[{WR+i-3}:{WR+i}] offset:{1024*(i-3)}")
        if i in (17, 21, 25, 29) and wl: VM("w2", *wl.pop(0))
    I(f"ds_write_b32 v9, v{WR+32}", f"ds_write_b32 v7, v{WR+33}")
    for i in (32, 33):
        t = 72 + 2*(i-32)
        I(f"v_lshlrev_b32 v64, 16, v{WR+i}", f"v_and_b32 v65, s27, v{WR+i}", f"v_sub_f32 v64, v{t}, v64", f"v_sub_f32 v65, v{t+1}, v65", f"v_cvt_pk_bf16_f32 v{66+i-32}, v64, v65")
    I("ds_write_b32 v9, v66 offset:1024", "ds_write_b32 v7, v67 offset:256")
    I(*[f"s_mov_b32 s{40+i}, {STG0 + 8192*i}" for i in range(5)])
    I(f"s_mov_b32 s24, {NLN2}", f"s_mov_b32 s25, {NLN2}", f"s_mov_b32 s50, {KEY_OFF}", f"s_mov_b32 s51, {EA_OFF}", f"s_mov_b32 s52, {FL_OFF}")
    for w in range(3): I(f"s_cmp_eq_u32 s18, {w+1}", f"s_cbranch_scc1 PG{w+3}")
    I("K_WARM_RET2:")
    stamp("wdone", lvl=3)
    tr = []
    for f in range(16):
        for jh in range(2): tr.append(f"ds_read_b64_tr_b16 a[{AW2+4*f+2*jh}:{AW2+4*f+2*jh+1}], v62 offset:{(16*(f>>1) + 8*jh)*128 + 32*(f&1)}")
    for f in range(32):
        for jh in range(2): tr.append(f"ds_read_b64_tr_b16 a[{AW1A+4*f+2*jh}:{AW1A+4*f+2*jh+1}], v{56+((f>>2)&3)} offset:{(64*(f>>4) + 8*(f&3) + 4*jh)*256}")
    for b in range(4): tr.append(f"ds_read_b64_tr_b16 a[{AW1C+2*b}:{AW1C+2*b+1}], v60 offset:{64*b}")
    tr += [f"ds_read_b64_tr_b16 a[{AB1}:{AB1+1}], v61", "ds_read_b64_tr_b16 v[14:15], v63"]
    tr2, tr = tr[:32], tr[32:]
    VM("tab", f"s_waitcnt vmcnt({vw('est', OPT['tw'])})", TABLD)
    for k in range(OPT["xb"]): VM("x", *xd.pop(0))
    I("s_cmp_lg_u32 s18, 1", f"s_waitcnt vmcnt({vw('est')}) lgkmcnt(0)", "s_barrier")
    stamp("barE", lvl=2)
    I("s_cbranch_scc1 K_NOF3", "s_mov_b64 exec, 1", "buffer_store_dword v24, v24, s[12:15], s61 offen sc1", "s_mov_b64 exec, -1", "K_NOF3:")
    I(*tr[:OPT["ntr"]]); tr = tr[OPT["ntr"]:]
    I(f"s_waitcnt vmcnt({vw('tab')+1})", "s_cbranch_scc0 K_F3D", f"s_waitcnt vmcnt({vw('tab')})", "K_F3D:")
    I("v_cmp_eq_u32 vcc, -1, v8", "s_cbranch_vccnz K_TAB", "K_TAB_RET:")
    stamp("tab", lvl=2)
    I("v_and_b32 v33, 0xffff, v8", "v_add_lshl_u32 v32, v44, v33, 2", "v_lshrrev_b32 v33, 16, v8", "v_subrev_u32 v33, 16, v33")
    KEY, AD, RK, O4, O8 = 64, 96, 128, 170, 160
    def compact(dst):
        I("v_cmp_lt_i32 vcc, 0, v33", "s_nop 1", "v_mbcnt_lo_u32_b32 v35, vcc_lo, 0", "v_mbcnt_hi_u32_b32 v35, vcc_hi, v35",
          "v_cmp_gt_u32 s[36:37], 16, v35", "v_lshlrev_b32 v35, 4, v35", "s_nop 0", "s_and_b64 vcc, vcc, s[36:37]",
          "v_cndmask_b32 v35, 4, v35, vcc", f"ds_permute_b32 v{dst}, v35, v34",
          "v_cndmask_b32_e64 v35, 0, 16, vcc", "v_sub_u32 v33, v33, v35", "v_lshl_add_u32 v34, v35, 2, v34")
    def octets(src, its, off, o8):
        I(f"v_lshlrev_b32 v39, 1, v{src}", f"v_lshlrev_b32 v37, 1, v{src}", f"v_lshlrev_b32 v38, 1, v{src}", "s_nop 0",
          "v_mov_b32_dpp v37, v39 row_shr:4 row_mask:0xf bank_mask:0xa", "v_mov_b32_dpp v38, v39 row_shl:4 row_mask:0xf bank_mask:0x5", "s_nop 0")
        for n, i in enumerate(its):
            for h in range(2): I(f"v_add_u32_dpp v{o8+2*n+h}, v{37+h}, v{off} quad_perm:[{i},{i},{i},{i}] row_mask:0xf bank_mask:0xf")
    for i in range(4):
        I(f"v_add_u32_dpp v{O4+i}, v32, v30 quad_perm:[{i},{i},{i},{i}] row_mask:0xf bank_mask:0xf",
          f"buffer_load_dwordx4 v[{KEY+4*i}:{KEY+4*i+3}], v{O4+i}, s[12:15], s50 offen sc1")
    I(f"v_add_u32 v34, 0xc0000040, v32")
    compact(36)
    octets(32, range(4), 26, O8)
    I("s_waitcnt lgkmcnt(0)", f"v_add_u32_dpp v{O4+4}, v36, v31 quad_perm:[0,0,0,0] row_mask:0xf bank_mask:0xf",
      f"buffer_load_dwordx4 v[{KEY+16}:{KEY+19}], v{O4+4}, s[12:15], s50 offen sc1")
    octets(36, [0], 27, O8+8)
    I(f"v_bfe_i32 v{O4+4}, v{O4+4}, 30, 1")
    I(f"v_mul_u32_u24 v21, {NS}, v0", f"v_add_u32 v21, {L_NODE}, v21", "v_cmp_gt_u32 s[38:39], s17, v0")
    I("s_sub_u32 s27, 256, s17", "s_sub_u32 s19, s27, 32")
    I(*tr)
    I("v_bfe_u32 v35, v6, 4, 1", "v_lshlrev_b32 v35, 4, v35", f"v_xor_b32 v{FI+1}, v35, v26")
    for j in range(1, 8): I(f"v_xor_b32 v{FI+1+2*j}, {32*(j&3)}, v{FI+1}")
    I("v_and_b32 v35, 3, v6", f"v_mul_u32_u24 v{FR}, 0x420, v35", "v_bfe_u32 v35, v6, 2, 3", f"v_lshl_add_u32 v{FR}, v35, 7, v{FR}", "v_bfe_u32 v35, v6, 3, 1",
      f"v_lshl_add_u32 v{FR}, v35, 4, v{FR}", f"v_xor_b32 v{FR}, v{FR}, v1", "s_lshl_b32 s45, s18, 13", f"s_add_u32 s45, s45, {L_W}", f"v_add_u32 v{FR}, s45, v{FR}")
    for k in range(1, 4): I(f"v_xor_b32 v{FR+k}, {16*k}, v{FR}")
    I("v_and_b32 v20, 31, v6", "s_lshl_b32 s3, s18, 7", "v_lshl_add_u32 v57, v20, 2, s3", "v_and_b32 v59, 0x38, v6", "v_lshl_add_u32 v59, v59, 1, s3",
      "s_sub_u32 s3, 896, s3", "v_lshl_add_u32 v58, v20, 2, s3")
    F3LD = "buffer_load_dword v9, v16, s[12:15], s52 offen sc1"
    def phaseB(k, a, r, sreg, m=None):
        if m:
            for j in range(4): I(f"v_or_b32 v{k+j}, v{m}, v{k+j}")
        for j in range(4): I(f"v_mad_u32_u16 v{a+j}, v{k+j}, v28, s22")
        for j in range(4):
            I(f"ds_add_rtn_u32 v{r+j}, v{a+j}, v29",
              f"v_add_u32_sdwa v{k+j}, v{48+j}, s{sreg} dst_sel:WORD_0 dst_unused:UNUSED_PRESERVE src0_sel:DWORD src1_sel:DWORD")
    def phaseC(k, a, r):
        L = []
        for j in range(4): L += [f"v_min_u32 v{r+j}, {CAP-1}, v{r+j}", f"v_lshl_add_u32 v{a+j}, v{r+j}, 2, v{a+j}", f"ds_write_b32 v{a+j}, v{k+j} offset:4"]
        return L
    def eadma(o, base, imm): return [f"s_add_u32 m0, {base}, {imm}", "s_nop 0", f"buffer_load_dwordx4 v{o}, s[12:15], s51 offen sc1 lds"]
    ea = [eadma(O8+n, "s23", STG0 + 8192*(n>>1) + 1024*(n&1)) for n in range(10)]
    nx = [0, 1, 2, 2, 2]; done = 0; q = list(xd)
    for i in range(5):
        I(f"s_waitcnt vmcnt({4 - i + done})")
        if i == 0: stamp("key0", lvl=2); I(F3LD); done += 1
        for k in range(nx[i]):
            if q: I(*q.pop(0)); done += 1
        phaseB(KEY+4*i, AD+4*i, RK+4*i, 40+i, O4+4 if i == 4 else None)
    I("v_cmp_lt_i32 vcc, 0, v33", "s_cbranch_vccnz K_MORE", "K_MORE_RET:", "s_branch PG2E")
    repoll("K_F1", F1LD, F1CMP)
    repoll("K_TAB", TABLD, "v_cmp_eq_u32 vcc, -1, v8")
    I(".p2align 12", "PG2:", "s_branch K_WARM_RET")
    repoll("K_F3", F3LD, "v_cmp_eq_u32 vcc, -1, v9")
    I("PG2E:", "s_waitcnt lgkmcnt(0)", "s_barrier")
    stamp("bar1", lvl=2)
    I("s_mov_b64 exec, s[38:39]", "ds_read_b32 v20, v21", "s_mov_b64 exec, -1")
    I(f"s_waitcnt vmcnt({len(xd)})", "v_cmp_eq_u32 vcc, -1, v9", "s_cbranch_vccnz K_F3", "K_F3_RET:")
    stamp("f3", lvl=3)
    I(*(ea[0] + ea[1]))
    I("s_waitcnt lgkmcnt(0)", "s_mov_b64 exec, s[38:39]")
    I(f"v_cmp_lt_u32 vcc, {CAP}, v20", "v_min_u32 v20, 63, v20", "v_sub_u32 v22, 63, v20", "v_lshlrev_b32 v22, 2, v22",
      f"ds_add_rtn_u32 v23, v22, v29 offset:{L_H1}")
    I("s_cbranch_vccz K_A1", f"ds_write_b32 v24, v29 offset:{L_FLAG}", "K_A1:")
    I("s_mov_b64 exec, -1")
    I(*(ea[2] + ea[3]))
    I("s_waitcnt lgkmcnt(0)", "s_barrier")
    I(f"ds_read_b32 v25, v43 offset:{L_H1}")
    I(*phaseC(KEY, AD, RK))
    I("s_waitcnt lgkmcnt(4)", "v_mov_b32 v46, v25")
    scan64(46, phaseC(KEY+4, AD+4, RK+4))
    I("v_sub_u32 v46, v46, v25", "ds_bpermute_b32 v46, v22, v46")
    I("v_lshrrev_b32 v30, 1, v20", "v_cmp_lt_u32 s[36:37], 26, v20")
    I(*(ea[4] + ea[5]))
    I("s_waitcnt lgkmcnt(0)")
    I("v_add_u32 v23, v23, v46", "v_cmp_gt_u32 vcc, s19, v23", "v_lshlrev_b32 v33, 1, v23", "v_lshlrev_b32 v34, 2, v23",
      "v_cndmask_b32_e64 v31, 8, 10, vcc", "v_cndmask_b32 v31, v31, v30, s[36:37]")
    I("v_cmp_gt_u32 vcc, s27, v23", "v_cmp_gt_u32 s[36:37], v20, v31", "v_mov_b32 v35, 0xff", "v_sub_u32 v37, 63, v31",
      "s_and_b64 vcc, vcc, s[36:37]", "s_and_b64 vcc, vcc, s[38:39]")
    I("v_cndmask_b32 v32, 0, v31, vcc", "v_sub_u32 v32, v20, v32", "v_sub_u32 v36, 63, v32", "v_lshlrev_b32 v36, 2, v36", "v_lshlrev_b32 v37, 2, v37")
    I("s_mov_b64 exec, s[38:39]", f"ds_add_rtn_u32 v38, v36, v29 offset:{L_H2}")
    I("s_mov_b64 exec, vcc", f"ds_add_rtn_u32 v39, v37, v29 offset:{L_H2}", "v_add_lshl_u32 v47, s16, v0, 7", f"ds_write_b32 v34, v47 offset:{L_SN}")
    I("s_mov_b64 exec, -1", "v_cndmask_b32 v35, v35, v33, vcc")
    I("v_lshl_or_b32 v48, v35, 8, v32", "v_lshl_or_b32 v48, v48, 16, v0")
    I("v_or_b32 v33, 1, v33", "v_lshl_or_b32 v49, v33, 8, v31", "v_lshl_or_b32 v49, v49, 8, v32", "v_lshl_or_b32 v49, v49, 8, v0", "v_lshl_add_u32 v50, v32, 2, v21")
    I(*(ea[6] + ea[7]))
    I("s_waitcnt lgkmcnt(0)", "s_barrier")
    stamp("bar3", lvl=3)
    I(f"ds_read_b32 v25, v43 offset:{L_H2}"); I(*phaseC(KEY+8, AD+8, RK+8)); I("s_waitcnt lgkmcnt(4)", "v_mov_b32 v46, v25")
    scan64(46, phaseC(KEY+12, AD+12, RK+12))
    I("v_sub_u32 v46, v46, v25", "ds_bpermute_b32 v36, v36, v46", "ds_bpermute_b32 v37, v37, v46")
    I(*phaseC(KEY+16, AD+16, RK+16))
    I("s_waitcnt lgkmcnt(4)", "v_add_lshl_u32 v36, v36, v38, 2", "v_add_lshl_u32 v37, v37, v39, 2")
    o0 = L_TBL // 256
    I("s_mov_b64 exec, s[38:39]", f"ds_write2st64_b32 v36, v48, v21 offset0:{o0} offset1:{o0+4}", "s_mov_b64 exec, vcc", f"ds_write2st64_b32 v37, v49, v50 offset0:{o0} offset1:{o0+4}",
      "s_mov_b64 exec, -1")
    I(*(ea[8] + ea[9]))
    sr = [f"ds_read_b128 a[{AX+4*k}:{AX+4*k+3}], v{34+(k&3)} offset:{4096*(k>>2)}" for k in range(8)]
    I("s_mov_b32 s21, 0", "s_movk_i32 s53, 0x3f80", "s_movk_i32 s54, 0xff", f"s_movk_i32 s55, {SPL_S}", "s_mov_b32 s49, 0xffff", "s_movk_i32 s59, 128",
      f"s_mov_b32 s57, {f32(2.0**-100)}", "s_movk_i32 s58, 0x207", f"v_add_u32 v6, {L_X}, v1")
    I("s_mov_b32 s28, s4", "s_or_b32 s29, s5, 0x800000", f"s_mov_b32 s30, {N_NODES}")
    I("s_waitcnt vmcnt(10) lgkmcnt(0)", "s_barrier")
    stamp("bar4", lvl=2)
    o0 = L_TBL // 256
    I(f"ds_read_b128 v[20:23], v59 offset:{L_TB2}", f"ds_read2st64_b32 v[26:27], v57 offset0:{o0} offset1:{o0+4}",
      f"ds_read_b32 v7, v58 offset:{L_TBL}", f"ds_read_b32 v8, v58 offset:{L_TB2}", f"ds_read_b32 v24, v24 offset:{L_FLAG}")
    for b in range(4): I(*onehot(EE+2*b, b))
    for k in range(4): I(f"v_mov_b32 v{34+k}, v{FR+k}")
    I("s_waitcnt lgkmcnt(4)")
    for j in range(8): I(f"ds_read_u16 v{FI+2*j}, v{20+(j&3)} offset:{6 + 4*(j>>2)}")
    xx, xr = xrd((28, 29, 30, 31))
    I("s_waitcnt lgkmcnt(8)"); I(*xrow(28, 26, 29, 6)); I(*xx); I(*xr)
    I("s_waitcnt lgkmcnt(8)")
    fl = ["v_mov_b32 v5, v26", "v_mov_b32 v2, v27", "v_bfe_u32 v3, v26, 16, 8", "v_cmp_ne_u32 vcc, 0, v24", "s_waitcnt lgkmcnt(4)", "v_readfirstlane_b32 s20, v3", "s_nop 0", "s_nop 0"]
    for j in range(8): I(f"s_add_u32 m0, s45, {1024*j}", fl[j], f"buffer_load_dwordx4 v[{FI+2*j}:{FI+2*j+1}], s[28:31], 0 idxen offen lds")
    I(*recs(40, 2)); I(*recs(10, 8)); I(*xrow(9, 7, 29, 6))
    if OPT["stamp"]: I("s_mov_b32 s62, s20")
    I(*LSET)
    I("s_lshl_b32 s45, s18, 5", "s_add_u32 s45, s45, 128", f"s_mul_i32 s46, s18, {OST_W}", f"s_add_u32 s46, s46, {L_OST}", "s_movk_i32 s47, 576", f"s_mov_b32 s48, {L_SN}")
    I("s_waitcnt lgkmcnt(0)", "s_cbranch_vccnz K_SLOW0", eaddr(44, 40), eaddr(45, 41), eaddr(46, 42), eaddr(4, 43), xaddr(42), ".p2align 3")
    stamp("q1")
    q = sum([qchain(QQ+16*b, b, EE+2*b) for b in range(4)], [])
    I(*weave(q, [], [0]*20, {**{k: tr2[3*k:3*k+3] for k in range(11)}, 14: ["s_waitcnt vmcnt(4)", "s_barrier"], 15: sr[0:2], 16: sr[2:4], 17: [earead(0, 44), earead(1, 45)], 18: [earead(2, 46)]}))
    c = chain(NN, 0, 0, QQ)
    seg = ["s_waitcnt lgkmcnt(0)", "s_nop 0", c[0], xload(2, 0), c[1], xload(2, 1), c[2], xload(2, 2), c[3], xload(2, 3), c[4], xaddr(43), "s_nop 8", "s_nop 0"]
    for b in range(3): seg += weave(chain(NN+16*(b+1), b+1, 0, QQ+16*(b+1)), E0(b), (3,3,3,3,4), {0: ["s_waitcnt vmcnt(4)"], 1: sr[4:6], 2: sr[6:8], 3: [xload(0, 0)]} if b == 2 else None) + A0(b)
    seg += ["s_waitcnt lgkmcnt(0)", "s_barrier"] + weave(chain(T0, 0, 1, QQ), E0(3), (3,3,3,3,4), {3: [xload(0, 1)]}) + A0(3)
    I(*align8(seg))
    stamp("loop1")
    I("s_branch K_A0")
    I(".p2align 12", "PG3:", "s_branch K_WARM_RET2", "s_nop 0", "K_LOOP:")
    def partA(t):
        cur = (1+t) % 3; prv = t % 3
        seg = []
        for b in range(3):
            tc = T0 + 16*(b % 2); tn = T0 + 16*((b+1) % 2)
            if b == 0: extra = {0: [f"ds_read_b32 v6, v2 offset:{4*(t+5)}"], 3: [xload(prv, 2)], 4: ["v_cmpx_lt_u32 vcc, s19, v3"]}
            elif b == 1: extra = {1: ["s_cmp_lt_i32 s19, s37"], 2: ["s_waitcnt lgkmcnt(0)"], 3: [xload(prv, 3)], 4: [xaddr(6)]}
            else: extra = {0: ["s_cselect_b32 s6, s26, 0"], 1: ["s_cmp_ge_u32 s19, s20"], 2: ["s_waitcnt vmcnt(4)"], 3: [earead(prv, 4)],
                           4: ["s_cbranch_scc1 K_EXIT" if t < 2 else "s_cbranch_scc0 K_LOOP"]}
            ms = chain(tn, b+1, cur, QQ+16*(b+1))
            if b < 2: seg += weave(ms, exps(tc), (3,3,3,3,4), extra) + pk3(b, tc)
            else: seg += weave(ms, exps(tc)[:12], (3,3,3,3,0), extra)
        return seg
    def partB(t):
        cur = (1+t) % 3; nxt = (2+t) % 3
        seg = [xload(cur, 0)] + exps(T0)[12:] + pk3(2, T0)
        seg += weave(chain(T0, 0, nxt, QQ), exps(T1), (3,3,3,3,4), {0: ["s_add_u32 s19, s19, 1"], 3: [xload(cur, 1)], 4: [eaddr(4, 6)] + (["v_add_u32 v2, 12, v2"] if t == 2 else [])}) + pk3(3, T1)
        return seg
    I(*align8(partB(2)))
    I("K_A0:")
    I(*align8(partA(0) + partB(0) + partA(1) + partB(1) + partA(2))[:-1])
    I("K_EXIT:", "s_cmp_lg_u32 s21, 0", "s_cbranch_scc1 K_LAST", "s_branch K_MID")
    I(".p2align 12", "PG4:", "s_branch K_WARM_RET2", "s_nop 0", "K_MID:")
    stamp("exit1")
    OH = QQ+48
    def mix(c, g): return c[:4] + g + c[4:]
    def ms(n):
        nonlocal seg
        if OPT.get("ms"): I(*align8(seg)); seg = []; stamp(n)
    xx, xr = xrd((9, 4, 6, 2))
    seg = exps(T0)[12:] + pk3(2, T0) + ["s_mov_b64 s[60:61], exec", "s_mov_b64 exec, -1"] + exps(T1) + xx + ["s_mov_b32 s6, s26", xaddr(10), "s_waitcnt vmcnt(0)", "s_mov_b32 s21, 1"]
    seg += xr + [xload(0, k) for k in range(4)] + ["s_mov_b64 exec, s[60:61]", LSET[3]] + pk3(3, T1) + ["s_mov_b64 exec, -1", "s_waitcnt lgkmcnt(0)"]
    ms("m1")
    seg += spread(mix(qchain(QQ, 0, OH3), binit(LB)), [xaddr(11), "v_bfe_u32 v3, v7, 16, 8"] + lbinit(LB) + ["v_readfirstlane_b32 s20, v3"] + onehot(OH3, 0) + R(0) + M(0),
                  pre={1: [xload(1, 0), xload(1, 1)], 2: [xload(1, 2)], 3: [xload(1, 3)]}) + U(0)
    ms("m2")
    seg += spread(mix(qchain(QQ+16, 1, OH3+2), G(0)), V(0) + onehot(OH3+2, 1) + [eaddr(4, 10), eaddr(6, 11), eaddr(0, 12), "v_mov_b32 v2, v8"] + R(1) + M(1),
                  pre={2: ([f"s_mov_b32 s63, s20"] if OPT["stamp"] else []) + [LSET[0]], 3: [LSET[1]], 5: [LSET[2]], 4: [earead(0, 4), earead(1, 6), earead(2, 0)]}) + U(1)
    ms("m3")
    seg += spread(mix(qchain(QQ+32, 2, OH3), G(1)), V(1) + onehot(OH3, 2) + OCON[:8] + R(2) + M(2), pre={6: ["s_waitcnt vmcnt(4) lgkmcnt(0)"]}) + U(2)
    ms("m4")
    seg += spread(mix(chain(NN, 0, 0, QQ), G(2)), V(2) + OCON[8:] + dec2(LB) + R(3) + M(3)) + U(3)
    seg += spread(mix(chain(NN+16, 1, 0, QQ+16), G(3)), V(3) + onehot(OH3+2, 3) + [xaddr(12), eaddr(4, 13), "v_mov_b32 v5, v7"] + E0(0) + A1(0)[:OPT["a1"]]) + A0(0)[OPT["a1"]//2:] + SCL
    seg += check("K_RARE_A")
    ms("m6")
    q = qchain(QQ+48, 3, OH3+2); c = chain(NN+32, 2, 0, QQ+32)
    seg += spread(q[:4] + c[:1] + q[4:] + c[1:], OCV + E0(1), pre={0: [OIW], 2: [OSW[0]], 4: [OSW[1], xload(2, 0)], 6: [OSW[2], xload(2, 1)], 7: [OSW[3], xload(2, 2)], 8: [xload(2, 3)] + OSR}) + A0(1)
    ms("m7")
    e = E0(2); c = chain(NN+48, 3, 0, QQ+48)
    seg += [c[0], "s_waitcnt vmcnt(4) lgkmcnt(0)"] + OOR + [xaddr(13)] + e[:1] + [c[1], OST[0], OST[1], c[2], OST[2], OST[3], c[3], xload(0, 0)] + e[1:4] + [c[4]] + e[4:] + A0(2)
    seg += weave(chain(T0, 0, 1, QQ), E0(3), (3,3,3,3,4), {3: [xload(0, 1)]}) + A0(3)
    I(*align8(seg))
    stamp("loop2")
    I("s_branch K_A0")
    I(".p2align 12", "PG5:", "s_branch K_WARM_RET2", "s_nop 0", "K_LAST:")
    stamp("exit2")
    CCON = ["v_mbcnt_lo_u32_b32 v2, -1, 0", "v_mbcnt_hi_u32_b32 v2, -1, v2", "v_lshrrev_b32 v2, 3, v2", "v_lshl_add_u32 v2, s18, 3, v2",
            "v_mul_u32_u24 v4, s55, v2", "v_lshl_add_u32 v4, v4, 1, v11", "v_lshl_add_u32 v2, v2, 2, s48", "v_mov_b32 v12, 0"]
    seg = exps(T0)[12:] + pk3(2, T0) + exps(T1) + pk3(3, T1) + ["s_mov_b64 exec, -1"] + lbinit(LB)
    seg += R(0)[:2] + weave(binit(LB), R(0)[2:], (4, 10)) + U(0) + V(0)
    for b in range(3): seg += weave(G(b), R(b+1), (3,3,3,7)) + U(b+1) + V(b+1)
    seg += spread(G(3), M(0) + M(1) + M(2) + M(3) + CCON + dec2(LB), tail=48) + SCL + check("K_RARE_B") + OCV + [OIW] + OSW + OSR
    I(*align8(seg))
    stamp("tail")
    I("s_mov_b32 s3, 0xffff0000", "s_waitcnt lgkmcnt(6)", "s_barrier")
    I(f"ds_read_b32 v12, v12 offset:{L_FLAG}", f"ds_read2_b32 v[2:3], v2 offset1:32")
    for h in range(2):
        for r in range(2): I(f"ds_read_b128 v[{NN+8*h+4*r}:{NN+8*h+4*r+3}], v4 offset:{L_SPL + 64*SPL_S*h + SPL_S*r}")
    I("s_waitcnt lgkmcnt(6)", *OOR); I(*OST)
    I("s_waitcnt lgkmcnt(2)", "v_cmp_ne_u32 vcc, 0, v12", "v_or_b32 v2, v2, v11", "v_or_b32 v3, v3, v11")
    for h in range(2):
        if h: I("s_waitcnt lgkmcnt(0)", "s_nop 0")
        n = NN + 8*h; u = DD + 16*h
        for i in range(8): I(f"v_lshlrev_b32 v{u+2*i}, 16, v{n+i}", f"v_and_b32 v{u+2*i+1}, s3, v{n+i}")
        for i in range(4): I(f"v_pk_add_f32 v[{u+2*i}:{u+2*i+1}], v[{u+2*i}:{u+2*i+1}], v[{u+8+2*i}:{u+8+2*i+1}]")
        for i in range(4): I(f"v_cvt_pk_bf16_f32 v{n+i}, v{u+2*i}, v{u+2*i+1}")
        I(f"buffer_store_dwordx4 v[{n}:{n+3}], v{2+h}, s[8:11], 0 offen{OSTF}")
    I("s_cbranch_vccnz K_SLOW")
    if OPT["diag"]:
        I("s_mov_b32 s52, 0", "K_SPIN:", "s_memrealtime s[54:55]", "s_waitcnt lgkmcnt(0)", "s_add_u32 s52, s52, 1", "s_cmp_gt_u32 s52, 20000", "s_cbranch_scc1 K_END",
          "s_sub_u32 s54, s54, s100", "s_cmp_lt_u32 s54, 4000", "s_cbranch_scc1 K_SPIN")
    if OPT["stamp"]:
        I("s_waitcnt vmcnt(0)"); stamp("end")
        I("s_lshl_b32 s3, s2, 2", "s_add_u32 s3, s3, s18", "s_lshl_b32 s3, s3, 7", f"s_add_u32 s3, s3, {STAMP_OFF}", "v_mov_b32 v0, 0")
        for i in range(len(stamps)): I(f"v_mov_b32 v1, s{SLOTS[i]}", f"buffer_store_dword v1, v0, s[12:15], s3 offen offset:{4*i}")
        I("s_lshl_b32 s62, s62, 8", "s_or_b32 s62, s62, s63", "v_mov_b32 v1, s62", "buffer_store_dword v1, v0, s[12:15], s3 offen offset:124")
    I("K_END:", "K_END0:", "s_endpgm")
    repoll("K_F3M", F3LD, "v_cmp_eq_u32 vcc, -1, v9")
    for tag in ("K_RARE_A", "K_RARE_B"):
        I(f"{tag}:")
        I("s_or_b64 vcc, vcc, s[38:39]", "s_cmp_eq_u64 vcc, -1", f"s_cbranch_scc1 {tag}2")
        I(f"v_mov_b32 v{OA+1}, 0", f"v_mov_b32 v{RM}, 1", f"ds_write_b32 v{OA+1}, v{RM} offset:{L_FLAG}")
        I(f"{tag}2:", "s_mov_b64 exec, s[38:39]")
        for i in range(32): I(f"v_mov_b32 v{T0+i}, 0")
        I("s_mov_b64 exec, -1", f"s_branch {tag}_RET")
    K2, A2, R2, O2 = 176, 180, 184, 188
    I("K_MORE:", "s_sub_u32 s40, 0, s23", "s_waitcnt vmcnt(0)", "v_cmp_eq_u32 vcc, -1, v9", "s_cbranch_vccnz K_F3M", "K_F3M_RET:")
    I("s_mov_b64 exec, 1", f"ds_add_rtn_u32 v{O2}, v24, v29 offset:{L_FLAG+4}", "s_waitcnt lgkmcnt(0)", f"v_cmp_ne_u32 vcc, 0, v{O2}", "s_mov_b64 exec, -1", "s_cbranch_vccnz K_MORE_F")
    compact(36)
    I("s_mov_b32 s3, 0", "s_waitcnt lgkmcnt(0)",
      f"v_add_u32_dpp v{O2}, v36, v31 quad_perm:[0,0,0,0] row_mask:0xf bank_mask:0xf",
      f"buffer_load_dwordx4 v[{K2}:{K2+3}], v{O2}, s[12:15], s50 offen sc1", f"v_bfe_i32 v{O2}, v{O2}, 30, 1")
    octets(36, [0], 27, O2+2)
    I(*eadma(O2+2, "s3", 0)); I(*eadma(O2+3, "s3", 1024)); I("s_waitcnt vmcnt(0)")
    phaseB(K2, A2, R2, 40, O2)
    I("s_waitcnt lgkmcnt(0)")
    I(*phaseC(K2, A2, R2))
    I("v_cmp_lt_i32 vcc, 0, v33", "s_cbranch_vccz K_MORE_RET")
    I("K_MORE_F:", f"ds_write_b32 v24, v29 offset:{L_FLAG}", "s_branch K_MORE_RET")
    I("K_SLOW0:", *tr2)
    I("K_SLOW:")
    I("s_mov_b64 exec, -1", "s_waitcnt vmcnt(0) lgkmcnt(0)", "s_barrier")
    I("v_mbcnt_lo_u32_b32 v6, -1, 0", "v_mbcnt_hi_u32_b32 v6, -1, v6", "s_lshl_b32 s3, s18, 6", "v_add_u32 v7, s3, v6")
    I(*TABA); I(f"v_lshlrev_b32 v3, {lt}, v7", TABLD)
    I("v_lshrrev_b32 v1, 5, v6", "v_lshlrev_b32 v1, 6, v1", "v_and_b32 v6, 31, v6", "v_lshlrev_b32 v2, 4, v7")
    for i in range(4): I(f"v_mov_b32 v{16+i}, 0")
    for i in range(13): I(f"ds_write_b128 v2, v[16:19] offset:{4096*i}")
    for b in range(4): I(*onehot(EE+2*b, b))
    I("s_mov_b32 s6, s26", "s_mov_b32 s19, 0", "s_waitcnt vmcnt(0) lgkmcnt(0)", "s_barrier")
    I("K_S_SEG:")
    I("v_readlane_b32 s36, v8, s19", "s_lshl_b32 s3, s18, 6", "s_add_u32 s3, s3, s19", f"s_mul_i32 s3, s3, {CHS}", "s_nop 0",
      "s_lshr_b32 s20, s36, 16", "s_and_b32 s36, s36, 0xffff", "s_add_u32 s36, s36, s3")
    I("K_S_TILE:")
    I("s_cmp_le_i32 s20, 0", "s_cbranch_scc1 K_S_NEXT")
    I("v_add_lshl_u32 v2, s36, v6, 2", "v_lshlrev_b32 v3, 1, v2", "v_cmp_gt_i32 s[38:39], s20, v6")
    I("buffer_load_dword v9, v2, s[12:15], s50 offen sc1", f"buffer_load_dwordx2 a[{AEA}:{AEA+1}], v3, s[12:15], s51 offen sc1", "s_waitcnt vmcnt(0)")
    I(xaddr(9)); I(*[xload(0, k) for k in range(4)])
    I("v_and_b32 v9, 0xffff, v9", "v_lshl_add_u32 v0, v9, 7, v1", "v_subrev_u32 v9, s16, v9"); I(*[xload(2, k) for k in range(4)])
    I("v_mul_u32_u24 v9, 260, v9", "v_lshl_add_u32 v9, v1, 1, v9", "s_waitcnt vmcnt(0)")
    for b in range(4): I(*qchain(NN+16*b, b, EE+2*b)); I(*chain(NN+16*b, b, 0, NN+16*b))
    I(*binit(EE)); I("s_nop 15")
    for b in range(4): I(*E0(b))
    for b in range(4): I(*A0(b))
    for b in range(4): I(*R(b))
    for b in range(4): I(*(U(b) + V(b)))
    I("s_nop 1")
    for b in range(4): I(*G(b))
    I("s_nop 15"); I(*SCL)
    I("s_mov_b64 exec, s[38:39]")
    for i in range(32): I(f"ds_add_f32 v9, v{T0+i} offset:{4*i}")
    I("s_mov_b64 exec, -1", "s_waitcnt lgkmcnt(0)", "s_sub_u32 s20, s20, 32", "s_add_u32 s36, s36, 32", "s_branch K_S_TILE")
    I("K_S_NEXT:", "s_add_u32 s19, s19, 1", "s_cmp_lt_u32 s19, 64", "s_cbranch_scc1 K_S_SEG")
    I("s_barrier", "v_and_b32 v3, 7, v7", "v_lshlrev_b32 v1, 4, v3", "v_lshrrev_b32 v7, 3, v7", "s_mov_b32 s19, 0")
    I("K_S_OUT:")
    I("v_mul_u32_u24 v2, 260, v7", "v_cmp_gt_u32 vcc, s17, v7", "v_lshl_add_u32 v2, v3, 5, v2", "v_add_lshl_u32 v0, s16, v7, 7", "v_cndmask_b32 v0, 2.0, v0, vcc", "v_or_b32 v0, v0, v1")
    for i in range(8): I(f"ds_read_b32 v{16+i}, v2 offset:{4*i}")
    I("s_waitcnt lgkmcnt(0)")
    for i in range(4): I(f"v_cvt_pk_bf16_f32 v{24+i}, v{16+2*i}, v{17+2*i}")
    I("buffer_store_dwordx4 v[24:27], v0, s[8:11], 0 offen", "v_add_u32 v7, 32, v7", "s_waitcnt vmcnt(0)")
    I("s_add_u32 s19, s19, 1", "s_cmp_lt_u32 s19, 7", "s_cbranch_scc1 K_S_OUT", "s_endpgm")

def desc(name, vgpr, accum, sgpr):
    I(".p2align 6", f".amdhsa_kernel {name}")
    for l in (f"next_free_vgpr {vgpr}", f"next_free_sgpr {sgpr}", f"accum_offset {accum}", "group_segment_fixed_size 0", "kernarg_size 88",
              "user_sgpr_count 2", "user_sgpr_kernarg_segment_ptr 1", "system_sgpr_workgroup_id_x 1", "float_denorm_mode_32 3"):
        out.append("  .amdhsa_" + l)
    I(".end_amdhsa_kernel")

hdr = [l.rstrip("\n") for l in open(f"cdna_kernels/{NAME}.s.ref") if l.startswith(";") and "@launch" not in l][:12]
hdr += [f"; @launch grid=(256,1,1) block=(256,1,1) lds={L_SIZE}"]
I('.amdgcn_target "amdgcn-amd-amdhsa--gfx950"', ".text")
kernel()
I('.section .rodata,"a"')
desc(NAME + "_kernel", 512, 256, 102)
if OPT["stamp"]: hdr.append("; stamps: " + " ".join(stamps))
open(sys.argv[1], "w").write("\n".join(hdr + out) + "\n")
```

```python
import sys, struct, math
NAME = "standalone__edge_featured_mpnn_mpnn__graph"
OPT = dict(stamp=0, diag=0, tp=64, ntr=32, xpos=0, sl=3, cw=1, ost='sc1', w2q=1, up=4, wpos=1, tw=2, f1pos=0, xa=2, xb=0, slp=4, tl=0, tm=63, wso=0, a1=12, pb=0)
for a in sys.argv[2:]:
    k, v = a.split("="); OPT[k] = int(v) if v.lstrip("-").isdigit() else v

N_NODES = 50000; E = 800000
CH = 3125; CHS = 3200
TP = OPT['tp']; FL_OFF = 0x40000
TAB_OFF = 0; WP_OFF = 0x48000; KEY_OFF = 0x48000; EA_OFF = 0x368000; STAMP_OFF = 0x1000000
WS_SIZE = 0x10000000 - (OPT['wso'] << 20)
SPIN = 400000
def f32(x): return "0x%08x" % struct.unpack("<I", struct.pack("<f", x))[0]
NLOG2E = f32(-math.log2(math.e)); NLN2 = f32(-math.log(2.0))

out = []
def I(*ls):
    for l in ls:
        for x in l.split("\n"):
            x = x.strip()
            if x: out.append(x if x.endswith(":") or x.startswith(".") else "    " + x)
vm = []
def VM(tag, *ls):
    for l in ls:
        if l.startswith(("buffer_", "global_")): vm.append(tag)
        I(l)
def vw(tag, k=0):
    idx = [i for i, t in enumerate(vm) if t == tag]
    return len(vm) - 1 - idx[-1-k]
def srd(d, lo, hi, size, stride=0):
    I(f"s_mov_b32 s{d}, s{lo}")
    if stride: I(f"s_or_b32 s{d+1}, s{hi}, {hex(stride << 16)}")
    else: I(f"s_mov_b32 s{d+1}, s{hi}")
    I(f"s_mov_b32 s{d+2}, {size}", f"s_mov_b32 s{d+3}, 0x20000")
def scan64(v, fill=None):
    fill = list(fill or [])
    def gap():
        n = 0
        while fill and n < 2: I(fill.pop(0)); n += 1
        if n < 2: I(f"s_nop {1-n}")
    for op in ("row_shr:1", "row_shr:2", "row_shr:4", "row_shr:8"):
        gap(); I(f"v_add_u32_dpp v{v}, v{v}, v{v} {op} row_mask:0xf bank_mask:0xf bound_ctrl:0")
    gap(); I(f"v_add_u32_dpp v{v}, v{v}, v{v} row_bcast:15 row_mask:0xa bank_mask:0xf")
    gap(); I(f"v_add_u32_dpp v{v}, v{v}, v{v} row_bcast:31 row_mask:0xc bank_mask:0xf")
    I(*fill)
SLOTS = list(range(86, 98)) + list(range(64, 84))
stamps = []
def stamp(name, twice=False, lvl=1):
    if OPT["diag"] == name: I("s_memrealtime s[100:101]", "s_waitcnt lgkmcnt(0)", "s_nop 0")
    if not OPT["stamp"] or lvl > OPT["sl"]: return
    if twice:
        stamps.append(name + "1")
        I(f"s_mov_b32 s{SLOTS[len(stamps)-1]}, s{SLOTS[len(stamps)]}", "s_nop 0")
        name += "2"
    stamps.append(name)
    I(f"{'s_memtime' if OPT['stamp']==1 else 's_memrealtime'} s[98:99]", "s_waitcnt lgkmcnt(0)", f"s_mov_b32 s{SLOTS[len(stamps)-1]}, s98")

CAP = 48; NS = 4 + 4*CAP
STG0 = 2048
L1_KEY = 0; L1_EA = CHS*4; L1_CNT = 38912; L1_BASE = L1_CNT + 1024
L_H1 = STG0 + 5*8192; L_H2 = L_H1 + 256; L_SN = L_H2 + 256; L_FLAG = L_SN + 256; L_TBL = L_H1 + 1024
L_TB2 = L_TBL + 1024; L_SPL = L_TB2 + 1024; SPL_S = 144
L_W = L_SPL; L_S = L_W + 32768; L_W2 = L_S + 4096
L_OST = L_SPL + 128*SPL_S; OST_W = 32*SPL_S
L_X = L_W2 + 16384
L_NODE = L_X + 200*128
L_SIZE = L_NODE + 196*NS
assert L_SIZE <= 163840 and L_SPL + 123*SPL_S <= L_OST and L_OST + 4*OST_W <= L_W2
OSTF = "" if OPT["ost"] == "plain" else " " + OPT["ost"]
T0, T1, EE, NN, DD, QQ = 16, 32, 48, 64, 128, 192
AX, AW1A, AW1B, AW1C, AW2, AEA, AB1 = 0, 48, 112, 176, 184, 248, 254
BIG = 0x1000000

import re
V4 = ("v_exp_f32", "v_rcp_f32", "v_add_f32", "v_mul_f32", "v_add_u32", "v_mov_b32", "v_and_b32", "v_lshrrev_b32", "v_lshlrev_b32", "v_cvt_f32_ubyte2",
      "v_mul_u32_u24", "v_cndmask_b32", "v_readfirstlane_b32", "v_or_b32", "v_sub_u32", "v_xor_b32")
def has_lit(s):
    for t in re.split(r"[,\s]+", s.strip())[1:]:
        if re.fullmatch(r"0x[0-9a-fA-F]+|-?\d+", t):
            v = int(t, 0)
            if not -16 <= v <= 64: return True
    return False
def isz(s):
    s = s.strip(); op = s.split()[0]
    if s.endswith(":") or s.startswith("."): return 0
    if op.startswith(("s_waitcnt", "s_nop", "s_cbranch", "s_branch", "s_movk", "s_barrier")): return 4
    if op.startswith("s_memtime") or op.startswith("s_memrealtime"): return 8
    if op.startswith("s_"): return 8 if has_lit(s) else 4
    if op.startswith("v_cmp") and not op.endswith("_e64"): return (8 if has_lit(s) else 4) if s.split()[1] == "vcc," else 8
    if op == "v_cndmask_b32" and not s.endswith("vcc"): return 8
    if op in V4: return 8 if has_lit(s) else 4
    return 8
def align8(seg):
    off = 0; last4 = None
    seg = list(seg); i = 0
    while i <= len(seg):
        s = seg[i] if i < len(seg) else "v_pk_x"
        z = isz(s)
        if z == 8 and off % 8:
            if last4 is not None:
                op = seg[last4].split()[0]
                seg[last4] = seg[last4].replace(op, op + "_e64", 1); off += 4
            elif i == len(seg) or sum(1 for x in seg[i:i+5] if isz(x) == 8) == 5:
                if i < len(seg): print("pad before", s, file=sys.stderr)
                seg.insert(i, "s_nop 0"); off += 4; i += 1
        if z == 8: last4 = None
        if z == 4 and s.split()[0] in V4 and s.split()[0] != "v_readfirstlane_b32" and off % 8 == 0: last4 = i
        off += z; i += 1
    return seg
def xload(buf, kk): return f"buffer_load_dwordx4 a[{AX+16*buf+4*kk}:{AX+16*buf+4*kk+3}], v0, s[4:7], 0 offen offset:{16*kk}"
def xaddr(rec): return f"v_mad_u32_u16 v0, v{rec}, s59, v1 op_sel:[1,0,0,0]"
def eaddr(d, rec): return f"v_and_b32 v{d}, s49, v{rec}"
def earead(buf, r): return f"ds_read_b64 a[{AEA+2*buf}:{AEA+2*buf+1}], v{r}"
def chain(dst, blk, buf, c):
    L = []
    for kk in range(4):
        w = AW1A + 16*blk + 4*kk; x = AX + 16*buf + 4*kk; ci = c if kk == 0 else dst
        L.append(f"v_mfma_f32_32x32x16_bf16 v[{dst}:{dst+15}], a[{w}:{w+3}], a[{x}:{x+3}], v[{ci}:{ci+15}]")
    return L + [f"v_mfma_f32_32x32x8_bf16 v[{dst}:{dst+15}], a[{AW1C+2*blk}:{AW1C+2*blk+1}], a[{AEA+2*buf}:{AEA+2*buf+1}], v[{dst}:{dst+15}]"]
def qchain(dst, blk, oh, order=(0, 1, 2, 3)):
    L = []
    for kk in order:
        w = AW1B + 16*blk + 4*kk; x = AX + 32 + 4*kk
        L.append(f"v_mfma_f32_32x32x16_bf16 v[{dst}:{dst+15}], a[{w}:{w+3}], a[{x}:{x+3}], " + ("0" if kk == order[0] else f"v[{dst}:{dst+15}]"))
    return L + [f"v_mfma_f32_32x32x8_bf16 v[{dst}:{dst+15}], a[{AB1}:{AB1+1}], v[{oh}:{oh+1}], v[{dst}:{dst+15}]"]
def onehot(r, blk):
    c = "1.0" if blk & 1 else "s53"
    return [f"v_mov_b32 v{r+(blk>>1)}, {c}", f"v_mov_b32 v{r+1-(blk>>1)}, 0"]
def gemm2(blk, hb):
    L = []
    for p in range(2):
        for ob in range(2):
            w = AW2 + 4*((blk*2+p)*2+ob); o = T0 + 16*ob
            L.append(f"v_mfma_f32_32x32x16_bf16 v[{o}:{o+15}], a[{w}:{w+3}], v[{hb+4*p}:{hb+4*p+3}], v[{o}:{o+15}]")
    return L
def weave(ms, fill, cnts, extra=None):
    L = []; fill = list(fill)
    for k, m in enumerate(ms):
        L.append(m)
        if extra: L += extra.get(k, [])
        L += fill[:cnts[k]]; fill = fill[cnts[k]:]
    assert not fill
    return L
def repoll(tag, load, cmp):
    I(f"{tag}:", f"s_mov_b32 s3, {SPIN}", f"{tag}_L:", "s_mov_b64 exec, vcc", f"s_sleep {OPT['slp']}", load, "s_sub_u32 s3, s3, 1", "s_cbranch_scc1 K_END",
      "s_waitcnt vmcnt(0)", cmp, f"s_cbranch_vccnz {tag}_L", "s_mov_b64 exec, -1", f"s_branch {tag}_RET")

def cost(x):
    op = x.split()[0]
    if op.startswith(("v_exp", "v_rcp")): return 8
    if op.startswith("ds_write"): return {"b32": 8, "b64": 12, "b128": 20}[op.split("_")[-1]]
    if op.startswith("buffer_store"): return 12
    return 4
def spread(ms, fill, pre=None, tail=None):
    pre = pre or {}
    L = []; fill = list(fill); n = len(ms)
    if tail is None: tail = 36
    for k, m in enumerate(ms):
        L.append(m); P = pre.get(k, []); L += P
        if k == n-1: break
        room = 32 - (8 if "x16" in m else 4) - sum(cost(x) for x in P)
        if P and P[0].startswith("s_") and "x16" in m: room += 4
        if P and not P[0].startswith(("s_", "v_")) and "x16" not in m: room -= 4
        while fill and room > 0 and sum(map(cost, fill)) - cost(fill[0]) >= tail - sum(cost(x) for x in pre.get(n-1, [])):
            room -= cost(fill[0]); L.append(fill.pop(0))
    return L + fill
def pk3(b, tc):
    n = NN+16*b; d = DD+16*b
    return [f"v_pk_fma_f32 v[{n+2*i}:{n+2*i+1}], v[{n+2*i}:{n+2*i+1}], v[{EE+2*i}:{EE+2*i+1}], v[{n+2*i}:{n+2*i+1}]" for i in range(8)] + \
           [f"v_pk_fma_f32 v[{n+2*i}:{n+2*i+1}], v[{tc+2*i}:{tc+2*i+1}], v[{d+2*i}:{d+2*i+1}], v[{n+2*i}:{n+2*i+1}]" for i in range(8)] + \
           [f"v_pk_fma_f32 v[{d+2*i}:{d+2*i+1}], v[{d+2*i}:{d+2*i+1}], v[{EE+2*i}:{EE+2*i+1}], v[{d+2*i}:{d+2*i+1}]" for i in range(8)]
def exps(tc): return [f"v_exp_f32 v{EE+i}, v{tc+i}" for i in range(16)]
def E0(b): return [f"v_exp_f32 v{DD+16*b+i}, v{NN+16*b+i}" for i in range(16)]
def A0(b): return [f"v_pk_add_f32 v[{DD+16*b+2*i}:{DD+16*b+2*i+1}], v[{DD+16*b+2*i}:{DD+16*b+2*i+1}], 1.0 op_sel_hi:[1,0]" for i in range(8)]
def A1(b): return [f"v_add_f32 v{DD+16*b+i}, 1.0, v{DD+16*b+i}" for i in range(16)]
LB, RM, OA, OH3 = EE, EE+4, EE+5, EE+8
def R(b): return [f"v_rcp_f32 v{DD+16*b+i}, v{DD+16*b+i}" for i in range(16)]
def M(b): return [f"v_min3_f32 v{RM}, v{DD+16*b+2*i}, v{DD+16*b+2*i+1}, " + ("1.0" if b == 0 and i == 0 else f"v{RM}") for i in range(8)]
def U(b): return [f"v_pk_mul_f32 v[{NN+16*b+2*i}:{NN+16*b+2*i+1}], v[{NN+16*b+2*i}:{NN+16*b+2*i+1}], v[{DD+16*b+2*i}:{DD+16*b+2*i+1}]" for i in range(8)]
def V(b): return [f"v_cvt_pk_bf16_f32 v{NN+16*b+i}, v{NN+16*b+2*i}, v{NN+16*b+2*i+1}" for i in range(8)]
def G(b): return gemm2(b, NN+16*b)
def lbinit(r): return [f"v_cvt_f32_ubyte2 v{r+2}, v5", f"v_mov_b32 v{r+1}, 0", f"v_mov_b32 v{r+3}, 0", f"v_lshrrev_b32 v{r}, 16, v{r+2}"]
def binit(r): return [f"v_mfma_f32_32x32x8_bf16 v[{T0+16*ob}:{T0+16*ob+15}], v[14:15], v[{r+2*ob}:{r+2*ob+1}], 0" for ob in range(2)]
def dec2(lb):
    return [f"v_lshrrev_b32 v{OA}, 24, v5", f"v_and_b32 v{OA+2}, s54, v5", f"v_cmp_eq_u32 vcc, s54, v{OA}", f"v_mad_u32_u24 v{OA}, v{OA}, s55, v1",
            f"v_add_lshl_u32 v{OA+2}, s16, v{OA+2}, 7", f"v_cndmask_b32 v{OA}, v{OA}, v8, vcc", f"v_cndmask_b32 v{OA+2}, 2.0, v{OA+2}, vcc",
            f"v_cmp_eq_u32 s[38:39], 0, v{lb+2}"]
SCL = [f"v_pk_mul_f32 v[{T0+2*i}:{T0+2*i+1}], v[{T0+2*i}:{T0+2*i+1}], s[24:25]" for i in range(16)]
def check(tag):
    return [f"v_cmp_class_f32 s[40:41], v{T0}, s58", f"v_cmp_lt_f32 vcc, s57, v{RM}", "s_nop 0", "s_andn2_b64 vcc, vcc, s[40:41]", "s_andn2_b64 s[40:41], vcc, s[38:39]",
            "s_cmp_eq_u64 s[40:41], -1", f"s_cbranch_scc0 {tag}", f"{tag}_RET:"]
OCV = [f"v_cvt_pk_bf16_f32 v{T0+i}, v{T0+2*i}, v{T0+2*i+1}" for i in range(16)]
OCON = ["v_mbcnt_lo_u32_b32 v11, -1, 0", "v_mbcnt_hi_u32_b32 v11, -1, v11", "v_and_or_b32 v8, v11, 31, s45", "v_lshrrev_b32 v9, 3, v11", "v_mad_u32_u24 v8, v8, s55, v1",
        "v_mul_u32_u24 v9, s47, v9", "v_and_b32 v11, 7, v11", "v_add_u32 v9, s46, v9", "v_lshlrev_b32 v11, 4, v11", "v_add_u32 v10, v9, v11"]
OIW = f"ds_write_b32 v8, v{OA+2} offset:{L_SPL+64}"
OSW = [f"ds_write_b128 v{OA}, v[{T0+4*k}:{T0+4*k+3}] offset:{L_SPL+16*k}" for k in range(4)]
OSR = [f"ds_read2_b32 v[{EE+2*k}:{EE+2*k+1}], v9 offset0:{32+72*k} offset1:{68+72*k}" for k in range(2)] + \
      [f"ds_read_b128 v[{T1+4*j}:{T1+4*j+3}], v10 offset:{144*j}" for j in range(4)]
OOR = [f"v_or_b32 v{EE+j}, v{EE+j}, v11" for j in range(4)]
OST = [f"buffer_store_dwordx4 v[{T1+4*j}:{T1+4*j+3}], v{EE+j}, s[8:11], 0 offen{OSTF}" for j in range(4)]
def xrow(d, e, t, base): return [f"v_and_b32 v{d}, s54, v{e}", f"v_and_b32 v{t}, 7, v{e}", f"v_lshl_add_u32 v{d}, v{d}, 7, v{base}", f"v_lshlrev_b32 v{t}, 4, v{t}", f"v_xor_b32 v{d}, v{d}, v{t}"]
def xrd(r): return [f"v_xor_b32 v{r[k]}, {16*k}, v{r[0]}" for k in range(1, 4)], [f"ds_read_b128 a[{AX+32+4*k}:{AX+35+4*k}], v{r[k]}" for k in range(4)]
def recs(d, p): return [f"ds_read2_b32 v[{d}:{d+1}], v{p} offset0:1 offset1:2", f"ds_read2_b32 v[{d+2}:{d+3}], v{p} offset0:3 offset1:4"]
LSET = ["s_max_u32 s20, s20, 2", "s_sub_u32 s37, s20, 3", "s_sub_u32 s20, s20, 1", "s_mov_b32 s19, 1"]

FI, FR = 192, 208
def kernel():
    K = NAME + "_kernel"
    lt = TP.bit_length() - 1
    assert L_W % 256 == 0 and L_X % 128 == 0
    I(".p2align 12", f".globl {K}", ".p2align 8", f".type {K},@function", f"{K}:")
    I("s_cmp_ge_u32 s2, 256", "s_cbranch_scc1 K_END0")
    stamp("start")
    I("s_load_dwordx16 s[64:79], s[0:1], 0", "s_load_dwordx4 s[80:83], s[0:1], 64", "s_load_dwordx2 s[12:13], s[0:1], 80")
    DST, SRC, EAR, AD, RK, P8, CP, WR = 64, 80, 96, 128, 144, 160, 176, 208
    if OPT["cw"]:
        I("s_getpc_b64 s[62:63]", "K_PC:", "s_bfe_u32 s3, s2, 0x30003", "v_and_b32 v2, 0xf8, v0", "v_add_lshl_u32 v2, v2, s3, 7",
          "v_min_u32 v2, K_SLOW0-K_PC, v2", "global_load_dword v10, v2, s[62:63]")
    I("v_lshrrev_b32 v2, 6, v0", "v_and_b32 v6, 63, v0", "v_lshlrev_b32 v17, 2, v0", "v_readfirstlane_b32 s18, v2")
    I("v_mov_b32 v24, 0", f"ds_write_b32 v17, v24 offset:{L1_CNT}", "v_lshlrev_b32 v16, 4, v0", "v_lshlrev_b32 v4, 4, v6")
    I(f"s_mul_i32 s60, s2, {CH*4}", "s_mov_b32 s15, 0x20000", f"s_mov_b32 s14, {WS_SIZE}", f"s_mov_b32 s30, {E*4}", "s_mov_b32 s34, s30")
    for r in (31, 35, 43, 47, 51, 55, 59, 7, 11): I(f"s_mov_b32 s{r}, s15")
    I(f"s_mov_b32 s42, {132*256}", f"s_movk_i32 s46, {128*128}", f"s_mov_b32 s54, {E*8}", "s_movk_i32 s58, 256", f"s_mov_b32 s26, {N_NODES*128}", "s_mov_b32 s6, s26", "s_mov_b32 s10, s26")
    I("s_add_u32 s19, s60, 4096", "s_add_u32 s20, s60, 8192", f"s_add_u32 s21, s60, {(3072-192)*4}")
    I("v_mov_b32 v20, -1", "v_mov_b32 v21, -1", "v_mov_b32 v22, -1", "v_mov_b32 v23, -1")
    I("s_and_b32 s84, s2, 7", "s_lshl_b32 s84, s84, 5", "s_lshr_b32 s3, s2, 3", "s_add_u32 s84, s84, s3")
    I("s_mul_i32 s16, s84, 12800051", "s_add_u32 s16, s16, 0xffff", "s_add_u32 s17, s16, 12800051", "s_lshr_b32 s16, s16, 16", "s_lshr_b32 s17, s17, 16",
      f"s_min_u32 s17, s17, {N_NODES}", "s_sub_u32 s17, s17, s16", "s_mov_b32 s85, 85899")
    I("v_mov_b32 v29, 1", "v_lshlrev_b32 v18, 5, v0", "v_lshlrev_b32 v19, 3, v0", "v_lshlrev_b32 v43, 2, v6")
    I("v_subrev_u32 v45, 192, v0", f"v_cmp_gt_u32 vcc, {CH-3072}, v45", f"v_mov_b32 v45, {hex(BIG)}", "s_mov_b32 s39, 0x05040100", "v_cndmask_b32 v45, v45, v24, vcc")
    I(f"v_lshrrev_b32 v42, {lt-4}, v6", f"v_lshlrev_b32 v42, {lt+8}, v42", f"v_and_b32 v37, {TP-1}, v4", "v_add_u32 v42, v42, v37")
    I("v_lshrrev_b32 v1, 5, v6", "v_bfe_u32 v52, v6, 2, 2", "v_and_b32 v53, 3, v6", "v_bfe_u32 v54, v6, 4, 1",
      "v_lshlrev_b32 v55, 3, v53", "v_lshl_add_u32 v55, v54, 5, v55",
      "v_lshl_add_u32 v56, v52, 8, v55", "v_lshl_add_u32 v60, v1, 10, v56", f"v_add_u32 v60, {L_S}, v60",
      "v_lshl_add_u32 v56, v1, 13, v56", "v_lshl_add_u32 v56, v52, 6, v56", f"v_add_u32 v56, {L_W}, v56",
      "v_xor_b32 v57, 64, v56", "v_xor_b32 v58, 0x80, v56", "v_xor_b32 v59, 0xc0, v56",
      "v_lshl_add_u32 v61, v52, 6, v55", "v_lshl_add_u32 v61, v1, 8, v61", f"v_add_u32 v61, {L_S + 2048}, v61",
      "v_and_b32 v55, 1, v53", "v_lshlrev_b32 v55, 6, v55", "v_lshl_add_u32 v55, v54, 4, v55", "v_lshrrev_b32 v53, 1, v53", "v_lshl_add_u32 v55, v53, 3, v55",
      "v_lshl_add_u32 v62, v52, 7, v55", "v_lshl_add_u32 v62, v1, 9, v62", f"v_add_u32 v62, {L_W2}, v62",
      "v_and_b32 v52, 1, v52", "v_lshl_add_u32 v63, v52, 5, v55", "v_lshl_add_u32 v63, v1, 8, v63", f"v_add_u32 v63, {L_S + 2560}, v63",
      "v_lshlrev_b32 v1, 6, v1")
    I("s_cmp_lt_u32 s2, 64", "s_cselect_b32 s61, s18, 0", "s_cmp_lg_u32 s61, 1")
    I("s_waitcnt lgkmcnt(0)")
    I("s_mov_b64 s[28:29], s[70:71]")
    if OPT["wso"]: I(f"s_add_u32 s12, s12, {OPT['wso'] << 20}", "s_addc_u32 s13, s13, 0", "s_cmp_lg_u32 s61, 1")
    so = ("s60", "s19", "s20")
    for i in range(3): I(f"buffer_load_dwordx4 v[{DST+4*i}:{DST+4*i+3}], v16, s[28:31], {so[i]} offen")
    I(f"buffer_load_dword v{DST+12}, v17, s[28:31], s21 offen", "s_mov_b64 s[32:33], s[68:69]", "s_cbranch_scc1 R_NOT1")
    I("s_lshl_b32 s3, s2, 12", "s_lshl_b32 s36, s2, 6", f"s_add_u32 s36, s36, {FL_OFF}")
    for i in range(4): I(f"buffer_store_dwordx4 v[20:23], v4, s[12:15], s3 offen offset:{1024*i} sc1")
    I("s_mov_b64 exec, 15", "buffer_store_dwordx4 v[20:23], v4, s[12:15], s36 offen sc1", "s_mov_b64 exec, -1", "R_NOT1:")
    stamp("issued", lvl=2)
    def tlbwarm():
        I(f"v_and_b32 v40, {OPT['tm']}, v6", "s_cmp_eq_u32 s18, 1", "s_cbranch_scc1 T_1", "s_cmp_eq_u32 s18, 2", "s_cbranch_scc1 T_2", "s_cmp_eq_u32 s18, 3", "s_cbranch_scc1 T_3")
        I("v_mul_u32_u24 v40, 100000, v40", "global_load_dword v10, v40, s[64:65]", "global_load_dword v10, v24, s[72:73]", "s_branch T_E")
        I("T_1:", f"v_mul_u32_u24 v40, {4*CHS*8}, v40", f"v_add_u32 v40, {EA_OFF + 3*CHS*8 + CHS*8 - 128}, v40", "global_load_dword v10, v40, s[12:13]", "global_load_dword v10, v24, s[82:83]", "s_branch T_E")
        I("T_2:", f"v_mul_u32_u24 v40, {4*CHS*4}, v40", f"v_add_u32 v40, {KEY_OFF + CHS*4 - 128}, v40", "global_load_dword v10, v40, s[12:13]", "global_load_dword v10, v24, s[76:77]", "s_branch T_E")
        I("T_3:", "v_and_b32 v40, 1, v6", "v_mul_u32_u24 v40, 194, v40", "v_add_lshl_u32 v40, s16, v40, 7", "global_load_dword v10, v24, s[74:75]", "global_load_dword v10, v24, s[78:79]", "global_load_dword v10, v40, s[80:81]", "T_E:")
        vm.extend(["tl", "tl"])
    vm.append("dst")
    if OPT["tl"] == 3: tlbwarm()
    for i in range(3): VM("src", f"buffer_load_dwordx4 v[{SRC+4*i}:{SRC+4*i+3}], v16, s[32:35], {so[i]} offen")
    VM("src", f"buffer_load_dword v{SRC+12}, v17, s[32:35], s21 offen", "s_barrier")
    if OPT["tl"] == 1: tlbwarm()
    I("s_mov_b64 s[52:53], s[66:67]")
    for r in ("s60", "s19", "s20", "s21"): I(f"s_lshl_b32 {r}, {r}, 1")
    el = []
    for i in range(3): el += [f"buffer_load_dwordx4 v[{EAR+8*i}:{EAR+8*i+3}], v18, s[52:55], {so[i]} offen", f"buffer_load_dwordx4 v[{EAR+8*i+4}:{EAR+8*i+7}], v18, s[52:55], {so[i]} offen offset:16"]
    el.append(f"buffer_load_dwordx2 v[{EAR+24}:{EAR+25}], v19, s[52:55], s21 offen")
    up = OPT["up"]
    I("v_mov_b32 v25, 0", "v_mov_b32 v26, 0", "v_mov_b32 v27, 0", f"v_add_u32 v5, {L_NODE}, v16")
    for i in range(10): VM("ea", f"ds_write_b128 v5, v[24:27] offset:{4096*i}", *(el[i-10+up:i-9+up] if i >= 10-up else []))
    if OPT["tl"] == 2: tlbwarm()
    I("v_mov_b32 v28, 0x7a0000ff",
      "v_cmp_eq_u32 vcc, 2, v2", f"ds_write_b32 v17, v28 offset:{L_TBL}", f"v_mov_b32 v28, {hex(BIG)}", "v_cndmask_b32 v3, v24, v28, vcc",
      f"ds_write_b32 v17, v3 offset:{L_H1}", f"ds_write_b32 v17, v28 offset:{L_TB2}")
    I("v_and_b32 v3, 0x7c, v43", f"ds_write_b32 v3, v20 offset:{L1_KEY + CH*4}")
    I("s_mov_b64 s[40:41], s[72:73]", "s_mov_b64 s[44:45], s[76:77]", "s_mov_b64 s[56:57], s[82:83]",
      "s_mov_b64 s[4:5], s[64:65]", "s_mov_b64 s[8:9], s[80:81]")
    I("s_cmp_eq_u32 s18, 0", "s_cselect_b64 s[48:49], s[74:75], s[78:79]", "s_cselect_b32 s50, 2, 1", "s_lshl_b32 s50, s50, 7")
    I(f"s_mul_i32 s3, s2, {CHS*4}", f"s_add_u32 s3, s3, {KEY_OFF}", "s_add_u32 s28, s12, s3", "s_addc_u32 s29, s13, 0", f"s_movk_i32 s30, {(CH+19)*4}")
    I(f"s_mul_i32 s3, s2, {CHS*8}", f"s_add_u32 s3, s3, {EA_OFF}", "s_add_u32 s32, s12, s3", "s_addc_u32 s33, s13, 0", f"s_movk_i32 s34, {(CH+1)*8}")
    I("s_lshl_b32 s38, s18, 12", f"s_add_u32 m0, s38, {L_W2}")
    I("s_cmp_lg_u32 s61, 1", f"s_waitcnt vmcnt({vw('dst')+5})", "s_cbranch_scc0 R_W", f"s_waitcnt vmcnt({vw('dst')})", "R_W:")
    stamp("dst", lvl=2)
    for i in range(13):
        I(f"v_mul_u32_u24 v{AD+i}, s85, v{DST+i}", f"v_lshlrev_b32_sdwa v{AD+i}, 2, v{AD+i} dst_sel:DWORD dst_unused:UNUSED_PAD src0_sel:DWORD src1_sel:BYTE_3")
        if i == 12: I(f"v_or_b32 v{AD+i}, v45, v{AD+i}")
        I(f"ds_add_rtn_u32 v{RK+i}, v{AD+i}, v29 offset:{L1_CNT}")
        if i >= 6 + up: VM("ea", el[i-6])
    I("s_cmp_eq_u32 s18, 0", "s_waitcnt lgkmcnt(0)", "s_barrier")
    stamp("barA", lvl=3)
    perm = [f"v_perm_b32 v{DST+i}, v{SRC+i}, v{DST+i}, s39" for i in range(13)]
    I("s_cbranch_scc1 K_SCAN")
    I("s_cmp_eq_u32 s18, 2", "s_cbranch_scc1 PG1", "s_cmp_eq_u32 s18, 3", "s_cbranch_scc1 PG2", "s_cmp_lg_u32 s61, 1", "s_cbranch_scc1 K_NOSCAN")
    I("s_and_b32 s3, s2, 3", "s_lshl_b32 s3, s3, 6", f"s_waitcnt vmcnt({vw('dst')})", "s_mov_b64 exec, 1", "buffer_atomic_add v29, v24, s[56:59], s3 offen", "s_mov_b64 exec, -1", "s_branch K_NOSCAN")
    I("K_SCAN:", f"ds_read_b128 v[32:35], v4 offset:{L1_CNT}", "s_waitcnt lgkmcnt(0)")
    I("v_add_u32 v38, v32, v33", "v_add_u32 v39, v38, v34", "v_add_u32 v41, v39, v35", "v_mov_b32 v36, v41")
    scan64(36)
    I("v_sub_u32 v36, v36, v41", "v_add_u32 v37, v36, v32", "v_add_u32 v38, v36, v38", "v_add_u32 v39, v36, v39")
    I(f"ds_write_b128 v4, v[36:39] offset:{L1_BASE}")
    for i in range(4): I(f"v_lshl_or_b32 v{32+i}, v{32+i}, 16, v{36+i}")
    I("s_waitcnt lgkmcnt(0)", "K_WARM_RET:", "K_NOSCAN:", "s_barrier")
    stamp("barB", lvl=3)
    wl = [[f"s_movk_i32 s3, {4096*i}", f"buffer_load_dwordx4 v[{WR+4*i}:{WR+4*i+3}], v16, s[40:43], s3 offen"] for i in range(8)]
    wl += [["s_mov_b32 s3, 0x8000", f"buffer_load_dword v{WR+32}, v17, s[40:43], s3 offen"], [f"buffer_load_dword v{WR+33}, v43, s[48:51], 0 offen"]]
    wl += [[f"buffer_load_dwordx4 v4, s[44:47], s38 offen offset:{1024*i} lds"] for i in range(4)]
    nw = {0: (10, 0, 4), 1: (5, 5, 4), 2: (0, 10, 4), 3: (0, 0, 14), 4: (5, 9, 0)}[OPT["wpos"]]
    for i in range(13): I(f"ds_read_b32 v{AD+i}, v{AD+i} offset:{L1_BASE}")
    I("s_cmp_lg_u32 s61, 1", f"s_waitcnt vmcnt({vw('src')+1})", "s_cbranch_scc0 R_W2", f"s_waitcnt vmcnt({vw('src')})", "R_W2:", *perm)
    for i in range(13):
        if i in (0, 6): I(f"s_waitcnt lgkmcnt({7 if i == 0 else 6})")
        I(f"v_add_lshl_u32 v{AD+i}, v{AD+i}, v{RK+i}, 2")
        if i == 12: I(f"v_or_b32 v{AD+i}, v45, v{AD+i}")
        I(f"ds_write_b32 v{AD+i}, v{DST+i} offset:{L1_KEY}")
        if i >= 13 - nw[0]: VM("w", *wl.pop(0))
    I("s_waitcnt lgkmcnt(0)", "s_barrier")
    stamp("barC", lvl=2)
    for i in range(4): I(f"ds_read_b128 v[{CP+4*i}:{CP+4*i+3}], v16 offset:{L1_KEY+4096*i}")
    for i in range(13): I(f"v_lshlrev_b32 v{P8+i}, 1, v{AD+i}")
    for i in range(4): VM("kst", f"s_movk_i32 s3, {4096*i}", f"s_waitcnt lgkmcnt({3-i})", f"buffer_store_dwordx4 v[{CP+4*i}:{CP+4*i+3}], v16, s[28:31], s3 offen sc1")
    F1LD = "buffer_load_dword v20, v43, s[56:59], s37 offen sc1"
    F1CMP = "v_cmp_lt_u32 vcc, v20, v22"
    TABLD = "buffer_load_dword v8, v3, s[12:15], s36 offen sc1"
    TABA = [f"s_lshr_b32 s36, s84, {lt-2}", f"s_lshl_b32 s36, s36, {lt+8}", f"s_and_b32 s3, s84, {TP//4-1}", "s_lshl2_add_u32 s36, s3, s36"]
    I("s_cmp_eq_u32 s18, 2", "s_cselect_b32 s37, 0, 0x1000", *TABA); I(f"v_lshlrev_b32 v3, {lt}, v0")
    I("v_and_b32 v22, 0xcf, v0", "v_cmp_eq_u32 vcc, 0x80, v22", f"s_lshl_b32 s60, s2, {lt}", "s_lshl_b32 s61, s2, 4", "v_cndmask_b32_e64 v22, 0, 16, vcc", f"s_add_u32 s61, s61, {FL_OFF}")
    I(f"s_mov_b32 s24, {NLOG2E}", f"s_mov_b32 s25, {NLOG2E}", "s_mov_b32 s27, 0xffff0000", "v_and_b32 v5, 0x300, v16", "v_lshrrev_b32 v5, 2, v5", "v_xor_b32 v5, v5, v16", f"v_add_u32 v5, {L_W}, v5")
    I(f"v_lshl_add_u32 v7, v2, 8, v17", f"v_add_u32 v7, {L_S + 2048}, v7", f"v_add_u32 v9, {L_S}, v17")
    I("s_lshl_b32 s23, s18, 11", "v_and_b32 v48, 0x380, v4", "v_bfe_u32 v49, v6, 2, 1", "v_lshl_add_u32 v48, v49, 10, v48", "v_and_b32 v30, 48, v4",
      "v_lshl_add_u32 v48, v30, 1, v48", "v_add_u32 v48, s23, v48", "v_add_u32 v49, 8, v48", "v_add_u32 v50, 16, v48", "v_add_u32 v51, 24, v48",
      f"s_mul_i32 s22, s16, {NS}", f"s_sub_u32 s22, {L_NODE}, s22", f"v_mov_b32 v28, {NS}",
      "v_add_u32 v31, 2.0, v30", f"v_mul_u32_u24 v44, {CHS}, v0", "v_and_b32 v26, 0x70, v4", "v_add_u32 v27, 0x80000000, v26",
      "v_lshrrev_b32 v46, 3, v0", "v_lshlrev_b32 v47, 4, v46", "v_xor_b32 v47, v47, v4", "v_and_b32 v47, 0x70, v47", "v_add_u32 v46, s16, v46", "v_lshl_add_u32 v46, v46, 7, v47",
      "s_lshl_b32 s62, s18, 10", f"s_add_u32 s62, s62, {L_X}", "s_cmp_eq_u32 s18, 0", "s_mov_b32 s63, 0x3f000", f"s_cselect_b32 s63, {L_X + 6*4096}, s63")
    stamp("kout", lvl=3)
    xd = [[f"s_add_u32 m0, s62, {4096*i}" if i < 6 else "s_mov_b32 m0, s63", "v_add_u32 v46, 0x1000, v46" if i else "s_nop 0",
           "buffer_load_dwordx4 v46, s[4:7], 0 offen lds"] for i in range(7)]
    for i in range(13):
        if i in (0, 4, 8): I(f"s_waitcnt vmcnt({vw('ea', {0: 5, 4: 3, 8: 0}[i])})")
        if i == 8: stamp("ea_in", lvl=3)
        if i == OPT["f1pos"]: VM("f1", F1LD)
        I(f"ds_write_b64 v{P8+i}, v[{EAR+2*i}:{EAR+2*i+1}] offset:{L1_EA}")
        if i >= 13 - nw[1]: VM("w", *wl.pop(0))
    for k in range(OPT["xa"]): VM("x", *xd.pop(0))
    I(f"s_add_u32 m0, s38, {L_W2}", f"s_waitcnt vmcnt({vw('f1')})", F1CMP, "s_cbranch_vccnz K_F1", "K_F1_RET:")
    I("s_cmp_lg_u32 s18, 0", "s_waitcnt lgkmcnt(0)", "s_barrier")
    stamp("barD", lvl=2)
    I("s_cbranch_scc1 K_NOTAB", "buffer_store_dwordx4 v[32:35], v42, s[12:15], s60 offen sc1", "K_NOTAB:")
    for i in range(7): I(f"ds_read_b128 v[{CP+4*i}:{CP+4*i+3}], v16 offset:{L1_EA+4096*i}")
    I("s_branch PG1E", ".p2align 12", "PG1:", "s_branch K_WARM_RET", "s_nop 0", "PG1E:")
    for i in range(7): VM("est", f"s_movk_i32 s3, {4096*i}", f"s_waitcnt lgkmcnt({6-i})", f"buffer_store_dwordx4 v[{CP+4*i}:{CP+4*i+3}], v16, s[32:35], s3 offen sc1")
    while len(wl) > 4: VM("w", *wl.pop(0))
    stamp("eaout", lvl=3)
    I(f"s_waitcnt vmcnt({vw('w')})", ".p2align 3")
    for i in range(34):
        t = 64 + 2*(i % 4) if i < 32 else 72 + 2*(i-32)
        I(f"v_lshlrev_b32 v{t}, 16, v{WR+i}", f"v_and_b32 v{t+1}, s27, v{WR+i}", f"v_pk_mul_f32 v[{t}:{t+1}], v[{t}:{t+1}], s[24:25]", f"v_cvt_pk_bf16_f32 v{WR+i}, v{t}, v{t+1}")
        if i % 4 == 3: I(f"ds_write_b128 v5, v[{WR+i-3}:{WR+i}] offset:{1024*(i-3)}")
        if i in (17, 21, 25, 29) and wl: VM("w2", *wl.pop(0))
    I(f"ds_write_b32 v9, v{WR+32}", f"ds_write_b32 v7, v{WR+33}")
    for i in (32, 33):
        t = 72 + 2*(i-32)
        I(f"v_lshlrev_b32 v64, 16, v{WR+i}", f"v_and_b32 v65, s27, v{WR+i}", f"v_sub_f32 v64, v{t}, v64", f"v_sub_f32 v65, v{t+1}, v65", f"v_cvt_pk_bf16_f32 v{66+i-32}, v64, v65")
    I("ds_write_b32 v9, v66 offset:1024", "ds_write_b32 v7, v67 offset:256")
    I(*[f"s_mov_b32 s{40+i}, {STG0 + 8192*i}" for i in range(5)])
    I(f"s_mov_b32 s24, {NLN2}", f"s_mov_b32 s25, {NLN2}", f"s_mov_b32 s50, {KEY_OFF}", f"s_mov_b32 s51, {EA_OFF}", f"s_mov_b32 s52, {FL_OFF}")
    for w in range(3): I(f"s_cmp_eq_u32 s18, {w+1}", f"s_cbranch_scc1 PG{w+3}")
    I("K_WARM_RET2:")
    stamp("wdone", lvl=3)
    tr = []
    for f in range(16):
        for jh in range(2): tr.append(f"ds_read_b64_tr_b16 a[{AW2+4*f+2*jh}:{AW2+4*f+2*jh+1}], v62 offset:{(16*(f>>1) + 8*jh)*128 + 32*(f&1)}")
    for f in range(32):
        for jh in range(2): tr.append(f"ds_read_b64_tr_b16 a[{AW1A+4*f+2*jh}:{AW1A+4*f+2*jh+1}], v{56+((f>>2)&3)} offset:{(64*(f>>4) + 8*(f&3) + 4*jh)*256}")
    for b in range(4): tr.append(f"ds_read_b64_tr_b16 a[{AW1C+2*b}:{AW1C+2*b+1}], v60 offset:{64*b}")
    tr += [f"ds_read_b64_tr_b16 a[{AB1}:{AB1+1}], v61", "ds_read_b64_tr_b16 v[14:15], v63"]
    tr2, tr = tr[:32], tr[32:]
    VM("tab", f"s_waitcnt vmcnt({vw('est', OPT['tw'])})", TABLD)
    for k in range(OPT["xb"]): VM("x", *xd.pop(0))
    I("s_cmp_lg_u32 s18, 1", f"s_waitcnt vmcnt({vw('est')}) lgkmcnt(0)", "s_barrier")
    stamp("barE", lvl=2)
    I("s_cbranch_scc1 K_NOF3", "s_mov_b64 exec, 1", "buffer_store_dword v24, v24, s[12:15], s61 offen sc1", "s_mov_b64 exec, -1", "K_NOF3:")
    I(*tr[:OPT["ntr"]]); tr = tr[OPT["ntr"]:]
    I(f"s_waitcnt vmcnt({vw('tab')+1})", "s_cbranch_scc0 K_F3D", f"s_waitcnt vmcnt({vw('tab')})", "K_F3D:")
    I("v_cmp_eq_u32 vcc, -1, v8", "s_cbranch_vccnz K_TAB", "K_TAB_RET:")
    stamp("tab", lvl=2)
    I("v_and_b32 v33, 0xffff, v8", "v_add_lshl_u32 v32, v44, v33, 2", "v_lshrrev_b32 v33, 16, v8", "v_subrev_u32 v33, 16, v33")
    KEY, AD, RK, O4, O8 = 64, 96, 128, 170, 160
    def compact(dst):
        I("v_cmp_lt_i32 vcc, 0, v33", "s_nop 1", "v_mbcnt_lo_u32_b32 v35, vcc_lo, 0", "v_mbcnt_hi_u32_b32 v35, vcc_hi, v35",
          "v_cmp_gt_u32 s[36:37], 16, v35", "v_lshlrev_b32 v35, 4, v35", "s_nop 0", "s_and_b64 vcc, vcc, s[36:37]",
          "v_cndmask_b32 v35, 4, v35, vcc", f"ds_permute_b32 v{dst}, v35, v34",
          "v_cndmask_b32_e64 v35, 0, 16, vcc", "v_sub_u32 v33, v33, v35", "v_lshl_add_u32 v34, v35, 2, v34")
    def octets(src, its, off, o8):
        I(f"v_lshlrev_b32 v39, 1, v{src}", f"v_lshlrev_b32 v37, 1, v{src}", f"v_lshlrev_b32 v38, 1, v{src}", "s_nop 0",
          "v_mov_b32_dpp v37, v39 row_shr:4 row_mask:0xf bank_mask:0xa", "v_mov_b32_dpp v38, v39 row_shl:4 row_mask:0xf bank_mask:0x5", "s_nop 0")
        for n, i in enumerate(its):
            for h in range(2): I(f"v_add_u32_dpp v{o8+2*n+h}, v{37+h}, v{off} quad_perm:[{i},{i},{i},{i}] row_mask:0xf bank_mask:0xf")
    for i in range(4):
        I(f"v_add_u32_dpp v{O4+i}, v32, v30 quad_perm:[{i},{i},{i},{i}] row_mask:0xf bank_mask:0xf",
          f"buffer_load_dwordx4 v[{KEY+4*i}:{KEY+4*i+3}], v{O4+i}, s[12:15], s50 offen sc1")
    I(f"v_add_u32 v34, 0xc0000040, v32")
    compact(36)
    octets(32, range(4), 26, O8)
    I("s_waitcnt lgkmcnt(0)", f"v_add_u32_dpp v{O4+4}, v36, v31 quad_perm:[0,0,0,0] row_mask:0xf bank_mask:0xf",
      f"buffer_load_dwordx4 v[{KEY+16}:{KEY+19}], v{O4+4}, s[12:15], s50 offen sc1")
    octets(36, [0], 27, O8+8)
    I(f"v_bfe_i32 v{O4+4}, v{O4+4}, 30, 1")
    I(f"v_mul_u32_u24 v21, {NS}, v0", f"v_add_u32 v21, {L_NODE}, v21", "v_cmp_gt_u32 s[38:39], s17, v0")
    I("s_sub_u32 s27, 256, s17", "s_sub_u32 s19, s27, 32")
    I(*tr)
    I("v_bfe_u32 v35, v6, 4, 1", "v_lshlrev_b32 v35, 4, v35", f"v_xor_b32 v{FI+1}, v35, v26")
    for j in range(1, 8): I(f"v_xor_b32 v{FI+1+2*j}, {32*(j&3)}, v{FI+1}")
    I("v_and_b32 v35, 3, v6", f"v_mul_u32_u24 v{FR}, 0x420, v35", "v_bfe_u32 v35, v6, 2, 3", f"v_lshl_add_u32 v{FR}, v35, 7, v{FR}", "v_bfe_u32 v35, v6, 3, 1",
      f"v_lshl_add_u32 v{FR}, v35, 4, v{FR}", f"v_xor_b32 v{FR}, v{FR}, v1", "s_lshl_b32 s45, s18, 13", f"s_add_u32 s45, s45, {L_W}", f"v_add_u32 v{FR}, s45, v{FR}")
    for k in range(1, 4): I(f"v_xor_b32 v{FR+k}, {16*k}, v{FR}")
    I("v_and_b32 v20, 31, v6", "s_lshl_b32 s3, s18, 7", "v_lshl_add_u32 v57, v20, 2, s3", "v_and_b32 v59, 0x38, v6", "v_lshl_add_u32 v59, v59, 1, s3",
      "s_sub_u32 s3, 896, s3", "v_lshl_add_u32 v58, v20, 2, s3")
    F3LD = "buffer_load_dword v9, v16, s[12:15], s52 offen sc1"
    def phaseB(k, a, r, sreg, m=None):
        if m:
            for j in range(4): I(f"v_or_b32 v{k+j}, v{m}, v{k+j}")
        for j in range(4): I(f"v_mad_u32_u16 v{a+j}, v{k+j}, v28, s22")
        for j in range(4):
            I(f"ds_add_rtn_u32 v{r+j}, v{a+j}, v29",
              f"v_add_u32_sdwa v{k+j}, v{48+j}, s{sreg} dst_sel:WORD_0 dst_unused:UNUSED_PRESERVE src0_sel:DWORD src1_sel:DWORD")
    def phaseC(k, a, r):
        L = []
        for j in range(4): L += [f"v_min_u32 v{r+j}, {CAP-1}, v{r+j}", f"v_lshl_add_u32 v{a+j}, v{r+j}, 2, v{a+j}", f"ds_write_b32 v{a+j}, v{k+j} offset:4"]
        return L
    def eadma(o, base, imm): return [f"s_add_u32 m0, {base}, {imm}", "s_nop 0", f"buffer_load_dwordx4 v{o}, s[12:15], s51 offen sc1 lds"]
    ea = [eadma(O8+n, "s23", STG0 + 8192*(n>>1) + 1024*(n&1)) for n in range(10)]
    nx = [0, 1, 2, 2, 2]; done = 0; q = list(xd)
    for i in range(5):
        I(f"s_waitcnt vmcnt({4 - i + done})")
        if i == 0: stamp("key0", lvl=2); I(F3LD); done += 1
        for k in range(nx[i]):
            if q: I(*q.pop(0)); done += 1
        phaseB(KEY+4*i, AD+4*i, RK+4*i, 40+i, O4+4 if i == 4 else None)
    I("v_cmp_lt_i32 vcc, 0, v33", "s_cbranch_vccnz K_MORE", "K_MORE_RET:", "s_branch PG2E")
    repoll("K_F1", F1LD, F1CMP)
    repoll("K_TAB", TABLD, "v_cmp_eq_u32 vcc, -1, v8")
    I(".p2align 12", "PG2:", "s_branch K_WARM_RET")
    repoll("K_F3", F3LD, "v_cmp_eq_u32 vcc, -1, v9")
    I("PG2E:", "s_waitcnt lgkmcnt(0)", "s_barrier")
    stamp("bar1", lvl=2)
    I("s_mov_b64 exec, s[38:39]", "ds_read_b32 v20, v21", "s_mov_b64 exec, -1")
    I(f"s_waitcnt vmcnt({len(xd)})", "v_cmp_eq_u32 vcc, -1, v9", "s_cbranch_vccnz K_F3", "K_F3_RET:")
    stamp("f3", lvl=3)
    I(*(ea[0] + ea[1]))
    I("s_waitcnt lgkmcnt(0)", "s_mov_b64 exec, s[38:39]")
    I(f"v_cmp_lt_u32 vcc, {CAP}, v20", "v_min_u32 v20, 63, v20", "v_sub_u32 v22, 63, v20", "v_lshlrev_b32 v22, 2, v22",
      f"ds_add_rtn_u32 v23, v22, v29 offset:{L_H1}")
    I("s_cbranch_vccz K_A1", f"ds_write_b32 v24, v29 offset:{L_FLAG}", "K_A1:")
    I("s_mov_b64 exec, -1")
    I(*(ea[2] + ea[3]))
    I("s_waitcnt lgkmcnt(0)", "s_barrier")
    I(f"ds_read_b32 v25, v43 offset:{L_H1}")
    I(*phaseC(KEY, AD, RK))
    I("s_waitcnt lgkmcnt(4)", "v_mov_b32 v46, v25")
    scan64(46, phaseC(KEY+4, AD+4, RK+4))
    I("v_sub_u32 v46, v46, v25", "ds_bpermute_b32 v46, v22, v46")
    I("v_lshrrev_b32 v30, 1, v20", "v_cmp_lt_u32 s[36:37], 26, v20")
    I(*(ea[4] + ea[5]))
    I("s_waitcnt lgkmcnt(0)")
    I("v_add_u32 v23, v23, v46", "v_cmp_gt_u32 vcc, s19, v23", "v_lshlrev_b32 v33, 1, v23", "v_lshlrev_b32 v34, 2, v23",
      "v_cndmask_b32_e64 v31, 8, 10, vcc", "v_cndmask_b32 v31, v31, v30, s[36:37]")
    I("v_cmp_gt_u32 vcc, s27, v23", "v_cmp_gt_u32 s[36:37], v20, v31", "v_mov_b32 v35, 0xff", "v_sub_u32 v37, 63, v31",
      "s_and_b64 vcc, vcc, s[36:37]", "s_and_b64 vcc, vcc, s[38:39]")
    I("v_cndmask_b32 v32, 0, v31, vcc", "v_sub_u32 v32, v20, v32", "v_sub_u32 v36, 63, v32", "v_lshlrev_b32 v36, 2, v36", "v_lshlrev_b32 v37, 2, v37")
    I("s_mov_b64 exec, s[38:39]", f"ds_add_rtn_u32 v38, v36, v29 offset:{L_H2}")
    I("s_mov_b64 exec, vcc", f"ds_add_rtn_u32 v39, v37, v29 offset:{L_H2}", "v_add_lshl_u32 v47, s16, v0, 7", f"ds_write_b32 v34, v47 offset:{L_SN}")
    I("s_mov_b64 exec, -1", "v_cndmask_b32 v35, v35, v33, vcc")
    I("v_lshl_or_b32 v48, v35, 8, v32", "v_lshl_or_b32 v48, v48, 16, v0")
    I("v_or_b32 v33, 1, v33", "v_lshl_or_b32 v49, v33, 8, v31", "v_lshl_or_b32 v49, v49, 8, v32", "v_lshl_or_b32 v49, v49, 8, v0", "v_lshl_add_u32 v50, v32, 2, v21")
    I(*(ea[6] + ea[7]))
    I("s_waitcnt lgkmcnt(0)", "s_barrier")
    stamp("bar3", lvl=3)
    I(f"ds_read_b32 v25, v43 offset:{L_H2}"); I(*phaseC(KEY+8, AD+8, RK+8)); I("s_waitcnt lgkmcnt(4)", "v_mov_b32 v46, v25")
    scan64(46, phaseC(KEY+12, AD+12, RK+12))
    I("v_sub_u32 v46, v46, v25", "ds_bpermute_b32 v36, v36, v46", "ds_bpermute_b32 v37, v37, v46")
    I(*phaseC(KEY+16, AD+16, RK+16))
    I("s_waitcnt lgkmcnt(4)", "v_add_lshl_u32 v36, v36, v38, 2", "v_add_lshl_u32 v37, v37, v39, 2")
    o0 = L_TBL // 256
    I("s_mov_b64 exec, s[38:39]", f"ds_write2st64_b32 v36, v48, v21 offset0:{o0} offset1:{o0+4}", "s_mov_b64 exec, vcc", f"ds_write2st64_b32 v37, v49, v50 offset0:{o0} offset1:{o0+4}",
      "s_mov_b64 exec, -1")
    I(*(ea[8] + ea[9]))
    sr = [f"ds_read_b128 a[{AX+4*k}:{AX+4*k+3}], v{34+(k&3)} offset:{4096*(k>>2)}" for k in range(8)]
    I("s_mov_b32 s21, 0", "s_movk_i32 s53, 0x3f80", "s_movk_i32 s54, 0xff", f"s_movk_i32 s55, {SPL_S}", "s_mov_b32 s49, 0xffff", "s_movk_i32 s59, 128",
      f"s_mov_b32 s57, {f32(2.0**-100)}", "s_movk_i32 s58, 0x207", f"v_add_u32 v6, {L_X}, v1")
    I("s_mov_b32 s28, s4", "s_or_b32 s29, s5, 0x800000", f"s_mov_b32 s30, {N_NODES}")
    I("s_waitcnt vmcnt(10) lgkmcnt(0)", "s_barrier")
    stamp("bar4", lvl=2)
    o0 = L_TBL // 256
    I(f"ds_read_b128 v[20:23], v59 offset:{L_TB2}", f"ds_read2st64_b32 v[26:27], v57 offset0:{o0} offset1:{o0+4}",
      f"ds_read_b32 v7, v58 offset:{L_TBL}", f"ds_read_b32 v8, v58 offset:{L_TB2}", f"ds_read_b32 v24, v24 offset:{L_FLAG}")
    for b in range(4): I(*onehot(EE+2*b, b))
    for k in range(4): I(f"v_mov_b32 v{34+k}, v{FR+k}")
    I("s_waitcnt lgkmcnt(4)")
    for j in range(8): I(f"ds_read_u16 v{FI+2*j}, v{20+(j&3)} offset:{6 + 4*(j>>2)}")
    xx, xr = xrd((28, 29, 30, 31))
    I("s_waitcnt lgkmcnt(8)"); I(*xrow(28, 26, 29, 6)); I(*xx); I(*xr)
    I("s_waitcnt lgkmcnt(8)")
    fl = ["v_mov_b32 v5, v26", "v_mov_b32 v2, v27", "v_bfe_u32 v3, v26, 16, 8", "v_cmp_ne_u32 vcc, 0, v24", "s_waitcnt lgkmcnt(4)", "v_readfirstlane_b32 s20, v3", "s_nop 0", "s_nop 0"]
    for j in range(8): I(f"s_add_u32 m0, s45, {1024*j}", fl[j], f"buffer_load_dwordx4 v[{FI+2*j}:{FI+2*j+1}], s[28:31], 0 idxen offen lds")
    I(*recs(40, 2)); I(*recs(10, 8)); I(*xrow(9, 7, 29, 6))
    if OPT["stamp"]: I("s_mov_b32 s62, s20")
    I(*LSET)
    I("s_lshl_b32 s45, s18, 5", "s_add_u32 s45, s45, 128", f"s_mul_i32 s46, s18, {OST_W}", f"s_add_u32 s46, s46, {L_OST}", "s_movk_i32 s47, 576", f"s_mov_b32 s48, {L_SN}")
    I("s_waitcnt lgkmcnt(0)", "s_cbranch_vccnz K_SLOW0", eaddr(44, 40), eaddr(45, 41), eaddr(46, 42), eaddr(4, 43), xaddr(42), ".p2align 3")
    stamp("q1")
    q = sum([qchain(QQ+16*b, b, EE+2*b) for b in range(4)], [])
    I(*weave(q, [], [0]*20, {**{k: tr2[3*k:3*k+3] for k in range(11)}, 14: ["s_waitcnt vmcnt(4)", "s_barrier"], 15: sr[0:2], 16: sr[2:4], 17: [earead(0, 44), earead(1, 45)], 18: [earead(2, 46)]}))
    c = chain(NN, 0, 0, QQ)
    seg = ["s_waitcnt lgkmcnt(0)", "s_nop 0", c[0], xload(2, 0), c[1], xload(2, 1), c[2], xload(2, 2), c[3], xload(2, 3), c[4], xaddr(43), "s_nop 8", "s_nop 0"]
    for b in range(3): seg += weave(chain(NN+16*(b+1), b+1, 0, QQ+16*(b+1)), E0(b), (3,3,3,3,4), {0: ["s_waitcnt vmcnt(4)"], 1: sr[4:6], 2: sr[6:8], 3: [xload(0, 0)]} if b == 2 else None) + A0(b)
    seg += ["s_waitcnt lgkmcnt(0)", "s_barrier"] + weave(chain(T0, 0, 1, QQ), E0(3), (3,3,3,3,4), {3: [xload(0, 1)]}) + A0(3)
    I(*align8(seg))
    stamp("loop1")
    I("s_branch K_A0")
    I(".p2align 12", "PG3:", "s_branch K_WARM_RET2", "s_nop 0", "K_LOOP:")
    def partA(t):
        cur = (1+t) % 3; prv = t % 3
        seg = []
        for b in range(3):
            tc = T0 + 16*(b % 2); tn = T0 + 16*((b+1) % 2)
            if b == 0: extra = {0: [f"ds_read_b32 v6, v2 offset:{4*(t+5)}"], 3: [xload(prv, 2)], 4: ["v_cmpx_lt_u32 vcc, s19, v3"]}
            elif b == 1: extra = {1: ["s_cmp_lt_i32 s19, s37"], 2: ["s_waitcnt lgkmcnt(0)"], 3: [xload(prv, 3)], 4: [xaddr(6)]}
            else: extra = {0: ["s_cselect_b32 s6, s26, 0"], 1: ["s_cmp_ge_u32 s19, s20"], 2: ["s_waitcnt vmcnt(4)"], 3: [earead(prv, 4)],
                           4: ["s_cbranch_scc1 K_EXIT" if t < 2 else "s_cbranch_scc0 K_LOOP"]}
            ms = chain(tn, b+1, cur, QQ+16*(b+1))
            if b < 2: seg += weave(ms, exps(tc), (3,3,3,3,4), extra) + pk3(b, tc)
            else: seg += weave(ms, exps(tc)[:12], (3,3,3,3,0), extra)
        return seg
    def partB(t):
        cur = (1+t) % 3; nxt = (2+t) % 3
        seg = [xload(cur, 0)] + exps(T0)[12:] + pk3(2, T0)
        seg += weave(chain(T0, 0, nxt, QQ), exps(T1), (3,3,3,3,4), {0: ["s_add_u32 s19, s19, 1"], 3: [xload(cur, 1)], 4: [eaddr(4, 6)] + (["v_add_u32 v2, 12, v2"] if t == 2 else [])}) + pk3(3, T1)
        return seg
    I(*align8(partB(2)))
    I("K_A0:")
    I(*align8(partA(0) + partB(0) + partA(1) + partB(1) + partA(2))[:-1])
    I("K_EXIT:", "s_cmp_lg_u32 s21, 0", "s_cbranch_scc1 K_LAST", "s_branch K_MID")
    I(".p2align 12", "PG4:", "s_branch K_WARM_RET2", "s_nop 0", "K_MID:")
    stamp("exit1")
    OH = QQ+48
    def mix(c, g): return c[:4] + g + c[4:]
    def ms(n):
        nonlocal seg
        if OPT.get("ms"): I(*align8(seg)); seg = []; stamp(n)
    xx, xr = xrd((9, 4, 6, 2))
    seg = exps(T0)[12:] + pk3(2, T0) + ["s_mov_b64 s[60:61], exec", "s_mov_b64 exec, -1"] + exps(T1) + xx + ["s_mov_b32 s6, s26", xaddr(10), "s_waitcnt vmcnt(0)", "s_mov_b32 s21, 1"]
    seg += xr + [xload(0, k) for k in range(4)] + ["s_mov_b64 exec, s[60:61]", LSET[3]] + pk3(3, T1) + ["s_mov_b64 exec, -1", "s_waitcnt lgkmcnt(0)"]
    ms("m1")
    seg += spread(mix(qchain(QQ, 0, OH3), binit(LB)), [xaddr(11), "v_bfe_u32 v3, v7, 16, 8"] + lbinit(LB) + ["v_readfirstlane_b32 s20, v3"] + onehot(OH3, 0) + R(0) + M(0),
                  pre={1: [xload(1, 0), xload(1, 1)], 2: [xload(1, 2)], 3: [xload(1, 3)]}) + U(0)
    ms("m2")
    seg += spread(mix(qchain(QQ+16, 1, OH3+2), G(0)), V(0) + onehot(OH3+2, 1) + [eaddr(4, 10), eaddr(6, 11), eaddr(0, 12), "v_mov_b32 v2, v8"] + R(1) + M(1),
                  pre={2: ([f"s_mov_b32 s63, s20"] if OPT["stamp"] else []) + [LSET[0]], 3: [LSET[1]], 5: [LSET[2]], 4: [earead(0, 4), earead(1, 6), earead(2, 0)]}) + U(1)
    ms("m3")
    seg += spread(mix(qchain(QQ+32, 2, OH3), G(1)), V(1) + onehot(OH3, 2) + OCON[:8] + R(2) + M(2), pre={6: ["s_waitcnt vmcnt(4) lgkmcnt(0)"]}) + U(2)
    ms("m4")
    seg += spread(mix(chain(NN, 0, 0, QQ), G(2)), V(2) + OCON[8:] + dec2(LB) + R(3) + M(3)) + U(3)
    seg += spread(mix(chain(NN+16, 1, 0, QQ+16), G(3)), V(3) + onehot(OH3+2, 3) + [xaddr(12), eaddr(4, 13), "v_mov_b32 v5, v7"] + E0(0) + A1(0)[:OPT["a1"]]) + A0(0)[OPT["a1"]//2:] + SCL
    seg += check("K_RARE_A")
    ms("m6")
    q = qchain(QQ+48, 3, OH3+2); c = chain(NN+32, 2, 0, QQ+32)
    seg += spread(q[:4] + c[:1] + q[4:] + c[1:], OCV + E0(1), pre={0: [OIW], 2: [OSW[0]], 4: [OSW[1], xload(2, 0)], 6: [OSW[2], xload(2, 1)], 7: [OSW[3], xload(2, 2)], 8: [xload(2, 3)] + OSR}) + A0(1)
    ms("m7")
    e = E0(2); c = chain(NN+48, 3, 0, QQ+48)
    seg += [c[0], "s_waitcnt vmcnt(4) lgkmcnt(0)"] + OOR + [xaddr(13)] + e[:1] + [c[1], OST[0], OST[1], c[2], OST[2], OST[3], c[3], xload(0, 0)] + e[1:4] + [c[4]] + e[4:] + A0(2)
    seg += weave(chain(T0, 0, 1, QQ), E0(3), (3,3,3,3,4), {3: [xload(0, 1)]}) + A0(3)
    I(*align8(seg))
    stamp("loop2")
    I("s_branch K_A0")
    I(".p2align 12", "PG5:", "s_branch K_WARM_RET2", "s_nop 0", "K_LAST:")
    stamp("exit2")
    CCON = ["v_mbcnt_lo_u32_b32 v2, -1, 0", "v_mbcnt_hi_u32_b32 v2, -1, v2", "v_lshrrev_b32 v2, 3, v2", "v_lshl_add_u32 v2, s18, 3, v2",
            "v_mul_u32_u24 v4, s55, v2", "v_lshl_add_u32 v4, v4, 1, v11", "v_lshl_add_u32 v2, v2, 2, s48", "v_mov_b32 v12, 0"]
    seg = exps(T0)[12:] + pk3(2, T0) + exps(T1) + pk3(3, T1) + ["s_mov_b64 exec, -1"] + lbinit(LB)
    seg += R(0)[:2] + weave(binit(LB), R(0)[2:], (4, 10)) + U(0) + V(0)
    for b in range(3): seg += weave(G(b), R(b+1), (3,3,3,7)) + U(b+1) + V(b+1)
    seg += spread(G(3), M(0) + M(1) + M(2) + M(3) + CCON + dec2(LB), tail=48) + SCL + check("K_RARE_B") + OCV + [OIW] + OSW + OSR
    I(*align8(seg))
    stamp("tail")
    I("s_mov_b32 s3, 0xffff0000", "s_waitcnt lgkmcnt(6)", "s_barrier")
    I(f"ds_read_b32 v12, v12 offset:{L_FLAG}", f"ds_read2_b32 v[2:3], v2 offset1:32")
    for h in range(2):
        for r in range(2): I(f"ds_read_b128 v[{NN+8*h+4*r}:{NN+8*h+4*r+3}], v4 offset:{L_SPL + 64*SPL_S*h + SPL_S*r}")
    I("s_waitcnt lgkmcnt(6)", *OOR); I(*OST)
    I("s_waitcnt lgkmcnt(2)", "v_cmp_ne_u32 vcc, 0, v12", "v_or_b32 v2, v2, v11", "v_or_b32 v3, v3, v11")
    for h in range(2):
        if h: I("s_waitcnt lgkmcnt(0)", "s_nop 0")
        n = NN + 8*h; u = DD + 16*h
        for i in range(8): I(f"v_lshlrev_b32 v{u+2*i}, 16, v{n+i}", f"v_and_b32 v{u+2*i+1}, s3, v{n+i}")
        for i in range(4): I(f"v_pk_add_f32 v[{u+2*i}:{u+2*i+1}], v[{u+2*i}:{u+2*i+1}], v[{u+8+2*i}:{u+8+2*i+1}]")
        for i in range(4): I(f"v_cvt_pk_bf16_f32 v{n+i}, v{u+2*i}, v{u+2*i+1}")
        I(f"buffer_store_dwordx4 v[{n}:{n+3}], v{2+h}, s[8:11], 0 offen{OSTF}")
    I("s_cbranch_vccnz K_SLOW")
    if OPT["diag"]:
        I("s_mov_b32 s52, 0", "K_SPIN:", "s_memrealtime s[54:55]", "s_waitcnt lgkmcnt(0)", "s_add_u32 s52, s52, 1", "s_cmp_gt_u32 s52, 20000", "s_cbranch_scc1 K_END",
          "s_sub_u32 s54, s54, s100", "s_cmp_lt_u32 s54, 4000", "s_cbranch_scc1 K_SPIN")
    if OPT["stamp"]:
        I("s_waitcnt vmcnt(0)"); stamp("end")
        I("s_lshl_b32 s3, s2, 2", "s_add_u32 s3, s3, s18", "s_lshl_b32 s3, s3, 7", f"s_add_u32 s3, s3, {STAMP_OFF}", "v_mov_b32 v0, 0")
        for i in range(len(stamps)): I(f"v_mov_b32 v1, s{SLOTS[i]}", f"buffer_store_dword v1, v0, s[12:15], s3 offen offset:{4*i}")
        I("s_lshl_b32 s62, s62, 8", "s_or_b32 s62, s62, s63", "v_mov_b32 v1, s62", "buffer_store_dword v1, v0, s[12:15], s3 offen offset:124")
    I("K_END:", "K_END0:", "s_endpgm")
    repoll("K_F3M", F3LD, "v_cmp_eq_u32 vcc, -1, v9")
    for tag in ("K_RARE_A", "K_RARE_B"):
        I(f"{tag}:")
        I("s_or_b64 vcc, vcc, s[38:39]", "s_cmp_eq_u64 vcc, -1", f"s_cbranch_scc1 {tag}2")
        I(f"v_mov_b32 v{OA+1}, 0", f"v_mov_b32 v{RM}, 1", f"ds_write_b32 v{OA+1}, v{RM} offset:{L_FLAG}")
        I(f"{tag}2:", "s_mov_b64 exec, s[38:39]")
        for i in range(32): I(f"v_mov_b32 v{T0+i}, 0")
        I("s_mov_b64 exec, -1", f"s_branch {tag}_RET")
    K2, A2, R2, O2 = 176, 180, 184, 188
    I("K_MORE:", "s_sub_u32 s40, 0, s23", "s_waitcnt vmcnt(0)", "v_cmp_eq_u32 vcc, -1, v9", "s_cbranch_vccnz K_F3M", "K_F3M_RET:")
    I("s_mov_b64 exec, 1", f"ds_add_rtn_u32 v{O2}, v24, v29 offset:{L_FLAG+4}", "s_waitcnt lgkmcnt(0)", f"v_cmp_ne_u32 vcc, 0, v{O2}", "s_mov_b64 exec, -1", "s_cbranch_vccnz K_MORE_F")
    compact(36)
    I("s_mov_b32 s3, 0", "s_waitcnt lgkmcnt(0)",
      f"v_add_u32_dpp v{O2}, v36, v31 quad_perm:[0,0,0,0] row_mask:0xf bank_mask:0xf",
      f"buffer_load_dwordx4 v[{K2}:{K2+3}], v{O2}, s[12:15], s50 offen sc1", f"v_bfe_i32 v{O2}, v{O2}, 30, 1")
    octets(36, [0], 27, O2+2)
    I(*eadma(O2+2, "s3", 0)); I(*eadma(O2+3, "s3", 1024)); I("s_waitcnt vmcnt(0)")
    phaseB(K2, A2, R2, 40, O2)
    I("s_waitcnt lgkmcnt(0)")
    I(*phaseC(K2, A2, R2))
    I("v_cmp_lt_i32 vcc, 0, v33", "s_cbranch_vccz K_MORE_RET")
    I("K_MORE_F:", f"ds_write_b32 v24, v29 offset:{L_FLAG}", "s_branch K_MORE_RET")
    I("K_SLOW0:", *tr2)
    I("K_SLOW:")
    I("s_mov_b64 exec, -1", "s_waitcnt vmcnt(0) lgkmcnt(0)", "s_barrier")
    I("v_mbcnt_lo_u32_b32 v6, -1, 0", "v_mbcnt_hi_u32_b32 v6, -1, v6", "s_lshl_b32 s3, s18, 6", "v_add_u32 v7, s3, v6")
    I(*TABA); I(f"v_lshlrev_b32 v3, {lt}, v7", TABLD)
    I("v_lshrrev_b32 v1, 5, v6", "v_lshlrev_b32 v1, 6, v1", "v_and_b32 v6, 31, v6", "v_lshlrev_b32 v2, 4, v7")
    for i in range(4): I(f"v_mov_b32 v{16+i}, 0")
    for i in range(13): I(f"ds_write_b128 v2, v[16:19] offset:{4096*i}")
    for b in range(4): I(*onehot(EE+2*b, b))
    I("s_mov_b32 s6, s26", "s_mov_b32 s19, 0", "s_waitcnt vmcnt(0) lgkmcnt(0)", "s_barrier")
    I("K_S_SEG:")
    I("v_readlane_b32 s36, v8, s19", "s_lshl_b32 s3, s18, 6", "s_add_u32 s3, s3, s19", f"s_mul_i32 s3, s3, {CHS}", "s_nop 0",
      "s_lshr_b32 s20, s36, 16", "s_and_b32 s36, s36, 0xffff", "s_add_u32 s36, s36, s3")
    I("K_S_TILE:")
    I("s_cmp_le_i32 s20, 0", "s_cbranch_scc1 K_S_NEXT")
    I("v_add_lshl_u32 v2, s36, v6, 2", "v_lshlrev_b32 v3, 1, v2", "v_cmp_gt_i32 s[38:39], s20, v6")
    I("buffer_load_dword v9, v2, s[12:15], s50 offen sc1", f"buffer_load_dwordx2 a[{AEA}:{AEA+1}], v3, s[12:15], s51 offen sc1", "s_waitcnt vmcnt(0)")
    I(xaddr(9)); I(*[xload(0, k) for k in range(4)])
    I("v_and_b32 v9, 0xffff, v9", "v_lshl_add_u32 v0, v9, 7, v1", "v_subrev_u32 v9, s16, v9"); I(*[xload(2, k) for k in range(4)])
    I("v_mul_u32_u24 v9, 260, v9", "v_lshl_add_u32 v9, v1, 1, v9", "s_waitcnt vmcnt(0)")
    for b in range(4): I(*qchain(NN+16*b, b, EE+2*b)); I(*chain(NN+16*b, b, 0, NN+16*b))
    I(*binit(EE)); I("s_nop 15")
    for b in range(4): I(*E0(b))
    for b in range(4): I(*A0(b))
    for b in range(4): I(*R(b))
    for b in range(4): I(*(U(b) + V(b)))
    I("s_nop 1")
    for b in range(4): I(*G(b))
    I("s_nop 15"); I(*SCL)
    I("s_mov_b64 exec, s[38:39]")
    for i in range(32): I(f"ds_add_f32 v9, v{T0+i} offset:{4*i}")
    I("s_mov_b64 exec, -1", "s_waitcnt lgkmcnt(0)", "s_sub_u32 s20, s20, 32", "s_add_u32 s36, s36, 32", "s_branch K_S_TILE")
    I("K_S_NEXT:", "s_add_u32 s19, s19, 1", "s_cmp_lt_u32 s19, 64", "s_cbranch_scc1 K_S_SEG")
    I("s_barrier", "v_and_b32 v3, 7, v7", "v_lshlrev_b32 v1, 4, v3", "v_lshrrev_b32 v7, 3, v7", "s_mov_b32 s19, 0")
    I("K_S_OUT:")
    I("v_mul_u32_u24 v2, 260, v7", "v_cmp_gt_u32 vcc, s17, v7", "v_lshl_add_u32 v2, v3, 5, v2", "v_add_lshl_u32 v0, s16, v7, 7", "v_cndmask_b32 v0, 2.0, v0, vcc", "v_or_b32 v0, v0, v1")
    for i in range(8): I(f"ds_read_b32 v{16+i}, v2 offset:{4*i}")
    I("s_waitcnt lgkmcnt(0)")
    for i in range(4): I(f"v_cvt_pk_bf16_f32 v{24+i}, v{16+2*i}, v{17+2*i}")
    I("buffer_store_dwordx4 v[24:27], v0, s[8:11], 0 offen", "v_add_u32 v7, 32, v7", "s_waitcnt vmcnt(0)")
    I("s_add_u32 s19, s19, 1", "s_cmp_lt_u32 s19, 7", "s_cbranch_scc1 K_S_OUT", "s_endpgm")

def desc(name, vgpr, accum, sgpr):
    I(".p2align 6", f".amdhsa_kernel {name}")
    for l in (f"next_free_vgpr {vgpr}", f"next_free_sgpr {sgpr}", f"accum_offset {accum}", "group_segment_fixed_size 0", "kernarg_size 88",
              "user_sgpr_count 2", "user_sgpr_kernarg_segment_ptr 1", "system_sgpr_workgroup_id_x 1", "float_denorm_mode_32 3"):
        out.append("  .amdhsa_" + l)
    I(".end_amdhsa_kernel")

hdr = [l.rstrip("\n") for l in open(f"cdna_kernels/{NAME}.s.ref") if l.startswith(";") and "@launch" not in l][:12]
hdr += [f"; @launch grid=(256,1,1) block=(256,1,1) lds={L_SIZE}"]
I('.amdgcn_target "amdgcn-amd-amdhsa--gfx950"', ".text")
kernel()
I('.section .rodata,"a"')
desc(NAME + "_kernel", 512, 256, 102)
if OPT["stamp"]: hdr.append("; stamps: " + " ".join(stamps))
open(sys.argv[1], "w").write("\n".join(hdr + out) + "\n")
```

```python
import sys, struct, math
NAME = "standalone__edge_featured_mpnn_mpnn__graph"
OPT = dict(stamp=0, diag=0, tp=64, ntr=32, xpos=0, sl=3, cw=1, ost='sc1', w2q=1, up=4, wpos=1, tw=2, f1pos=0, xa=2, xb=0, slp=4, tl=0, tm=63, wso=0, a1=12, pb=0)
for a in sys.argv[2:]:
    k, v = a.split("="); OPT[k] = int(v) if v.lstrip("-").isdigit() else v

N_NODES = 50000; E = 800000
CH = 3125; CHS = 3200
TP = OPT['tp']; FL_OFF = 0x40000
TAB_OFF = 0; WP_OFF = 0x48000; KEY_OFF = 0x48000; EA_OFF = 0x368000; STAMP_OFF = 0x1000000
WS_SIZE = 0x10000000 - (OPT['wso'] << 20)
SPIN = 400000
def f32(x): return "0x%08x" % struct.unpack("<I", struct.pack("<f", x))[0]
NLOG2E = f32(-math.log2(math.e)); NLN2 = f32(-math.log(2.0))

out = []
def I(*ls):
    for l in ls:
        for x in l.split("\n"):
            x = x.strip()
            if x: out.append(x if x.endswith(":") or x.startswith(".") else "    " + x)
vm = []
def VM(tag, *ls):
    for l in ls:
        if l.startswith(("buffer_", "global_")): vm.append(tag)
        I(l)
def vw(tag, k=0):
    idx = [i for i, t in enumerate(vm) if t == tag]
    return len(vm) - 1 - idx[-1-k]
def srd(d, lo, hi, size, stride=0):
    I(f"s_mov_b32 s{d}, s{lo}")
    if stride: I(f"s_or_b32 s{d+1}, s{hi}, {hex(stride << 16)}")
    else: I(f"s_mov_b32 s{d+1}, s{hi}")
    I(f"s_mov_b32 s{d+2}, {size}", f"s_mov_b32 s{d+3}, 0x20000")
def scan64(v, fill=None):
    fill = list(fill or [])
    def gap():
        n = 0
        while fill and n < 2: I(fill.pop(0)); n += 1
        if n < 2: I(f"s_nop {1-n}")
    for op in ("row_shr:1", "row_shr:2", "row_shr:4", "row_shr:8"):
        gap(); I(f"v_add_u32_dpp v{v}, v{v}, v{v} {op} row_mask:0xf bank_mask:0xf bound_ctrl:0")
    gap(); I(f"v_add_u32_dpp v{v}, v{v}, v{v} row_bcast:15 row_mask:0xa bank_mask:0xf")
    gap(); I(f"v_add_u32_dpp v{v}, v{v}, v{v} row_bcast:31 row_mask:0xc bank_mask:0xf")
    I(*fill)
SLOTS = list(range(86, 98)) + list(range(64, 84))
stamps = []
def stamp(name, twice=False, lvl=1):
    if OPT.get("amp0") == name: I("s_memrealtime s[96:97]", "s_waitcnt lgkmcnt(0)", "s_nop 0")
    if OPT.get("amp1") == name: I("s_memrealtime s[94:95]", "s_waitcnt lgkmcnt(0)", "s_nop 0")
    if OPT["diag"] == name: I("s_memrealtime s[100:101]", "s_waitcnt lgkmcnt(0)", "s_nop 0")
    if not OPT["stamp"] or lvl > OPT["sl"]: return
    if twice:
        stamps.append(name + "1")
        I(f"s_mov_b32 s{SLOTS[len(stamps)-1]}, s{SLOTS[len(stamps)]}", "s_nop 0")
        name += "2"
    stamps.append(name)
    I(f"{'s_memtime' if OPT['stamp']==1 else 's_memrealtime'} s[98:99]", "s_waitcnt lgkmcnt(0)", f"s_mov_b32 s{SLOTS[len(stamps)-1]}, s98")

CAP = 48; NS = 4 + 4*CAP
STG0 = 2048
L1_KEY = 0; L1_EA = CHS*4; L1_CNT = 38912; L1_BASE = L1_CNT + 1024
L_H1 = STG0 + 5*8192; L_H2 = L_H1 + 256; L_SN = L_H2 + 256; L_FLAG = L_SN + 256; L_TBL = L_H1 + 1024
L_TB2 = L_TBL + 1024; L_SPL = L_TB2 + 1024; SPL_S = 144
L_W = L_SPL; L_S = L_W + 32768; L_W2 = L_S + 4096
L_OST = L_SPL + 128*SPL_S; OST_W = 32*SPL_S
L_X = L_W2 + 16384
L_NODE = L_X + 200*128
L_SIZE = L_NODE + 196*NS
assert L_SIZE <= 163840 and L_SPL + 123*SPL_S <= L_OST and L_OST + 4*OST_W <= L_W2
OSTF = "" if OPT["ost"] == "plain" else " " + OPT["ost"]
T0, T1, EE, NN, DD, QQ = 16, 32, 48, 64, 128, 192
AX, AW1A, AW1B, AW1C, AW2, AEA, AB1 = 0, 48, 112, 176, 184, 248, 254
BIG = 0x1000000

import re
V4 = ("v_exp_f32", "v_rcp_f32", "v_add_f32", "v_mul_f32", "v_add_u32", "v_mov_b32", "v_and_b32", "v_lshrrev_b32", "v_lshlrev_b32", "v_cvt_f32_ubyte2",
      "v_mul_u32_u24", "v_cndmask_b32", "v_readfirstlane_b32", "v_or_b32", "v_sub_u32", "v_xor_b32")
def has_lit(s):
    for t in re.split(r"[,\s]+", s.strip())[1:]:
        if re.fullmatch(r"0x[0-9a-fA-F]+|-?\d+", t):
            v = int(t, 0)
            if not -16 <= v <= 64: return True
    return False
def isz(s):
    s = s.strip(); op = s.split()[0]
    if s.endswith(":") or s.startswith("."): return 0
    if op.startswith(("s_waitcnt", "s_nop", "s_cbranch", "s_branch", "s_movk", "s_barrier")): return 4
    if op.startswith("s_memtime") or op.startswith("s_memrealtime"): return 8
    if op.startswith("s_"): return 8 if has_lit(s) else 4
    if op.startswith("v_cmp") and not op.endswith("_e64"): return (8 if has_lit(s) else 4) if s.split()[1] == "vcc," else 8
    if op == "v_cndmask_b32" and not s.endswith("vcc"): return 8
    if op in V4: return 8 if has_lit(s) else 4
    return 8
def align8(seg):
    off = 0; last4 = None
    seg = list(seg); i = 0
    while i <= len(seg):
        s = seg[i] if i < len(seg) else "v_pk_x"
        z = isz(s)
        if z == 8 and off % 8:
            if last4 is not None:
                op = seg[last4].split()[0]
                seg[last4] = seg[last4].replace(op, op + "_e64", 1); off += 4
            elif i == len(seg) or sum(1 for x in seg[i:i+5] if isz(x) == 8) == 5:
                if i < len(seg): print("pad before", s, file=sys.stderr)
                seg.insert(i, "s_nop 0"); off += 4; i += 1
        if z == 8: last4 = None
        if z == 4 and s.split()[0] in V4 and s.split()[0] != "v_readfirstlane_b32" and off % 8 == 0: last4 = i
        off += z; i += 1
    return seg
def xload(buf, kk): return f"buffer_load_dwordx4 a[{AX+16*buf+4*kk}:{AX+16*buf+4*kk+3}], v0, s[4:7], 0 offen offset:{16*kk}"
def xaddr(rec): return f"v_mad_u32_u16 v0, v{rec}, s59, v1 op_sel:[1,0,0,0]"
def eaddr(d, rec): return f"v_and_b32 v{d}, s49, v{rec}"
def earead(buf, r): return f"ds_read_b64 a[{AEA+2*buf}:{AEA+2*buf+1}], v{r}"
def chain(dst, blk, buf, c):
    L = []
    for kk in range(4):
        w = AW1A + 16*blk + 4*kk; x = AX + 16*buf + 4*kk; ci = c if kk == 0 else dst
        L.append(f"v_mfma_f32_32x32x16_bf16 v[{dst}:{dst+15}], a[{w}:{w+3}], a[{x}:{x+3}], v[{ci}:{ci+15}]")
    return L + [f"v_mfma_f32_32x32x8_bf16 v[{dst}:{dst+15}], a[{AW1C+2*blk}:{AW1C+2*blk+1}], a[{AEA+2*buf}:{AEA+2*buf+1}], v[{dst}:{dst+15}]"]
def qchain(dst, blk, oh, order=(0, 1, 2, 3)):
    L = []
    for kk in order:
        w = AW1B + 16*blk + 4*kk; x = AX + 32 + 4*kk
        L.append(f"v_mfma_f32_32x32x16_bf16 v[{dst}:{dst+15}], a[{w}:{w+3}], a[{x}:{x+3}], " + ("0" if kk == order[0] else f"v[{dst}:{dst+15}]"))
    return L + [f"v_mfma_f32_32x32x8_bf16 v[{dst}:{dst+15}], a[{AB1}:{AB1+1}], v[{oh}:{oh+1}], v[{dst}:{dst+15}]"]
def onehot(r, blk):
    c = "1.0" if blk & 1 else "s53"
    return [f"v_mov_b32 v{r+(blk>>1)}, {c}", f"v_mov_b32 v{r+1-(blk>>1)}, 0"]
def gemm2(blk, hb):
    L = []
    for p in range(2):
        for ob in range(2):
            w = AW2 + 4*((blk*2+p)*2+ob); o = T0 + 16*ob
            L.append(f"v_mfma_f32_32x32x16_bf16 v[{o}:{o+15}], a[{w}:{w+3}], v[{hb+4*p}:{hb+4*p+3}], v[{o}:{o+15}]")
    return L
def weave(ms, fill, cnts, extra=None):
    L = []; fill = list(fill)
    for k, m in enumerate(ms):
        L.append(m)
        if extra: L += extra.get(k, [])
        L += fill[:cnts[k]]; fill = fill[cnts[k]:]
    assert not fill
    return L
def repoll(tag, load, cmp):
    I(f"{tag}:", f"s_mov_b32 s3, {SPIN}", f"{tag}_L:", "s_mov_b64 exec, vcc", f"s_sleep {OPT['slp']}", load, "s_sub_u32 s3, s3, 1", "s_cbranch_scc1 K_END",
      "s_waitcnt vmcnt(0)", cmp, f"s_cbranch_vccnz {tag}_L", "s_mov_b64 exec, -1", f"s_branch {tag}_RET")

def cost(x):
    op = x.split()[0]
    if op.startswith(("v_exp", "v_rcp")): return 8
    if op.startswith("ds_write"): return {"b32": 8, "b64": 12, "b128": 20}[op.split("_")[-1]]
    if op.startswith("buffer_store"): return 12
    return 4
def spread(ms, fill, pre=None, tail=None):
    pre = pre or {}
    L = []; fill = list(fill); n = len(ms)
    if tail is None: tail = 36
    for k, m in enumerate(ms):
        L.append(m); P = pre.get(k, []); L += P
        if k == n-1: break
        room = 32 - (8 if "x16" in m else 4) - sum(cost(x) for x in P)
        if P and P[0].startswith("s_") and "x16" in m: room += 4
        if P and not P[0].startswith(("s_", "v_")) and "x16" not in m: room -= 4
        while fill and room > 0 and sum(map(cost, fill)) - cost(fill[0]) >= tail - sum(cost(x) for x in pre.get(n-1, [])):
            room -= cost(fill[0]); L.append(fill.pop(0))
    return L + fill
def pk3(b, tc):
    n = NN+16*b; d = DD+16*b
    return [f"v_pk_fma_f32 v[{n+2*i}:{n+2*i+1}], v[{n+2*i}:{n+2*i+1}], v[{EE+2*i}:{EE+2*i+1}], v[{n+2*i}:{n+2*i+1}]" for i in range(8)] + \
           [f"v_pk_fma_f32 v[{n+2*i}:{n+2*i+1}], v[{tc+2*i}:{tc+2*i+1}], v[{d+2*i}:{d+2*i+1}], v[{n+2*i}:{n+2*i+1}]" for i in range(8)] + \
           [f"v_pk_fma_f32 v[{d+2*i}:{d+2*i+1}], v[{d+2*i}:{d+2*i+1}], v[{EE+2*i}:{EE+2*i+1}], v[{d+2*i}:{d+2*i+1}]" for i in range(8)]
def exps(tc): return [f"v_exp_f32 v{EE+i}, v{tc+i}" for i in range(16)]
def E0(b): return [f"v_exp_f32 v{DD+16*b+i}, v{NN+16*b+i}" for i in range(16)]
def A0(b): return [f"v_pk_add_f32 v[{DD+16*b+2*i}:{DD+16*b+2*i+1}], v[{DD+16*b+2*i}:{DD+16*b+2*i+1}], 1.0 op_sel_hi:[1,0]" for i in range(8)]
def A1(b): return [f"v_add_f32 v{DD+16*b+i}, 1.0, v{DD+16*b+i}" for i in range(16)]
LB, RM, OA, OH3 = EE, EE+4, EE+5, EE+8
def R(b): return [f"v_rcp_f32 v{DD+16*b+i}, v{DD+16*b+i}" for i in range(16)]
def M(b): return [f"v_min3_f32 v{RM}, v{DD+16*b+2*i}, v{DD+16*b+2*i+1}, " + ("1.0" if b == 0 and i == 0 else f"v{RM}") for i in range(8)]
def U(b): return [f"v_pk_mul_f32 v[{NN+16*b+2*i}:{NN+16*b+2*i+1}], v[{NN+16*b+2*i}:{NN+16*b+2*i+1}], v[{DD+16*b+2*i}:{DD+16*b+2*i+1}]" for i in range(8)]
def V(b): return [f"v_cvt_pk_bf16_f32 v{NN+16*b+i}, v{NN+16*b+2*i}, v{NN+16*b+2*i+1}" for i in range(8)]
def G(b): return gemm2(b, NN+16*b)
def lbinit(r): return [f"v_cvt_f32_ubyte2 v{r+2}, v5", f"v_mov_b32 v{r+1}, 0", f"v_mov_b32 v{r+3}, 0", f"v_lshrrev_b32 v{r}, 16, v{r+2}"]
def binit(r): return [f"v_mfma_f32_32x32x8_bf16 v[{T0+16*ob}:{T0+16*ob+15}], v[14:15], v[{r+2*ob}:{r+2*ob+1}], 0" for ob in range(2)]
def dec2(lb):
    return [f"v_lshrrev_b32 v{OA}, 24, v5", f"v_and_b32 v{OA+2}, s54, v5", f"v_cmp_eq_u32 vcc, s54, v{OA}", f"v_mad_u32_u24 v{OA}, v{OA}, s55, v1",
            f"v_add_lshl_u32 v{OA+2}, s16, v{OA+2}, 7", f"v_cndmask_b32 v{OA}, v{OA}, v8, vcc", f"v_cndmask_b32 v{OA+2}, 2.0, v{OA+2}, vcc",
            f"v_cmp_eq_u32 s[38:39], 0, v{lb+2}"]
SCL = [f"v_pk_mul_f32 v[{T0+2*i}:{T0+2*i+1}], v[{T0+2*i}:{T0+2*i+1}], s[24:25]" for i in range(16)]
def check(tag):
    return [f"v_cmp_class_f32 s[40:41], v{T0}, s58", f"v_cmp_lt_f32 vcc, s57, v{RM}", "s_nop 0", "s_andn2_b64 vcc, vcc, s[40:41]", "s_andn2_b64 s[40:41], vcc, s[38:39]",
            "s_cmp_eq_u64 s[40:41], -1", f"s_cbranch_scc0 {tag}", f"{tag}_RET:"]
OCV = [f"v_cvt_pk_bf16_f32 v{T0+i}, v{T0+2*i}, v{T0+2*i+1}" for i in range(16)]
OCON = ["v_mbcnt_lo_u32_b32 v11, -1, 0", "v_mbcnt_hi_u32_b32 v11, -1, v11", "v_and_or_b32 v8, v11, 31, s45", "v_lshrrev_b32 v9, 3, v11", "v_mad_u32_u24 v8, v8, s55, v1",
        "v_mul_u32_u24 v9, s47, v9", "v_and_b32 v11, 7, v11", "v_add_u32 v9, s46, v9", "v_lshlrev_b32 v11, 4, v11", "v_add_u32 v10, v9, v11"]
OIW = f"ds_write_b32 v8, v{OA+2} offset:{L_SPL+64}"
OSW = [f"ds_write_b128 v{OA}, v[{T0+4*k}:{T0+4*k+3}] offset:{L_SPL+16*k}" for k in range(4)]
OSR = [f"ds_read2_b32 v[{EE+2*k}:{EE+2*k+1}], v9 offset0:{32+72*k} offset1:{68+72*k}" for k in range(2)] + \
      [f"ds_read_b128 v[{T1+4*j}:{T1+4*j+3}], v10 offset:{144*j}" for j in range(4)]
OOR = [f"v_or_b32 v{EE+j}, v{EE+j}, v11" for j in range(4)]
OST = [f"buffer_store_dwordx4 v[{T1+4*j}:{T1+4*j+3}], v{EE+j}, s[8:11], 0 offen{OSTF}" for j in range(4)]
def xrow(d, e, t, base): return [f"v_and_b32 v{d}, s54, v{e}", f"v_and_b32 v{t}, 7, v{e}", f"v_lshl_add_u32 v{d}, v{d}, 7, v{base}", f"v_lshlrev_b32 v{t}, 4, v{t}", f"v_xor_b32 v{d}, v{d}, v{t}"]
def xrd(r): return [f"v_xor_b32 v{r[k]}, {16*k}, v{r[0]}" for k in range(1, 4)], [f"ds_read_b128 a[{AX+32+4*k}:{AX+35+4*k}], v{r[k]}" for k in range(4)]
def recs(d, p): return [f"ds_read2_b32 v[{d}:{d+1}], v{p} offset0:1 offset1:2", f"ds_read2_b32 v[{d+2}:{d+3}], v{p} offset0:3 offset1:4"]
LSET = ["s_max_u32 s20, s20, 2", "s_sub_u32 s37, s20, 3", "s_sub_u32 s20, s20, 1", "s_mov_b32 s19, 1"]

FI, FR = 192, 208
def kernel():
    K = NAME + "_kernel"
    lt = TP.bit_length() - 1
    assert L_W % 256 == 0 and L_X % 128 == 0
    I(".p2align 12", f".globl {K}", ".p2align 8", f".type {K},@function", f"{K}:")
    I("s_cmp_ge_u32 s2, 256", "s_cbranch_scc1 K_END0")
    stamp("start")
    I("s_load_dwordx16 s[64:79], s[0:1], 0", "s_load_dwordx4 s[80:83], s[0:1], 64", "s_load_dwordx2 s[12:13], s[0:1], 80")
    DST, SRC, EAR, AD, RK, P8, CP, WR = 64, 80, 96, 128, 144, 160, 176, 208
    if OPT["cw"]:
        I("s_getpc_b64 s[62:63]", "K_PC:", "s_bfe_u32 s3, s2, 0x30003", "v_and_b32 v2, 0xf8, v0", "v_add_lshl_u32 v2, v2, s3, 7",
          "v_min_u32 v2, K_SLOW0-K_PC, v2", "global_load_dword v10, v2, s[62:63]")
    I("v_lshrrev_b32 v2, 6, v0", "v_and_b32 v6, 63, v0", "v_lshlrev_b32 v17, 2, v0", "v_readfirstlane_b32 s18, v2")
    I("v_mov_b32 v24, 0", f"ds_write_b32 v17, v24 offset:{L1_CNT}", "v_lshlrev_b32 v16, 4, v0", "v_lshlrev_b32 v4, 4, v6")
    I(f"s_mul_i32 s60, s2, {CH*4}", "s_mov_b32 s15, 0x20000", f"s_mov_b32 s14, {WS_SIZE}", f"s_mov_b32 s30, {E*4}", "s_mov_b32 s34, s30")
    for r in (31, 35, 43, 47, 51, 55, 59, 7, 11): I(f"s_mov_b32 s{r}, s15")
    I(f"s_mov_b32 s42, {132*256}", f"s_movk_i32 s46, {128*128}", f"s_mov_b32 s54, {E*8}", "s_movk_i32 s58, 256", f"s_mov_b32 s26, {N_NODES*128}", "s_mov_b32 s6, s26", "s_mov_b32 s10, s26")
    I("s_add_u32 s19, s60, 4096", "s_add_u32 s20, s60, 8192", f"s_add_u32 s21, s60, {(3072-192)*4}")
    I("v_mov_b32 v20, -1", "v_mov_b32 v21, -1", "v_mov_b32 v22, -1", "v_mov_b32 v23, -1")
    I("s_and_b32 s84, s2, 7", "s_lshl_b32 s84, s84, 5", "s_lshr_b32 s3, s2, 3", "s_add_u32 s84, s84, s3")
    I("s_mul_i32 s16, s84, 12800051", "s_add_u32 s16, s16, 0xffff", "s_add_u32 s17, s16, 12800051", "s_lshr_b32 s16, s16, 16", "s_lshr_b32 s17, s17, 16",
      f"s_min_u32 s17, s17, {N_NODES}", "s_sub_u32 s17, s17, s16", "s_mov_b32 s85, 85899")
    I("v_mov_b32 v29, 1", "v_lshlrev_b32 v18, 5, v0", "v_lshlrev_b32 v19, 3, v0", "v_lshlrev_b32 v43, 2, v6")
    I("v_subrev_u32 v45, 192, v0", f"v_cmp_gt_u32 vcc, {CH-3072}, v45", f"v_mov_b32 v45, {hex(BIG)}", "s_mov_b32 s39, 0x05040100", "v_cndmask_b32 v45, v45, v24, vcc")
    I(f"v_lshrrev_b32 v42, {lt-4}, v6", f"v_lshlrev_b32 v42, {lt+8}, v42", f"v_and_b32 v37, {TP-1}, v4", "v_add_u32 v42, v42, v37")
    I("v_lshrrev_b32 v1, 5, v6", "v_bfe_u32 v52, v6, 2, 2", "v_and_b32 v53, 3, v6", "v_bfe_u32 v54, v6, 4, 1",
      "v_lshlrev_b32 v55, 3, v53", "v_lshl_add_u32 v55, v54, 5, v55",
      "v_lshl_add_u32 v56, v52, 8, v55", "v_lshl_add_u32 v60, v1, 10, v56", f"v_add_u32 v60, {L_S}, v60",
      "v_lshl_add_u32 v56, v1, 13, v56", "v_lshl_add_u32 v56, v52, 6, v56", f"v_add_u32 v56, {L_W}, v56",
      "v_xor_b32 v57, 64, v56", "v_xor_b32 v58, 0x80, v56", "v_xor_b32 v59, 0xc0, v56",
      "v_lshl_add_u32 v61, v52, 6, v55", "v_lshl_add_u32 v61, v1, 8, v61", f"v_add_u32 v61, {L_S + 2048}, v61",
      "v_and_b32 v55, 1, v53", "v_lshlrev_b32 v55, 6, v55", "v_lshl_add_u32 v55, v54, 4, v55", "v_lshrrev_b32 v53, 1, v53", "v_lshl_add_u32 v55, v53, 3, v55",
      "v_lshl_add_u32 v62, v52, 7, v55", "v_lshl_add_u32 v62, v1, 9, v62", f"v_add_u32 v62, {L_W2}, v62",
      "v_and_b32 v52, 1, v52", "v_lshl_add_u32 v63, v52, 5, v55", "v_lshl_add_u32 v63, v1, 8, v63", f"v_add_u32 v63, {L_S + 2560}, v63",
      "v_lshlrev_b32 v1, 6, v1")
    I("s_cmp_lt_u32 s2, 64", "s_cselect_b32 s61, s18, 0", "s_cmp_lg_u32 s61, 1")
    I("s_waitcnt lgkmcnt(0)")
    if OPT.get("probe"):
        base = {"x": 64, "ea": 66, "src": 68, "dst": 70, "out": 80, "ws": 12, "none": 64}[OPT["probe"]]
        I(f"s_mov_b64 s[28:29], s[{base}:{base+1}]", "s_memrealtime s[96:97]", "s_waitcnt lgkmcnt(0)")
        if OPT["probe"] != "none":
            for i, r in enumerate(("s60", "s19", "s20")): I(f"buffer_load_dwordx4 v[{DST+4*i}:{DST+4*i+3}], v16, s[28:31], {r} offen")
        I("s_waitcnt vmcnt(0)", "s_memrealtime s[94:95]", "s_waitcnt lgkmcnt(0)", "s_sub_u32 s94, s94, s96", "s_mul_i32 s94, s94, 10", "s_add_u32 s100, s100, s94", "s_cmp_lg_u32 s61, 1")
    I("s_mov_b64 s[28:29], s[70:71]")
    if OPT["wso"]: I(f"s_add_u32 s12, s12, {OPT['wso'] << 20}", "s_addc_u32 s13, s13, 0", "s_cmp_lg_u32 s61, 1")
    so = ("s60", "s19", "s20")
    for i in range(3): I(f"buffer_load_dwordx4 v[{DST+4*i}:{DST+4*i+3}], v16, s[28:31], {so[i]} offen")
    I(f"buffer_load_dword v{DST+12}, v17, s[28:31], s21 offen", "s_mov_b64 s[32:33], s[68:69]", "s_cbranch_scc1 R_NOT1")
    I("s_lshl_b32 s3, s2, 12", "s_lshl_b32 s36, s2, 6", f"s_add_u32 s36, s36, {FL_OFF}")
    for i in range(4): I(f"buffer_store_dwordx4 v[20:23], v4, s[12:15], s3 offen offset:{1024*i} sc1")
    I("s_mov_b64 exec, 15", "buffer_store_dwordx4 v[20:23], v4, s[12:15], s36 offen sc1", "s_mov_b64 exec, -1", "R_NOT1:")
    stamp("issued", lvl=2)
    def tlbwarm():
        I(f"v_and_b32 v40, {OPT['tm']}, v6", "s_cmp_eq_u32 s18, 1", "s_cbranch_scc1 T_1", "s_cmp_eq_u32 s18, 2", "s_cbranch_scc1 T_2", "s_cmp_eq_u32 s18, 3", "s_cbranch_scc1 T_3")
        I("v_mul_u32_u24 v40, 100000, v40", "global_load_dword v10, v40, s[64:65]", "global_load_dword v10, v24, s[72:73]", "s_branch T_E")
        I("T_1:", f"v_mul_u32_u24 v40, {4*CHS*8}, v40", f"v_add_u32 v40, {EA_OFF + 3*CHS*8 + CHS*8 - 128}, v40", "global_load_dword v10, v40, s[12:13]", "global_load_dword v10, v24, s[82:83]", "s_branch T_E")
        I("T_2:", f"v_mul_u32_u24 v40, {4*CHS*4}, v40", f"v_add_u32 v40, {KEY_OFF + CHS*4 - 128}, v40", "global_load_dword v10, v40, s[12:13]", "global_load_dword v10, v24, s[76:77]", "s_branch T_E")
        I("T_3:", "v_and_b32 v40, 1, v6", "v_mul_u32_u24 v40, 194, v40", "v_add_lshl_u32 v40, s16, v40, 7", "global_load_dword v10, v24, s[74:75]", "global_load_dword v10, v24, s[78:79]", "global_load_dword v10, v40, s[80:81]", "T_E:")
        vm.extend(["tl", "tl"])
    vm.append("dst")
    if OPT["tl"] == 3: tlbwarm()
    for i in range(3): VM("src", f"buffer_load_dwordx4 v[{SRC+4*i}:{SRC+4*i+3}], v16, s[32:35], {so[i]} offen")
    VM("src", f"buffer_load_dword v{SRC+12}, v17, s[32:35], s21 offen", "s_barrier")
    if OPT["tl"] == 1: tlbwarm()
    I("s_mov_b64 s[52:53], s[66:67]")
    for r in ("s60", "s19", "s20", "s21"): I(f"s_lshl_b32 {r}, {r}, 1")
    el = []
    for i in range(3): el += [f"buffer_load_dwordx4 v[{EAR+8*i}:{EAR+8*i+3}], v18, s[52:55], {so[i]} offen", f"buffer_load_dwordx4 v[{EAR+8*i+4}:{EAR+8*i+7}], v18, s[52:55], {so[i]} offen offset:16"]
    el.append(f"buffer_load_dwordx2 v[{EAR+24}:{EAR+25}], v19, s[52:55], s21 offen")
    up = OPT["up"]
    I("v_mov_b32 v25, 0", "v_mov_b32 v26, 0", "v_mov_b32 v27, 0", f"v_add_u32 v5, {L_NODE}, v16")
    for i in range(10): VM("ea", f"ds_write_b128 v5, v[24:27] offset:{4096*i}", *(el[i-10+up:i-9+up] if i >= 10-up else []))
    if OPT["tl"] == 2: tlbwarm()
    I("v_mov_b32 v28, 0x7a0000ff",
      "v_cmp_eq_u32 vcc, 2, v2", f"ds_write_b32 v17, v28 offset:{L_TBL}", f"v_mov_b32 v28, {hex(BIG)}", "v_cndmask_b32 v3, v24, v28, vcc",
      f"ds_write_b32 v17, v3 offset:{L_H1}", f"ds_write_b32 v17, v28 offset:{L_TB2}")
    I("v_and_b32 v3, 0x7c, v43", f"ds_write_b32 v3, v20 offset:{L1_KEY + CH*4}")
    I("s_mov_b64 s[40:41], s[72:73]", "s_mov_b64 s[44:45], s[76:77]", "s_mov_b64 s[56:57], s[82:83]",
      "s_mov_b64 s[4:5], s[64:65]", "s_mov_b64 s[8:9], s[80:81]")
    I("s_cmp_eq_u32 s18, 0", "s_cselect_b64 s[48:49], s[74:75], s[78:79]", "s_cselect_b32 s50, 2, 1", "s_lshl_b32 s50, s50, 7")
    I(f"s_mul_i32 s3, s2, {CHS*4}", f"s_add_u32 s3, s3, {KEY_OFF}", "s_add_u32 s28, s12, s3", "s_addc_u32 s29, s13, 0", f"s_movk_i32 s30, {(CH+19)*4}")
    I(f"s_mul_i32 s3, s2, {CHS*8}", f"s_add_u32 s3, s3, {EA_OFF}", "s_add_u32 s32, s12, s3", "s_addc_u32 s33, s13, 0", f"s_movk_i32 s34, {(CH+1)*8}")
    I("s_lshl_b32 s38, s18, 12", f"s_add_u32 m0, s38, {L_W2}")
    I("s_cmp_lg_u32 s61, 1", f"s_waitcnt vmcnt({vw('dst')+5})", "s_cbranch_scc0 R_W", f"s_waitcnt vmcnt({vw('dst')})", "R_W:")
    stamp("dst", lvl=2)
    for i in range(13):
        I(f"v_mul_u32_u24 v{AD+i}, s85, v{DST+i}", f"v_lshlrev_b32_sdwa v{AD+i}, 2, v{AD+i} dst_sel:DWORD dst_unused:UNUSED_PAD src0_sel:DWORD src1_sel:BYTE_3")
        if i == 12: I(f"v_or_b32 v{AD+i}, v45, v{AD+i}")
        I(f"ds_add_rtn_u32 v{RK+i}, v{AD+i}, v29 offset:{L1_CNT}")
        if i >= 6 + up: VM("ea", el[i-6])
    I("s_cmp_eq_u32 s18, 0", "s_waitcnt lgkmcnt(0)", "s_barrier")
    stamp("barA", lvl=3)
    perm = [f"v_perm_b32 v{DST+i}, v{SRC+i}, v{DST+i}, s39" for i in range(13)]
    I("s_cbranch_scc1 K_SCAN")
    I("s_cmp_eq_u32 s18, 2", "s_cbranch_scc1 PG1", "s_cmp_eq_u32 s18, 3", "s_cbranch_scc1 PG2", "s_cmp_lg_u32 s61, 1", "s_cbranch_scc1 K_NOSCAN")
    I("s_and_b32 s3, s2, 3", "s_lshl_b32 s3, s3, 6", f"s_waitcnt vmcnt({vw('dst')})", "s_mov_b64 exec, 1", "buffer_atomic_add v29, v24, s[56:59], s3 offen", "s_mov_b64 exec, -1", "s_branch K_NOSCAN")
    I("K_SCAN:", f"ds_read_b128 v[32:35], v4 offset:{L1_CNT}", "s_waitcnt lgkmcnt(0)")
    I("v_add_u32 v38, v32, v33", "v_add_u32 v39, v38, v34", "v_add_u32 v41, v39, v35", "v_mov_b32 v36, v41")
    scan64(36)
    I("v_sub_u32 v36, v36, v41", "v_add_u32 v37, v36, v32", "v_add_u32 v38, v36, v38", "v_add_u32 v39, v36, v39")
    I(f"ds_write_b128 v4, v[36:39] offset:{L1_BASE}")
    for i in range(4): I(f"v_lshl_or_b32 v{32+i}, v{32+i}, 16, v{36+i}")
    I("s_waitcnt lgkmcnt(0)", "K_WARM_RET:", "K_NOSCAN:", "s_barrier")
    stamp("barB", lvl=3)
    wl = [[f"s_movk_i32 s3, {4096*i}", f"buffer_load_dwordx4 v[{WR+4*i}:{WR+4*i+3}], v16, s[40:43], s3 offen"] for i in range(8)]
    wl += [["s_mov_b32 s3, 0x8000", f"buffer_load_dword v{WR+32}, v17, s[40:43], s3 offen"], [f"buffer_load_dword v{WR+33}, v43, s[48:51], 0 offen"]]
    wl += [[f"buffer_load_dwordx4 v4, s[44:47], s38 offen offset:{1024*i} lds"] for i in range(4)]
    nw = {0: (10, 0, 4), 1: (5, 5, 4), 2: (0, 10, 4), 3: (0, 0, 14), 4: (5, 9, 0)}[OPT["wpos"]]
    for i in range(13): I(f"ds_read_b32 v{AD+i}, v{AD+i} offset:{L1_BASE}")
    I("s_cmp_lg_u32 s61, 1", f"s_waitcnt vmcnt({vw('src')+1})", "s_cbranch_scc0 R_W2", f"s_waitcnt vmcnt({vw('src')})", "R_W2:", *perm)
    for i in range(13):
        if i in (0, 6): I(f"s_waitcnt lgkmcnt({7 if i == 0 else 6})")
        I(f"v_add_lshl_u32 v{AD+i}, v{AD+i}, v{RK+i}, 2")
        if i == 12: I(f"v_or_b32 v{AD+i}, v45, v{AD+i}")
        I(f"ds_write_b32 v{AD+i}, v{DST+i} offset:{L1_KEY}")
        if i >= 13 - nw[0]: VM("w", *wl.pop(0))
    I("s_waitcnt lgkmcnt(0)", "s_barrier")
    stamp("barC", lvl=2)
    for i in range(4): I(f"ds_read_b128 v[{CP+4*i}:{CP+4*i+3}], v16 offset:{L1_KEY+4096*i}")
    for i in range(13): I(f"v_lshlrev_b32 v{P8+i}, 1, v{AD+i}")
    for i in range(4): VM("kst", f"s_movk_i32 s3, {4096*i}", f"s_waitcnt lgkmcnt({3-i})", f"buffer_store_dwordx4 v[{CP+4*i}:{CP+4*i+3}], v16, s[28:31], s3 offen sc1")
    F1LD = "buffer_load_dword v20, v43, s[56:59], s37 offen sc1"
    F1CMP = "v_cmp_lt_u32 vcc, v20, v22"
    TABLD = "buffer_load_dword v8, v3, s[12:15], s36 offen sc1"
    TABA = [f"s_lshr_b32 s36, s84, {lt-2}", f"s_lshl_b32 s36, s36, {lt+8}", f"s_and_b32 s3, s84, {TP//4-1}", "s_lshl2_add_u32 s36, s3, s36"]
    I("s_cmp_eq_u32 s18, 2", "s_cselect_b32 s37, 0, 0x1000", *TABA); I(f"v_lshlrev_b32 v3, {lt}, v0")
    I("v_and_b32 v22, 0xcf, v0", "v_cmp_eq_u32 vcc, 0x80, v22", f"s_lshl_b32 s60, s2, {lt}", "s_lshl_b32 s61, s2, 4", "v_cndmask_b32_e64 v22, 0, 16, vcc", f"s_add_u32 s61, s61, {FL_OFF}")
    I(f"s_mov_b32 s24, {NLOG2E}", f"s_mov_b32 s25, {NLOG2E}", "s_mov_b32 s27, 0xffff0000", "v_and_b32 v5, 0x300, v16", "v_lshrrev_b32 v5, 2, v5", "v_xor_b32 v5, v5, v16", f"v_add_u32 v5, {L_W}, v5")
    I(f"v_lshl_add_u32 v7, v2, 8, v17", f"v_add_u32 v7, {L_S + 2048}, v7", f"v_add_u32 v9, {L_S}, v17")
    I("s_lshl_b32 s23, s18, 11", "v_and_b32 v48, 0x380, v4", "v_bfe_u32 v49, v6, 2, 1", "v_lshl_add_u32 v48, v49, 10, v48", "v_and_b32 v30, 48, v4",
      "v_lshl_add_u32 v48, v30, 1, v48", "v_add_u32 v48, s23, v48", "v_add_u32 v49, 8, v48", "v_add_u32 v50, 16, v48", "v_add_u32 v51, 24, v48",
      f"s_mul_i32 s22, s16, {NS}", f"s_sub_u32 s22, {L_NODE}, s22", f"v_mov_b32 v28, {NS}",
      "v_add_u32 v31, 2.0, v30", f"v_mul_u32_u24 v44, {CHS}, v0", "v_and_b32 v26, 0x70, v4", "v_add_u32 v27, 0x80000000, v26",
      "v_lshrrev_b32 v46, 3, v0", "v_lshlrev_b32 v47, 4, v46", "v_xor_b32 v47, v47, v4", "v_and_b32 v47, 0x70, v47", "v_add_u32 v46, s16, v46", "v_lshl_add_u32 v46, v46, 7, v47",
      "s_lshl_b32 s62, s18, 10", f"s_add_u32 s62, s62, {L_X}", "s_cmp_eq_u32 s18, 0", "s_mov_b32 s63, 0x3f000", f"s_cselect_b32 s63, {L_X + 6*4096}, s63")
    stamp("kout", lvl=3)
    xd = [[f"s_add_u32 m0, s62, {4096*i}" if i < 6 else "s_mov_b32 m0, s63", "v_add_u32 v46, 0x1000, v46" if i else "s_nop 0",
           "buffer_load_dwordx4 v46, s[4:7], 0 offen lds"] for i in range(7)]
    for i in range(13):
        if i in (0, 4, 8): I(f"s_waitcnt vmcnt({vw('ea', {0: 5, 4: 3, 8: 0}[i])})")
        if i == 8: stamp("ea_in", lvl=3)
        if i == OPT["f1pos"]: VM("f1", F1LD)
        I(f"ds_write_b64 v{P8+i}, v[{EAR+2*i}:{EAR+2*i+1}] offset:{L1_EA}")
        if i >= 13 - nw[1]: VM("w", *wl.pop(0))
    for k in range(OPT["xa"]): VM("x", *xd.pop(0))
    I(f"s_add_u32 m0, s38, {L_W2}", f"s_waitcnt vmcnt({vw('f1')})", F1CMP, "s_cbranch_vccnz K_F1", "K_F1_RET:")
    I("s_cmp_lg_u32 s18, 0", "s_waitcnt lgkmcnt(0)", "s_barrier")
    stamp("barD", lvl=2)
    I("s_cbranch_scc1 K_NOTAB", "buffer_store_dwordx4 v[32:35], v42, s[12:15], s60 offen sc1", "K_NOTAB:")
    for i in range(7): I(f"ds_read_b128 v[{CP+4*i}:{CP+4*i+3}], v16 offset:{L1_EA+4096*i}")
    I("s_branch PG1E", ".p2align 12", "PG1:", "s_branch K_WARM_RET", "s_nop 0", "PG1E:")
    for i in range(7): VM("est", f"s_movk_i32 s3, {4096*i}", f"s_waitcnt lgkmcnt({6-i})", f"buffer_store_dwordx4 v[{CP+4*i}:{CP+4*i+3}], v16, s[32:35], s3 offen sc1")
    while len(wl) > 4: VM("w", *wl.pop(0))
    stamp("eaout", lvl=3)
    I(f"s_waitcnt vmcnt({vw('w')})", ".p2align 3")
    for i in range(34):
        t = 64 + 2*(i % 4) if i < 32 else 72 + 2*(i-32)
        I(f"v_lshlrev_b32 v{t}, 16, v{WR+i}", f"v_and_b32 v{t+1}, s27, v{WR+i}", f"v_pk_mul_f32 v[{t}:{t+1}], v[{t}:{t+1}], s[24:25]", f"v_cvt_pk_bf16_f32 v{WR+i}, v{t}, v{t+1}")
        if i % 4 == 3: I(f"ds_write_b128 v5, v[{WR+i-3}:{WR+i}] offset:{1024*(i-3)}")
        if i in (17, 21, 25, 29) and wl: VM("w2", *wl.pop(0))
    I(f"ds_write_b32 v9, v{WR+32}", f"ds_write_b32 v7, v{WR+33}")
    for i in (32, 33):
        t = 72 + 2*(i-32)
        I(f"v_lshlrev_b32 v64, 16, v{WR+i}", f"v_and_b32 v65, s27, v{WR+i}", f"v_sub_f32 v64, v{t}, v64", f"v_sub_f32 v65, v{t+1}, v65", f"v_cvt_pk_bf16_f32 v{66+i-32}, v64, v65")
    I("ds_write_b32 v9, v66 offset:1024", "ds_write_b32 v7, v67 offset:256")
    I(*[f"s_mov_b32 s{40+i}, {STG0 + 8192*i}" for i in range(5)])
    I(f"s_mov_b32 s24, {NLN2}", f"s_mov_b32 s25, {NLN2}", f"s_mov_b32 s50, {KEY_OFF}", f"s_mov_b32 s51, {EA_OFF}", f"s_mov_b32 s52, {FL_OFF}")
    for w in range(3): I(f"s_cmp_eq_u32 s18, {w+1}", f"s_cbranch_scc1 PG{w+3}")
    I("K_WARM_RET2:")
    stamp("wdone", lvl=3)
    tr = []
    for f in range(16):
        for jh in range(2): tr.append(f"ds_read_b64_tr_b16 a[{AW2+4*f+2*jh}:{AW2+4*f+2*jh+1}], v62 offset:{(16*(f>>1) + 8*jh)*128 + 32*(f&1)}")
    for f in range(32):
        for jh in range(2): tr.append(f"ds_read_b64_tr_b16 a[{AW1A+4*f+2*jh}:{AW1A+4*f+2*jh+1}], v{56+((f>>2)&3)} offset:{(64*(f>>4) + 8*(f&3) + 4*jh)*256}")
    for b in range(4): tr.append(f"ds_read_b64_tr_b16 a[{AW1C+2*b}:{AW1C+2*b+1}], v60 offset:{64*b}")
    tr += [f"ds_read_b64_tr_b16 a[{AB1}:{AB1+1}], v61", "ds_read_b64_tr_b16 v[14:15], v63"]
    tr2, tr = tr[:32], tr[32:]
    VM("tab", f"s_waitcnt vmcnt({vw('est', OPT['tw'])})", TABLD)
    for k in range(OPT["xb"]): VM("x", *xd.pop(0))
    I("s_cmp_lg_u32 s18, 1", f"s_waitcnt vmcnt({vw('est')}) lgkmcnt(0)", "s_barrier")
    stamp("barE", lvl=2)
    I("s_cbranch_scc1 K_NOF3", "s_mov_b64 exec, 1", "buffer_store_dword v24, v24, s[12:15], s61 offen sc1", "s_mov_b64 exec, -1", "K_NOF3:")
    I(*tr[:OPT["ntr"]]); tr = tr[OPT["ntr"]:]
    I(f"s_waitcnt vmcnt({vw('tab')+1})", "s_cbranch_scc0 K_F3D", f"s_waitcnt vmcnt({vw('tab')})", "K_F3D:")
    I("v_cmp_eq_u32 vcc, -1, v8", "s_cbranch_vccnz K_TAB", "K_TAB_RET:")
    stamp("tab", lvl=2)
    I("v_and_b32 v33, 0xffff, v8", "v_add_lshl_u32 v32, v44, v33, 2", "v_lshrrev_b32 v33, 16, v8", "v_subrev_u32 v33, 16, v33")
    KEY, AD, RK, O4, O8 = 64, 96, 128, 170, 160
    def compact(dst):
        I("v_cmp_lt_i32 vcc, 0, v33", "s_nop 1", "v_mbcnt_lo_u32_b32 v35, vcc_lo, 0", "v_mbcnt_hi_u32_b32 v35, vcc_hi, v35",
          "v_cmp_gt_u32 s[36:37], 16, v35", "v_lshlrev_b32 v35, 4, v35", "s_nop 0", "s_and_b64 vcc, vcc, s[36:37]",
          "v_cndmask_b32 v35, 4, v35, vcc", f"ds_permute_b32 v{dst}, v35, v34",
          "v_cndmask_b32_e64 v35, 0, 16, vcc", "v_sub_u32 v33, v33, v35", "v_lshl_add_u32 v34, v35, 2, v34")
    def octets(src, its, off, o8):
        I(f"v_lshlrev_b32 v39, 1, v{src}", f"v_lshlrev_b32 v37, 1, v{src}", f"v_lshlrev_b32 v38, 1, v{src}", "s_nop 0",
          "v_mov_b32_dpp v37, v39 row_shr:4 row_mask:0xf bank_mask:0xa", "v_mov_b32_dpp v38, v39 row_shl:4 row_mask:0xf bank_mask:0x5", "s_nop 0")
        for n, i in enumerate(its):
            for h in range(2): I(f"v_add_u32_dpp v{o8+2*n+h}, v{37+h}, v{off} quad_perm:[{i},{i},{i},{i}] row_mask:0xf bank_mask:0xf")
    for i in range(4):
        I(f"v_add_u32_dpp v{O4+i}, v32, v30 quad_perm:[{i},{i},{i},{i}] row_mask:0xf bank_mask:0xf",
          f"buffer_load_dwordx4 v[{KEY+4*i}:{KEY+4*i+3}], v{O4+i}, s[12:15], s50 offen sc1")
    I(f"v_add_u32 v34, 0xc0000040, v32")
    compact(36)
    octets(32, range(4), 26, O8)
    I("s_waitcnt lgkmcnt(0)", f"v_add_u32_dpp v{O4+4}, v36, v31 quad_perm:[0,0,0,0] row_mask:0xf bank_mask:0xf",
      f"buffer_load_dwordx4 v[{KEY+16}:{KEY+19}], v{O4+4}, s[12:15], s50 offen sc1")
    octets(36, [0], 27, O8+8)
    I(f"v_bfe_i32 v{O4+4}, v{O4+4}, 30, 1")
    I(f"v_mul_u32_u24 v21, {NS}, v0", f"v_add_u32 v21, {L_NODE}, v21", "v_cmp_gt_u32 s[38:39], s17, v0")
    I("s_sub_u32 s27, 256, s17", "s_sub_u32 s19, s27, 32")
    I(*tr)
    I("v_bfe_u32 v35, v6, 4, 1", "v_lshlrev_b32 v35, 4, v35", f"v_xor_b32 v{FI+1}, v35, v26")
    for j in range(1, 8): I(f"v_xor_b32 v{FI+1+2*j}, {32*(j&3)}, v{FI+1}")
    I("v_and_b32 v35, 3, v6", f"v_mul_u32_u24 v{FR}, 0x420, v35", "v_bfe_u32 v35, v6, 2, 3", f"v_lshl_add_u32 v{FR}, v35, 7, v{FR}", "v_bfe_u32 v35, v6, 3, 1",
      f"v_lshl_add_u32 v{FR}, v35, 4, v{FR}", f"v_xor_b32 v{FR}, v{FR}, v1", "s_lshl_b32 s45, s18, 13", f"s_add_u32 s45, s45, {L_W}", f"v_add_u32 v{FR}, s45, v{FR}")
    for k in range(1, 4): I(f"v_xor_b32 v{FR+k}, {16*k}, v{FR}")
    I("v_and_b32 v20, 31, v6", "s_lshl_b32 s3, s18, 7", "v_lshl_add_u32 v57, v20, 2, s3", "v_and_b32 v59, 0x38, v6", "v_lshl_add_u32 v59, v59, 1, s3",
      "s_sub_u32 s3, 896, s3", "v_lshl_add_u32 v58, v20, 2, s3")
    F3LD = "buffer_load_dword v9, v16, s[12:15], s52 offen sc1"
    def phaseB(k, a, r, sreg, m=None):
        if m:
            for j in range(4): I(f"v_or_b32 v{k+j}, v{m}, v{k+j}")
        for j in range(4): I(f"v_mad_u32_u16 v{a+j}, v{k+j}, v28, s22")
        for j in range(4):
            I(f"ds_add_rtn_u32 v{r+j}, v{a+j}, v29",
              f"v_add_u32_sdwa v{k+j}, v{48+j}, s{sreg} dst_sel:WORD_0 dst_unused:UNUSED_PRESERVE src0_sel:DWORD src1_sel:DWORD")
    def phaseC(k, a, r):
        L = []
        for j in range(4): L += [f"v_min_u32 v{r+j}, {CAP-1}, v{r+j}", f"v_lshl_add_u32 v{a+j}, v{r+j}, 2, v{a+j}", f"ds_write_b32 v{a+j}, v{k+j} offset:4"]
        return L
    def eadma(o, base, imm): return [f"s_add_u32 m0, {base}, {imm}", "s_nop 0", f"buffer_load_dwordx4 v{o}, s[12:15], s51 offen sc1 lds"]
    ea = [eadma(O8+n, "s23", STG0 + 8192*(n>>1) + 1024*(n&1)) for n in range(10)]
    nx = [0, 1, 2, 2, 2]; done = 0; q = list(xd)
    for i in range(5):
        I(f"s_waitcnt vmcnt({4 - i + done})")
        if i == 0: stamp("key0", lvl=2); I(F3LD); done += 1
        for k in range(nx[i]):
            if q: I(*q.pop(0)); done += 1
        phaseB(KEY+4*i, AD+4*i, RK+4*i, 40+i, O4+4 if i == 4 else None)
    I("v_cmp_lt_i32 vcc, 0, v33", "s_cbranch_vccnz K_MORE", "K_MORE_RET:", "s_branch PG2E")
    repoll("K_F1", F1LD, F1CMP)
    repoll("K_TAB", TABLD, "v_cmp_eq_u32 vcc, -1, v8")
    I(".p2align 12", "PG2:", "s_branch K_WARM_RET")
    repoll("K_F3", F3LD, "v_cmp_eq_u32 vcc, -1, v9")
    I("PG2E:", "s_waitcnt lgkmcnt(0)", "s_barrier")
    stamp("bar1", lvl=2)
    I("s_mov_b64 exec, s[38:39]", "ds_read_b32 v20, v21", "s_mov_b64 exec, -1")
    I(f"s_waitcnt vmcnt({len(xd)})", "v_cmp_eq_u32 vcc, -1, v9", "s_cbranch_vccnz K_F3", "K_F3_RET:")
    stamp("f3", lvl=3)
    I(*(ea[0] + ea[1]))
    I("s_waitcnt lgkmcnt(0)", "s_mov_b64 exec, s[38:39]")
    I(f"v_cmp_lt_u32 vcc, {CAP}, v20", "v_min_u32 v20, 63, v20", "v_sub_u32 v22, 63, v20", "v_lshlrev_b32 v22, 2, v22",
      f"ds_add_rtn_u32 v23, v22, v29 offset:{L_H1}")
    I("s_cbranch_vccz K_A1", f"ds_write_b32 v24, v29 offset:{L_FLAG}", "K_A1:")
    I("s_mov_b64 exec, -1")
    I(*(ea[2] + ea[3]))
    I("s_waitcnt lgkmcnt(0)", "s_barrier")
    I(f"ds_read_b32 v25, v43 offset:{L_H1}")
    I(*phaseC(KEY, AD, RK))
    I("s_waitcnt lgkmcnt(4)", "v_mov_b32 v46, v25")
    scan64(46, phaseC(KEY+4, AD+4, RK+4))
    I("v_sub_u32 v46, v46, v25", "ds_bpermute_b32 v46, v22, v46")
    I("v_lshrrev_b32 v30, 1, v20", "v_cmp_lt_u32 s[36:37], 26, v20")
    I(*(ea[4] + ea[5]))
    I("s_waitcnt lgkmcnt(0)")
    I("v_add_u32 v23, v23, v46", "v_cmp_gt_u32 vcc, s19, v23", "v_lshlrev_b32 v33, 1, v23", "v_lshlrev_b32 v34, 2, v23",
      "v_cndmask_b32_e64 v31, 8, 10, vcc", "v_cndmask_b32 v31, v31, v30, s[36:37]")
    I("v_cmp_gt_u32 vcc, s27, v23", "v_cmp_gt_u32 s[36:37], v20, v31", "v_mov_b32 v35, 0xff", "v_sub_u32 v37, 63, v31",
      "s_and_b64 vcc, vcc, s[36:37]", "s_and_b64 vcc, vcc, s[38:39]")
    I("v_cndmask_b32 v32, 0, v31, vcc", "v_sub_u32 v32, v20, v32", "v_sub_u32 v36, 63, v32", "v_lshlrev_b32 v36, 2, v36", "v_lshlrev_b32 v37, 2, v37")
    I("s_mov_b64 exec, s[38:39]", f"ds_add_rtn_u32 v38, v36, v29 offset:{L_H2}")
    I("s_mov_b64 exec, vcc", f"ds_add_rtn_u32 v39, v37, v29 offset:{L_H2}", "v_add_lshl_u32 v47, s16, v0, 7", f"ds_write_b32 v34, v47 offset:{L_SN}")
    I("s_mov_b64 exec, -1", "v_cndmask_b32 v35, v35, v33, vcc")
    I("v_lshl_or_b32 v48, v35, 8, v32", "v_lshl_or_b32 v48, v48, 16, v0")
    I("v_or_b32 v33, 1, v33", "v_lshl_or_b32 v49, v33, 8, v31", "v_lshl_or_b32 v49, v49, 8, v32", "v_lshl_or_b32 v49, v49, 8, v0", "v_lshl_add_u32 v50, v32, 2, v21")
    I(*(ea[6] + ea[7]))
    I("s_waitcnt lgkmcnt(0)", "s_barrier")
    stamp("bar3", lvl=3)
    I(f"ds_read_b32 v25, v43 offset:{L_H2}"); I(*phaseC(KEY+8, AD+8, RK+8)); I("s_waitcnt lgkmcnt(4)", "v_mov_b32 v46, v25")
    scan64(46, phaseC(KEY+12, AD+12, RK+12))
    I("v_sub_u32 v46, v46, v25", "ds_bpermute_b32 v36, v36, v46", "ds_bpermute_b32 v37, v37, v46")
    I(*phaseC(KEY+16, AD+16, RK+16))
    I("s_waitcnt lgkmcnt(4)", "v_add_lshl_u32 v36, v36, v38, 2", "v_add_lshl_u32 v37, v37, v39, 2")
    o0 = L_TBL // 256
    I("s_mov_b64 exec, s[38:39]", f"ds_write2st64_b32 v36, v48, v21 offset0:{o0} offset1:{o0+4}", "s_mov_b64 exec, vcc", f"ds_write2st64_b32 v37, v49, v50 offset0:{o0} offset1:{o0+4}",
      "s_mov_b64 exec, -1")
    I(*(ea[8] + ea[9]))
    sr = [f"ds_read_b128 a[{AX+4*k}:{AX+4*k+3}], v{34+(k&3)} offset:{4096*(k>>2)}" for k in range(8)]
    I("s_mov_b32 s21, 0", "s_movk_i32 s53, 0x3f80", "s_movk_i32 s54, 0xff", f"s_movk_i32 s55, {SPL_S}", "s_mov_b32 s49, 0xffff", "s_movk_i32 s59, 128",
      f"s_mov_b32 s57, {f32(2.0**-100)}", "s_movk_i32 s58, 0x207", f"v_add_u32 v6, {L_X}, v1")
    I("s_mov_b32 s28, s4", "s_or_b32 s29, s5, 0x800000", f"s_mov_b32 s30, {N_NODES}")
    I("s_waitcnt vmcnt(10) lgkmcnt(0)", "s_barrier")
    stamp("bar4", lvl=2)
    o0 = L_TBL // 256
    I(f"ds_read_b128 v[20:23], v59 offset:{L_TB2}", f"ds_read2st64_b32 v[26:27], v57 offset0:{o0} offset1:{o0+4}",
      f"ds_read_b32 v7, v58 offset:{L_TBL}", f"ds_read_b32 v8, v58 offset:{L_TB2}", f"ds_read_b32 v24, v24 offset:{L_FLAG}")
    for b in range(4): I(*onehot(EE+2*b, b))
    for k in range(4): I(f"v_mov_b32 v{34+k}, v{FR+k}")
    I("s_waitcnt lgkmcnt(4)")
    for j in range(8): I(f"ds_read_u16 v{FI+2*j}, v{20+(j&3)} offset:{6 + 4*(j>>2)}")
    xx, xr = xrd((28, 29, 30, 31))
    I("s_waitcnt lgkmcnt(8)"); I(*xrow(28, 26, 29, 6)); I(*xx); I(*xr)
    I("s_waitcnt lgkmcnt(8)")
    fl = ["v_mov_b32 v5, v26", "v_mov_b32 v2, v27", "v_bfe_u32 v3, v26, 16, 8", "v_cmp_ne_u32 vcc, 0, v24", "s_waitcnt lgkmcnt(4)", "v_readfirstlane_b32 s20, v3", "s_nop 0", "s_nop 0"]
    for j in range(8): I(f"s_add_u32 m0, s45, {1024*j}", fl[j], f"buffer_load_dwordx4 v[{FI+2*j}:{FI+2*j+1}], s[28:31], 0 idxen offen lds")
    I(*recs(40, 2)); I(*recs(10, 8)); I(*xrow(9, 7, 29, 6))
    if OPT["stamp"]: I("s_mov_b32 s62, s20")
    I(*LSET)
    I("s_lshl_b32 s45, s18, 5", "s_add_u32 s45, s45, 128", f"s_mul_i32 s46, s18, {OST_W}", f"s_add_u32 s46, s46, {L_OST}", "s_movk_i32 s47, 576", f"s_mov_b32 s48, {L_SN}")
    I("s_waitcnt lgkmcnt(0)", "s_cbranch_vccnz K_SLOW0", eaddr(44, 40), eaddr(45, 41), eaddr(46, 42), eaddr(4, 43), xaddr(42), ".p2align 3")
    stamp("q1")
    q = sum([qchain(QQ+16*b, b, EE+2*b) for b in range(4)], [])
    I(*weave(q, [], [0]*20, {**{k: tr2[3*k:3*k+3] for k in range(11)}, 14: ["s_waitcnt vmcnt(4)", "s_barrier"], 15: sr[0:2], 16: sr[2:4], 17: [earead(0, 44), earead(1, 45)], 18: [earead(2, 46)]}))
    c = chain(NN, 0, 0, QQ)
    seg = ["s_waitcnt lgkmcnt(0)", "s_nop 0", c[0], xload(2, 0), c[1], xload(2, 1), c[2], xload(2, 2), c[3], xload(2, 3), c[4], xaddr(43), "s_nop 8", "s_nop 0"]
    for b in range(3): seg += weave(chain(NN+16*(b+1), b+1, 0, QQ+16*(b+1)), E0(b), (3,3,3,3,4), {0: ["s_waitcnt vmcnt(4)"], 1: sr[4:6], 2: sr[6:8], 3: [xload(0, 0)]} if b == 2 else None) + A0(b)
    seg += ["s_waitcnt lgkmcnt(0)", "s_barrier"] + weave(chain(T0, 0, 1, QQ), E0(3), (3,3,3,3,4), {3: [xload(0, 1)]}) + A0(3)
    I(*align8(seg))
    stamp("loop1")
    I("s_branch K_A0")
    I(".p2align 12", "PG3:", "s_branch K_WARM_RET2", "s_nop 0", "K_LOOP:")
    def partA(t):
        cur = (1+t) % 3; prv = t % 3
        seg = []
        for b in range(3):
            tc = T0 + 16*(b % 2); tn = T0 + 16*((b+1) % 2)
            if b == 0: extra = {0: [f"ds_read_b32 v6, v2 offset:{4*(t+5)}"], 3: [xload(prv, 2)], 4: ["v_cmpx_lt_u32 vcc, s19, v3"]}
            elif b == 1: extra = {1: ["s_cmp_lt_i32 s19, s37"], 2: ["s_waitcnt lgkmcnt(0)"], 3: [xload(prv, 3)], 4: [xaddr(6)]}
            else: extra = {0: ["s_cselect_b32 s6, s26, 0"], 1: ["s_cmp_ge_u32 s19, s20"], 2: ["s_waitcnt vmcnt(4)"], 3: [earead(prv, 4)],
                           4: ["s_cbranch_scc1 K_EXIT" if t < 2 else "s_cbranch_scc0 K_LOOP"]}
            ms = chain(tn, b+1, cur, QQ+16*(b+1))
            if b < 2: seg += weave(ms, exps(tc), (3,3,3,3,4), extra) + pk3(b, tc)
            else: seg += weave(ms, exps(tc)[:12], (3,3,3,3,0), extra)
        return seg
    def partB(t):
        cur = (1+t) % 3; nxt = (2+t) % 3
        seg = [xload(cur, 0)] + exps(T0)[12:] + pk3(2, T0)
        seg += weave(chain(T0, 0, nxt, QQ), exps(T1), (3,3,3,3,4), {0: ["s_add_u32 s19, s19, 1"], 3: [xload(cur, 1)], 4: [eaddr(4, 6)] + (["v_add_u32 v2, 12, v2"] if t == 2 else [])}) + pk3(3, T1)
        return seg
    I(*align8(partB(2)))
    I("K_A0:")
    I(*align8(partA(0) + partB(0) + partA(1) + partB(1) + partA(2))[:-1])
    I("K_EXIT:", "s_cmp_lg_u32 s21, 0", "s_cbranch_scc1 K_LAST", "s_branch K_MID")
    I(".p2align 12", "PG4:", "s_branch K_WARM_RET2", "s_nop 0", "K_MID:")
    stamp("exit1")
    OH = QQ+48
    def mix(c, g): return c[:4] + g + c[4:]
    def ms(n):
        nonlocal seg
        if OPT.get("ms"): I(*align8(seg)); seg = []; stamp(n)
    xx, xr = xrd((9, 4, 6, 2))
    seg = exps(T0)[12:] + pk3(2, T0) + ["s_mov_b64 s[60:61], exec", "s_mov_b64 exec, -1"] + exps(T1) + xx + ["s_mov_b32 s6, s26", xaddr(10), "s_waitcnt vmcnt(0)", "s_mov_b32 s21, 1"]
    seg += xr + [xload(0, k) for k in range(4)] + ["s_mov_b64 exec, s[60:61]", LSET[3]] + pk3(3, T1) + ["s_mov_b64 exec, -1", "s_waitcnt lgkmcnt(0)"]
    ms("m1")
    seg += spread(mix(qchain(QQ, 0, OH3), binit(LB)), [xaddr(11), "v_bfe_u32 v3, v7, 16, 8"] + lbinit(LB) + ["v_readfirstlane_b32 s20, v3"] + onehot(OH3, 0) + R(0) + M(0),
                  pre={1: [xload(1, 0), xload(1, 1)], 2: [xload(1, 2)], 3: [xload(1, 3)]}) + U(0)
    ms("m2")
    seg += spread(mix(qchain(QQ+16, 1, OH3+2), G(0)), V(0) + onehot(OH3+2, 1) + [eaddr(4, 10), eaddr(6, 11), eaddr(0, 12), "v_mov_b32 v2, v8"] + R(1) + M(1),
                  pre={2: ([f"s_mov_b32 s63, s20"] if OPT["stamp"] else []) + [LSET[0]], 3: [LSET[1]], 5: [LSET[2]], 4: [earead(0, 4), earead(1, 6), earead(2, 0)]}) + U(1)
    ms("m3")
    seg += spread(mix(qchain(QQ+32, 2, OH3), G(1)), V(1) + onehot(OH3, 2) + OCON[:8] + R(2) + M(2), pre={6: ["s_waitcnt vmcnt(4) lgkmcnt(0)"]}) + U(2)
    ms("m4")
    seg += spread(mix(chain(NN, 0, 0, QQ), G(2)), V(2) + OCON[8:] + dec2(LB) + R(3) + M(3)) + U(3)
    seg += spread(mix(chain(NN+16, 1, 0, QQ+16), G(3)), V(3) + onehot(OH3+2, 3) + [xaddr(12), eaddr(4, 13), "v_mov_b32 v5, v7"] + E0(0) + A1(0)[:OPT["a1"]]) + A0(0)[OPT["a1"]//2:] + SCL
    seg += check("K_RARE_A")
    ms("m6")
    q = qchain(QQ+48, 3, OH3+2); c = chain(NN+32, 2, 0, QQ+32)
    seg += spread(q[:4] + c[:1] + q[4:] + c[1:], OCV + E0(1), pre={0: [OIW], 2: [OSW[0]], 4: [OSW[1], xload(2, 0)], 6: [OSW[2], xload(2, 1)], 7: [OSW[3], xload(2, 2)], 8: [xload(2, 3)] + OSR}) + A0(1)
    ms("m7")
    e = E0(2); c = chain(NN+48, 3, 0, QQ+48)
    seg += [c[0], "s_waitcnt vmcnt(4) lgkmcnt(0)"] + OOR + [xaddr(13)] + e[:1] + [c[1], OST[0], OST[1], c[2], OST[2], OST[3], c[3], xload(0, 0)] + e[1:4] + [c[4]] + e[4:] + A0(2)
    seg += weave(chain(T0, 0, 1, QQ), E0(3), (3,3,3,3,4), {3: [xload(0, 1)]}) + A0(3)
    I(*align8(seg))
    stamp("loop2")
    I("s_branch K_A0")
    I(".p2align 12", "PG5:", "s_branch K_WARM_RET2", "s_nop 0", "K_LAST:")
    stamp("exit2")
    CCON = ["v_mbcnt_lo_u32_b32 v2, -1, 0", "v_mbcnt_hi_u32_b32 v2, -1, v2", "v_lshrrev_b32 v2, 3, v2", "v_lshl_add_u32 v2, s18, 3, v2",
            "v_mul_u32_u24 v4, s55, v2", "v_lshl_add_u32 v4, v4, 1, v11", "v_lshl_add_u32 v2, v2, 2, s48", "v_mov_b32 v12, 0"]
    seg = exps(T0)[12:] + pk3(2, T0) + exps(T1) + pk3(3, T1) + ["s_mov_b64 exec, -1"] + lbinit(LB)
    seg += R(0)[:2] + weave(binit(LB), R(0)[2:], (4, 10)) + U(0) + V(0)
    for b in range(3): seg += weave(G(b), R(b+1), (3,3,3,7)) + U(b+1) + V(b+1)
    seg += spread(G(3), M(0) + M(1) + M(2) + M(3) + CCON + dec2(LB), tail=48) + SCL + check("K_RARE_B") + OCV + [OIW] + OSW + OSR
    I(*align8(seg))
    stamp("tail")
    I("s_mov_b32 s3, 0xffff0000", "s_waitcnt lgkmcnt(6)", "s_barrier")
    I(f"ds_read_b32 v12, v12 offset:{L_FLAG}", f"ds_read2_b32 v[2:3], v2 offset1:32")
    for h in range(2):
        for r in range(2): I(f"ds_read_b128 v[{NN+8*h+4*r}:{NN+8*h+4*r+3}], v4 offset:{L_SPL + 64*SPL_S*h + SPL_S*r}")
    I("s_waitcnt lgkmcnt(6)", *OOR); I(*OST)
    I("s_waitcnt lgkmcnt(2)", "v_cmp_ne_u32 vcc, 0, v12", "v_or_b32 v2, v2, v11", "v_or_b32 v3, v3, v11")
    for h in range(2):
        if h: I("s_waitcnt lgkmcnt(0)", "s_nop 0")
        n = NN + 8*h; u = DD + 16*h
        for i in range(8): I(f"v_lshlrev_b32 v{u+2*i}, 16, v{n+i}", f"v_and_b32 v{u+2*i+1}, s3, v{n+i}")
        for i in range(4): I(f"v_pk_add_f32 v[{u+2*i}:{u+2*i+1}], v[{u+2*i}:{u+2*i+1}], v[{u+8+2*i}:{u+8+2*i+1}]")
        for i in range(4): I(f"v_cvt_pk_bf16_f32 v{n+i}, v{u+2*i}, v{u+2*i+1}")
        I(f"buffer_store_dwordx4 v[{n}:{n+3}], v{2+h}, s[8:11], 0 offen{OSTF}")
    I("s_cbranch_vccnz K_SLOW")
    if OPT["diag"]:
        if OPT.get("amp0"): I("s_sub_u32 s94, s94, s96", "s_mul_i32 s94, s94, 10", "s_add_u32 s100, s100, s94")
        I("s_mov_b32 s52, 0", "K_SPIN:", "s_memrealtime s[54:55]", "s_waitcnt lgkmcnt(0)", "s_add_u32 s52, s52, 1", "s_cmp_gt_u32 s52, 20000", "s_cbranch_scc1 K_END",
          "s_sub_u32 s54, s54, s100", "s_cmp_lt_i32 s54, 4000", "s_cbranch_scc1 K_SPIN")
    if OPT["stamp"]:
        I("s_waitcnt vmcnt(0)"); stamp("end")
        I("s_lshl_b32 s3, s2, 2", "s_add_u32 s3, s3, s18", "s_lshl_b32 s3, s3, 7", f"s_add_u32 s3, s3, {STAMP_OFF}", "v_mov_b32 v0, 0")
        for i in range(len(stamps)): I(f"v_mov_b32 v1, s{SLOTS[i]}", f"buffer_store_dword v1, v0, s[12:15], s3 offen offset:{4*i}")
        I("s_lshl_b32 s62, s62, 8", "s_or_b32 s62, s62, s63", "v_mov_b32 v1, s62", "buffer_store_dword v1, v0, s[12:15], s3 offen offset:124")
    I("K_END:", "K_END0:", "s_endpgm")
    repoll("K_F3M", F3LD, "v_cmp_eq_u32 vcc, -1, v9")
    for tag in ("K_RARE_A", "K_RARE_B"):
        I(f"{tag}:")
        I("s_or_b64 vcc, vcc, s[38:39]", "s_cmp_eq_u64 vcc, -1", f"s_cbranch_scc1 {tag}2")
        I(f"v_mov_b32 v{OA+1}, 0", f"v_mov_b32 v{RM}, 1", f"ds_write_b32 v{OA+1}, v{RM} offset:{L_FLAG}")
        I(f"{tag}2:", "s_mov_b64 exec, s[38:39]")
        for i in range(32): I(f"v_mov_b32 v{T0+i}, 0")
        I("s_mov_b64 exec, -1", f"s_branch {tag}_RET")
    K2, A2, R2, O2 = 176, 180, 184, 188
    I("K_MORE:", "s_sub_u32 s40, 0, s23", "s_waitcnt vmcnt(0)", "v_cmp_eq_u32 vcc, -1, v9", "s_cbranch_vccnz K_F3M", "K_F3M_RET:")
    I("s_mov_b64 exec, 1", f"ds_add_rtn_u32 v{O2}, v24, v29 offset:{L_FLAG+4}", "s_waitcnt lgkmcnt(0)", f"v_cmp_ne_u32 vcc, 0, v{O2}", "s_mov_b64 exec, -1", "s_cbranch_vccnz K_MORE_F")
    compact(36)
    I("s_mov_b32 s3, 0", "s_waitcnt lgkmcnt(0)",
      f"v_add_u32_dpp v{O2}, v36, v31 quad_perm:[0,0,0,0] row_mask:0xf bank_mask:0xf",
      f"buffer_load_dwordx4 v[{K2}:{K2+3}], v{O2}, s[12:15], s50 offen sc1", f"v_bfe_i32 v{O2}, v{O2}, 30, 1")
    octets(36, [0], 27, O2+2)
    I(*eadma(O2+2, "s3", 0)); I(*eadma(O2+3, "s3", 1024)); I("s_waitcnt vmcnt(0)")
    phaseB(K2, A2, R2, 40, O2)
    I("s_waitcnt lgkmcnt(0)")
    I(*phaseC(K2, A2, R2))
    I("v_cmp_lt_i32 vcc, 0, v33", "s_cbranch_vccz K_MORE_RET")
    I("K_MORE_F:", f"ds_write_b32 v24, v29 offset:{L_FLAG}", "s_branch K_MORE_RET")
    I("K_SLOW0:", *tr2)
    I("K_SLOW:")
    I("s_mov_b64 exec, -1", "s_waitcnt vmcnt(0) lgkmcnt(0)", "s_barrier")
    I("v_mbcnt_lo_u32_b32 v6, -1, 0", "v_mbcnt_hi_u32_b32 v6, -1, v6", "s_lshl_b32 s3, s18, 6", "v_add_u32 v7, s3, v6")
    I(*TABA); I(f"v_lshlrev_b32 v3, {lt}, v7", TABLD)
    I("v_lshrrev_b32 v1, 5, v6", "v_lshlrev_b32 v1, 6, v1", "v_and_b32 v6, 31, v6", "v_lshlrev_b32 v2, 4, v7")
    for i in range(4): I(f"v_mov_b32 v{16+i}, 0")
    for i in range(13): I(f"ds_write_b128 v2, v[16:19] offset:{4096*i}")
    for b in range(4): I(*onehot(EE+2*b, b))
    I("s_mov_b32 s6, s26", "s_mov_b32 s19, 0", "s_waitcnt vmcnt(0) lgkmcnt(0)", "s_barrier")
    I("K_S_SEG:")
    I("v_readlane_b32 s36, v8, s19", "s_lshl_b32 s3, s18, 6", "s_add_u32 s3, s3, s19", f"s_mul_i32 s3, s3, {CHS}", "s_nop 0",
      "s_lshr_b32 s20, s36, 16", "s_and_b32 s36, s36, 0xffff", "s_add_u32 s36, s36, s3")
    I("K_S_TILE:")
    I("s_cmp_le_i32 s20, 0", "s_cbranch_scc1 K_S_NEXT")
    I("v_add_lshl_u32 v2, s36, v6, 2", "v_lshlrev_b32 v3, 1, v2", "v_cmp_gt_i32 s[38:39], s20, v6")
    I("buffer_load_dword v9, v2, s[12:15], s50 offen sc1", f"buffer_load_dwordx2 a[{AEA}:{AEA+1}], v3, s[12:15], s51 offen sc1", "s_waitcnt vmcnt(0)")
    I(xaddr(9)); I(*[xload(0, k) for k in range(4)])
    I("v_and_b32 v9, 0xffff, v9", "v_lshl_add_u32 v0, v9, 7, v1", "v_subrev_u32 v9, s16, v9"); I(*[xload(2, k) for k in range(4)])
    I("v_mul_u32_u24 v9, 260, v9", "v_lshl_add_u32 v9, v1, 1, v9", "s_waitcnt vmcnt(0)")
    for b in range(4): I(*qchain(NN+16*b, b, EE+2*b)); I(*chain(NN+16*b, b, 0, NN+16*b))
    I(*binit(EE)); I("s_nop 15")
    for b in range(4): I(*E0(b))
    for b in range(4): I(*A0(b))
    for b in range(4): I(*R(b))
    for b in range(4): I(*(U(b) + V(b)))
    I("s_nop 1")
    for b in range(4): I(*G(b))
    I("s_nop 15"); I(*SCL)
    I("s_mov_b64 exec, s[38:39]")
    for i in range(32): I(f"ds_add_f32 v9, v{T0+i} offset:{4*i}")
    I("s_mov_b64 exec, -1", "s_waitcnt lgkmcnt(0)", "s_sub_u32 s20, s20, 32", "s_add_u32 s36, s36, 32", "s_branch K_S_TILE")
    I("K_S_NEXT:", "s_add_u32 s19, s19, 1", "s_cmp_lt_u32 s19, 64", "s_cbranch_scc1 K_S_SEG")
    I("s_barrier", "v_and_b32 v3, 7, v7", "v_lshlrev_b32 v1, 4, v3", "v_lshrrev_b32 v7, 3, v7", "s_mov_b32 s19, 0")
    I("K_S_OUT:")
    I("v_mul_u32_u24 v2, 260, v7", "v_cmp_gt_u32 vcc, s17, v7", "v_lshl_add_u32 v2, v3, 5, v2", "v_add_lshl_u32 v0, s16, v7, 7", "v_cndmask_b32 v0, 2.0, v0, vcc", "v_or_b32 v0, v0, v1")
    for i in range(8): I(f"ds_read_b32 v{16+i}, v2 offset:{4*i}")
    I("s_waitcnt lgkmcnt(0)")
    for i in range(4): I(f"v_cvt_pk_bf16_f32 v{24+i}, v{16+2*i}, v{17+2*i}")
    I("buffer_store_dwordx4 v[24:27], v0, s[8:11], 0 offen", "v_add_u32 v7, 32, v7", "s_waitcnt vmcnt(0)")
    I("s_add_u32 s19, s19, 1", "s_cmp_lt_u32 s19, 7", "s_cbranch_scc1 K_S_OUT", "s_endpgm")

def desc(name, vgpr, accum, sgpr):
    I(".p2align 6", f".amdhsa_kernel {name}")
    for l in (f"next_free_vgpr {vgpr}", f"next_free_sgpr {sgpr}", f"accum_offset {accum}", "group_segment_fixed_size 0", "kernarg_size 88",
              "user_sgpr_count 2", "user_sgpr_kernarg_segment_ptr 1", "system_sgpr_workgroup_id_x 1", "float_denorm_mode_32 3"):
        out.append("  .amdhsa_" + l)
    I(".end_amdhsa_kernel")

hdr = [l.rstrip("\n") for l in open(f"cdna_kernels/{NAME}.s.ref") if l.startswith(";") and "@launch" not in l][:12]
hdr += [f"; @launch grid=(256,1,1) block=(256,1,1) lds={L_SIZE}"]
I('.amdgcn_target "amdgcn-amd-amdhsa--gfx950"', ".text")
kernel()
I('.section .rodata,"a"')
desc(NAME + "_kernel", 512, 256, 102)
if OPT["stamp"]: hdr.append("; stamps: " + " ".join(stamps))
open(sys.argv[1], "w").write("\n".join(hdr + out) + "\n")
```

```python
import sys, struct, math
NAME = "standalone__edge_featured_mpnn_mpnn__graph"
OPT = dict(stamp=0, diag=0, tp=64, ntr=32, xpos=0, sl=3, cw=1, ost='sc1', w2q=1, up=4, wpos=2, tw=2, f1pos=0, xa=0, xb=0, ww=1, rm=1, rr=0, f1e=1, slp=4, tl=0, tm=63, wso=0, a1=12, pb=0)
for a in sys.argv[2:]:
    k, v = a.split("="); OPT[k] = int(v) if v.lstrip("-").isdigit() else v

N_NODES = 50000; E = 800000
CH = 3125; CHS = 3200
TP = OPT['tp']; FL_OFF = 0x40000
TAB_OFF = 0; WP_OFF = 0x48000; KEY_OFF = 0x48000; EA_OFF = 0x368000; STAMP_OFF = 0x1000000
WS_SIZE = 0x10000000 - (OPT['wso'] << 20)
SPIN = 400000
def f32(x): return "0x%08x" % struct.unpack("<I", struct.pack("<f", x))[0]
NLOG2E = f32(-math.log2(math.e)); NLN2 = f32(-math.log(2.0))

out = []
def I(*ls):
    for l in ls:
        for x in l.split("\n"):
            x = x.strip()
            if x: out.append(x if x.endswith(":") or x.startswith(".") else "    " + x)
vm = []
def VM(tag, *ls):
    for l in ls:
        if l.startswith(("buffer_", "global_")): vm.append(tag)
        I(l)
def vw(tag, k=0):
    idx = [i for i, t in enumerate(vm) if t == tag]
    return len(vm) - 1 - idx[-1-k]
def srd(d, lo, hi, size, stride=0):
    I(f"s_mov_b32 s{d}, s{lo}")
    if stride: I(f"s_or_b32 s{d+1}, s{hi}, {hex(stride << 16)}")
    else: I(f"s_mov_b32 s{d+1}, s{hi}")
    I(f"s_mov_b32 s{d+2}, {size}", f"s_mov_b32 s{d+3}, 0x20000")
def scan64(v, fill=None):
    fill = list(fill or [])
    def gap():
        n = 0
        while fill and n < 2: I(fill.pop(0)); n += 1
        if n < 2: I(f"s_nop {1-n}")
    for op in ("row_shr:1", "row_shr:2", "row_shr:4", "row_shr:8"):
        gap(); I(f"v_add_u32_dpp v{v}, v{v}, v{v} {op} row_mask:0xf bank_mask:0xf bound_ctrl:0")
    gap(); I(f"v_add_u32_dpp v{v}, v{v}, v{v} row_bcast:15 row_mask:0xa bank_mask:0xf")
    gap(); I(f"v_add_u32_dpp v{v}, v{v}, v{v} row_bcast:31 row_mask:0xc bank_mask:0xf")
    I(*fill)
SLOTS = list(range(86, 98)) + list(range(64, 84))
stamps = []
def stamp(name, twice=False, lvl=1):
    if OPT.get("amp0") == name: I("s_memrealtime s[96:97]", "s_waitcnt lgkmcnt(0)", "s_nop 0")
    if OPT.get("amp1") == name: I("s_memrealtime s[94:95]", "s_waitcnt lgkmcnt(0)", "s_nop 0")
    if OPT["diag"] == name: I("s_memrealtime s[100:101]", "s_waitcnt lgkmcnt(0)", "s_nop 0")
    if not OPT["stamp"] or lvl > OPT["sl"]: return
    if twice:
        stamps.append(name + "1")
        I(f"s_mov_b32 s{SLOTS[len(stamps)-1]}, s{SLOTS[len(stamps)]}", "s_nop 0")
        name += "2"
    stamps.append(name)
    I(f"{'s_memtime' if OPT['stamp']==1 else 's_memrealtime'} s[98:99]", "s_waitcnt lgkmcnt(0)", f"s_mov_b32 s{SLOTS[len(stamps)-1]}, s98")

CAP = 48; NS = 4 + 4*CAP
STG0 = 2048
L1_KEY = 0; L1_EA = CHS*4; L1_CNT = 38912; L1_BASE = L1_CNT + 1024
L_H1 = STG0 + 5*8192; L_H2 = L_H1 + 256; L_SN = L_H2 + 256; L_FLAG = L_SN + 256; L_TBL = L_H1 + 1024
L_TB2 = L_TBL + 1024; L_SPL = L_TB2 + 1024; SPL_S = 144
L_W = L_SPL; L_S = L_W + 32768; L_W2 = L_S + 4096
L_OST = L_SPL + 128*SPL_S; OST_W = 32*SPL_S
L_X = L_W2 + 16384
L_NODE = L_X + 200*128
L_SIZE = L_NODE + 196*NS
assert L_SIZE <= 163840 and L_SPL + 123*SPL_S <= L_OST and L_OST + 4*OST_W <= L_W2
OSTF = "" if OPT["ost"] == "plain" else " " + OPT["ost"]
T0, T1, EE, NN, DD, QQ = 16, 32, 48, 64, 128, 192
AX, AW1A, AW1B, AW1C, AW2, AEA, AB1 = 0, 48, 112, 176, 184, 248, 254
BIG = 0x1000000

import re
V4 = ("v_exp_f32", "v_rcp_f32", "v_add_f32", "v_mul_f32", "v_add_u32", "v_mov_b32", "v_and_b32", "v_lshrrev_b32", "v_lshlrev_b32", "v_cvt_f32_ubyte2",
      "v_mul_u32_u24", "v_cndmask_b32", "v_readfirstlane_b32", "v_or_b32", "v_sub_u32", "v_xor_b32")
def has_lit(s):
    for t in re.split(r"[,\s]+", s.strip())[1:]:
        if re.fullmatch(r"0x[0-9a-fA-F]+|-?\d+", t):
            v = int(t, 0)
            if not -16 <= v <= 64: return True
    return False
def isz(s):
    s = s.strip(); op = s.split()[0]
    if s.endswith(":") or s.startswith("."): return 0
    if op.startswith(("s_waitcnt", "s_nop", "s_cbranch", "s_branch", "s_movk", "s_barrier")): return 4
    if op.startswith("s_memtime") or op.startswith("s_memrealtime"): return 8
    if op.startswith("s_"): return 8 if has_lit(s) else 4
    if op.startswith("v_cmp") and not op.endswith("_e64"): return (8 if has_lit(s) else 4) if s.split()[1] == "vcc," else 8
    if op == "v_cndmask_b32" and not s.endswith("vcc"): return 8
    if op in V4: return 8 if has_lit(s) else 4
    return 8
def align8(seg):
    off = 0; last4 = None
    seg = list(seg); i = 0
    while i <= len(seg):
        s = seg[i] if i < len(seg) else "v_pk_x"
        z = isz(s)
        if z == 8 and off % 8:
            if last4 is not None:
                op = seg[last4].split()[0]
                seg[last4] = seg[last4].replace(op, op + "_e64", 1); off += 4
            elif i == len(seg) or sum(1 for x in seg[i:i+5] if isz(x) == 8) == 5:
                if i < len(seg): print("pad before", s, file=sys.stderr)
                seg.insert(i, "s_nop 0"); off += 4; i += 1
        if z == 8: last4 = None
        if z == 4 and s.split()[0] in V4 and s.split()[0] != "v_readfirstlane_b32" and off % 8 == 0: last4 = i
        off += z; i += 1
    return seg
def xload(buf, kk): return f"buffer_load_dwordx4 a[{AX+16*buf+4*kk}:{AX+16*buf+4*kk+3}], v0, s[4:7], 0 offen offset:{16*kk}"
def xaddr(rec): return f"v_mad_u32_u16 v0, v{rec}, s59, v1 op_sel:[1,0,0,0]"
def eaddr(d, rec): return f"v_and_b32 v{d}, s49, v{rec}"
def earead(buf, r): return f"ds_read_b64 a[{AEA+2*buf}:{AEA+2*buf+1}], v{r}"
def chain(dst, blk, buf, c):
    L = []
    for kk in range(4):
        w = AW1A + 16*blk + 4*kk; x = AX + 16*buf + 4*kk; ci = c if kk == 0 else dst
        L.append(f"v_mfma_f32_32x32x16_bf16 v[{dst}:{dst+15}], a[{w}:{w+3}], a[{x}:{x+3}], v[{ci}:{ci+15}]")
    return L + [f"v_mfma_f32_32x32x8_bf16 v[{dst}:{dst+15}], a[{AW1C+2*blk}:{AW1C+2*blk+1}], a[{AEA+2*buf}:{AEA+2*buf+1}], v[{dst}:{dst+15}]"]
def qchain(dst, blk, oh, order=(0, 1, 2, 3)):
    L = []
    for kk in order:
        w = AW1B + 16*blk + 4*kk; x = AX + 32 + 4*kk
        L.append(f"v_mfma_f32_32x32x16_bf16 v[{dst}:{dst+15}], a[{w}:{w+3}], a[{x}:{x+3}], " + ("0" if kk == order[0] else f"v[{dst}:{dst+15}]"))
    return L + [f"v_mfma_f32_32x32x8_bf16 v[{dst}:{dst+15}], a[{AB1}:{AB1+1}], v[{oh}:{oh+1}], v[{dst}:{dst+15}]"]
def onehot(r, blk):
    c = "1.0" if blk & 1 else "s53"
    return [f"v_mov_b32 v{r+(blk>>1)}, {c}", f"v_mov_b32 v{r+1-(blk>>1)}, 0"]
def gemm2(blk, hb):
    L = []
    for p in range(2):
        for ob in range(2):
            w = AW2 + 4*((blk*2+p)*2+ob); o = T0 + 16*ob
            L.append(f"v_mfma_f32_32x32x16_bf16 v[{o}:{o+15}], a[{w}:{w+3}], v[{hb+4*p}:{hb+4*p+3}], v[{o}:{o+15}]")
    return L
def weave(ms, fill, cnts, extra=None):
    L = []; fill = list(fill)
    for k, m in enumerate(ms):
        L.append(m)
        if extra: L += extra.get(k, [])
        L += fill[:cnts[k]]; fill = fill[cnts[k]:]
    assert not fill
    return L
def repoll(tag, load, cmp):
    I(f"{tag}:", f"s_mov_b32 s3, {SPIN}", f"{tag}_L:", "s_mov_b64 exec, vcc", f"s_sleep {OPT['slp']}", load, "s_sub_u32 s3, s3, 1", "s_cbranch_scc1 K_END",
      "s_waitcnt vmcnt(0)", cmp, f"s_cbranch_vccnz {tag}_L", "s_mov_b64 exec, -1", f"s_branch {tag}_RET")

def cost(x):
    op = x.split()[0]
    if op.startswith(("v_exp", "v_rcp")): return 8
    if op.startswith("ds_write"): return {"b32": 8, "b64": 12, "b128": 20}[op.split("_")[-1]]
    if op.startswith("buffer_store"): return 12
    return 4
def spread(ms, fill, pre=None, tail=None):
    pre = pre or {}
    L = []; fill = list(fill); n = len(ms)
    if tail is None: tail = 36
    for k, m in enumerate(ms):
        L.append(m); P = pre.get(k, []); L += P
        if k == n-1: break
        room = 32 - (8 if "x16" in m else 4) - sum(cost(x) for x in P)
        if P and P[0].startswith("s_") and "x16" in m: room += 4
        if P and not P[0].startswith(("s_", "v_")) and "x16" not in m: room -= 4
        while fill and room > 0 and sum(map(cost, fill)) - cost(fill[0]) >= tail - sum(cost(x) for x in pre.get(n-1, [])):
            room -= cost(fill[0]); L.append(fill.pop(0))
    return L + fill
def pk3(b, tc):
    n = NN+16*b; d = DD+16*b
    return [f"v_pk_fma_f32 v[{n+2*i}:{n+2*i+1}], v[{n+2*i}:{n+2*i+1}], v[{EE+2*i}:{EE+2*i+1}], v[{n+2*i}:{n+2*i+1}]" for i in range(8)] + \
           [f"v_pk_fma_f32 v[{n+2*i}:{n+2*i+1}], v[{tc+2*i}:{tc+2*i+1}], v[{d+2*i}:{d+2*i+1}], v[{n+2*i}:{n+2*i+1}]" for i in range(8)] + \
           [f"v_pk_fma_f32 v[{d+2*i}:{d+2*i+1}], v[{d+2*i}:{d+2*i+1}], v[{EE+2*i}:{EE+2*i+1}], v[{d+2*i}:{d+2*i+1}]" for i in range(8)]
def exps(tc): return [f"v_exp_f32 v{EE+i}, v{tc+i}" for i in range(16)]
def E0(b): return [f"v_exp_f32 v{DD+16*b+i}, v{NN+16*b+i}" for i in range(16)]
def A0(b): return [f"v_pk_add_f32 v[{DD+16*b+2*i}:{DD+16*b+2*i+1}], v[{DD+16*b+2*i}:{DD+16*b+2*i+1}], 1.0 op_sel_hi:[1,0]" for i in range(8)]
def A1(b): return [f"v_add_f32 v{DD+16*b+i}, 1.0, v{DD+16*b+i}" for i in range(16)]
LB, RM, OA, OH3 = EE, EE+4, EE+5, EE+8
def R(b): return [f"v_rcp_f32 v{DD+16*b+i}, v{DD+16*b+i}" for i in range(16)]
def M(b): return [f"v_min3_f32 v{RM}, v{DD+16*b+2*i}, v{DD+16*b+2*i+1}, " + ("1.0" if b == 0 and i == 0 else f"v{RM}") for i in range(8)]
def U(b): return [f"v_pk_mul_f32 v[{NN+16*b+2*i}:{NN+16*b+2*i+1}], v[{NN+16*b+2*i}:{NN+16*b+2*i+1}], v[{DD+16*b+2*i}:{DD+16*b+2*i+1}]" for i in range(8)]
def V(b): return [f"v_cvt_pk_bf16_f32 v{NN+16*b+i}, v{NN+16*b+2*i}, v{NN+16*b+2*i+1}" for i in range(8)]
def G(b): return gemm2(b, NN+16*b)
def lbinit(r): return [f"v_cvt_f32_ubyte2 v{r+2}, v5", f"v_mov_b32 v{r+1}, 0", f"v_mov_b32 v{r+3}, 0", f"v_lshrrev_b32 v{r}, 16, v{r+2}"]
def binit(r): return [f"v_mfma_f32_32x32x8_bf16 v[{T0+16*ob}:{T0+16*ob+15}], v[14:15], v[{r+2*ob}:{r+2*ob+1}], 0" for ob in range(2)]
def dec2(lb):
    return [f"v_lshrrev_b32 v{OA}, 24, v5", f"v_and_b32 v{OA+2}, s54, v5", f"v_cmp_eq_u32 vcc, s54, v{OA}", f"v_mad_u32_u24 v{OA}, v{OA}, s55, v1",
            f"v_add_lshl_u32 v{OA+2}, s16, v{OA+2}, 7", f"v_cndmask_b32 v{OA}, v{OA}, v8, vcc", f"v_cndmask_b32 v{OA+2}, 2.0, v{OA+2}, vcc",
            f"v_cmp_eq_u32 s[38:39], 0, v{lb+2}"]
SCL = [f"v_pk_mul_f32 v[{T0+2*i}:{T0+2*i+1}], v[{T0+2*i}:{T0+2*i+1}], s[24:25]" for i in range(16)]
def check(tag):
    return [f"v_cmp_class_f32 s[40:41], v{T0}, s58", f"v_cmp_lt_f32 vcc, s57, v{RM}", "s_nop 0", "s_andn2_b64 vcc, vcc, s[40:41]", "s_andn2_b64 s[40:41], vcc, s[38:39]",
            "s_cmp_eq_u64 s[40:41], -1", f"s_cbranch_scc0 {tag}", f"{tag}_RET:"]
OCV = [f"v_cvt_pk_bf16_f32 v{T0+i}, v{T0+2*i}, v{T0+2*i+1}" for i in range(16)]
OCON = ["v_mbcnt_lo_u32_b32 v11, -1, 0", "v_mbcnt_hi_u32_b32 v11, -1, v11", "v_and_or_b32 v8, v11, 31, s45", "v_lshrrev_b32 v9, 3, v11", "v_mad_u32_u24 v8, v8, s55, v1",
        "v_mul_u32_u24 v9, s47, v9", "v_and_b32 v11, 7, v11", "v_add_u32 v9, s46, v9", "v_lshlrev_b32 v11, 4, v11", "v_add_u32 v10, v9, v11"]
OIW = f"ds_write_b32 v8, v{OA+2} offset:{L_SPL+64}"
OSW = [f"ds_write_b128 v{OA}, v[{T0+4*k}:{T0+4*k+3}] offset:{L_SPL+16*k}" for k in range(4)]
OSR = [f"ds_read2_b32 v[{EE+2*k}:{EE+2*k+1}], v9 offset0:{32+72*k} offset1:{68+72*k}" for k in range(2)] + \
      [f"ds_read_b128 v[{T1+4*j}:{T1+4*j+3}], v10 offset:{144*j}" for j in range(4)]
OOR = [f"v_or_b32 v{EE+j}, v{EE+j}, v11" for j in range(4)]
OST = [f"buffer_store_dwordx4 v[{T1+4*j}:{T1+4*j+3}], v{EE+j}, s[8:11], 0 offen{OSTF}" for j in range(4)]
def xrow(d, e, t, base): return [f"v_and_b32 v{d}, s54, v{e}", f"v_and_b32 v{t}, 7, v{e}", f"v_lshl_add_u32 v{d}, v{d}, 7, v{base}", f"v_lshlrev_b32 v{t}, 4, v{t}", f"v_xor_b32 v{d}, v{d}, v{t}"]
def xrd(r): return [f"v_xor_b32 v{r[k]}, {16*k}, v{r[0]}" for k in range(1, 4)], [f"ds_read_b128 a[{AX+32+4*k}:{AX+35+4*k}], v{r[k]}" for k in range(4)]
def recs(d, p): return [f"ds_read2_b32 v[{d}:{d+1}], v{p} offset0:1 offset1:2", f"ds_read2_b32 v[{d+2}:{d+3}], v{p} offset0:3 offset1:4"]
LSET = ["s_max_u32 s20, s20, 2", "s_sub_u32 s37, s20, 3", "s_sub_u32 s20, s20, 1", "s_mov_b32 s19, 1"]

FI, FR = 192, 208
def kernel():
    K = NAME + "_kernel"
    lt = TP.bit_length() - 1
    assert L_W % 256 == 0 and L_X % 128 == 0
    I(".p2align 12", f".globl {K}", ".p2align 8", f".type {K},@function", f"{K}:")
    I("s_cmp_ge_u32 s2, 256", "s_cbranch_scc1 K_END0")
    stamp("start")
    I("s_load_dwordx16 s[64:79], s[0:1], 0", "s_load_dwordx4 s[80:83], s[0:1], 64", "s_load_dwordx2 s[12:13], s[0:1], 80")
    DST, SRC, EAR, AD, RK, P8, CP, WR = 64, 80, 96, 128, 144, 160, 176, 208
    if OPT["cw"]:
        I("s_getpc_b64 s[62:63]", "K_PC:", "s_bfe_u32 s3, s2, 0x30003", "v_and_b32 v2, 0xf8, v0", "v_add_lshl_u32 v41, v2, s3, 7",
          "v_min_u32 v2, K_SLOW0-K_PC, v41", "global_load_dword v10, v2, s[62:63]")
    I("v_lshrrev_b32 v2, 6, v0", "v_and_b32 v6, 63, v0", "v_lshlrev_b32 v17, 2, v0", "v_readfirstlane_b32 s18, v2")
    I("v_mov_b32 v24, 0", f"ds_write_b32 v17, v24 offset:{L1_CNT}", "v_lshlrev_b32 v16, 4, v0", "v_lshlrev_b32 v4, 4, v6")
    I("s_and_b32 s84, s2, 7", "s_lshl_b32 s84, s84, 5", "s_lshr_b32 s3, s2, 3", "s_add_u32 s84, s84, s3")
    CID = "s84" if OPT["rm"] else "s2"; RID = "s84" if OPT["rr"] else "s2"
    I(f"s_mul_i32 s60, {CID}, {CH*4}", "s_mov_b32 s15, 0x20000", f"s_mov_b32 s14, {WS_SIZE}", f"s_mov_b32 s30, {E*4}", "s_mov_b32 s34, s30")
    for r in (31, 35, 43, 47, 51, 55, 59, 7, 11): I(f"s_mov_b32 s{r}, s15")
    I(f"s_mov_b32 s42, {132*256}", f"s_movk_i32 s46, {128*128}", f"s_mov_b32 s54, {E*8}", "s_movk_i32 s58, 256", f"s_mov_b32 s26, {N_NODES*128}", "s_mov_b32 s6, s26", "s_mov_b32 s10, s26")
    I("s_add_u32 s19, s60, 4096", "s_add_u32 s20, s60, 8192", f"s_add_u32 s21, s60, {(3072-192)*4}")
    I("v_mov_b32 v20, -1", "v_mov_b32 v21, -1", "v_mov_b32 v22, -1", "v_mov_b32 v23, -1")
    I("s_mul_i32 s16, s84, 12800051", "s_add_u32 s16, s16, 0xffff", "s_add_u32 s17, s16, 12800051", "s_lshr_b32 s16, s16, 16", "s_lshr_b32 s17, s17, 16",
      f"s_min_u32 s17, s17, {N_NODES}", "s_sub_u32 s17, s17, s16", "s_mov_b32 s85, 85899")
    I("v_mov_b32 v29, 1", "v_lshlrev_b32 v18, 5, v0", "v_lshlrev_b32 v19, 3, v0", "v_lshlrev_b32 v43, 2, v6")
    I("v_subrev_u32 v45, 192, v0", f"v_cmp_gt_u32 vcc, {CH-3072}, v45", f"v_mov_b32 v45, {hex(BIG)}", "s_mov_b32 s39, 0x05040100", "v_cndmask_b32 v45, v45, v24, vcc")
    I(f"v_lshrrev_b32 v42, {lt-4}, v6", f"v_lshlrev_b32 v42, {lt+8}, v42", f"v_and_b32 v37, {TP-1}, v4", "v_add_u32 v42, v42, v37")
    I("v_lshrrev_b32 v1, 5, v6", "v_bfe_u32 v52, v6, 2, 2", "v_and_b32 v53, 3, v6", "v_bfe_u32 v54, v6, 4, 1",
      "v_lshlrev_b32 v55, 3, v53", "v_lshl_add_u32 v55, v54, 5, v55",
      "v_lshl_add_u32 v56, v52, 8, v55", "v_lshl_add_u32 v60, v1, 10, v56", f"v_add_u32 v60, {L_S}, v60",
      "v_lshl_add_u32 v56, v1, 13, v56", "v_lshl_add_u32 v56, v52, 6, v56", f"v_add_u32 v56, {L_W}, v56",
      "v_xor_b32 v57, 64, v56", "v_xor_b32 v58, 0x80, v56", "v_xor_b32 v59, 0xc0, v56",
      "v_lshl_add_u32 v61, v52, 6, v55", "v_lshl_add_u32 v61, v1, 8, v61", f"v_add_u32 v61, {L_S + 2048}, v61",
      "v_and_b32 v55, 1, v53", "v_lshlrev_b32 v55, 6, v55", "v_lshl_add_u32 v55, v54, 4, v55", "v_lshrrev_b32 v53, 1, v53", "v_lshl_add_u32 v55, v53, 3, v55",
      "v_lshl_add_u32 v62, v52, 7, v55", "v_lshl_add_u32 v62, v1, 9, v62", f"v_add_u32 v62, {L_W2}, v62",
      "v_and_b32 v52, 1, v52", "v_lshl_add_u32 v63, v52, 5, v55", "v_lshl_add_u32 v63, v1, 8, v63", f"v_add_u32 v63, {L_S + 2560}, v63",
      "v_lshlrev_b32 v1, 6, v1")
    I(f"s_cmp_lt_u32 {RID}, 64", "s_cselect_b32 s61, s18, 0", "s_cmp_lg_u32 s61, 1")
    I("s_waitcnt lgkmcnt(0)")
    if OPT.get("probe"):
        base = {"x": 64, "ea": 66, "src": 68, "dst": 70, "out": 80, "ws": 12, "none": 64}[OPT["probe"]]
        I(f"s_mov_b64 s[28:29], s[{base}:{base+1}]", "s_memrealtime s[96:97]", "s_waitcnt lgkmcnt(0)")
        if OPT["probe"] != "none":
            for i, r in enumerate(("s60", "s19", "s20")): I(f"buffer_load_dwordx4 v[{DST+4*i}:{DST+4*i+3}], v16, s[28:31], {r} offen")
        I("s_waitcnt vmcnt(0)", "s_memrealtime s[94:95]", "s_waitcnt lgkmcnt(0)", "s_sub_u32 s94, s94, s96", "s_mul_i32 s94, s94, 10", "s_add_u32 s100, s100, s94", "s_cmp_lg_u32 s61, 1")
    I("s_mov_b64 s[28:29], s[70:71]")
    if OPT["wso"]: I(f"s_add_u32 s12, s12, {OPT['wso'] << 20}", "s_addc_u32 s13, s13, 0", "s_cmp_lg_u32 s61, 1")
    so = ("s60", "s19", "s20")
    def dstld():
        for i in range(3): I(f"buffer_load_dwordx4 v[{DST+4*i}:{DST+4*i+3}], v16, s[28:31], {so[i]} offen")
        I(f"buffer_load_dword v{DST+12}, v17, s[28:31], s21 offen", "s_mov_b64 s[32:33], s[68:69]")
    if not OPT["f1e"]: dstld()
    I("s_cbranch_scc1 R_NOT1", f"s_lshl_b32 s3, {RID}, 12", f"s_lshl_b32 s36, {RID}, 6", f"s_add_u32 s36, s36, {FL_OFF}")
    for i in range(4): I(f"buffer_store_dwordx4 v[20:23], v4, s[12:15], s3 offen offset:{1024*i} sc1")
    I("s_mov_b64 exec, 15", "buffer_store_dwordx4 v[20:23], v4, s[12:15], s36 offen sc1", "s_mov_b64 exec, -1", "R_NOT1:")
    if OPT["f1e"]: dstld()
    stamp("issued", lvl=2)
    def tlbwarm():
        I(f"v_and_b32 v40, {OPT['tm']}, v6", "s_cmp_eq_u32 s18, 1", "s_cbranch_scc1 T_1", "s_cmp_eq_u32 s18, 2", "s_cbranch_scc1 T_2", "s_cmp_eq_u32 s18, 3", "s_cbranch_scc1 T_3")
        I("v_mul_u32_u24 v40, 100000, v40", "global_load_dword v10, v40, s[64:65]", "global_load_dword v10, v24, s[72:73]", "s_branch T_E")
        I("T_1:", f"v_mul_u32_u24 v40, {4*CHS*8}, v40", f"v_add_u32 v40, {EA_OFF + 3*CHS*8 + CHS*8 - 128}, v40", "global_load_dword v10, v40, s[12:13]", "global_load_dword v10, v24, s[82:83]", "s_branch T_E")
        I("T_2:", f"v_mul_u32_u24 v40, {4*CHS*4}, v40", f"v_add_u32 v40, {KEY_OFF + CHS*4 - 128}, v40", "global_load_dword v10, v40, s[12:13]", "global_load_dword v10, v24, s[76:77]", "s_branch T_E")
        I("T_3:", "v_and_b32 v40, 1, v6", "v_mul_u32_u24 v40, 194, v40", "v_add_lshl_u32 v40, s16, v40, 7", "global_load_dword v10, v24, s[74:75]", "global_load_dword v10, v24, s[78:79]", "global_load_dword v10, v40, s[80:81]", "T_E:")
        vm.extend(["tl", "tl"])
    vm.append("dst")
    def wwarm():
        I("s_mov_b64 s[40:41], s[72:73]", "s_mov_b64 s[44:45], s[76:77]")
        I("s_cmp_eq_u32 s18, 0", "s_cselect_b64 s[48:49], s[74:75], s[78:79]", "s_cselect_b32 s50, 2, 1", "s_lshl_b32 s50, s50, 7", "s_mov_b32 s3, 0x8000")
        if OPT["ww"]: VM("ww", "buffer_load_dword v10, v41, s[40:43], 0 offen", "buffer_load_dword v10, v41, s[44:47], 0 offen")
        VM("ws", f"buffer_load_dword v{WR+32}, v17, s[40:43], s3 offen", f"buffer_load_dword v{WR+33}, v43, s[48:51], 0 offen")
    if OPT["ww"] == 1: wwarm()
    if OPT["tl"] == 3: tlbwarm()
    for i in range(3): VM("src", f"buffer_load_dwordx4 v[{SRC+4*i}:{SRC+4*i+3}], v16, s[32:35], {so[i]} offen")
    VM("src", f"buffer_load_dword v{SRC+12}, v17, s[32:35], s21 offen", "s_barrier")
    if OPT["tl"] == 1: tlbwarm()
    if OPT["ww"] != 1: wwarm()
    I("s_mov_b64 s[52:53], s[66:67]")
    for r in ("s60", "s19", "s20", "s21"): I(f"s_lshl_b32 {r}, {r}, 1")
    el = []
    for i in range(3): el += [f"buffer_load_dwordx4 v[{EAR+8*i}:{EAR+8*i+3}], v18, s[52:55], {so[i]} offen", f"buffer_load_dwordx4 v[{EAR+8*i+4}:{EAR+8*i+7}], v18, s[52:55], {so[i]} offen offset:16"]
    el.append(f"buffer_load_dwordx2 v[{EAR+24}:{EAR+25}], v19, s[52:55], s21 offen")
    up = OPT["up"]
    I("v_mov_b32 v25, 0", "v_mov_b32 v26, 0", "v_mov_b32 v27, 0", f"v_add_u32 v5, {L_NODE}, v16")
    for i in range(10): VM("ea", f"ds_write_b128 v5, v[24:27] offset:{4096*i}", *(el[i-10+up:i-9+up] if i >= 10-up else []))
    if OPT["tl"] == 2: tlbwarm()
    I("v_mov_b32 v28, 0x7a0000ff",
      "v_cmp_eq_u32 vcc, 2, v2", f"ds_write_b32 v17, v28 offset:{L_TBL}", f"v_mov_b32 v28, {hex(BIG)}", "v_cndmask_b32 v3, v24, v28, vcc",
      f"ds_write_b32 v17, v3 offset:{L_H1}", f"ds_write_b32 v17, v28 offset:{L_TB2}")
    I("v_and_b32 v3, 0x7c, v43", f"ds_write_b32 v3, v20 offset:{L1_KEY + CH*4}")
    I("s_mov_b64 s[56:57], s[82:83]",
      "s_mov_b64 s[4:5], s[64:65]", "s_mov_b64 s[8:9], s[80:81]")
    I(f"s_mul_i32 s3, {CID}, {CHS*4}", f"s_add_u32 s3, s3, {KEY_OFF}", "s_add_u32 s28, s12, s3", "s_addc_u32 s29, s13, 0", f"s_movk_i32 s30, {(CH+19)*4}")
    I(f"s_mul_i32 s3, {CID}, {CHS*8}", f"s_add_u32 s3, s3, {EA_OFF}", "s_add_u32 s32, s12, s3", "s_addc_u32 s33, s13, 0", f"s_movk_i32 s34, {(CH+1)*8}")
    I("s_lshl_b32 s38, s18, 12", f"s_add_u32 m0, s38, {L_W2}")
    ATOM = [f"s_and_b32 s3, {RID}, 3", "s_lshl_b32 s3, s3, 6", "s_mov_b64 exec, 1", "buffer_atomic_add v29, v24, s[56:59], s3 offen", "s_mov_b64 exec, -1"]
    if OPT["f1e"]:
        I("s_cmp_lg_u32 s61, 1", "s_cbranch_scc1 R_W0", f"s_waitcnt vmcnt({vw('dst')+4})", *ATOM)
        I(f"s_waitcnt vmcnt({vw('dst')+1})", "s_branch R_W", "R_W0:", f"s_waitcnt vmcnt({vw('dst')})", "R_W:")
    else: I("s_cmp_lg_u32 s61, 1", f"s_waitcnt vmcnt({vw('dst')+5})", "s_cbranch_scc0 R_W", f"s_waitcnt vmcnt({vw('dst')})", "R_W:")
    stamp("dst", lvl=2)
    for i in range(13):
        I(f"v_mul_u32_u24 v{AD+i}, s85, v{DST+i}", f"v_lshlrev_b32_sdwa v{AD+i}, 2, v{AD+i} dst_sel:DWORD dst_unused:UNUSED_PAD src0_sel:DWORD src1_sel:BYTE_3")
        if i == 12: I(f"v_or_b32 v{AD+i}, v45, v{AD+i}")
        I(f"ds_add_rtn_u32 v{RK+i}, v{AD+i}, v29 offset:{L1_CNT}")
        if i >= 6 + up: VM("ea", el[i-6])
    I("s_cmp_eq_u32 s18, 0", "s_waitcnt lgkmcnt(0)", "s_barrier")
    stamp("barA", lvl=3)
    perm = [f"v_perm_b32 v{DST+i}, v{SRC+i}, v{DST+i}, s39" for i in range(13)]
    I("s_cbranch_scc1 K_SCAN")
    I("s_cmp_eq_u32 s18, 2", "s_cbranch_scc1 PG1", "s_cmp_eq_u32 s18, 3", "s_cbranch_scc1 PG2", "s_cmp_lg_u32 s61, 1", "s_cbranch_scc1 K_NOSCAN")
    if not OPT["f1e"]: I(f"s_waitcnt vmcnt({vw('dst')})", *ATOM)
    I("s_branch K_NOSCAN")
    I("K_SCAN:", f"ds_read_b128 v[32:35], v4 offset:{L1_CNT}", "s_waitcnt lgkmcnt(0)")
    I("v_add_u32 v38, v32, v33", "v_add_u32 v39, v38, v34", "v_add_u32 v41, v39, v35", "v_mov_b32 v36, v41")
    scan64(36)
    I("v_sub_u32 v36, v36, v41", "v_add_u32 v37, v36, v32", "v_add_u32 v38, v36, v38", "v_add_u32 v39, v36, v39")
    I(f"ds_write_b128 v4, v[36:39] offset:{L1_BASE}")
    for i in range(4): I(f"v_lshl_or_b32 v{32+i}, v{32+i}, 16, v{36+i}")
    I("s_waitcnt lgkmcnt(0)", "K_WARM_RET:", "K_NOSCAN:", "s_barrier")
    stamp("barB", lvl=3)
    wl = [[f"s_movk_i32 s3, {4096*i}", f"buffer_load_dwordx4 v[{WR+4*i}:{WR+4*i+3}], v16, s[40:43], s3 offen"] for i in range(8)]
    wl += [[f"buffer_load_dwordx4 v4, s[44:47], s38 offen offset:{1024*i} lds"] for i in range(4)]
    nw = {0: (8, 0, 4), 1: (4, 4, 4), 2: (0, 8, 4), 3: (0, 12, 0), 4: (4, 8, 0)}[OPT["wpos"]]
    for i in range(13): I(f"ds_read_b32 v{AD+i}, v{AD+i} offset:{L1_BASE}")
    I("s_cmp_lg_u32 s61, 1", f"s_waitcnt vmcnt({vw('src')+1})", "s_cbranch_scc0 R_W2", f"s_waitcnt vmcnt({vw('src')})", "R_W2:", *perm)
    for i in range(13):
        if i in (0, 6): I(f"s_waitcnt lgkmcnt({7 if i == 0 else 6})")
        I(f"v_add_lshl_u32 v{AD+i}, v{AD+i}, v{RK+i}, 2")
        if i == 12: I(f"v_or_b32 v{AD+i}, v45, v{AD+i}")
        I(f"ds_write_b32 v{AD+i}, v{DST+i} offset:{L1_KEY}")
        if i >= 13 - nw[0]: VM("w", *wl.pop(0))
    I("s_waitcnt lgkmcnt(0)", "s_barrier")
    stamp("barC", lvl=2)
    for i in range(4): I(f"ds_read_b128 v[{CP+4*i}:{CP+4*i+3}], v16 offset:{L1_KEY+4096*i}")
    for i in range(13): I(f"v_lshlrev_b32 v{P8+i}, 1, v{AD+i}")
    for i in range(4): VM("kst", f"s_movk_i32 s3, {4096*i}", f"s_waitcnt lgkmcnt({3-i})", f"buffer_store_dwordx4 v[{CP+4*i}:{CP+4*i+3}], v16, s[28:31], s3 offen sc1")
    F1LD = "buffer_load_dword v20, v43, s[56:59], s37 offen sc1"
    F1CMP = "v_cmp_lt_u32 vcc, v20, v22"
    TABLD = "buffer_load_dword v8, v3, s[12:15], s36 offen sc1"
    TABA = [f"s_lshr_b32 s36, s84, {lt-2}", f"s_lshl_b32 s36, s36, {lt+8}", f"s_and_b32 s3, s84, {TP//4-1}", "s_lshl2_add_u32 s36, s3, s36"]
    I("s_cmp_eq_u32 s18, 2", "s_cselect_b32 s37, 0, 0x1000", *TABA); I(f"v_lshlrev_b32 v3, {lt}, v0")
    I("v_and_b32 v22, 0xcf, v0", "v_cmp_eq_u32 vcc, 0x80, v22", f"s_lshl_b32 s60, {CID}, {lt}", f"s_lshl_b32 s61, {CID}, 4", "v_cndmask_b32_e64 v22, 0, 16, vcc", f"s_add_u32 s61, s61, {FL_OFF}")
    I(f"s_mov_b32 s24, {NLOG2E}", f"s_mov_b32 s25, {NLOG2E}", "s_mov_b32 s27, 0xffff0000", "v_and_b32 v5, 0x300, v16", "v_lshrrev_b32 v5, 2, v5", "v_xor_b32 v5, v5, v16", f"v_add_u32 v5, {L_W}, v5")
    I(f"v_lshl_add_u32 v7, v2, 8, v17", f"v_add_u32 v7, {L_S + 2048}, v7", f"v_add_u32 v9, {L_S}, v17")
    I("s_lshl_b32 s23, s18, 11", "v_and_b32 v48, 0x380, v4", "v_bfe_u32 v49, v6, 2, 1", "v_lshl_add_u32 v48, v49, 10, v48", "v_and_b32 v30, 48, v4",
      "v_lshl_add_u32 v48, v30, 1, v48", "v_add_u32 v48, s23, v48", "v_add_u32 v49, 8, v48", "v_add_u32 v50, 16, v48", "v_add_u32 v51, 24, v48",
      f"s_mul_i32 s22, s16, {NS}", f"s_sub_u32 s22, {L_NODE}, s22", f"v_mov_b32 v28, {NS}",
      "v_add_u32 v31, 2.0, v30", f"v_mul_u32_u24 v44, {CHS}, v0", "v_and_b32 v26, 0x70, v4", "v_add_u32 v27, 0x80000000, v26",
      "v_lshrrev_b32 v46, 3, v0", "v_lshlrev_b32 v47, 4, v46", "v_xor_b32 v47, v47, v4", "v_and_b32 v47, 0x70, v47", "v_add_u32 v46, s16, v46", "v_lshl_add_u32 v46, v46, 7, v47",
      "s_lshl_b32 s62, s18, 10", f"s_add_u32 s62, s62, {L_X}", "s_cmp_eq_u32 s18, 0", "s_mov_b32 s63, 0x3f000", f"s_cselect_b32 s63, {L_X + 6*4096}, s63")
    stamp("kout", lvl=3)
    xd = [[f"s_add_u32 m0, s62, {4096*i}" if i < 6 else "s_mov_b32 m0, s63", "v_add_u32 v46, 0x1000, v46" if i else "s_nop 0",
           "buffer_load_dwordx4 v46, s[4:7], 0 offen lds"] for i in range(7)]
    for i in range(13):
        if i in (0, 4, 8): I(f"s_waitcnt vmcnt({vw('ea', {0: 5, 4: 3, 8: 0}[i])})")
        if i == 8: stamp("ea_in", lvl=3)
        if i == OPT["f1pos"]: VM("f1", F1LD)
        I(f"ds_write_b64 v{P8+i}, v[{EAR+2*i}:{EAR+2*i+1}] offset:{L1_EA}")
        if i >= 13 - nw[1]: VM("w", *wl.pop(0))
    for k in range(OPT["xa"]): VM("x", *xd.pop(0))
    I(f"s_add_u32 m0, s38, {L_W2}", f"s_waitcnt vmcnt({vw('f1')})", F1CMP, "s_cbranch_vccnz K_F1", "K_F1_RET:")
    I("s_cmp_lg_u32 s18, 0", "s_waitcnt lgkmcnt(0)", "s_barrier")
    stamp("barD", lvl=2)
    I("s_cbranch_scc1 K_NOTAB", "buffer_store_dwordx4 v[32:35], v42, s[12:15], s60 offen sc1", "K_NOTAB:")
    for i in range(7): I(f"ds_read_b128 v[{CP+4*i}:{CP+4*i+3}], v16 offset:{L1_EA+4096*i}")
    I("s_branch PG1E", ".p2align 12", "PG1:", "s_branch K_WARM_RET", "s_nop 0", "PG1E:")
    for i in range(7): VM("est", f"s_movk_i32 s3, {4096*i}", f"s_waitcnt lgkmcnt({6-i})", f"buffer_store_dwordx4 v[{CP+4*i}:{CP+4*i+3}], v16, s[32:35], s3 offen sc1")
    while len(wl) > 4: VM("w", *wl.pop(0))
    stamp("eaout", lvl=3)
    I(f"s_waitcnt vmcnt({vw('w')})", ".p2align 3")
    for i in range(34):
        t = 64 + 2*(i % 4) if i < 32 else 72 + 2*(i-32)
        I(f"v_lshlrev_b32 v{t}, 16, v{WR+i}", f"v_and_b32 v{t+1}, s27, v{WR+i}", f"v_pk_mul_f32 v[{t}:{t+1}], v[{t}:{t+1}], s[24:25]", f"v_cvt_pk_bf16_f32 v{WR+i}, v{t}, v{t+1}")
        if i % 4 == 3: I(f"ds_write_b128 v5, v[{WR+i-3}:{WR+i}] offset:{1024*(i-3)}")
        if i in (17, 21, 25, 29) and wl: VM("w2", *wl.pop(0))
    I(f"ds_write_b32 v9, v{WR+32}", f"ds_write_b32 v7, v{WR+33}")
    for i in (32, 33):
        t = 72 + 2*(i-32)
        I(f"v_lshlrev_b32 v64, 16, v{WR+i}", f"v_and_b32 v65, s27, v{WR+i}", f"v_sub_f32 v64, v{t}, v64", f"v_sub_f32 v65, v{t+1}, v65", f"v_cvt_pk_bf16_f32 v{66+i-32}, v64, v65")
    I("ds_write_b32 v9, v66 offset:1024", "ds_write_b32 v7, v67 offset:256")
    I(*[f"s_mov_b32 s{40+i}, {STG0 + 8192*i}" for i in range(5)])
    I(f"s_mov_b32 s24, {NLN2}", f"s_mov_b32 s25, {NLN2}", f"s_mov_b32 s50, {KEY_OFF}", f"s_mov_b32 s51, {EA_OFF}", f"s_mov_b32 s52, {FL_OFF}")
    for w in range(3): I(f"s_cmp_eq_u32 s18, {w+1}", f"s_cbranch_scc1 PG{w+3}")
    I("K_WARM_RET2:")
    stamp("wdone", lvl=3)
    tr = []
    for f in range(16):
        for jh in range(2): tr.append(f"ds_read_b64_tr_b16 a[{AW2+4*f+2*jh}:{AW2+4*f+2*jh+1}], v62 offset:{(16*(f>>1) + 8*jh)*128 + 32*(f&1)}")
    for f in range(32):
        for jh in range(2): tr.append(f"ds_read_b64_tr_b16 a[{AW1A+4*f+2*jh}:{AW1A+4*f+2*jh+1}], v{56+((f>>2)&3)} offset:{(64*(f>>4) + 8*(f&3) + 4*jh)*256}")
    for b in range(4): tr.append(f"ds_read_b64_tr_b16 a[{AW1C+2*b}:{AW1C+2*b+1}], v60 offset:{64*b}")
    tr += [f"ds_read_b64_tr_b16 a[{AB1}:{AB1+1}], v61", "ds_read_b64_tr_b16 v[14:15], v63"]
    tr2, tr = tr[:32], tr[32:]
    VM("tab", f"s_waitcnt vmcnt({vw('est', OPT['tw'])})", TABLD)
    for k in range(OPT["xb"]): VM("x", *xd.pop(0))
    I("s_cmp_lg_u32 s18, 1", f"s_waitcnt vmcnt({vw('est')}) lgkmcnt(0)", "s_barrier")
    stamp("barE", lvl=2)
    I("s_cbranch_scc1 K_NOF3", "s_mov_b64 exec, 1", "buffer_store_dword v24, v24, s[12:15], s61 offen sc1", "s_mov_b64 exec, -1", "K_NOF3:")
    I(*tr[:OPT["ntr"]]); tr = tr[OPT["ntr"]:]
    I(f"s_waitcnt vmcnt({vw('tab')+1})", "s_cbranch_scc0 K_F3D", f"s_waitcnt vmcnt({vw('tab')})", "K_F3D:")
    I("v_cmp_eq_u32 vcc, -1, v8", "s_cbranch_vccnz K_TAB", "K_TAB_RET:")
    stamp("tab", lvl=2)
    I("v_and_b32 v33, 0xffff, v8", "v_add_lshl_u32 v32, v44, v33, 2", "v_lshrrev_b32 v33, 16, v8", "v_subrev_u32 v33, 16, v33")
    KEY, AD, RK, O4, O8 = 64, 96, 128, 170, 160
    def compact(dst):
        I("v_cmp_lt_i32 vcc, 0, v33", "s_nop 1", "v_mbcnt_lo_u32_b32 v35, vcc_lo, 0", "v_mbcnt_hi_u32_b32 v35, vcc_hi, v35",
          "v_cmp_gt_u32 s[36:37], 16, v35", "v_lshlrev_b32 v35, 4, v35", "s_nop 0", "s_and_b64 vcc, vcc, s[36:37]",
          "v_cndmask_b32 v35, 4, v35, vcc", f"ds_permute_b32 v{dst}, v35, v34",
          "v_cndmask_b32_e64 v35, 0, 16, vcc", "v_sub_u32 v33, v33, v35", "v_lshl_add_u32 v34, v35, 2, v34")
    def octets(src, its, off, o8):
        I(f"v_lshlrev_b32 v39, 1, v{src}", f"v_lshlrev_b32 v37, 1, v{src}", f"v_lshlrev_b32 v38, 1, v{src}", "s_nop 0",
          "v_mov_b32_dpp v37, v39 row_shr:4 row_mask:0xf bank_mask:0xa", "v_mov_b32_dpp v38, v39 row_shl:4 row_mask:0xf bank_mask:0x5", "s_nop 0")
        for n, i in enumerate(its):
            for h in range(2): I(f"v_add_u32_dpp v{o8+2*n+h}, v{37+h}, v{off} quad_perm:[{i},{i},{i},{i}] row_mask:0xf bank_mask:0xf")
    for i in range(4):
        I(f"v_add_u32_dpp v{O4+i}, v32, v30 quad_perm:[{i},{i},{i},{i}] row_mask:0xf bank_mask:0xf",
          f"buffer_load_dwordx4 v[{KEY+4*i}:{KEY+4*i+3}], v{O4+i}, s[12:15], s50 offen sc1")
    I(f"v_add_u32 v34, 0xc0000040, v32")
    compact(36)
    octets(32, range(4), 26, O8)
    I("s_waitcnt lgkmcnt(0)", f"v_add_u32_dpp v{O4+4}, v36, v31 quad_perm:[0,0,0,0] row_mask:0xf bank_mask:0xf",
      f"buffer_load_dwordx4 v[{KEY+16}:{KEY+19}], v{O4+4}, s[12:15], s50 offen sc1")
    octets(36, [0], 27, O8+8)
    I(f"v_bfe_i32 v{O4+4}, v{O4+4}, 30, 1")
    I(f"v_mul_u32_u24 v21, {NS}, v0", f"v_add_u32 v21, {L_NODE}, v21", "v_cmp_gt_u32 s[38:39], s17, v0")
    I("s_sub_u32 s27, 256, s17", "s_sub_u32 s19, s27, 32")
    I(*tr)
    I("v_bfe_u32 v35, v6, 4, 1", "v_lshlrev_b32 v35, 4, v35", f"v_xor_b32 v{FI+1}, v35, v26")
    for j in range(1, 8): I(f"v_xor_b32 v{FI+1+2*j}, {32*(j&3)}, v{FI+1}")
    I("v_and_b32 v35, 3, v6", f"v_mul_u32_u24 v{FR}, 0x420, v35", "v_bfe_u32 v35, v6, 2, 3", f"v_lshl_add_u32 v{FR}, v35, 7, v{FR}", "v_bfe_u32 v35, v6, 3, 1",
      f"v_lshl_add_u32 v{FR}, v35, 4, v{FR}", f"v_xor_b32 v{FR}, v{FR}, v1", "s_lshl_b32 s45, s18, 13", f"s_add_u32 s45, s45, {L_W}", f"v_add_u32 v{FR}, s45, v{FR}")
    for k in range(1, 4): I(f"v_xor_b32 v{FR+k}, {16*k}, v{FR}")
    I("v_and_b32 v20, 31, v6", "s_lshl_b32 s3, s18, 7", "v_lshl_add_u32 v57, v20, 2, s3", "v_and_b32 v59, 0x38, v6", "v_lshl_add_u32 v59, v59, 1, s3",
      "s_sub_u32 s3, 896, s3", "v_lshl_add_u32 v58, v20, 2, s3")
    F3LD = "buffer_load_dword v9, v16, s[12:15], s52 offen sc1"
    def phaseB(k, a, r, sreg, m=None):
        if m:
            for j in range(4): I(f"v_or_b32 v{k+j}, v{m}, v{k+j}")
        for j in range(4): I(f"v_mad_u32_u16 v{a+j}, v{k+j}, v28, s22")
        for j in range(4):
            I(f"ds_add_rtn_u32 v{r+j}, v{a+j}, v29",
              f"v_add_u32_sdwa v{k+j}, v{48+j}, s{sreg} dst_sel:WORD_0 dst_unused:UNUSED_PRESERVE src0_sel:DWORD src1_sel:DWORD")
    def phaseC(k, a, r):
        L = []
        for j in range(4): L += [f"v_min_u32 v{r+j}, {CAP-1}, v{r+j}", f"v_lshl_add_u32 v{a+j}, v{r+j}, 2, v{a+j}", f"ds_write_b32 v{a+j}, v{k+j} offset:4"]
        return L
    def eadma(o, base, imm): return [f"s_add_u32 m0, {base}, {imm}", "s_nop 0", f"buffer_load_dwordx4 v{o}, s[12:15], s51 offen sc1 lds"]
    ea = [eadma(O8+n, "s23", STG0 + 8192*(n>>1) + 1024*(n&1)) for n in range(10)]
    nx = [0, 1, 2, 2, 2]; done = 0; q = list(xd)
    for i in range(5):
        I(f"s_waitcnt vmcnt({4 - i + done})")
        if i == 0: stamp("key0", lvl=2); I(F3LD); done += 1
        for k in range(nx[i]):
            if q: I(*q.pop(0)); done += 1
        phaseB(KEY+4*i, AD+4*i, RK+4*i, 40+i, O4+4 if i == 4 else None)
    I("v_cmp_lt_i32 vcc, 0, v33", "s_cbranch_vccnz K_MORE", "K_MORE_RET:", "s_branch PG2E")
    repoll("K_F1", F1LD, F1CMP)
    repoll("K_TAB", TABLD, "v_cmp_eq_u32 vcc, -1, v8")
    I(".p2align 12", "PG2:", "s_branch K_WARM_RET")
    repoll("K_F3", F3LD, "v_cmp_eq_u32 vcc, -1, v9")
    I("PG2E:", "s_waitcnt lgkmcnt(0)", "s_barrier")
    stamp("bar1", lvl=2)
    I("s_mov_b64 exec, s[38:39]", "ds_read_b32 v20, v21", "s_mov_b64 exec, -1")
    I(f"s_waitcnt vmcnt({len(xd)})", "v_cmp_eq_u32 vcc, -1, v9", "s_cbranch_vccnz K_F3", "K_F3_RET:")
    stamp("f3", lvl=3)
    I(*(ea[0] + ea[1]))
    I("s_waitcnt lgkmcnt(0)", "s_mov_b64 exec, s[38:39]")
    I(f"v_cmp_lt_u32 vcc, {CAP}, v20", "v_min_u32 v20, 63, v20", "v_sub_u32 v22, 63, v20", "v_lshlrev_b32 v22, 2, v22",
      f"ds_add_rtn_u32 v23, v22, v29 offset:{L_H1}")
    I("s_cbranch_vccz K_A1", f"ds_write_b32 v24, v29 offset:{L_FLAG}", "K_A1:")
    I("s_mov_b64 exec, -1")
    I(*(ea[2] + ea[3]))
    I("s_waitcnt lgkmcnt(0)", "s_barrier")
    I(f"ds_read_b32 v25, v43 offset:{L_H1}")
    I(*phaseC(KEY, AD, RK))
    I("s_waitcnt lgkmcnt(4)", "v_mov_b32 v46, v25")
    scan64(46, phaseC(KEY+4, AD+4, RK+4))
    I("v_sub_u32 v46, v46, v25", "ds_bpermute_b32 v46, v22, v46")
    I("v_lshrrev_b32 v30, 1, v20", "v_cmp_lt_u32 s[36:37], 26, v20")
    I(*(ea[4] + ea[5]))
    I("s_waitcnt lgkmcnt(0)")
    I("v_add_u32 v23, v23, v46", "v_cmp_gt_u32 vcc, s19, v23", "v_lshlrev_b32 v33, 1, v23", "v_lshlrev_b32 v34, 2, v23",
      "v_cndmask_b32_e64 v31, 8, 10, vcc", "v_cndmask_b32 v31, v31, v30, s[36:37]")
    I("v_cmp_gt_u32 vcc, s27, v23", "v_cmp_gt_u32 s[36:37], v20, v31", "v_mov_b32 v35, 0xff", "v_sub_u32 v37, 63, v31",
      "s_and_b64 vcc, vcc, s[36:37]", "s_and_b64 vcc, vcc, s[38:39]")
    I("v_cndmask_b32 v32, 0, v31, vcc", "v_sub_u32 v32, v20, v32", "v_sub_u32 v36, 63, v32", "v_lshlrev_b32 v36, 2, v36", "v_lshlrev_b32 v37, 2, v37")
    I("s_mov_b64 exec, s[38:39]", f"ds_add_rtn_u32 v38, v36, v29 offset:{L_H2}")
    I("s_mov_b64 exec, vcc", f"ds_add_rtn_u32 v39, v37, v29 offset:{L_H2}", "v_add_lshl_u32 v47, s16, v0, 7", f"ds_write_b32 v34, v47 offset:{L_SN}")
    I("s_mov_b64 exec, -1", "v_cndmask_b32 v35, v35, v33, vcc")
    I("v_lshl_or_b32 v48, v35, 8, v32", "v_lshl_or_b32 v48, v48, 16, v0")
    I("v_or_b32 v33, 1, v33", "v_lshl_or_b32 v49, v33, 8, v31", "v_lshl_or_b32 v49, v49, 8, v32", "v_lshl_or_b32 v49, v49, 8, v0", "v_lshl_add_u32 v50, v32, 2, v21")
    I(*(ea[6] + ea[7]))
    I("s_waitcnt lgkmcnt(0)", "s_barrier")
    stamp("bar3", lvl=3)
    I(f"ds_read_b32 v25, v43 offset:{L_H2}"); I(*phaseC(KEY+8, AD+8, RK+8)); I("s_waitcnt lgkmcnt(4)", "v_mov_b32 v46, v25")
    scan64(46, phaseC(KEY+12, AD+12, RK+12))
    I("v_sub_u32 v46, v46, v25", "ds_bpermute_b32 v36, v36, v46", "ds_bpermute_b32 v37, v37, v46")
    I(*phaseC(KEY+16, AD+16, RK+16))
    I("s_waitcnt lgkmcnt(4)", "v_add_lshl_u32 v36, v36, v38, 2", "v_add_lshl_u32 v37, v37, v39, 2")
    o0 = L_TBL // 256
    I("s_mov_b64 exec, s[38:39]", f"ds_write2st64_b32 v36, v48, v21 offset0:{o0} offset1:{o0+4}", "s_mov_b64 exec, vcc", f"ds_write2st64_b32 v37, v49, v50 offset0:{o0} offset1:{o0+4}",
      "s_mov_b64 exec, -1")
    I(*(ea[8] + ea[9]))
    sr = [f"ds_read_b128 a[{AX+4*k}:{AX+4*k+3}], v{34+(k&3)} offset:{4096*(k>>2)}" for k in range(8)]
    I("s_mov_b32 s21, 0", "s_movk_i32 s53, 0x3f80", "s_movk_i32 s54, 0xff", f"s_movk_i32 s55, {SPL_S}", "s_mov_b32 s49, 0xffff", "s_movk_i32 s59, 128",
      f"s_mov_b32 s57, {f32(2.0**-100)}", "s_movk_i32 s58, 0x207", f"v_add_u32 v6, {L_X}, v1")
    I("s_mov_b32 s28, s4", "s_or_b32 s29, s5, 0x800000", f"s_mov_b32 s30, {N_NODES}")
    I("s_waitcnt vmcnt(10) lgkmcnt(0)", "s_barrier")
    stamp("bar4", lvl=2)
    o0 = L_TBL // 256
    I(f"ds_read_b128 v[20:23], v59 offset:{L_TB2}", f"ds_read2st64_b32 v[26:27], v57 offset0:{o0} offset1:{o0+4}",
      f"ds_read_b32 v7, v58 offset:{L_TBL}", f"ds_read_b32 v8, v58 offset:{L_TB2}", f"ds_read_b32 v24, v24 offset:{L_FLAG}")
    for b in range(4): I(*onehot(EE+2*b, b))
    for k in range(4): I(f"v_mov_b32 v{34+k}, v{FR+k}")
    I("s_waitcnt lgkmcnt(4)")
    for j in range(8): I(f"ds_read_u16 v{FI+2*j}, v{20+(j&3)} offset:{6 + 4*(j>>2)}")
    xx, xr = xrd((28, 29, 30, 31))
    I("s_waitcnt lgkmcnt(8)"); I(*xrow(28, 26, 29, 6)); I(*xx); I(*xr)
    I("s_waitcnt lgkmcnt(8)")
    fl = ["v_mov_b32 v5, v26", "v_mov_b32 v2, v27", "v_bfe_u32 v3, v26, 16, 8", "v_cmp_ne_u32 vcc, 0, v24", "s_waitcnt lgkmcnt(4)", "v_readfirstlane_b32 s20, v3", "s_nop 0", "s_nop 0"]
    for j in range(8): I(f"s_add_u32 m0, s45, {1024*j}", fl[j], f"buffer_load_dwordx4 v[{FI+2*j}:{FI+2*j+1}], s[28:31], 0 idxen offen lds")
    I(*recs(40, 2)); I(*recs(10, 8)); I(*xrow(9, 7, 29, 6))
    if OPT["stamp"]: I("s_mov_b32 s62, s20")
    I(*LSET)
    I("s_lshl_b32 s45, s18, 5", "s_add_u32 s45, s45, 128", f"s_mul_i32 s46, s18, {OST_W}", f"s_add_u32 s46, s46, {L_OST}", "s_movk_i32 s47, 576", f"s_mov_b32 s48, {L_SN}")
    I("s_waitcnt lgkmcnt(0)", "s_cbranch_vccnz K_SLOW0", eaddr(44, 40), eaddr(45, 41), eaddr(46, 42), eaddr(4, 43), xaddr(42), ".p2align 3")
    stamp("q1")
    q = sum([qchain(QQ+16*b, b, EE+2*b) for b in range(4)], [])
    I(*weave(q, [], [0]*20, {**{k: tr2[3*k:3*k+3] for k in range(11)}, 14: ["s_waitcnt vmcnt(4)", "s_barrier"], 15: sr[0:2], 16: sr[2:4], 17: [earead(0, 44), earead(1, 45)], 18: [earead(2, 46)]}))
    c = chain(NN, 0, 0, QQ)
    seg = ["s_waitcnt lgkmcnt(0)", "s_nop 0", c[0], xload(2, 0), c[1], xload(2, 1), c[2], xload(2, 2), c[3], xload(2, 3), c[4], xaddr(43), "s_nop 8", "s_nop 0"]
    for b in range(3): seg += weave(chain(NN+16*(b+1), b+1, 0, QQ+16*(b+1)), E0(b), (3,3,3,3,4), {0: ["s_waitcnt vmcnt(4)"], 1: sr[4:6], 2: sr[6:8], 3: [xload(0, 0)]} if b == 2 else None) + A0(b)
    seg += ["s_waitcnt lgkmcnt(0)", "s_barrier"] + weave(chain(T0, 0, 1, QQ), E0(3), (3,3,3,3,4), {3: [xload(0, 1)]}) + A0(3)
    I(*align8(seg))
    stamp("loop1")
    I("s_branch K_A0")
    I(".p2align 12", "PG3:", "s_branch K_WARM_RET2", "s_nop 0", "K_LOOP:")
    def partA(t):
        cur = (1+t) % 3; prv = t % 3
        seg = []
        for b in range(3):
            tc = T0 + 16*(b % 2); tn = T0 + 16*((b+1) % 2)
            if b == 0: extra = {0: [f"ds_read_b32 v6, v2 offset:{4*(t+5)}"], 3: [xload(prv, 2)], 4: ["v_cmpx_lt_u32 vcc, s19, v3"]}
            elif b == 1: extra = {1: ["s_cmp_lt_i32 s19, s37"], 2: ["s_waitcnt lgkmcnt(0)"], 3: [xload(prv, 3)], 4: [xaddr(6)]}
            else: extra = {0: ["s_cselect_b32 s6, s26, 0"], 1: ["s_cmp_ge_u32 s19, s20"], 2: ["s_waitcnt vmcnt(4)"], 3: [earead(prv, 4)],
                           4: ["s_cbranch_scc1 K_EXIT" if t < 2 else "s_cbranch_scc0 K_LOOP"]}
            ms = chain(tn, b+1, cur, QQ+16*(b+1))
            if b < 2: seg += weave(ms, exps(tc), (3,3,3,3,4), extra) + pk3(b, tc)
            else: seg += weave(ms, exps(tc)[:12], (3,3,3,3,0), extra)
        return seg
    def partB(t):
        cur = (1+t) % 3; nxt = (2+t) % 3
        seg = [xload(cur, 0)] + exps(T0)[12:] + pk3(2, T0)
        seg += weave(chain(T0, 0, nxt, QQ), exps(T1), (3,3,3,3,4), {0: ["s_add_u32 s19, s19, 1"], 3: [xload(cur, 1)], 4: [eaddr(4, 6)] + (["v_add_u32 v2, 12, v2"] if t == 2 else [])}) + pk3(3, T1)
        return seg
    I(*align8(partB(2)))
    I("K_A0:")
    I(*align8(partA(0) + partB(0) + partA(1) + partB(1) + partA(2))[:-1])
    I("K_EXIT:", "s_cmp_lg_u32 s21, 0", "s_cbranch_scc1 K_LAST", "s_branch K_MID")
    I(".p2align 12", "PG4:", "s_branch K_WARM_RET2", "s_nop 0", "K_MID:")
    stamp("exit1")
    OH = QQ+48
    def mix(c, g): return c[:4] + g + c[4:]
    def ms(n):
        nonlocal seg
        if OPT.get("ms"): I(*align8(seg)); seg = []; stamp(n)
    xx, xr = xrd((9, 4, 6, 2))
    seg = exps(T0)[12:] + pk3(2, T0) + ["s_mov_b64 s[60:61], exec", "s_mov_b64 exec, -1"] + exps(T1) + xx + ["s_mov_b32 s6, s26", xaddr(10), "s_waitcnt vmcnt(0)", "s_mov_b32 s21, 1"]
    seg += xr + [xload(0, k) for k in range(4)] + ["s_mov_b64 exec, s[60:61]", LSET[3]] + pk3(3, T1) + ["s_mov_b64 exec, -1", "s_waitcnt lgkmcnt(0)"]
    ms("m1")
    seg += spread(mix(qchain(QQ, 0, OH3), binit(LB)), [xaddr(11), "v_bfe_u32 v3, v7, 16, 8"] + lbinit(LB) + ["v_readfirstlane_b32 s20, v3"] + onehot(OH3, 0) + R(0) + M(0),
                  pre={1: [xload(1, 0), xload(1, 1)], 2: [xload(1, 2)], 3: [xload(1, 3)]}) + U(0)
    ms("m2")
    seg += spread(mix(qchain(QQ+16, 1, OH3+2), G(0)), V(0) + onehot(OH3+2, 1) + [eaddr(4, 10), eaddr(6, 11), eaddr(0, 12), "v_mov_b32 v2, v8"] + R(1) + M(1),
                  pre={2: ([f"s_mov_b32 s63, s20"] if OPT["stamp"] else []) + [LSET[0]], 3: [LSET[1]], 5: [LSET[2]], 4: [earead(0, 4), earead(1, 6), earead(2, 0)]}) + U(1)
    ms("m3")
    seg += spread(mix(qchain(QQ+32, 2, OH3), G(1)), V(1) + onehot(OH3, 2) + OCON[:8] + R(2) + M(2), pre={6: ["s_waitcnt vmcnt(4) lgkmcnt(0)"]}) + U(2)
    ms("m4")
    seg += spread(mix(chain(NN, 0, 0, QQ), G(2)), V(2) + OCON[8:] + dec2(LB) + R(3) + M(3)) + U(3)
    seg += spread(mix(chain(NN+16, 1, 0, QQ+16), G(3)), V(3) + onehot(OH3+2, 3) + [xaddr(12), eaddr(4, 13), "v_mov_b32 v5, v7"] + E0(0) + A1(0)[:OPT["a1"]]) + A0(0)[OPT["a1"]//2:] + SCL
    seg += check("K_RARE_A")
    ms("m6")
    q = qchain(QQ+48, 3, OH3+2); c = chain(NN+32, 2, 0, QQ+32)
    seg += spread(q[:4] + c[:1] + q[4:] + c[1:], OCV + E0(1), pre={0: [OIW], 2: [OSW[0]], 4: [OSW[1], xload(2, 0)], 6: [OSW[2], xload(2, 1)], 7: [OSW[3], xload(2, 2)], 8: [xload(2, 3)] + OSR}) + A0(1)
    ms("m7")
    e = E0(2); c = chain(NN+48, 3, 0, QQ+48)
    seg += [c[0], "s_waitcnt vmcnt(4) lgkmcnt(0)"] + OOR + [xaddr(13)] + e[:1] + [c[1], OST[0], OST[1], c[2], OST[2], OST[3], c[3], xload(0, 0)] + e[1:4] + [c[4]] + e[4:] + A0(2)
    seg += weave(chain(T0, 0, 1, QQ), E0(3), (3,3,3,3,4), {3: [xload(0, 1)]}) + A0(3)
    I(*align8(seg))
    stamp("loop2")
    I("s_branch K_A0")
    I(".p2align 12", "PG5:", "s_branch K_WARM_RET2", "s_nop 0", "K_LAST:")
    stamp("exit2")
    CCON = ["v_mbcnt_lo_u32_b32 v2, -1, 0", "v_mbcnt_hi_u32_b32 v2, -1, v2", "v_lshrrev_b32 v2, 3, v2", "v_lshl_add_u32 v2, s18, 3, v2",
            "v_mul_u32_u24 v4, s55, v2", "v_lshl_add_u32 v4, v4, 1, v11", "v_lshl_add_u32 v2, v2, 2, s48", "v_mov_b32 v12, 0"]
    seg = exps(T0)[12:] + pk3(2, T0) + exps(T1) + pk3(3, T1) + ["s_mov_b64 exec, -1"] + lbinit(LB)
    seg += R(0)[:2] + weave(binit(LB), R(0)[2:], (4, 10)) + U(0) + V(0)
    for b in range(3): seg += weave(G(b), R(b+1), (3,3,3,7)) + U(b+1) + V(b+1)
    seg += spread(G(3), M(0) + M(1) + M(2) + M(3) + CCON + dec2(LB), tail=48) + SCL + check("K_RARE_B") + OCV + [OIW] + OSW + OSR
    I(*align8(seg))
    stamp("tail")
    I("s_mov_b32 s3, 0xffff0000", "s_waitcnt lgkmcnt(6)", "s_barrier")
    I(f"ds_read_b32 v12, v12 offset:{L_FLAG}", f"ds_read2_b32 v[2:3], v2 offset1:32")
    for h in range(2):
        for r in range(2): I(f"ds_read_b128 v[{NN+8*h+4*r}:{NN+8*h+4*r+3}], v4 offset:{L_SPL + 64*SPL_S*h + SPL_S*r}")
    I("s_waitcnt lgkmcnt(6)", *OOR); I(*OST)
    I("s_waitcnt lgkmcnt(2)", "v_cmp_ne_u32 vcc, 0, v12", "v_or_b32 v2, v2, v11", "v_or_b32 v3, v3, v11")
    for h in range(2):
        if h: I("s_waitcnt lgkmcnt(0)", "s_nop 0")
        n = NN + 8*h; u = DD + 16*h
        for i in range(8): I(f"v_lshlrev_b32 v{u+2*i}, 16, v{n+i}", f"v_and_b32 v{u+2*i+1}, s3, v{n+i}")
        for i in range(4): I(f"v_pk_add_f32 v[{u+2*i}:{u+2*i+1}], v[{u+2*i}:{u+2*i+1}], v[{u+8+2*i}:{u+8+2*i+1}]")
        for i in range(4): I(f"v_cvt_pk_bf16_f32 v{n+i}, v{u+2*i}, v{u+2*i+1}")
        I(f"buffer_store_dwordx4 v[{n}:{n+3}], v{2+h}, s[8:11], 0 offen{OSTF}")
    I("s_cbranch_vccnz K_SLOW")
    if OPT["diag"]:
        if OPT.get("amp0"): I("s_sub_u32 s94, s94, s96", "s_mul_i32 s94, s94, 10", "s_add_u32 s100, s100, s94")
        I("s_mov_b32 s52, 0", "K_SPIN:", "s_memrealtime s[54:55]", "s_waitcnt lgkmcnt(0)", "s_add_u32 s52, s52, 1", "s_cmp_gt_u32 s52, 20000", "s_cbranch_scc1 K_END",
          "s_sub_u32 s54, s54, s100", "s_cmp_lt_i32 s54, 4000", "s_cbranch_scc1 K_SPIN")
    if OPT["stamp"]:
        I("s_waitcnt vmcnt(0)"); stamp("end")
        I("s_lshl_b32 s3, s2, 2", "s_add_u32 s3, s3, s18", "s_lshl_b32 s3, s3, 7", f"s_add_u32 s3, s3, {STAMP_OFF}", "v_mov_b32 v0, 0")
        for i in range(len(stamps)): I(f"v_mov_b32 v1, s{SLOTS[i]}", f"buffer_store_dword v1, v0, s[12:15], s3 offen offset:{4*i}")
        I("s_lshl_b32 s62, s62, 8", "s_or_b32 s62, s62, s63", "v_mov_b32 v1, s62", "buffer_store_dword v1, v0, s[12:15], s3 offen offset:124")
    I("K_END:", "K_END0:", "s_endpgm")
    repoll("K_F3M", F3LD, "v_cmp_eq_u32 vcc, -1, v9")
    for tag in ("K_RARE_A", "K_RARE_B"):
        I(f"{tag}:")
        I("s_or_b64 vcc, vcc, s[38:39]", "s_cmp_eq_u64 vcc, -1", f"s_cbranch_scc1 {tag}2")
        I(f"v_mov_b32 v{OA+1}, 0", f"v_mov_b32 v{RM}, 1", f"ds_write_b32 v{OA+1}, v{RM} offset:{L_FLAG}")
        I(f"{tag}2:", "s_mov_b64 exec, s[38:39]")
        for i in range(32): I(f"v_mov_b32 v{T0+i}, 0")
        I("s_mov_b64 exec, -1", f"s_branch {tag}_RET")
    K2, A2, R2, O2 = 176, 180, 184, 188
    I("K_MORE:", "s_sub_u32 s40, 0, s23", "s_waitcnt vmcnt(0)", "v_cmp_eq_u32 vcc, -1, v9", "s_cbranch_vccnz K_F3M", "K_F3M_RET:")
    I("s_mov_b64 exec, 1", f"ds_add_rtn_u32 v{O2}, v24, v29 offset:{L_FLAG+4}", "s_waitcnt lgkmcnt(0)", f"v_cmp_ne_u32 vcc, 0, v{O2}", "s_mov_b64 exec, -1", "s_cbranch_vccnz K_MORE_F")
    compact(36)
    I("s_mov_b32 s3, 0", "s_waitcnt lgkmcnt(0)",
      f"v_add_u32_dpp v{O2}, v36, v31 quad_perm:[0,0,0,0] row_mask:0xf bank_mask:0xf",
      f"buffer_load_dwordx4 v[{K2}:{K2+3}], v{O2}, s[12:15], s50 offen sc1", f"v_bfe_i32 v{O2}, v{O2}, 30, 1")
    octets(36, [0], 27, O2+2)
    I(*eadma(O2+2, "s3", 0)); I(*eadma(O2+3, "s3", 1024)); I("s_waitcnt vmcnt(0)")
    phaseB(K2, A2, R2, 40, O2)
    I("s_waitcnt lgkmcnt(0)")
    I(*phaseC(K2, A2, R2))
    I("v_cmp_lt_i32 vcc, 0, v33", "s_cbranch_vccz K_MORE_RET")
    I("K_MORE_F:", f"ds_write_b32 v24, v29 offset:{L_FLAG}", "s_branch K_MORE_RET")
    I("K_SLOW0:", *tr2)
    I("K_SLOW:")
    I("s_mov_b64 exec, -1", "s_waitcnt vmcnt(0) lgkmcnt(0)", "s_barrier")
    I("v_mbcnt_lo_u32_b32 v6, -1, 0", "v_mbcnt_hi_u32_b32 v6, -1, v6", "s_lshl_b32 s3, s18, 6", "v_add_u32 v7, s3, v6")
    I(*TABA); I(f"v_lshlrev_b32 v3, {lt}, v7", TABLD)
    I("v_lshrrev_b32 v1, 5, v6", "v_lshlrev_b32 v1, 6, v1", "v_and_b32 v6, 31, v6", "v_lshlrev_b32 v2, 4, v7")
    for i in range(4): I(f"v_mov_b32 v{16+i}, 0")
    for i in range(13): I(f"ds_write_b128 v2, v[16:19] offset:{4096*i}")
    for b in range(4): I(*onehot(EE+2*b, b))
    I("s_mov_b32 s6, s26", "s_mov_b32 s19, 0", "s_waitcnt vmcnt(0) lgkmcnt(0)", "s_barrier")
    I("K_S_SEG:")
    I("v_readlane_b32 s36, v8, s19", "s_lshl_b32 s3, s18, 6", "s_add_u32 s3, s3, s19", f"s_mul_i32 s3, s3, {CHS}", "s_nop 0",
      "s_lshr_b32 s20, s36, 16", "s_and_b32 s36, s36, 0xffff", "s_add_u32 s36, s36, s3")
    I("K_S_TILE:")
    I("s_cmp_le_i32 s20, 0", "s_cbranch_scc1 K_S_NEXT")
    I("v_add_lshl_u32 v2, s36, v6, 2", "v_lshlrev_b32 v3, 1, v2", "v_cmp_gt_i32 s[38:39], s20, v6")
    I("buffer_load_dword v9, v2, s[12:15], s50 offen sc1", f"buffer_load_dwordx2 a[{AEA}:{AEA+1}], v3, s[12:15], s51 offen sc1", "s_waitcnt vmcnt(0)")
    I(xaddr(9)); I(*[xload(0, k) for k in range(4)])
    I("v_and_b32 v9, 0xffff, v9", "v_lshl_add_u32 v0, v9, 7, v1", "v_subrev_u32 v9, s16, v9"); I(*[xload(2, k) for k in range(4)])
    I("v_mul_u32_u24 v9, 260, v9", "v_lshl_add_u32 v9, v1, 1, v9", "s_waitcnt vmcnt(0)")
    for b in range(4): I(*qchain(NN+16*b, b, EE+2*b)); I(*chain(NN+16*b, b, 0, NN+16*b))
    I(*binit(EE)); I("s_nop 15")
    for b in range(4): I(*E0(b))
    for b in range(4): I(*A0(b))
    for b in range(4): I(*R(b))
    for b in range(4): I(*(U(b) + V(b)))
    I("s_nop 1")
    for b in range(4): I(*G(b))
    I("s_nop 15"); I(*SCL)
    I("s_mov_b64 exec, s[38:39]")
    for i in range(32): I(f"ds_add_f32 v9, v{T0+i} offset:{4*i}")
    I("s_mov_b64 exec, -1", "s_waitcnt lgkmcnt(0)", "s_sub_u32 s20, s20, 32", "s_add_u32 s36, s36, 32", "s_branch K_S_TILE")
    I("K_S_NEXT:", "s_add_u32 s19, s19, 1", "s_cmp_lt_u32 s19, 64", "s_cbranch_scc1 K_S_SEG")
    I("s_barrier", "v_and_b32 v3, 7, v7", "v_lshlrev_b32 v1, 4, v3", "v_lshrrev_b32 v7, 3, v7", "s_mov_b32 s19, 0")
    I("K_S_OUT:")
    I("v_mul_u32_u24 v2, 260, v7", "v_cmp_gt_u32 vcc, s17, v7", "v_lshl_add_u32 v2, v3, 5, v2", "v_add_lshl_u32 v0, s16, v7, 7", "v_cndmask_b32 v0, 2.0, v0, vcc", "v_or_b32 v0, v0, v1")
    for i in range(8): I(f"ds_read_b32 v{16+i}, v2 offset:{4*i}")
    I("s_waitcnt lgkmcnt(0)")
    for i in range(4): I(f"v_cvt_pk_bf16_f32 v{24+i}, v{16+2*i}, v{17+2*i}")
    I("buffer_store_dwordx4 v[24:27], v0, s[8:11], 0 offen", "v_add_u32 v7, 32, v7", "s_waitcnt vmcnt(0)")
    I("s_add_u32 s19, s19, 1", "s_cmp_lt_u32 s19, 7", "s_cbranch_scc1 K_S_OUT", "s_endpgm")

def desc(name, vgpr, accum, sgpr):
    I(".p2align 6", f".amdhsa_kernel {name}")
    for l in (f"next_free_vgpr {vgpr}", f"next_free_sgpr {sgpr}", f"accum_offset {accum}", "group_segment_fixed_size 0", "kernarg_size 88",
              "user_sgpr_count 2", "user_sgpr_kernarg_segment_ptr 1", "system_sgpr_workgroup_id_x 1", "float_denorm_mode_32 3"):
        out.append("  .amdhsa_" + l)
    I(".end_amdhsa_kernel")

hdr = [l.rstrip("\n") for l in open(f"cdna_kernels/{NAME}.s.ref") if l.startswith(";") and "@launch" not in l][:12]
hdr += [f"; @launch grid=(256,1,1) block=(256,1,1) lds={L_SIZE}"]
I('.amdgcn_target "amdgcn-amd-amdhsa--gfx950"', ".text")
kernel()
I('.section .rodata,"a"')
desc(NAME + "_kernel", 512, 256, 102)
if OPT["stamp"]: hdr.append("; stamps: " + " ".join(stamps))
open(sys.argv[1], "w").write("\n".join(hdr + out) + "\n")
```

```python
import sys, struct, math
NAME = "standalone__edge_featured_mpnn_mpnn__graph"
OPT = dict(stamp=0, diag=0, tp=64, ntr=32, ntr0=-1, xpos=0, sl=3, cw=1, ost='sc1', w2q=1, up=4, wpos=2, tw=2, f1pos=0, xa=0, xb=0, ww=1, rm=1, est='d', f3s='E', f3l='b0', xs='b11.b22.b32.b42', es='a12.a22.a32.a42.a52', hs='A', hl=0, fs=6, rr=0, f1e=1, slp=4, tl=0, tm=63, wso=0, a1=12, pb=0)
for a in sys.argv[2:]:
    k, v = a.split("="); OPT[k] = int(v) if v.lstrip("-").isdigit() else v

N_NODES = 50000; E = 800000
CH = 3125; CHS = 3200
TP = OPT['tp']; FL_OFF = 0x80000; HN_OFF = 0x88000; EP_OFF = 0x8a000
TAB_OFF = 0; WP_OFF = 0x48000; KEY_OFF = 0x90000; EA_OFF = 0x3b0000; STAMP_OFF = 0x1000000
WS_SIZE = 0x10000000 - (OPT['wso'] << 20)
SPIN = 400000
def f32(x): return "0x%08x" % struct.unpack("<I", struct.pack("<f", x))[0]
NLOG2E = f32(-math.log2(math.e)); NLN2 = f32(-math.log(2.0))

out = []
def I(*ls):
    for l in ls:
        for x in l.split("\n"):
            x = x.strip()
            if x: out.append(x if x.endswith(":") or x.startswith(".") else "    " + x)
vm = []
def VM(tag, *ls):
    for l in ls:
        if l.startswith(("buffer_", "global_")): vm.append(tag)
        I(l)
def vw(tag, k=0):
    idx = [i for i, t in enumerate(vm) if t == tag]
    return len(vm) - 1 - idx[-1-k]
def srd(d, lo, hi, size, stride=0):
    I(f"s_mov_b32 s{d}, s{lo}")
    if stride: I(f"s_or_b32 s{d+1}, s{hi}, {hex(stride << 16)}")
    else: I(f"s_mov_b32 s{d+1}, s{hi}")
    I(f"s_mov_b32 s{d+2}, {size}", f"s_mov_b32 s{d+3}, 0x20000")
def scan64(v, fill=None):
    fill = list(fill or [])
    def gap():
        n = 0
        while fill and n < 2: I(fill.pop(0)); n += 1
        if n < 2: I(f"s_nop {1-n}")
    for op in ("row_shr:1", "row_shr:2", "row_shr:4", "row_shr:8"):
        gap(); I(f"v_add_u32_dpp v{v}, v{v}, v{v} {op} row_mask:0xf bank_mask:0xf bound_ctrl:0")
    gap(); I(f"v_add_u32_dpp v{v}, v{v}, v{v} row_bcast:15 row_mask:0xa bank_mask:0xf")
    gap(); I(f"v_add_u32_dpp v{v}, v{v}, v{v} row_bcast:31 row_mask:0xc bank_mask:0xf")
    I(*fill)
SLOTS = list(range(86, 98)) + list(range(64, 84))
stamps = []
def stamp(name, twice=False, lvl=1):
    if OPT.get("amp0") == name: I("s_memrealtime s[96:97]", "s_waitcnt lgkmcnt(0)", "s_nop 0")
    if OPT.get("amp1") == name: I("s_memrealtime s[94:95]", "s_waitcnt lgkmcnt(0)", "s_nop 0")
    if OPT["diag"] == name: I("s_memrealtime s[100:101]", "s_waitcnt lgkmcnt(0)", "s_nop 0")
    if not OPT["stamp"] or lvl > OPT["sl"]: return
    if twice:
        stamps.append(name + "1")
        I(f"s_mov_b32 s{SLOTS[len(stamps)-1]}, s{SLOTS[len(stamps)]}", "s_nop 0")
        name += "2"
    stamps.append(name)
    I(f"{'s_memtime' if OPT['stamp']==1 else 's_memrealtime'} s[98:99]", "s_waitcnt lgkmcnt(0)", f"s_mov_b32 s{SLOTS[len(stamps)-1]}, s98")

CAP = 48; NS = 4 + 4*CAP
STG0 = 2048
L1_KEY = 0; L1_EA = CHS*4; L1_CNT = 38912; L1_BASE = L1_CNT + 1024
L_H1 = STG0 + 5*8192; L_H2 = L_H1 + 256; L_SN = L_H2 + 256; L_FLAG = L_SN + 256; L_TBL = L_H1 + 1024
L_TB2 = L_TBL + 1024; L_SPL = L_TB2 + 1024; SPL_S = 144
L_W = L_SPL; L_S = L_W + 32768; L_W2 = L_S + 4096
L_OST = L_SPL + 128*SPL_S; OST_W = 32*SPL_S
L_X = L_W2 + 16384
L_NODE = L_X + 200*128
L_SIZE = L_NODE + 196*NS
assert L_SIZE <= 163840 and L_SPL + 123*SPL_S <= L_OST and L_OST + 4*OST_W <= L_W2
OSTF = "" if OPT["ost"] == "plain" else " " + OPT["ost"]
T0, T1, EE, NN, DD, QQ = 16, 32, 48, 64, 128, 192
AX, AW1A, AW1B, AW1C, AW2, AEA, AB1 = 0, 48, 112, 176, 184, 248, 254
BIG = 0x1000000

import re
V4 = ("v_exp_f32", "v_rcp_f32", "v_add_f32", "v_mul_f32", "v_add_u32", "v_mov_b32", "v_and_b32", "v_lshrrev_b32", "v_lshlrev_b32", "v_cvt_f32_ubyte2",
      "v_mul_u32_u24", "v_cndmask_b32", "v_readfirstlane_b32", "v_or_b32", "v_sub_u32", "v_xor_b32")
def has_lit(s):
    for t in re.split(r"[,\s]+", s.strip())[1:]:
        if re.fullmatch(r"0x[0-9a-fA-F]+|-?\d+", t):
            v = int(t, 0)
            if not -16 <= v <= 64: return True
    return False
def isz(s):
    s = s.strip(); op = s.split()[0]
    if s.endswith(":") or s.startswith("."): return 0
    if op.startswith(("s_waitcnt", "s_nop", "s_cbranch", "s_branch", "s_movk", "s_barrier")): return 4
    if op.startswith("s_memtime") or op.startswith("s_memrealtime"): return 8
    if op.startswith("s_"): return 8 if has_lit(s) else 4
    if op.startswith("v_cmp") and not op.endswith("_e64"): return (8 if has_lit(s) else 4) if s.split()[1] == "vcc," else 8
    if op == "v_cndmask_b32" and not s.endswith("vcc"): return 8
    if op in V4: return 8 if has_lit(s) else 4
    return 8
def align8(seg):
    off = 0; last4 = None
    seg = list(seg); i = 0
    while i <= len(seg):
        s = seg[i] if i < len(seg) else "v_pk_x"
        z = isz(s)
        if z == 8 and off % 8:
            if last4 is not None:
                op = seg[last4].split()[0]
                seg[last4] = seg[last4].replace(op, op + "_e64", 1); off += 4
            elif i == len(seg) or sum(1 for x in seg[i:i+5] if isz(x) == 8) == 5:
                if i < len(seg): print("pad before", s, file=sys.stderr)
                seg.insert(i, "s_nop 0"); off += 4; i += 1
        if z == 8: last4 = None
        if z == 4 and s.split()[0] in V4 and s.split()[0] != "v_readfirstlane_b32" and off % 8 == 0: last4 = i
        off += z; i += 1
    return seg
def xload(buf, kk): return f"buffer_load_dwordx4 a[{AX+16*buf+4*kk}:{AX+16*buf+4*kk+3}], v0, s[4:7], 0 offen offset:{16*kk}"
def xaddr(rec): return f"v_mad_u32_u16 v0, v{rec}, s59, v1 op_sel:[1,0,0,0]"
def eaddr(d, rec): return f"v_and_b32 v{d}, s49, v{rec}"
def earead(buf, r): return f"ds_read_b64 a[{AEA+2*buf}:{AEA+2*buf+1}], v{r}"
def chain(dst, blk, buf, c):
    L = []
    for kk in range(4):
        w = AW1A + 16*blk + 4*kk; x = AX + 16*buf + 4*kk; ci = c if kk == 0 else dst
        L.append(f"v_mfma_f32_32x32x16_bf16 v[{dst}:{dst+15}], a[{w}:{w+3}], a[{x}:{x+3}], v[{ci}:{ci+15}]")
    return L + [f"v_mfma_f32_32x32x8_bf16 v[{dst}:{dst+15}], a[{AW1C+2*blk}:{AW1C+2*blk+1}], a[{AEA+2*buf}:{AEA+2*buf+1}], v[{dst}:{dst+15}]"]
def qchain(dst, blk, oh, order=(0, 1, 2, 3)):
    L = []
    for kk in order:
        w = AW1B + 16*blk + 4*kk; x = AX + 32 + 4*kk
        L.append(f"v_mfma_f32_32x32x16_bf16 v[{dst}:{dst+15}], a[{w}:{w+3}], a[{x}:{x+3}], " + ("0" if kk == order[0] else f"v[{dst}:{dst+15}]"))
    return L + [f"v_mfma_f32_32x32x8_bf16 v[{dst}:{dst+15}], a[{AB1}:{AB1+1}], v[{oh}:{oh+1}], v[{dst}:{dst+15}]"]
def onehot(r, blk):
    c = "1.0" if blk & 1 else "s53"
    return [f"v_mov_b32 v{r+(blk>>1)}, {c}", f"v_mov_b32 v{r+1-(blk>>1)}, 0"]
def gemm2(blk, hb):
    L = []
    for p in range(2):
        for ob in range(2):
            w = AW2 + 4*((blk*2+p)*2+ob); o = T0 + 16*ob
            L.append(f"v_mfma_f32_32x32x16_bf16 v[{o}:{o+15}], a[{w}:{w+3}], v[{hb+4*p}:{hb+4*p+3}], v[{o}:{o+15}]")
    return L
def weave(ms, fill, cnts, extra=None):
    L = []; fill = list(fill)
    for k, m in enumerate(ms):
        L.append(m)
        if extra: L += extra.get(k, [])
        L += fill[:cnts[k]]; fill = fill[cnts[k]:]
    assert not fill
    return L
def repoll(tag, load, cmp):
    I(f"{tag}:", f"s_mov_b32 s3, {SPIN}", f"{tag}_L:", "s_mov_b64 exec, vcc", f"s_sleep {OPT['slp']}", load, "s_sub_u32 s3, s3, 1", "s_cbranch_scc1 K_END",
      "s_waitcnt vmcnt(0)", cmp, f"s_cbranch_vccnz {tag}_L", "s_mov_b64 exec, -1", f"s_branch {tag}_RET")

def cost(x):
    op = x.split()[0]
    if op.startswith(("v_exp", "v_rcp")): return 8
    if op.startswith("ds_write"): return {"b32": 8, "b64": 12, "b128": 20}[op.split("_")[-1]]
    if op.startswith("buffer_store"): return 12
    return 4
def spread(ms, fill, pre=None, tail=None):
    pre = pre or {}
    L = []; fill = list(fill); n = len(ms)
    if tail is None: tail = 36
    for k, m in enumerate(ms):
        L.append(m); P = pre.get(k, []); L += P
        if k == n-1: break
        room = 32 - (8 if "x16" in m else 4) - sum(cost(x) for x in P)
        if P and P[0].startswith("s_") and "x16" in m: room += 4
        if P and not P[0].startswith(("s_", "v_")) and "x16" not in m: room -= 4
        while fill and room > 0 and sum(map(cost, fill)) - cost(fill[0]) >= tail - sum(cost(x) for x in pre.get(n-1, [])):
            room -= cost(fill[0]); L.append(fill.pop(0))
    return L + fill
def pk3(b, tc):
    n = NN+16*b; d = DD+16*b
    return [f"v_pk_fma_f32 v[{n+2*i}:{n+2*i+1}], v[{n+2*i}:{n+2*i+1}], v[{EE+2*i}:{EE+2*i+1}], v[{n+2*i}:{n+2*i+1}]" for i in range(8)] + \
           [f"v_pk_fma_f32 v[{n+2*i}:{n+2*i+1}], v[{tc+2*i}:{tc+2*i+1}], v[{d+2*i}:{d+2*i+1}], v[{n+2*i}:{n+2*i+1}]" for i in range(8)] + \
           [f"v_pk_fma_f32 v[{d+2*i}:{d+2*i+1}], v[{d+2*i}:{d+2*i+1}], v[{EE+2*i}:{EE+2*i+1}], v[{d+2*i}:{d+2*i+1}]" for i in range(8)]
def exps(tc): return [f"v_exp_f32 v{EE+i}, v{tc+i}" for i in range(16)]
def E0(b): return [f"v_exp_f32 v{DD+16*b+i}, v{NN+16*b+i}" for i in range(16)]
def A0(b): return [f"v_pk_add_f32 v[{DD+16*b+2*i}:{DD+16*b+2*i+1}], v[{DD+16*b+2*i}:{DD+16*b+2*i+1}], 1.0 op_sel_hi:[1,0]" for i in range(8)]
def A1(b): return [f"v_add_f32 v{DD+16*b+i}, 1.0, v{DD+16*b+i}" for i in range(16)]
LB, RM, OA, OH3 = EE, EE+4, EE+5, EE+8
def R(b): return [f"v_rcp_f32 v{DD+16*b+i}, v{DD+16*b+i}" for i in range(16)]
def M(b): return [f"v_min3_f32 v{RM}, v{DD+16*b+2*i}, v{DD+16*b+2*i+1}, " + ("1.0" if b == 0 and i == 0 else f"v{RM}") for i in range(8)]
def U(b): return [f"v_pk_mul_f32 v[{NN+16*b+2*i}:{NN+16*b+2*i+1}], v[{NN+16*b+2*i}:{NN+16*b+2*i+1}], v[{DD+16*b+2*i}:{DD+16*b+2*i+1}]" for i in range(8)]
def V(b): return [f"v_cvt_pk_bf16_f32 v{NN+16*b+i}, v{NN+16*b+2*i}, v{NN+16*b+2*i+1}" for i in range(8)]
def G(b): return gemm2(b, NN+16*b)
def lbinit(r): return [f"v_cvt_f32_ubyte2 v{r+2}, v5", f"v_mov_b32 v{r+1}, 0", f"v_mov_b32 v{r+3}, 0", f"v_lshrrev_b32 v{r}, 16, v{r+2}"]
def binit(r): return [f"v_mfma_f32_32x32x8_bf16 v[{T0+16*ob}:{T0+16*ob+15}], v[14:15], v[{r+2*ob}:{r+2*ob+1}], 0" for ob in range(2)]
def dec2(lb):
    return [f"v_lshrrev_b32 v{OA}, 24, v5", f"v_and_b32 v{OA+2}, s54, v5", f"v_cmp_eq_u32 vcc, s54, v{OA}", f"v_mad_u32_u24 v{OA}, v{OA}, s55, v1",
            f"v_add_lshl_u32 v{OA+2}, s16, v{OA+2}, 7", f"v_cndmask_b32 v{OA}, v{OA}, v8, vcc", f"v_cndmask_b32 v{OA+2}, 2.0, v{OA+2}, vcc",
            f"v_cmp_eq_u32 s[38:39], 0, v{lb+2}"]
SCL = [f"v_pk_mul_f32 v[{T0+2*i}:{T0+2*i+1}], v[{T0+2*i}:{T0+2*i+1}], s[24:25]" for i in range(16)]
def check(tag):
    return [f"v_cmp_class_f32 s[40:41], v{T0}, s58", f"v_cmp_lt_f32 vcc, s57, v{RM}", "s_nop 0", "s_andn2_b64 vcc, vcc, s[40:41]", "s_andn2_b64 s[40:41], vcc, s[38:39]",
            "s_cmp_eq_u64 s[40:41], -1", f"s_cbranch_scc0 {tag}", f"{tag}_RET:"]
OCV = [f"v_cvt_pk_bf16_f32 v{T0+i}, v{T0+2*i}, v{T0+2*i+1}" for i in range(16)]
OCON = ["v_mbcnt_lo_u32_b32 v11, -1, 0", "v_mbcnt_hi_u32_b32 v11, -1, v11", "v_and_or_b32 v8, v11, 31, s45", "v_lshrrev_b32 v9, 3, v11", "v_mad_u32_u24 v8, v8, s55, v1",
        "v_mul_u32_u24 v9, s47, v9", "v_and_b32 v11, 7, v11", "v_add_u32 v9, s46, v9", "v_lshlrev_b32 v11, 4, v11", "v_add_u32 v10, v9, v11"]
OIW = f"ds_write_b32 v8, v{OA+2} offset:{L_SPL+64}"
OSW = [f"ds_write_b128 v{OA}, v[{T0+4*k}:{T0+4*k+3}] offset:{L_SPL+16*k}" for k in range(4)]
OSR = [f"ds_read2_b32 v[{EE+2*k}:{EE+2*k+1}], v9 offset0:{32+72*k} offset1:{68+72*k}" for k in range(2)] + \
      [f"ds_read_b128 v[{T1+4*j}:{T1+4*j+3}], v10 offset:{144*j}" for j in range(4)]
OOR = [f"v_or_b32 v{EE+j}, v{EE+j}, v11" for j in range(4)]
OST = [f"buffer_store_dwordx4 v[{T1+4*j}:{T1+4*j+3}], v{EE+j}, s[8:11], 0 offen{OSTF}" for j in range(4)]
def xrow(d, e, t, base): return [f"v_and_b32 v{d}, s54, v{e}", f"v_and_b32 v{t}, 7, v{e}", f"v_lshl_add_u32 v{d}, v{d}, 7, v{base}", f"v_lshlrev_b32 v{t}, 4, v{t}", f"v_xor_b32 v{d}, v{d}, v{t}"]
def xrd(r): return [f"v_xor_b32 v{r[k]}, {16*k}, v{r[0]}" for k in range(1, 4)], [f"ds_read_b128 a[{AX+32+4*k}:{AX+35+4*k}], v{r[k]}" for k in range(4)]
def recs(d, p): return [f"ds_read2_b32 v[{d}:{d+1}], v{p} offset0:1 offset1:2", f"ds_read2_b32 v[{d+2}:{d+3}], v{p} offset0:3 offset1:4"]
LSET = ["s_max_u32 s20, s20, 2", "s_sub_u32 s37, s20, 3", "s_sub_u32 s20, s20, 1", "s_mov_b32 s19, 1"]

FI, FR = 192, 208
def kernel():
    K = NAME + "_kernel"
    lt = TP.bit_length() - 1
    assert L_W % 256 == 0 and L_X % 128 == 0
    I(".p2align 12", f".globl {K}", ".p2align 8", f".type {K},@function", f"{K}:")
    I("s_cmp_ge_u32 s2, 256", "s_cbranch_scc1 K_END0")
    stamp("start")
    I("s_load_dwordx16 s[64:79], s[0:1], 0", "s_load_dwordx4 s[80:83], s[0:1], 64", "s_load_dwordx2 s[12:13], s[0:1], 80")
    DST, SRC, EAR, AD, RK, P8, CP, WR = 64, 80, 96, 128, 144, 160, 176, 208
    if OPT["cw"]:
        I("s_getpc_b64 s[62:63]", "K_PC:", "s_bfe_u32 s3, s2, 0x30003", "v_and_b32 v2, 0xf8, v0", "v_add_lshl_u32 v41, v2, s3, 7",
          "v_min_u32 v2, K_SLOW0-K_PC, v41", "global_load_dword v10, v2, s[62:63]")
    I("v_lshrrev_b32 v2, 6, v0", "v_and_b32 v6, 63, v0", "v_lshlrev_b32 v17, 2, v0", "v_readfirstlane_b32 s18, v2")
    I("v_mov_b32 v24, 0", f"ds_write_b32 v17, v24 offset:{L1_CNT}", "v_lshlrev_b32 v16, 4, v0", "v_lshlrev_b32 v4, 4, v6")
    I("s_and_b32 s84, s2, 7", "s_lshl_b32 s84, s84, 5", "s_lshr_b32 s3, s2, 3", "s_add_u32 s84, s84, s3")
    CID = "s84" if OPT["rm"] else "s2"; RID = "s84" if OPT["rr"] else "s2"
    I(f"s_mul_i32 s60, {CID}, {CH*4}", "s_mov_b32 s15, 0x20000", f"s_mov_b32 s14, {WS_SIZE}", f"s_mov_b32 s30, {E*4}", "s_mov_b32 s34, s30")
    for r in (31, 35, 43, 47, 51, 55, 7, 11): I(f"s_mov_b32 s{r}, s15")
    I(f"s_mov_b32 s42, {132*256}", f"s_movk_i32 s46, {128*128}", f"s_mov_b32 s54, {E*8}", f"s_mov_b32 s26, {N_NODES*128}", "s_mov_b32 s6, s26", "s_mov_b32 s10, s26")
    I("s_add_u32 s19, s60, 4096", "s_add_u32 s20, s60, 8192", f"s_add_u32 s21, s60, {(3072-192)*4}")
    I("v_mov_b32 v20, -1")
    I("s_mul_i32 s16, s84, 12800051", "s_add_u32 s16, s16, 0xffff", "s_add_u32 s17, s16, 12800051", "s_lshr_b32 s16, s16, 16", "s_lshr_b32 s17, s17, 16",
      f"s_min_u32 s17, s17, {N_NODES}", "s_sub_u32 s17, s17, s16", "s_mov_b32 s85, 85899")
    I("v_mov_b32 v29, 1", "v_lshlrev_b32 v18, 5, v0", "v_lshlrev_b32 v19, 3, v0", "v_lshlrev_b32 v43, 2, v6")
    I("v_subrev_u32 v45, 192, v0", f"v_cmp_gt_u32 vcc, {CH-3072}, v45", f"v_mov_b32 v45, {hex(BIG)}", "s_mov_b32 s39, 0x05040100", "v_cndmask_b32 v45, v45, v24, vcc")
    I(f"v_lshrrev_b32 v42, {lt-4}, v6", f"v_lshlrev_b32 v42, {lt+8}, v42", f"v_and_b32 v37, {TP-1}, v4", "v_add_u32 v42, v42, v37")
    I("v_lshrrev_b32 v1, 5, v6", "v_bfe_u32 v52, v6, 2, 2", "v_and_b32 v53, 3, v6", "v_bfe_u32 v54, v6, 4, 1",
      "v_lshlrev_b32 v55, 3, v53", "v_lshl_add_u32 v55, v54, 5, v55",
      "v_lshl_add_u32 v56, v52, 8, v55", "v_lshl_add_u32 v60, v1, 10, v56", f"v_add_u32 v60, {L_S}, v60",
      "v_lshl_add_u32 v56, v1, 13, v56", "v_lshl_add_u32 v56, v52, 6, v56", f"v_add_u32 v56, {L_W}, v56",
      "v_xor_b32 v57, 64, v56", "v_xor_b32 v58, 0x80, v56", "v_xor_b32 v59, 0xc0, v56",
      "v_lshl_add_u32 v61, v52, 6, v55", "v_lshl_add_u32 v61, v1, 8, v61", f"v_add_u32 v61, {L_S + 2048}, v61",
      "v_and_b32 v55, 1, v53", "v_lshlrev_b32 v55, 6, v55", "v_lshl_add_u32 v55, v54, 4, v55", "v_lshrrev_b32 v53, 1, v53", "v_lshl_add_u32 v55, v53, 3, v55",
      "v_lshl_add_u32 v62, v52, 7, v55", "v_lshl_add_u32 v62, v1, 9, v62", f"v_add_u32 v62, {L_W2}, v62",
      "v_and_b32 v52, 1, v52", "v_lshl_add_u32 v63, v52, 5, v55", "v_lshl_add_u32 v63, v1, 8, v63", f"v_add_u32 v63, {L_S + 2560}, v63",
      "v_lshlrev_b32 v1, 6, v1")
    I("s_waitcnt lgkmcnt(0)")
    if OPT.get("probe"):
        base = {"x": 64, "ea": 66, "src": 68, "dst": 70, "out": 80, "ws": 12, "none": 64}[OPT["probe"]]
        I(f"s_mov_b64 s[28:29], s[{base}:{base+1}]", "s_memrealtime s[96:97]", "s_waitcnt lgkmcnt(0)")
        if OPT["probe"] != "none":
            for i, r in enumerate(("s60", "s19", "s20")): I(f"buffer_load_dwordx4 v[{DST+4*i}:{DST+4*i+3}], v16, s[28:31], {r} offen")
        I("s_waitcnt vmcnt(0)", "s_memrealtime s[94:95]", "s_waitcnt lgkmcnt(0)", "s_sub_u32 s94, s94, s96", "s_mul_i32 s94, s94, 10", "s_add_u32 s100, s100, s94", "s_cmp_lg_u32 s61, 1")
    I("s_mov_b64 s[28:29], s[70:71]")
    if OPT["wso"]: I(f"s_add_u32 s12, s12, {OPT['wso'] << 20}", "s_addc_u32 s13, s13, 0", "s_cmp_lg_u32 s61, 1")
    so = ("s60", "s19", "s20")
    def dstld():
        for i in range(3): I(f"buffer_load_dwordx4 v[{DST+4*i}:{DST+4*i+3}], v16, s[28:31], {so[i]} offen")
        I(f"buffer_load_dword v{DST+12}, v17, s[28:31], s21 offen", "s_mov_b64 s[32:33], s[68:69]")
    I(f"s_load_dwordx2 s[56:57], s[12:13], {EP_OFF}")
    dstld()
    stamp("issued", lvl=2)
    def tlbwarm():
        I(f"v_and_b32 v40, {OPT['tm']}, v6", "s_cmp_eq_u32 s18, 1", "s_cbranch_scc1 T_1", "s_cmp_eq_u32 s18, 2", "s_cbranch_scc1 T_2", "s_cmp_eq_u32 s18, 3", "s_cbranch_scc1 T_3")
        I("v_mul_u32_u24 v40, 100000, v40", "global_load_dword v10, v40, s[64:65]", "global_load_dword v10, v24, s[72:73]", "s_branch T_E")
        I("T_1:", f"v_mul_u32_u24 v40, {4*CHS*8}, v40", f"v_add_u32 v40, {EA_OFF + 3*CHS*8 + CHS*8 - 128}, v40", "global_load_dword v10, v40, s[12:13]", "global_load_dword v10, v24, s[82:83]", "s_branch T_E")
        I("T_2:", f"v_mul_u32_u24 v40, {4*CHS*4}, v40", f"v_add_u32 v40, {KEY_OFF + CHS*4 - 128}, v40", "global_load_dword v10, v40, s[12:13]", "global_load_dword v10, v24, s[76:77]", "s_branch T_E")
        I("T_3:", "v_and_b32 v40, 1, v6", "v_mul_u32_u24 v40, 194, v40", "v_add_lshl_u32 v40, s16, v40, 7", "global_load_dword v10, v24, s[74:75]", "global_load_dword v10, v24, s[78:79]", "global_load_dword v10, v40, s[80:81]", "T_E:")
        vm.extend(["tl", "tl"])
    vm.append("dst")
    def wwarm():
        I("s_mov_b64 s[40:41], s[72:73]", "s_mov_b64 s[44:45], s[76:77]")
        I("s_cmp_eq_u32 s18, 0", "s_cselect_b64 s[48:49], s[74:75], s[78:79]", "s_cselect_b32 s50, 2, 1", "s_lshl_b32 s50, s50, 7", "s_mov_b32 s3, 0x8000")
        if OPT["ww"]: VM("ww", "buffer_load_dword v10, v41, s[40:43], 0 offen", "buffer_load_dword v10, v41, s[44:47], 0 offen")
        VM("ws", f"buffer_load_dword v{WR+32}, v17, s[40:43], s3 offen", f"buffer_load_dword v{WR+33}, v43, s[48:51], 0 offen")
    if OPT["ww"] == 1: wwarm()
    if OPT["tl"] == 3: tlbwarm()
    for i in range(3): VM("src", f"buffer_load_dwordx4 v[{SRC+4*i}:{SRC+4*i+3}], v16, s[32:35], {so[i]} offen")
    VM("src", f"buffer_load_dword v{SRC+12}, v17, s[32:35], s21 offen", "s_barrier")
    if OPT["tl"] == 1: tlbwarm()
    if OPT["ww"] != 1: wwarm()
    I("s_mov_b64 s[52:53], s[66:67]")
    for r in ("s60", "s19", "s20", "s21"): I(f"s_lshl_b32 {r}, {r}, 1")
    el = []
    for i in range(3): el += [f"buffer_load_dwordx4 v[{EAR+8*i}:{EAR+8*i+3}], v18, s[52:55], {so[i]} offen", f"buffer_load_dwordx4 v[{EAR+8*i+4}:{EAR+8*i+7}], v18, s[52:55], {so[i]} offen offset:16"]
    el.append(f"buffer_load_dwordx2 v[{EAR+24}:{EAR+25}], v19, s[52:55], s21 offen")
    up = OPT["up"]
    I("v_mov_b32 v25, 0", "v_mov_b32 v26, 0", "v_mov_b32 v27, 0", f"v_add_u32 v5, {L_NODE}, v16")
    for i in range(10): VM("ea", f"ds_write_b128 v5, v[24:27] offset:{4096*i}", *(el[i-10+up:i-9+up] if i >= 10-up else []))
    if OPT["tl"] == 2: tlbwarm()
    I("v_mov_b32 v28, 0x7a0000ff",
      "v_cmp_eq_u32 vcc, 2, v2", f"ds_write_b32 v17, v28 offset:{L_TBL}", f"v_mov_b32 v28, {hex(BIG)}", "v_cndmask_b32 v3, v24, v28, vcc",
      f"ds_write_b32 v17, v3 offset:{L_H1}", f"ds_write_b32 v17, v28 offset:{L_TB2}")
    I("v_and_b32 v3, 0x7c, v43", f"ds_write_b32 v3, v20 offset:{L1_KEY + CH*4}")
    I(
      "s_mov_b64 s[4:5], s[64:65]", "s_mov_b64 s[8:9], s[80:81]")
    I(f"s_mul_i32 s3, {CID}, {CHS*4}", f"s_add_u32 s3, s3, {KEY_OFF}", "s_add_u32 s28, s12, s3", "s_addc_u32 s29, s13, 0", f"s_movk_i32 s30, {(CH+19)*4}")
    I(f"s_mul_i32 s3, {CID}, {CHS*8}", f"s_add_u32 s3, s3, {EA_OFF}", "s_add_u32 s32, s12, s3", "s_addc_u32 s33, s13, 0", f"s_movk_i32 s34, {(CH+1)*8}")
    I("s_lshl_b32 s38, s18, 12", f"s_add_u32 m0, s38, {L_W2}", f"s_and_b32 s37, {CID}, 3", "s_lshl2_add_u32 s37, s37, s18")
    I(f"s_waitcnt vmcnt({vw('dst')})")
    stamp("dst", lvl=2)
    for i in range(13):
        I(f"v_mul_u32_u24 v{AD+i}, s85, v{DST+i}", f"v_lshlrev_b32_sdwa v{AD+i}, 2, v{AD+i} dst_sel:DWORD dst_unused:UNUSED_PAD src0_sel:DWORD src1_sel:BYTE_3")
        if i == 12: I(f"v_or_b32 v{AD+i}, v45, v{AD+i}")
        I(f"ds_add_rtn_u32 v{RK+i}, v{AD+i}, v29 offset:{L1_CNT}")
        if i >= 6 + up: VM("ea", el[i-6])
    I("s_waitcnt lgkmcnt(0)", "s_add_u32 s56, s56, 0x9e3779b9", "s_cmp_eq_u32 s18, 0", "s_barrier")
    stamp("barA", lvl=3)
    HINT = ["s_cmp_lg_u32 s37, 3", "s_cbranch_scc1 K_NOH", "v_mov_b32 v22, s56", f"s_lshl_b32 s3, {CID}, 5", f"s_add_u32 s3, s3, {HN_OFF}",
            "s_mov_b64 exec, 1", "buffer_store_dword v22, v24, s[12:15], s3 offen sc1", "s_mov_b64 exec, -1", "K_NOH:"]
    perm = [f"v_perm_b32 v{DST+i}, v{SRC+i}, v{DST+i}, s39" for i in range(13)]
    I("s_cbranch_scc1 K_SCAN")
    I("s_cmp_eq_u32 s18, 1", "s_cbranch_scc1 PG1", "s_cmp_eq_u32 s18, 2", "s_cbranch_scc1 PG2", *(HINT if OPT["hs"] == "A" else []), "s_branch PG3")
    I("K_SCAN:", f"ds_read_b128 v[32:35], v4 offset:{L1_CNT}", "s_waitcnt lgkmcnt(0)")
    I("v_add_u32 v38, v32, v33", "v_add_u32 v39, v38, v34", "v_add_u32 v41, v39, v35", "v_mov_b32 v36, v41")
    scan64(36)
    I("v_sub_u32 v36, v36, v41", "v_add_u32 v37, v36, v32", "v_add_u32 v38, v36, v38", "v_add_u32 v39, v36, v39")
    I(f"ds_write_b128 v4, v[36:39] offset:{L1_BASE}")
    for i in range(4): I(f"v_lshl_or_b32 v{32+i}, v{32+i}, 12, v{36+i}")
    I("s_waitcnt lgkmcnt(0)", "K_WARM_RET:", "K_NOSCAN:", "s_barrier")
    stamp("barB", lvl=3)
    wl = [[f"s_movk_i32 s3, {4096*i}", f"buffer_load_dwordx4 v[{WR+4*i}:{WR+4*i+3}], v16, s[40:43], s3 offen"] for i in range(8)]
    wl += [[f"buffer_load_dwordx4 v4, s[44:47], s38 offen offset:{1024*i} lds"] for i in range(4)]
    nw = {0: (8, 0, 4), 1: (4, 4, 4), 2: (0, 8, 4), 3: (0, 12, 0), 4: (4, 8, 0)}[OPT["wpos"]]
    for i in range(13): I(f"ds_read_b32 v{AD+i}, v{AD+i} offset:{L1_BASE}")
    if OPT["hs"] == "A": I("s_cmp_lg_u32 s37, 3", f"s_waitcnt vmcnt({vw('src')+1})", "s_cbranch_scc0 K_SW")
    I(f"s_waitcnt vmcnt({vw('src')})", "K_SW:", *perm)
    if OPT["hs"] == "B": I(*HINT)
    for i in range(13):
        if i in (0, 6): I(f"s_waitcnt lgkmcnt({7 if i == 0 else 6})")
        I(f"v_add_lshl_u32 v{AD+i}, v{AD+i}, v{RK+i}, 2")
        if i == 12: I(f"v_or_b32 v{AD+i}, v45, v{AD+i}")
        I(f"ds_write_b32 v{AD+i}, v{DST+i} offset:{L1_KEY}")
        if i >= 13 - nw[0]: VM("w", *wl.pop(0))
    I("s_waitcnt lgkmcnt(0)", "s_barrier")
    stamp("barC", lvl=2)
    if OPT["hs"] == "C": I(*HINT)
    for i in range(4): I(f"ds_read_b128 v[{CP+4*i}:{CP+4*i+3}], v16 offset:{L1_KEY+4096*i}")
    for i in range(13): I(f"v_lshlrev_b32 v{P8+i}, 1, v{AD+i}")
    for i in range(4): VM("kst", f"s_movk_i32 s3, {4096*i}", f"s_waitcnt lgkmcnt({3-i})", f"buffer_store_dwordx4 v[{CP+4*i}:{CP+4*i+3}], v16, s[28:31], s3 offen sc1")
    TABLD = "buffer_load_dwordx2 v[8:9], v3, s[12:15], s36 offen sc1"
    TABCMP = ["v_xor_b32 v8, s58, v8", "v_cmp_ne_u32 vcc, s56, v9", "v_cmp_lt_u32 s[20:21], s59, v8", "s_nop 0", "s_or_b64 vcc, vcc, s[20:21]"]
    TABA = [f"s_lshr_b32 s36, s84, {lt-2}", f"s_lshl_b32 s36, s36, {lt+8}", f"s_and_b32 s3, s84, {TP//4-4}", "s_lshl2_add_u32 s36, s3, s36",
            "s_and_b32 s3, s84, 1", "s_lshl3_add_u32 s36, s3, s36", "s_and_b32 s3, s84, 2", "s_lshl_b32 s3, s3, 17", "s_add_u32 s36, s36, s3"]
    I(*TABA); I(f"v_lshlrev_b32 v3, {lt}, v0")
    I("s_add_u32 s57, s57, 0x6b43a9b5", "s_and_b32 s58, s57, 0xff000000", "s_mov_b32 s59, 0xffffff")
    I("v_or_b32 v38, s58, v35", "v_or_b32 v36, s58, v34", "v_or_b32 v34, s58, v33", "v_or_b32 v32, s58, v32", "v_mov_b32 v33, s56", "v_mov_b32 v35, s56", "v_mov_b32 v37, s56", "v_mov_b32 v39, s56")
    I(f"s_lshl_b32 s60, {CID}, {lt}", f"s_lshl_b32 s61, {CID}, {OPT['fs']}", f"v_lshlrev_b32 v54, {OPT['fs']}, v0", f"s_add_u32 s61, s61, {FL_OFF}")
    I(f"s_mov_b32 s24, {NLOG2E}", f"s_mov_b32 s25, {NLOG2E}", "s_mov_b32 s27, 0xffff0000", "v_and_b32 v5, 0x300, v16", "v_lshrrev_b32 v5, 2, v5", "v_xor_b32 v5, v5, v16", f"v_add_u32 v5, {L_W}, v5")
    I(f"v_lshl_add_u32 v7, v2, 8, v17", f"v_add_u32 v7, {L_S + 2048}, v7", f"v_add_u32 v9, {L_S}, v17")
    I("s_lshl_b32 s23, s18, 11", "v_and_b32 v48, 0x380, v4", "v_bfe_u32 v49, v6, 2, 1", "v_lshl_add_u32 v48, v49, 10, v48", "v_and_b32 v30, 48, v4",
      "v_lshl_add_u32 v48, v30, 1, v48", "v_add_u32 v48, s23, v48", "v_add_u32 v49, 8, v48", "v_add_u32 v50, 16, v48", "v_add_u32 v51, 24, v48",
      f"s_mul_i32 s22, s16, {NS}", f"s_sub_u32 s22, {L_NODE}, s22", f"v_mov_b32 v28, {NS}",
      "v_add_u32 v31, 2.0, v30", f"v_mul_u32_u24 v44, {CHS}, v0", "v_and_b32 v26, 0x70, v4", "v_add_u32 v27, 0x80000000, v26",
      "v_lshrrev_b32 v46, 3, v0", "v_lshlrev_b32 v47, 4, v46", "v_xor_b32 v47, v47, v4", "v_and_b32 v47, 0x70, v47", "v_add_u32 v46, s16, v46", "v_lshl_add_u32 v46, v46, 7, v47",
      "s_lshl_b32 s62, s18, 10", f"s_add_u32 s62, s62, {L_X}", "s_cmp_eq_u32 s18, 0", "s_mov_b32 s63, 0x3f000", f"s_cselect_b32 s63, {L_X + 6*4096}, s63")
    HLD = "buffer_load_dword v20, v23, s[12:15], s37 offen sc1"
    HCMP = "v_cmp_ne_u32 vcc, s19, v20"
    if OPT["hs"] != "N": I("v_lshlrev_b32 v23, 7, v6", "s_cmp_eq_u32 s18, 2", f"s_cselect_b32 s37, {HN_OFF}, 2.0", "s_cselect_b32 s19, s56, 0")
    stamp("kout", lvl=3)
    xd = [[f"s_add_u32 m0, s62, {4096*i}" if i < 6 else "s_mov_b32 m0, s63", "v_add_u32 v46, 0x1000, v46" if i else "s_nop 0",
           "buffer_load_dwordx4 v46, s[4:7], 0 offen lds"] for i in range(7)]
    KEY, O4, O8 = 64, 170, 160
    F3LD = "buffer_load_dword v9, v54, s[12:15], s52 offen sc1"
    def eadma(o, base, imm): return [f"s_add_u32 m0, {base}, {imm}", "s_nop 0", f"buffer_load_dwordx4 v{o}, s[12:15], s51 offen sc1 lds"]
    ea = [eadma(O8+n, "s23", STG0 + 8192*(n>>1) + 1024*(n&1)) for n in range(10)]
    def plan(p): return {x[:-1]: int(x[-1], 16) for x in p.split(".")}
    xs, es = plan(OPT["xs"]), plan(OPT["es"])
    assert sum(xs.values()) == 7 and sum(es.values()) == 10
    def hook(h):
        if OPT["est"] == h:
            for i in range(7): VM("est", f"s_movk_i32 s3, {4096*i}", *([f"s_waitcnt lgkmcnt({6-i})"] if h == "d" else []), f"buffer_store_dwordx4 v[{CP+4*i}:{CP+4*i+3}], v16, s[32:35], s3 offen sc1")
        if OPT["f3l"] == h: VM("f3", F3LD)
        for k in range(xs.get(h, 0)): VM("x", *xd.pop(0))
        if es.get(h) and len(ea) == 10:
            I(f"s_waitcnt vmcnt({vw('f3')})", "v_cmp_ne_u32 vcc, s56, v9", "s_cbranch_vccnz K_F3", "K_F3_RET:", "s_cmp_lg_u32 s20, 0", "s_cbranch_scc1 K_MEA", "K_MEA_RET:")
            stamp("f3", lvl=3)
        for k in range(es.get(h, 0)): VM("eb", *ea.pop(0))
    def bar(n, extra=None):
        w = [vw(t) for t in ([extra] if extra else []) + (["est"] if str(OPT["f3s"]) == n else [])]
        if str(OPT["f3s"]) == n: I("s_cmp_lg_u32 s18, 1")
        I("s_waitcnt " + (f"vmcnt({min(w)}) " if w else "") + "lgkmcnt(0)", "s_barrier")
        if str(OPT["f3s"]) == n: I("s_cbranch_scc1 K_NOF3", "v_mov_b32 v53, s56", "s_mov_b64 exec, 1", "buffer_store_dword v53, v24, s[12:15], s61 offen sc1", "s_mov_b64 exec, -1", "K_NOF3:")
    for i in range(13):
        if i in (0, 4, 8): I(f"s_waitcnt vmcnt({vw('ea', {0: 5, 4: 3, 8: 0}[i])})")
        if i == 8: stamp("ea_in", lvl=3)
        if i == OPT["hl"] and OPT["hs"] != "N": VM("kst", HLD)
        I(f"ds_write_b64 v{P8+i}, v[{EAR+2*i}:{EAR+2*i+1}] offset:{L1_EA}")
        if i >= 13 - nw[1]: VM("w", *wl.pop(0))
    hook("sc")
    I(f"s_waitcnt vmcnt({vw('kst')})")
    if OPT["hs"] != "N": I(HCMP, "s_cbranch_vccnz K_H", "K_H_RET:")
    I("s_cmp_lg_u32 s18, 0", "s_waitcnt lgkmcnt(0)", "s_barrier")
    stamp("barD", lvl=2)
    I("s_cbranch_scc1 K_NOTAB", "buffer_store_dwordx4 v[32:35], v42, s[12:15], s60 offen sc1", "s_add_u32 s60, s60, 0x40000", "buffer_store_dwordx4 v[36:39], v42, s[12:15], s60 offen sc1", "K_NOTAB:")
    for i in range(7): I(f"ds_read_b128 v[{CP+4*i}:{CP+4*i+3}], v16 offset:{L1_EA+4096*i}")
    I("s_branch PG1E")
    if OPT["hs"] != "N": repoll("K_H", HLD, HCMP)
    I(".p2align 12", "PG1:", "s_branch K_WARM_RET", "s_nop 0", "PG1E:")
    hook("d")
    I(f"s_add_u32 m0, s38, {L_W2}")
    while len(wl) > 4: VM("w", *wl.pop(0))
    stamp("eaout", lvl=3)
    I("s_cmp_lg_u32 s18, 0", f"s_waitcnt vmcnt({vw('w') + (2 if nw[0]+nw[1] >= 8 else 0)})", "s_cbranch_scc0 K_WW", f"s_waitcnt vmcnt({vw('w')})", "K_WW:", ".p2align 3")
    for i in range(34):
        t = 64 + 2*(i % 4) if i < 32 else 72 + 2*(i-32)
        I(f"v_lshlrev_b32 v{t}, 16, v{WR+i}", f"v_and_b32 v{t+1}, s27, v{WR+i}", f"v_pk_mul_f32 v[{t}:{t+1}], v[{t}:{t+1}], s[24:25]", f"v_cvt_pk_bf16_f32 v{WR+i}, v{t}, v{t+1}")
        if i % 4 == 3: I(f"ds_write_b128 v5, v[{WR+i-3}:{WR+i}] offset:{1024*(i-3)}")
        if i in (17, 21, 25, 29) and wl: VM("w2", *wl.pop(0))
    I(f"ds_write_b32 v9, v{WR+32}", f"ds_write_b32 v7, v{WR+33}")
    for i in (32, 33):
        t = 72 + 2*(i-32)
        I(f"v_lshlrev_b32 v64, 16, v{WR+i}", f"v_and_b32 v65, s27, v{WR+i}", f"v_sub_f32 v64, v{t}, v64", f"v_sub_f32 v65, v{t+1}, v65", f"v_cvt_pk_bf16_f32 v{66+i-32}, v64, v65")
    I("ds_write_b32 v9, v66 offset:1024", "ds_write_b32 v7, v67 offset:256")
    I(*[f"s_mov_b32 s{40+i}, {STG0 + 8192*i}" for i in range(5)])
    I(f"s_mov_b32 s24, {NLN2}", f"s_mov_b32 s25, {NLN2}", f"s_mov_b32 s50, {KEY_OFF}", f"s_mov_b32 s51, {EA_OFF}", f"s_mov_b32 s52, {FL_OFF}")
    for w in range(2): I(f"s_cmp_eq_u32 s18, {w+2}", f"s_cbranch_scc1 PG{w+4}")
    I("K_WARM_RET2:")
    stamp("wdone", lvl=3)
    tr = []
    for f in range(16):
        for jh in range(2): tr.append(f"ds_read_b64_tr_b16 a[{AW2+4*f+2*jh}:{AW2+4*f+2*jh+1}], v62 offset:{(16*(f>>1) + 8*jh)*128 + 32*(f&1)}")
    for f in range(32):
        for jh in range(2): tr.append(f"ds_read_b64_tr_b16 a[{AW1A+4*f+2*jh}:{AW1A+4*f+2*jh+1}], v{56+((f>>2)&3)} offset:{(64*(f>>4) + 8*(f&3) + 4*jh)*256}")
    for b in range(4): tr.append(f"ds_read_b64_tr_b16 a[{AW1C+2*b}:{AW1C+2*b+1}], v60 offset:{64*b}")
    tr += [f"ds_read_b64_tr_b16 a[{AB1}:{AB1+1}], v61", "ds_read_b64_tr_b16 v[14:15], v63"]
    tr2, tr = tr[:32], tr[32:]
    if OPT["est"] == "d": I(f"s_waitcnt vmcnt({vw('est', OPT['tw'])})")
    if OPT["ntr0"] < 0: VM("tab", TABLD)
    hook("w")
    bar("E")
    stamp("barE", lvl=2)
    if OPT["ntr0"] >= 0: I(*tr[:OPT["ntr0"]]); tr = tr[OPT["ntr0"]:]; VM("tab", TABLD)
    I(*tr[:OPT["ntr"]]); tr = tr[OPT["ntr"]:]
    if str(OPT["f3s"]) == "E" and OPT["ntr0"] < 0: I(f"s_waitcnt vmcnt({vw('tab')+1})", "s_cbranch_scc0 K_TW")
    I(f"s_waitcnt vmcnt({vw('tab')})", "K_TW:")
    I(*TABCMP); I("s_cbranch_vccnz K_TAB", "K_TAB_RET:")
    stamp("tab", lvl=2)
    I("v_and_b32 v33, 0xfff, v8", "v_add_lshl_u32 v32, v44, v33, 2", "v_lshrrev_b32 v33, 12, v8", "v_subrev_u32 v33, 16, v33")
    AD, RK = 96, 128
    def compact(dst):
        I("v_cmp_lt_i32 vcc, 0, v33", "s_nop 1", "v_mbcnt_lo_u32_b32 v35, vcc_lo, 0", "v_mbcnt_hi_u32_b32 v35, vcc_hi, v35",
          "v_cmp_gt_u32 s[36:37], 16, v35", "v_lshlrev_b32 v35, 4, v35", "s_nop 0", "s_and_b64 vcc, vcc, s[36:37]",
          "v_cndmask_b32 v35, 4, v35, vcc", f"ds_permute_b32 v{dst}, v35, v34",
          "v_cndmask_b32_e64 v35, 0, 16, vcc", "v_sub_u32 v33, v33, v35", "v_lshl_add_u32 v34, v35, 2, v34")
    def octets(src, its, off, o8):
        I(f"v_lshlrev_b32 v39, 1, v{src}", f"v_lshlrev_b32 v37, 1, v{src}", f"v_lshlrev_b32 v38, 1, v{src}", "s_nop 0",
          "v_mov_b32_dpp v37, v39 row_shr:4 row_mask:0xf bank_mask:0xa", "v_mov_b32_dpp v38, v39 row_shl:4 row_mask:0xf bank_mask:0x5", "s_nop 0")
        for n, i in enumerate(its):
            for h in range(2): I(f"v_add_u32_dpp v{o8+2*n+h}, v{37+h}, v{off} quad_perm:[{i},{i},{i},{i}] row_mask:0xf bank_mask:0xf")
    for i in range(4):
        VM(f"k{i}", f"v_add_u32_dpp v{O4+i}, v32, v30 quad_perm:[{i},{i},{i},{i}] row_mask:0xf bank_mask:0xf",
          f"buffer_load_dwordx4 v[{KEY+4*i}:{KEY+4*i+3}], v{O4+i}, s[12:15], s50 offen sc1")
    I(f"v_add_u32 v34, 0xc0000040, v32")
    compact(36)
    octets(32, range(4), 26, O8)
    VM("k4", "s_waitcnt lgkmcnt(0)", f"v_add_u32_dpp v{O4+4}, v36, v31 quad_perm:[0,0,0,0] row_mask:0xf bank_mask:0xf",
      f"buffer_load_dwordx4 v[{KEY+16}:{KEY+19}], v{O4+4}, s[12:15], s50 offen sc1")
    hook("k")
    octets(36, [0], 27, O8+8)
    I(f"v_bfe_i32 v{O4+4}, v{O4+4}, 30, 1")
    I(f"v_mul_u32_u24 v21, {NS}, v0", f"v_add_u32 v21, {L_NODE}, v21", "v_cmp_gt_u32 s[38:39], s17, v0")
    I("s_sub_u32 s27, 256, s17", "s_sub_u32 s19, s27, 32", "s_mov_b32 s20, 0")
    I(*tr)
    I("v_bfe_u32 v35, v6, 4, 1", "v_lshlrev_b32 v35, 4, v35", f"v_xor_b32 v{FI+1}, v35, v26")
    for j in range(1, 8): I(f"v_xor_b32 v{FI+1+2*j}, {32*(j&3)}, v{FI+1}")
    I("v_and_b32 v35, 3, v6", f"v_mul_u32_u24 v{FR}, 0x420, v35", "v_bfe_u32 v35, v6, 2, 3", f"v_lshl_add_u32 v{FR}, v35, 7, v{FR}", "v_bfe_u32 v35, v6, 3, 1",
      f"v_lshl_add_u32 v{FR}, v35, 4, v{FR}", f"v_xor_b32 v{FR}, v{FR}, v1", "s_lshl_b32 s45, s18, 13", f"s_add_u32 s45, s45, {L_W}", f"v_add_u32 v{FR}, s45, v{FR}")
    for k in range(1, 4): I(f"v_xor_b32 v{FR+k}, {16*k}, v{FR}")
    I("v_and_b32 v20, 31, v6", "s_lshl_b32 s3, s18, 7", "v_lshl_add_u32 v57, v20, 2, s3", "v_and_b32 v59, 0x38, v6", "v_lshl_add_u32 v59, v59, 1, s3",
      "s_sub_u32 s3, 896, s3", "v_lshl_add_u32 v58, v20, 2, s3")
    def phaseB(k, a, r, sreg, m=None):
        if m:
            for j in range(4): I(f"v_or_b32 v{k+j}, v{m}, v{k+j}")
        for j in range(4): I(f"v_mad_u32_u16 v{a+j}, v{k+j}, v28, s22")
        for j in range(4):
            I(f"ds_add_rtn_u32 v{r+j}, v{a+j}, v29",
              f"v_add_u32_sdwa v{k+j}, v{48+j}, s{sreg} dst_sel:WORD_0 dst_unused:UNUSED_PRESERVE src0_sel:DWORD src1_sel:DWORD")
    def phaseC(k, a, r):
        L = []
        for j in range(4): L += [f"v_min_u32 v{r+j}, {CAP-1}, v{r+j}", f"v_lshl_add_u32 v{a+j}, v{r+j}, 2, v{a+j}", f"ds_write_b32 v{a+j}, v{k+j} offset:4"]
        return L
    for i in range(5):
        I(f"s_waitcnt vmcnt({vw(f'k{i}')})")
        if i == 0: stamp("key0", lvl=2)
        hook(f"b{i}")
        phaseB(KEY+4*i, AD+4*i, RK+4*i, 40+i, O4+4 if i == 4 else None)
    I("v_cmp_lt_i32 vcc, 0, v33", "s_cbranch_vccnz K_MORE", "K_MORE_RET:", "s_branch PG2E")
    repoll("K_TAB", TABLD, "\n".join(TABCMP))
    I(".p2align 12", "PG2:", "s_branch K_WARM_RET")
    repoll("K_F3", F3LD, "v_cmp_ne_u32 vcc, s56, v9")
    I("K_EPOCH:", "v_mov_b32 v22, s56", "v_mov_b32 v23, s57", f"s_mov_b32 s3, {EP_OFF}", "s_mov_b64 exec, 1", "buffer_store_dwordx2 v[22:23], v24, s[12:15], s3 offen sc1", "s_mov_b64 exec, -1", "s_branch K_EPOCH_RET")
    I("PG2E:"); bar("1")
    stamp("bar1", lvl=2)
    I("s_mov_b64 exec, s[38:39]", "ds_read_b32 v20, v21", "s_mov_b64 exec, -1")
    I("s_lshl_b32 s3, s2, 2", "s_add_u32 s3, s3, s18", "s_cmp_eq_u32 s3, 3", "s_cbranch_scc1 K_EPOCH", "K_EPOCH_RET:")
    hook("a1")
    I("s_waitcnt lgkmcnt(0)", "s_mov_b64 exec, s[38:39]")
    I(f"v_cmp_lt_u32 vcc, {CAP}, v20", "v_min_u32 v20, 63, v20", "v_sub_u32 v22, 63, v20", "v_lshlrev_b32 v22, 2, v22",
      f"ds_add_rtn_u32 v23, v22, v29 offset:{L_H1}")
    I("s_cbranch_vccz K_A1", f"ds_write_b32 v24, v29 offset:{L_FLAG}", "K_A1:")
    I("s_mov_b64 exec, -1")
    hook("a2"); bar("2")
    I(f"ds_read_b32 v25, v43 offset:{L_H1}")
    I(*phaseC(KEY, AD, RK))
    I("s_waitcnt lgkmcnt(4)", "v_mov_b32 v46, v25")
    scan64(46, phaseC(KEY+4, AD+4, RK+4))
    I("v_sub_u32 v46, v46, v25", "ds_bpermute_b32 v46, v22, v46")
    I("v_lshrrev_b32 v30, 1, v20", "v_cmp_lt_u32 s[36:37], 26, v20")
    hook("a3")
    I("s_waitcnt lgkmcnt(0)")
    I("v_add_u32 v23, v23, v46", "v_cmp_gt_u32 vcc, s19, v23", "v_lshlrev_b32 v33, 1, v23", "v_lshlrev_b32 v34, 2, v23",
      "v_cndmask_b32_e64 v31, 8, 10, vcc", "v_cndmask_b32 v31, v31, v30, s[36:37]")
    I("v_cmp_gt_u32 vcc, s27, v23", "v_cmp_gt_u32 s[36:37], v20, v31", "v_mov_b32 v35, 0xff", "v_sub_u32 v37, 63, v31",
      "s_and_b64 vcc, vcc, s[36:37]", "s_and_b64 vcc, vcc, s[38:39]")
    I("v_cndmask_b32 v32, 0, v31, vcc", "v_sub_u32 v32, v20, v32", "v_sub_u32 v36, 63, v32", "v_lshlrev_b32 v36, 2, v36", "v_lshlrev_b32 v37, 2, v37")
    I("s_mov_b64 exec, s[38:39]", f"ds_add_rtn_u32 v38, v36, v29 offset:{L_H2}")
    I("s_mov_b64 exec, vcc", f"ds_add_rtn_u32 v39, v37, v29 offset:{L_H2}", "v_add_lshl_u32 v47, s16, v0, 7", f"ds_write_b32 v34, v47 offset:{L_SN}")
    I("s_mov_b64 exec, -1", "v_cndmask_b32 v35, v35, v33, vcc")
    I("v_lshl_or_b32 v48, v35, 8, v32", "v_lshl_or_b32 v48, v48, 16, v0")
    I("v_or_b32 v33, 1, v33", "v_lshl_or_b32 v49, v33, 8, v31", "v_lshl_or_b32 v49, v49, 8, v32", "v_lshl_or_b32 v49, v49, 8, v0", "v_lshl_add_u32 v50, v32, 2, v21")
    I("s_mov_b64 s[46:47], vcc"); hook("a4"); bar("3")
    stamp("bar3", lvl=3)
    I(f"ds_read_b32 v25, v43 offset:{L_H2}"); I(*phaseC(KEY+8, AD+8, RK+8)); I("s_waitcnt lgkmcnt(4)", "v_mov_b32 v46, v25")
    scan64(46, phaseC(KEY+12, AD+12, RK+12))
    I("v_sub_u32 v46, v46, v25", "ds_bpermute_b32 v36, v36, v46", "ds_bpermute_b32 v37, v37, v46")
    I(*phaseC(KEY+16, AD+16, RK+16))
    I("s_waitcnt lgkmcnt(4)", "v_add_lshl_u32 v36, v36, v38, 2", "v_add_lshl_u32 v37, v37, v39, 2")
    o0 = L_TBL // 256
    I("s_mov_b64 exec, s[38:39]", f"ds_write2st64_b32 v36, v48, v21 offset0:{o0} offset1:{o0+4}", "s_mov_b64 exec, s[46:47]", f"ds_write2st64_b32 v37, v49, v50 offset0:{o0} offset1:{o0+4}",
      "s_mov_b64 exec, -1")
    hook("a5")
    sr = [f"ds_read_b128 a[{AX+4*k}:{AX+4*k+3}], v{34+(k&3)} offset:{4096*(k>>2)}" for k in range(8)]
    I("s_mov_b32 s21, 0", "s_movk_i32 s53, 0x3f80", "s_movk_i32 s54, 0xff", f"s_movk_i32 s55, {SPL_S}", "s_mov_b32 s49, 0xffff", "s_movk_i32 s59, 128",
      f"s_mov_b32 s57, {f32(2.0**-100)}", "s_movk_i32 s58, 0x207", f"v_add_u32 v6, {L_X}, v1")
    I("s_mov_b32 s28, s4", "s_or_b32 s29, s5, 0x800000", f"s_mov_b32 s30, {N_NODES}")
    bar("4", "x")
    stamp("bar4", lvl=2)
    o0 = L_TBL // 256
    I(f"ds_read_b128 v[20:23], v59 offset:{L_TB2}", f"ds_read2st64_b32 v[26:27], v57 offset0:{o0} offset1:{o0+4}",
      f"ds_read_b32 v7, v58 offset:{L_TBL}", f"ds_read_b32 v8, v58 offset:{L_TB2}", f"ds_read_b32 v24, v24 offset:{L_FLAG}")
    for b in range(4): I(*onehot(EE+2*b, b))
    for k in range(4): I(f"v_mov_b32 v{34+k}, v{FR+k}")
    I("s_waitcnt lgkmcnt(4)")
    for j in range(8): I(f"ds_read_u16 v{FI+2*j}, v{20+(j&3)} offset:{6 + 4*(j>>2)}")
    xx, xr = xrd((28, 29, 30, 31))
    I("s_waitcnt lgkmcnt(8)"); I(*xrow(28, 26, 29, 6)); I(*xx); I(*xr)
    I("s_waitcnt lgkmcnt(8)")
    fl = ["v_mov_b32 v5, v26", "v_mov_b32 v2, v27", "v_bfe_u32 v3, v26, 16, 8", "s_nop 0", "s_waitcnt lgkmcnt(4)", "v_cmp_ne_u32 vcc, 0, v24", "v_readfirstlane_b32 s20, v3", "s_nop 0"]
    for j in range(8):
        if j == 4: hook("s0")
        VM(f"s{j>>2}", f"s_add_u32 m0, s45, {1024*j}", fl[j], f"buffer_load_dwordx4 v[{FI+2*j}:{FI+2*j+1}], s[28:31], 0 idxen offen lds")
    assert not ea and not xd
    I(*recs(40, 2)); I(*recs(10, 8)); I(*xrow(9, 7, 29, 6))
    if OPT["stamp"]: I("s_mov_b32 s62, s20")
    I(*LSET)
    I("s_lshl_b32 s45, s18, 5", "s_add_u32 s45, s45, 128", f"s_mul_i32 s46, s18, {OST_W}", f"s_add_u32 s46, s46, {L_OST}", "s_movk_i32 s47, 576", f"s_mov_b32 s48, {L_SN}")
    I("s_waitcnt lgkmcnt(0)", "s_cbranch_vccnz K_SLOW0", eaddr(44, 40), eaddr(45, 41), eaddr(46, 42), eaddr(4, 43), xaddr(42), ".p2align 3")
    stamp("q1")
    q = sum([qchain(QQ+16*b, b, EE+2*b) for b in range(4)], [])
    I(*weave(q, [], [0]*20, {**{k: tr2[3*k:3*k+3] for k in range(11)}, 14: ["s_waitcnt vmcnt(4)", "s_barrier"], 15: sr[0:2], 16: sr[2:4], 17: [earead(0, 44), earead(1, 45)], 18: [earead(2, 46)]}))
    c = chain(NN, 0, 0, QQ)
    seg = ["s_waitcnt lgkmcnt(0)", "s_nop 0", c[0], xload(2, 0), c[1], xload(2, 1), c[2], xload(2, 2), c[3], xload(2, 3), c[4], xaddr(43), "s_nop 8", "s_nop 0"]
    for b in range(3): seg += weave(chain(NN+16*(b+1), b+1, 0, QQ+16*(b+1)), E0(b), (3,3,3,3,4), {0: ["s_waitcnt vmcnt(4)"], 1: sr[4:6], 2: sr[6:8], 3: [xload(0, 0)]} if b == 2 else None) + A0(b)
    seg += ["s_waitcnt lgkmcnt(0)", "s_barrier"] + weave(chain(T0, 0, 1, QQ), E0(3), (3,3,3,3,4), {3: [xload(0, 1)]}) + A0(3)
    I(*align8(seg))
    stamp("loop1")
    I("s_branch K_A0")
    I(".p2align 12", "PG3:", "s_branch K_WARM_RET", "s_nop 0", "K_LOOP:")
    def partA(t):
        cur = (1+t) % 3; prv = t % 3
        seg = []
        for b in range(3):
            tc = T0 + 16*(b % 2); tn = T0 + 16*((b+1) % 2)
            if b == 0: extra = {0: [f"ds_read_b32 v6, v2 offset:{4*(t+5)}"], 3: [xload(prv, 2)], 4: ["v_cmpx_lt_u32 vcc, s19, v3"]}
            elif b == 1: extra = {1: ["s_cmp_lt_i32 s19, s37"], 2: ["s_waitcnt lgkmcnt(0)"], 3: [xload(prv, 3)], 4: [xaddr(6)]}
            else: extra = {0: ["s_cselect_b32 s6, s26, 0"], 1: ["s_cmp_ge_u32 s19, s20"], 2: ["s_waitcnt vmcnt(4)"], 3: [earead(prv, 4)],
                           4: ["s_cbranch_scc1 K_EXIT" if t < 2 else "s_cbranch_scc0 K_LOOP"]}
            ms = chain(tn, b+1, cur, QQ+16*(b+1))
            if b < 2: seg += weave(ms, exps(tc), (3,3,3,3,4), extra) + pk3(b, tc)
            else: seg += weave(ms, exps(tc)[:12], (3,3,3,3,0), extra)
        return seg
    def partB(t):
        cur = (1+t) % 3; nxt = (2+t) % 3
        seg = [xload(cur, 0)] + exps(T0)[12:] + pk3(2, T0)
        seg += weave(chain(T0, 0, nxt, QQ), exps(T1), (3,3,3,3,4), {0: ["s_add_u32 s19, s19, 1"], 3: [xload(cur, 1)], 4: [eaddr(4, 6)] + (["v_add_u32 v2, 12, v2"] if t == 2 else [])}) + pk3(3, T1)
        return seg
    I(*align8(partB(2)))
    I("K_A0:")
    I(*align8(partA(0) + partB(0) + partA(1) + partB(1) + partA(2))[:-1])
    I("K_EXIT:", "s_cmp_lg_u32 s21, 0", "s_cbranch_scc1 K_LAST", "s_branch K_MID")
    I(".p2align 12", "PG4:", "s_branch K_WARM_RET2", "s_nop 0", "K_MID:")
    stamp("exit1")
    OH = QQ+48
    def mix(c, g): return c[:4] + g + c[4:]
    def ms(n):
        nonlocal seg
        if OPT.get("ms"): I(*align8(seg)); seg = []; stamp(n)
    xx, xr = xrd((9, 4, 6, 2))
    seg = exps(T0)[12:] + pk3(2, T0) + ["s_mov_b64 s[60:61], exec", "s_mov_b64 exec, -1"] + exps(T1) + xx + ["s_mov_b32 s6, s26", xaddr(10), "s_waitcnt vmcnt(0)", "s_mov_b32 s21, 1"]
    seg += xr + [xload(0, k) for k in range(4)] + ["s_mov_b64 exec, s[60:61]", LSET[3]] + pk3(3, T1) + ["s_mov_b64 exec, -1", "s_waitcnt lgkmcnt(0)"]
    ms("m1")
    seg += spread(mix(qchain(QQ, 0, OH3), binit(LB)), [xaddr(11), "v_bfe_u32 v3, v7, 16, 8"] + lbinit(LB) + ["v_readfirstlane_b32 s20, v3"] + onehot(OH3, 0) + R(0) + M(0),
                  pre={1: [xload(1, 0), xload(1, 1)], 2: [xload(1, 2)], 3: [xload(1, 3)]}) + U(0)
    ms("m2")
    seg += spread(mix(qchain(QQ+16, 1, OH3+2), G(0)), V(0) + onehot(OH3+2, 1) + [eaddr(4, 10), eaddr(6, 11), eaddr(0, 12), "v_mov_b32 v2, v8"] + R(1) + M(1),
                  pre={2: ([f"s_mov_b32 s63, s20"] if OPT["stamp"] else []) + [LSET[0]], 3: [LSET[1]], 5: [LSET[2]], 4: [earead(0, 4), earead(1, 6), earead(2, 0)]}) + U(1)
    ms("m3")
    seg += spread(mix(qchain(QQ+32, 2, OH3), G(1)), V(1) + onehot(OH3, 2) + OCON[:8] + R(2) + M(2), pre={6: ["s_waitcnt vmcnt(4) lgkmcnt(0)"]}) + U(2)
    ms("m4")
    seg += spread(mix(chain(NN, 0, 0, QQ), G(2)), V(2) + OCON[8:] + dec2(LB) + R(3) + M(3)) + U(3)
    seg += spread(mix(chain(NN+16, 1, 0, QQ+16), G(3)), V(3) + onehot(OH3+2, 3) + [xaddr(12), eaddr(4, 13), "v_mov_b32 v5, v7"] + E0(0) + A1(0)[:OPT["a1"]]) + A0(0)[OPT["a1"]//2:] + SCL
    seg += check("K_RARE_A")
    ms("m6")
    q = qchain(QQ+48, 3, OH3+2); c = chain(NN+32, 2, 0, QQ+32)
    seg += spread(q[:4] + c[:1] + q[4:] + c[1:], OCV + E0(1), pre={0: [OIW], 2: [OSW[0]], 4: [OSW[1], xload(2, 0)], 6: [OSW[2], xload(2, 1)], 7: [OSW[3], xload(2, 2)], 8: [xload(2, 3)] + OSR}) + A0(1)
    ms("m7")
    e = E0(2); c = chain(NN+48, 3, 0, QQ+48)
    seg += [c[0], "s_waitcnt vmcnt(4) lgkmcnt(0)"] + OOR + [xaddr(13)] + e[:1] + [c[1], OST[0], OST[1], c[2], OST[2], OST[3], c[3], xload(0, 0)] + e[1:4] + [c[4]] + e[4:] + A0(2)
    seg += weave(chain(T0, 0, 1, QQ), E0(3), (3,3,3,3,4), {3: [xload(0, 1)]}) + A0(3)
    I(*align8(seg))
    stamp("loop2")
    I("s_branch K_A0")
    I(".p2align 12", "PG5:", "s_branch K_WARM_RET2", "s_nop 0", "K_LAST:")
    stamp("exit2")
    CCON = ["v_mbcnt_lo_u32_b32 v2, -1, 0", "v_mbcnt_hi_u32_b32 v2, -1, v2", "v_lshrrev_b32 v2, 3, v2", "v_lshl_add_u32 v2, s18, 3, v2",
            "v_mul_u32_u24 v4, s55, v2", "v_lshl_add_u32 v4, v4, 1, v11", "v_lshl_add_u32 v2, v2, 2, s48", "v_mov_b32 v12, 0"]
    seg = exps(T0)[12:] + pk3(2, T0) + exps(T1) + pk3(3, T1) + ["s_mov_b64 exec, -1"] + lbinit(LB)
    seg += R(0)[:2] + weave(binit(LB), R(0)[2:], (4, 10)) + U(0) + V(0)
    for b in range(3): seg += weave(G(b), R(b+1), (3,3,3,7)) + U(b+1) + V(b+1)
    seg += spread(G(3), M(0) + M(1) + M(2) + M(3) + CCON + dec2(LB), tail=48) + SCL + check("K_RARE_B") + OCV + [OIW] + OSW + OSR
    I(*align8(seg))
    stamp("tail")
    I("s_mov_b32 s3, 0xffff0000", "s_waitcnt lgkmcnt(6)", "s_barrier")
    I(f"ds_read_b32 v12, v12 offset:{L_FLAG}", f"ds_read2_b32 v[2:3], v2 offset1:32")
    for h in range(2):
        for r in range(2): I(f"ds_read_b128 v[{NN+8*h+4*r}:{NN+8*h+4*r+3}], v4 offset:{L_SPL + 64*SPL_S*h + SPL_S*r}")
    I("s_waitcnt lgkmcnt(6)", *OOR); I(*OST)
    I("s_waitcnt lgkmcnt(2)", "v_cmp_ne_u32 vcc, 0, v12", "v_or_b32 v2, v2, v11", "v_or_b32 v3, v3, v11")
    for h in range(2):
        if h: I("s_waitcnt lgkmcnt(0)", "s_nop 0")
        n = NN + 8*h; u = DD + 16*h
        for i in range(8): I(f"v_lshlrev_b32 v{u+2*i}, 16, v{n+i}", f"v_and_b32 v{u+2*i+1}, s3, v{n+i}")
        for i in range(4): I(f"v_pk_add_f32 v[{u+2*i}:{u+2*i+1}], v[{u+2*i}:{u+2*i+1}], v[{u+8+2*i}:{u+8+2*i+1}]")
        for i in range(4): I(f"v_cvt_pk_bf16_f32 v{n+i}, v{u+2*i}, v{u+2*i+1}")
        I(f"buffer_store_dwordx4 v[{n}:{n+3}], v{2+h}, s[8:11], 0 offen{OSTF}")
    I("s_cbranch_vccnz K_SLOW")
    if OPT["diag"]:
        if OPT.get("amp0"): I("s_sub_u32 s94, s94, s96", "s_mul_i32 s94, s94, 10", "s_add_u32 s100, s100, s94")
        I("s_mov_b32 s52, 0", "K_SPIN:", "s_memrealtime s[54:55]", "s_waitcnt lgkmcnt(0)", "s_add_u32 s52, s52, 1", "s_cmp_gt_u32 s52, 20000", "s_cbranch_scc1 K_END",
          "s_sub_u32 s54, s54, s100", "s_cmp_lt_i32 s54, 4000", "s_cbranch_scc1 K_SPIN")
    if OPT["stamp"]:
        I("s_waitcnt vmcnt(0)"); stamp("end")
        I("s_lshl_b32 s3, s2, 2", "s_add_u32 s3, s3, s18", "s_lshl_b32 s3, s3, 7", f"s_add_u32 s3, s3, {STAMP_OFF}", "v_mov_b32 v0, 0")
        for i in range(len(stamps)): I(f"v_mov_b32 v1, s{SLOTS[i]}", f"buffer_store_dword v1, v0, s[12:15], s3 offen offset:{4*i}")
        I("s_lshl_b32 s62, s62, 8", "s_or_b32 s62, s62, s63", "v_mov_b32 v1, s62", "buffer_store_dword v1, v0, s[12:15], s3 offen offset:124")
    I("K_END:", "K_END0:", "s_endpgm")
    I("K_MEA:", "s_mov_b32 s3, 0", *eadma(190, "s3", 0)); I(*eadma(191, "s3", 1024)); I("s_branch K_MEA_RET")
    for tag in ("K_RARE_A", "K_RARE_B"):
        I(f"{tag}:")
        I("s_or_b64 vcc, vcc, s[38:39]", "s_cmp_eq_u64 vcc, -1", f"s_cbranch_scc1 {tag}2")
        I(f"v_mov_b32 v{OA+1}, 0", f"v_mov_b32 v{RM}, 1", f"ds_write_b32 v{OA+1}, v{RM} offset:{L_FLAG}")
        I(f"{tag}2:", "s_mov_b64 exec, s[38:39]")
        for i in range(32): I(f"v_mov_b32 v{T0+i}, 0")
        I("s_mov_b64 exec, -1", f"s_branch {tag}_RET")
    K2, A2, R2, O2 = 176, 180, 184, 188
    I("K_MORE:", "s_sub_u32 s40, 0, s23", "s_nop 0")
    I("s_mov_b64 exec, 1", f"ds_add_rtn_u32 v{O2}, v24, v29 offset:{L_FLAG+4}", "s_waitcnt lgkmcnt(0)", f"v_cmp_ne_u32 vcc, 0, v{O2}", "s_mov_b64 exec, -1", "s_cbranch_vccnz K_MORE_F")
    compact(36)
    I("s_mov_b32 s3, 0", "s_waitcnt lgkmcnt(0)",
      f"v_add_u32_dpp v{O2}, v36, v31 quad_perm:[0,0,0,0] row_mask:0xf bank_mask:0xf",
      f"buffer_load_dwordx4 v[{K2}:{K2+3}], v{O2}, s[12:15], s50 offen sc1", f"v_bfe_i32 v{O2}, v{O2}, 30, 1")
    octets(36, [0], 27, O2+2)
    I("s_mov_b32 s20, 1", "s_waitcnt vmcnt(0)")
    phaseB(K2, A2, R2, 40, O2)
    I("s_waitcnt lgkmcnt(0)")
    I(*phaseC(K2, A2, R2))
    I("v_cmp_lt_i32 vcc, 0, v33", "s_cbranch_vccz K_MORE_RET")
    I("K_MORE_F:", f"ds_write_b32 v24, v29 offset:{L_FLAG}", "s_branch K_MORE_RET")
    I("K_SLOW0:", *tr2)
    I("K_SLOW:")
    I("s_mov_b64 exec, -1", "s_waitcnt vmcnt(0) lgkmcnt(0)", "s_barrier")
    I("v_mbcnt_lo_u32_b32 v6, -1, 0", "v_mbcnt_hi_u32_b32 v6, -1, v6", "s_lshl_b32 s3, s18, 6", "v_add_u32 v7, s3, v6")
    I(*TABA); I(f"v_lshlrev_b32 v3, {lt}, v7", TABLD)
    I("v_lshrrev_b32 v1, 5, v6", "v_lshlrev_b32 v1, 6, v1", "v_and_b32 v6, 31, v6", "v_lshlrev_b32 v2, 4, v7")
    for i in range(4): I(f"v_mov_b32 v{16+i}, 0")
    for i in range(13): I(f"ds_write_b128 v2, v[16:19] offset:{4096*i}")
    for b in range(4): I(*onehot(EE+2*b, b))
    I("s_mov_b32 s6, s26", "s_mov_b32 s19, 0", "s_waitcnt vmcnt(0) lgkmcnt(0)", "s_barrier")
    I("K_S_SEG:")
    I("v_readlane_b32 s36, v8, s19", "s_lshl_b32 s3, s18, 6", "s_add_u32 s3, s3, s19", f"s_mul_i32 s3, s3, {CHS}", "s_nop 0",
      "s_bfe_u32 s20, s36, 0xc000c", "s_and_b32 s36, s36, 0xfff", "s_add_u32 s36, s36, s3")
    I("K_S_TILE:")
    I("s_cmp_le_i32 s20, 0", "s_cbranch_scc1 K_S_NEXT")
    I("v_add_lshl_u32 v2, s36, v6, 2", "v_lshlrev_b32 v3, 1, v2", "v_cmp_gt_i32 s[38:39], s20, v6")
    I("buffer_load_dword v9, v2, s[12:15], s50 offen sc1", f"buffer_load_dwordx2 a[{AEA}:{AEA+1}], v3, s[12:15], s51 offen sc1", "s_waitcnt vmcnt(0)")
    I(xaddr(9)); I(*[xload(0, k) for k in range(4)])
    I("v_and_b32 v9, 0xffff, v9", "v_lshl_add_u32 v0, v9, 7, v1", "v_subrev_u32 v9, s16, v9"); I(*[xload(2, k) for k in range(4)])
    I("v_mul_u32_u24 v9, 260, v9", "v_lshl_add_u32 v9, v1, 1, v9", "s_waitcnt vmcnt(0)")
    for b in range(4): I(*qchain(NN+16*b, b, EE+2*b)); I(*chain(NN+16*b, b, 0, NN+16*b))
    I(*binit(EE)); I("s_nop 15")
    for b in range(4): I(*E0(b))
    for b in range(4): I(*A0(b))
    for b in range(4): I(*R(b))
    for b in range(4): I(*(U(b) + V(b)))
    I("s_nop 1")
    for b in range(4): I(*G(b))
    I("s_nop 15"); I(*SCL)
    I("s_mov_b64 exec, s[38:39]")
    for i in range(32): I(f"ds_add_f32 v9, v{T0+i} offset:{4*i}")
    I("s_mov_b64 exec, -1", "s_waitcnt lgkmcnt(0)", "s_sub_u32 s20, s20, 32", "s_add_u32 s36, s36, 32", "s_branch K_S_TILE")
    I("K_S_NEXT:", "s_add_u32 s19, s19, 1", "s_cmp_lt_u32 s19, 64", "s_cbranch_scc1 K_S_SEG")
    I("s_barrier", "v_and_b32 v3, 7, v7", "v_lshlrev_b32 v1, 4, v3", "v_lshrrev_b32 v7, 3, v7", "s_mov_b32 s19, 0")
    I("K_S_OUT:")
    I("v_mul_u32_u24 v2, 260, v7", "v_cmp_gt_u32 vcc, s17, v7", "v_lshl_add_u32 v2, v3, 5, v2", "v_add_lshl_u32 v0, s16, v7, 7", "v_cndmask_b32 v0, 2.0, v0, vcc", "v_or_b32 v0, v0, v1")
    for i in range(8): I(f"ds_read_b32 v{16+i}, v2 offset:{4*i}")
    I("s_waitcnt lgkmcnt(0)")
    for i in range(4): I(f"v_cvt_pk_bf16_f32 v{24+i}, v{16+2*i}, v{17+2*i}")
    I("buffer_store_dwordx4 v[24:27], v0, s[8:11], 0 offen", "v_add_u32 v7, 32, v7", "s_waitcnt vmcnt(0)")
    I("s_add_u32 s19, s19, 1", "s_cmp_lt_u32 s19, 7", "s_cbranch_scc1 K_S_OUT", "s_endpgm")

def desc(name, vgpr, accum, sgpr):
    I(".p2align 6", f".amdhsa_kernel {name}")
    for l in (f"next_free_vgpr {vgpr}", f"next_free_sgpr {sgpr}", f"accum_offset {accum}", "group_segment_fixed_size 0", "kernarg_size 88",
              "user_sgpr_count 2", "user_sgpr_kernarg_segment_ptr 1", "system_sgpr_workgroup_id_x 1", "float_denorm_mode_32 3"):
        out.append("  .amdhsa_" + l)
    I(".end_amdhsa_kernel")

hdr = [l.rstrip("\n") for l in open(f"cdna_kernels/{NAME}.s.ref") if l.startswith(";") and "@launch" not in l][:12]
hdr += [f"; @launch grid=(256,1,1) block=(256,1,1) lds={L_SIZE}"]
I('.amdgcn_target "amdgcn-amd-amdhsa--gfx950"', ".text")
kernel()
I('.section .rodata,"a"')
desc(NAME + "_kernel", 512, 256, 102)
if OPT["stamp"]: hdr.append("; stamps: " + " ".join(stamps))
open(sys.argv[1], "w").write("\n".join(hdr + out) + "\n")
```

```python
import sys, struct, math
NAME = "standalone__edge_featured_mpnn_mpnn__graph"
OPT = dict(stamp=0, diag=0, tp=64, ntr=32, ntr0=-1, xpos=0, sl=3, cw=1, ost='sc1', w2q=1, up=4, wpos=2, tw=2, f1pos=0, xa=0, xb=0, ww=1, rm=1, est='d', f3s='E', f3l='b0', xs='b11.b22.b32.b42', es='a12.a22.a32.a42.a52', hs='A', hl=0, fs=6, rr=0, f1e=1, slp=4, tl=0, tm=63, wso=0, a1=12, pb=0)
for a in sys.argv[2:]:
    k, v = a.split("="); OPT[k] = int(v) if v.lstrip("-").isdigit() else v

N_NODES = 50000; E = 800000
CH = 3125; CHS = 3200
TP = OPT['tp']; FL_OFF = 0x80000; HN_OFF = 0x88000; EP_OFF = 0x8a000
TAB_OFF = 0; WP_OFF = 0x48000; KEY_OFF = 0x90000; EA_OFF = 0x3b0000; STAMP_OFF = 0x1000000
WS_SIZE = 0x10000000 - (OPT['wso'] << 20)
SPIN = 400000
def f32(x): return "0x%08x" % struct.unpack("<I", struct.pack("<f", x))[0]
NLOG2E = f32(-math.log2(math.e)); NLN2 = f32(-math.log(2.0))

out = []
def I(*ls):
    for l in ls:
        for x in l.split("\n"):
            x = x.strip()
            if x: out.append(x if x.endswith(":") or x.startswith(".") else "    " + x)
vm = []
def VM(tag, *ls):
    for l in ls:
        if l.startswith(("buffer_", "global_")): vm.append(tag)
        I(l)
def vw(tag, k=0):
    idx = [i for i, t in enumerate(vm) if t == tag]
    return len(vm) - 1 - idx[-1-k]
def srd(d, lo, hi, size, stride=0):
    I(f"s_mov_b32 s{d}, s{lo}")
    if stride: I(f"s_or_b32 s{d+1}, s{hi}, {hex(stride << 16)}")
    else: I(f"s_mov_b32 s{d+1}, s{hi}")
    I(f"s_mov_b32 s{d+2}, {size}", f"s_mov_b32 s{d+3}, 0x20000")
def scan64(v, fill=None):
    fill = list(fill or [])
    def gap():
        n = 0
        while fill and n < 2: I(fill.pop(0)); n += 1
        if n < 2: I(f"s_nop {1-n}")
    for op in ("row_shr:1", "row_shr:2", "row_shr:4", "row_shr:8"):
        gap(); I(f"v_add_u32_dpp v{v}, v{v}, v{v} {op} row_mask:0xf bank_mask:0xf bound_ctrl:0")
    gap(); I(f"v_add_u32_dpp v{v}, v{v}, v{v} row_bcast:15 row_mask:0xa bank_mask:0xf")
    gap(); I(f"v_add_u32_dpp v{v}, v{v}, v{v} row_bcast:31 row_mask:0xc bank_mask:0xf")
    I(*fill)
SLOTS = list(range(86, 98)) + list(range(64, 84))
stamps = []
def stamp(name, twice=False, lvl=1):
    if OPT.get("amp0") == name: I("s_memrealtime s[96:97]", "s_waitcnt lgkmcnt(0)", "s_nop 0")
    if OPT.get("amp1") == name: I("s_memrealtime s[94:95]", "s_waitcnt lgkmcnt(0)", "s_nop 0")
    if OPT["diag"] == name: I("s_memrealtime s[100:101]", "s_waitcnt lgkmcnt(0)", "s_nop 0")
    if not OPT["stamp"] or lvl > OPT["sl"]: return
    if twice:
        stamps.append(name + "1")
        I(f"s_mov_b32 s{SLOTS[len(stamps)-1]}, s{SLOTS[len(stamps)]}", "s_nop 0")
        name += "2"
    stamps.append(name)
    I(f"{'s_memtime' if OPT['stamp']==1 else 's_memrealtime'} s[98:99]", "s_waitcnt lgkmcnt(0)", f"s_mov_b32 s{SLOTS[len(stamps)-1]}, s98")

CAP = 48; NS = 4 + 4*CAP
STG0 = 2048
L1_KEY = 0; L1_EA = CHS*4; L1_CNT = 38912; L1_BASE = L1_CNT + 1024
L_H1 = STG0 + 5*8192; L_H2 = L_H1 + 256; L_SN = L_H2 + 256; L_FLAG = L_SN + 256; L_TBL = L_H1 + 1024
L_TB2 = L_TBL + 1024; L_SPL = L_TB2 + 1024; SPL_S = 144
L_W = L_SPL; L_S = L_W + 32768; L_W2 = L_S + 4096
L_OST = L_SPL + 128*SPL_S; OST_W = 32*SPL_S
L_X = L_W2 + 16384
L_NODE = L_X + 200*128
L_SIZE = L_NODE + 196*NS
assert L_SIZE <= 163840 and L_SPL + 123*SPL_S <= L_OST and L_OST + 4*OST_W <= L_W2
OSTF = "" if OPT["ost"] == "plain" else " " + OPT["ost"]
T0, T1, EE, NN, DD, QQ = 16, 32, 48, 64, 128, 192
AX, AW1A, AW1B, AW1C, AW2, AEA, AB1 = 0, 48, 112, 176, 184, 248, 254
BIG = 0x1000000

import re
V4 = ("v_exp_f32", "v_rcp_f32", "v_add_f32", "v_mul_f32", "v_add_u32", "v_mov_b32", "v_and_b32", "v_lshrrev_b32", "v_lshlrev_b32", "v_cvt_f32_ubyte2",
      "v_mul_u32_u24", "v_cndmask_b32", "v_readfirstlane_b32", "v_or_b32", "v_sub_u32", "v_xor_b32")
def has_lit(s):
    for t in re.split(r"[,\s]+", s.strip())[1:]:
        if re.fullmatch(r"0x[0-9a-fA-F]+|-?\d+", t):
            v = int(t, 0)
            if not -16 <= v <= 64: return True
    return False
def isz(s):
    s = s.strip(); op = s.split()[0]
    if s.endswith(":") or s.startswith("."): return 0
    if op.startswith(("s_waitcnt", "s_nop", "s_cbranch", "s_branch", "s_movk", "s_barrier")): return 4
    if op.startswith("s_memtime") or op.startswith("s_memrealtime"): return 8
    if op.startswith("s_"): return 8 if has_lit(s) else 4
    if op.startswith("v_cmp") and not op.endswith("_e64"): return (8 if has_lit(s) else 4) if s.split()[1] == "vcc," else 8
    if op == "v_cndmask_b32" and not s.endswith("vcc"): return 8
    if op in V4: return 8 if has_lit(s) else 4
    return 8
def align8(seg):
    off = 0; last4 = None
    seg = list(seg); i = 0
    while i <= len(seg):
        s = seg[i] if i < len(seg) else "v_pk_x"
        z = isz(s)
        if z == 8 and off % 8:
            if last4 is not None:
                op = seg[last4].split()[0]
                seg[last4] = seg[last4].replace(op, op + "_e64", 1); off += 4
            elif i == len(seg) or sum(1 for x in seg[i:i+5] if isz(x) == 8) == 5:
                if i < len(seg): print("pad before", s, file=sys.stderr)
                seg.insert(i, "s_nop 0"); off += 4; i += 1
        if z == 8: last4 = None
        if z == 4 and s.split()[0] in V4 and s.split()[0] != "v_readfirstlane_b32" and off % 8 == 0: last4 = i
        off += z; i += 1
    return seg
def xload(buf, kk): return f"buffer_load_dwordx4 a[{AX+16*buf+4*kk}:{AX+16*buf+4*kk+3}], v0, s[4:7], 0 offen offset:{16*kk}"
def xaddr(rec): return f"v_mad_u32_u16 v0, v{rec}, s59, v1 op_sel:[1,0,0,0]"
def eaddr(d, rec): return f"v_and_b32 v{d}, s49, v{rec}"
def earead(buf, r): return f"ds_read_b64 a[{AEA+2*buf}:{AEA+2*buf+1}], v{r}"
def chain(dst, blk, buf, c):
    L = []
    for kk in range(4):
        w = AW1A + 16*blk + 4*kk; x = AX + 16*buf + 4*kk; ci = c if kk == 0 else dst
        L.append(f"v_mfma_f32_32x32x16_bf16 v[{dst}:{dst+15}], a[{w}:{w+3}], a[{x}:{x+3}], v[{ci}:{ci+15}]")
    return L + [f"v_mfma_f32_32x32x8_bf16 v[{dst}:{dst+15}], a[{AW1C+2*blk}:{AW1C+2*blk+1}], a[{AEA+2*buf}:{AEA+2*buf+1}], v[{dst}:{dst+15}]"]
def qchain(dst, blk, oh, order=(0, 1, 2, 3)):
    L = []
    for kk in order:
        w = AW1B + 16*blk + 4*kk; x = AX + 32 + 4*kk
        L.append(f"v_mfma_f32_32x32x16_bf16 v[{dst}:{dst+15}], a[{w}:{w+3}], a[{x}:{x+3}], " + ("0" if kk == order[0] else f"v[{dst}:{dst+15}]"))
    return L + [f"v_mfma_f32_32x32x8_bf16 v[{dst}:{dst+15}], a[{AB1}:{AB1+1}], v[{oh}:{oh+1}], v[{dst}:{dst+15}]"]
def onehot(r, blk):
    c = "1.0" if blk & 1 else "s53"
    return [f"v_mov_b32 v{r+(blk>>1)}, {c}", f"v_mov_b32 v{r+1-(blk>>1)}, 0"]
def gemm2(blk, hb):
    L = []
    for p in range(2):
        for ob in range(2):
            w = AW2 + 4*((blk*2+p)*2+ob); o = T0 + 16*ob
            L.append(f"v_mfma_f32_32x32x16_bf16 v[{o}:{o+15}], a[{w}:{w+3}], v[{hb+4*p}:{hb+4*p+3}], v[{o}:{o+15}]")
    return L
def weave(ms, fill, cnts, extra=None):
    L = []; fill = list(fill)
    for k, m in enumerate(ms):
        L.append(m)
        if extra: L += extra.get(k, [])
        L += fill[:cnts[k]]; fill = fill[cnts[k]:]
    assert not fill
    return L
def repoll(tag, load, cmp):
    I(f"{tag}:", f"s_mov_b32 s3, {SPIN}", f"{tag}_L:", "s_mov_b64 exec, vcc", f"s_sleep {OPT['slp']}", load, "s_sub_u32 s3, s3, 1", "s_cbranch_scc1 K_END",
      "s_waitcnt vmcnt(0)", cmp, f"s_cbranch_vccnz {tag}_L", "s_mov_b64 exec, -1", f"s_branch {tag}_RET")

def cost(x):
    op = x.split()[0]
    if op.startswith(("v_exp", "v_rcp")): return 8
    if op.startswith("ds_write"): return {"b32": 8, "b64": 12, "b128": 20}[op.split("_")[-1]]
    if op.startswith("buffer_store"): return 12
    return 4
def spread(ms, fill, pre=None, tail=None):
    pre = pre or {}
    L = []; fill = list(fill); n = len(ms)
    if tail is None: tail = 36
    for k, m in enumerate(ms):
        L.append(m); P = pre.get(k, []); L += P
        if k == n-1: break
        room = 32 - (8 if "x16" in m else 4) - sum(cost(x) for x in P)
        if P and P[0].startswith("s_") and "x16" in m: room += 4
        if P and not P[0].startswith(("s_", "v_")) and "x16" not in m: room -= 4
        while fill and room > 0 and sum(map(cost, fill)) - cost(fill[0]) >= tail - sum(cost(x) for x in pre.get(n-1, [])):
            room -= cost(fill[0]); L.append(fill.pop(0))
    return L + fill
def pk3(b, tc):
    n = NN+16*b; d = DD+16*b
    return [f"v_pk_fma_f32 v[{n+2*i}:{n+2*i+1}], v[{n+2*i}:{n+2*i+1}], v[{EE+2*i}:{EE+2*i+1}], v[{n+2*i}:{n+2*i+1}]" for i in range(8)] + \
           [f"v_pk_fma_f32 v[{n+2*i}:{n+2*i+1}], v[{tc+2*i}:{tc+2*i+1}], v[{d+2*i}:{d+2*i+1}], v[{n+2*i}:{n+2*i+1}]" for i in range(8)] + \
           [f"v_pk_fma_f32 v[{d+2*i}:{d+2*i+1}], v[{d+2*i}:{d+2*i+1}], v[{EE+2*i}:{EE+2*i+1}], v[{d+2*i}:{d+2*i+1}]" for i in range(8)]
def exps(tc): return [f"v_exp_f32 v{EE+i}, v{tc+i}" for i in range(16)]
def E0(b): return [f"v_exp_f32 v{DD+16*b+i}, v{NN+16*b+i}" for i in range(16)]
def A0(b): return [f"v_pk_add_f32 v[{DD+16*b+2*i}:{DD+16*b+2*i+1}], v[{DD+16*b+2*i}:{DD+16*b+2*i+1}], 1.0 op_sel_hi:[1,0]" for i in range(8)]
def A1(b): return [f"v_add_f32 v{DD+16*b+i}, 1.0, v{DD+16*b+i}" for i in range(16)]
LB, RM, OA, OH3 = EE, EE+4, EE+5, EE+8
def R(b): return [f"v_rcp_f32 v{DD+16*b+i}, v{DD+16*b+i}" for i in range(16)]
def M(b): return [f"v_min3_f32 v{RM}, v{DD+16*b+2*i}, v{DD+16*b+2*i+1}, " + ("1.0" if b == 0 and i == 0 else f"v{RM}") for i in range(8)]
def U(b): return [f"v_pk_mul_f32 v[{NN+16*b+2*i}:{NN+16*b+2*i+1}], v[{NN+16*b+2*i}:{NN+16*b+2*i+1}], v[{DD+16*b+2*i}:{DD+16*b+2*i+1}]" for i in range(8)]
def V(b): return [f"v_cvt_pk_bf16_f32 v{NN+16*b+i}, v{NN+16*b+2*i}, v{NN+16*b+2*i+1}" for i in range(8)]
def G(b): return gemm2(b, NN+16*b)
def lbinit(r): return [f"v_cvt_f32_ubyte2 v{r+2}, v5", f"v_mov_b32 v{r+1}, 0", f"v_mov_b32 v{r+3}, 0", f"v_lshrrev_b32 v{r}, 16, v{r+2}"]
def binit(r): return [f"v_mfma_f32_32x32x8_bf16 v[{T0+16*ob}:{T0+16*ob+15}], v[14:15], v[{r+2*ob}:{r+2*ob+1}], 0" for ob in range(2)]
def dec2(lb):
    return [f"v_lshrrev_b32 v{OA}, 24, v5", f"v_and_b32 v{OA+2}, s54, v5", f"v_cmp_eq_u32 vcc, s54, v{OA}", f"v_mad_u32_u24 v{OA}, v{OA}, s55, v1",
            f"v_add_lshl_u32 v{OA+2}, s16, v{OA+2}, 7", f"v_cndmask_b32 v{OA}, v{OA}, v8, vcc", f"v_cndmask_b32 v{OA+2}, 2.0, v{OA+2}, vcc",
            f"v_cmp_eq_u32 s[38:39], 0, v{lb+2}"]
SCL = [f"v_pk_mul_f32 v[{T0+2*i}:{T0+2*i+1}], v[{T0+2*i}:{T0+2*i+1}], s[24:25]" for i in range(16)]
def check(tag):
    return [f"v_cmp_class_f32 s[40:41], v{T0}, s58", f"v_cmp_lt_f32 vcc, s57, v{RM}", "s_nop 0", "s_andn2_b64 vcc, vcc, s[40:41]", "s_andn2_b64 s[40:41], vcc, s[38:39]",
            "s_cmp_eq_u64 s[40:41], -1", f"s_cbranch_scc0 {tag}", f"{tag}_RET:"]
OCV = [f"v_cvt_pk_bf16_f32 v{T0+i}, v{T0+2*i}, v{T0+2*i+1}" for i in range(16)]
OCON = ["v_mbcnt_lo_u32_b32 v11, -1, 0", "v_mbcnt_hi_u32_b32 v11, -1, v11", "v_and_or_b32 v8, v11, 31, s45", "v_lshrrev_b32 v9, 3, v11", "v_mad_u32_u24 v8, v8, s55, v1",
        "v_mul_u32_u24 v9, s47, v9", "v_and_b32 v11, 7, v11", "v_add_u32 v9, s46, v9", "v_lshlrev_b32 v11, 4, v11", "v_add_u32 v10, v9, v11"]
OIW = f"ds_write_b32 v8, v{OA+2} offset:{L_SPL+64}"
OSW = [f"ds_write_b128 v{OA}, v[{T0+4*k}:{T0+4*k+3}] offset:{L_SPL+16*k}" for k in range(4)]
OSR = [f"ds_read2_b32 v[{EE+2*k}:{EE+2*k+1}], v9 offset0:{32+72*k} offset1:{68+72*k}" for k in range(2)] + \
      [f"ds_read_b128 v[{T1+4*j}:{T1+4*j+3}], v10 offset:{144*j}" for j in range(4)]
OOR = [f"v_or_b32 v{EE+j}, v{EE+j}, v11" for j in range(4)]
OST = [f"buffer_store_dwordx4 v[{T1+4*j}:{T1+4*j+3}], v{EE+j}, s[8:11], 0 offen{OSTF}" for j in range(4)]
def xrow(d, e, t, base): return [f"v_and_b32 v{d}, s54, v{e}", f"v_and_b32 v{t}, 7, v{e}", f"v_lshl_add_u32 v{d}, v{d}, 7, v{base}", f"v_lshlrev_b32 v{t}, 4, v{t}", f"v_xor_b32 v{d}, v{d}, v{t}"]
def xrd(r): return [f"v_xor_b32 v{r[k]}, {16*k}, v{r[0]}" for k in range(1, 4)], [f"ds_read_b128 a[{AX+32+4*k}:{AX+35+4*k}], v{r[k]}" for k in range(4)]
def recs(d, p): return [f"ds_read2_b32 v[{d}:{d+1}], v{p} offset0:1 offset1:2", f"ds_read2_b32 v[{d+2}:{d+3}], v{p} offset0:3 offset1:4"]
LSET = ["s_max_u32 s20, s20, 2", "s_sub_u32 s37, s20, 3", "s_sub_u32 s20, s20, 1", "s_mov_b32 s19, 1"]

FI, FR = 192, 208
def kernel():
    K = NAME + "_kernel"
    lt = TP.bit_length() - 1
    assert L_W % 256 == 0 and L_X % 128 == 0
    I(".p2align 12", f".globl {K}", ".p2align 8", f".type {K},@function", f"{K}:")
    I("s_cmp_ge_u32 s2, 256", "s_cbranch_scc1 K_END0")
    stamp("start")
    I("s_load_dwordx16 s[64:79], s[0:1], 0", "s_load_dwordx4 s[80:83], s[0:1], 64", "s_load_dwordx2 s[12:13], s[0:1], 80")
    DST, SRC, EAR, AD, RK, P8, CP, WR = 64, 80, 96, 128, 144, 160, 176, 208
    if OPT["cw"]:
        I("s_getpc_b64 s[62:63]", "K_PC:", "s_bfe_u32 s3, s2, 0x30003", "v_and_b32 v2, 0xf8, v0", "v_add_lshl_u32 v41, v2, s3, 7",
          "v_min_u32 v2, K_SLOW0-K_PC, v41", "global_load_dword v10, v2, s[62:63]")
    I("v_lshrrev_b32 v2, 6, v0", "v_and_b32 v6, 63, v0", "v_lshlrev_b32 v17, 2, v0", "v_readfirstlane_b32 s18, v2")
    I("v_mov_b32 v24, 0", f"ds_write_b32 v17, v24 offset:{L1_CNT}", "v_lshlrev_b32 v16, 4, v0", "v_lshlrev_b32 v4, 4, v6")
    I("s_and_b32 s84, s2, 7", "s_lshl_b32 s84, s84, 5", "s_lshr_b32 s3, s2, 3", "s_add_u32 s84, s84, s3")
    CID = "s84" if OPT["rm"] else "s2"; RID = "s84" if OPT["rr"] else "s2"
    I(f"s_mul_i32 s60, {CID}, {CH*4}", "s_mov_b32 s15, 0x20000", f"s_mov_b32 s14, {WS_SIZE}", f"s_mov_b32 s30, {E*4}", "s_mov_b32 s34, s30")
    for r in (31, 35, 43, 47, 51, 55, 7, 11): I(f"s_mov_b32 s{r}, s15")
    I(f"s_mov_b32 s42, {132*256}", f"s_movk_i32 s46, {128*128}", f"s_mov_b32 s54, {E*8}", f"s_mov_b32 s26, {N_NODES*128}", "s_mov_b32 s6, s26", "s_mov_b32 s10, s26")
    I("s_add_u32 s19, s60, 4096", "s_add_u32 s20, s60, 8192", f"s_add_u32 s21, s60, {(3072-192)*4}")
    I("v_mov_b32 v20, -1")
    I("s_mul_i32 s16, s84, 12800051", "s_add_u32 s16, s16, 0xffff", "s_add_u32 s17, s16, 12800051", "s_lshr_b32 s16, s16, 16", "s_lshr_b32 s17, s17, 16",
      f"s_min_u32 s17, s17, {N_NODES}", "s_sub_u32 s17, s17, s16", "s_mov_b32 s85, 85899")
    I("v_mov_b32 v29, 1", "v_lshlrev_b32 v18, 5, v0", "v_lshlrev_b32 v19, 3, v0", "v_lshlrev_b32 v43, 2, v6")
    I("v_subrev_u32 v45, 192, v0", f"v_cmp_gt_u32 vcc, {CH-3072}, v45", f"v_mov_b32 v45, {hex(BIG)}", "s_mov_b32 s39, 0x05040100", "v_cndmask_b32 v45, v45, v24, vcc")
    I(f"v_lshrrev_b32 v42, {lt-4}, v6", f"v_lshlrev_b32 v42, {lt+8}, v42", f"v_and_b32 v37, {TP-1}, v4", "v_add_u32 v42, v42, v37")
    I("v_lshrrev_b32 v1, 5, v6", "v_bfe_u32 v52, v6, 2, 2", "v_and_b32 v53, 3, v6", "v_bfe_u32 v54, v6, 4, 1",
      "v_lshlrev_b32 v55, 3, v53", "v_lshl_add_u32 v55, v54, 5, v55",
      "v_lshl_add_u32 v56, v52, 8, v55", "v_lshl_add_u32 v60, v1, 10, v56", f"v_add_u32 v60, {L_S}, v60",
      "v_lshl_add_u32 v56, v1, 13, v56", "v_lshl_add_u32 v56, v52, 6, v56", f"v_add_u32 v56, {L_W}, v56",
      "v_xor_b32 v57, 64, v56", "v_xor_b32 v58, 0x80, v56", "v_xor_b32 v59, 0xc0, v56",
      "v_lshl_add_u32 v61, v52, 6, v55", "v_lshl_add_u32 v61, v1, 8, v61", f"v_add_u32 v61, {L_S + 2048}, v61",
      "v_and_b32 v55, 1, v53", "v_lshlrev_b32 v55, 6, v55", "v_lshl_add_u32 v55, v54, 4, v55", "v_lshrrev_b32 v53, 1, v53", "v_lshl_add_u32 v55, v53, 3, v55",
      "v_lshl_add_u32 v62, v52, 7, v55", "v_lshl_add_u32 v62, v1, 9, v62", f"v_add_u32 v62, {L_W2}, v62",
      "v_and_b32 v52, 1, v52", "v_lshl_add_u32 v63, v52, 5, v55", "v_lshl_add_u32 v63, v1, 8, v63", f"v_add_u32 v63, {L_S + 2560}, v63",
      "v_lshlrev_b32 v1, 6, v1")
    I("s_waitcnt lgkmcnt(0)")
    if OPT.get("probe"):
        base = {"x": 64, "ea": 66, "src": 68, "dst": 70, "out": 80, "ws": 12, "none": 64}[OPT["probe"]]
        I(f"s_mov_b64 s[28:29], s[{base}:{base+1}]", "s_memrealtime s[96:97]", "s_waitcnt lgkmcnt(0)")
        if OPT["probe"] != "none":
            for i, r in enumerate(("s60", "s19", "s20")): I(f"buffer_load_dwordx4 v[{DST+4*i}:{DST+4*i+3}], v16, s[28:31], {r} offen")
        I("s_waitcnt vmcnt(0)", "s_memrealtime s[94:95]", "s_waitcnt lgkmcnt(0)", "s_sub_u32 s94, s94, s96", "s_mul_i32 s94, s94, 10", "s_add_u32 s100, s100, s94", "s_cmp_lg_u32 s61, 1")
    I("s_mov_b64 s[28:29], s[70:71]")
    if OPT["wso"]: I(f"s_add_u32 s12, s12, {OPT['wso'] << 20}", "s_addc_u32 s13, s13, 0", "s_cmp_lg_u32 s61, 1")
    so = ("s60", "s19", "s20")
    def dstld():
        for i in range(3): I(f"buffer_load_dwordx4 v[{DST+4*i}:{DST+4*i+3}], v16, s[28:31], {so[i]} offen")
        I(f"buffer_load_dword v{DST+12}, v17, s[28:31], s21 offen", "s_mov_b64 s[32:33], s[68:69]")
    I(f"s_load_dwordx2 s[56:57], s[12:13], {EP_OFF}")
    dstld()
    stamp("issued", lvl=2)
    def tlbwarm():
        I(f"v_and_b32 v40, {OPT['tm']}, v6", "s_cmp_eq_u32 s18, 1", "s_cbranch_scc1 T_1", "s_cmp_eq_u32 s18, 2", "s_cbranch_scc1 T_2", "s_cmp_eq_u32 s18, 3", "s_cbranch_scc1 T_3")
        I("v_mul_u32_u24 v40, 100000, v40", "global_load_dword v10, v40, s[64:65]", "global_load_dword v10, v24, s[72:73]", "s_branch T_E")
        I("T_1:", f"v_mul_u32_u24 v40, {4*CHS*8}, v40", f"v_add_u32 v40, {EA_OFF + 3*CHS*8 + CHS*8 - 128}, v40", "global_load_dword v10, v40, s[12:13]", "global_load_dword v10, v24, s[82:83]", "s_branch T_E")
        I("T_2:", f"v_mul_u32_u24 v40, {4*CHS*4}, v40", f"v_add_u32 v40, {KEY_OFF + CHS*4 - 128}, v40", "global_load_dword v10, v40, s[12:13]", "global_load_dword v10, v24, s[76:77]", "s_branch T_E")
        I("T_3:", "v_and_b32 v40, 1, v6", "v_mul_u32_u24 v40, 194, v40", "v_add_lshl_u32 v40, s16, v40, 7", "global_load_dword v10, v24, s[74:75]", "global_load_dword v10, v24, s[78:79]", "global_load_dword v10, v40, s[80:81]", "T_E:")
        vm.extend(["tl", "tl"])
    vm.append("dst")
    def wwarm():
        I("s_mov_b64 s[40:41], s[72:73]", "s_mov_b64 s[44:45], s[76:77]")
        I("s_cmp_eq_u32 s18, 0", "s_cselect_b64 s[48:49], s[74:75], s[78:79]", "s_cselect_b32 s50, 2, 1", "s_lshl_b32 s50, s50, 7", "s_mov_b32 s3, 0x8000")
        if OPT["ww"]: VM("ww", "buffer_load_dword v10, v41, s[40:43], 0 offen", "buffer_load_dword v10, v41, s[44:47], 0 offen")
        VM("ws", f"buffer_load_dword v{WR+32}, v17, s[40:43], s3 offen", f"buffer_load_dword v{WR+33}, v43, s[48:51], 0 offen")
    if OPT["ww"] == 1: wwarm()
    if OPT["tl"] == 3: tlbwarm()
    for i in range(3): VM("src", f"buffer_load_dwordx4 v[{SRC+4*i}:{SRC+4*i+3}], v16, s[32:35], {so[i]} offen")
    VM("src", f"buffer_load_dword v{SRC+12}, v17, s[32:35], s21 offen", "s_barrier")
    if OPT["tl"] == 1: tlbwarm()
    if OPT["ww"] != 1: wwarm()
    I("s_mov_b64 s[52:53], s[66:67]")
    for r in ("s60", "s19", "s20", "s21"): I(f"s_lshl_b32 {r}, {r}, 1")
    el = []
    for i in range(3): el += [f"buffer_load_dwordx4 v[{EAR+8*i}:{EAR+8*i+3}], v18, s[52:55], {so[i]} offen", f"buffer_load_dwordx4 v[{EAR+8*i+4}:{EAR+8*i+7}], v18, s[52:55], {so[i]} offen offset:16"]
    el.append(f"buffer_load_dwordx2 v[{EAR+24}:{EAR+25}], v19, s[52:55], s21 offen")
    up = OPT["up"]
    I("v_mov_b32 v25, 0", "v_mov_b32 v26, 0", "v_mov_b32 v27, 0", f"v_add_u32 v5, {L_NODE}, v16")
    for i in range(10): VM("ea", f"ds_write_b128 v5, v[24:27] offset:{4096*i}", *(el[i-10+up:i-9+up] if i >= 10-up else []))
    if OPT["tl"] == 2: tlbwarm()
    I("v_mov_b32 v28, 0x7a0000ff",
      "v_cmp_eq_u32 vcc, 2, v2", f"ds_write_b32 v17, v28 offset:{L_TBL}", f"v_mov_b32 v28, {hex(BIG)}", "v_cndmask_b32 v3, v24, v28, vcc",
      f"ds_write_b32 v17, v3 offset:{L_H1}", f"ds_write_b32 v17, v28 offset:{L_TB2}")
    I("v_and_b32 v3, 0x7c, v43", f"ds_write_b32 v3, v20 offset:{L1_KEY + CH*4}")
    I(
      "s_mov_b64 s[4:5], s[64:65]", "s_mov_b64 s[8:9], s[80:81]")
    I(f"s_mul_i32 s3, {CID}, {CHS*4}", f"s_add_u32 s3, s3, {KEY_OFF}", "s_add_u32 s28, s12, s3", "s_addc_u32 s29, s13, 0", f"s_movk_i32 s30, {(CH+19)*4}")
    I(f"s_mul_i32 s3, {CID}, {CHS*8}", f"s_add_u32 s3, s3, {EA_OFF}", "s_add_u32 s32, s12, s3", "s_addc_u32 s33, s13, 0", f"s_movk_i32 s34, {(CH+1)*8}")
    I("s_lshl_b32 s38, s18, 12", f"s_add_u32 m0, s38, {L_W2}", f"s_and_b32 s37, {CID}, 3", "s_lshl2_add_u32 s37, s37, s18")
    I(f"s_waitcnt vmcnt({vw('dst')})")
    stamp("dst", lvl=2)
    for i in range(13):
        I(f"v_mul_u32_u24 v{AD+i}, s85, v{DST+i}", f"v_lshlrev_b32_sdwa v{AD+i}, 2, v{AD+i} dst_sel:DWORD dst_unused:UNUSED_PAD src0_sel:DWORD src1_sel:BYTE_3")
        if i == 12: I(f"v_or_b32 v{AD+i}, v45, v{AD+i}")
        I(f"ds_add_rtn_u32 v{RK+i}, v{AD+i}, v29 offset:{L1_CNT}")
        if i >= 6 + up: VM("ea", el[i-6])
    I("s_waitcnt lgkmcnt(0)", "s_add_u32 s56, s56, 0x9e3779b9", "s_cmp_eq_u32 s18, 0", "s_barrier")
    stamp("barA", lvl=3)
    HINT = ["s_cmp_lg_u32 s37, 3", "s_cbranch_scc1 K_NOH", "v_mov_b32 v22, s56", f"s_lshl_b32 s3, {CID}, 5", f"s_add_u32 s3, s3, {HN_OFF}",
            "s_mov_b64 exec, 1", "buffer_store_dword v22, v24, s[12:15], s3 offen sc1", "s_mov_b64 exec, -1", "K_NOH:"]
    perm = [f"v_perm_b32 v{DST+i}, v{SRC+i}, v{DST+i}, s39" for i in range(13)]
    I("s_cbranch_scc1 K_SCAN")
    I("s_cmp_eq_u32 s18, 1", "s_cbranch_scc1 PG1", "s_cmp_eq_u32 s18, 2", "s_cbranch_scc1 PG2", *(HINT if OPT["hs"] == "A" else []), "s_branch PG3")
    I("K_SCAN:", f"ds_read_b128 v[32:35], v4 offset:{L1_CNT}", "s_waitcnt lgkmcnt(0)")
    I("v_add_u32 v38, v32, v33", "v_add_u32 v39, v38, v34", "v_add_u32 v41, v39, v35", "v_mov_b32 v36, v41")
    scan64(36)
    I("v_sub_u32 v36, v36, v41", "v_add_u32 v37, v36, v32", "v_add_u32 v38, v36, v38", "v_add_u32 v39, v36, v39")
    I(f"ds_write_b128 v4, v[36:39] offset:{L1_BASE}")
    for i in range(4): I(f"v_lshl_or_b32 v{32+i}, v{32+i}, 12, v{36+i}")
    I("s_waitcnt lgkmcnt(0)", "K_WARM_RET:", "K_NOSCAN:", "s_barrier")
    stamp("barB", lvl=3)
    wl = [[f"s_movk_i32 s3, {4096*i}", f"buffer_load_dwordx4 v[{WR+4*i}:{WR+4*i+3}], v16, s[40:43], s3 offen"] for i in range(8)]
    wl += [[f"buffer_load_dwordx4 v4, s[44:47], s38 offen offset:{1024*i} lds"] for i in range(4)]
    nw = {0: (8, 0, 4), 1: (4, 4, 4), 2: (0, 8, 4), 3: (0, 12, 0), 4: (4, 8, 0)}[OPT["wpos"]]
    for i in range(13): I(f"ds_read_b32 v{AD+i}, v{AD+i} offset:{L1_BASE}")
    if OPT["hs"] == "A": I("s_cmp_lg_u32 s37, 3", f"s_waitcnt vmcnt({vw('src')+1})", "s_cbranch_scc0 K_SW")
    I(f"s_waitcnt vmcnt({vw('src')})", "K_SW:", *perm)
    if OPT["hs"] == "B": I(*HINT)
    for i in range(13):
        if i in (0, 6): I(f"s_waitcnt lgkmcnt({7 if i == 0 else 6})")
        I(f"v_add_lshl_u32 v{AD+i}, v{AD+i}, v{RK+i}, 2")
        if i == 12: I(f"v_or_b32 v{AD+i}, v45, v{AD+i}")
        I(f"ds_write_b32 v{AD+i}, v{DST+i} offset:{L1_KEY}")
        if i >= 13 - nw[0]: VM("w", *wl.pop(0))
    I("s_waitcnt lgkmcnt(0)", "s_barrier")
    stamp("barC", lvl=2)
    if OPT["hs"] == "C": I(*HINT)
    for i in range(4): I(f"ds_read_b128 v[{CP+4*i}:{CP+4*i+3}], v16 offset:{L1_KEY+4096*i}")
    for i in range(13): I(f"v_lshlrev_b32 v{P8+i}, 1, v{AD+i}")
    for i in range(4): VM("kst", f"s_movk_i32 s3, {4096*i}", f"s_waitcnt lgkmcnt({3-i})", f"buffer_store_dwordx4 v[{CP+4*i}:{CP+4*i+3}], v16, s[28:31], s3 offen sc1")
    TABLD = "buffer_load_dwordx2 v[8:9], v3, s[12:15], s36 offen sc1"
    TABCMP = ["v_xor_b32 v8, s58, v8", "v_cmp_ne_u32 vcc, s56, v9", "v_cmp_lt_u32 s[20:21], s59, v8", "s_nop 0", "s_or_b64 vcc, vcc, s[20:21]"]
    TABA = [f"s_lshr_b32 s36, s84, {lt-2}", f"s_lshl_b32 s36, s36, {lt+8}", f"s_and_b32 s3, s84, {TP//4-4}", "s_lshl2_add_u32 s36, s3, s36",
            "s_and_b32 s3, s84, 1", "s_lshl3_add_u32 s36, s3, s36", "s_and_b32 s3, s84, 2", "s_lshl_b32 s3, s3, 17", "s_add_u32 s36, s36, s3"]
    I(*TABA); I(f"v_lshlrev_b32 v3, {lt}, v0")
    I("s_add_u32 s57, s57, 0x6b43a9b5", "s_and_b32 s58, s57, 0xff000000", "s_mov_b32 s59, 0xffffff")
    I("v_or_b32 v38, s58, v35", "v_or_b32 v36, s58, v34", "v_or_b32 v34, s58, v33", "v_or_b32 v32, s58, v32", "v_mov_b32 v33, s56", "v_mov_b32 v35, s56", "v_mov_b32 v37, s56", "v_mov_b32 v39, s56")
    I(f"s_lshl_b32 s60, {CID}, {lt}", f"s_lshl_b32 s61, {CID}, {OPT['fs']}", f"v_lshlrev_b32 v41, {OPT['fs']}, v0", f"s_add_u32 s61, s61, {FL_OFF}")
    I(f"s_mov_b32 s24, {NLOG2E}", f"s_mov_b32 s25, {NLOG2E}", "s_mov_b32 s27, 0xffff0000", "v_and_b32 v5, 0x300, v16", "v_lshrrev_b32 v5, 2, v5", "v_xor_b32 v5, v5, v16", f"v_add_u32 v5, {L_W}, v5")
    I(f"v_lshl_add_u32 v7, v2, 8, v17", f"v_add_u32 v7, {L_S + 2048}, v7", f"v_add_u32 v9, {L_S}, v17")
    I("s_lshl_b32 s23, s18, 11", "v_and_b32 v48, 0x380, v4", "v_bfe_u32 v49, v6, 2, 1", "v_lshl_add_u32 v48, v49, 10, v48", "v_and_b32 v30, 48, v4",
      "v_lshl_add_u32 v48, v30, 1, v48", "v_add_u32 v48, s23, v48", "v_add_u32 v49, 8, v48", "v_add_u32 v50, 16, v48", "v_add_u32 v51, 24, v48",
      f"s_mul_i32 s22, s16, {NS}", f"s_sub_u32 s22, {L_NODE}, s22", f"v_mov_b32 v28, {NS}",
      "v_add_u32 v31, 2.0, v30", f"v_mul_u32_u24 v44, {CHS}, v0", "v_and_b32 v26, 0x70, v4", "v_add_u32 v27, 0x80000000, v26",
      "v_lshrrev_b32 v46, 3, v0", "v_lshlrev_b32 v47, 4, v46", "v_xor_b32 v47, v47, v4", "v_and_b32 v47, 0x70, v47", "v_add_u32 v46, s16, v46", "v_lshl_add_u32 v55, v46, 7, v47",
      "s_lshl_b32 s62, s18, 10", f"s_add_u32 s62, s62, {L_X}", "s_cmp_eq_u32 s18, 0", "s_mov_b32 s63, 0x3f000", f"s_cselect_b32 s63, {L_X + 6*4096}, s63")
    HLD = "buffer_load_dword v20, v23, s[12:15], s37 offen sc1"
    HCMP = "v_cmp_ne_u32 vcc, s19, v20"
    if OPT["hs"] != "N": I("v_lshlrev_b32 v23, 7, v6", "s_cmp_eq_u32 s18, 2", f"s_cselect_b32 s37, {HN_OFF}, 2.0", "s_cselect_b32 s19, s56, 0")
    stamp("kout", lvl=3)
    xd = [[f"s_add_u32 m0, s62, {4096*i}" if i < 6 else "s_mov_b32 m0, s63", "v_add_u32 v55, 0x1000, v55" if i else "s_nop 0",
           "buffer_load_dwordx4 v55, s[4:7], 0 offen lds"] for i in range(7)]
    KEY, O4, O8 = 64, 170, 160
    F3LD = "buffer_load_dword v9, v41, s[12:15], s52 offen sc1"
    def eadma(o, base, imm): return [f"s_add_u32 m0, {base}, {imm}", "s_nop 0", f"buffer_load_dwordx4 v{o}, s[12:15], s51 offen sc1 lds"]
    ea = [eadma(O8+n, "s23", STG0 + 8192*(n>>1) + 1024*(n&1)) for n in range(10)]
    def plan(p): return {x[:-1]: int(x[-1], 16) for x in p.split(".")}
    xs, es = plan(OPT["xs"]), plan(OPT["es"])
    assert sum(xs.values()) == 7 and sum(es.values()) == 10
    def hook(h):
        if OPT["est"] == h:
            for i in range(7): VM("est", f"s_movk_i32 s3, {4096*i}", *([f"s_waitcnt lgkmcnt({6-i})"] if h == "d" else []), f"buffer_store_dwordx4 v[{CP+4*i}:{CP+4*i+3}], v16, s[32:35], s3 offen sc1")
        if OPT["f3l"] == h: VM("f3", F3LD)
        for k in range(xs.get(h, 0)): VM("x", *xd.pop(0))
        if es.get(h) and len(ea) == 10:
            I(f"s_waitcnt vmcnt({vw('f3')})", "v_cmp_ne_u32 vcc, s56, v9", "s_cbranch_vccnz K_F3", "K_F3_RET:", "s_cmp_lg_u32 s20, 0", "s_cbranch_scc1 K_MEA", "K_MEA_RET:")
            stamp("f3", lvl=3)
        for k in range(es.get(h, 0)): VM("eb", *ea.pop(0))
    def bar(n, extra=None):
        w = [vw(t) for t in ([extra] if extra else []) + (["est"] if str(OPT["f3s"]) == n else [])]
        if str(OPT["f3s"]) == n: I("s_cmp_lg_u32 s18, 1")
        I("s_waitcnt " + (f"vmcnt({min(w)}) " if w else "") + "lgkmcnt(0)", "s_barrier")
        if str(OPT["f3s"]) == n: I("s_cbranch_scc1 K_NOF3", "v_mov_b32 v53, s56", "s_mov_b64 exec, 1", "buffer_store_dword v53, v24, s[12:15], s61 offen sc1", "s_mov_b64 exec, -1", "K_NOF3:")
    for i in range(13):
        if i in (0, 4, 8): I(f"s_waitcnt vmcnt({vw('ea', {0: 5, 4: 3, 8: 0}[i])})")
        if i == 8: stamp("ea_in", lvl=3)
        if i == OPT["hl"] and OPT["hs"] != "N": VM("kst", HLD)
        I(f"ds_write_b64 v{P8+i}, v[{EAR+2*i}:{EAR+2*i+1}] offset:{L1_EA}")
        if i >= 13 - nw[1]: VM("w", *wl.pop(0))
    hook("sc")
    I(f"s_waitcnt vmcnt({vw('kst')})")
    if OPT["hs"] != "N": I(HCMP, "s_cbranch_vccnz K_H", "K_H_RET:")
    I("s_cmp_lg_u32 s18, 0", "s_waitcnt lgkmcnt(0)", "s_barrier")
    stamp("barD", lvl=2)
    I("s_cbranch_scc1 K_NOTAB", "buffer_store_dwordx4 v[32:35], v42, s[12:15], s60 offen sc1", "s_add_u32 s60, s60, 0x40000", "buffer_store_dwordx4 v[36:39], v42, s[12:15], s60 offen sc1", "K_NOTAB:")
    for i in range(7): I(f"ds_read_b128 v[{CP+4*i}:{CP+4*i+3}], v16 offset:{L1_EA+4096*i}")
    I("s_branch PG1E")
    if OPT["hs"] != "N": repoll("K_H", HLD, HCMP)
    I(".p2align 12", "PG1:", "s_branch K_WARM_RET", "s_nop 0", "PG1E:")
    hook("d")
    I(f"s_add_u32 m0, s38, {L_W2}")
    while len(wl) > 4: VM("w", *wl.pop(0))
    stamp("eaout", lvl=3)
    I("s_cmp_lg_u32 s18, 0", f"s_waitcnt vmcnt({vw('w') + (2 if nw[0]+nw[1] >= 8 else 0)})", "s_cbranch_scc0 K_WW", f"s_waitcnt vmcnt({vw('w')})", "K_WW:", ".p2align 3")
    for i in range(34):
        t = 64 + 2*(i % 4) if i < 32 else 72 + 2*(i-32)
        I(f"v_lshlrev_b32 v{t}, 16, v{WR+i}", f"v_and_b32 v{t+1}, s27, v{WR+i}", f"v_pk_mul_f32 v[{t}:{t+1}], v[{t}:{t+1}], s[24:25]", f"v_cvt_pk_bf16_f32 v{WR+i}, v{t}, v{t+1}")
        if i % 4 == 3: I(f"ds_write_b128 v5, v[{WR+i-3}:{WR+i}] offset:{1024*(i-3)}")
        if i in (17, 21, 25, 29) and wl: VM("w2", *wl.pop(0))
    I(f"ds_write_b32 v9, v{WR+32}", f"ds_write_b32 v7, v{WR+33}")
    for i in (32, 33):
        t = 72 + 2*(i-32)
        I(f"v_lshlrev_b32 v64, 16, v{WR+i}", f"v_and_b32 v65, s27, v{WR+i}", f"v_sub_f32 v64, v{t}, v64", f"v_sub_f32 v65, v{t+1}, v65", f"v_cvt_pk_bf16_f32 v{66+i-32}, v64, v65")
    I("ds_write_b32 v9, v66 offset:1024", "ds_write_b32 v7, v67 offset:256")
    I(*[f"s_mov_b32 s{40+i}, {STG0 + 8192*i}" for i in range(5)])
    I(f"s_mov_b32 s24, {NLN2}", f"s_mov_b32 s25, {NLN2}", f"s_mov_b32 s50, {KEY_OFF}", f"s_mov_b32 s51, {EA_OFF}", f"s_mov_b32 s52, {FL_OFF}")
    for w in range(2): I(f"s_cmp_eq_u32 s18, {w+2}", f"s_cbranch_scc1 PG{w+4}")
    I("K_WARM_RET2:")
    stamp("wdone", lvl=3)
    tr = []
    for f in range(16):
        for jh in range(2): tr.append(f"ds_read_b64_tr_b16 a[{AW2+4*f+2*jh}:{AW2+4*f+2*jh+1}], v62 offset:{(16*(f>>1) + 8*jh)*128 + 32*(f&1)}")
    for f in range(32):
        for jh in range(2): tr.append(f"ds_read_b64_tr_b16 a[{AW1A+4*f+2*jh}:{AW1A+4*f+2*jh+1}], v{56+((f>>2)&3)} offset:{(64*(f>>4) + 8*(f&3) + 4*jh)*256}")
    for b in range(4): tr.append(f"ds_read_b64_tr_b16 a[{AW1C+2*b}:{AW1C+2*b+1}], v60 offset:{64*b}")
    tr += [f"ds_read_b64_tr_b16 a[{AB1}:{AB1+1}], v61", "ds_read_b64_tr_b16 v[14:15], v63"]
    tr2, tr = tr[:32], tr[32:]
    if OPT["est"] == "d": I(f"s_waitcnt vmcnt({vw('est', OPT['tw'])})")
    if OPT["ntr0"] < 0: VM("tab", TABLD)
    hook("w")
    bar("E")
    stamp("barE", lvl=2)
    if OPT["ntr0"] >= 0: I(*tr[:OPT["ntr0"]]); tr = tr[OPT["ntr0"]:]; VM("tab", TABLD)
    I(*tr[:OPT["ntr"]]); tr = tr[OPT["ntr"]:]
    if str(OPT["f3s"]) == "E" and OPT["ntr0"] < 0: I(f"s_waitcnt vmcnt({vw('tab')+1})", "s_cbranch_scc0 K_TW")
    I(f"s_waitcnt vmcnt({vw('tab')})", "K_TW:")
    I(*TABCMP); I("s_cbranch_vccnz K_TAB", "K_TAB_RET:")
    stamp("tab", lvl=2)
    I("v_and_b32 v33, 0xfff, v8", "v_add_lshl_u32 v32, v44, v33, 2", "v_lshrrev_b32 v33, 12, v8", "v_subrev_u32 v33, 16, v33")
    AD, RK = 96, 128
    def compact(dst):
        I("v_cmp_lt_i32 vcc, 0, v33", "s_nop 1", "v_mbcnt_lo_u32_b32 v35, vcc_lo, 0", "v_mbcnt_hi_u32_b32 v35, vcc_hi, v35",
          "v_cmp_gt_u32 s[36:37], 16, v35", "v_lshlrev_b32 v35, 4, v35", "s_nop 0", "s_and_b64 vcc, vcc, s[36:37]",
          "v_cndmask_b32 v35, 4, v35, vcc", f"ds_permute_b32 v{dst}, v35, v34",
          "v_cndmask_b32_e64 v35, 0, 16, vcc", "v_sub_u32 v33, v33, v35", "v_lshl_add_u32 v34, v35, 2, v34")
    def octets(src, its, off, o8):
        I(f"v_lshlrev_b32 v39, 1, v{src}", f"v_lshlrev_b32 v37, 1, v{src}", f"v_lshlrev_b32 v38, 1, v{src}", "s_nop 0",
          "v_mov_b32_dpp v37, v39 row_shr:4 row_mask:0xf bank_mask:0xa", "v_mov_b32_dpp v38, v39 row_shl:4 row_mask:0xf bank_mask:0x5", "s_nop 0")
        for n, i in enumerate(its):
            for h in range(2): I(f"v_add_u32_dpp v{o8+2*n+h}, v{37+h}, v{off} quad_perm:[{i},{i},{i},{i}] row_mask:0xf bank_mask:0xf")
    for i in range(4):
        VM(f"k{i}", f"v_add_u32_dpp v{O4+i}, v32, v30 quad_perm:[{i},{i},{i},{i}] row_mask:0xf bank_mask:0xf",
          f"buffer_load_dwordx4 v[{KEY+4*i}:{KEY+4*i+3}], v{O4+i}, s[12:15], s50 offen sc1")
    I(f"v_add_u32 v34, 0xc0000040, v32")
    compact(36)
    octets(32, range(4), 26, O8)
    VM("k4", "s_waitcnt lgkmcnt(0)", f"v_add_u32_dpp v{O4+4}, v36, v31 quad_perm:[0,0,0,0] row_mask:0xf bank_mask:0xf",
      f"buffer_load_dwordx4 v[{KEY+16}:{KEY+19}], v{O4+4}, s[12:15], s50 offen sc1")
    hook("k")
    octets(36, [0], 27, O8+8)
    I(f"v_bfe_i32 v{O4+4}, v{O4+4}, 30, 1")
    I(f"v_mul_u32_u24 v21, {NS}, v0", f"v_add_u32 v21, {L_NODE}, v21", "v_cmp_gt_u32 s[38:39], s17, v0")
    I("s_sub_u32 s27, 256, s17", "s_sub_u32 s19, s27, 32", "s_mov_b32 s20, 0")
    I(*tr)
    I("v_bfe_u32 v35, v6, 4, 1", "v_lshlrev_b32 v35, 4, v35", f"v_xor_b32 v{FI+1}, v35, v26")
    for j in range(1, 8): I(f"v_xor_b32 v{FI+1+2*j}, {32*(j&3)}, v{FI+1}")
    I("v_and_b32 v35, 3, v6", f"v_mul_u32_u24 v{FR}, 0x420, v35", "v_bfe_u32 v35, v6, 2, 3", f"v_lshl_add_u32 v{FR}, v35, 7, v{FR}", "v_bfe_u32 v35, v6, 3, 1",
      f"v_lshl_add_u32 v{FR}, v35, 4, v{FR}", f"v_xor_b32 v{FR}, v{FR}, v1", "s_lshl_b32 s45, s18, 13", f"s_add_u32 s45, s45, {L_W}", f"v_add_u32 v{FR}, s45, v{FR}")
    for k in range(1, 4): I(f"v_xor_b32 v{FR+k}, {16*k}, v{FR}")
    I("v_and_b32 v20, 31, v6", "s_lshl_b32 s3, s18, 7", "v_lshl_add_u32 v57, v20, 2, s3", "v_and_b32 v59, 0x38, v6", "v_lshl_add_u32 v59, v59, 1, s3",
      "s_sub_u32 s3, 896, s3", "v_lshl_add_u32 v58, v20, 2, s3")
    def phaseB(k, a, r, sreg, m=None):
        if m:
            for j in range(4): I(f"v_or_b32 v{k+j}, v{m}, v{k+j}")
        for j in range(4): I(f"v_mad_u32_u16 v{a+j}, v{k+j}, v28, s22")
        for j in range(4):
            I(f"ds_add_rtn_u32 v{r+j}, v{a+j}, v29",
              f"v_add_u32_sdwa v{k+j}, v{48+j}, s{sreg} dst_sel:WORD_0 dst_unused:UNUSED_PRESERVE src0_sel:DWORD src1_sel:DWORD")
    def phaseC(k, a, r):
        L = []
        for j in range(4): L += [f"v_min_u32 v{r+j}, {CAP-1}, v{r+j}", f"v_lshl_add_u32 v{a+j}, v{r+j}, 2, v{a+j}", f"ds_write_b32 v{a+j}, v{k+j} offset:4"]
        return L
    for i in range(5):
        I(f"s_waitcnt vmcnt({vw(f'k{i}')})")
        if i == 0: stamp("key0", lvl=2)
        hook(f"b{i}")
        phaseB(KEY+4*i, AD+4*i, RK+4*i, 40+i, O4+4 if i == 4 else None)
    I("v_cmp_lt_i32 vcc, 0, v33", "s_cbranch_vccnz K_MORE", "K_MORE_RET:", "s_branch PG2E")
    repoll("K_TAB", TABLD, "\n".join(TABCMP))
    I(".p2align 12", "PG2:", "s_branch K_WARM_RET")
    repoll("K_F3", F3LD, "v_cmp_ne_u32 vcc, s56, v9")
    I("K_EPOCH:", "v_mov_b32 v22, s56", "v_mov_b32 v23, s57", f"s_mov_b32 s3, {EP_OFF}", "s_mov_b64 exec, 1", "buffer_store_dwordx2 v[22:23], v24, s[12:15], s3 offen sc1", "s_mov_b64 exec, -1", "s_branch K_EPOCH_RET")
    I("PG2E:"); bar("1")
    stamp("bar1", lvl=2)
    I("s_mov_b64 exec, s[38:39]", "ds_read_b32 v20, v21", "s_mov_b64 exec, -1")
    I("s_lshl_b32 s3, s2, 2", "s_add_u32 s3, s3, s18", "s_cmp_eq_u32 s3, 3", "s_cbranch_scc1 K_EPOCH", "K_EPOCH_RET:")
    hook("a1")
    I("s_waitcnt lgkmcnt(0)", "s_mov_b64 exec, s[38:39]")
    I(f"v_cmp_lt_u32 vcc, {CAP}, v20", "v_min_u32 v20, 63, v20", "v_sub_u32 v22, 63, v20", "v_lshlrev_b32 v22, 2, v22",
      f"ds_add_rtn_u32 v23, v22, v29 offset:{L_H1}")
    I("s_cbranch_vccz K_A1", f"ds_write_b32 v24, v29 offset:{L_FLAG}", "K_A1:")
    I("s_mov_b64 exec, -1")
    hook("a2"); bar("2")
    I(f"ds_read_b32 v25, v43 offset:{L_H1}")
    I(*phaseC(KEY, AD, RK))
    I("s_waitcnt lgkmcnt(4)", "v_mov_b32 v46, v25")
    scan64(46, phaseC(KEY+4, AD+4, RK+4))
    I("v_sub_u32 v46, v46, v25", "ds_bpermute_b32 v46, v22, v46")
    I("v_lshrrev_b32 v30, 1, v20", "v_cmp_lt_u32 s[36:37], 26, v20")
    hook("a3")
    I("s_waitcnt lgkmcnt(0)")
    I("v_add_u32 v23, v23, v46", "v_cmp_gt_u32 vcc, s19, v23", "v_lshlrev_b32 v33, 1, v23", "v_lshlrev_b32 v34, 2, v23",
      "v_cndmask_b32_e64 v31, 8, 10, vcc", "v_cndmask_b32 v31, v31, v30, s[36:37]")
    I("v_cmp_gt_u32 vcc, s27, v23", "v_cmp_gt_u32 s[36:37], v20, v31", "v_mov_b32 v35, 0xff", "v_sub_u32 v37, 63, v31",
      "s_and_b64 vcc, vcc, s[36:37]", "s_and_b64 vcc, vcc, s[38:39]")
    I("v_cndmask_b32 v32, 0, v31, vcc", "v_sub_u32 v32, v20, v32", "v_sub_u32 v36, 63, v32", "v_lshlrev_b32 v36, 2, v36", "v_lshlrev_b32 v37, 2, v37")
    I("s_mov_b64 exec, s[38:39]", f"ds_add_rtn_u32 v38, v36, v29 offset:{L_H2}")
    I("s_mov_b64 exec, vcc", f"ds_add_rtn_u32 v39, v37, v29 offset:{L_H2}", "v_add_lshl_u32 v47, s16, v0, 7", f"ds_write_b32 v34, v47 offset:{L_SN}")
    I("s_mov_b64 exec, -1", "v_cndmask_b32 v35, v35, v33, vcc")
    I("v_lshl_or_b32 v48, v35, 8, v32", "v_lshl_or_b32 v48, v48, 16, v0")
    I("v_or_b32 v33, 1, v33", "v_lshl_or_b32 v49, v33, 8, v31", "v_lshl_or_b32 v49, v49, 8, v32", "v_lshl_or_b32 v49, v49, 8, v0", "v_lshl_add_u32 v50, v32, 2, v21")
    I("s_mov_b64 s[46:47], vcc"); hook("a4"); bar("3")
    stamp("bar3", lvl=3)
    I(f"ds_read_b32 v25, v43 offset:{L_H2}"); I(*phaseC(KEY+8, AD+8, RK+8)); I("s_waitcnt lgkmcnt(4)", "v_mov_b32 v46, v25")
    scan64(46, phaseC(KEY+12, AD+12, RK+12))
    I("v_sub_u32 v46, v46, v25", "ds_bpermute_b32 v36, v36, v46", "ds_bpermute_b32 v37, v37, v46")
    I(*phaseC(KEY+16, AD+16, RK+16))
    I("s_waitcnt lgkmcnt(4)", "v_add_lshl_u32 v36, v36, v38, 2", "v_add_lshl_u32 v37, v37, v39, 2")
    o0 = L_TBL // 256
    I("s_mov_b64 exec, s[38:39]", f"ds_write2st64_b32 v36, v48, v21 offset0:{o0} offset1:{o0+4}", "s_mov_b64 exec, s[46:47]", f"ds_write2st64_b32 v37, v49, v50 offset0:{o0} offset1:{o0+4}",
      "s_mov_b64 exec, -1")
    hook("a5")
    sr = [f"ds_read_b128 a[{AX+4*k}:{AX+4*k+3}], v{34+(k&3)} offset:{4096*(k>>2)}" for k in range(8)]
    I("s_mov_b32 s21, 0", "s_movk_i32 s53, 0x3f80", "s_movk_i32 s54, 0xff", f"s_movk_i32 s55, {SPL_S}", "s_mov_b32 s49, 0xffff", "s_movk_i32 s59, 128",
      f"s_mov_b32 s57, {f32(2.0**-100)}", "s_movk_i32 s58, 0x207", f"v_add_u32 v6, {L_X}, v1")
    I("s_mov_b32 s28, s4", "s_or_b32 s29, s5, 0x800000", f"s_mov_b32 s30, {N_NODES}")
    bar("4", "x")
    stamp("bar4", lvl=2)
    o0 = L_TBL // 256
    I(f"ds_read_b128 v[20:23], v59 offset:{L_TB2}", f"ds_read2st64_b32 v[26:27], v57 offset0:{o0} offset1:{o0+4}",
      f"ds_read_b32 v7, v58 offset:{L_TBL}", f"ds_read_b32 v8, v58 offset:{L_TB2}", f"ds_read_b32 v24, v24 offset:{L_FLAG}")
    for b in range(4): I(*onehot(EE+2*b, b))
    for k in range(4): I(f"v_mov_b32 v{34+k}, v{FR+k}")
    I("s_waitcnt lgkmcnt(4)")
    for j in range(8): I(f"ds_read_u16 v{FI+2*j}, v{20+(j&3)} offset:{6 + 4*(j>>2)}")
    xx, xr = xrd((28, 29, 30, 31))
    I("s_waitcnt lgkmcnt(8)"); I(*xrow(28, 26, 29, 6)); I(*xx); I(*xr)
    I("s_waitcnt lgkmcnt(8)")
    fl = ["v_mov_b32 v5, v26", "v_mov_b32 v2, v27", "v_bfe_u32 v3, v26, 16, 8", "s_nop 0", "s_waitcnt lgkmcnt(4)", "v_cmp_ne_u32 vcc, 0, v24", "v_readfirstlane_b32 s20, v3", "s_nop 0"]
    for j in range(8):
        if j == 4: hook("s0")
        VM(f"s{j>>2}", f"s_add_u32 m0, s45, {1024*j}", fl[j], f"buffer_load_dwordx4 v[{FI+2*j}:{FI+2*j+1}], s[28:31], 0 idxen offen lds")
    assert not ea and not xd
    I(*recs(40, 2)); I(*recs(10, 8)); I(*xrow(9, 7, 29, 6))
    if OPT["stamp"]: I("s_mov_b32 s62, s20")
    I(*LSET)
    I("s_lshl_b32 s45, s18, 5", "s_add_u32 s45, s45, 128", f"s_mul_i32 s46, s18, {OST_W}", f"s_add_u32 s46, s46, {L_OST}", "s_movk_i32 s47, 576", f"s_mov_b32 s48, {L_SN}")
    I("s_waitcnt lgkmcnt(0)", "s_cbranch_vccnz K_SLOW0", eaddr(44, 40), eaddr(45, 41), eaddr(46, 42), eaddr(4, 43), xaddr(42), ".p2align 3")
    stamp("q1")
    q = sum([qchain(QQ+16*b, b, EE+2*b) for b in range(4)], [])
    I(*weave(q, [], [0]*20, {**{k: tr2[3*k:3*k+3] for k in range(11)}, 14: ["s_waitcnt vmcnt(4)", "s_barrier"], 15: sr[0:2], 16: sr[2:4], 17: [earead(0, 44), earead(1, 45)], 18: [earead(2, 46)]}))
    c = chain(NN, 0, 0, QQ)
    seg = ["s_waitcnt lgkmcnt(0)", "s_nop 0", c[0], xload(2, 0), c[1], xload(2, 1), c[2], xload(2, 2), c[3], xload(2, 3), c[4], xaddr(43), "s_nop 8", "s_nop 0"]
    for b in range(3): seg += weave(chain(NN+16*(b+1), b+1, 0, QQ+16*(b+1)), E0(b), (3,3,3,3,4), {0: ["s_waitcnt vmcnt(4)"], 1: sr[4:6], 2: sr[6:8], 3: [xload(0, 0)]} if b == 2 else None) + A0(b)
    seg += ["s_waitcnt lgkmcnt(0)", "s_barrier"] + weave(chain(T0, 0, 1, QQ), E0(3), (3,3,3,3,4), {3: [xload(0, 1)]}) + A0(3)
    I(*align8(seg))
    stamp("loop1")
    I("s_branch K_A0")
    I(".p2align 12", "PG3:", "s_branch K_WARM_RET", "s_nop 0", "K_LOOP:")
    def partA(t):
        cur = (1+t) % 3; prv = t % 3
        seg = []
        for b in range(3):
            tc = T0 + 16*(b % 2); tn = T0 + 16*((b+1) % 2)
            if b == 0: extra = {0: [f"ds_read_b32 v6, v2 offset:{4*(t+5)}"], 3: [xload(prv, 2)], 4: ["v_cmpx_lt_u32 vcc, s19, v3"]}
            elif b == 1: extra = {1: ["s_cmp_lt_i32 s19, s37"], 2: ["s_waitcnt lgkmcnt(0)"], 3: [xload(prv, 3)], 4: [xaddr(6)]}
            else: extra = {0: ["s_cselect_b32 s6, s26, 0"], 1: ["s_cmp_ge_u32 s19, s20"], 2: ["s_waitcnt vmcnt(4)"], 3: [earead(prv, 4)],
                           4: ["s_cbranch_scc1 K_EXIT" if t < 2 else "s_cbranch_scc0 K_LOOP"]}
            ms = chain(tn, b+1, cur, QQ+16*(b+1))
            if b < 2: seg += weave(ms, exps(tc), (3,3,3,3,4), extra) + pk3(b, tc)
            else: seg += weave(ms, exps(tc)[:12], (3,3,3,3,0), extra)
        return seg
    def partB(t):
        cur = (1+t) % 3; nxt = (2+t) % 3
        seg = [xload(cur, 0)] + exps(T0)[12:] + pk3(2, T0)
        seg += weave(chain(T0, 0, nxt, QQ), exps(T1), (3,3,3,3,4), {0: ["s_add_u32 s19, s19, 1"], 3: [xload(cur, 1)], 4: [eaddr(4, 6)] + (["v_add_u32 v2, 12, v2"] if t == 2 else [])}) + pk3(3, T1)
        return seg
    I(*align8(partB(2)))
    I("K_A0:")
    I(*align8(partA(0) + partB(0) + partA(1) + partB(1) + partA(2))[:-1])
    I("K_EXIT:", "s_cmp_lg_u32 s21, 0", "s_cbranch_scc1 K_LAST", "s_branch K_MID")
    I(".p2align 12", "PG4:", "s_branch K_WARM_RET2", "s_nop 0", "K_MID:")
    stamp("exit1")
    OH = QQ+48
    def mix(c, g): return c[:4] + g + c[4:]
    def ms(n):
        nonlocal seg
        if OPT.get("ms"): I(*align8(seg)); seg = []; stamp(n)
    xx, xr = xrd((9, 4, 6, 2))
    seg = exps(T0)[12:] + pk3(2, T0) + ["s_mov_b64 s[60:61], exec", "s_mov_b64 exec, -1"] + exps(T1) + xx + ["s_mov_b32 s6, s26", xaddr(10), "s_waitcnt vmcnt(0)", "s_mov_b32 s21, 1"]
    seg += xr + [xload(0, k) for k in range(4)] + ["s_mov_b64 exec, s[60:61]", LSET[3]] + pk3(3, T1) + ["s_mov_b64 exec, -1", "s_waitcnt lgkmcnt(0)"]
    ms("m1")
    seg += spread(mix(qchain(QQ, 0, OH3), binit(LB)), [xaddr(11), "v_bfe_u32 v3, v7, 16, 8"] + lbinit(LB) + ["v_readfirstlane_b32 s20, v3"] + onehot(OH3, 0) + R(0) + M(0),
                  pre={1: [xload(1, 0), xload(1, 1)], 2: [xload(1, 2)], 3: [xload(1, 3)]}) + U(0)
    ms("m2")
    seg += spread(mix(qchain(QQ+16, 1, OH3+2), G(0)), V(0) + onehot(OH3+2, 1) + [eaddr(4, 10), eaddr(6, 11), eaddr(0, 12), "v_mov_b32 v2, v8"] + R(1) + M(1),
                  pre={2: ([f"s_mov_b32 s63, s20"] if OPT["stamp"] else []) + [LSET[0]], 3: [LSET[1]], 5: [LSET[2]], 4: [earead(0, 4), earead(1, 6), earead(2, 0)]}) + U(1)
    ms("m3")
    seg += spread(mix(qchain(QQ+32, 2, OH3), G(1)), V(1) + onehot(OH3, 2) + OCON[:8] + R(2) + M(2), pre={6: ["s_waitcnt vmcnt(4) lgkmcnt(0)"]}) + U(2)
    ms("m4")
    seg += spread(mix(chain(NN, 0, 0, QQ), G(2)), V(2) + OCON[8:] + dec2(LB) + R(3) + M(3)) + U(3)
    seg += spread(mix(chain(NN+16, 1, 0, QQ+16), G(3)), V(3) + onehot(OH3+2, 3) + [xaddr(12), eaddr(4, 13), "v_mov_b32 v5, v7"] + E0(0) + A1(0)[:OPT["a1"]]) + A0(0)[OPT["a1"]//2:] + SCL
    seg += check("K_RARE_A")
    ms("m6")
    q = qchain(QQ+48, 3, OH3+2); c = chain(NN+32, 2, 0, QQ+32)
    seg += spread(q[:4] + c[:1] + q[4:] + c[1:], OCV + E0(1), pre={0: [OIW], 2: [OSW[0]], 4: [OSW[1], xload(2, 0)], 6: [OSW[2], xload(2, 1)], 7: [OSW[3], xload(2, 2)], 8: [xload(2, 3)] + OSR}) + A0(1)
    ms("m7")
    e = E0(2); c = chain(NN+48, 3, 0, QQ+48)
    seg += [c[0], "s_waitcnt vmcnt(4) lgkmcnt(0)"] + OOR + [xaddr(13)] + e[:1] + [c[1], OST[0], OST[1], c[2], OST[2], OST[3], c[3], xload(0, 0)] + e[1:4] + [c[4]] + e[4:] + A0(2)
    seg += weave(chain(T0, 0, 1, QQ), E0(3), (3,3,3,3,4), {3: [xload(0, 1)]}) + A0(3)
    I(*align8(seg))
    stamp("loop2")
    I("s_branch K_A0")
    I(".p2align 12", "PG5:", "s_branch K_WARM_RET2", "s_nop 0", "K_LAST:")
    stamp("exit2")
    CCON = ["v_mbcnt_lo_u32_b32 v2, -1, 0", "v_mbcnt_hi_u32_b32 v2, -1, v2", "v_lshrrev_b32 v2, 3, v2", "v_lshl_add_u32 v2, s18, 3, v2",
            "v_mul_u32_u24 v4, s55, v2", "v_lshl_add_u32 v4, v4, 1, v11", "v_lshl_add_u32 v2, v2, 2, s48", "v_mov_b32 v12, 0"]
    seg = exps(T0)[12:] + pk3(2, T0) + exps(T1) + pk3(3, T1) + ["s_mov_b64 exec, -1"] + lbinit(LB)
    seg += R(0)[:2] + weave(binit(LB), R(0)[2:], (4, 10)) + U(0) + V(0)
    for b in range(3): seg += weave(G(b), R(b+1), (3,3,3,7)) + U(b+1) + V(b+1)
    seg += spread(G(3), M(0) + M(1) + M(2) + M(3) + CCON + dec2(LB), tail=48) + SCL + check("K_RARE_B") + OCV + [OIW] + OSW + OSR
    I(*align8(seg))
    stamp("tail")
    I("s_mov_b32 s3, 0xffff0000", "s_waitcnt lgkmcnt(6)", "s_barrier")
    I(f"ds_read_b32 v12, v12 offset:{L_FLAG}", f"ds_read2_b32 v[2:3], v2 offset1:32")
    for h in range(2):
        for r in range(2): I(f"ds_read_b128 v[{NN+8*h+4*r}:{NN+8*h+4*r+3}], v4 offset:{L_SPL + 64*SPL_S*h + SPL_S*r}")
    I("s_waitcnt lgkmcnt(6)", *OOR); I(*OST)
    I("s_waitcnt lgkmcnt(2)", "v_cmp_ne_u32 vcc, 0, v12", "v_or_b32 v2, v2, v11", "v_or_b32 v3, v3, v11")
    for h in range(2):
        if h: I("s_waitcnt lgkmcnt(0)", "s_nop 0")
        n = NN + 8*h; u = DD + 16*h
        for i in range(8): I(f"v_lshlrev_b32 v{u+2*i}, 16, v{n+i}", f"v_and_b32 v{u+2*i+1}, s3, v{n+i}")
        for i in range(4): I(f"v_pk_add_f32 v[{u+2*i}:{u+2*i+1}], v[{u+2*i}:{u+2*i+1}], v[{u+8+2*i}:{u+8+2*i+1}]")
        for i in range(4): I(f"v_cvt_pk_bf16_f32 v{n+i}, v{u+2*i}, v{u+2*i+1}")
        I(f"buffer_store_dwordx4 v[{n}:{n+3}], v{2+h}, s[8:11], 0 offen{OSTF}")
    I("s_cbranch_vccnz K_SLOW")
    if OPT["diag"]:
        if OPT.get("amp0"): I("s_sub_u32 s94, s94, s96", "s_mul_i32 s94, s94, 10", "s_add_u32 s100, s100, s94")
        I("s_mov_b32 s52, 0", "K_SPIN:", "s_memrealtime s[54:55]", "s_waitcnt lgkmcnt(0)", "s_add_u32 s52, s52, 1", "s_cmp_gt_u32 s52, 20000", "s_cbranch_scc1 K_END",
          "s_sub_u32 s54, s54, s100", "s_cmp_lt_i32 s54, 4000", "s_cbranch_scc1 K_SPIN")
    if OPT["stamp"]:
        I("s_waitcnt vmcnt(0)"); stamp("end")
        I("s_lshl_b32 s3, s2, 2", "s_add_u32 s3, s3, s18", "s_lshl_b32 s3, s3, 7", f"s_add_u32 s3, s3, {STAMP_OFF}", "v_mov_b32 v0, 0")
        for i in range(len(stamps)): I(f"v_mov_b32 v1, s{SLOTS[i]}", f"buffer_store_dword v1, v0, s[12:15], s3 offen offset:{4*i}")
        I("s_lshl_b32 s62, s62, 8", "s_or_b32 s62, s62, s63", "v_mov_b32 v1, s62", "buffer_store_dword v1, v0, s[12:15], s3 offen offset:124")
    I("K_END:", "K_END0:", "s_endpgm")
    I("K_MEA:", "s_mov_b32 s3, 0", *eadma(190, "s3", 0)); I(*eadma(191, "s3", 1024)); I("s_branch K_MEA_RET")
    for tag in ("K_RARE_A", "K_RARE_B"):
        I(f"{tag}:")
        I("s_or_b64 vcc, vcc, s[38:39]", "s_cmp_eq_u64 vcc, -1", f"s_cbranch_scc1 {tag}2")
        I(f"v_mov_b32 v{OA+1}, 0", f"v_mov_b32 v{RM}, 1", f"ds_write_b32 v{OA+1}, v{RM} offset:{L_FLAG}")
        I(f"{tag}2:", "s_mov_b64 exec, s[38:39]")
        for i in range(32): I(f"v_mov_b32 v{T0+i}, 0")
        I("s_mov_b64 exec, -1", f"s_branch {tag}_RET")
    K2, A2, R2, O2 = 176, 180, 184, 188
    I("K_MORE:", "s_sub_u32 s40, 0, s23", "s_nop 0")
    I("s_mov_b64 exec, 1", f"ds_add_rtn_u32 v{O2}, v24, v29 offset:{L_FLAG+4}", "s_waitcnt lgkmcnt(0)", f"v_cmp_ne_u32 vcc, 0, v{O2}", "s_mov_b64 exec, -1", "s_cbranch_vccnz K_MORE_F")
    compact(36)
    I("s_mov_b32 s3, 0", "s_waitcnt lgkmcnt(0)",
      f"v_add_u32_dpp v{O2}, v36, v31 quad_perm:[0,0,0,0] row_mask:0xf bank_mask:0xf",
      f"buffer_load_dwordx4 v[{K2}:{K2+3}], v{O2}, s[12:15], s50 offen sc1", f"v_bfe_i32 v{O2}, v{O2}, 30, 1")
    octets(36, [0], 27, O2+2)
    I("s_mov_b32 s20, 1", "s_waitcnt vmcnt(0)")
    phaseB(K2, A2, R2, 40, O2)
    I("s_waitcnt lgkmcnt(0)")
    I(*phaseC(K2, A2, R2))
    I("v_cmp_lt_i32 vcc, 0, v33", "s_cbranch_vccz K_MORE_RET")
    I("K_MORE_F:", f"ds_write_b32 v24, v29 offset:{L_FLAG}", "s_branch K_MORE_RET")
    I("K_SLOW0:", *tr2)
    I("K_SLOW:")
    I("s_mov_b64 exec, -1", "s_waitcnt vmcnt(0) lgkmcnt(0)", "s_barrier")
    I("v_mbcnt_lo_u32_b32 v6, -1, 0", "v_mbcnt_hi_u32_b32 v6, -1, v6", "s_lshl_b32 s3, s18, 6", "v_add_u32 v7, s3, v6")
    I(*TABA); I(f"v_lshlrev_b32 v3, {lt}, v7", TABLD)
    I("v_lshrrev_b32 v1, 5, v6", "v_lshlrev_b32 v1, 6, v1", "v_and_b32 v6, 31, v6", "v_lshlrev_b32 v2, 4, v7")
    for i in range(4): I(f"v_mov_b32 v{16+i}, 0")
    for i in range(13): I(f"ds_write_b128 v2, v[16:19] offset:{4096*i}")
    for b in range(4): I(*onehot(EE+2*b, b))
    I("s_mov_b32 s6, s26", "s_mov_b32 s19, 0", "s_waitcnt vmcnt(0) lgkmcnt(0)", "s_barrier")
    I("K_S_SEG:")
    I("v_readlane_b32 s36, v8, s19", "s_lshl_b32 s3, s18, 6", "s_add_u32 s3, s3, s19", f"s_mul_i32 s3, s3, {CHS}", "s_nop 0",
      "s_bfe_u32 s20, s36, 0xc000c", "s_and_b32 s36, s36, 0xfff", "s_add_u32 s36, s36, s3")
    I("K_S_TILE:")
    I("s_cmp_le_i32 s20, 0", "s_cbranch_scc1 K_S_NEXT")
    I("v_add_lshl_u32 v2, s36, v6, 2", "v_lshlrev_b32 v3, 1, v2", "v_cmp_gt_i32 s[38:39], s20, v6")
    I("buffer_load_dword v9, v2, s[12:15], s50 offen sc1", f"buffer_load_dwordx2 a[{AEA}:{AEA+1}], v3, s[12:15], s51 offen sc1", "s_waitcnt vmcnt(0)")
    I(xaddr(9)); I(*[xload(0, k) for k in range(4)])
    I("v_and_b32 v9, 0xffff, v9", "v_lshl_add_u32 v0, v9, 7, v1", "v_subrev_u32 v9, s16, v9"); I(*[xload(2, k) for k in range(4)])
    I("v_mul_u32_u24 v9, 260, v9", "v_lshl_add_u32 v9, v1, 1, v9", "s_waitcnt vmcnt(0)")
    for b in range(4): I(*qchain(NN+16*b, b, EE+2*b)); I(*chain(NN+16*b, b, 0, NN+16*b))
    I(*binit(EE)); I("s_nop 15")
    for b in range(4): I(*E0(b))
    for b in range(4): I(*A0(b))
    for b in range(4): I(*R(b))
    for b in range(4): I(*(U(b) + V(b)))
    I("s_nop 1")
    for b in range(4): I(*G(b))
    I("s_nop 15"); I(*SCL)
    I("s_mov_b64 exec, s[38:39]")
    for i in range(32): I(f"ds_add_f32 v9, v{T0+i} offset:{4*i}")
    I("s_mov_b64 exec, -1", "s_waitcnt lgkmcnt(0)", "s_sub_u32 s20, s20, 32", "s_add_u32 s36, s36, 32", "s_branch K_S_TILE")
    I("K_S_NEXT:", "s_add_u32 s19, s19, 1", "s_cmp_lt_u32 s19, 64", "s_cbranch_scc1 K_S_SEG")
    I("s_barrier", "v_and_b32 v3, 7, v7", "v_lshlrev_b32 v1, 4, v3", "v_lshrrev_b32 v7, 3, v7", "s_mov_b32 s19, 0")
    I("K_S_OUT:")
    I("v_mul_u32_u24 v2, 260, v7", "v_cmp_gt_u32 vcc, s17, v7", "v_lshl_add_u32 v2, v3, 5, v2", "v_add_lshl_u32 v0, s16, v7, 7", "v_cndmask_b32 v0, 2.0, v0, vcc", "v_or_b32 v0, v0, v1")
    for i in range(8): I(f"ds_read_b32 v{16+i}, v2 offset:{4*i}")
    I("s_waitcnt lgkmcnt(0)")
    for i in range(4): I(f"v_cvt_pk_bf16_f32 v{24+i}, v{16+2*i}, v{17+2*i}")
    I("buffer_store_dwordx4 v[24:27], v0, s[8:11], 0 offen", "v_add_u32 v7, 32, v7", "s_waitcnt vmcnt(0)")
    I("s_add_u32 s19, s19, 1", "s_cmp_lt_u32 s19, 7", "s_cbranch_scc1 K_S_OUT", "s_endpgm")

def desc(name, vgpr, accum, sgpr):
    I(".p2align 6", f".amdhsa_kernel {name}")
    for l in (f"next_free_vgpr {vgpr}", f"next_free_sgpr {sgpr}", f"accum_offset {accum}", "group_segment_fixed_size 0", "kernarg_size 88",
              "user_sgpr_count 2", "user_sgpr_kernarg_segment_ptr 1", "system_sgpr_workgroup_id_x 1", "float_denorm_mode_32 3"):
        out.append("  .amdhsa_" + l)
    I(".end_amdhsa_kernel")

hdr = [l.rstrip("\n") for l in open(f"cdna_kernels/{NAME}.s.ref") if l.startswith(";") and "@launch" not in l][:12]
hdr += [f"; @launch grid=(256,1,1) block=(256,1,1) lds={L_SIZE}"]
I('.amdgcn_target "amdgcn-amd-amdhsa--gfx950"', ".text")
kernel()
I('.section .rodata,"a"')
desc(NAME + "_kernel", 512, 256, 102)
if OPT["stamp"]: hdr.append("; stamps: " + " ".join(stamps))
open(sys.argv[1], "w").write("\n".join(hdr + out) + "\n")
```

```python
import sys, struct, math
NAME = "standalone__edge_featured_mpnn_mpnn__graph"
OPT = dict(stamp=0, diag=0, tp=64, ntr=32, ntr0=-1, xpos=0, sl=3, cw=1, ost='sc1', w2q=1, up=4, wpos=2, tw=2, f1pos=0, xa=0, xb=0, ww=3, rm=1, est='d', f3s='E', f3l='a1', xs='b07', es='a33.a43.a54', hs='A', hl=8, fs=4, nr=2, cpos=1, rr=0, f1e=1, slp=4, tl=0, tm=63, wso=0, a1=12, srm=0, bk=0, xt=4, st2=1, il=1, srl=1, a2=16, a3=16, pb=0)
for a in sys.argv[2:]:
    k, v = a.split("="); OPT[k] = int(v) if v.lstrip("-").isdigit() else v

N_NODES = 50000; E = 800000
CH = 3125; CHS = 3200
TP = OPT['tp']; FL_OFF = 0x40000
TAB_OFF = 0; WP_OFF = 0x48000; KEY_OFF = 0x48000; EA_OFF = 0x368000; STAMP_OFF = 0x1000000
WS_SIZE = 0x10000000 - (OPT['wso'] << 20)
SPIN = 400000
def f32(x): return "0x%08x" % struct.unpack("<I", struct.pack("<f", x))[0]
NLOG2E = f32(-math.log2(math.e)); NLN2 = f32(-math.log(2.0))

out = []
def I(*ls):
    for l in ls:
        for x in l.split("\n"):
            x = x.strip()
            if x: out.append(x if x.endswith(":") or x.startswith(".") else "    " + x)
vm = []
def VM(tag, *ls):
    for l in ls:
        if l.startswith(("buffer_", "global_")): vm.append(tag)
        I(l)
def vw(tag, k=0):
    idx = [i for i, t in enumerate(vm) if t == tag]
    return len(vm) - 1 - idx[-1-k]
def srd(d, lo, hi, size, stride=0):
    I(f"s_mov_b32 s{d}, s{lo}")
    if stride: I(f"s_or_b32 s{d+1}, s{hi}, {hex(stride << 16)}")
    else: I(f"s_mov_b32 s{d+1}, s{hi}")
    I(f"s_mov_b32 s{d+2}, {size}", f"s_mov_b32 s{d+3}, 0x20000")
def scan64(v, fill=None):
    fill = list(fill or [])
    def gap():
        n = 0
        while fill and n < 2: I(fill.pop(0)); n += 1
        if n < 2: I(f"s_nop {1-n}")
    for op in ("row_shr:1", "row_shr:2", "row_shr:4", "row_shr:8"):
        gap(); I(f"v_add_u32_dpp v{v}, v{v}, v{v} {op} row_mask:0xf bank_mask:0xf bound_ctrl:0")
    gap(); I(f"v_add_u32_dpp v{v}, v{v}, v{v} row_bcast:15 row_mask:0xa bank_mask:0xf")
    gap(); I(f"v_add_u32_dpp v{v}, v{v}, v{v} row_bcast:31 row_mask:0xc bank_mask:0xf")
    I(*fill)
SLOTS = list(range(86, 98)) + list(range(64, 84))
stamps = []
def stamp(name, twice=False, lvl=1):
    if OPT.get("amp0") == name: I("s_memrealtime s[96:97]", "s_waitcnt lgkmcnt(0)", "s_nop 0")
    if OPT.get("amp1") == name: I("s_memrealtime s[94:95]", "s_waitcnt lgkmcnt(0)", "s_nop 0")
    if OPT["diag"] == name: I("s_memrealtime s[100:101]", "s_waitcnt lgkmcnt(0)", "s_nop 0")
    if not OPT["stamp"] or lvl > OPT["sl"]: return
    if twice:
        stamps.append(name + "1")
        I(f"s_mov_b32 s{SLOTS[len(stamps)-1]}, s{SLOTS[len(stamps)]}", "s_nop 0")
        name += "2"
    stamps.append(name)
    I(f"{'s_memtime' if OPT['stamp']==1 else 's_memrealtime'} s[98:99]", "s_waitcnt lgkmcnt(0)", f"s_mov_b32 s{SLOTS[len(stamps)-1]}, s98")

CAP = 48; NS = 4 + 4*CAP
STG0 = 2048
L1_KEY = 0; L1_EA = CHS*4; L1_CNT = 38912; L1_BASE = L1_CNT + 1024
L_H1 = STG0 + 5*8192; L_H2 = L_H1 + 256; L_SN = L_H2 + 256; L_FLAG = L_SN + 256; L_TBL = L_H1 + 1024
L_TB2 = L_TBL + 1024; L_SPL = L_TB2 + 1024; SPL_S = 144
L_W = L_SPL; L_S = L_W + 32768; L_W2 = L_S + 4096
L_OST = L_SPL + 128*SPL_S; OST_W = 32*SPL_S
L_X = L_W2 + 16384
L_NODE = L_X + 200*128
L_SIZE = L_NODE + 196*NS
assert L_SIZE <= 163840 and L_SPL + 123*SPL_S <= L_OST and L_OST + 4*OST_W <= L_W2
OSTF = "" if OPT["ost"] == "plain" else " " + OPT["ost"]
T0, T1, EE, NN, DD, QQ = 16, 32, 48, 64, 128, 192
AX, AW1A, AW1B, AW1C, AW2, AEA, AB1 = 0, 48, 112, 176, 184, 248, 254
BIG = 0x1000000

import re
V4 = ("v_exp_f32", "v_rcp_f32", "v_add_f32", "v_mul_f32", "v_add_u32", "v_mov_b32", "v_and_b32", "v_lshrrev_b32", "v_lshlrev_b32", "v_cvt_f32_ubyte2",
      "v_mul_u32_u24", "v_cndmask_b32", "v_readfirstlane_b32", "v_or_b32", "v_sub_u32", "v_xor_b32")
def has_lit(s):
    for t in re.split(r"[,\s]+", s.strip())[1:]:
        if re.fullmatch(r"0x[0-9a-fA-F]+|-?\d+", t):
            v = int(t, 0)
            if not -16 <= v <= 64: return True
    return False
def isz(s):
    s = s.strip(); op = s.split()[0]
    if s.endswith(":") or s.startswith("."): return 0
    if op.startswith(("s_waitcnt", "s_nop", "s_cbranch", "s_branch", "s_movk", "s_barrier")): return 4
    if op.startswith("s_memtime") or op.startswith("s_memrealtime"): return 8
    if op.startswith("s_"): return 8 if has_lit(s) else 4
    if op.startswith("v_cmp") and not op.endswith("_e64"): return (8 if has_lit(s) else 4) if s.split()[1] == "vcc," else 8
    if op == "v_cndmask_b32" and not s.endswith("vcc"): return 8
    if op in V4: return 8 if has_lit(s) else 4
    return 8
def align8(seg):
    off = 0; last4 = None
    seg = list(seg); i = 0
    while i <= len(seg):
        s = seg[i] if i < len(seg) else "v_pk_x"
        z = isz(s)
        if z == 8 and off % 8:
            if last4 is not None:
                op = seg[last4].split()[0]
                seg[last4] = seg[last4].replace(op, op + "_e64", 1); off += 4
            elif i == len(seg) or sum(1 for x in seg[i:i+5] if isz(x) == 8) == 5:
                if i < len(seg): print("pad before", s, file=sys.stderr)
                seg.insert(i, "s_nop 0"); off += 4; i += 1
        if z == 8: last4 = None
        if z == 4 and s.split()[0] in V4 and s.split()[0] != "v_readfirstlane_b32" and off % 8 == 0: last4 = i
        off += z; i += 1
    return seg
def xload(buf, kk): return f"buffer_load_dwordx4 a[{AX+16*buf+4*kk}:{AX+16*buf+4*kk+3}], v0, s[4:7], 0 offen offset:{16*kk}"
def xaddr(rec): return f"v_mad_u32_u16 v0, v{rec}, s59, v1 op_sel:[1,0,0,0]"
def eaddr(d, rec): return f"v_and_b32 v{d}, s49, v{rec}"
def earead(buf, r): return f"ds_read_b64 a[{AEA+2*buf}:{AEA+2*buf+1}], v{r}"
def chain(dst, blk, buf, c):
    L = []
    for kk in range(4):
        w = AW1A + 16*blk + 4*kk; x = AX + 16*buf + 4*kk; ci = c if kk == 0 else dst
        L.append(f"v_mfma_f32_32x32x16_bf16 v[{dst}:{dst+15}], a[{w}:{w+3}], a[{x}:{x+3}], v[{ci}:{ci+15}]")
    return L + [f"v_mfma_f32_32x32x8_bf16 v[{dst}:{dst+15}], a[{AW1C+2*blk}:{AW1C+2*blk+1}], a[{AEA+2*buf}:{AEA+2*buf+1}], v[{dst}:{dst+15}]"]
def qchain(dst, blk, oh, order=(0, 1, 2, 3)):
    L = []
    for kk in order:
        w = AW1B + 16*blk + 4*kk; x = AX + 32 + 4*kk
        L.append(f"v_mfma_f32_32x32x16_bf16 v[{dst}:{dst+15}], a[{w}:{w+3}], a[{x}:{x+3}], " + ("0" if kk == order[0] else f"v[{dst}:{dst+15}]"))
    return L + [f"v_mfma_f32_32x32x8_bf16 v[{dst}:{dst+15}], a[{AB1}:{AB1+1}], v[{oh}:{oh+1}], v[{dst}:{dst+15}]"]
def onehot(r, blk):
    c = "1.0" if blk & 1 else "s53"
    return [f"v_mov_b32 v{r+(blk>>1)}, {c}", f"v_mov_b32 v{r+1-(blk>>1)}, 0"]
def gemm2(blk, hb):
    L = []
    for p in range(2):
        for ob in range(2):
            w = AW2 + 4*((blk*2+p)*2+ob); o = T0 + 16*ob
            L.append(f"v_mfma_f32_32x32x16_bf16 v[{o}:{o+15}], a[{w}:{w+3}], v[{hb+4*p}:{hb+4*p+3}], v[{o}:{o+15}]")
    return L
def weave(ms, fill, cnts, extra=None):
    L = []; fill = list(fill)
    for k, m in enumerate(ms):
        L.append(m)
        if extra: L += extra.get(k, [])
        L += fill[:cnts[k]]; fill = fill[cnts[k]:]
    assert not fill
    return L
def repoll(tag, load, cmp):
    I(f"{tag}:", f"s_mov_b32 s3, {SPIN}", f"{tag}_L:", "s_mov_b64 exec, vcc", f"s_sleep {OPT['slp']}", load, "s_sub_u32 s3, s3, 1", "s_cbranch_scc1 K_END",
      "s_waitcnt vmcnt(0)", cmp, f"s_cbranch_vccnz {tag}_L", "s_mov_b64 exec, -1", f"s_branch {tag}_RET")

def cost(x):
    op = x.split()[0]
    if op.startswith(("v_exp", "v_rcp")): return 8
    if op.startswith("ds_write"): return {"b32": 8, "b64": 12, "b128": 20}[op.split("_")[-1]]
    if op.startswith("buffer_store"): return 12
    return 4
def spread(ms, fill, pre=None, tail=None):
    pre = pre or {}
    L = []; fill = list(fill); n = len(ms)
    if tail is None: tail = 36
    for k, m in enumerate(ms):
        L.append(m); P = pre.get(k, []); L += P
        if k == n-1: break
        room = 32 - (8 if "x16" in m else 4) - sum(cost(x) for x in P)
        if P and P[0].startswith("s_") and "x16" in m: room += 4
        if P and not P[0].startswith(("s_", "v_")) and "x16" not in m: room -= 4
        while fill and room > 0 and sum(map(cost, fill)) - cost(fill[0]) >= tail - sum(cost(x) for x in pre.get(n-1, [])):
            room -= cost(fill[0]); L.append(fill.pop(0))
    return L + fill
def pk3(b, tc):
    n = NN+16*b; d = DD+16*b
    return [f"v_pk_fma_f32 v[{n+2*i}:{n+2*i+1}], v[{n+2*i}:{n+2*i+1}], v[{EE+2*i}:{EE+2*i+1}], v[{n+2*i}:{n+2*i+1}]" for i in range(8)] + \
           [f"v_pk_fma_f32 v[{n+2*i}:{n+2*i+1}], v[{tc+2*i}:{tc+2*i+1}], v[{d+2*i}:{d+2*i+1}], v[{n+2*i}:{n+2*i+1}]" for i in range(8)] + \
           [f"v_pk_fma_f32 v[{d+2*i}:{d+2*i+1}], v[{d+2*i}:{d+2*i+1}], v[{EE+2*i}:{EE+2*i+1}], v[{d+2*i}:{d+2*i+1}]" for i in range(8)]
def exps(tc): return [f"v_exp_f32 v{EE+i}, v{tc+i}" for i in range(16)]
def E0(b): return [f"v_exp_f32 v{DD+16*b+i}, v{NN+16*b+i}" for i in range(16)]
def A0(b): return [f"v_pk_add_f32 v[{DD+16*b+2*i}:{DD+16*b+2*i+1}], v[{DD+16*b+2*i}:{DD+16*b+2*i+1}], 1.0 op_sel_hi:[1,0]" for i in range(8)]
def A1(b): return [f"v_add_f32 v{DD+16*b+i}, 1.0, v{DD+16*b+i}" for i in range(16)]
LB, RM, OA, OH3 = EE, EE+4, EE+5, EE+8
def R(b): return [f"v_rcp_f32 v{DD+16*b+i}, v{DD+16*b+i}" for i in range(16)]
def M(b): return [f"v_min3_f32 v{RM}, v{DD+16*b+2*i}, v{DD+16*b+2*i+1}, " + ("1.0" if b == 0 and i == 0 else f"v{RM}") for i in range(8)]
def U(b): return [f"v_pk_mul_f32 v[{NN+16*b+2*i}:{NN+16*b+2*i+1}], v[{NN+16*b+2*i}:{NN+16*b+2*i+1}], v[{DD+16*b+2*i}:{DD+16*b+2*i+1}]" for i in range(8)]
def pkm(d, a, b): return [f"v_pk_mul_f32 v[{d+2*i}:{d+2*i+1}], v[{a+2*i}:{a+2*i+1}], v[{b+2*i}:{b+2*i+1}]" for i in range(8)]
def XX(b): n = NN+16*b; d = DD+16*b; return pkm(n, n, d+16) + pkm(n+16, n+16, d) + pkm(d, d, d+16)
def UU(b): n = NN+16*b; d = DD+16*b; return pkm(n, n, d) + pkm(n+16, n+16, d)
def V(b): return [f"v_cvt_pk_bf16_f32 v{NN+16*b+i}, v{NN+16*b+2*i}, v{NN+16*b+2*i+1}" for i in range(8)]
def G(b): return gemm2(b, NN+16*b)
def lbinit(r): return [f"v_cvt_f32_ubyte2 v{r+2}, v5", f"v_mov_b32 v{r+1}, 0", f"v_mov_b32 v{r+3}, 0", f"v_lshrrev_b32 v{r}, 16, v{r+2}"]
def binit(r): return [f"v_mfma_f32_32x32x8_bf16 v[{T0+16*ob}:{T0+16*ob+15}], v[14:15], v[{r+2*ob}:{r+2*ob+1}], 0" for ob in range(2)]
def dec2(lb):
    return [f"v_lshrrev_b32 v{OA}, 24, v5", f"v_and_b32 v{OA+2}, s54, v5", f"v_cmp_eq_u32 vcc, s54, v{OA}", f"v_mad_u32_u24 v{OA}, v{OA}, s55, v1",
            f"v_add_lshl_u32 v{OA+2}, s16, v{OA+2}, 7", f"v_cndmask_b32 v{OA}, v{OA}, v8, vcc", f"v_cndmask_b32 v{OA+2}, 2.0, v{OA+2}, vcc",
            f"v_cmp_eq_u32 s[38:39], 0, v{lb+2}"]
SCL = [f"v_pk_mul_f32 v[{T0+2*i}:{T0+2*i+1}], v[{T0+2*i}:{T0+2*i+1}], s[24:25]" for i in range(16)]
CHK0 = [f"v_cmp_nlt_f32 vcc, s57, v{RM}"]
CHK1 = "s_or_b64 s[42:43], vcc, s[38:39]"
def check(tag, scl):
    return [f"v_cmp_class_f32 s[40:41], v{T0}, s58"] + scl + ["s_or_b64 s[42:43], s[42:43], s[40:41]", f"s_cbranch_scc1 {tag}", f"{tag}_RET:"]
OCV = [f"v_cvt_pk_bf16_f32 v{T0+i}, v{T0+2*i}, v{T0+2*i+1}" for i in range(16)]
OCON = ["v_mbcnt_lo_u32_b32 v11, -1, 0", "v_mbcnt_hi_u32_b32 v11, -1, v11", "v_and_or_b32 v8, v11, 31, s45", "v_lshrrev_b32 v9, 3, v11", "v_mad_u32_u24 v8, v8, s55, v1",
        "v_mul_u32_u24 v9, s47, v9", "v_and_b32 v11, 7, v11", "v_add_u32 v9, s46, v9", "v_lshlrev_b32 v11, 4, v11", "v_add_u32 v10, v9, v11"]
OIW = f"ds_write_b32 v8, v{OA+2} offset:{L_SPL+64}"
OSW = [f"ds_write_b128 v{OA}, v[{T0+4*k}:{T0+4*k+3}] offset:{L_SPL+16*k}" for k in range(4)]
OSR = [f"ds_read2_b32 v[{EE+2*k}:{EE+2*k+1}], v9 offset0:{32+72*k} offset1:{68+72*k}" for k in range(2)] + \
      [f"ds_read_b128 v[{T1+4*j}:{T1+4*j+3}], v10 offset:{144*j}" for j in range(4)]
OOR = [f"v_or_b32 v{EE+j}, v{EE+j}, v11" for j in range(4)]
OST = [f"buffer_store_dwordx4 v[{T1+4*j}:{T1+4*j+3}], v{EE+j}, s[8:11], 0 offen{OSTF}" for j in range(4)]
def xrow(d, e, t, base): return [f"v_and_b32 v{d}, s54, v{e}", f"v_and_b32 v{t}, 7, v{e}", f"v_lshl_add_u32 v{d}, v{d}, 7, v{base}", f"v_lshlrev_b32 v{t}, 4, v{t}", f"v_xor_b32 v{d}, v{d}, v{t}"]
def xrd(r): return [f"v_xor_b32 v{r[k]}, {16*k}, v{r[0]}" for k in range(1, 4)], [f"ds_read_b128 a[{AX+32+4*k}:{AX+35+4*k}], v{r[k]}" for k in range(4)]
def recs(d, p): return [f"ds_read2_b32 v[{d}:{d+1}], v{p} offset0:1 offset1:2", f"ds_read2_b32 v[{d+2}:{d+3}], v{p} offset0:3 offset1:4"]
LSET = ["s_max_u32 s20, s20, 2", "s_sub_u32 s37, s20, 3", "s_sub_u32 s20, s20, 1", "s_mov_b32 s19, 1"]

FI, FR = 224, 208
def kernel():
    K = NAME + "_kernel"
    lt = TP.bit_length() - 1
    assert L_W % 256 == 0 and L_X % 128 == 0
    I(".p2align 12", f".globl {K}", ".p2align 8", f".type {K},@function", f"{K}:")
    I("s_cmp_ge_u32 s2, 256", "s_cbranch_scc1 K_END0")
    stamp("start")
    I("s_load_dwordx16 s[64:79], s[0:1], 0", "s_load_dwordx4 s[80:83], s[0:1], 64", "s_load_dwordx2 s[12:13], s[0:1], 80")
    DST, SRC, EAR, AD, RK, P8, CP, WR = 64, 80, 96, 128, 144, 160, 176, 208
    if OPT["cw"]:
        I("s_getpc_b64 s[62:63]", "K_PC:", "s_bfe_u32 s3, s2, 0x30003", "v_and_b32 v2, 0xf8, v0", "v_add_lshl_u32 v41, v2, s3, 7",
          "v_min_u32 v2, K_SLOW0-K_PC, v41", "v_mov_b32 v40, v41", "global_load_dword v10, v2, s[62:63]")
    I("v_lshrrev_b32 v2, 6, v0", "v_and_b32 v6, 63, v0", "v_lshlrev_b32 v17, 2, v0", "v_readfirstlane_b32 s18, v2")
    I("v_mov_b32 v24, 0", f"ds_write_b32 v17, v24 offset:{L1_CNT}", "v_lshlrev_b32 v16, 4, v0", "v_lshlrev_b32 v4, 4, v6")
    I("s_and_b32 s84, s2, 7", "s_lshl_b32 s84, s84, 5", "s_lshr_b32 s3, s2, 3", "s_add_u32 s84, s84, s3")
    CID = "s84" if OPT["rm"] else "s2"; RID = "s84" if OPT["rr"] else "s2"
    I(f"s_mul_i32 s60, {CID}, {CH*4}", "s_mov_b32 s15, 0x20000", f"s_mov_b32 s14, {WS_SIZE}", f"s_mov_b32 s30, {E*4}", "s_mov_b32 s34, s30")
    for r in (31, 35, 43, 47, 51, 55, 7, 11): I(f"s_mov_b32 s{r}, s15")
    I(f"s_mov_b32 s42, {132*256}", f"s_movk_i32 s46, {128*128}", f"s_mov_b32 s54, {E*8}", f"s_mov_b32 s26, {N_NODES*128}", "s_mov_b32 s6, s26", "s_mov_b32 s10, s26")
    if OPT["il"]:
        I(f"s_lshr_b32 s19, {CID}, 5", f"s_mul_i32 s19, s19, {32*CH*4}", f"s_and_b32 s20, {CID}, 31", f"s_mul_i32 s21, s20, {(CH-3072)*4}", "s_add_u32 s21, s21, s19",
          f"s_add_u32 s21, s21, {3*131072 - 768}", "s_lshl_b32 s20, s20, 12", "s_add_u32 s60, s19, s20", "s_add_u32 s19, s60, 0x20000", "s_add_u32 s20, s60, 0x40000")
    else:
        I("s_add_u32 s19, s60, 4096", "s_add_u32 s20, s60, 8192", f"s_add_u32 s21, s60, {(3072-192)*4}")
    I("v_mov_b32 v20, -1", "v_mov_b32 v21, -1", "v_mov_b32 v22, -1", "v_mov_b32 v23, -1", "s_movk_i32 s58, 256", "s_mov_b32 s59, s15")
    NR = OPT["nr"]; NC = 1 << (NR-2)
    I(f"s_and_b32 s37, {CID}, {(1 << NR) - 1}", f"s_lshl_b32 s61, s18, {NR-2}", f"s_add_u32 s61, s61, {CID}", f"s_lshl_b32 s36, s61, {OPT['fs']}", f"s_add_u32 s36, s36, {FL_OFF}", "s_lshl_b32 s61, s61, 10")
    I("s_mul_i32 s16, s84, 12800051", "s_add_u32 s16, s16, 0xffff", "s_add_u32 s17, s16, 12800051", "s_lshr_b32 s16, s16, 16", "s_lshr_b32 s17, s17, 16",
      f"s_min_u32 s17, s17, {N_NODES}", "s_sub_u32 s17, s17, s16", "s_mov_b32 s85, 85899")
    I("v_mov_b32 v29, 1", "v_lshlrev_b32 v18, 5, v0", "v_lshlrev_b32 v19, 3, v0", "v_lshlrev_b32 v43, 2, v6")
    I("v_subrev_u32 v45, 192, v0", f"v_cmp_gt_u32 vcc, {CH-3072}, v45", f"v_mov_b32 v45, {hex(BIG)}", "s_mov_b32 s39, 0x05040100", "v_cndmask_b32 v45, v45, v24, vcc")
    I(f"v_lshrrev_b32 v42, {lt-4}, v6", f"v_lshlrev_b32 v42, {lt+8}, v42", f"v_and_b32 v37, {TP-1}, v4", "v_add_u32 v42, v42, v37")
    I("v_lshrrev_b32 v1, 5, v6", "v_bfe_u32 v52, v6, 2, 2", "v_and_b32 v53, 3, v6", "v_bfe_u32 v54, v6, 4, 1",
      "v_lshlrev_b32 v55, 3, v53", "v_lshl_add_u32 v55, v54, 5, v55",
      "v_lshl_add_u32 v56, v52, 8, v55", "v_lshl_add_u32 v60, v1, 10, v56", f"v_add_u32 v60, {L_S}, v60",
      "v_lshl_add_u32 v56, v1, 13, v56", "v_lshl_add_u32 v56, v52, 6, v56", f"v_add_u32 v56, {L_W}, v56",
      "v_xor_b32 v57, 64, v56", "v_xor_b32 v58, 0x80, v56", "v_xor_b32 v59, 0xc0, v56",
      "v_lshl_add_u32 v61, v52, 6, v55", "v_lshl_add_u32 v61, v1, 8, v61", f"v_add_u32 v61, {L_S + 2048}, v61",
      "v_and_b32 v55, 1, v53", "v_lshlrev_b32 v55, 6, v55", "v_lshl_add_u32 v55, v54, 4, v55", "v_lshrrev_b32 v53, 1, v53", "v_lshl_add_u32 v55, v53, 3, v55",
      "v_lshl_add_u32 v62, v52, 7, v55", "v_lshl_add_u32 v62, v1, 9, v62", f"v_add_u32 v62, {L_W2}, v62",
      "v_and_b32 v52, 1, v52", "v_lshl_add_u32 v63, v52, 5, v55", "v_lshl_add_u32 v63, v1, 8, v63", f"v_add_u32 v63, {L_S + 2560}, v63",
      "v_lshlrev_b32 v1, 6, v1")
    I("s_waitcnt lgkmcnt(0)")
    if OPT.get("probe"):
        base = {"x": 64, "ea": 66, "src": 68, "dst": 70, "out": 80, "ws": 12, "none": 64}[OPT["probe"]]
        I(f"s_mov_b64 s[28:29], s[{base}:{base+1}]", "s_memrealtime s[96:97]", "s_waitcnt lgkmcnt(0)")
        if OPT["probe"] != "none":
            for i, r in enumerate(("s60", "s19", "s20")): I(f"buffer_load_dwordx4 v[{DST+4*i}:{DST+4*i+3}], v16, s[28:31], {r} offen")
        I("s_waitcnt vmcnt(0)", "s_memrealtime s[94:95]", "s_waitcnt lgkmcnt(0)", "s_sub_u32 s94, s94, s96", "s_mul_i32 s94, s94, 10", "s_add_u32 s100, s100, s94", "s_cmp_lg_u32 s61, 1")
    I("s_mov_b64 s[28:29], s[70:71]")
    if OPT["wso"]: I(f"s_add_u32 s12, s12, {OPT['wso'] << 20}", "s_addc_u32 s13, s13, 0", "s_cmp_lg_u32 s61, 1")
    so = ("s60", "s19", "s20")
    def dstld():
        for i in range(3): I(f"buffer_load_dwordx4 v[{DST+4*i}:{DST+4*i+3}], v16, s[28:31], {so[i]} offen")
        I(f"buffer_load_dword v{DST+12}, v17, s[28:31], s21 offen", "s_mov_b64 s[32:33], s[68:69]")
    def clears():
        I("s_cmp_lg_u32 s37, 0", "s_cbranch_scc1 R_NOT1")
        for i in range(NC): I(*([f"s_add_u32 s61, s61, 4096"] if i and i % 4 == 0 else []), f"buffer_store_dwordx4 v[20:23], v4, s[12:15], s61 offen offset:{1024*(i&3)} sc1")
        I(f"s_mov_b64 exec, {hex((1 << (NC << (OPT['fs']-4))) - 1)}", "buffer_store_dwordx4 v[20:23], v4, s[12:15], s36 offen sc1", "s_mov_b64 exec, -1", "R_NOT1:")
    if OPT["cpos"] == 0: clears()
    dstld()
    if OPT["cpos"] == 1: clears()
    stamp("issued", lvl=2)
    def tlbwarm():
        I(f"v_and_b32 v40, {OPT['tm']}, v6", "s_cmp_eq_u32 s18, 1", "s_cbranch_scc1 T_1", "s_cmp_eq_u32 s18, 2", "s_cbranch_scc1 T_2", "s_cmp_eq_u32 s18, 3", "s_cbranch_scc1 T_3")
        I("v_mul_u32_u24 v40, 100000, v40", "global_load_dword v10, v40, s[64:65]", "global_load_dword v10, v24, s[72:73]", "s_branch T_E")
        I("T_1:", f"v_mul_u32_u24 v40, {4*CHS*8}, v40", f"v_add_u32 v40, {EA_OFF + 3*CHS*8 + CHS*8 - 128}, v40", "global_load_dword v10, v40, s[12:13]", "global_load_dword v10, v24, s[82:83]", "s_branch T_E")
        I("T_2:", f"v_mul_u32_u24 v40, {4*CHS*4}, v40", f"v_add_u32 v40, {KEY_OFF + CHS*4 - 128}, v40", "global_load_dword v10, v40, s[12:13]", "global_load_dword v10, v24, s[76:77]", "s_branch T_E")
        I("T_3:", "v_and_b32 v40, 1, v6", "v_mul_u32_u24 v40, 194, v40", "v_add_lshl_u32 v40, s16, v40, 7", "global_load_dword v10, v24, s[74:75]", "global_load_dword v10, v24, s[78:79]", "global_load_dword v10, v40, s[80:81]", "T_E:")
        vm.extend(["tl", "tl"])
    vm.append("dst")
    def wwarm():
        I("s_mov_b64 s[40:41], s[72:73]", "s_mov_b64 s[44:45], s[76:77]")
        I("s_cmp_eq_u32 s18, 0", "s_cselect_b64 s[48:49], s[74:75], s[78:79]", "s_cselect_b32 s50, 2, 1", "s_lshl_b32 s50, s50, 7", "s_mov_b32 s3, 0x8000")
        if OPT["ww"] in (1, 2): VM("ww", "buffer_load_dword v10, v41, s[40:43], 0 offen", "buffer_load_dword v10, v41, s[44:47], 0 offen")
        if OPT["ww"] < 3: VM("ws", f"buffer_load_dword v{WR+32}, v17, s[40:43], s3 offen", f"buffer_load_dword v{WR+33}, v43, s[48:51], 0 offen")
    if OPT["ww"] == 1: wwarm()
    if OPT["tl"] == 3: tlbwarm()
    for i in range(3): VM("src", f"buffer_load_dwordx4 v[{SRC+4*i}:{SRC+4*i+3}], v16, s[32:35], {so[i]} offen")
    VM("src", f"buffer_load_dword v{SRC+12}, v17, s[32:35], s21 offen", "s_barrier")
    if OPT["tl"] == 1: tlbwarm()
    if OPT["ww"] != 1: wwarm()
    I("s_mov_b64 s[52:53], s[66:67]")
    for r in ("s60", "s19", "s20", "s21"): I(f"s_lshl_b32 {r}, {r}, 1")
    el = []
    for i in range(3): el += [f"buffer_load_dwordx4 v[{EAR+8*i}:{EAR+8*i+3}], v18, s[52:55], {so[i]} offen", f"buffer_load_dwordx4 v[{EAR+8*i+4}:{EAR+8*i+7}], v18, s[52:55], {so[i]} offen offset:16"]
    el.append(f"buffer_load_dwordx2 v[{EAR+24}:{EAR+25}], v19, s[52:55], s21 offen")
    up = OPT["up"]
    I("v_mov_b32 v25, 0", "v_mov_b32 v26, 0", "v_mov_b32 v27, 0", f"v_add_u32 v5, {L_NODE}, v16")
    for i in range(10): VM("ea", f"ds_write_b128 v5, v[24:27] offset:{4096*i}", *(el[i-10+up:i-9+up] if i >= 10-up else []))
    if OPT["tl"] == 2: tlbwarm()
    I("v_mov_b32 v28, 0x7a0000ff",
      "v_cmp_eq_u32 vcc, 2, v2", f"ds_write_b32 v17, v28 offset:{L_TBL}", f"v_mov_b32 v28, {hex(BIG)}", "v_cndmask_b32 v3, v24, v28, vcc",
      f"ds_write_b32 v17, v3 offset:{L_H1}", f"ds_write_b32 v17, v28 offset:{L_TB2}")
    I("v_and_b32 v3, 0x7c, v43", f"ds_write_b32 v3, v20 offset:{L1_KEY + CH*4}")
    I(
      "s_mov_b64 s[4:5], s[64:65]", "s_mov_b64 s[8:9], s[80:81]")
    I(f"s_mul_i32 s3, {CID}, {CHS*4}", f"s_add_u32 s3, s3, {KEY_OFF}", "s_add_u32 s28, s12, s3", "s_addc_u32 s29, s13, 0", f"s_movk_i32 s30, 12672")
    I(f"s_mul_i32 s3, {CID}, {CHS*8}", f"s_add_u32 s3, s3, {EA_OFF}", "s_add_u32 s32, s12, s3", "s_addc_u32 s33, s13, 0", f"s_movk_i32 s34, 25216")
    I("s_lshl_b32 s38, s18, 12", f"s_add_u32 m0, s38, {L_W2}", "s_mov_b64 s[56:57], s[82:83]")
    if OPT["cpos"] == 1: I("s_cmp_lg_u32 s37, 0", f"s_waitcnt vmcnt({vw('dst')+NC+1})", "s_cbranch_scc0 R_W")
    I(f"s_waitcnt vmcnt({vw('dst')})", "R_W:")
    stamp("dst", lvl=2)
    for i in range(13):
        I(f"v_mul_u32_u24 v{AD+i}, s85, v{DST+i}", f"v_lshlrev_b32_sdwa v{AD+i}, 2, v{AD+i} dst_sel:DWORD dst_unused:UNUSED_PAD src0_sel:DWORD src1_sel:BYTE_3")
        if i == 12: I(f"v_or_b32 v{AD+i}, v45, v{AD+i}")
        I(f"ds_add_rtn_u32 v{RK+i}, v{AD+i}, v29 offset:{L1_CNT}")
        if i >= 6 + up: VM("ea", el[i-6])
    XT = ["v_lshrrev_b32 v11, 3, v0", "v_min_u32 v11, 24, v11", "v_lshlrev_b32 v11, 10, v11", "s_lshl_b32 s3, s16, 7", "buffer_load_dword v10, v11, s[4:7], s3 offen"]
    if OPT["xt"] == 1: VM("xt", *XT)
    I("s_lshl2_add_u32 s37, s37, s18", "s_cmp_eq_u32 s18, 0", "s_waitcnt " + (f"vmcnt({vw('dst')}) " if OPT["hs"] == "A" else "") + "lgkmcnt(0)", "s_barrier")
    stamp("barA", lvl=3)
    HINT = ["s_cmp_lg_u32 s37, 3", "s_cbranch_scc1 K_NOH", f"s_lshr_b32 s3, {CID}, {NR}", "s_and_b32 s3, s3, 3", "s_lshl_b32 s3, s3, 6",
            "s_mov_b64 exec, 1", "buffer_atomic_add v29, v24, s[56:59], s3 offen", "s_mov_b64 exec, -1", "K_NOH:"]
    perm = [f"v_perm_b32 v{DST+i}, v{SRC+i}, v{DST+i}, s39" for i in range(13)]
    I("s_cbranch_scc1 K_SCAN")
    I("s_cmp_eq_u32 s18, 1", "s_cbranch_scc1 PG1", "s_cmp_eq_u32 s18, 2", "s_cbranch_scc1 PG2", *(HINT if OPT["hs"] == "A" else []), "s_branch PG3")
    I("K_SCAN:", f"ds_read_b128 v[32:35], v4 offset:{L1_CNT}", "s_waitcnt lgkmcnt(0)")
    I("v_add_u32 v38, v32, v33", "v_add_u32 v39, v38, v34", "v_add_u32 v41, v39, v35", "v_mov_b32 v36, v41")
    scan64(36)
    I("v_sub_u32 v36, v36, v41", "v_add_u32 v37, v36, v32", "v_add_u32 v38, v36, v38", "v_add_u32 v39, v36, v39")
    I(f"ds_write_b128 v4, v[36:39] offset:{L1_BASE}")
    for i in range(4): I(f"v_lshl_or_b32 v{32+i}, v{32+i}, 16, v{36+i}")
    I("s_waitcnt lgkmcnt(0)", "K_WARM_RET:", "K_NOSCAN:", *([f"s_waitcnt vmcnt({vw('dst')})"] if OPT["hs"] == "B" else []), "s_barrier")
    stamp("barB", lvl=3)
    wl = [[f"s_movk_i32 s3, {4096*i}", f"buffer_load_dwordx4 v[{WR+4*i}:{WR+4*i+3}], v16, s[40:43], s3 offen"] for i in range(8)]
    wl += [[f"buffer_load_dwordx4 v4, s[44:47], s38 offen offset:{1024*i} lds"] for i in range(4)]
    nw = {0: (8, 0, 4), 1: (4, 4, 4), 2: (0, 8, 4), 3: (0, 12, 0), 4: (4, 8, 0)}[OPT["wpos"]]
    for i in range(13): I(f"ds_read_b32 v{AD+i}, v{AD+i} offset:{L1_BASE}")
    if OPT["hs"] == "A": I("s_cmp_lg_u32 s37, 3", f"s_waitcnt vmcnt({vw('src')+1})", "s_cbranch_scc0 K_SW")
    I(f"s_waitcnt vmcnt({vw('src')})", "K_SW:")
    WS = ["s_mov_b32 s3, 0x8000", f"buffer_load_dword v{WR+32}, v17, s[40:43], s3 offen", f"buffer_load_dword v{WR+33}, v43, s[48:51], 0 offen"]
    if OPT["ww"] >= 3: VM("ww", "buffer_load_dword v10, v40, s[40:43], 0 offen", "buffer_load_dword v10, v40, s[44:47], 0 offen")
    if OPT["ww"] == 3: VM("ws", *WS)
    if OPT["ww"] == 4: wl[7] = wl[7] + WS
    if OPT["xt"] == 4: VM("xt", *XT)
    I(*perm)
    if OPT["hs"] == "B": I(*HINT)
    for i in range(13):
        if i in (0, 6): I(f"s_waitcnt lgkmcnt({7 if i == 0 else 6})")
        I(f"v_add_lshl_u32 v{AD+i}, v{AD+i}, v{RK+i}, 2")
        if i == 12: I(f"v_or_b32 v{AD+i}, v45, v{AD+i}")
        I(f"ds_write_b32 v{AD+i}, v{DST+i} offset:{L1_KEY}")
        if i >= 13 - nw[0]: VM("w", *wl.pop(0))
    I("s_waitcnt lgkmcnt(0)", "s_barrier")
    stamp("barC", lvl=2)
    if OPT["hs"] == "C": I(*HINT)
    for i in range(4): I(f"ds_read_b128 v[{CP+4*i}:{CP+4*i+3}], v16 offset:{L1_KEY+4096*i}")
    for i in range(13): I(f"v_lshlrev_b32 v{P8+i}, 1, v{AD+i}")
    for i in range(4): VM("kst", f"s_movk_i32 s3, {4096*i}", f"s_waitcnt lgkmcnt({3-i})", f"buffer_store_dwordx4 v[{CP+4*i}:{CP+4*i+3}], v16, s[28:31], s3 offen sc1")
    TABLD = "buffer_load_dword v8, v3, s[12:15], s36 offen sc1"
    TABCMP = ["v_cmp_eq_u32 vcc, -1, v8"]
    TABA = [f"s_lshr_b32 s36, s84, {lt-2}", f"s_lshl_b32 s36, s36, {lt+8}", f"s_and_b32 s3, s84, {TP//4-1}", "s_lshl2_add_u32 s36, s3, s36"]
    I(*TABA); I(f"v_lshlrev_b32 v3, {lt}, v0")
    I(f"s_lshl_b32 s60, {CID}, {lt}", f"s_lshl_b32 s61, {CID}, {OPT['fs']}", f"v_lshlrev_b32 v41, {OPT['fs']}, v0", f"s_add_u32 s61, s61, {FL_OFF}")
    I(f"s_mov_b32 s24, {NLOG2E}", f"s_mov_b32 s25, {NLOG2E}", "s_mov_b32 s27, 0xffff0000", "v_and_b32 v5, 0x300, v16", "v_lshrrev_b32 v5, 2, v5", "v_xor_b32 v5, v5, v16", f"v_add_u32 v5, {L_W}, v5")
    I(f"v_lshl_add_u32 v7, v2, 8, v17", f"v_add_u32 v7, {L_S + 2048}, v7", f"v_add_u32 v9, {L_S}, v17")
    I("s_lshl_b32 s23, s18, 11", "v_and_b32 v48, 0x380, v4", "v_bfe_u32 v49, v6, 2, 1", "v_lshl_add_u32 v48, v49, 10, v48", "v_and_b32 v30, 48, v4",
      "v_lshl_add_u32 v48, v30, 1, v48", "v_add_u32 v48, s23, v48", "v_add_u32 v49, 8, v48", "v_add_u32 v50, 16, v48", "v_add_u32 v51, 24, v48",
      f"s_mul_i32 s22, s16, {NS}", f"s_sub_u32 s22, {L_NODE}, s22", f"v_mov_b32 v28, {NS}",
      "v_and_or_b32 v31, v4, 16, 2.0", f"v_mul_u32_u24 v44, {CHS}, v0", "v_and_b32 v26, 0x70, v4", "v_add_u32 v27, 0x80000000, v30",
      "v_lshrrev_b32 v46, 3, v0", "v_lshlrev_b32 v47, 4, v46", "v_xor_b32 v47, v47, v4", "v_and_b32 v47, 0x70, v47", "v_add_u32 v46, s16, v46", "v_lshl_add_u32 v55, v46, 7, v47",
      "s_lshl_b32 s62, s18, 10", f"s_add_u32 s62, s62, {L_X}", "s_cmp_eq_u32 s18, 0", "s_mov_b32 s63, 0x3f000", f"s_cselect_b32 s63, {L_X + 6*4096}, s63")
    HLD = "buffer_load_dword v20, v43, s[56:59], s37 offen sc1"
    HCMP = "v_cmp_lt_u32 vcc, v20, v22"
    I("v_and_b32 v22, 0xcf, v0", "v_cmp_eq_u32 vcc, 0x80, v22", "s_cmp_eq_u32 s18, 2", "s_cselect_b32 s37, 0, 0x1000", f"v_cndmask_b32_e64 v22, 0, {64 >> NR}, vcc")
    if OPT["xt"] == 2: VM("xt", *XT)
    stamp("kout", lvl=3)
    xd = [[f"s_add_u32 m0, s62, {4096*i}" if i < 6 else "s_mov_b32 m0, s63", "v_add_u32 v55, 0x1000, v55" if i else "s_nop 0",
           "buffer_load_dwordx4 v55, s[4:7], 0 offen lds"] for i in range(7)]
    KEY, O4, O8 = 64, 170, 160
    F3LD = "buffer_load_dword v9, v41, s[12:15], s52 offen sc1"
    def eadma(o, base, imm): return [f"s_add_u32 m0, {base}, {imm}", "s_nop 0", f"buffer_load_dwordx4 v{o}, s[12:15], s51 offen sc1 lds"]
    ea = [eadma(O8+n, "s23", STG0 + 8192*(n>>1) + 1024*(n&1)) for n in range(10)]
    def plan(p): return {x[:-1]: int(x[-1], 16) for x in p.split(".")}
    xs, es = plan(OPT["xs"]), plan(OPT["es"])
    assert sum(xs.values()) == 7 and sum(es.values()) == 10
    def hook(h):
        if OPT["est"] == h:
            for i in range(7): VM("est", f"s_movk_i32 s3, {4096*i}", *([f"s_waitcnt lgkmcnt({6-i})"] if h == "d" else []), f"buffer_store_dwordx4 v[{CP+4*i}:{CP+4*i+3}], v16, s[32:35], s3 offen sc1")
        if OPT["f3l"] == h: VM("f3", F3LD)
        for k in range(xs.get(h, 0)): VM("x", *xd.pop(0))
        if es.get(h) and len(ea) == 10:
            I(f"s_waitcnt vmcnt({vw('f3')})", "v_cmp_eq_u32 vcc, -1, v9", "s_cbranch_vccnz K_F3", "K_F3_RET:", "s_cmp_lg_u32 s20, 0", "s_cbranch_scc1 K_MEA", "K_MEA_RET:")
            stamp("f3", lvl=3)
        for k in range(es.get(h, 0)): VM("eb", *ea.pop(0))
    def bar(n, extra=None):
        w = [vw(t) for t in ([extra] if extra else []) + (["est"] if str(OPT["f3s"]) == n else [])]
        if str(OPT["f3s"]) == n: I("s_cmp_lg_u32 s18, 1")
        I("s_waitcnt " + (f"vmcnt({min(w)}) " if w else "") + "lgkmcnt(0)", "s_barrier")
        if str(OPT["f3s"]) == n: I("s_cbranch_scc1 K_NOF3", "s_mov_b64 exec, 1", "buffer_store_dword v24, v24, s[12:15], s61 offen sc1", "s_mov_b64 exec, -1", "K_NOF3:")
    for i in range(13):
        if i in (0, 4, 8): I(f"s_waitcnt vmcnt({vw('ea', {0: 5, 4: 3, 8: 0}[i])})")
        if i == 8: stamp("ea_in", lvl=3)
        if i == OPT["hl"] and OPT["hs"] != "N": VM("kst", HLD)
        I(f"ds_write_b64 v{P8+i}, v[{EAR+2*i}:{EAR+2*i+1}] offset:{L1_EA}")
        if i >= 13 - nw[1]: VM("w", *wl.pop(0))
    hook("sc")
    I(f"s_waitcnt vmcnt({vw('kst')})")
    if OPT["hs"] != "N": I(HCMP, "s_cbranch_vccnz K_H", "K_H_RET:")
    I("s_cmp_lg_u32 s18, 0", "s_waitcnt lgkmcnt(0)", "s_barrier")
    stamp("barD", lvl=2)
    I("s_cbranch_scc1 K_NOTAB", "buffer_store_dwordx4 v[32:35], v42, s[12:15], s60 offen sc1", "K_NOTAB:")
    for i in range(7): I(f"ds_read_b128 v[{CP+4*i}:{CP+4*i+3}], v16 offset:{L1_EA+4096*i}")
    I("s_branch PG1E")
    if OPT["hs"] != "N": repoll("K_H", HLD, HCMP)
    I(".p2align 12", "PG1:", "s_branch K_WARM_RET", "s_nop 0", "PG1E:")
    hook("d")
    I(f"s_add_u32 m0, s38, {L_W2}")
    while len(wl) > 4: VM("w", *wl.pop(0))
    if OPT["xt"] == 3: VM("xt", *XT)
    stamp("eaout", lvl=3)
    I("s_cmp_lg_u32 s18, 0", f"s_waitcnt vmcnt({vw('w') + (1 if nw[0]+nw[1] >= 8 else 0)})", "s_cbranch_scc0 K_WW", f"s_waitcnt vmcnt({vw('w')})", "K_WW:", ".p2align 3")
    for i in range(34):
        t = 64 + 2*(i % 4) if i < 32 else 72 + 2*(i-32)
        I(f"v_lshlrev_b32 v{t}, 16, v{WR+i}", f"v_and_b32 v{t+1}, s27, v{WR+i}", f"v_pk_mul_f32 v[{t}:{t+1}], v[{t}:{t+1}], s[24:25]", f"v_cvt_pk_bf16_f32 v{WR+i}, v{t}, v{t+1}")
        if i % 4 == 3: I(f"ds_write_b128 v5, v[{WR+i-3}:{WR+i}] offset:{1024*(i-3)}")
        if i in (17, 21, 25, 29) and wl: VM("w2", *wl.pop(0))
    I(f"ds_write_b32 v9, v{WR+32}", f"ds_write_b32 v7, v{WR+33}")
    for i in (32, 33):
        t = 72 + 2*(i-32)
        I(f"v_lshlrev_b32 v64, 16, v{WR+i}", f"v_and_b32 v65, s27, v{WR+i}", f"v_sub_f32 v64, v{t}, v64", f"v_sub_f32 v65, v{t+1}, v65", f"v_cvt_pk_bf16_f32 v{66+i-32}, v64, v65")
    I("ds_write_b32 v9, v66 offset:1024", "ds_write_b32 v7, v67 offset:256")
    I(*[f"s_mov_b32 s{40+i}, {STG0 + 8192*i}" for i in range(5)])
    I(f"s_mov_b32 s24, {NLN2}", f"s_mov_b32 s25, {NLN2}", f"s_mov_b32 s50, {KEY_OFF}", f"s_mov_b32 s51, {EA_OFF}", f"s_mov_b32 s52, {FL_OFF}")
    for w in range(3): I(f"s_cmp_eq_u32 s18, {w+1}", f"s_cbranch_scc1 PG{w+4}")
    I("K_WARM_RET2:")
    stamp("wdone", lvl=3)
    tr = []
    for f in range(16):
        for jh in range(2): tr.append(f"ds_read_b64_tr_b16 a[{AW2+4*f+2*jh}:{AW2+4*f+2*jh+1}], v62 offset:{(16*(f>>1) + 8*jh)*128 + 32*(f&1)}")
    for f in range(32):
        for jh in range(2): tr.append(f"ds_read_b64_tr_b16 a[{AW1A+4*f+2*jh}:{AW1A+4*f+2*jh+1}], v{56+((f>>2)&3)} offset:{(64*(f>>4) + 8*(f&3) + 4*jh)*256}")
    for b in range(4): tr.append(f"ds_read_b64_tr_b16 a[{AW1C+2*b}:{AW1C+2*b+1}], v60 offset:{64*b}")
    tr += [f"ds_read_b64_tr_b16 a[{AB1}:{AB1+1}], v61", "ds_read_b64_tr_b16 v[14:15], v63"]
    tr2, tr = tr[:32], tr[32:]
    if OPT["est"] == "d": I(f"s_waitcnt vmcnt({vw('est', OPT['tw'])})")
    if OPT["ntr0"] < 0: VM("tab", TABLD)
    hook("w")
    bar("E")
    stamp("barE", lvl=2)
    if OPT["ntr0"] >= 0: I(*tr[:OPT["ntr0"]]); tr = tr[OPT["ntr0"]:]; VM("tab", TABLD)
    I(*tr[:OPT["ntr"]]); tr = tr[OPT["ntr"]:]
    if str(OPT["f3s"]) == "E" and OPT["ntr0"] < 0: I(f"s_waitcnt vmcnt({vw('tab')+1})", "s_cbranch_scc0 K_TW")
    I(f"s_waitcnt vmcnt({vw('tab')})", "K_TW:")
    I(*TABCMP); I("s_cbranch_vccnz K_TAB", "K_TAB_RET:")
    stamp("tab", lvl=2)
    I("v_and_b32 v33, 0xffff, v8", "v_add_lshl_u32 v32, v44, v33, 2", "v_lshrrev_b32 v33, 16, v8", "v_subrev_u32 v33, 16, v33")
    AD, RK = 96, 128
    def compact(dst):
        I("v_cmp_lt_i32 vcc, 0, v33", "v_cmp_lt_i32 s[46:47], 8, v33", "v_cmp_lt_i32 s[48:49], 16, v33", "v_mbcnt_lo_u32_b32 v35, vcc_lo, 0", "v_mbcnt_hi_u32_b32 v35, vcc_hi, v35",
          "v_mbcnt_lo_u32_b32 v35, s46, v35", "v_mbcnt_hi_u32_b32 v35, s47, v35", "v_mbcnt_lo_u32_b32 v35, s48, v35", "v_mbcnt_hi_u32_b32 v35, s49, v35",
          "v_cmp_gt_u32 s[36:37], 30, v35", "v_lshlrev_b32 v35, 3, v35", "v_add_u32 v45, 8, v35", "v_add_u32 v52, 16, v35", "v_add_u32 v40, 32, v34", "v_add_u32 v53, 64, v34",
          "s_and_b64 vcc, vcc, s[36:37]", "s_and_b64 s[46:47], s[46:47], s[36:37]", "s_and_b64 s[48:49], s[48:49], s[36:37]",
          "v_cndmask_b32 v35, 4, v35, vcc", "v_cndmask_b32 v45, 4, v45, s[46:47]", "v_cndmask_b32 v52, 4, v52, s[48:49]",
          f"ds_permute_b32 v{dst}, v35, v34", "ds_permute_b32 v40, v45, v40", "ds_permute_b32 v53, v52, v53",
          "v_cndmask_b32_e64 v35, 0, 24, vcc", "v_sub_u32 v33, v33, v35", "v_lshl_add_u32 v34, v35, 2, v34")
    def units(k, o4, o8):
        return ["s_waitcnt lgkmcnt(0)", "v_or3_b32 v36, v36, v40, v53", "v_lshlrev_b32 v39, 1, v36", "s_nop 0",
                f"v_add_u32_dpp v{o4}, v36, v31 quad_perm:[0,0,2,2] row_mask:0xf bank_mask:0xf",
                f"buffer_load_dwordx4 v[{k}:{k+3}], v{o4}, s[12:15], s50 offen sc1",
                f"v_add_u32_dpp v{o8}, v39, v27 quad_perm:[0,0,0,0] row_mask:0xf bank_mask:0xf",
                f"v_add_u32_dpp v{o8+1}, v39, v27 quad_perm:[2,2,2,2] row_mask:0xf bank_mask:0xf", f"v_bfe_i32 v{o4}, v{o4}, 30, 1"]
    def octets(src, its, off, o8):
        I(f"v_lshlrev_b32 v39, 1, v{src}", f"v_lshlrev_b32 v37, 1, v{src}", f"v_lshlrev_b32 v38, 1, v{src}", "s_nop 0",
          "v_mov_b32_dpp v37, v39 row_shr:4 row_mask:0xf bank_mask:0xa", "v_mov_b32_dpp v38, v39 row_shl:4 row_mask:0xf bank_mask:0x5", "s_nop 0")
        for n, i in enumerate(its):
            for h in range(2): I(f"v_add_u32_dpp v{o8+2*n+h}, v{37+h}, v{off} quad_perm:[{i},{i},{i},{i}] row_mask:0xf bank_mask:0xf")
    for i in range(4):
        VM(f"k{i}", f"v_add_u32_dpp v{O4+i}, v32, v30 quad_perm:[{i},{i},{i},{i}] row_mask:0xf bank_mask:0xf",
          f"buffer_load_dwordx4 v[{KEY+4*i}:{KEY+4*i+3}], v{O4+i}, s[12:15], s50 offen sc1")
    I(f"v_add_u32 v34, 0xc0000040, v32")
    compact(36)
    octets(32, range(4), 26, O8)
    VM("k4", *units(KEY+16, O4+4, O8+8))
    hook("k")
    I("v_and_b32 v244, 0x3c0, v4", "v_bfe_u32 v245, v6, 1, 1", "v_lshl_add_u32 v244, v245, 10, v244", "v_and_b32 v245, 1, v6",
      "v_lshl_add_u32 v244, v245, 5, v244", "v_add_u32 v244, s23, v244", "v_add_u32 v245, 8, v244", "v_add_u32 v246, 16, v244", "v_add_u32 v247, 24, v244")
    I(f"v_mul_u32_u24 v21, {NS}, v0", f"v_add_u32 v21, {L_NODE}, v21", "v_cmp_gt_u32 s[38:39], s17, v0")
    I("s_sub_u32 s27, 256, s17", "s_sub_u32 s19, s27, 32", "s_mov_b32 s20, 0")
    I(*tr)
    I("v_bfe_u32 v35, v6, 4, 1", "v_lshlrev_b32 v35, 4, v35", f"v_xor_b32 v{FI+1}, v35, v26")
    for j in range(1, 8): I(f"v_xor_b32 v{FI+1+2*j}, {32*(j&3)}, v{FI+1}")
    I("v_and_b32 v35, 3, v6", f"v_mul_u32_u24 v{FR}, 0x420, v35", "v_bfe_u32 v35, v6, 2, 3", f"v_lshl_add_u32 v{FR}, v35, 7, v{FR}", "v_bfe_u32 v35, v6, 3, 1",
      f"v_lshl_add_u32 v{FR}, v35, 4, v{FR}", f"v_xor_b32 v{FR}, v{FR}, v1", "s_lshl_b32 s45, s18, 13", f"s_add_u32 s45, s45, {L_W}", f"v_add_u32 v{FR}, s45, v{FR}")
    for k in range(1, 4): I(f"v_xor_b32 v{FR+k}, {16*k}, v{FR}")
    I("v_and_b32 v20, 31, v6", "s_lshl_b32 s3, s18, 7", "v_lshl_add_u32 v57, v20, 2, s3", "v_and_b32 v59, 0x38, v6", "v_lshl_add_u32 v59, v59, 1, s3",
      "s_sub_u32 s3, 896, s3", "v_lshl_add_u32 v58, v20, 2, s3")
    def phaseB(k, a, r, sreg, m=None):
        if m:
            for j in range(4): I(f"v_or_b32 v{k+j}, v{m}, v{k+j}")
        for j in range(4): I(f"v_mad_u32_u16 v{a+j}, v{k+j}, v28, s22")
        for j in range(4):
            I(f"ds_add_rtn_u32 v{r+j}, v{a+j}, v29",
              f"v_add_u32_sdwa v{k+j}, v{(244 if m else 48)+j}, s{sreg} dst_sel:WORD_0 dst_unused:UNUSED_PRESERVE src0_sel:DWORD src1_sel:DWORD")
    def phaseC(k, a, r):
        L = []
        for j in range(4): L += [f"v_min_u32 v{r+j}, {CAP-1}, v{r+j}", f"v_lshl_add_u32 v{a+j}, v{r+j}, 2, v{a+j}", f"ds_write_b32 v{a+j}, v{k+j} offset:4"]
        return L
    for i in range(5):
        if OPT["bk"] == i: I("s_barrier")
        I(f"s_waitcnt vmcnt({vw(f'k{i}')})")
        if i == 0: stamp("key0", lvl=2)
        hook(f"b{i}")
        phaseB(KEY+4*i, AD+4*i, RK+4*i, 40+i, O4+4 if i == 4 else None)
    I("v_cmp_lt_i32 vcc, 0, v33", "s_cbranch_vccnz K_MORE", "K_MORE_RET:", "s_branch PG2E")
    repoll("K_TAB", TABLD, "\n".join(TABCMP))
    I(".p2align 12", "PG2:", "s_branch K_WARM_RET")
    repoll("K_F3", F3LD, "v_cmp_eq_u32 vcc, -1, v9")
    I("PG2E:"); bar("1")
    stamp("bar1", lvl=2)
    I("s_mov_b64 exec, s[38:39]", "ds_read_b32 v20, v21", "s_mov_b64 exec, -1")
    hook("a1")
    I("s_waitcnt lgkmcnt(0)", "s_mov_b64 exec, s[38:39]")
    I(f"v_cmp_lt_u32 vcc, {CAP}, v20", "v_min_u32 v20, 63, v20", "v_sub_u32 v22, 63, v20", "v_lshlrev_b32 v22, 2, v22",
      f"ds_add_rtn_u32 v23, v22, v29 offset:{L_H1}")
    I("s_cbranch_vccz K_A1", f"ds_write_b32 v24, v29 offset:{L_FLAG}", "K_A1:")
    I("s_mov_b64 exec, -1")
    hook("a2"); bar("2")
    I(f"ds_read_b32 v25, v43 offset:{L_H1}")
    I(*phaseC(KEY, AD, RK))
    I("s_waitcnt lgkmcnt(4)", "v_mov_b32 v46, v25")
    scan64(46, phaseC(KEY+4, AD+4, RK+4))
    I("v_sub_u32 v46, v46, v25", "ds_bpermute_b32 v46, v22, v46")
    I("v_lshrrev_b32 v30, 1, v20", "v_cmp_lt_u32 s[36:37], 26, v20")
    hook("a3")
    I("s_waitcnt lgkmcnt(0)")
    I("v_add_u32 v23, v23, v46", "v_cmp_gt_u32 vcc, s19, v23", "v_lshlrev_b32 v33, 1, v23", "v_lshlrev_b32 v34, 2, v23",
      "v_cndmask_b32_e64 v31, 8, 10, vcc", "v_cndmask_b32 v31, v31, v30, s[36:37]")
    I("v_cmp_gt_u32 vcc, s27, v23", "v_cmp_gt_u32 s[36:37], v20, v31", "v_mov_b32 v35, 0xff", "v_sub_u32 v37, 63, v31",
      "s_and_b64 vcc, vcc, s[36:37]", "s_and_b64 vcc, vcc, s[38:39]")
    I("v_cndmask_b32 v32, 0, v31, vcc", "v_sub_u32 v32, v20, v32", "v_sub_u32 v36, 63, v32", "v_lshlrev_b32 v36, 2, v36", "v_lshlrev_b32 v37, 2, v37")
    I("s_mov_b64 exec, s[38:39]", f"ds_add_rtn_u32 v38, v36, v29 offset:{L_H2}")
    I("s_mov_b64 exec, vcc", f"ds_add_rtn_u32 v39, v37, v29 offset:{L_H2}", "v_add_lshl_u32 v47, s16, v0, 7", f"ds_write_b32 v34, v47 offset:{L_SN}")
    I("s_mov_b64 exec, -1", "v_cndmask_b32 v35, v35, v33, vcc")
    I("v_lshl_or_b32 v48, v35, 8, v32", "v_lshl_or_b32 v48, v48, 16, v0")
    I("v_or_b32 v33, 1, v33", "v_lshl_or_b32 v49, v33, 8, v31", "v_lshl_or_b32 v49, v49, 8, v32", "v_lshl_or_b32 v49, v49, 8, v0", "v_lshl_add_u32 v50, v32, 2, v21")
    I("s_mov_b64 s[46:47], vcc"); hook("a4"); bar("3")
    stamp("bar3", lvl=3)
    I(f"ds_read_b32 v25, v43 offset:{L_H2}"); I(*phaseC(KEY+8, AD+8, RK+8)); I("s_waitcnt lgkmcnt(4)", "v_mov_b32 v46, v25")
    scan64(46, phaseC(KEY+12, AD+12, RK+12))
    I("v_sub_u32 v46, v46, v25", "ds_bpermute_b32 v36, v36, v46", "ds_bpermute_b32 v37, v37, v46")
    I(*phaseC(KEY+16, AD+16, RK+16))
    I("s_waitcnt lgkmcnt(4)", "v_add_lshl_u32 v36, v36, v38, 2", "v_add_lshl_u32 v37, v37, v39, 2")
    o0 = L_TBL // 256
    I("s_mov_b64 exec, s[38:39]", f"ds_write2st64_b32 v36, v48, v21 offset0:{o0} offset1:{o0+4}", "s_mov_b64 exec, s[46:47]", f"ds_write2st64_b32 v37, v49, v50 offset0:{o0} offset1:{o0+4}",
      "s_mov_b64 exec, -1")
    hook("a5")
    sr = [f"ds_read_b128 a[{AX+4*k}:{AX+4*k+3}], v{34+(k&3)} offset:{4096*(k>>2)}" for k in range(8)]
    I("s_movk_i32 s53, 0x3f80", "s_movk_i32 s54, 0xff", f"s_movk_i32 s55, {SPL_S}", "s_mov_b32 s49, 0xffff", "s_movk_i32 s59, 128",
      f"s_mov_b32 s57, {f32(2.0**-100)}", "s_movk_i32 s58, 0x207", f"v_add_u32 v6, {L_X}, v1")
    I("s_mov_b32 s28, s4", "s_or_b32 s29, s5, 0x800000", f"s_mov_b32 s30, {N_NODES}")
    bar("4", "x")
    stamp("bar4", lvl=2)
    o0 = L_TBL // 256
    I(f"ds_read_b128 v[20:23], v59 offset:{L_TB2}", f"ds_read2st64_b32 v[26:27], v57 offset0:{o0} offset1:{o0+4}",
      f"ds_read_b32 v7, v58 offset:{L_TBL}", f"ds_read_b32 v8, v58 offset:{L_TB2}", f"ds_read_b32 v24, v24 offset:{L_FLAG}")
    for b in range(4): I(*onehot(EE+2*b, b))
    for k in range(4): I(f"v_mov_b32 v{34+k}, v{FR+k}")
    if not OPT["st2"]:
        I("s_waitcnt lgkmcnt(4)")
        for j in range(8): I(f"ds_read_u16 v{FI+2*j}, v{20+(j&3)} offset:{6 + 4*(j>>2)}")
        xx, xr = xrd((28, 29, 30, 31))
        I("s_waitcnt lgkmcnt(8)"); I(*xrow(28, 26, 29, 6)); I(*xx); I(*xr)
        I("s_waitcnt lgkmcnt(8)")
        fl = ["v_mov_b32 v5, v26", "v_mov_b32 v2, v27", "v_bfe_u32 v3, v26, 16, 8", "s_nop 0", "s_waitcnt lgkmcnt(4)", "v_cmp_ne_u32 vcc, 0, v24", "v_readfirstlane_b32 s20, v3", "s_nop 0"]
        for j in range(8):
            if j == 4: hook("s0")
            VM(f"s{j>>2}", f"s_add_u32 m0, s45, {1024*j}", fl[j], f"buffer_load_dwordx4 v[{FI+2*j}:{FI+2*j+1}], s[28:31], 0 idxen offen lds")
        assert not ea and not xd
        I(*recs(40, 2)); I(*recs(10, 8)); I(*xrow(9, 7, 29, 6))
        if OPT["stamp"]: I("s_mov_b32 s62, s20")
        I(*LSET)
        I("s_lshl_b32 s45, s18, 5", "s_add_u32 s45, s45, 128", f"s_mul_i32 s46, s18, {OST_W}", f"s_add_u32 s46, s46, {L_OST}", "s_movk_i32 s47, 576", f"s_mov_b32 s48, {L_SN}", "s_mov_b32 s27, 0xffff0000")
        I("s_waitcnt lgkmcnt(0)", "s_cbranch_vccnz K_SLOW0", eaddr(44, 40), eaddr(45, 41), eaddr(46, 42), eaddr(4, 43), xaddr(42), ".p2align 3")
        stamp("q1")
        q = sum([qchain(QQ+16*b, b, EE+2*b) for b in range(4)], [])
        I(*weave(q, [], [0]*20, {**{k: tr2[3*k:3*k+3] for k in range(11)}, 14: ["s_waitcnt vmcnt(4)", "s_barrier"], 15: sr[0:2], 16: sr[2:4], 17: [earead(0, 44), earead(1, 45)], 18: [earead(2, 46)]}))
    else:
        assert not ea and not xd
        xx, xr = xrd((28, 29, 30, 31))
        I("s_waitcnt lgkmcnt(3)")
        for j in range(4): I(f"ds_read_u16 v{FI+2*j}, v{20+j} offset:6")
        I(*xrow(28, 26, 29, 6)); I(*xx); I(*xr)
        for j in range(4): I(f"ds_read_u16 v{FI+8+2*j}, v{20+j} offset:10")
        def dma(j, f): return [f"s_add_u32 m0, s45, {1024*j}", f, f"buffer_load_dwordx4 v[{FI+2*j}:{FI+2*j+1}], s[28:31], 0 idxen offen lds"]
        I("s_waitcnt lgkmcnt(8)")
        for j, f in enumerate(["v_mov_b32 v5, v26", "v_mov_b32 v2, v27", "v_bfe_u32 v3, v26, 16, 8", "v_cmp_ne_u32 vcc, 0, v24"]): I(*dma(j, f))
        I("s_waitcnt lgkmcnt(0)", "s_cbranch_vccnz K_SLOW0", ".p2align 3")
        stamp("q1")
        q = sum([qchain(QQ+16*b, b, EE+2*b) for b in range(4)], [])
        late = ["s_lshl_b32 s45, s18, 5", "s_add_u32 s45, s45, 128", f"s_mul_i32 s46, s18, {OST_W}", f"s_add_u32 s46, s46, {L_OST}", "s_movk_i32 s47, 576", f"s_mov_b32 s48, {L_SN}", "s_mov_b32 s27, 0xffff0000"]
        ex = {0: recs(40, 2) + recs(10, 8), 1: ["v_readfirstlane_b32 s20, v3"] + xrow(9, 7, 29, 6), 2: tr2[0:6], 3: tr2[6:12],
              4: dma(4, "s_nop 0"), 5: dma(5, "s_nop 0"), 6: dma(6, "s_nop 0"), 7: dma(7, "s_nop 0"),
              8: ["s_waitcnt lgkmcnt(0)", eaddr(44, 40), eaddr(45, 41), eaddr(46, 42), eaddr(4, 43), xaddr(42)], 9: tr2[12:17], 10: tr2[17:23], 11: tr2[23:29],
              12: tr2[29:] + (["s_mov_b32 s62, s20"] if OPT["stamp"] else []) + LSET, 13: late,
              14: ["s_waitcnt vmcnt(4)", "s_barrier"], 15: sr[0:2], 16: sr[2:4], 17: [earead(0, 44), earead(1, 45)], 18: [earead(2, 46)]}
        I(*weave(q, [], [0]*20, ex)); I(".p2align 3")
    c = chain(NN, 0, 0, QQ)
    seg = ["s_waitcnt lgkmcnt(0)", "s_nop 0", c[0], xload(2, 0), c[1], xload(2, 1), c[2], xload(2, 2), c[3], xload(2, 3), c[4], xaddr(43), "s_nop 8", "s_nop 0"]
    for b in range(3): seg += weave(chain(NN+16*(b+1), b+1, 0, QQ+16*(b+1)), E0(b), (3,3,3,3,4), {0: ["s_waitcnt vmcnt(4)"], 1: sr[4:6], 2: sr[6:8], 3: [xload(0, 0)]} if b == 2 else None) + A0(b)
    seg += ["s_waitcnt lgkmcnt(0)", "s_barrier"] + weave(chain(T0, 0, 1, QQ), E0(3), (3,3,3,3,4), {3: [xload(0, 1)]}) + A0(3)
    I(*align8(seg))
    stamp("loop1")
    I("s_branch K_A0")
    def partA(t):
        cur = (1+t) % 3; prv = t % 3
        seg = []
        for b in range(3):
            tc = T0 + 16*(b % 2); tn = T0 + 16*((b+1) % 2)
            if b == 0: extra = {0: [f"ds_read_b32 v6, v2 offset:{4*(t+5)}"], 3: [xload(prv, 2)], 4: ["v_cmpx_lt_u32 vcc, s19, v3"]}
            elif b == 1: extra = {1: ["s_cmp_lt_i32 s19, s37"], 2: ["s_waitcnt lgkmcnt(0)"], 3: [xload(prv, 3)], 4: [xaddr(6)]}
            else: extra = {0: ["s_cselect_b32 s6, s26, 0"], 1: ["s_cmp_ge_u32 s19, s20"], 2: ["s_waitcnt vmcnt(4)"], 3: [earead(prv, 4)],
                           4: ["s_cbranch_scc1 K_EXIT" if t < 2 else "s_cbranch_scc0 K_LOOP"]}
            ms = chain(tn, b+1, cur, QQ+16*(b+1))
            if b < 2: seg += weave(ms, exps(tc), (3,3,3,3,4), extra) + pk3(b, tc)
            else: seg += weave(ms, exps(tc)[:12], (3,3,3,3,0), extra)
        return seg
    def partB(t):
        cur = (1+t) % 3; nxt = (2+t) % 3
        seg = [xload(cur, 0)] + exps(T0)[12:] + pk3(2, T0)
        seg += weave(chain(T0, 0, nxt, QQ), exps(T1), (3,3,3,3,4), {0: ["s_add_u32 s19, s19, 1"], 3: [xload(cur, 1)], 4: [eaddr(4, 6)] + (["v_add_u32 v2, 12, v2"] if t == 2 else [])}) + pk3(3, T1)
        return seg
    def loop(pg, ret, n, ex):
        I(".p2align 12", f"PG{pg}:", f"s_branch {ret}", "s_nop 0", f"K_LOOP{n}:")
        I(*align8(partB(2)))
        I(f"K_A{n}:")
        I(*[x.replace("K_EXIT", ex).replace("K_LOOP", f"K_LOOP{n}") for x in align8(partA(0) + partB(0) + partA(1) + partB(1) + partA(2))[:-1]])
        I(f"s_branch {ex}", f"K_EXIT{n}:")
    loop(3, "K_WARM_RET", 0, "K_MID")
    I(".p2align 12", "PG4:", "s_branch K_WARM_RET2", "s_nop 0", "K_MID:")
    stamp("exit1")
    OH = QQ+48
    def mix(c, g): return c[:4] + g + c[4:]
    def ms(n):
        nonlocal seg
        if OPT.get("ms"): I(*align8(seg)); seg = []; stamp(n)
    xx, xr = xrd((9, 4, 6, 2))
    seg = exps(T0)[12:] + pk3(2, T0) + ["s_mov_b64 s[60:61], exec", "s_mov_b64 exec, -1"] + exps(T1) + xx + ["s_mov_b32 s6, s26", xaddr(10), "s_waitcnt vmcnt(0)", LSET[3]]
    seg += xr + [xload(0, k) for k in range(4)] + ["s_mov_b64 exec, s[60:61]", "s_nop 0"] + pk3(3, T1) + ["s_mov_b64 exec, -1", "s_waitcnt lgkmcnt(0)"]
    ms("m1")
    if not OPT["srm"]:
        seg += spread(mix(qchain(QQ, 0, OH3), binit(LB)), [xaddr(11), "v_bfe_u32 v3, v7, 16, 8"] + lbinit(LB) + ["v_readfirstlane_b32 s20, v3"] + onehot(OH3, 0) + R(0) + M(0),
                      pre={1: [xload(1, 0), xload(1, 1)], 2: [xload(1, 2)], 3: [xload(1, 3)]}) + U(0)
        ms("m2")
        seg += spread(mix(qchain(QQ+16, 1, OH3+2), G(0)), V(0) + onehot(OH3+2, 1) + [eaddr(4, 10), eaddr(6, 11), eaddr(0, 12), "v_mov_b32 v2, v8"] + R(1) + M(1),
                      pre={2: ([f"s_mov_b32 s63, s20"] if OPT["stamp"] else []) + [LSET[0]], 3: [LSET[1]], 5: [LSET[2]], 4: [earead(0, 4), earead(1, 6), earead(2, 0)]}) + U(1)
        ms("m3")
        seg += spread(mix(qchain(QQ+32, 2, OH3), G(1)), V(1) + onehot(OH3, 2) + OCON[:8] + R(2) + M(2), pre={6: ["s_waitcnt vmcnt(4) lgkmcnt(0)"]}) + U(2)
        ms("m4")
        seg += spread(mix(chain(NN, 0, 0, QQ), G(2)), V(2) + OCON[8:] + dec2(LB) + R(3) + M(3)) + U(3)
        seg += spread(mix(chain(NN+16, 1, 0, QQ+16), G(3)), V(3) + onehot(OH3+2, 3) + [xaddr(12), eaddr(4, 13), "v_mov_b32 v5, v7"] + CHK0 + E0(0) + A1(0)[:OPT["a1"]], pre={5: [CHK1]}) + A0(0)[OPT["a1"]//2:]
        seg += check("K_RARE_A", SCL)
        ms("m6")
        q = qchain(QQ+48, 3, OH3+2); c = chain(NN+32, 2, 0, QQ+32)
        seg += spread(q[:4] + c[:1] + q[4:] + c[1:], OCV + E0(1), pre={0: [OIW], 2: [OSW[0]], 4: [OSW[1], xload(2, 0)], 6: [OSW[2], xload(2, 1)], 7: [OSW[3], xload(2, 2)], 8: [xload(2, 3)] + OSR}) + A0(1)
    ms("m7")
    e = E0(2); c = chain(NN+48, 3, 0, QQ+48)
    seg += [c[0], "s_waitcnt vmcnt(4) lgkmcnt(0)"] + OOR + [xaddr(13)] + e[:1] + [c[1], OST[0], OST[1], c[2], OST[2], OST[3], c[3], xload(0, 0)] + e[1:4] + [c[4]] + e[4:] + A0(2)
    seg += weave(chain(T0, 0, 1, QQ), E0(3), (3,3,3,3,4), {3: [xload(0, 1)]}) + A0(3)
    I(*align8(seg))
    stamp("loop2")
    I("s_branch K_A1X")
    loop(5, "K_WARM_RET2", "1X", "K_LAST")
    I(".p2align 12", "PG6:", "s_branch K_WARM_RET2", "s_nop 0", "K_LAST:")
    stamp("exit2")
    CCON = ["v_mbcnt_lo_u32_b32 v2, -1, 0", "v_mbcnt_hi_u32_b32 v2, -1, v2", "v_lshrrev_b32 v2, 3, v2", "v_lshl_add_u32 v2, s18, 3, v2",
            "v_mul_u32_u24 v4, s55, v2", "v_lshl_add_u32 v4, v4, 1, v11", "v_lshl_add_u32 v2, v2, 2, s48", "v_mov_b32 v12, 0"]
    if not OPT["srl"]:
        seg = exps(T0)[12:] + pk3(2, T0) + exps(T1) + pk3(3, T1) + ["s_mov_b64 exec, -1"] + lbinit(LB)
        seg += R(0)[:2] + weave(binit(LB), R(0)[2:], (4, 10)) + U(0) + V(0)
        for b in range(3): seg += weave(G(b), R(b+1), (3,3,3,7)) + U(b+1) + V(b+1)
        seg += spread(G(3), M(0) + M(1) + M(2) + M(3) + dec2(LB) + CHK0 + CCON[:7] + [CHK1] + CCON[7:], tail=48) + check("K_RARE_B", SCL) + OCV + [OIW] + OSW + OSR
    else:
        def mv(l):
            return [re.sub(r"\bv(\d+)\b|v\[(\d+):(\d+)\]", lambda m: (f"v{int(m.group(1))+QQ-T0}" if T0 <= int(m.group(1)) < EE else m.group(0)) if m.group(1) else
                           (f"v[{int(m.group(2))+QQ-T0}:{int(m.group(3))+QQ-T0}]" if T0 <= int(m.group(2)) < EE else m.group(0)), x) for x in l]
        L2 = QQ + 32
        g = mv(G(0) + G(1) + G(2) + G(3))
        seg = exps(T0)[12:] + pk3(2, T0) + ["s_mov_b64 s[60:61], exec", "s_mov_b64 exec, -1"] + XX(0) + lbinit(L2)
        seg += R(0)[:2] + weave(mv(binit(L2)), R(0)[2:], (4, 10)) + UU(0) + V(0)[:6]
        seg += spread(g[:5], V(0)[6:] + V(1)[:6] + exps(T1), pre={4: ["s_mov_b64 exec, s[60:61]"]}) + pk3(3, T1) + ["s_mov_b64 exec, -1", "s_mov_b32 s3, s27"] + XX(2)
        seg += spread(g[5:8], V(1)[6:] + R(2)) + UU(2) + V(2)[:6]
        seg += spread(g[8:], V(2)[6:] + V(3) + M(0) + M(2) + dec2(L2) + CHK0 + CCON[:7] + [CHK1] + CCON[7:], tail=48) + mv(check("K_RARE_B", SCL) + OCV + [OIW] + OSW) + OSR
    I(*align8(seg))
    stamp("tail")
    I(*([] if OPT["srl"] else ["s_mov_b32 s3, s27"]), "s_waitcnt lgkmcnt(6)", "s_barrier")
    I(f"ds_read_b32 v12, v12 offset:{L_FLAG}", f"ds_read2_b32 v[2:3], v2 offset1:32")
    for h in range(2):
        for r in range(2): I(f"ds_read_b128 v[{NN+8*h+4*r}:{NN+8*h+4*r+3}], v4 offset:{L_SPL + 64*SPL_S*h + SPL_S*r}")
    I("s_waitcnt lgkmcnt(6)", *OOR); I(*OST)
    I("s_waitcnt lgkmcnt(2)", "v_cmp_ne_u32 vcc, 0, v12", "v_or_b32 v2, v2, v11", "v_or_b32 v3, v3, v11")
    for h in range(2):
        if h: I("s_waitcnt lgkmcnt(0)", "s_nop 0")
        n = NN + 8*h; u = DD + 16*h
        for i in range(8): I(f"v_lshlrev_b32 v{u+2*i}, 16, v{n+i}", f"v_and_b32 v{u+2*i+1}, s3, v{n+i}")
        for i in range(4): I(f"v_pk_add_f32 v[{u+2*i}:{u+2*i+1}], v[{u+2*i}:{u+2*i+1}], v[{u+8+2*i}:{u+8+2*i+1}]")
        for i in range(4): I(f"v_cvt_pk_bf16_f32 v{n+i}, v{u+2*i}, v{u+2*i+1}")
        I(f"buffer_store_dwordx4 v[{n}:{n+3}], v{2+h}, s[8:11], 0 offen{OSTF}")
    I("s_cbranch_vccnz K_SLOW")
    if OPT["diag"]:
        if OPT.get("amp0"): I("s_sub_u32 s94, s94, s96", "s_mul_i32 s94, s94, 10", "s_add_u32 s100, s100, s94")
        I("s_mov_b32 s52, 0", "K_SPIN:", "s_memrealtime s[54:55]", "s_waitcnt lgkmcnt(0)", "s_add_u32 s52, s52, 1", "s_cmp_gt_u32 s52, 20000", "s_cbranch_scc1 K_END",
          "s_sub_u32 s54, s54, s100", "s_cmp_lt_i32 s54, 4000", "s_cbranch_scc1 K_SPIN")
    if OPT["stamp"]:
        I("s_waitcnt vmcnt(0)"); stamp("end")
        I("s_lshl_b32 s3, s2, 2", "s_add_u32 s3, s3, s18", "s_lshl_b32 s3, s3, 7", f"s_add_u32 s3, s3, {STAMP_OFF}", "v_mov_b32 v0, 0")
        for i in range(len(stamps)): I(f"v_mov_b32 v1, s{SLOTS[i]}", f"buffer_store_dword v1, v0, s[12:15], s3 offen offset:{4*i}")
        I("s_lshl_b32 s62, s62, 8", "s_or_b32 s62, s62, s63", "v_mov_b32 v1, s62", "buffer_store_dword v1, v0, s[12:15], s3 offen offset:124")
    I("K_END:", "K_END0:", "s_endpgm")
    I("K_MEA:", "s_mov_b32 s3, 0", *eadma(190, "s3", 0)); I(*eadma(191, "s3", 1024)); I("s_branch K_MEA_RET")
    for tag in ("K_RARE_A", "K_RARE_B"):
        I(f"{tag}:")
        I("s_andn2_b64 vcc, s[42:43], s[38:39]", f"s_cbranch_scc0 {tag}2")
        I(f"v_mov_b32 v{OA+1}, 0", f"v_mov_b32 v{RM}, 1", f"ds_write_b32 v{OA+1}, v{RM} offset:{L_FLAG}")
        I(f"{tag}2:", "s_mov_b64 exec, s[38:39]")
        for i in range(32): I(f"v_mov_b32 v{(QQ if tag == 'K_RARE_B' and OPT['srl'] else T0)+i}, 0")
        I("s_mov_b64 exec, -1", f"s_branch {tag}_RET")
    K2, A2, R2, O2 = 176, 180, 184, 188
    I("K_MORE:", "s_sub_u32 s40, 0, s23", "s_nop 0")
    I("s_mov_b64 exec, 1", f"ds_add_rtn_u32 v{O2}, v24, v29 offset:{L_FLAG+4}", "s_waitcnt lgkmcnt(0)", f"v_cmp_ne_u32 vcc, 0, v{O2}", "s_mov_b64 exec, -1", "s_cbranch_vccnz K_MORE_F")
    compact(36)
    I(*units(K2, O2, O2+2))
    I("s_mov_b32 s20, 1", "s_waitcnt vmcnt(0)")
    phaseB(K2, A2, R2, 40, O2)
    I("s_waitcnt lgkmcnt(0)")
    I(*phaseC(K2, A2, R2))
    I("v_cmp_lt_i32 vcc, 0, v33", "s_cbranch_vccz K_MORE_RET")
    I("K_MORE_F:", f"ds_write_b32 v24, v29 offset:{L_FLAG}", "s_branch K_MORE_RET")
    I("K_SLOW0:", *tr2)
    I("K_SLOW:")
    I("s_mov_b64 exec, -1", "s_waitcnt vmcnt(0) lgkmcnt(0)", "s_barrier")
    I("v_mbcnt_lo_u32_b32 v6, -1, 0", "v_mbcnt_hi_u32_b32 v6, -1, v6", "s_lshl_b32 s3, s18, 6", "v_add_u32 v7, s3, v6")
    I(*TABA); I(f"v_lshlrev_b32 v3, {lt}, v7", TABLD)
    I("v_lshrrev_b32 v1, 5, v6", "v_lshlrev_b32 v1, 6, v1", "v_and_b32 v6, 31, v6", "v_lshlrev_b32 v2, 4, v7")
    for i in range(4): I(f"v_mov_b32 v{16+i}, 0")
    for i in range(13): I(f"ds_write_b128 v2, v[16:19] offset:{4096*i}")
    for b in range(4): I(*onehot(EE+2*b, b))
    I("s_mov_b32 s6, s26", "s_mov_b32 s19, 0", "s_waitcnt vmcnt(0) lgkmcnt(0)", "s_barrier")
    I("K_S_SEG:")
    I("v_readlane_b32 s36, v8, s19", "s_lshl_b32 s3, s18, 6", "s_add_u32 s3, s3, s19", f"s_mul_i32 s3, s3, {CHS}", "s_nop 0",
      "s_lshr_b32 s20, s36, 16", "s_and_b32 s36, s36, 0xffff", "s_add_u32 s36, s36, s3")
    I("K_S_TILE:")
    I("s_cmp_le_i32 s20, 0", "s_cbranch_scc1 K_S_NEXT")
    I("v_add_lshl_u32 v2, s36, v6, 2", "v_lshlrev_b32 v3, 1, v2", "v_cmp_gt_i32 s[38:39], s20, v6")
    I("buffer_load_dword v9, v2, s[12:15], s50 offen sc1", f"buffer_load_dwordx2 a[{AEA}:{AEA+1}], v3, s[12:15], s51 offen sc1", "s_waitcnt vmcnt(0)")
    I(xaddr(9)); I(*[xload(0, k) for k in range(4)])
    I("v_and_b32 v9, 0xffff, v9", "v_lshl_add_u32 v0, v9, 7, v1", "v_subrev_u32 v9, s16, v9"); I(*[xload(2, k) for k in range(4)])
    I("v_mul_u32_u24 v9, 260, v9", "v_lshl_add_u32 v9, v1, 1, v9", "s_waitcnt vmcnt(0)")
    for b in range(4): I(*qchain(NN+16*b, b, EE+2*b)); I(*chain(NN+16*b, b, 0, NN+16*b))
    I(*binit(EE)); I("s_nop 15")
    for b in range(4): I(*E0(b))
    for b in range(4): I(*A0(b))
    for b in range(4): I(*R(b))
    for b in range(4): I(*(U(b) + V(b)))
    I("s_nop 1")
    for b in range(4): I(*G(b))
    I("s_nop 15"); I(*SCL)
    I("s_mov_b64 exec, s[38:39]")
    for i in range(32): I(f"ds_add_f32 v9, v{T0+i} offset:{4*i}")
    I("s_mov_b64 exec, -1", "s_waitcnt lgkmcnt(0)", "s_sub_u32 s20, s20, 32", "s_add_u32 s36, s36, 32", "s_branch K_S_TILE")
    I("K_S_NEXT:", "s_add_u32 s19, s19, 1", "s_cmp_lt_u32 s19, 64", "s_cbranch_scc1 K_S_SEG")
    I("s_barrier", "v_and_b32 v3, 7, v7", "v_lshlrev_b32 v1, 4, v3", "v_lshrrev_b32 v7, 3, v7", "s_mov_b32 s19, 0")
    I("K_S_OUT:")
    I("v_mul_u32_u24 v2, 260, v7", "v_cmp_gt_u32 vcc, s17, v7", "v_lshl_add_u32 v2, v3, 5, v2", "v_add_lshl_u32 v0, s16, v7, 7", "v_cndmask_b32 v0, 2.0, v0, vcc", "v_or_b32 v0, v0, v1")
    for i in range(8): I(f"ds_read_b32 v{16+i}, v2 offset:{4*i}")
    I("s_waitcnt lgkmcnt(0)")
    for i in range(4): I(f"v_cvt_pk_bf16_f32 v{24+i}, v{16+2*i}, v{17+2*i}")
    I("buffer_store_dwordx4 v[24:27], v0, s[8:11], 0 offen", "v_add_u32 v7, 32, v7", "s_waitcnt vmcnt(0)")
    I("s_add_u32 s19, s19, 1", "s_cmp_lt_u32 s19, 7", "s_cbranch_scc1 K_S_OUT", "s_endpgm")

def desc(name, vgpr, accum, sgpr):
    I(".p2align 6", f".amdhsa_kernel {name}")
    for l in (f"next_free_vgpr {vgpr}", f"next_free_sgpr {sgpr}", f"accum_offset {accum}", "group_segment_fixed_size 0", "kernarg_size 88",
              "user_sgpr_count 2", "user_sgpr_kernarg_segment_ptr 1", "system_sgpr_workgroup_id_x 1", "float_denorm_mode_32 3"):
        out.append("  .amdhsa_" + l)
    I(".end_amdhsa_kernel")

hdr = [l.rstrip("\n") for l in open(f"cdna_kernels/{NAME}.s.ref") if l.startswith(";") and "@launch" not in l][:12]
hdr += [f"; @launch grid=(256,1,1) block=(256,1,1) lds={L_SIZE}"]
I('.amdgcn_target "amdgcn-amd-amdhsa--gfx950"', ".text")
kernel()
I('.section .rodata,"a"')
desc(NAME + "_kernel", 512, 256, 102)
if OPT["stamp"]: hdr.append("; stamps: " + " ".join(stamps))
open(sys.argv[1], "w").write("\n".join(hdr + out) + "\n")
```

```python
import sys, struct, math
NAME = "standalone__edge_featured_mpnn_mpnn__graph"
OPT = dict(stamp=0, diag=0, tp=64, ntr=32, ntr0=-1, xpos=0, sl=3, cw=1, ost='sc1', w2q=1, up=4, wpos=3, tw=2, f1pos=0, xa=0, xb=0, ww=2, rm=1, est='d', f3s='E', f3l='a1', xs='b07', es='a33.a43.a54', hs='C', hl=12, fs=4, nr=2, cpos=1, rr=0, f1e=1, slp=4, tl=0, tm=63, wso=0, a1=12, srm=0, bk=0, xt=1, st2=1, nsc=0, hsc=0, ea2=3, cskip=0, tpos=-1, pko=0, xf='', e1=0, il=1, srl=1, a2=16, a3=16, pb=0)
for a in sys.argv[2:]:
    k, v = a.split("="); OPT[k] = int(v) if v.lstrip("-").isdigit() else v

N_NODES = 50000; E = 800000
CH = 3125; CHS = 3200
TP = OPT['tp']; FL_OFF = 0x40000
TAB_OFF = 0; WP_OFF = 0x48000; KEY_OFF = 0x48000; EA_OFF = 0x368000; STAMP_OFF = 0x1000000
WS_SIZE = 0x10000000 - (OPT['wso'] << 20)
SPIN = 400000
def f32(x): return "0x%08x" % struct.unpack("<I", struct.pack("<f", x))[0]
NLOG2E = f32(-math.log2(math.e)); NLN2 = f32(-math.log(2.0))

out = []
def I(*ls):
    for l in ls:
        for x in l.split("\n"):
            x = x.strip()
            if x: out.append(x if x.endswith(":") or x.startswith(".") else "    " + x)
vm = []
def VM(tag, *ls):
    for l in ls:
        if l.startswith(("buffer_", "global_")): vm.append(tag)
        I(l)
def vw(tag, k=0):
    idx = [i for i, t in enumerate(vm) if t == tag]
    return len(vm) - 1 - idx[-1-k]
def srd(d, lo, hi, size, stride=0):
    I(f"s_mov_b32 s{d}, s{lo}")
    if stride: I(f"s_or_b32 s{d+1}, s{hi}, {hex(stride << 16)}")
    else: I(f"s_mov_b32 s{d+1}, s{hi}")
    I(f"s_mov_b32 s{d+2}, {size}", f"s_mov_b32 s{d+3}, 0x20000")
def scan64(v, fill=None):
    fill = list(fill or [])
    def gap():
        n = 0
        while fill and n < 2: I(fill.pop(0)); n += 1
        if n < 2: I(f"s_nop {1-n}")
    for op in ("row_shr:1", "row_shr:2", "row_shr:4", "row_shr:8"):
        gap(); I(f"v_add_u32_dpp v{v}, v{v}, v{v} {op} row_mask:0xf bank_mask:0xf bound_ctrl:0")
    gap(); I(f"v_add_u32_dpp v{v}, v{v}, v{v} row_bcast:15 row_mask:0xa bank_mask:0xf")
    gap(); I(f"v_add_u32_dpp v{v}, v{v}, v{v} row_bcast:31 row_mask:0xc bank_mask:0xf")
    I(*fill)
SLOTS = list(range(86, 98)) + list(range(64, 84))
stamps = []
def stamp(name, twice=False, lvl=1):
    if OPT.get("amp0") == name: I("s_memrealtime s[96:97]", "s_waitcnt lgkmcnt(0)", "s_nop 0")
    if OPT.get("amp1") == name: I("s_memrealtime s[94:95]", "s_waitcnt lgkmcnt(0)", "s_nop 0")
    if OPT["diag"] == name: I("s_memrealtime s[100:101]", "s_waitcnt lgkmcnt(0)", "s_nop 0")
    if not OPT["stamp"] or lvl > OPT["sl"]: return
    if twice:
        stamps.append(name + "1")
        I(f"s_mov_b32 s{SLOTS[len(stamps)-1]}, s{SLOTS[len(stamps)]}", "s_nop 0")
        name += "2"
    stamps.append(name)
    I(f"{'s_memtime' if OPT['stamp']==1 else 's_memrealtime'} s[98:99]", "s_waitcnt lgkmcnt(0)", f"s_mov_b32 s{SLOTS[len(stamps)-1]}, s98")

CAP = 48; NS = 4 + 4*CAP
STG0 = 2048
L1_KEY = 0; L1_EA = CHS*4; L1_CNT = 38912; L1_BASE = L1_CNT + 1024
L_H1 = STG0 + 5*8192; L_H2 = L_H1 + 256; L_SN = L_H2 + 256; L_FLAG = L_SN + 256; L_TBL = L_H1 + 1024
L_TB2 = L_TBL + 1024; L_SPL = L_TB2 + 1024; SPL_S = 144
L_W = L_SPL; L_S = L_W + 32768; L_W2 = L_S + 4096
L_OST = L_SPL + 128*SPL_S; OST_W = 32*SPL_S
L_X = L_W2 + 16384
L_NODE = L_X + 200*128
L_SIZE = L_NODE + 196*NS
assert L_SIZE <= 163840 and L_SPL + 123*SPL_S <= L_OST and L_OST + 4*OST_W <= L_W2
OSTF = "" if OPT["ost"] == "plain" else " " + OPT["ost"]
T0, T1, EE, NN, DD, QQ = 16, 32, 48, 64, 128, 192
AX, AW1A, AW1B, AW1C, AW2, AEA, AB1 = 0, 48, 112, 176, 184, 248, 254
BIG = 0x1000000

import re
V4 = ("v_exp_f32", "v_rcp_f32", "v_add_f32", "v_mul_f32", "v_add_u32", "v_mov_b32", "v_and_b32", "v_lshrrev_b32", "v_lshlrev_b32", "v_cvt_f32_ubyte2",
      "v_mul_u32_u24", "v_cndmask_b32", "v_readfirstlane_b32", "v_or_b32", "v_sub_u32", "v_xor_b32")
def has_lit(s):
    for t in re.split(r"[,\s]+", s.strip())[1:]:
        if re.fullmatch(r"0x[0-9a-fA-F]+|-?\d+", t):
            v = int(t, 0)
            if not -16 <= v <= 64: return True
    return False
def isz(s):
    s = s.strip(); op = s.split()[0]
    if s.endswith(":") or s.startswith("."): return 0
    if op.startswith(("s_waitcnt", "s_nop", "s_cbranch", "s_branch", "s_movk", "s_barrier")): return 4
    if op.startswith("s_memtime") or op.startswith("s_memrealtime"): return 8
    if op.startswith("s_"): return 8 if has_lit(s) else 4
    if op.startswith("v_cmp") and not op.endswith("_e64"): return (8 if has_lit(s) else 4) if s.split()[1] == "vcc," else 8
    if op == "v_cndmask_b32" and not s.endswith("vcc"): return 8
    if op in V4: return 8 if has_lit(s) else 4
    return 8
def align8(seg):
    off = 0; last4 = None
    seg = list(seg); i = 0
    while i <= len(seg):
        s = seg[i] if i < len(seg) else "v_pk_x"
        z = isz(s)
        if z == 8 and off % 8:
            if last4 is not None:
                op = seg[last4].split()[0]
                seg[last4] = seg[last4].replace(op, op + "_e64", 1); off += 4
            elif i == len(seg) or sum(1 for x in seg[i:i+5] if isz(x) == 8) == 5:
                if i < len(seg): print("pad before", s, file=sys.stderr)
                seg.insert(i, "s_nop 0"); off += 4; i += 1
        if z == 8: last4 = None
        if z == 4 and s.split()[0] in V4 and s.split()[0] != "v_readfirstlane_b32" and off % 8 == 0: last4 = i
        off += z; i += 1
    return seg
def xload(buf, kk): return f"buffer_load_dwordx4 a[{AX+16*buf+4*kk}:{AX+16*buf+4*kk+3}], v0, s[4:7], 0 offen offset:{16*kk}" + (" " + OPT["xf"] if OPT["xf"] else "")
def xaddr(rec): return f"v_mad_u32_u16 v0, v{rec}, s59, v1 op_sel:[1,0,0,0]"
def eaddr(d, rec): return f"v_and_b32 v{d}, s49, v{rec}"
def earead(buf, r): return f"ds_read_b64 a[{AEA+2*buf}:{AEA+2*buf+1}], v{r}"
def chain(dst, blk, buf, c):
    L = []
    for kk in range(4):
        w = AW1A + 16*blk + 4*kk; x = AX + 16*buf + 4*kk; ci = c if kk == 0 else dst
        L.append(f"v_mfma_f32_32x32x16_bf16 v[{dst}:{dst+15}], a[{w}:{w+3}], a[{x}:{x+3}], v[{ci}:{ci+15}]")
    return L + [f"v_mfma_f32_32x32x8_bf16 v[{dst}:{dst+15}], a[{AW1C+2*blk}:{AW1C+2*blk+1}], a[{AEA+2*buf}:{AEA+2*buf+1}], v[{dst}:{dst+15}]"]
def qchain(dst, blk, oh, order=(0, 1, 2, 3)):
    L = []
    for kk in order:
        w = AW1B + 16*blk + 4*kk; x = AX + 32 + 4*kk
        L.append(f"v_mfma_f32_32x32x16_bf16 v[{dst}:{dst+15}], a[{w}:{w+3}], a[{x}:{x+3}], " + ("0" if kk == order[0] else f"v[{dst}:{dst+15}]"))
    return L + [f"v_mfma_f32_32x32x8_bf16 v[{dst}:{dst+15}], a[{AB1}:{AB1+1}], v[{oh}:{oh+1}], v[{dst}:{dst+15}]"]
def onehot(r, blk):
    c = "1.0" if blk & 1 else "s53"
    return [f"v_mov_b32 v{r+(blk>>1)}, {c}", f"v_mov_b32 v{r+1-(blk>>1)}, 0"]
def gemm2(blk, hb):
    L = []
    for p in range(2):
        for ob in range(2):
            w = AW2 + 4*((blk*2+p)*2+ob); o = T0 + 16*ob
            L.append(f"v_mfma_f32_32x32x16_bf16 v[{o}:{o+15}], a[{w}:{w+3}], v[{hb+4*p}:{hb+4*p+3}], v[{o}:{o+15}]")
    return L
def weave(ms, fill, cnts, extra=None):
    L = []; fill = list(fill)
    for k, m in enumerate(ms):
        L.append(m)
        if extra: L += extra.get(k, [])
        L += fill[:cnts[k]]; fill = fill[cnts[k]:]
    assert not fill
    return L
def repoll(tag, load, cmp):
    I(f"{tag}:", f"s_mov_b32 s3, {SPIN}", f"{tag}_L:", "s_mov_b64 exec, vcc", f"s_sleep {OPT['slp']}", load, "s_sub_u32 s3, s3, 1", "s_cbranch_scc1 K_END",
      "s_waitcnt vmcnt(0)", cmp, f"s_cbranch_vccnz {tag}_L", "s_mov_b64 exec, -1", f"s_branch {tag}_RET")

def cost(x):
    op = x.split()[0]
    if op.startswith(("v_exp", "v_rcp")): return 8
    if op.startswith("ds_write"): return {"b32": 8, "b64": 12, "b128": 20}[op.split("_")[-1]]
    if op.startswith("buffer_store"): return 12
    return 4
def spread(ms, fill, pre=None, tail=None):
    pre = pre or {}
    L = []; fill = list(fill); n = len(ms)
    if tail is None: tail = 36
    for k, m in enumerate(ms):
        L.append(m); P = pre.get(k, []); L += P
        if k == n-1: break
        room = 32 - (8 if "x16" in m else 4) - sum(cost(x) for x in P)
        if P and P[0].startswith("s_") and "x16" in m: room += 4
        if P and not P[0].startswith(("s_", "v_")) and "x16" not in m: room -= 4
        while fill and room > 0 and sum(map(cost, fill)) - cost(fill[0]) >= tail - sum(cost(x) for x in pre.get(n-1, [])):
            room -= cost(fill[0]); L.append(fill.pop(0))
    return L + fill
def pk3(b, tc):
    n = NN+16*b; d = DD+16*b
    return [f"v_pk_fma_f32 v[{n+2*i}:{n+2*i+1}], v[{n+2*i}:{n+2*i+1}], v[{EE+2*i}:{EE+2*i+1}], v[{n+2*i}:{n+2*i+1}]" for i in range(8)] + \
           [f"v_pk_fma_f32 v[{n+2*i}:{n+2*i+1}], v[{tc+2*i}:{tc+2*i+1}], v[{d+2*i}:{d+2*i+1}], v[{n+2*i}:{n+2*i+1}]" for i in range(8)] + \
           [f"v_pk_fma_f32 v[{d+2*i}:{d+2*i+1}], v[{d+2*i}:{d+2*i+1}], v[{EE+2*i}:{EE+2*i+1}], v[{d+2*i}:{d+2*i+1}]" for i in range(8)]
pk3_plain = pk3
def pk3(b, tc):
    L = pk3_plain(b, tc); a, c, d = L[:8], L[8:16], L[16:]
    if OPT["pko"] == 1: return [x for i in range(8) for x in (a[i], c[i], d[i])]
    if OPT["pko"] == 2: return [a[0]] + [x for i in range(8) for x in (a[i+1:i+2] + [c[i], d[i]])]
    if OPT["pko"] == 3: return a + [x for i in range(8) for x in (c[i], d[i])]
    return L
def exps(tc): return [f"v_exp_f32 v{EE+i}, v{tc+i}" for i in range(16)]
def E0(b): return [f"v_exp_f32 v{DD+16*b+i}, v{NN+16*b+i}" for i in range(16)]
def A0(b): return [f"v_pk_add_f32 v[{DD+16*b+2*i}:{DD+16*b+2*i+1}], v[{DD+16*b+2*i}:{DD+16*b+2*i+1}], 1.0 op_sel_hi:[1,0]" for i in range(8)]
def A1(b): return [f"v_add_f32 v{DD+16*b+i}, 1.0, v{DD+16*b+i}" for i in range(16)]
LB, RM, OA, OH3 = EE, EE+4, EE+5, EE+8
def R(b): return [f"v_rcp_f32 v{DD+16*b+i}, v{DD+16*b+i}" for i in range(16)]
def M(b): return [f"v_min3_f32 v{RM}, v{DD+16*b+2*i}, v{DD+16*b+2*i+1}, " + ("1.0" if b == 0 and i == 0 else f"v{RM}") for i in range(8)]
def U(b): return [f"v_pk_mul_f32 v[{NN+16*b+2*i}:{NN+16*b+2*i+1}], v[{NN+16*b+2*i}:{NN+16*b+2*i+1}], v[{DD+16*b+2*i}:{DD+16*b+2*i+1}]" for i in range(8)]
def pkm(d, a, b): return [f"v_pk_mul_f32 v[{d+2*i}:{d+2*i+1}], v[{a+2*i}:{a+2*i+1}], v[{b+2*i}:{b+2*i+1}]" for i in range(8)]
def XX(b): n = NN+16*b; d = DD+16*b; return pkm(n, n, d+16) + pkm(n+16, n+16, d) + pkm(d, d, d+16)
def UU(b): n = NN+16*b; d = DD+16*b; return pkm(n, n, d) + pkm(n+16, n+16, d)
def V(b): return [f"v_cvt_pk_bf16_f32 v{NN+16*b+i}, v{NN+16*b+2*i}, v{NN+16*b+2*i+1}" for i in range(8)]
def G(b): return gemm2(b, NN+16*b)
def lbinit(r): return [f"v_cvt_f32_ubyte2 v{r+2}, v5", f"v_mov_b32 v{r+1}, 0", f"v_mov_b32 v{r+3}, 0", f"v_lshrrev_b32 v{r}, 16, v{r+2}"]
def binit(r): return [f"v_mfma_f32_32x32x8_bf16 v[{T0+16*ob}:{T0+16*ob+15}], v[14:15], v[{r+2*ob}:{r+2*ob+1}], 0" for ob in range(2)]
def dec2(lb):
    return [f"v_lshrrev_b32 v{OA}, 24, v5", f"v_and_b32 v{OA+2}, s54, v5", f"v_cmp_eq_u32 vcc, s54, v{OA}", f"v_mad_u32_u24 v{OA}, v{OA}, s55, v1",
            f"v_add_lshl_u32 v{OA+2}, s16, v{OA+2}, 7", f"v_cndmask_b32 v{OA}, v{OA}, v8, vcc", f"v_cndmask_b32 v{OA+2}, 2.0, v{OA+2}, vcc",
            f"v_cmp_eq_u32 s[38:39], 0, v{lb+2}"]
SCL = [f"v_pk_mul_f32 v[{T0+2*i}:{T0+2*i+1}], v[{T0+2*i}:{T0+2*i+1}], s[24:25]" for i in range(16)]
CHK0 = [f"v_cmp_nlt_f32 vcc, s57, v{RM}"]
CHK1 = "s_or_b64 s[42:43], vcc, s[38:39]"
def check(tag, scl):
    return [f"v_cmp_class_f32 s[40:41], v{T0}, s58"] + scl + ["s_or_b64 s[42:43], s[42:43], s[40:41]", f"s_cbranch_scc1 {tag}", f"{tag}_RET:"]
OCV = [f"v_cvt_pk_bf16_f32 v{T0+i}, v{T0+2*i}, v{T0+2*i+1}" for i in range(16)]
OCON = ["v_mbcnt_lo_u32_b32 v11, -1, 0", "v_mbcnt_hi_u32_b32 v11, -1, v11", "v_and_or_b32 v8, v11, 31, s45", "v_lshrrev_b32 v9, 3, v11", "v_mad_u32_u24 v8, v8, s55, v1",
        "v_mul_u32_u24 v9, s47, v9", "v_and_b32 v11, 7, v11", "v_add_u32 v9, s46, v9", "v_lshlrev_b32 v11, 4, v11", "v_add_u32 v10, v9, v11"]
OIW = f"ds_write_b32 v8, v{OA+2} offset:{L_SPL+64}"
OSW = [f"ds_write_b128 v{OA}, v[{T0+4*k}:{T0+4*k+3}] offset:{L_SPL+16*k}" for k in range(4)]
OSR = [f"ds_read2_b32 v[{EE+2*k}:{EE+2*k+1}], v9 offset0:{32+72*k} offset1:{68+72*k}" for k in range(2)] + \
      [f"ds_read_b128 v[{T1+4*j}:{T1+4*j+3}], v10 offset:{144*j}" for j in range(4)]
OOR = [f"v_or_b32 v{EE+j}, v{EE+j}, v11" for j in range(4)]
OST = [f"buffer_store_dwordx4 v[{T1+4*j}:{T1+4*j+3}], v{EE+j}, s[8:11], 0 offen{OSTF}" for j in range(4)]
def xrow(d, e, t, base): return [f"v_and_b32 v{d}, s54, v{e}", f"v_and_b32 v{t}, 7, v{e}", f"v_lshl_add_u32 v{d}, v{d}, 7, v{base}", f"v_lshlrev_b32 v{t}, 4, v{t}", f"v_xor_b32 v{d}, v{d}, v{t}"]
def xrd(r): return [f"v_xor_b32 v{r[k]}, {16*k}, v{r[0]}" for k in range(1, 4)], [f"ds_read_b128 a[{AX+32+4*k}:{AX+35+4*k}], v{r[k]}" for k in range(4)]
def recs(d, p): return [f"ds_read2_b32 v[{d}:{d+1}], v{p} offset0:1 offset1:2", f"ds_read2_b32 v[{d+2}:{d+3}], v{p} offset0:3 offset1:4"]
LSET = ["s_max_u32 s20, s20, 2", "s_sub_u32 s37, s20, 3", "s_sub_u32 s20, s20, 1", "s_mov_b32 s19, 1"]

FI, FR = 224, 208
def kernel():
    K = NAME + "_kernel"
    lt = TP.bit_length() - 1
    assert L_W % 256 == 0 and L_X % 128 == 0
    I(".p2align 12", f".globl {K}", ".p2align 8", f".type {K},@function", f"{K}:")
    I("s_cmp_ge_u32 s2, 256", "s_cbranch_scc1 K_END0")
    stamp("start")
    I("s_load_dwordx16 s[64:79], s[0:1], 0", "s_load_dwordx4 s[80:83], s[0:1], 64", "s_load_dwordx2 s[12:13], s[0:1], 80")
    DST, SRC, EAR, AD, RK, P8, CP, WR = 64, 80, 96, 128, 144, 160, 176, 208
    if OPT["cw"]:
        I("s_getpc_b64 s[62:63]", "K_PC:", "s_bfe_u32 s3, s2, 0x30003", "v_and_b32 v2, 0xf8, v0", "v_add_lshl_u32 v41, v2, s3, 7",
          "v_min_u32 v2, K_SLOW0-K_PC, v41", "v_mov_b32 v40, v41", *(["s_cmp_lt_u32 s2, 64", "s_cbranch_scc1 K_NOCW"] if OPT["cskip"] else []), "global_load_dword v10, v2, s[62:63]", "K_NOCW:")
    I("v_lshrrev_b32 v2, 6, v0", "v_and_b32 v6, 63, v0", "v_lshlrev_b32 v17, 2, v0", "v_readfirstlane_b32 s18, v2")
    I("v_mov_b32 v24, 0", f"ds_write_b32 v17, v24 offset:{L1_CNT}", "v_lshlrev_b32 v16, 4, v0", "v_lshlrev_b32 v4, 4, v6")
    I("s_and_b32 s84, s2, 7", "s_lshl_b32 s84, s84, 5", "s_lshr_b32 s3, s2, 3", "s_add_u32 s84, s84, s3")
    CID = "s84" if OPT["rm"] else "s2"; RID = "s84" if OPT["rr"] else "s2"
    I(f"s_mul_i32 s60, {CID}, {CH*4}", "s_mov_b32 s15, 0x20000", f"s_mov_b32 s14, {WS_SIZE}", f"s_mov_b32 s30, {E*4}", "s_mov_b32 s34, s30")
    for r in (31, 35, 43, 47, 51, 55, 7, 11): I(f"s_mov_b32 s{r}, s15")
    I(f"s_mov_b32 s42, {132*256}", f"s_movk_i32 s46, {128*128}", f"s_mov_b32 s54, {E*8}", f"s_mov_b32 s26, {N_NODES*128}", "s_mov_b32 s6, s26", "s_mov_b32 s10, s26")
    if OPT["il"]:
        I(f"s_lshr_b32 s19, {CID}, 5", f"s_mul_i32 s19, s19, {32*CH*4}", f"s_and_b32 s20, {CID}, 31", f"s_mul_i32 s21, s20, {(CH-3072)*4}", "s_add_u32 s21, s21, s19",
          f"s_add_u32 s21, s21, {3*131072 - 768}", "s_lshl_b32 s20, s20, 12", "s_add_u32 s60, s19, s20", "s_add_u32 s19, s60, 0x20000", "s_add_u32 s20, s60, 0x40000")
    else:
        I("s_add_u32 s19, s60, 4096", "s_add_u32 s20, s60, 8192", f"s_add_u32 s21, s60, {(3072-192)*4}")
    I("v_mov_b32 v20, -1", "v_mov_b32 v21, -1", "v_mov_b32 v22, -1", "v_mov_b32 v23, -1", "s_movk_i32 s58, 256", "s_mov_b32 s59, s15")
    NR = OPT["nr"]; NC = 1 << (NR-2)
    RID = "s22"
    I("s_and_b32 s22, s2, 63", "s_lshr_b32 s3, s2, 6", "s_lshl2_add_u32 s22, s22, s3")
    if not OPT["cskip"]: RID = CID
    I(f"s_and_b32 s37, {RID}, {(1 << NR) - 1}", f"s_lshl_b32 s61, s18, {NR-2}", f"s_add_u32 s61, s61, {RID}", f"s_lshl_b32 s36, s61, {OPT['fs']}", f"s_add_u32 s36, s36, {FL_OFF}", "s_lshl_b32 s61, s61, 10")
    I("s_mul_i32 s16, s84, 12800051", "s_add_u32 s16, s16, 0xffff", "s_add_u32 s17, s16, 12800051", "s_lshr_b32 s16, s16, 16", "s_lshr_b32 s17, s17, 16",
      f"s_min_u32 s17, s17, {N_NODES}", "s_sub_u32 s17, s17, s16", "s_mov_b32 s85, 85899")
    I("v_mov_b32 v29, 1", "v_lshlrev_b32 v18, 5, v0", "v_lshlrev_b32 v19, 3, v0", "v_lshlrev_b32 v43, 2, v6")
    I("v_subrev_u32 v45, 192, v0", f"v_cmp_gt_u32 vcc, {CH-3072}, v45", f"v_mov_b32 v45, {hex(BIG)}", "s_mov_b32 s39, 0x05040100", "v_cndmask_b32 v45, v45, v24, vcc")
    I(f"v_lshrrev_b32 v42, {lt-4}, v6", f"v_lshlrev_b32 v42, {lt+8}, v42", f"v_and_b32 v37, {TP-1}, v4", "v_add_u32 v42, v42, v37")
    I("v_lshrrev_b32 v1, 5, v6", "v_bfe_u32 v52, v6, 2, 2", "v_and_b32 v53, 3, v6", "v_bfe_u32 v54, v6, 4, 1",
      "v_lshlrev_b32 v55, 3, v53", "v_lshl_add_u32 v55, v54, 5, v55",
      "v_lshl_add_u32 v56, v52, 8, v55", "v_lshl_add_u32 v60, v1, 10, v56", f"v_add_u32 v60, {L_S}, v60",
      "v_lshl_add_u32 v56, v1, 13, v56", "v_lshl_add_u32 v56, v52, 6, v56", f"v_add_u32 v56, {L_W}, v56",
      "v_xor_b32 v57, 64, v56", "v_xor_b32 v58, 0x80, v56", "v_xor_b32 v59, 0xc0, v56",
      "v_lshl_add_u32 v61, v52, 6, v55", "v_lshl_add_u32 v61, v1, 8, v61", f"v_add_u32 v61, {L_S + 2048}, v61",
      "v_and_b32 v55, 1, v53", "v_lshlrev_b32 v55, 6, v55", "v_lshl_add_u32 v55, v54, 4, v55", "v_lshrrev_b32 v53, 1, v53", "v_lshl_add_u32 v55, v53, 3, v55",
      "v_lshl_add_u32 v62, v52, 7, v55", "v_lshl_add_u32 v62, v1, 9, v62", f"v_add_u32 v62, {L_W2}, v62",
      "v_and_b32 v52, 1, v52", "v_lshl_add_u32 v63, v52, 5, v55", "v_lshl_add_u32 v63, v1, 8, v63", f"v_add_u32 v63, {L_S + 2560}, v63",
      "v_lshlrev_b32 v1, 6, v1")
    I("s_waitcnt lgkmcnt(0)")
    if OPT.get("probe"):
        base = {"x": 64, "ea": 66, "src": 68, "dst": 70, "out": 80, "ws": 12, "none": 64}[OPT["probe"]]
        I(f"s_mov_b64 s[28:29], s[{base}:{base+1}]", "s_memrealtime s[96:97]", "s_waitcnt lgkmcnt(0)")
        if OPT["probe"] != "none":
            for i, r in enumerate(("s60", "s19", "s20")): I(f"buffer_load_dwordx4 v[{DST+4*i}:{DST+4*i+3}], v16, s[28:31], {r} offen")
        I("s_waitcnt vmcnt(0)", "s_memrealtime s[94:95]", "s_waitcnt lgkmcnt(0)", "s_sub_u32 s94, s94, s96", "s_mul_i32 s94, s94, 10", "s_add_u32 s100, s100, s94", "s_cmp_lg_u32 s61, 1")
    I("s_mov_b64 s[28:29], s[70:71]")
    if OPT["wso"]: I(f"s_add_u32 s12, s12, {OPT['wso'] << 20}", "s_addc_u32 s13, s13, 0", "s_cmp_lg_u32 s61, 1")
    so = ("s60", "s19", "s20")
    def dstld():
        for i in range(3): I(f"buffer_load_dwordx4 v[{DST+4*i}:{DST+4*i+3}], v16, s[28:31], {so[i]} offen")
        I(f"buffer_load_dword v{DST+12}, v17, s[28:31], s21 offen", "s_mov_b64 s[32:33], s[68:69]")
    def clears():
        I("s_cmp_lg_u32 s37, 0", "s_cbranch_scc1 R_NOT1")
        for i in range(NC): I(*([f"s_add_u32 s61, s61, 4096"] if i and i % 4 == 0 else []), f"buffer_store_dwordx4 v[20:23], v4, s[12:15], s61 offen offset:{1024*(i&3)} sc1")
        I(f"s_mov_b64 exec, {hex((1 << (NC << (OPT['fs']-4))) - 1)}", "buffer_store_dwordx4 v[20:23], v4, s[12:15], s36 offen sc1", "s_mov_b64 exec, -1", "R_NOT1:")
    if OPT["cpos"] == 0: clears()
    dstld()
    if OPT["cpos"] == 1: clears()
    stamp("issued", lvl=2)
    def tlbwarm():
        I(f"v_and_b32 v40, {OPT['tm']}, v6", "s_cmp_eq_u32 s18, 1", "s_cbranch_scc1 T_1", "s_cmp_eq_u32 s18, 2", "s_cbranch_scc1 T_2", "s_cmp_eq_u32 s18, 3", "s_cbranch_scc1 T_3")
        I("v_mul_u32_u24 v40, 100000, v40", "global_load_dword v10, v40, s[64:65]", "global_load_dword v10, v24, s[72:73]", "s_branch T_E")
        I("T_1:", f"v_mul_u32_u24 v40, {4*CHS*8}, v40", f"v_add_u32 v40, {EA_OFF + 3*CHS*8 + CHS*8 - 128}, v40", "global_load_dword v10, v40, s[12:13]", "global_load_dword v10, v24, s[82:83]", "s_branch T_E")
        I("T_2:", f"v_mul_u32_u24 v40, {4*CHS*4}, v40", f"v_add_u32 v40, {KEY_OFF + CHS*4 - 128}, v40", "global_load_dword v10, v40, s[12:13]", "global_load_dword v10, v24, s[76:77]", "s_branch T_E")
        I("T_3:", "v_and_b32 v40, 1, v6", "v_mul_u32_u24 v40, 194, v40", "v_add_lshl_u32 v40, s16, v40, 7", "global_load_dword v10, v24, s[74:75]", "global_load_dword v10, v24, s[78:79]", "global_load_dword v10, v40, s[80:81]", "T_E:")
        vm.extend(["tl", "tl"])
    vm.append("dst")
    def wwarm():
        I("s_mov_b64 s[40:41], s[72:73]", "s_mov_b64 s[44:45], s[76:77]")
        I("s_cmp_eq_u32 s18, 0", "s_cselect_b64 s[48:49], s[74:75], s[78:79]", "s_cselect_b32 s50, 2, 1", "s_lshl_b32 s50, s50, 7", "s_mov_b32 s3, 0x8000")
        if OPT["ww"] in (1, 2): VM("ww", "buffer_load_dword v10, v41, s[40:43], 0 offen", "buffer_load_dword v10, v41, s[44:47], 0 offen")
        if OPT["ww"] < 3: VM("ws", f"buffer_load_dword v{WR+32}, v17, s[40:43], s3 offen", f"buffer_load_dword v{WR+33}, v43, s[48:51], 0 offen")
    if OPT["ww"] == 1: wwarm()
    if OPT["tl"] == 3: tlbwarm()
    for i in range(3): VM("src", f"buffer_load_dwordx4 v[{SRC+4*i}:{SRC+4*i+3}], v16, s[32:35], {so[i]} offen")
    VM("src", f"buffer_load_dword v{SRC+12}, v17, s[32:35], s21 offen", "s_barrier")
    if OPT["tl"] == 1: tlbwarm()
    if OPT["ww"] != 1: wwarm()
    I("s_mov_b64 s[52:53], s[66:67]")
    for r in ("s60", "s19", "s20", "s21"): I(f"s_lshl_b32 {r}, {r}, 1")
    el = []
    for i in range(3): el += [f"buffer_load_dwordx4 v[{EAR+8*i}:{EAR+8*i+3}], v18, s[52:55], {so[i]} offen", f"buffer_load_dwordx4 v[{EAR+8*i+4}:{EAR+8*i+7}], v18, s[52:55], {so[i]} offen offset:16"]
    el.append(f"buffer_load_dwordx2 v[{EAR+24}:{EAR+25}], v19, s[52:55], s21 offen")
    up = OPT["up"]
    I("v_mov_b32 v25, 0", "v_mov_b32 v26, 0", "v_mov_b32 v27, 0", f"v_add_u32 v5, {L_NODE}, v16")
    for i in range(10): VM("ea", f"ds_write_b128 v5, v[24:27] offset:{4096*i}", *(el[i-10+up:i-9+up] if i >= 10-up else []))
    if OPT["tl"] == 2: tlbwarm()
    I("v_mov_b32 v28, 0x7a0000ff",
      "v_cmp_eq_u32 vcc, 2, v2", f"ds_write_b32 v17, v28 offset:{L_TBL}", f"v_mov_b32 v28, {hex(BIG)}", "v_cndmask_b32 v3, v24, v28, vcc",
      f"ds_write_b32 v17, v3 offset:{L_H1}", f"ds_write_b32 v17, v28 offset:{L_TB2}")
    I("v_and_b32 v3, 0x7c, v43", f"ds_write_b32 v3, v20 offset:{L1_KEY + CH*4}")
    I(
      "s_mov_b64 s[4:5], s[64:65]", "s_mov_b64 s[8:9], s[80:81]")
    I(f"s_mul_i32 s3, {CID}, {CHS*4}", f"s_add_u32 s3, s3, {KEY_OFF}", "s_add_u32 s28, s12, s3", "s_addc_u32 s29, s13, 0", f"s_movk_i32 s30, 12672")
    I(f"s_mul_i32 s3, {CID}, {CHS*8}", f"s_add_u32 s3, s3, {EA_OFF}", "s_add_u32 s32, s12, s3", "s_addc_u32 s33, s13, 0", f"s_movk_i32 s34, 25216")
    I("s_lshl_b32 s38, s18, 12", f"s_add_u32 m0, s38, {L_W2}", "s_mov_b64 s[56:57], s[82:83]")
    if OPT["cpos"] == 1: I("s_cmp_lg_u32 s37, 0", f"s_waitcnt vmcnt({vw('dst')+NC+1})", "s_cbranch_scc0 R_W")
    I(f"s_waitcnt vmcnt({vw('dst')})", "R_W:")
    stamp("dst", lvl=2)
    for i in range(13):
        I(f"v_mul_u32_u24 v{AD+i}, s85, v{DST+i}", f"v_lshlrev_b32_sdwa v{AD+i}, 2, v{AD+i} dst_sel:DWORD dst_unused:UNUSED_PAD src0_sel:DWORD src1_sel:BYTE_3")
        if i == 12: I(f"v_or_b32 v{AD+i}, v45, v{AD+i}")
        I(f"ds_add_rtn_u32 v{RK+i}, v{AD+i}, v29 offset:{L1_CNT}")
        if 13 - OPT["ea2"] > i >= 6 + up: VM("ea", el[i-6])
    XT = ["v_lshrrev_b32 v11, 3, v0", "v_min_u32 v11, 24, v11", "v_lshlrev_b32 v11, 10, v11", "s_lshl_b32 s3, s16, 7", "buffer_load_dword v10, v11, s[4:7], s3 offen"]
    if OPT["xt"] == 1: VM("xt", *XT)
    I("s_lshl2_add_u32 s37, s37, s18", "s_cmp_eq_u32 s18, 0", "s_waitcnt " + (f"vmcnt({vw('dst')}) " if OPT["hs"] == "A" else "") + "lgkmcnt(0)", "s_barrier")
    stamp("barA", lvl=3)
    HINT = ["s_cmp_lg_u32 s37, 3", "s_cbranch_scc1 K_NOH", f"s_lshr_b32 s3, {RID}, {NR}", "s_and_b32 s3, s3, 3", "s_lshl_b32 s3, s3, 6",
            "s_mov_b64 exec, 1", "buffer_atomic_add v29, v24, s[56:59], s3 offen", "s_mov_b64 exec, -1", "K_NOH:"]
    perm = [f"v_perm_b32 v{DST+i}, v{SRC+i}, v{DST+i}, s39" for i in range(13)]
    I("s_cbranch_scc1 K_SCAN")
    I("s_cmp_eq_u32 s18, 1", "s_cbranch_scc1 PG1", "s_cmp_eq_u32 s18, 2", "s_cbranch_scc1 PG2", *(HINT if OPT["hs"] == "A" else []), "s_branch PG3")
    I("K_SCAN:", f"ds_read_b128 v[32:35], v4 offset:{L1_CNT}", "s_waitcnt lgkmcnt(0)")
    I("v_add_u32 v38, v32, v33", "v_add_u32 v39, v38, v34", "v_add_u32 v41, v39, v35", "v_mov_b32 v36, v41")
    scan64(36)
    I("v_sub_u32 v36, v36, v41", "v_add_u32 v37, v36, v32", "v_add_u32 v38, v36, v38", "v_add_u32 v39, v36, v39")
    I(f"ds_write_b128 v4, v[36:39] offset:{L1_BASE}")
    for i in range(4): I(f"v_lshl_or_b32 v{32+i}, v{32+i}, 16, v{36+i}")
    I("s_waitcnt lgkmcnt(0)", "K_WARM_RET:", "K_NOSCAN:", *([f"s_waitcnt vmcnt({vw('dst')})"] if OPT["hs"] == "B" else []), "s_barrier")
    stamp("barB", lvl=3)
    wl = [[f"s_movk_i32 s3, {4096*i}", f"buffer_load_dwordx4 v[{WR+4*i}:{WR+4*i+3}], v16, s[40:43], s3 offen"] for i in range(8)]
    wl += [[f"buffer_load_dwordx4 v4, s[44:47], s38 offen offset:{1024*i} lds"] for i in range(4)]
    nw = {0: (8, 0, 4), 1: (4, 4, 4), 2: (0, 8, 4), 3: (0, 12, 0), 4: (4, 8, 0)}[OPT["wpos"]]
    for i in range(13): I(f"ds_read_b32 v{AD+i}, v{AD+i} offset:{L1_BASE}")
    if OPT["hs"] == "A": I("s_cmp_lg_u32 s37, 3", f"s_waitcnt vmcnt({vw('src')+1})", "s_cbranch_scc0 K_SW")
    I(f"s_waitcnt vmcnt({vw('src')})", "K_SW:")
    WS = ["s_mov_b32 s3, 0x8000", f"buffer_load_dword v{WR+32}, v17, s[40:43], s3 offen", f"buffer_load_dword v{WR+33}, v43, s[48:51], 0 offen"]
    if OPT["ww"] in (3, 4): VM("ww", "buffer_load_dword v10, v40, s[40:43], 0 offen", "buffer_load_dword v10, v40, s[44:47], 0 offen")
    if OPT["ww"] == 3: VM("ws", *WS)
    if OPT["ww"] == 4: wl[7] = wl[7] + WS
    if OPT["xt"] == 4: VM("xt", *XT)
    I(*perm)
    if OPT["hs"] == "B": I(*HINT)
    for i in range(13):
        if i in (0, 6): I(f"s_waitcnt lgkmcnt({7 if i == 0 else 6})")
        I(f"v_add_lshl_u32 v{AD+i}, v{AD+i}, v{RK+i}, 2")
        if i == 12: I(f"v_or_b32 v{AD+i}, v45, v{AD+i}")
        I(f"ds_write_b32 v{AD+i}, v{DST+i} offset:{L1_KEY}")
        if i >= 13 - nw[0]: VM("w", *wl.pop(0))
    I("s_waitcnt lgkmcnt(0)", "s_barrier")
    stamp("barC", lvl=2)
    if OPT["hs"] == "C": I(*HINT)
    for i in range(4): I(f"ds_read_b128 v[{CP+4*i}:{CP+4*i+3}], v16 offset:{L1_KEY+4096*i}")
    for i in range(13): I(f"v_lshlrev_b32 v{P8+i}, 1, v{AD+i}")
    for i in range(4): VM("kst", f"s_movk_i32 s3, {4096*i}", f"s_waitcnt lgkmcnt({3-i})", f"buffer_store_dwordx4 v[{CP+4*i}:{CP+4*i+3}], v16, s[28:31], s3 offen sc1")
    if OPT["ww"] == 6: VM("ww", "buffer_load_dword v10, v40, s[40:43], 0 offen", "buffer_load_dword v10, v40, s[44:47], 0 offen", *WS)
    if OPT["ea2"]: VM("ea", *el[7-OPT["ea2"]:])
    if OPT["ww"] == 5: VM("ww", "buffer_load_dword v10, v40, s[40:43], 0 offen", "buffer_load_dword v10, v40, s[44:47], 0 offen", *WS)
    TABLD = "buffer_load_dword v8, v3, s[12:15], s36 offen sc1"
    TABCMP = ["v_cmp_eq_u32 vcc, -1, v8"]
    TABA = [f"s_lshr_b32 s36, s84, {lt-2}", f"s_lshl_b32 s36, s36, {lt+8}", f"s_and_b32 s3, s84, {TP//4-1}", "s_lshl2_add_u32 s36, s3, s36"]
    I(*TABA); I(f"v_lshlrev_b32 v3, {lt}, v0")
    I(f"s_lshl_b32 s60, {CID}, {lt}", f"s_lshl_b32 s61, {CID}, {OPT['fs']}", f"v_lshlrev_b32 v41, {OPT['fs']}, v0", f"s_add_u32 s61, s61, {FL_OFF}")
    I(f"s_mov_b32 s24, {NLOG2E}", f"s_mov_b32 s25, {NLOG2E}", "s_mov_b32 s27, 0xffff0000", "v_and_b32 v5, 0x300, v16", "v_lshrrev_b32 v5, 2, v5", "v_xor_b32 v5, v5, v16", f"v_add_u32 v5, {L_W}, v5")
    I(f"v_lshl_add_u32 v7, v2, 8, v17", f"v_add_u32 v7, {L_S + 2048}, v7", f"v_add_u32 v9, {L_S}, v17")
    I("s_lshl_b32 s23, s18, 11", "v_and_b32 v48, 0x380, v4", "v_bfe_u32 v49, v6, 2, 1", "v_lshl_add_u32 v48, v49, 10, v48", "v_and_b32 v30, 48, v4",
      "v_lshl_add_u32 v48, v30, 1, v48", "v_add_u32 v48, s23, v48", "v_add_u32 v49, 8, v48", "v_add_u32 v50, 16, v48", "v_add_u32 v51, 24, v48",
      f"s_mul_i32 s22, s16, {NS}", f"s_sub_u32 s22, {L_NODE}, s22", f"v_mov_b32 v28, {NS}",
      "v_and_or_b32 v31, v4, 16, 2.0", f"v_mul_u32_u24 v44, {CHS}, v0", "v_and_b32 v26, 0x70, v4", "v_add_u32 v27, 0x80000000, v30",
      "v_lshrrev_b32 v46, 3, v0", "v_lshlrev_b32 v47, 4, v46", "v_xor_b32 v47, v47, v4", "v_and_b32 v47, 0x70, v47", "v_add_u32 v46, s16, v46", "v_lshl_add_u32 v55, v46, 7, v47",
      "s_lshl_b32 s62, s18, 10", f"s_add_u32 s62, s62, {L_X}", "s_cmp_eq_u32 s18, 0", "s_mov_b32 s63, 0x3f000", f"s_cselect_b32 s63, {L_X + 6*4096}, s63")
    HLD = "buffer_load_dword v20, v43, s[56:59], s37 offen sc1"
    HCMP = "v_cmp_lt_u32 vcc, v20, v22"
    I("v_and_b32 v22, 0xcf, v0", "v_cmp_eq_u32 vcc, 0x80, v22", "s_cmp_eq_u32 s18, 2", "s_cselect_b32 s37, 0, 0x1000", f"v_cndmask_b32_e64 v22, 0, {64 >> NR}, vcc")
    if OPT["xt"] == 2: VM("xt", *XT)
    stamp("kout", lvl=3)
    xd = [[f"s_add_u32 m0, s62, {4096*i}" if i < 6 else "s_mov_b32 m0, s63", "v_add_u32 v55, 0x1000, v55" if i else "s_nop 0",
           "buffer_load_dwordx4 v55, s[4:7], 0 offen lds"] for i in range(7)]
    KEY, O4, O8 = 64, 170, 160
    F3LD = "buffer_load_dword v9, v41, s[12:15], s52 offen sc1"
    def eadma(o, base, imm): return [f"s_add_u32 m0, {base}, {imm}", "s_nop 0", f"buffer_load_dwordx4 v{o}, s[12:15], s51 offen sc1 lds"]
    ea = [eadma(O8+n, "s23", STG0 + 8192*(n>>1) + 1024*(n&1)) for n in range(10)]
    def plan(p): return {x[:-1]: int(x[-1], 16) for x in p.split(".")}
    xs, es = plan(OPT["xs"]), plan(OPT["es"])
    assert sum(xs.values()) == 7 and sum(es.values()) == 10
    def hook(h):
        if OPT["est"] == h:
            for i in range(7): VM("est", f"s_movk_i32 s3, {4096*i}", *([f"s_waitcnt lgkmcnt({6-i})"] if h == "d" else []), f"buffer_store_dwordx4 v[{CP+4*i}:{CP+4*i+3}], v16, s[32:35], s3 offen sc1")
        if OPT["f3l"] == h: VM("f3", F3LD)
        for k in range(xs.get(h, 0)): VM("x", *xd.pop(0))
        if es.get(h) and len(ea) == 10:
            I(f"s_waitcnt vmcnt({vw('f3')})", "v_cmp_eq_u32 vcc, -1, v9", "s_cbranch_vccnz K_F3", "K_F3_RET:", "s_cmp_lg_u32 s20, 0", "s_cbranch_scc1 K_MEA", "K_MEA_RET:")
            stamp("f3", lvl=3)
        for k in range(es.get(h, 0)): VM("eb", *ea.pop(0))
    def bar(n, extra=None):
        w = [vw(t) for t in ([extra] if extra else []) + (["est"] if str(OPT["f3s"]) == n else [])]
        if str(OPT["f3s"]) == n: I("s_cmp_lg_u32 s18, 1")
        I("s_waitcnt " + (f"vmcnt({min(w)}) " if w else "") + "lgkmcnt(0)", "s_barrier")
        if str(OPT["f3s"]) == n: I("s_cbranch_scc1 K_NOF3", "s_mov_b64 exec, 1", "buffer_store_dword v24, v24, s[12:15], s61 offen sc1", "s_mov_b64 exec, -1", "K_NOF3:")
    for i in range(13):
        if i in (0, 4, 8): I(f"s_waitcnt vmcnt({vw('ea', {0: 5, 4: 3, 8: 0}[i])})")
        if i == 8: stamp("ea_in", lvl=3)
        if i == OPT["hl"] and OPT["hs"] != "N": VM("kst", HLD)
        I(f"ds_write_b64 v{P8+i}, v[{EAR+2*i}:{EAR+2*i+1}] offset:{L1_EA}")
        if i >= 13 - nw[1]: VM("w", *wl.pop(0))
    hook("sc")
    def scale(i):
        t = 64 + 2*(i % 4) if i < 32 else 72 + 2*(i-32)
        I(f"v_lshlrev_b32 v{t}, 16, v{WR+i}", f"v_and_b32 v{t+1}, s27, v{WR+i}", f"v_pk_mul_f32 v[{t}:{t+1}], v[{t}:{t+1}], s[24:25]", f"v_cvt_pk_bf16_f32 v{WR+i}, v{t}, v{t+1}")
        if i % 4 == 3: I(f"ds_write_b128 v5, v[{WR+i-3}:{WR+i}] offset:{1024*(i-3)}")
    if OPT["nsc"]:
        I("s_branch PG1E"); repoll("K_H", HLD, HCMP); I(".p2align 12", "PG1:", "s_branch K_WARM_RET", "s_nop 0", "PG1E:")
        I(f"s_waitcnt vmcnt({vw('w')})", ".p2align 3")
        for i in range(OPT["nsc"]):
            if OPT["hl"] > 12 and i == OPT["hsc"]: VM("kst", HLD)
            scale(i)
    I(f"s_waitcnt vmcnt({vw('kst')})")
    if OPT["hs"] != "N": I(HCMP, "s_cbranch_vccnz K_H", "K_H_RET:")
    I("s_cmp_lg_u32 s18, 0", "s_waitcnt lgkmcnt(0)", "s_barrier")
    stamp("barD", lvl=2)
    I("s_cbranch_scc1 K_NOTAB", "buffer_store_dwordx4 v[32:35], v42, s[12:15], s60 offen sc1", "K_NOTAB:")
    for i in range(7): I(f"ds_read_b128 v[{CP+4*i}:{CP+4*i+3}], v16 offset:{L1_EA+4096*i}")
    if not OPT["nsc"]:
        I("s_branch PG1E"); repoll("K_H", HLD, HCMP); I(".p2align 12", "PG1:", "s_branch K_WARM_RET", "s_nop 0", "PG1E:")
    hook("d")
    I(f"s_add_u32 m0, s38, {L_W2}")
    while len(wl) > 4: VM("w", *wl.pop(0))
    if OPT["xt"] == 3: VM("xt", *XT)
    stamp("eaout", lvl=3)
    I("s_cmp_lg_u32 s18, 0", f"s_waitcnt vmcnt({vw('w') + (1 if nw[0]+nw[1] >= 8 else 0)})", "s_cbranch_scc0 K_WW", f"s_waitcnt vmcnt({vw('w')})", "K_WW:", ".p2align 3")
    for i in range(34):
        if i >= OPT["nsc"]: scale(i)
        if i in (17, 21, 25, 29) and wl: VM("w2", *wl.pop(0))
        if i == OPT["tpos"]: VM("tab", TABLD)
    I(f"ds_write_b32 v9, v{WR+32}", f"ds_write_b32 v7, v{WR+33}")
    for i in (32, 33):
        t = 72 + 2*(i-32)
        I(f"v_lshlrev_b32 v64, 16, v{WR+i}", f"v_and_b32 v65, s27, v{WR+i}", f"v_sub_f32 v64, v{t}, v64", f"v_sub_f32 v65, v{t+1}, v65", f"v_cvt_pk_bf16_f32 v{66+i-32}, v64, v65")
    if OPT["e1"]: I("v_mov_b32 v66, 0")
    I("ds_write_b32 v9, v66 offset:1024", "ds_write_b32 v7, v67 offset:256")
    I(*[f"s_mov_b32 s{40+i}, {STG0 + 8192*i}" for i in range(5)])
    I(f"s_mov_b32 s24, {NLN2}", f"s_mov_b32 s25, {NLN2}", f"s_mov_b32 s50, {KEY_OFF}", f"s_mov_b32 s51, {EA_OFF}", f"s_mov_b32 s52, {FL_OFF}")
    for w in range(3): I(f"s_cmp_eq_u32 s18, {w+1}", f"s_cbranch_scc1 PG{w+4}")
    I("K_WARM_RET2:")
    stamp("wdone", lvl=3)
    tr = []
    for f in range(16):
        for jh in range(2): tr.append(f"ds_read_b64_tr_b16 a[{AW2+4*f+2*jh}:{AW2+4*f+2*jh+1}], v62 offset:{(16*(f>>1) + 8*jh)*128 + 32*(f&1)}")
    for f in range(32):
        for jh in range(2): tr.append(f"ds_read_b64_tr_b16 a[{AW1A+4*f+2*jh}:{AW1A+4*f+2*jh+1}], v{56+((f>>2)&3)} offset:{(64*(f>>4) + 8*(f&3) + 4*jh)*256}")
    for b in range(4): tr.append(f"ds_read_b64_tr_b16 a[{AW1C+2*b}:{AW1C+2*b+1}], v60 offset:{64*b}")
    tr += [f"ds_read_b64_tr_b16 a[{AB1}:{AB1+1}], v61", "ds_read_b64_tr_b16 v[14:15], v63"]
    tr2, tr = tr[:32], tr[32:]
    if OPT["est"] == "d": I(f"s_waitcnt vmcnt({vw('est', OPT['tw'])})")
    if OPT["ntr0"] < 0 and OPT["tpos"] < 0: VM("tab", TABLD)
    hook("w")
    bar("E")
    stamp("barE", lvl=2)
    if OPT["ntr0"] >= 0: I(*tr[:OPT["ntr0"]]); tr = tr[OPT["ntr0"]:]; VM("tab", TABLD)
    I(*tr[:OPT["ntr"]]); tr = tr[OPT["ntr"]:]
    if str(OPT["f3s"]) == "E" and OPT["ntr0"] < 0: I(f"s_waitcnt vmcnt({vw('tab')+1})", "s_cbranch_scc0 K_TW")
    I(f"s_waitcnt vmcnt({vw('tab')})", "K_TW:")
    I(*TABCMP); I("s_cbranch_vccnz K_TAB", "K_TAB_RET:")
    stamp("tab", lvl=2)
    I("v_and_b32 v33, 0xffff, v8", "v_add_lshl_u32 v32, v44, v33, 2", "v_lshrrev_b32 v33, 16, v8", "v_subrev_u32 v33, 16, v33")
    AD, RK = 96, 128
    def compact(dst):
        I("v_cmp_lt_i32 vcc, 0, v33", "v_cmp_lt_i32 s[46:47], 8, v33", "v_cmp_lt_i32 s[48:49], 16, v33", "v_mbcnt_lo_u32_b32 v35, vcc_lo, 0", "v_mbcnt_hi_u32_b32 v35, vcc_hi, v35",
          "v_mbcnt_lo_u32_b32 v35, s46, v35", "v_mbcnt_hi_u32_b32 v35, s47, v35", "v_mbcnt_lo_u32_b32 v35, s48, v35", "v_mbcnt_hi_u32_b32 v35, s49, v35",
          "v_cmp_gt_u32 s[36:37], 30, v35", "v_lshlrev_b32 v35, 3, v35", "v_add_u32 v45, 8, v35", "v_add_u32 v52, 16, v35", "v_add_u32 v40, 32, v34", "v_add_u32 v53, 64, v34",
          "s_and_b64 vcc, vcc, s[36:37]", "s_and_b64 s[46:47], s[46:47], s[36:37]", "s_and_b64 s[48:49], s[48:49], s[36:37]",
          "v_cndmask_b32 v35, 4, v35, vcc", "v_cndmask_b32 v45, 4, v45, s[46:47]", "v_cndmask_b32 v52, 4, v52, s[48:49]",
          f"ds_permute_b32 v{dst}, v35, v34", "ds_permute_b32 v40, v45, v40", "ds_permute_b32 v53, v52, v53",
          "v_cndmask_b32_e64 v35, 0, 24, vcc", "v_sub_u32 v33, v33, v35", "v_lshl_add_u32 v34, v35, 2, v34")
    def units(k, o4, o8):
        return ["s_waitcnt lgkmcnt(0)", "v_or3_b32 v36, v36, v40, v53", "v_lshlrev_b32 v39, 1, v36", "s_nop 0",
                f"v_add_u32_dpp v{o4}, v36, v31 quad_perm:[0,0,2,2] row_mask:0xf bank_mask:0xf",
                f"buffer_load_dwordx4 v[{k}:{k+3}], v{o4}, s[12:15], s50 offen sc1",
                f"v_add_u32_dpp v{o8}, v39, v27 quad_perm:[0,0,0,0] row_mask:0xf bank_mask:0xf",
                f"v_add_u32_dpp v{o8+1}, v39, v27 quad_perm:[2,2,2,2] row_mask:0xf bank_mask:0xf", f"v_bfe_i32 v{o4}, v{o4}, 30, 1"]
    def octets(src, its, off, o8):
        I(f"v_lshlrev_b32 v39, 1, v{src}", f"v_lshlrev_b32 v37, 1, v{src}", f"v_lshlrev_b32 v38, 1, v{src}", "s_nop 0",
          "v_mov_b32_dpp v37, v39 row_shr:4 row_mask:0xf bank_mask:0xa", "v_mov_b32_dpp v38, v39 row_shl:4 row_mask:0xf bank_mask:0x5", "s_nop 0")
        for n, i in enumerate(its):
            for h in range(2): I(f"v_add_u32_dpp v{o8+2*n+h}, v{37+h}, v{off} quad_perm:[{i},{i},{i},{i}] row_mask:0xf bank_mask:0xf")
    for i in range(4):
        VM(f"k{i}", f"v_add_u32_dpp v{O4+i}, v32, v30 quad_perm:[{i},{i},{i},{i}] row_mask:0xf bank_mask:0xf",
          f"buffer_load_dwordx4 v[{KEY+4*i}:{KEY+4*i+3}], v{O4+i}, s[12:15], s50 offen sc1")
    I(f"v_add_u32 v34, 0xc0000040, v32")
    compact(36)
    octets(32, range(4), 26, O8)
    VM("k4", *units(KEY+16, O4+4, O8+8))
    hook("k")
    I("v_and_b32 v244, 0x3c0, v4", "v_bfe_u32 v245, v6, 1, 1", "v_lshl_add_u32 v244, v245, 10, v244", "v_and_b32 v245, 1, v6",
      "v_lshl_add_u32 v244, v245, 5, v244", "v_add_u32 v244, s23, v244", "v_add_u32 v245, 8, v244", "v_add_u32 v246, 16, v244", "v_add_u32 v247, 24, v244")
    I(f"v_mul_u32_u24 v21, {NS}, v0", f"v_add_u32 v21, {L_NODE}, v21", "v_cmp_gt_u32 s[38:39], s17, v0")
    I("s_sub_u32 s27, 256, s17", "s_sub_u32 s19, s27, 32", "s_mov_b32 s20, 0")
    I(*tr)
    I("v_bfe_u32 v35, v6, 4, 1", "v_lshlrev_b32 v35, 4, v35", f"v_xor_b32 v{FI+1}, v35, v26")
    for j in range(1, 8): I(f"v_xor_b32 v{FI+1+2*j}, {32*(j&3)}, v{FI+1}")
    I("v_and_b32 v35, 3, v6", f"v_mul_u32_u24 v{FR}, 0x420, v35", "v_bfe_u32 v35, v6, 2, 3", f"v_lshl_add_u32 v{FR}, v35, 7, v{FR}", "v_bfe_u32 v35, v6, 3, 1",
      f"v_lshl_add_u32 v{FR}, v35, 4, v{FR}", f"v_xor_b32 v{FR}, v{FR}, v1", "s_lshl_b32 s45, s18, 13", f"s_add_u32 s45, s45, {L_W}", f"v_add_u32 v{FR}, s45, v{FR}")
    for k in range(1, 4): I(f"v_xor_b32 v{FR+k}, {16*k}, v{FR}")
    I("v_and_b32 v20, 31, v6", "s_lshl_b32 s3, s18, 7", "v_lshl_add_u32 v57, v20, 2, s3", "v_and_b32 v59, 0x38, v6", "v_lshl_add_u32 v59, v59, 1, s3",
      "s_sub_u32 s3, 896, s3", "v_lshl_add_u32 v58, v20, 2, s3")
    def phaseB(k, a, r, sreg, m=None):
        if m:
            for j in range(4): I(f"v_or_b32 v{k+j}, v{m}, v{k+j}")
        for j in range(4): I(f"v_mad_u32_u16 v{a+j}, v{k+j}, v28, s22")
        for j in range(4):
            I(f"ds_add_rtn_u32 v{r+j}, v{a+j}, v29",
              f"v_add_u32_sdwa v{k+j}, v{(244 if m else 48)+j}, s{sreg} dst_sel:WORD_0 dst_unused:UNUSED_PRESERVE src0_sel:DWORD src1_sel:DWORD")
    def phaseC(k, a, r):
        L = []
        for j in range(4): L += [f"v_min_u32 v{r+j}, {CAP-1}, v{r+j}", f"v_lshl_add_u32 v{a+j}, v{r+j}, 2, v{a+j}", f"ds_write_b32 v{a+j}, v{k+j} offset:4"]
        return L
    for i in range(5):
        if OPT["bk"] == i: I("s_barrier")
        I(f"s_waitcnt vmcnt({vw(f'k{i}')})")
        if i == 0: stamp("key0", lvl=2)
        hook(f"b{i}")
        phaseB(KEY+4*i, AD+4*i, RK+4*i, 40+i, O4+4 if i == 4 else None)
    I("v_cmp_lt_i32 vcc, 0, v33", "s_cbranch_vccnz K_MORE", "K_MORE_RET:", "s_branch PG2E")
    repoll("K_TAB", TABLD, "\n".join(TABCMP))
    I(".p2align 12", "PG2:", "s_branch K_WARM_RET")
    repoll("K_F3", F3LD, "v_cmp_eq_u32 vcc, -1, v9")
    I("PG2E:"); bar("1")
    stamp("bar1", lvl=2)
    I("s_mov_b64 exec, s[38:39]", "ds_read_b32 v20, v21", "s_mov_b64 exec, -1")
    hook("a1")
    I("s_waitcnt lgkmcnt(0)", "s_mov_b64 exec, s[38:39]")
    I(f"v_cmp_lt_u32 vcc, {CAP}, v20", "v_min_u32 v20, 63, v20", "v_sub_u32 v22, 63, v20", "v_lshlrev_b32 v22, 2, v22",
      f"ds_add_rtn_u32 v23, v22, v29 offset:{L_H1}")
    I("s_cbranch_vccz K_A1", f"ds_write_b32 v24, v29 offset:{L_FLAG}", "K_A1:")
    I("s_mov_b64 exec, -1")
    hook("a2"); bar("2")
    I(f"ds_read_b32 v25, v43 offset:{L_H1}")
    I(*phaseC(KEY, AD, RK))
    I("s_waitcnt lgkmcnt(4)", "v_mov_b32 v46, v25")
    scan64(46, phaseC(KEY+4, AD+4, RK+4))
    I("v_sub_u32 v46, v46, v25", "ds_bpermute_b32 v46, v22, v46")
    I("v_lshrrev_b32 v30, 1, v20", "v_cmp_lt_u32 s[36:37], 26, v20")
    hook("a3")
    I("s_waitcnt lgkmcnt(0)")
    I("v_add_u32 v23, v23, v46", "v_cmp_gt_u32 vcc, s19, v23", "v_lshlrev_b32 v33, 1, v23", "v_lshlrev_b32 v34, 2, v23",
      "v_cndmask_b32_e64 v31, 8, 10, vcc", "v_cndmask_b32 v31, v31, v30, s[36:37]")
    I("v_cmp_gt_u32 vcc, s27, v23", "v_cmp_gt_u32 s[36:37], v20, v31", "v_mov_b32 v35, 0xff", "v_sub_u32 v37, 63, v31",
      "s_and_b64 vcc, vcc, s[36:37]", "s_and_b64 vcc, vcc, s[38:39]")
    I("v_cndmask_b32 v32, 0, v31, vcc", "v_sub_u32 v32, v20, v32", "v_sub_u32 v36, 63, v32", "v_lshlrev_b32 v36, 2, v36", "v_lshlrev_b32 v37, 2, v37")
    I("s_mov_b64 exec, s[38:39]", f"ds_add_rtn_u32 v38, v36, v29 offset:{L_H2}")
    I("s_mov_b64 exec, vcc", f"ds_add_rtn_u32 v39, v37, v29 offset:{L_H2}", "v_add_lshl_u32 v47, s16, v0, 7", f"ds_write_b32 v34, v47 offset:{L_SN}")
    I("s_mov_b64 exec, -1", "v_cndmask_b32 v35, v35, v33, vcc")
    I("v_lshl_or_b32 v48, v35, 8, v32", "v_lshl_or_b32 v48, v48, 16, v0")
    I("v_or_b32 v33, 1, v33", "v_lshl_or_b32 v49, v33, 8, v31", "v_lshl_or_b32 v49, v49, 8, v32", "v_lshl_or_b32 v49, v49, 8, v0", "v_lshl_add_u32 v50, v32, 2, v21")
    I("s_mov_b64 s[46:47], vcc"); hook("a4"); bar("3")
    stamp("bar3", lvl=3)
    I(f"ds_read_b32 v25, v43 offset:{L_H2}"); I(*phaseC(KEY+8, AD+8, RK+8)); I("s_waitcnt lgkmcnt(4)", "v_mov_b32 v46, v25")
    scan64(46, phaseC(KEY+12, AD+12, RK+12))
    I("v_sub_u32 v46, v46, v25", "ds_bpermute_b32 v36, v36, v46", "ds_bpermute_b32 v37, v37, v46")
    I(*phaseC(KEY+16, AD+16, RK+16))
    I("s_waitcnt lgkmcnt(4)", "v_add_lshl_u32 v36, v36, v38, 2", "v_add_lshl_u32 v37, v37, v39, 2")
    o0 = L_TBL // 256
    I("s_mov_b64 exec, s[38:39]", f"ds_write2st64_b32 v36, v48, v21 offset0:{o0} offset1:{o0+4}", "s_mov_b64 exec, s[46:47]", f"ds_write2st64_b32 v37, v49, v50 offset0:{o0} offset1:{o0+4}",
      "s_mov_b64 exec, -1")
    hook("a5")
    sr = [f"ds_read_b128 a[{AX+4*k}:{AX+4*k+3}], v{34+(k&3)} offset:{4096*(k>>2)}" for k in range(8)]
    I("s_movk_i32 s53, 0x3f80", "s_movk_i32 s54, 0xff", f"s_movk_i32 s55, {SPL_S}", "s_mov_b32 s49, 0xffff", "s_movk_i32 s59, 128",
      f"s_mov_b32 s57, {f32(2.0**-100)}", "s_movk_i32 s58, 0x207", f"v_add_u32 v6, {L_X}, v1")
    I("s_mov_b32 s28, s4", "s_or_b32 s29, s5, 0x800000", f"s_mov_b32 s30, {N_NODES}")
    bar("4", "x")
    stamp("bar4", lvl=2)
    o0 = L_TBL // 256
    I(f"ds_read_b128 v[20:23], v59 offset:{L_TB2}", f"ds_read2st64_b32 v[26:27], v57 offset0:{o0} offset1:{o0+4}",
      f"ds_read_b32 v7, v58 offset:{L_TBL}", f"ds_read_b32 v8, v58 offset:{L_TB2}", f"ds_read_b32 v24, v24 offset:{L_FLAG}")
    for b in range(4): I(*onehot(EE+2*b, b))
    for k in range(4): I(f"v_mov_b32 v{34+k}, v{FR+k}")
    if not OPT["st2"]:
        I("s_waitcnt lgkmcnt(4)")
        for j in range(8): I(f"ds_read_u16 v{FI+2*j}, v{20+(j&3)} offset:{6 + 4*(j>>2)}")
        xx, xr = xrd((28, 29, 30, 31))
        I("s_waitcnt lgkmcnt(8)"); I(*xrow(28, 26, 29, 6)); I(*xx); I(*xr)
        I("s_waitcnt lgkmcnt(8)")
        fl = ["v_mov_b32 v5, v26", "v_mov_b32 v2, v27", "v_bfe_u32 v3, v26, 16, 8", "s_nop 0", "s_waitcnt lgkmcnt(4)", "v_cmp_ne_u32 vcc, 0, v24", "v_readfirstlane_b32 s20, v3", "s_nop 0"]
        for j in range(8):
            if j == 4: hook("s0")
            VM(f"s{j>>2}", f"s_add_u32 m0, s45, {1024*j}", fl[j], f"buffer_load_dwordx4 v[{FI+2*j}:{FI+2*j+1}], s[28:31], 0 idxen offen lds")
        assert not ea and not xd
        I(*recs(40, 2)); I(*recs(10, 8)); I(*xrow(9, 7, 29, 6))
        if OPT["stamp"]: I("s_mov_b32 s62, s20")
        I(*LSET)
        I("s_lshl_b32 s45, s18, 5", "s_add_u32 s45, s45, 128", f"s_mul_i32 s46, s18, {OST_W}", f"s_add_u32 s46, s46, {L_OST}", "s_movk_i32 s47, 576", f"s_mov_b32 s48, {L_SN}", "s_mov_b32 s27, 0xffff0000")
        I("s_waitcnt lgkmcnt(0)", "s_cbranch_vccnz K_SLOW0", eaddr(44, 40), eaddr(45, 41), eaddr(46, 42), eaddr(4, 43), xaddr(42), ".p2align 3")
        stamp("q1")
        q = sum([qchain(QQ+16*b, b, EE+2*b) for b in range(4)], [])
        I(*weave(q, [], [0]*20, {**{k: tr2[3*k:3*k+3] for k in range(11)}, 14: ["s_waitcnt vmcnt(4)", "s_barrier"], 15: sr[0:2], 16: sr[2:4], 17: [earead(0, 44), earead(1, 45)], 18: [earead(2, 46)]}))
    else:
        assert not ea and not xd
        xx, xr = xrd((28, 29, 30, 31))
        I("s_waitcnt lgkmcnt(3)")
        for j in range(4): I(f"ds_read_u16 v{FI+2*j}, v{20+j} offset:6")
        I(*xrow(28, 26, 29, 6)); I(*xx); I(*xr)
        for j in range(4): I(f"ds_read_u16 v{FI+8+2*j}, v{20+j} offset:10")
        def dma(j, f): return [f"s_add_u32 m0, s45, {1024*j}", f, f"buffer_load_dwordx4 v[{FI+2*j}:{FI+2*j+1}], s[28:31], 0 idxen offen lds"]
        I("s_waitcnt lgkmcnt(8)")
        for j, f in enumerate(["v_mov_b32 v5, v26", "v_mov_b32 v2, v27", "v_bfe_u32 v3, v26, 16, 8", "v_cmp_ne_u32 vcc, 0, v24"]): I(*dma(j, f))
        I("s_waitcnt lgkmcnt(0)", "s_cbranch_vccnz K_SLOW0", ".p2align 3")
        stamp("q1")
        q = sum([qchain(QQ+16*b, b, EE+2*b) for b in range(4)], [])
        late = ["s_lshl_b32 s45, s18, 5", "s_add_u32 s45, s45, 128", f"s_mul_i32 s46, s18, {OST_W}", f"s_add_u32 s46, s46, {L_OST}", "s_movk_i32 s47, 576", f"s_mov_b32 s48, {L_SN}", "s_mov_b32 s27, 0xffff0000"]
        ex = {0: recs(40, 2) + recs(10, 8), 1: ["v_readfirstlane_b32 s20, v3"] + xrow(9, 7, 29, 6), 2: tr2[0:6], 3: tr2[6:12],
              4: dma(4, "s_nop 0"), 5: dma(5, "s_nop 0"), 6: dma(6, "s_nop 0"), 7: dma(7, "s_nop 0"),
              8: ["s_waitcnt lgkmcnt(0)", eaddr(44, 40), eaddr(45, 41), eaddr(46, 42), eaddr(4, 43), xaddr(42)], 9: tr2[12:17], 10: tr2[17:23], 11: tr2[23:29],
              12: tr2[29:] + (["s_mov_b32 s62, s20"] if OPT["stamp"] else []) + LSET, 13: late,
              14: ["s_waitcnt vmcnt(4)", "s_barrier"], 15: sr[0:2], 16: sr[2:4], 17: [earead(0, 44), earead(1, 45)], 18: [earead(2, 46)]}
        I(*weave(q, [], [0]*20, ex)); I(".p2align 3")
    c = chain(NN, 0, 0, QQ)
    seg = ["s_waitcnt lgkmcnt(0)", "s_nop 0", c[0], xload(2, 0), c[1], xload(2, 1), c[2], xload(2, 2), c[3], xload(2, 3), c[4], xaddr(43), "s_nop 8", "s_nop 0"]
    for b in range(3): seg += weave(chain(NN+16*(b+1), b+1, 0, QQ+16*(b+1)), E0(b), (3,3,3,3,4), {0: ["s_waitcnt vmcnt(4)"], 1: sr[4:6], 2: sr[6:8], 3: [xload(0, 0)]} if b == 2 else None) + A0(b)
    seg += ["s_waitcnt lgkmcnt(0)", "s_barrier"] + weave(chain(T0, 0, 1, QQ), E0(3), (3,3,3,3,4), {3: [xload(0, 1)]}) + A0(3)
    I(*align8(seg))
    stamp("loop1")
    I("s_branch K_A0")
    def partA(t):
        cur = (1+t) % 3; prv = t % 3
        seg = []
        for b in range(3):
            tc = T0 + 16*(b % 2); tn = T0 + 16*((b+1) % 2)
            if b == 0: extra = {0: [f"ds_read_b32 v6, v2 offset:{4*(t+5)}"], 3: [xload(prv, 2)], 4: ["v_cmpx_lt_u32 vcc, s19, v3"]}
            elif b == 1: extra = {1: ["s_cmp_lt_i32 s19, s37"], 2: ["s_waitcnt lgkmcnt(0)"], 3: [xload(prv, 3)], 4: [xaddr(6)]}
            else: extra = {0: ["s_cselect_b32 s6, s26, 0"], 1: ["s_cmp_ge_u32 s19, s20"], 2: ["s_waitcnt vmcnt(4)"], 3: [earead(prv, 4)],
                           4: ["s_cbranch_scc1 K_EXIT" if t < 2 else "s_cbranch_scc0 K_LOOP"]}
            ms = chain(tn, b+1, cur, QQ+16*(b+1))
            if b < 2: seg += weave(ms, exps(tc), (3,3,3,3,4), extra) + pk3(b, tc)
            else: seg += weave(ms, exps(tc)[:12], (3,3,3,3,0), extra)
        return seg
    def partB(t):
        cur = (1+t) % 3; nxt = (2+t) % 3
        seg = [xload(cur, 0)] + exps(T0)[12:] + pk3(2, T0)
        seg += weave(chain(T0, 0, nxt, QQ), exps(T1), (3,3,3,3,4), {0: ["s_add_u32 s19, s19, 1"], 3: [xload(cur, 1)], 4: [eaddr(4, 6)] + (["v_add_u32 v2, 12, v2"] if t == 2 else [])}) + pk3(3, T1)
        return seg
    def loop(pg, ret, n, ex):
        I(".p2align 12", f"PG{pg}:", f"s_branch {ret}", "s_nop 0", f"K_LOOP{n}:")
        I(*align8(partB(2)))
        I(f"K_A{n}:")
        I(*[x.replace("K_EXIT", ex).replace("K_LOOP", f"K_LOOP{n}") for x in align8(partA(0) + partB(0) + partA(1) + partB(1) + partA(2))[:-1]])
        I(f"s_branch {ex}", f"K_EXIT{n}:")
    loop(3, "K_WARM_RET", 0, "K_MID")
    I(".p2align 12", "PG4:", "s_branch K_WARM_RET2", "s_nop 0", "K_MID:")
    stamp("exit1")
    OH = QQ+48
    def mix(c, g): return c[:4] + g + c[4:]
    def ms(n):
        nonlocal seg
        if OPT.get("ms"): I(*align8(seg)); seg = []; stamp(n)
    xx, xr = xrd((9, 4, 6, 2))
    seg = exps(T0)[12:] + pk3(2, T0) + ["s_mov_b64 s[60:61], exec", "s_mov_b64 exec, -1"] + exps(T1) + xx + ["s_mov_b32 s6, s26", xaddr(10), "s_waitcnt vmcnt(0)", LSET[3]]
    seg += xr + [xload(0, k) for k in range(4)] + ["s_mov_b64 exec, s[60:61]", "s_nop 0"] + pk3(3, T1) + ["s_mov_b64 exec, -1", "s_waitcnt lgkmcnt(0)"]
    ms("m1")
    if not OPT["srm"]:
        seg += spread(mix(qchain(QQ, 0, OH3), binit(LB)), [xaddr(11), "v_bfe_u32 v3, v7, 16, 8"] + lbinit(LB) + ["v_readfirstlane_b32 s20, v3"] + onehot(OH3, 0) + R(0) + M(0),
                      pre={1: [xload(1, 0), xload(1, 1)], 2: [xload(1, 2)], 3: [xload(1, 3)]}) + U(0)
        ms("m2")
        seg += spread(mix(qchain(QQ+16, 1, OH3+2), G(0)), V(0) + onehot(OH3+2, 1) + [eaddr(4, 10), eaddr(6, 11), eaddr(0, 12), "v_mov_b32 v2, v8"] + R(1) + M(1),
                      pre={2: ([f"s_mov_b32 s63, s20"] if OPT["stamp"] else []) + [LSET[0]], 3: [LSET[1]], 5: [LSET[2]], 4: [earead(0, 4), earead(1, 6), earead(2, 0)]}) + U(1)
        ms("m3")
        seg += spread(mix(qchain(QQ+32, 2, OH3), G(1)), V(1) + onehot(OH3, 2) + OCON[:8] + R(2) + M(2), pre={6: ["s_waitcnt vmcnt(4) lgkmcnt(0)"]}) + U(2)
        ms("m4")
        seg += spread(mix(chain(NN, 0, 0, QQ), G(2)), V(2) + OCON[8:] + dec2(LB) + R(3) + M(3)) + U(3)
        seg += spread(mix(chain(NN+16, 1, 0, QQ+16), G(3)), V(3) + onehot(OH3+2, 3) + [xaddr(12), eaddr(4, 13), "v_mov_b32 v5, v7"] + CHK0 + E0(0) + A1(0)[:OPT["a1"]], pre={5: [CHK1]}) + A0(0)[OPT["a1"]//2:]
        seg += check("K_RARE_A", SCL)
        ms("m6")
        q = qchain(QQ+48, 3, OH3+2); c = chain(NN+32, 2, 0, QQ+32)
        seg += spread(q[:4] + c[:1] + q[4:] + c[1:], OCV + E0(1), pre={0: [OIW], 2: [OSW[0]], 4: [OSW[1], xload(2, 0)], 6: [OSW[2], xload(2, 1)], 7: [OSW[3], xload(2, 2)], 8: [xload(2, 3)] + OSR}) + A0(1)
    ms("m7")
    e = E0(2); c = chain(NN+48, 3, 0, QQ+48)
    seg += [c[0], "s_waitcnt vmcnt(4) lgkmcnt(0)"] + OOR + [xaddr(13)] + e[:1] + [c[1], OST[0], OST[1], c[2], OST[2], OST[3], c[3], xload(0, 0)] + e[1:4] + [c[4]] + e[4:] + A0(2)
    seg += weave(chain(T0, 0, 1, QQ), E0(3), (3,3,3,3,4), {3: [xload(0, 1)]}) + A0(3)
    I(*align8(seg))
    stamp("loop2")
    I("s_branch K_A1X")
    loop(5, "K_WARM_RET2", "1X", "K_LAST")
    I(".p2align 12", "PG6:", "s_branch K_WARM_RET2", "s_nop 0", "K_LAST:")
    stamp("exit2")
    CCON = ["v_mbcnt_lo_u32_b32 v2, -1, 0", "v_mbcnt_hi_u32_b32 v2, -1, v2", "v_lshrrev_b32 v2, 3, v2", "v_lshl_add_u32 v2, s18, 3, v2",
            "v_mul_u32_u24 v4, s55, v2", "v_lshl_add_u32 v4, v4, 1, v11", "v_lshl_add_u32 v2, v2, 2, s48", "v_mov_b32 v12, 0"]
    if not OPT["srl"]:
        seg = exps(T0)[12:] + pk3(2, T0) + exps(T1) + pk3(3, T1) + ["s_mov_b64 exec, -1"] + lbinit(LB)
        seg += R(0)[:2] + weave(binit(LB), R(0)[2:], (4, 10)) + U(0) + V(0)
        for b in range(3): seg += weave(G(b), R(b+1), (3,3,3,7)) + U(b+1) + V(b+1)
        seg += spread(G(3), M(0) + M(1) + M(2) + M(3) + dec2(LB) + CHK0 + CCON[:7] + [CHK1] + CCON[7:], tail=48) + check("K_RARE_B", SCL) + OCV + [OIW] + OSW + OSR
    else:
        def mv(l):
            return [re.sub(r"\bv(\d+)\b|v\[(\d+):(\d+)\]", lambda m: (f"v{int(m.group(1))+QQ-T0}" if T0 <= int(m.group(1)) < EE else m.group(0)) if m.group(1) else
                           (f"v[{int(m.group(2))+QQ-T0}:{int(m.group(3))+QQ-T0}]" if T0 <= int(m.group(2)) < EE else m.group(0)), x) for x in l]
        L2 = QQ + 32
        g = mv(G(0) + G(1) + G(2) + G(3))
        seg = exps(T0)[12:] + pk3(2, T0) + ["s_mov_b64 s[60:61], exec", "s_mov_b64 exec, -1"] + XX(0) + lbinit(L2)
        seg += R(0)[:2] + weave(mv(binit(L2)), R(0)[2:], (4, 10)) + UU(0) + V(0)[:6]
        seg += spread(g[:5], V(0)[6:] + V(1)[:6] + exps(T1), pre={4: ["s_mov_b64 exec, s[60:61]"]}) + pk3(3, T1) + ["s_mov_b64 exec, -1", "s_mov_b32 s3, s27"] + XX(2)
        seg += spread(g[5:8], V(1)[6:] + R(2)) + UU(2) + V(2)[:6]
        seg += spread(g[8:], V(2)[6:] + V(3) + M(0) + M(2) + dec2(L2) + CHK0 + CCON[:7] + [CHK1] + CCON[7:], tail=48) + mv(check("K_RARE_B", SCL) + OCV + [OIW] + OSW) + OSR
    I(*align8(seg))
    stamp("tail")
    I(*([] if OPT["srl"] else ["s_mov_b32 s3, s27"]), "s_waitcnt lgkmcnt(6)", "s_barrier")
    I(f"ds_read_b32 v12, v12 offset:{L_FLAG}", f"ds_read2_b32 v[2:3], v2 offset1:32")
    for h in range(2):
        for r in range(2): I(f"ds_read_b128 v[{NN+8*h+4*r}:{NN+8*h+4*r+3}], v4 offset:{L_SPL + 64*SPL_S*h + SPL_S*r}")
    I("s_waitcnt lgkmcnt(6)", *OOR); I(*OST)
    I("s_waitcnt lgkmcnt(2)", "v_cmp_ne_u32 vcc, 0, v12", "v_or_b32 v2, v2, v11", "v_or_b32 v3, v3, v11")
    for h in range(2):
        if h: I("s_waitcnt lgkmcnt(0)", "s_nop 0")
        n = NN + 8*h; u = DD + 16*h
        for i in range(8): I(f"v_lshlrev_b32 v{u+2*i}, 16, v{n+i}", f"v_and_b32 v{u+2*i+1}, s3, v{n+i}")
        for i in range(4): I(f"v_pk_add_f32 v[{u+2*i}:{u+2*i+1}], v[{u+2*i}:{u+2*i+1}], v[{u+8+2*i}:{u+8+2*i+1}]")
        for i in range(4): I(f"v_cvt_pk_bf16_f32 v{n+i}, v{u+2*i}, v{u+2*i+1}")
        I(f"buffer_store_dwordx4 v[{n}:{n+3}], v{2+h}, s[8:11], 0 offen{OSTF}")
    I("s_cbranch_vccnz K_SLOW")
    if OPT["diag"]:
        if OPT.get("amp0"): I("s_sub_u32 s94, s94, s96", "s_mul_i32 s94, s94, 10", "s_add_u32 s100, s100, s94")
        I("s_mov_b32 s52, 0", "K_SPIN:", "s_memrealtime s[54:55]", "s_waitcnt lgkmcnt(0)", "s_add_u32 s52, s52, 1", "s_cmp_gt_u32 s52, 20000", "s_cbranch_scc1 K_END",
          "s_sub_u32 s54, s54, s100", "s_cmp_lt_i32 s54, 4000", "s_cbranch_scc1 K_SPIN")
    if OPT["stamp"]:
        I("s_waitcnt vmcnt(0)"); stamp("end")
        I("s_lshl_b32 s3, s2, 2", "s_add_u32 s3, s3, s18", "s_lshl_b32 s3, s3, 7", f"s_add_u32 s3, s3, {STAMP_OFF}", "v_mov_b32 v0, 0")
        for i in range(len(stamps)): I(f"v_mov_b32 v1, s{SLOTS[i]}", f"buffer_store_dword v1, v0, s[12:15], s3 offen offset:{4*i}")
        I("s_lshl_b32 s62, s62, 8", "s_or_b32 s62, s62, s63", "v_mov_b32 v1, s62", "buffer_store_dword v1, v0, s[12:15], s3 offen offset:124")
    I("K_END:", "K_END0:", "s_endpgm")
    I("K_MEA:", "s_mov_b32 s3, 0", *eadma(190, "s3", 0)); I(*eadma(191, "s3", 1024)); I("s_branch K_MEA_RET")
    for tag in ("K_RARE_A", "K_RARE_B"):
        I(f"{tag}:")
        I("s_andn2_b64 vcc, s[42:43], s[38:39]", f"s_cbranch_scc0 {tag}2")
        I(f"v_mov_b32 v{OA+1}, 0", f"v_mov_b32 v{RM}, 1", f"ds_write_b32 v{OA+1}, v{RM} offset:{L_FLAG}")
        I(f"{tag}2:", "s_mov_b64 exec, s[38:39]")
        for i in range(32): I(f"v_mov_b32 v{(QQ if tag == 'K_RARE_B' and OPT['srl'] else T0)+i}, 0")
        I("s_mov_b64 exec, -1", f"s_branch {tag}_RET")
    K2, A2, R2, O2 = 176, 180, 184, 188
    I("K_MORE:", "s_sub_u32 s40, 0, s23", "s_nop 0")
    I("s_mov_b64 exec, 1", f"ds_add_rtn_u32 v{O2}, v24, v29 offset:{L_FLAG+4}", "s_waitcnt lgkmcnt(0)", f"v_cmp_ne_u32 vcc, 0, v{O2}", "s_mov_b64 exec, -1", "s_cbranch_vccnz K_MORE_F")
    compact(36)
    I(*units(K2, O2, O2+2))
    I("s_mov_b32 s20, 1", "s_waitcnt vmcnt(0)")
    phaseB(K2, A2, R2, 40, O2)
    I("s_waitcnt lgkmcnt(0)")
    I(*phaseC(K2, A2, R2))
    I("v_cmp_lt_i32 vcc, 0, v33", "s_cbranch_vccz K_MORE_RET")
    I("K_MORE_F:", f"ds_write_b32 v24, v29 offset:{L_FLAG}", "s_branch K_MORE_RET")
    I("K_SLOW0:", *tr2)
    I("K_SLOW:")
    I("s_mov_b64 exec, -1", "s_waitcnt vmcnt(0) lgkmcnt(0)", "s_barrier")
    I("v_mbcnt_lo_u32_b32 v6, -1, 0", "v_mbcnt_hi_u32_b32 v6, -1, v6", "s_lshl_b32 s3, s18, 6", "v_add_u32 v7, s3, v6")
    I(*TABA); I(f"v_lshlrev_b32 v3, {lt}, v7", TABLD)
    I("v_lshrrev_b32 v1, 5, v6", "v_lshlrev_b32 v1, 6, v1", "v_and_b32 v6, 31, v6", "v_lshlrev_b32 v2, 4, v7")
    for i in range(4): I(f"v_mov_b32 v{16+i}, 0")
    for i in range(13): I(f"ds_write_b128 v2, v[16:19] offset:{4096*i}")
    for b in range(4): I(*onehot(EE+2*b, b))
    I("s_mov_b32 s6, s26", "s_mov_b32 s19, 0", "s_waitcnt vmcnt(0) lgkmcnt(0)", "s_barrier")
    I("K_S_SEG:")
    I("v_readlane_b32 s36, v8, s19", "s_lshl_b32 s3, s18, 6", "s_add_u32 s3, s3, s19", f"s_mul_i32 s3, s3, {CHS}", "s_nop 0",
      "s_lshr_b32 s20, s36, 16", "s_and_b32 s36, s36, 0xffff", "s_add_u32 s36, s36, s3")
    I("K_S_TILE:")
    I("s_cmp_le_i32 s20, 0", "s_cbranch_scc1 K_S_NEXT")
    I("v_add_lshl_u32 v2, s36, v6, 2", "v_lshlrev_b32 v3, 1, v2", "v_cmp_gt_i32 s[38:39], s20, v6")
    I("buffer_load_dword v9, v2, s[12:15], s50 offen sc1", f"buffer_load_dwordx2 a[{AEA}:{AEA+1}], v3, s[12:15], s51 offen sc1", "s_waitcnt vmcnt(0)")
    I(xaddr(9)); I(*[xload(0, k) for k in range(4)])
    I("v_and_b32 v9, 0xffff, v9", "v_lshl_add_u32 v0, v9, 7, v1", "v_subrev_u32 v9, s16, v9"); I(*[xload(2, k) for k in range(4)])
    I("v_mul_u32_u24 v9, 260, v9", "v_lshl_add_u32 v9, v1, 1, v9", "s_waitcnt vmcnt(0)")
    for b in range(4): I(*qchain(NN+16*b, b, EE+2*b)); I(*chain(NN+16*b, b, 0, NN+16*b))
    I(*binit(EE)); I("s_nop 15")
    for b in range(4): I(*E0(b))
    for b in range(4): I(*A0(b))
    for b in range(4): I(*R(b))
    for b in range(4): I(*(U(b) + V(b)))
    I("s_nop 1")
    for b in range(4): I(*G(b))
    I("s_nop 15"); I(*SCL)
    I("s_mov_b64 exec, s[38:39]")
    for i in range(32): I(f"ds_add_f32 v9, v{T0+i} offset:{4*i}")
    I("s_mov_b64 exec, -1", "s_waitcnt lgkmcnt(0)", "s_sub_u32 s20, s20, 32", "s_add_u32 s36, s36, 32", "s_branch K_S_TILE")
    I("K_S_NEXT:", "s_add_u32 s19, s19, 1", "s_cmp_lt_u32 s19, 64", "s_cbranch_scc1 K_S_SEG")
    I("s_barrier", "v_and_b32 v3, 7, v7", "v_lshlrev_b32 v1, 4, v3", "v_lshrrev_b32 v7, 3, v7", "s_mov_b32 s19, 0")
    I("K_S_OUT:")
    I("v_mul_u32_u24 v2, 260, v7", "v_cmp_gt_u32 vcc, s17, v7", "v_lshl_add_u32 v2, v3, 5, v2", "v_add_lshl_u32 v0, s16, v7, 7", "v_cndmask_b32 v0, 2.0, v0, vcc", "v_or_b32 v0, v0, v1")
    for i in range(8): I(f"ds_read_b32 v{16+i}, v2 offset:{4*i}")
    I("s_waitcnt lgkmcnt(0)")
    for i in range(4): I(f"v_cvt_pk_bf16_f32 v{24+i}, v{16+2*i}, v{17+2*i}")
    I("buffer_store_dwordx4 v[24:27], v0, s[8:11], 0 offen", "v_add_u32 v7, 32, v7", "s_waitcnt vmcnt(0)")
    I("s_add_u32 s19, s19, 1", "s_cmp_lt_u32 s19, 7", "s_cbranch_scc1 K_S_OUT", "s_endpgm")

def desc(name, vgpr, accum, sgpr):
    I(".p2align 6", f".amdhsa_kernel {name}")
    for l in (f"next_free_vgpr {vgpr}", f"next_free_sgpr {sgpr}", f"accum_offset {accum}", "group_segment_fixed_size 0", "kernarg_size 88",
              "user_sgpr_count 2", "user_sgpr_kernarg_segment_ptr 1", "system_sgpr_workgroup_id_x 1", "float_denorm_mode_32 3"):
        out.append("  .amdhsa_" + l)
    I(".end_amdhsa_kernel")

hdr = [l.rstrip("\n") for l in open(f"cdna_kernels/{NAME}.s.ref") if l.startswith(";") and "@launch" not in l][:12]
hdr += [f"; @launch grid=(256,1,1) block=(256,1,1) lds={L_SIZE}"]
I('.amdgcn_target "amdgcn-amd-amdhsa--gfx950"', ".text")
kernel()
I('.section .rodata,"a"')
desc(NAME + "_kernel", 512, 256, 102)
if OPT["stamp"]: hdr.append("; stamps: " + " ".join(stamps))
open(sys.argv[1], "w").write("\n".join(hdr + out) + "\n")
```

```python
import sys, struct, math
NAME = "standalone__edge_featured_mpnn_mpnn__graph"
OPT = dict(stamp=0, diag=0, sl=3, ntr=32, tw=2, hl=12, slp=4, a1=6, f3l='a1', xs='b07', es='a33.a43.a54', w2h='a3')
for a in sys.argv[2:]:
    k, v = a.split("="); OPT[k] = int(v) if v.lstrip("-").isdigit() else v

N_NODES = 50000; E = 800000
CH = 3125; CHS = 3200
TP = 64; FS = 4; NR = 2; FL_OFF = 0x40000
KEY_OFF = 0x48000; EA_OFF = 0x368000; STAMP_OFF = 0x1000000
WS_SIZE = 0x10000000
SPIN = 400000
def f32(x): return "0x%08x" % struct.unpack("<I", struct.pack("<f", x))[0]
NLOG2E = f32(-math.log2(math.e)); NLN2 = f32(-math.log(2.0))

out = []
def I(*ls):
    for l in ls:
        for x in l.split("\n"):
            x = x.strip()
            if x: out.append(x if x.endswith(":") or x.startswith(".") else "    " + x)
def CM(*ls):
    for l in ls: out.append("    ; " + l)
vm = []
def VM(tag, *ls):
    for l in ls:
        if l.startswith(("buffer_", "global_")): vm.append(tag)
        I(l)
def vw(tag, k=0):
    idx = [i for i, t in enumerate(vm) if t == tag]
    return len(vm) - 1 - idx[-1-k]
def scan64(v, fill=None):
    fill = list(fill or [])
    def gap():
        n = 0
        while fill and n < 2: I(fill.pop(0)); n += 1
        if n < 2: I(f"s_nop {1-n}")
    for op in ("row_shr:1", "row_shr:2", "row_shr:4", "row_shr:8"):
        gap(); I(f"v_add_u32_dpp v{v}, v{v}, v{v} {op} row_mask:0xf bank_mask:0xf bound_ctrl:0")
    gap(); I(f"v_add_u32_dpp v{v}, v{v}, v{v} row_bcast:15 row_mask:0xa bank_mask:0xf")
    gap(); I(f"v_add_u32_dpp v{v}, v{v}, v{v} row_bcast:31 row_mask:0xc bank_mask:0xf")
    I(*fill)
SLOTS = list(range(86, 98)) + list(range(64, 84))
stamps = []
def stamp(name, lvl=1):
    if OPT.get("amp0") == name: I("s_memrealtime s[96:97]", "s_waitcnt lgkmcnt(0)", "s_nop 0")
    if OPT.get("amp1") == name: I("s_memrealtime s[94:95]", "s_waitcnt lgkmcnt(0)", "s_nop 0")
    if OPT["diag"] == name: I("s_memrealtime s[100:101]", "s_waitcnt lgkmcnt(0)", "s_nop 0")
    if not OPT["stamp"] or lvl > OPT["sl"]: return
    stamps.append(name)
    I(f"{'s_memtime' if OPT['stamp']==1 else 's_memrealtime'} s[98:99]", "s_waitcnt lgkmcnt(0)", f"s_mov_b32 s{SLOTS[len(stamps)-1]}, s98")

CAP = 48; NS = 4 + 4*CAP
MS0 = 256; STG0 = MS0 + 2048
L1_KEY = 0; L1_EA = CHS*4; L1_CNT = 38912; L1_BASE = L1_CNT + 1024
L_H1 = STG0 + 5*8192; L_H2 = L_H1 + 256; L_SN = L_H2 + 256; L_FLAG = L_SN + 256; L_TBL = L_H1 + 1024
L_TB2 = L_TBL + 1024; L_SPL = L_TB2 + 1024; SPL_S = 144
L_W = L_SPL; L_S = L_W + 32768; L_W2 = L_S + 4096
L_OST = L_SPL + 128*SPL_S; OST_W = 32*SPL_S
L_X = L_W2 + 16384
L_NODE = L_X + 200*128
L_SIZE = L_NODE + 196*NS
assert L_SIZE <= 163840 and L_SPL + 123*SPL_S <= L_OST and L_OST + 4*OST_W <= L_W2
OSTF = " sc1"
T0, T1, EE, NN, DD, QQ = 16, 32, 48, 64, 128, 192
AX, AW1A, AW1B, AW1C, AW2, AEA, AB2 = 0, 48, 112, 176, 184, 248, 254
BIG = 0x1000000

import re
V4 = ("v_exp_f32", "v_rcp_f32", "v_add_f32", "v_mul_f32", "v_add_u32", "v_mov_b32", "v_and_b32", "v_lshrrev_b32", "v_lshlrev_b32", "v_cvt_f32_ubyte2",
      "v_mul_u32_u24", "v_cndmask_b32", "v_readfirstlane_b32", "v_or_b32", "v_sub_u32", "v_xor_b32")
def has_lit(s):
    for t in re.split(r"[,\s]+", s.strip())[1:]:
        if re.fullmatch(r"0x[0-9a-fA-F]+|-?\d+", t):
            v = int(t, 0)
            if not -16 <= v <= 64: return True
    return False
def isz(s):
    s = s.strip(); op = s.split()[0]
    if s.endswith(":") or s.startswith("."): return 0
    if op.startswith(("s_waitcnt", "s_nop", "s_cbranch", "s_branch", "s_movk", "s_barrier")): return 4
    if op.startswith("s_memtime") or op.startswith("s_memrealtime"): return 8
    if op.startswith("s_"): return 8 if has_lit(s) else 4
    if op.startswith("v_cmp") and not op.endswith("_e64"): return (8 if has_lit(s) else 4) if s.split()[1] == "vcc," else 8
    if op == "v_cndmask_b32" and not s.endswith("vcc"): return 8
    if op in V4: return 8 if has_lit(s) else 4
    return 8
def align8(seg):
    off = 0; last4 = None
    seg = list(seg); i = 0
    while i <= len(seg):
        s = seg[i] if i < len(seg) else "v_pk_x"
        z = isz(s)
        if z == 8 and off % 8:
            if last4 is not None:
                op = seg[last4].split()[0]
                seg[last4] = seg[last4].replace(op, op + "_e64", 1); off += 4
            elif i == len(seg) or sum(1 for x in seg[i:i+5] if isz(x) == 8) == 5:
                if i < len(seg): print("pad before", s, file=sys.stderr)
                seg.insert(i, "s_nop 0"); off += 4; i += 1
        if z == 8: last4 = None
        if z == 4 and s.split()[0] in V4 and s.split()[0] != "v_readfirstlane_b32" and off % 8 == 0: last4 = i
        off += z; i += 1
    return seg
def xload(buf, kk): return f"buffer_load_dwordx4 a[{AX+16*buf+4*kk}:{AX+16*buf+4*kk+3}], v0, s[4:7], 0 offen offset:{16*kk}"
def xaddr(rec): return f"v_mad_u32_u16 v0, v{rec}, s59, v1 op_sel:[1,0,0,0]"
def eaddr(d, rec): return f"v_and_b32 v{d}, v14, v{rec}"
def earead(buf, r): return f"ds_read_b64 a[{AEA+2*buf}:{AEA+2*buf+1}], v{r}"
def chain(dst, blk, buf, c):
    L = []
    for kk in range(4):
        w = AW1A + 16*blk + 4*kk; x = AX + 16*buf + 4*kk; ci = c if kk == 0 else dst
        L.append(f"v_mfma_f32_32x32x16_bf16 v[{dst}:{dst+15}], a[{w}:{w+3}], a[{x}:{x+3}], v[{ci}:{ci+15}]")
    return L + [f"v_mfma_f32_32x32x8_bf16 v[{dst}:{dst+15}], a[{AW1C+2*blk}:{AW1C+2*blk+1}], a[{AEA+2*buf}:{AEA+2*buf+1}], v[{dst}:{dst+15}]"]
def qchain(dst, blk, order=(0, 1, 2, 3)):
    L = []
    for kk in order:
        w = AW1B + 16*blk + 4*kk; x = AX + 32 + 4*kk
        L.append(f"v_mfma_f32_32x32x16_bf16 v[{dst}:{dst+15}], a[{w}:{w+3}], a[{x}:{x+3}], " + ("0" if kk == order[0] else f"v[{dst}:{dst+15}]"))
    return L
def onehot(r, blk):
    c = "1.0" if blk & 1 else "s53"
    return [f"v_mov_b32 v{r+(blk>>1)}, {c}", f"v_mov_b32 v{r+1-(blk>>1)}, 0"]
def gemm2(blk, hb):
    L = []
    for p in range(2):
        for ob in range(2):
            w = AW2 + 4*((blk*2+p)*2+ob); o = T0 + 16*ob
            L.append(f"v_mfma_f32_32x32x16_bf16 v[{o}:{o+15}], a[{w}:{w+3}], v[{hb+4*p}:{hb+4*p+3}], v[{o}:{o+15}]")
    return L
def weave(ms, fill, cnts, extra=None):
    L = []; fill = list(fill)
    for k, m in enumerate(ms):
        L.append(m)
        if extra: L += extra.get(k, [])
        L += fill[:cnts[k]]; fill = fill[cnts[k]:]
    assert not fill
    return L
def repoll(tag, load, cmp):
    I(f"{tag}:", f"s_mov_b32 s3, {SPIN}", f"{tag}_L:", "s_mov_b64 exec, vcc", f"s_sleep {OPT['slp']}", load, "s_sub_u32 s3, s3, 1", "s_cbranch_scc1 K_END",
      "s_waitcnt vmcnt(0)", cmp, f"s_cbranch_vccnz {tag}_L", "s_mov_b64 exec, -1", f"s_branch {tag}_RET")

def cost(x):
    op = x.split()[0]
    if op.startswith(("v_exp", "v_rcp")): return 8
    if op.startswith("ds_write"): return {"b32": 8, "b64": 12, "b128": 20}[op.split("_")[-1]]
    if op.startswith("buffer_store"): return 12
    return 4
def spread(ms, fill, pre=None, tail=None):
    pre = pre or {}
    L = []; fill = list(fill); n = len(ms)
    if tail is None: tail = 36
    for k, m in enumerate(ms):
        L.append(m); P = pre.get(k, []); L += P
        if k == n-1: break
        room = 32 - (8 if "x16" in m else 4) - sum(cost(x) for x in P)
        if P and P[0].startswith("s_") and "x16" in m: room += 4
        if P and not P[0].startswith(("s_", "v_")) and "x16" not in m: room -= 4
        while fill and room > 0 and sum(map(cost, fill)) - cost(fill[0]) >= tail - sum(cost(x) for x in pre.get(n-1, [])):
            room -= cost(fill[0]); L.append(fill.pop(0))
    return L + fill
def pk3(b, tc):
    n = NN+16*b; d = DD+16*b
    return [f"v_pk_fma_f32 v[{n+2*i}:{n+2*i+1}], v[{n+2*i}:{n+2*i+1}], v[{EE+2*i}:{EE+2*i+1}], v[{n+2*i}:{n+2*i+1}]" for i in range(8)] + \
           [f"v_pk_fma_f32 v[{n+2*i}:{n+2*i+1}], v[{tc+2*i}:{tc+2*i+1}], v[{d+2*i}:{d+2*i+1}], v[{n+2*i}:{n+2*i+1}]" for i in range(8)] + \
           [f"v_pk_fma_f32 v[{d+2*i}:{d+2*i+1}], v[{d+2*i}:{d+2*i+1}], v[{EE+2*i}:{EE+2*i+1}], v[{d+2*i}:{d+2*i+1}]" for i in range(8)]
def exps(tc): return [f"v_exp_f32 v{EE+i}, v{tc+i}" for i in range(16)]
def E0(b): return [f"v_exp_f32 v{DD+16*b+i}, v{NN+16*b+i}" for i in range(16)]
def A0(b): return [f"v_pk_add_f32 v[{DD+16*b+2*i}:{DD+16*b+2*i+1}], v[{DD+16*b+2*i}:{DD+16*b+2*i+1}], 1.0 op_sel_hi:[1,0]" for i in range(8)]
def A1(b): return [f"v_add_f32 v{DD+16*b+i}, 1.0, v{DD+16*b+i}" for i in range(16)]
LB, RM, OA = EE, EE+4, EE+5
def R(b): return [f"v_rcp_f32 v{DD+16*b+i}, v{DD+16*b+i}" for i in range(16)]
def M(b): return [f"v_min3_f32 v{RM}, v{DD+16*b+2*i}, v{DD+16*b+2*i+1}, " + ("1.0" if b == 0 and i == 0 else f"v{RM}") for i in range(8)]
def U(b): return [f"v_pk_mul_f32 v[{NN+16*b+2*i}:{NN+16*b+2*i+1}], v[{NN+16*b+2*i}:{NN+16*b+2*i+1}], v[{DD+16*b+2*i}:{DD+16*b+2*i+1}]" for i in range(8)]
def pkm(d, a, b): return [f"v_pk_mul_f32 v[{d+2*i}:{d+2*i+1}], v[{a+2*i}:{a+2*i+1}], v[{b+2*i}:{b+2*i+1}]" for i in range(8)]
def XX(b): n = NN+16*b; d = DD+16*b; return pkm(n, n, d+16) + pkm(n+16, n+16, d) + pkm(d, d, d+16)
def UU(b): n = NN+16*b; d = DD+16*b; return pkm(n, n, d) + pkm(n+16, n+16, d)
def V(b): return [f"v_cvt_pk_bf16_f32 v{NN+16*b+i}, v{NN+16*b+2*i}, v{NN+16*b+2*i+1}" for i in range(8)]
def G(b): return gemm2(b, NN+16*b)
def lbinit(r): return [f"v_cvt_f32_ubyte2 v{r+2}, v5", f"v_mov_b32 v{r+1}, 0", f"v_mov_b32 v{r+3}, 0", f"v_lshrrev_b32 v{r}, 16, v{r+2}"]
def binit(r): return [f"v_mfma_f32_32x32x8_bf16 v[{T0+16*ob}:{T0+16*ob+15}], a[{AB2}:{AB2+1}], v[{r+2*ob}:{r+2*ob+1}], 0" for ob in range(2)]
def dec2(lb):
    return [f"v_lshrrev_b32 v{OA}, 24, v5", f"v_and_b32 v{OA+2}, s54, v5", f"v_cmp_eq_u32 vcc, s54, v{OA}", f"v_mad_u32_u24 v{OA}, v{OA}, s55, v1",
            f"v_add_lshl_u32 v{OA+2}, s16, v{OA+2}, 7", f"v_cndmask_b32 v{OA}, v{OA}, v8, vcc", f"v_cndmask_b32 v{OA+2}, 2.0, v{OA+2}, vcc",
            f"v_cmp_eq_u32 s[38:39], 0, v{lb+2}"]
CHK0 = [f"v_cmp_nlt_f32 vcc, s57, v{RM}"]
CHK1 = "s_or_b64 s[42:43], vcc, s[38:39]"
def check(tag, scl):
    return [f"v_cmp_class_f32 s[40:41], v{T0}, s58"] + scl + ["s_or_b64 s[42:43], s[42:43], s[40:41]", f"s_cbranch_scc1 {tag}", f"{tag}_RET:"]
OCV = [f"v_cvt_pk_bf16_f32 v{T0+i}, v{T0+2*i}, v{T0+2*i+1}" for i in range(16)]
OCON = ["v_mbcnt_lo_u32_b32 v11, -1, 0", "v_mbcnt_hi_u32_b32 v11, -1, v11", "v_and_or_b32 v8, v11, 31, s45", "v_lshrrev_b32 v9, 3, v11", "v_mad_u32_u24 v8, v8, s55, v1",
        "v_mul_u32_u24 v9, s47, v9", "v_and_b32 v11, 7, v11", "v_add_u32 v9, s46, v9", "v_lshlrev_b32 v11, 4, v11", "v_add_u32 v10, v9, v11"]
OIW = f"ds_write_b32 v8, v{OA+2} offset:{L_SPL+64}"
OSW = [f"ds_write_b128 v{OA}, v[{T0+4*k}:{T0+4*k+3}] offset:{L_SPL+16*k}" for k in range(4)]
OSR = [f"ds_read2_b32 v[{EE+2*k}:{EE+2*k+1}], v9 offset0:{32+72*k} offset1:{68+72*k}" for k in range(2)] + \
      [f"ds_read_b128 v[{T1+4*j}:{T1+4*j+3}], v10 offset:{144*j}" for j in range(4)]
OOR = [f"v_or_b32 v{EE+j}, v{EE+j}, v11" for j in range(4)]
OST = [f"buffer_store_dwordx4 v[{T1+4*j}:{T1+4*j+3}], v{EE+j}, s[8:11], 0 offen{OSTF}" for j in range(4)]
def xrow(d, e, t, base): return [f"v_and_b32 v{d}, s54, v{e}", f"v_and_b32 v{t}, 7, v{e}", f"v_lshl_add_u32 v{d}, v{d}, 7, v{base}", f"v_lshlrev_b32 v{t}, 4, v{t}", f"v_xor_b32 v{d}, v{d}, v{t}"]
def xrd(r): return [f"v_xor_b32 v{r[k]}, {16*k}, v{r[0]}" for k in range(1, 4)], [f"ds_read_b128 a[{AX+32+4*k}:{AX+35+4*k}], v{r[k]}" for k in range(4)]
def recs(d, p): return [f"ds_read2_b32 v[{d}:{d+1}], v{p} offset0:1 offset1:2", f"ds_read2_b32 v[{d+2}:{d+3}], v{p} offset0:3 offset1:4"]
LSET = ["s_max_u32 s20, s20, 2", "s_sub_u32 s37, s20, 3", "s_sub_u32 s20, s20, 1", "s_mov_b32 s19, 1"]

FI, FR = 224, 208
def kernel():
    K = NAME + "_kernel"
    lt = TP.bit_length() - 1
    assert L_W % 256 == 0 and L_X % 128 == 0
    I(".p2align 12", f".globl {K}", ".p2align 8", f".type {K},@function", f"{K}:")
    I("s_cmp_ge_u32 s2, 256", "s_cbranch_scc1 K_END0")
    stamp("start")
    I("s_load_dwordx16 s[64:79], s[0:1], 0", "s_load_dwordx4 s[80:83], s[0:1], 64", "s_load_dwordx2 s[12:13], s[0:1], 80")
    DST, SRC, EAR, AD, RK, P8, CP, WR = 64, 80, 96, 128, 144, 160, 176, 208
    CM("pull this kernel's code into L2 (each workgroup touches an eighth of its lines)")
    I("s_getpc_b64 s[62:63]", "K_PC:", "s_bfe_u32 s3, s2, 0x30003", "v_and_b32 v2, 0xf8, v0", "v_add_lshl_u32 v41, v2, s3, 7",
      "v_min_u32 v2, K_SLOW0-K_PC, v41", "global_load_dword v10, v2, s[62:63]")
    CM("constants, hidden behind the kernarg load. s84 = chunk id = bucket id, s18 = wave, nodes [s16, s16+s17)")
    I("v_lshrrev_b32 v2, 6, v0", "v_and_b32 v6, 63, v0", "v_lshlrev_b32 v17, 2, v0", "v_readfirstlane_b32 s18, v2")
    I("v_mov_b32 v24, 0", f"ds_write_b32 v17, v24 offset:{L1_CNT}", "v_lshlrev_b32 v16, 4, v0", "v_lshlrev_b32 v4, 4, v6")
    I("s_and_b32 s84, s2, 7", "s_lshl_b32 s84, s84, 5", "s_lshr_b32 s3, s2, 3", "s_add_u32 s84, s84, s3")
    CID = "s84"
    I("s_mov_b32 s15, 0x20000", f"s_mov_b32 s14, {WS_SIZE}", f"s_mov_b32 s30, {E*4}", "s_mov_b32 s34, s30")
    for r in (31, 35, 43, 47, 51, 55, 7, 11): I(f"s_mov_b32 s{r}, s15")
    I(f"s_mov_b32 s42, {132*256}", f"s_movk_i32 s46, {128*128}", f"s_mov_b32 s54, {E*8}", f"s_mov_b32 s26, {N_NODES*128}", "s_mov_b32 s6, s26", "s_mov_b32 s10, s26")
    I(f"s_lshr_b32 s19, {CID}, 5", f"s_mul_i32 s19, s19, {32*CH*4}", f"s_and_b32 s20, {CID}, 31", f"s_mul_i32 s21, s20, {(CH-3072)*4}", "s_add_u32 s21, s21, s19",
      f"s_add_u32 s21, s21, {3*131072 - 768}", "s_lshl_b32 s20, s20, 12", "s_add_u32 s60, s19, s20", "s_add_u32 s19, s60, 0x20000", "s_add_u32 s20, s60, 0x40000")
    I("v_mov_b32 v20, -1", "v_mov_b32 v21, -1", "v_mov_b32 v22, -1", "v_mov_b32 v23, -1", "s_movk_i32 s58, 256", "s_mov_b32 s59, s15")
    NC = 1 << (NR-2); RID = CID
    I(f"s_and_b32 s37, {RID}, {(1 << NR) - 1}", f"s_lshl_b32 s61, s18, {NR-2}", f"s_add_u32 s61, s61, {RID}", f"s_lshl_b32 s36, s61, {FS}", f"s_add_u32 s36, s36, {FL_OFF}", "s_lshl_b32 s61, s61, 10")
    I("s_mul_i32 s16, s84, 12800051", "s_add_u32 s16, s16, 0xffff", "s_add_u32 s17, s16, 12800051", "s_lshr_b32 s16, s16, 16", "s_lshr_b32 s17, s17, 16",
      f"s_min_u32 s17, s17, {N_NODES}", "s_sub_u32 s17, s17, s16", "s_mov_b32 s85, 85899")
    I("v_mov_b32 v29, 1", "v_lshlrev_b32 v18, 5, v0", "v_lshlrev_b32 v19, 3, v0", "v_lshlrev_b32 v43, 2, v6")
    I("v_subrev_u32 v45, 192, v0", f"v_cmp_gt_u32 vcc, {CH-3072}, v45", f"v_mov_b32 v45, {hex(BIG)}", "s_mov_b32 s39, 0x05040100", "v_cndmask_b32 v45, v45, v24, vcc")
    I(f"v_lshrrev_b32 v42, {lt-4}, v6", f"v_lshlrev_b32 v42, {lt+8}, v42", f"v_and_b32 v37, {TP-1}, v4", "v_add_u32 v42, v42, v37")
    I("v_lshrrev_b32 v1, 5, v6", "v_bfe_u32 v52, v6, 2, 2", "v_and_b32 v53, 3, v6", "v_bfe_u32 v54, v6, 4, 1",
      "v_lshlrev_b32 v55, 3, v53", "v_lshl_add_u32 v55, v54, 5, v55",
      "v_lshl_add_u32 v56, v52, 8, v55", "v_lshl_add_u32 v60, v1, 10, v56", f"v_add_u32 v60, {L_S}, v60",
      "v_lshl_add_u32 v56, v1, 13, v56", "v_lshl_add_u32 v56, v52, 6, v56", f"v_add_u32 v56, {L_W}, v56",
      "v_xor_b32 v57, 64, v56", "v_xor_b32 v58, 0x80, v56", "v_xor_b32 v59, 0xc0, v56",
      "v_and_b32 v55, 1, v53", "v_lshlrev_b32 v55, 6, v55", "v_lshl_add_u32 v55, v54, 4, v55", "v_lshrrev_b32 v53, 1, v53", "v_lshl_add_u32 v55, v53, 3, v55",
      "v_lshl_add_u32 v62, v52, 7, v55", "v_lshl_add_u32 v62, v1, 9, v62", f"v_add_u32 v62, {L_W2}, v62",
      "v_and_b32 v52, 1, v52", "v_lshl_add_u32 v63, v52, 5, v55", "v_lshl_add_u32 v63, v1, 8, v63", f"v_add_u32 v63, {L_S + 2048}, v63",
      "v_lshlrev_b32 v1, 6, v1")
    I("s_waitcnt lgkmcnt(0)")
    I("s_mov_b64 s[28:29], s[70:71]")
    so = ("s60", "s19", "s20")
    def dstld():
        for i in range(3): I(f"buffer_load_dwordx4 v[{DST+4*i}:{DST+4*i+3}], v16, s[28:31], {so[i]} offen")
        I(f"buffer_load_dword v{DST+12}, v17, s[28:31], s21 offen", "s_mov_b64 s[32:33], s[68:69]")
    def clears():
        I("s_cmp_lg_u32 s37, 0", "s_cbranch_scc1 R_NOT1")
        for i in range(NC): I(*([f"s_add_u32 s61, s61, 4096"] if i and i % 4 == 0 else []), f"buffer_store_dwordx4 v[20:23], v4, s[12:15], s61 offen offset:{1024*(i&3)} sc1")
        I(f"s_mov_b64 exec, {hex((1 << (NC << (FS-4))) - 1)}", "buffer_store_dwordx4 v[20:23], v4, s[12:15], s36 offen sc1", "s_mov_b64 exec, -1", "R_NOT1:")
    CM("phase 1: load this chunk's dst / src / e_attr; every fourth workgroup clears a slice of the hand-off tables")
    dstld(); clears()
    stamp("issued", lvl=2)
    vm.append("dst")
    def wwarm():
        I("s_mov_b64 s[40:41], s[72:73]", "s_mov_b64 s[44:45], s[76:77]")
        I("s_cmp_eq_u32 s18, 0", "s_cselect_b64 s[48:49], s[74:75], s[78:79]", "s_cselect_b32 s50, 0x100, 0", "s_cmp_eq_u32 s18, 2", "s_cselect_b32 s50, 0x80, s50", "s_mov_b32 s3, 0x8000")
        VM("ww", "buffer_load_dword v10, v41, s[40:43], 0 offen", "buffer_load_dword v10, v41, s[44:47], 0 offen")
        VM("ws", f"buffer_load_dword v{WR+32}, v17, s[40:43], s3 offen", f"buffer_load_dword v{WR+33}, v43, s[48:51], 0 offen")
    for i in range(3): VM("src", f"buffer_load_dwordx4 v[{SRC+4*i}:{SRC+4*i+3}], v16, s[32:35], {so[i]} offen")
    VM("src", f"buffer_load_dword v{SRC+12}, v17, s[32:35], s21 offen", "s_barrier")
    wwarm()
    I("s_mov_b64 s[52:53], s[66:67]")
    for r in ("s60", "s19", "s20", "s21"): I(f"s_lshl_b32 {r}, {r}, 1")
    el = []
    for i in range(3): el += [f"buffer_load_dwordx4 v[{EAR+8*i}:{EAR+8*i+3}], v18, s[52:55], {so[i]} offen", f"buffer_load_dwordx4 v[{EAR+8*i+4}:{EAR+8*i+7}], v18, s[52:55], {so[i]} offen offset:16"]
    el.append(f"buffer_load_dwordx2 v[{EAR+24}:{EAR+25}], v19, s[52:55], s21 offen")
    up, ea2 = 4, 3
    I("v_mov_b32 v25, 0", "v_mov_b32 v26, 0", "v_mov_b32 v27, 0", f"v_add_u32 v5, {L_NODE}, v16")
    for i in range(10): VM("ea", f"ds_write_b128 v5, v[24:27] offset:{4096*i}", *(el[i-10+up:i-9+up] if i >= 10-up else []))
    I("v_mov_b32 v28, 0x7a0000ff",
      "v_cmp_eq_u32 vcc, 2, v2", f"ds_write_b32 v17, v28 offset:{L_TBL}", f"v_mov_b32 v28, {hex(BIG)}", "v_cndmask_b32 v3, v24, v28, vcc",
      f"ds_write_b32 v17, v3 offset:{L_H1}", f"ds_write_b32 v17, v28 offset:{L_TB2}")
    I("v_and_b32 v3, 0x7c, v43", f"ds_write_b32 v3, v20 offset:{L1_KEY + CH*4}")
    I(
      "s_mov_b64 s[4:5], s[64:65]", "s_mov_b64 s[8:9], s[80:81]")
    I(f"s_mul_i32 s3, {CID}, {CHS*4}", f"s_add_u32 s3, s3, {KEY_OFF}", "s_add_u32 s28, s12, s3", "s_addc_u32 s29, s13, 0", f"s_movk_i32 s30, 12672")
    I(f"s_mul_i32 s3, {CID}, {CHS*8}", f"s_add_u32 s3, s3, {EA_OFF}", "s_add_u32 s32, s12, s3", "s_addc_u32 s33, s13, 0", f"s_movk_i32 s34, 25216")
    I("s_lshl_b32 s38, s18, 12", "s_mov_b64 s[56:57], s[82:83]")
    I("s_cmp_lg_u32 s37, 0", f"s_waitcnt vmcnt({vw('dst')+NC+1})", "s_cbranch_scc0 R_W")
    I(f"s_waitcnt vmcnt({vw('dst')})", "R_W:")
    stamp("dst", lvl=2)
    CM("counting sort by bucket = (dst * 85899) >> 24: rank by LDS atomics, scan, scatter")
    for i in range(13):
        I(f"v_mul_u32_u24 v{AD+i}, s85, v{DST+i}", f"v_lshlrev_b32_sdwa v{AD+i}, 2, v{AD+i} dst_sel:DWORD dst_unused:UNUSED_PAD src0_sel:DWORD src1_sel:BYTE_3")
        if i == 12: I(f"v_or_b32 v{AD+i}, v45, v{AD+i}")
        I(f"ds_add_rtn_u32 v{RK+i}, v{AD+i}, v29 offset:{L1_CNT}")
    XT = ["v_lshrrev_b32 v11, 3, v0", "v_min_u32 v11, 24, v11", "v_lshlrev_b32 v11, 10, v11", "s_lshl_b32 s3, s16, 7", "buffer_load_dword v10, v11, s[4:7], s3 offen"]
    VM("xt", *XT)
    I("s_lshl2_add_u32 s37, s37, s18", "s_cmp_eq_u32 s18, 0", "s_waitcnt lgkmcnt(0)", "s_barrier")
    stamp("barA", lvl=3)
    HINT = ["s_cmp_lg_u32 s37, 3", "s_cbranch_scc1 K_NOH", f"s_lshr_b32 s3, {RID}, {NR}", "s_and_b32 s3, s3, 3", "s_lshl_b32 s3, s3, 6",
            "s_mov_b64 exec, 1", "buffer_atomic_add v29, v24, s[56:59], s3 offen", "s_mov_b64 exec, -1", "K_NOH:"]
    perm = [f"v_perm_b32 v{DST+i}, v{SRC+i}, v{DST+i}, s39" for i in range(13)]
    CM("wave 0 scans; the others touch the first line of the next code pages")
    I("s_cbranch_scc1 K_SCAN")
    I("s_cmp_eq_u32 s18, 1", "s_cbranch_scc1 PG1", "s_cmp_eq_u32 s18, 2", "s_cbranch_scc1 PG2", "s_branch PG3")
    I("K_SCAN:", f"ds_read_b128 v[32:35], v4 offset:{L1_CNT}", "s_waitcnt lgkmcnt(0)")
    I("v_add_u32 v38, v32, v33", "v_add_u32 v39, v38, v34", "v_add_u32 v41, v39, v35", "v_mov_b32 v36, v41")
    scan64(36)
    I("v_sub_u32 v36, v36, v41", "v_add_u32 v37, v36, v32", "v_add_u32 v38, v36, v38", "v_add_u32 v39, v36, v39")
    I(f"ds_write_b128 v4, v[36:39] offset:{L1_BASE}")
    for i in range(4): I(f"v_lshl_or_b32 v{32+i}, v{32+i}, 16, v{36+i}")
    I("s_waitcnt lgkmcnt(0)", "K_WARM_RET:", "s_barrier")
    stamp("barB", lvl=3)
    wl = [[f"s_movk_i32 s3, {4096*i}", f"buffer_load_dwordx4 v[{WR+4*i}:{WR+4*i+3}], v16, s[40:43], s3 offen"] for i in range(8)]
    W2R = [148, 152, 156, 248]
    wl += [[f"buffer_load_dwordx4 v[{W2R[i]}:{W2R[i]+3}], v4, s[44:47], s38 offen offset:{1024*i}"] for i in range(4)]
    for i in range(13): I(f"ds_read_b32 v{AD+i}, v{AD+i} offset:{L1_BASE}")
    I(f"s_waitcnt vmcnt({vw('src')})", *perm)
    for i in range(13):
        if i in (0, 6): I(f"s_waitcnt lgkmcnt({7 if i == 0 else 6})")
        I(f"v_add_lshl_u32 v{AD+i}, v{AD+i}, v{RK+i}, 2")
        if i == 12: I(f"v_or_b32 v{AD+i}, v45, v{AD+i}")
        I(f"ds_write_b32 v{AD+i}, v{DST+i} offset:{L1_KEY}")
    I("s_waitcnt lgkmcnt(0)", "s_barrier")
    stamp("barC", lvl=2)
    CM("the table clears of this workgroup have landed: count it into d_debug; write the sorted keys (src<<16 | dst) out")
    I(*HINT)
    for i in range(4): I(f"ds_read_b128 v[{CP+4*i}:{CP+4*i+3}], v16 offset:{L1_KEY+4096*i}")
    for i in range(13): I(f"v_lshlrev_b32 v{P8+i}, 1, v{AD+i}")
    for i in range(4): VM("kst", f"s_movk_i32 s3, {4096*i}", f"s_waitcnt lgkmcnt({3-i})", f"buffer_store_dwordx4 v[{CP+4*i}:{CP+4*i+3}], v16, s[28:31], s3 offen sc1")
    VM("ea", *el[7-ea2:])
    TABLD = "buffer_load_dword v8, v3, s[12:15], s36 offen sc1"
    TABCMP = ["v_cmp_eq_u32 vcc, -1, v8"]
    TABA = [f"s_lshr_b32 s36, s84, {lt-2}", f"s_lshl_b32 s36, s36, {lt+8}", f"s_and_b32 s3, s84, {TP//4-1}", "s_lshl2_add_u32 s36, s3, s36"]
    I(*TABA); I(f"v_lshlrev_b32 v3, {lt}, v0")
    I(f"s_lshl_b32 s60, {CID}, {lt}", f"s_lshl_b32 s61, {CID}, {FS}", f"v_lshlrev_b32 v41, {FS}, v0", f"s_add_u32 s61, s61, {FL_OFF}")
    I(f"s_mov_b32 s24, {NLOG2E}", f"s_mov_b32 s25, {NLOG2E}", "s_mov_b32 s27, 0xffff0000", "v_and_b32 v5, 0x300, v16", "v_lshrrev_b32 v5, 2, v5", "v_xor_b32 v5, v5, v16", f"v_add_u32 v5, {L_W}, v5")
    I(f"v_lshl_add_u32 v7, v2, 8, v17", f"v_add_u32 v7, {L_S + 1024}, v7", f"v_add_u32 v9, {L_S}, v17")
    I("s_lshl_b32 s23, s18, 11", "v_and_b32 v48, 0x380, v4", "v_bfe_u32 v49, v6, 2, 1", "v_lshl_add_u32 v48, v49, 10, v48", "v_and_b32 v30, 48, v4",
      "v_lshl_add_u32 v48, v30, 1, v48", "v_add_u32 v48, s23, v48", "v_add_u32 v49, 8, v48", "v_add_u32 v50, 16, v48", "v_add_u32 v51, 24, v48",
      f"s_mul_i32 s22, s16, {NS}", f"s_sub_u32 s22, {L_NODE}, s22", f"v_mov_b32 v28, {NS}",
      "v_and_or_b32 v31, v4, 16, 2.0", f"v_mul_u32_u24 v44, {CHS}, v0", "v_and_b32 v26, 0x70, v4", "v_add_u32 v27, 0x80000000, v30",
      "v_lshrrev_b32 v46, 3, v0", "v_lshlrev_b32 v47, 4, v46", "v_xor_b32 v47, v47, v4", "v_and_b32 v47, 0x70, v47", "v_add_u32 v46, s16, v46", "v_lshl_add_u32 v55, v46, 7, v47",
      "s_lshl_b32 s62, s18, 10", f"s_add_u32 s62, s62, {L_X}", "s_cmp_eq_u32 s18, 0", "s_mov_b32 s63, 0x3f000", f"s_cselect_b32 s63, {L_X + 6*4096}, s63")
    HLD = "buffer_load_dword v20, v43, s[56:59], s37 offen sc1"
    HCMP = "v_cmp_lt_u32 vcc, v20, v22"
    I("v_and_b32 v22, 0xcf, v0", "v_cmp_eq_u32 vcc, 0x80, v22", "s_cmp_eq_u32 s18, 2", "s_cselect_b32 s37, 0, 0x1000", f"v_cndmask_b32_e64 v22, 0, {64 >> NR}, vcc")
    stamp("kout", lvl=3)
    xd = [[f"s_add_u32 m0, s62, {4096*i}" if i < 6 else "s_mov_b32 m0, s63", "v_add_u32 v55, 0x1000, v55" if i else "s_nop 0",
           "buffer_load_dwordx4 v55, s[4:7], 0 offen lds"] for i in range(7)]
    KEY, O4, O8 = 64, 170, 160
    F3LD = "buffer_load_dword v9, v41, s[12:15], s52 offen sc1"
    def eadma(o, base, imm): return [f"s_add_u32 m0, {base}, {imm}", "s_nop 0", f"buffer_load_dwordx4 v{o}, s[12:15], s51 offen sc1 lds"]
    ea = [eadma(O8+n, "s23", STG0 + 8192*(n>>1) + 1024*(n&1)) for n in range(10)]
    def plan(p): return {x[:-1]: int(x[-1], 16) for x in p.split(".")}
    xs, es = plan(OPT["xs"]), plan(OPT["es"])
    assert sum(xs.values()) == 7 and sum(es.values()) == 10
    def hook(h):
        if OPT["f3l"] == h: VM("f3", F3LD)
        for k in range(xs.get(h, 0)): VM("x", *xd.pop(0))
        if OPT["w2h"] == h:
            CM("second-layer weights * -ln2 -> LDS")
            for i in range(16):
                t = 84 + 2*(i % 4); r = W2R[i//4] + i % 4
                I(f"v_lshlrev_b32 v{t}, 16, v{r}", f"v_and_b32 v{t+1}, s53, v{r}", f"v_pk_mul_f32 v[{t}:{t+1}], v[{t}:{t+1}], s[24:25]", f"v_cvt_pk_bf16_f32 v{r}, v{t}, v{t+1}")
                if i % 4 == 3: I(f"ds_write_b128 v5, v[{r-3}:{r}] offset:{256*(i-3)}")
        if es.get(h) and len(ea) == 10:
            CM("e_attr segments -> LDS once their producers have flagged them")
            I(f"s_waitcnt vmcnt({vw('f3')})", "v_cmp_eq_u32 vcc, -1, v9", "s_cbranch_vccnz K_F3", "K_F3_RET:", "s_cmp_lg_u32 s20, 0", "s_cbranch_scc1 K_MEA", "K_MEA_RET:")
            stamp("f3", lvl=3)
        for k in range(es.get(h, 0)): VM("eb", *ea.pop(0))
    def bar(tag=None): I("s_waitcnt " + (f"vmcnt({vw(tag)}) " if tag else "") + "lgkmcnt(0)", "s_barrier")
    for i in range(13):
        if i in (0, 4, 8): I(f"s_waitcnt vmcnt({vw('ea', {0: 5, 4: 3, 8: 0}[i])})")
        if i == 8: stamp("ea_in", lvl=3)
        if i == OPT["hl"]: VM("kst", HLD)
        I(f"ds_write_b64 v{P8+i}, v[{EAR+2*i}:{EAR+2*i+1}] offset:{L1_EA}")
        if i >= 1: VM("w", *wl.pop(0))
    def scale(i):
        t = 64 + 2*(i % 4) if i < 32 else 72 + 2*(i-32)
        I(f"v_lshlrev_b32 v{t}, 16, v{WR+i}", f"v_and_b32 v{t+1}, s27, v{WR+i}", f"v_pk_mul_f32 v[{t}:{t+1}], v[{t}:{t+1}], s[24:25]", f"v_cvt_pk_bf16_f32 v{WR+i}, v{t}, v{t+1}")
        if i % 4 == 3: I(f"ds_write_b128 v5, v[{WR+i-3}:{WR+i}] offset:{1024*(i-3)}")
    CM("keys are at the coherence point and all table clears are done: publish (base, count) of every segment")
    I(f"s_waitcnt vmcnt({vw('kst')})")
    I(HCMP, "s_cbranch_vccnz K_H", "K_H_RET:")
    I("s_cmp_lg_u32 s18, 0", "s_waitcnt lgkmcnt(0)", "s_barrier")
    stamp("barD", lvl=2)
    I("s_cbranch_scc1 K_NOTAB", "buffer_store_dwordx4 v[32:35], v42, s[12:15], s60 offen sc1", "K_NOTAB:")
    for i in range(7): I(f"ds_read_b128 v[{CP+4*i}:{CP+4*i+3}], v16 offset:{L1_EA+4096*i}")
    I("s_branch PG1E"); repoll("K_H", HLD, HCMP); I(".p2align 12", "PG1:", "s_branch K_WARM_RET", "s_nop 0", "PG1E:")
    for i in range(7): VM("est", f"s_movk_i32 s3, {4096*i}", f"s_waitcnt lgkmcnt({6-i})", f"buffer_store_dwordx4 v[{CP+4*i}:{CP+4*i+3}], v16, s[32:35], s3 offen sc1")
    stamp("eaout", lvl=3)
    CM("first-layer weights and b1 * -log2(e) -> LDS (the MFMA then yields the exp2 argument directly)")
    I("s_cmp_lg_u32 s18, 0", f"s_waitcnt vmcnt({vw('w') + 1})", "s_cbranch_scc0 K_WW", f"s_waitcnt vmcnt({vw('w')})", "K_WW:", ".p2align 3")
    for i in range(34):
        if i == 33: I("s_cmp_eq_u32 s18, 2", "s_cselect_b32 s24, 1.0, s24", "s_mov_b32 s25, s24", "s_nop 0")
        scale(i)
    I(f"ds_write_b32 v9, v{WR+32}", f"ds_write_b32 v7, v{WR+33}")
    I(f"v_lshlrev_b32 v64, 16, v{WR+33}", f"v_and_b32 v65, s27, v{WR+33}", "v_sub_f32 v64, v74, v64", "v_sub_f32 v65, v75, v65", "v_cvt_pk_bf16_f32 v67, v64, v65", "ds_write_b32 v7, v67 offset:256")
    I(*[f"s_mov_b32 s{40+i}, {STG0 + 8192*i}" for i in range(5)])
    I(f"s_mov_b32 s24, {NLN2}", f"s_mov_b32 s25, {NLN2}", f"s_mov_b32 s50, {KEY_OFF}", f"s_mov_b32 s51, {EA_OFF}", f"s_mov_b32 s52, {FL_OFF}")
    for w in range(3): I(f"s_cmp_eq_u32 s18, {w+1}", f"s_cbranch_scc1 PG{w+4}")
    I("K_WARM_RET2:")
    stamp("wdone", lvl=3)
    tr = []
    for f in range(16):
        for jh in range(2): tr.append(f"ds_read_b64_tr_b16 a[{AW2+4*f+2*jh}:{AW2+4*f+2*jh+1}], v62 offset:{(16*(f>>1) + 8*jh)*128 + 32*(f&1)}")
    for f in range(32):
        for jh in range(2): tr.append(f"ds_read_b64_tr_b16 a[{AW1A+4*f+2*jh}:{AW1A+4*f+2*jh+1}], v{56+((f>>2)&3)} offset:{(64*(f>>4) + 8*(f&3) + 4*jh)*256}")
    for b in range(4): tr.append(f"ds_read_b64_tr_b16 a[{AW1C+2*b}:{AW1C+2*b+1}], v60 offset:{64*b}")
    tr += [f"ds_read_b64_tr_b16 a[{AB2}:{AB2+1}], v63"]
    tr2, tr = tr[:32], tr[32:]
    CM("phase 2: thread c reads the table entry of chunk c; flag own e_attr once it has landed")
    VM("tab", f"s_waitcnt vmcnt({vw('est', OPT['tw'])})", TABLD)
    I("s_cmp_lg_u32 s18, 1"); bar("est")
    I("s_cbranch_scc1 K_NOF3", "s_mov_b64 exec, 1", "buffer_store_dword v24, v24, s[12:15], s61 offen sc1", "s_mov_b64 exec, -1", "K_NOF3:")
    stamp("barE", lvl=2)
    I(*tr[:OPT["ntr"]]); tr = tr[OPT["ntr"]:]
    I(f"s_waitcnt vmcnt({vw('tab')+1})", "s_cbranch_scc0 K_TW", f"s_waitcnt vmcnt({vw('tab')})", "K_TW:")
    I(*TABCMP); I("s_cbranch_vccnz K_TAB", "K_TAB_RET:")
    stamp("tab", lvl=2)
    CM("keys: 16 per segment by a quad of lanes, the rest in units of 8 handed to free lane pairs")
    I("v_and_b32 v33, 0xffff, v8", "v_add_lshl_u32 v32, v44, v33, 2", "v_lshrrev_b32 v33, 16, v8", "v_subrev_u32 v33, 16, v33")
    AD, RK = 96, 128
    def compact(dst):
        I("v_cmp_lt_i32 vcc, 0, v33", "v_cmp_lt_i32 s[46:47], 8, v33", "v_cmp_lt_i32 s[48:49], 16, v33", "v_mbcnt_lo_u32_b32 v35, vcc_lo, 0", "v_mbcnt_hi_u32_b32 v35, vcc_hi, v35",
          "v_mbcnt_lo_u32_b32 v35, s46, v35", "v_mbcnt_hi_u32_b32 v35, s47, v35", "v_mbcnt_lo_u32_b32 v35, s48, v35", "v_mbcnt_hi_u32_b32 v35, s49, v35",
          "v_cmp_gt_u32 s[36:37], 30, v35", "v_lshlrev_b32 v35, 3, v35", "v_add_u32 v45, 8, v35", "v_add_u32 v52, 16, v35", "v_add_u32 v40, 32, v34", "v_add_u32 v53, 64, v34",
          "s_and_b64 vcc, vcc, s[36:37]", "s_and_b64 s[46:47], s[46:47], s[36:37]", "s_and_b64 s[48:49], s[48:49], s[36:37]",
          "v_cndmask_b32 v35, 4, v35, vcc", "v_cndmask_b32 v45, 4, v45, s[46:47]", "v_cndmask_b32 v52, 4, v52, s[48:49]",
          f"ds_permute_b32 v{dst}, v35, v34", "ds_permute_b32 v40, v45, v40", "ds_permute_b32 v53, v52, v53",
          "v_cndmask_b32_e64 v35, 0, 24, vcc", "v_sub_u32 v33, v33, v35", "v_lshl_add_u32 v34, v35, 2, v34")
    def units(k, o4, o8):
        return ["s_waitcnt lgkmcnt(0)", "v_or3_b32 v36, v36, v40, v53", "v_lshlrev_b32 v39, 1, v36", "s_nop 0",
                f"v_add_u32_dpp v{o4}, v36, v31 quad_perm:[0,0,2,2] row_mask:0xf bank_mask:0xf",
                f"buffer_load_dwordx4 v[{k}:{k+3}], v{o4}, s[12:15], s50 offen sc1",
                f"v_add_u32_dpp v{o8}, v39, v27 quad_perm:[0,0,0,0] row_mask:0xf bank_mask:0xf",
                f"v_add_u32_dpp v{o8+1}, v39, v27 quad_perm:[2,2,2,2] row_mask:0xf bank_mask:0xf", f"v_bfe_i32 v{o4}, v{o4}, 30, 1"]
    def octets(src, its, off, o8):
        I(f"v_lshlrev_b32 v39, 1, v{src}", f"v_lshlrev_b32 v37, 1, v{src}", f"v_lshlrev_b32 v38, 1, v{src}", "s_nop 0",
          "v_mov_b32_dpp v37, v39 row_shr:4 row_mask:0xf bank_mask:0xa", "v_mov_b32_dpp v38, v39 row_shl:4 row_mask:0xf bank_mask:0x5", "s_nop 0")
        for n, i in enumerate(its):
            for h in range(2): I(f"v_add_u32_dpp v{o8+2*n+h}, v{37+h}, v{off} quad_perm:[{i},{i},{i},{i}] row_mask:0xf bank_mask:0xf")
    for i in range(4):
        VM(f"k{i}", f"v_add_u32_dpp v{O4+i}, v32, v30 quad_perm:[{i},{i},{i},{i}] row_mask:0xf bank_mask:0xf",
          f"buffer_load_dwordx4 v[{KEY+4*i}:{KEY+4*i+3}], v{O4+i}, s[12:15], s50 offen sc1")
    I(f"v_add_u32 v34, 0xc0000040, v32")
    compact(36)
    octets(32, range(4), 26, O8)
    VM("k4", *units(KEY+16, O4+4, O8+8))
    hook("k")
    I("v_and_b32 v244, 0x3c0, v4", "v_bfe_u32 v245, v6, 1, 1", "v_lshl_add_u32 v244, v245, 10, v244", "v_and_b32 v245, 1, v6",
      "v_lshl_add_u32 v244, v245, 5, v244", "v_add_u32 v244, s23, v244", "v_add_u32 v245, 8, v244", "v_add_u32 v246, 16, v244", "v_add_u32 v247, 24, v244")
    I(f"s_add_u32 s3, s38, {L_W2}", "v_add_u32 v5, s3, v4", "s_mov_b32 s53, s27")
    I(f"v_mul_u32_u24 v21, {NS}, v0", f"v_add_u32 v21, {L_NODE}, v21", "v_cmp_gt_u32 s[38:39], s17, v0")
    I("s_sub_u32 s27, 256, s17", "s_sub_u32 s19, s27, 32", "s_mov_b32 s20, 0")
    I(*tr)
    I("v_mov_b32 v14, 0x3f803f80", "v_mov_b32 v15, 0", "ds_write_b64 v24, v[14:15]", "v_cmp_gt_u32 vcc, 32, v6", "v_mov_b32 v14, 0xffff", "s_nop 0", "v_cndmask_b32 v14, 0, v14, vcc")
    I("v_bfe_u32 v92, v6, 4, 1", "v_lshlrev_b32 v92, 4, v92", f"v_xor_b32 v{FI+1}, v92, v26")
    for j in range(1, 8): I(f"v_xor_b32 v{FI+1+2*j}, {32*(j&3)}, v{FI+1}")
    I("v_and_b32 v92, 3, v6", f"v_mul_u32_u24 v{FR}, 0x420, v92", "v_bfe_u32 v92, v6, 2, 3", f"v_lshl_add_u32 v{FR}, v92, 7, v{FR}", "v_bfe_u32 v92, v6, 3, 1",
      f"v_lshl_add_u32 v{FR}, v92, 4, v{FR}", f"v_xor_b32 v{FR}, v{FR}, v1", "s_lshl_b32 s45, s18, 13", f"s_add_u32 s45, s45, {L_W}", f"v_add_u32 v{FR}, s45, v{FR}")
    for k in range(1, 4): I(f"v_xor_b32 v{FR+k}, {16*k}, v{FR}")
    I("v_and_b32 v93, 31, v6", "s_lshl_b32 s3, s18, 7", "v_lshl_add_u32 v57, v93, 2, s3", "v_and_b32 v59, 0x38, v6", "v_lshl_add_u32 v59, v59, 1, s3",
      "s_sub_u32 s3, 896, s3", "v_lshl_add_u32 v58, v93, 2, s3")
    def phaseB(k, a, r, sreg, m=None):
        if m:
            for j in range(4): I(f"v_or_b32 v{k+j}, v{m}, v{k+j}")
        for j in range(4): I(f"v_mad_u32_u16 v{a+j}, v{k+j}, v28, s22")
        for j in range(4):
            I(f"ds_add_rtn_u32 v{r+j}, v{a+j}, v29",
              f"v_add_u32_sdwa v{k+j}, v{(244 if m else 48)+j}, s{sreg} dst_sel:WORD_0 dst_unused:UNUSED_PRESERVE src0_sel:DWORD src1_sel:DWORD")
    def phaseC(k, a, r):
        L = []
        for j in range(4): L += [f"v_min_u32 v{r+j}, {CAP-1}, v{r+j}", f"v_lshl_add_u32 v{a+j}, v{r+j}, 2, v{a+j}", f"ds_write_b32 v{a+j}, v{k+j} offset:4"]
        return L
    CM("insert the keys into per-node lists (foreign keys fall outside the LDS allocation); own x rows -> LDS")
    I("s_barrier")
    for i in range(5):
        I(f"s_waitcnt vmcnt({vw(f'k{i}')})")
        if i == 0: stamp("key0", lvl=2)
        hook(f"b{i}")
        phaseB(KEY+4*i, AD+4*i, RK+4*i, 40+i, O4+4 if i == 4 else None)
    I("v_cmp_lt_i32 vcc, 0, v33", "s_cbranch_vccnz K_MORE", "K_MORE_RET:", "s_branch PG2E")
    repoll("K_TAB", TABLD, "\n".join(TABCMP))
    I(".p2align 12", "PG2:", "s_branch K_WARM_RET")
    repoll("K_F3", F3LD, "v_cmp_eq_u32 vcc, -1, v9")
    I("PG2E:"); bar()
    stamp("bar1", lvl=2)
    CM("slot assignment: rank nodes by degree, split the largest in two, sort the 256 pieces by length")
    I("s_mov_b64 exec, s[38:39]", "ds_read_b32 v20, v21", "s_mov_b64 exec, -1")
    hook("a1")
    I("s_waitcnt lgkmcnt(0)", "s_mov_b64 exec, s[38:39]")
    I(f"v_cmp_lt_u32 vcc, {CAP}, v20", "v_min_u32 v20, 63, v20", "v_sub_u32 v22, 63, v20", "v_lshlrev_b32 v22, 2, v22",
      f"ds_add_rtn_u32 v23, v22, v29 offset:{L_H1}")
    I("s_cbranch_vccz K_A1", f"ds_write_b32 v24, v29 offset:{L_FLAG}", "K_A1:")
    I("s_mov_b64 exec, -1")
    hook("a2"); bar()
    I(f"ds_read_b32 v25, v43 offset:{L_H1}")
    I(*phaseC(KEY, AD, RK))
    I("s_waitcnt lgkmcnt(4)", "v_mov_b32 v46, v25")
    scan64(46, phaseC(KEY+4, AD+4, RK+4))
    I("v_sub_u32 v46, v46, v25", "ds_bpermute_b32 v46, v22, v46")
    I("v_lshrrev_b32 v30, 1, v20", "v_cmp_lt_u32 s[36:37], 26, v20")
    hook("a3")
    I("s_waitcnt lgkmcnt(0)")
    I("v_add_u32 v23, v23, v46", "v_cmp_gt_u32 vcc, s19, v23", "v_lshlrev_b32 v33, 1, v23", "v_lshlrev_b32 v34, 2, v23",
      "v_cndmask_b32_e64 v31, 8, 10, vcc", "v_cndmask_b32 v31, v31, v30, s[36:37]")
    I("v_cmp_gt_u32 vcc, s27, v23", "v_cmp_gt_u32 s[36:37], v20, v31", "v_mov_b32 v35, 0xff", "v_sub_u32 v37, 63, v31",
      "s_and_b64 vcc, vcc, s[36:37]", "s_and_b64 vcc, vcc, s[38:39]")
    I("v_cndmask_b32 v32, 0, v31, vcc", "v_sub_u32 v32, v20, v32", "v_sub_u32 v36, 63, v32", "v_lshlrev_b32 v36, 2, v36", "v_lshlrev_b32 v37, 2, v37")
    I("s_mov_b64 exec, s[38:39]", f"ds_add_rtn_u32 v38, v36, v29 offset:{L_H2}")
    I("s_mov_b64 exec, vcc", f"ds_add_rtn_u32 v39, v37, v29 offset:{L_H2}", "v_add_lshl_u32 v47, s16, v0, 7", f"ds_write_b32 v34, v47 offset:{L_SN}")
    I("s_mov_b64 exec, -1", "v_cndmask_b32 v35, v35, v33, vcc")
    I("v_lshl_or_b32 v48, v35, 8, v32", "v_lshl_or_b32 v48, v48, 16, v0")
    I("v_or_b32 v33, 1, v33", "v_lshl_or_b32 v49, v33, 8, v31", "v_lshl_or_b32 v49, v49, 8, v32", "v_lshl_or_b32 v49, v49, 8, v0", "v_lshl_add_u32 v50, v32, 2, v21")
    I("s_mov_b64 s[46:47], vcc"); hook("a4"); bar()
    stamp("bar3", lvl=3)
    I(f"ds_read_b32 v25, v43 offset:{L_H2}"); I(*phaseC(KEY+8, AD+8, RK+8)); I("s_waitcnt lgkmcnt(4)", "v_mov_b32 v46, v25")
    scan64(46, phaseC(KEY+12, AD+12, RK+12))
    I("v_sub_u32 v46, v46, v25", "ds_bpermute_b32 v36, v36, v46", "ds_bpermute_b32 v37, v37, v46")
    I(*phaseC(KEY+16, AD+16, RK+16))
    I("s_waitcnt lgkmcnt(4)", "v_add_lshl_u32 v36, v36, v38, 2", "v_add_lshl_u32 v37, v37, v39, 2")
    o0 = L_TBL // 256
    I("s_mov_b64 exec, s[38:39]", f"ds_write2st64_b32 v36, v48, v21 offset0:{o0} offset1:{o0+4}", "s_mov_b64 exec, s[46:47]", f"ds_write2st64_b32 v37, v49, v50 offset0:{o0} offset1:{o0+4}",
      "s_mov_b64 exec, -1")
    hook("a5")
    sr = [f"ds_read_b128 a[{AX+4*k}:{AX+4*k+3}], v{34+(k&3)} offset:{4096*(k>>2)}" for k in range(8)]
    I("s_movk_i32 s54, 0xff", f"s_movk_i32 s55, {SPL_S}", "s_movk_i32 s59, 128",
      f"s_mov_b32 s57, {f32(2.0**-100)}", "s_movk_i32 s58, 0x207", f"v_add_u32 v6, {L_X}, v1")
    I("s_mov_b32 s28, s4", "s_or_b32 s29, s5, 0x800000", f"s_mov_b32 s30, {N_NODES}")
    bar("x")
    stamp("bar4", lvl=2)
    CM("first group: Q = W1b'x[dst], first two tiles of x[src] through LDS, step 0")
    o0 = L_TBL // 256
    I(f"ds_read_b128 v[20:23], v59 offset:{L_TB2}", f"ds_read2st64_b32 v[26:27], v57 offset0:{o0} offset1:{o0+4}",
      f"ds_read_b32 v7, v58 offset:{L_TBL}", f"ds_read_b32 v8, v58 offset:{L_TB2}", f"ds_read_b32 v24, v24 offset:{L_FLAG}")
    for k in range(4): I(f"v_mov_b32 v{34+k}, v{FR+k}")
    assert not ea and not xd
    xx, xr = xrd((28, 29, 30, 31))
    I("s_waitcnt lgkmcnt(3)")
    for j in range(4): I(f"ds_read_u16 v{FI+2*j}, v{20+j} offset:6")
    I(*xrow(28, 26, 29, 6)); I(*xx); I(*xr)
    for j in range(4): I(f"ds_read_u16 v{FI+8+2*j}, v{20+j} offset:10")
    def dma(j, f): return [f"s_add_u32 m0, s45, {1024*j}", f, f"buffer_load_dwordx4 v[{FI+2*j}:{FI+2*j+1}], s[28:31], 0 idxen offen lds"]
    I("s_waitcnt lgkmcnt(8)")
    for j, f in enumerate(["v_mov_b32 v5, v26", "v_mov_b32 v2, v27", "v_bfe_u32 v3, v26, 16, 8", "v_cmp_ne_u32 vcc, 0, v24"]): I(*dma(j, f))
    I("s_waitcnt lgkmcnt(0)", "s_cbranch_vccnz K_SLOW0", ".p2align 3")
    stamp("q1")
    q = sum([qchain(QQ+16*b, b) for b in range(4)], [])
    late2 = ["s_lshl_b32 s45, s18, 5", "s_add_u32 s45, s45, 128", f"s_mul_i32 s46, s18, {OST_W}", f"s_add_u32 s46, s46, {L_OST}", "s_movk_i32 s47, 576", f"s_mov_b32 s48, {L_SN}", "s_mov_b32 s27, 0xffff0000"]
    ex = {0: recs(40, 2) + recs(10, 8), 1: ["v_readfirstlane_b32 s20, v3"] + xrow(9, 7, 29, 6), 2: tr2[0:6],
          3: dma(4, "s_nop 0"), 4: dma(5, "s_nop 0"), 5: dma(6, "s_nop 0"), 6: dma(7, "s_nop 0"),
          7: ["s_waitcnt lgkmcnt(0)", eaddr(44, 40), eaddr(45, 41), eaddr(46, 42), eaddr(4, 43), xaddr(42)], 8: tr2[6:14], 9: tr2[14:23], 10: tr2[23:],
          11: (["s_mov_b32 s62, s20"] if OPT["stamp"] else []) + LSET + late2 + ["s_waitcnt vmcnt(4)", "s_barrier"], 12: sr[0:4], 13: [earead(0, 44), earead(1, 45), earead(2, 46)]}
    I(*weave(q, [], [0]*16, ex)); I(".p2align 3")
    c = chain(NN, 0, 0, QQ)
    seg = ["s_waitcnt lgkmcnt(0)", "s_nop 0", c[0], xload(2, 0), c[1], xload(2, 1), c[2], xload(2, 2), c[3], xload(2, 3), c[4], xaddr(43), "s_nop 8", "s_nop 0"]
    for b in range(3): seg += weave(chain(NN+16*(b+1), b+1, 0, QQ+16*(b+1)), E0(b), (3,3,3,3,4), {0: ["s_waitcnt vmcnt(4)"], 1: sr[4:6], 2: sr[6:8], 3: [xload(0, 0)]} if b == 2 else None) + A0(b)
    seg += ["s_waitcnt lgkmcnt(0)", "s_barrier"] + weave(chain(T0, 0, 1, QQ), E0(3), (3,3,3,3,4), {3: [xload(0, 1)]}) + A0(3)
    I(*align8(seg))
    stamp("loop1")
    I("s_branch K_A0")
    def partA(t):
        cur = (1+t) % 3; prv = t % 3
        seg = []
        for b in range(3):
            tc = T0 + 16*(b % 2); tn = T0 + 16*((b+1) % 2)
            if b == 0: extra = {0: [f"ds_read_b32 v6, v2 offset:{4*(t+5)}"], 3: [xload(prv, 2)], 4: ["v_cmpx_lt_u32 vcc, s19, v3"]}
            elif b == 1: extra = {1: ["s_cmp_lt_i32 s19, s37"], 2: ["s_waitcnt lgkmcnt(0)"], 3: [xload(prv, 3)], 4: [xaddr(6)]}
            else: extra = {0: ["s_cselect_b32 s6, s26, 0"], 1: ["s_cmp_ge_u32 s19, s20"], 2: ["s_waitcnt vmcnt(4)"], 3: [earead(prv, 4)],
                           4: ["s_cbranch_scc1 K_EXIT" if t < 2 else "s_cbranch_scc0 K_LOOP"]}
            ms = chain(tn, b+1, cur, QQ+16*(b+1))
            if b < 2: seg += weave(ms, exps(tc), (3,3,3,3,4), extra) + pk3(b, tc)
            else: seg += weave(ms, exps(tc)[:12], (3,3,3,3,0), extra)
        return seg
    def partB(t):
        cur = (1+t) % 3; nxt = (2+t) % 3
        seg = [xload(cur, 0)] + exps(T0)[12:] + pk3(2, T0)
        seg += weave(chain(T0, 0, nxt, QQ), exps(T1), (3,3,3,3,4), {0: ["s_add_u32 s19, s19, 1"], 3: [xload(cur, 1)], 4: [eaddr(4, 6)] + (["v_add_u32 v2, 12, v2"] if t == 2 else [])}) + pk3(3, T1)
        return seg
    def loop(pg, ret, n, ex):
        I(".p2align 12", f"PG{pg}:", f"s_branch {ret}", "s_nop 0", f"K_LOOP{n}:")
        CM("one edge per slot and step: u = Q + W1a'x[src] + W1c'e + b1', e = 2^u, N = N(1+e) + uD, D = D(1+e)")
        I(*align8(partB(2)))
        I(f"K_A{n}:")
        I(*[x.replace("K_EXIT", ex).replace("K_LOOP", f"K_LOOP{n}") for x in align8(partA(0) + partB(0) + partA(1) + partB(1) + partA(2))[:-1]])
        I(f"s_branch {ex}", f"K_EXIT{n}:")
    loop(3, "K_WARM_RET", 0, "K_MID")
    I(".p2align 12", "PG4:", "s_branch K_WARM_RET2", "s_nop 0", "K_MID:")
    stamp("exit1")
    CM("finish group 1 (h = N/D, out = W2'h + len*b2) woven into the start of group 2")
    def mix(c, g): return c[:4] + g + c[4:]
    xx, xr = xrd((9, 4, 6, 2))
    seg = exps(T0)[12:] + pk3(2, T0) + ["s_mov_b64 s[60:61], exec", "s_mov_b64 exec, -1"] + exps(T1) + xx + ["s_mov_b32 s6, s26", xaddr(10), "s_waitcnt vmcnt(0)", LSET[3]]
    seg += xr + [xload(0, k) for k in range(4)] + ["s_mov_b64 exec, s[60:61]", "s_nop 0"] + pk3(3, T1) + ["s_mov_b64 exec, -1", "s_waitcnt lgkmcnt(0)"]
    q = [qchain(QQ+16*b, b) for b in range(4)]
    seg += spread(q[0] + q[1][:1] + binit(LB), [xaddr(11), "v_bfe_u32 v3, v7, 16, 8"] + lbinit(LB) + ["v_readfirstlane_b32 s20, v3"] + R(0) + M(0),
                  pre={1: [xload(1, 0), xload(1, 1)], 2: [xload(1, 2)], 3: [xload(1, 3)]}) + U(0)
    seg += spread(q[1][1:] + q[2][:1] + G(0), V(0) + [eaddr(4, 10), eaddr(6, 11), eaddr(0, 12), "v_mov_b32 v2, v8"] + R(1) + M(1),
                  pre={2: ([f"s_mov_b32 s63, s20"] if OPT["stamp"] else []) + [LSET[0]], 3: [LSET[1]], 5: [LSET[2]], 4: [earead(0, 4), earead(1, 6), earead(2, 0)]}) + U(1)
    seg += spread(q[2][1:] + G(1), V(1) + R(2) + M(2), pre={5: ["s_waitcnt vmcnt(4) lgkmcnt(0)"]}) + U(2)
    seg += spread(mix(chain(NN, 0, 0, QQ), G(2)), V(2) + OCON + R(3) + M(3)) + U(3)
    c = chain(NN+16, 1, 0, QQ+16)
    seg += spread(c[:2] + G(3) + c[2:], V(3) + dec2(LB) + [xaddr(12), eaddr(4, 13), "v_mov_b32 v5, v7"] + CHK0 + E0(0) + A1(0)[:OPT["a1"]], pre={6: [CHK1]}) + check("K_RARE_A", A0(0)[OPT["a1"]//2:])
    c = chain(NN+32, 2, 0, QQ+32)
    e = E0(1)
    seg += spread(q[3] + c, OCV + e, pre={0: [OIW], 2: [OSW[0]], 4: [OSW[1], xload(2, 0)], 5: [OSW[2], xload(2, 1)], 6: [OSW[3], xload(2, 2)], 7: [xload(2, 3)] + OSR}) + A0(1)
    e = E0(2); c = chain(NN+48, 3, 0, QQ+48)
    seg += [c[0], "s_waitcnt vmcnt(4) lgkmcnt(0)"] + OOR + [xaddr(13)] + e[:1] + [c[1], OST[0], OST[1], c[2], OST[2], OST[3], c[3], xload(0, 0)] + e[1:4] + [c[4]] + e[4:] + A0(2)
    seg += weave(chain(T0, 0, 1, QQ), E0(3), (3,3,3,3,4), {3: [xload(0, 1)]}) + A0(3)
    I(*align8(seg))
    stamp("loop2")
    I("s_branch K_A1X")
    loop(5, "K_WARM_RET2", "1X", "K_LAST")
    I(".p2align 12", "PG6:", "s_branch K_WARM_RET2", "s_nop 0", "K_LAST:")
    stamp("exit2")
    CCON = ["v_mbcnt_lo_u32_b32 v2, -1, 0", "v_mbcnt_hi_u32_b32 v2, -1, v2", "v_lshrrev_b32 v2, 3, v2", "v_lshl_add_u32 v2, s18, 3, v2",
            "v_mul_u32_u24 v4, s55, v2", "v_lshl_add_u32 v4, v4, 1, v11", "v_lshl_add_u32 v2, v2, 2, s48", "v_mov_b32 v12, 0"]
    CM("finish group 2")
    def mv(l):
        return [re.sub(r"\bv(\d+)\b|v\[(\d+):(\d+)\]", lambda m: (f"v{int(m.group(1))+QQ-T0}" if T0 <= int(m.group(1)) < EE else m.group(0)) if m.group(1) else
                       (f"v[{int(m.group(2))+QQ-T0}:{int(m.group(3))+QQ-T0}]" if T0 <= int(m.group(2)) < EE else m.group(0)), x) for x in l]
    L2 = QQ + 32
    g = mv(G(0) + G(1) + G(2) + G(3))
    seg = exps(T0)[12:] + pk3(2, T0) + ["s_mov_b64 s[60:61], exec", "s_mov_b64 exec, -1"] + XX(0) + lbinit(L2)
    seg += R(0)[:2] + weave(mv(binit(L2)), R(0)[2:], (4, 10)) + UU(0) + V(0)[:6]
    seg += spread(g[:5], V(0)[6:] + V(1)[:6] + exps(T1), pre={4: ["s_mov_b64 exec, s[60:61]"]}) + pk3(3, T1) + ["s_mov_b64 exec, -1", "s_nop 0"] + XX(2)
    seg += spread(g[5:8], V(1)[6:] + R(2)) + UU(2) + V(2)[:6]
    seg += spread(g[8:], V(2)[6:] + V(3) + M(0) + M(2) + dec2(L2) + CHK0 + CCON[:7] + [CHK1] + CCON[7:], tail=48) + mv(check("K_RARE_B", ["s_nop 0", "s_nop 0"]) + OCV + [OIW] + OSW) + OSR
    I(*align8(seg))
    stamp("tail")
    CM("add the two pieces of every split node: 8 lanes per output row")
    I("s_waitcnt lgkmcnt(6)", "s_barrier")
    I(f"ds_read_b32 v12, v12 offset:{L_FLAG}", f"ds_read2_b32 v[2:3], v2 offset1:32")
    for h in range(2):
        for r in range(2): I(f"ds_read_b128 v[{NN+8*h+4*r}:{NN+8*h+4*r+3}], v4 offset:{L_SPL + 64*SPL_S*h + SPL_S*r}")
    I("s_waitcnt lgkmcnt(6)", *OOR); I(*OST)
    I("s_waitcnt lgkmcnt(2)", "v_cmp_ne_u32 vcc, 0, v12", "v_or_b32 v2, v2, v11", "v_or_b32 v3, v3, v11")
    for h in range(2):
        if h: I("s_waitcnt lgkmcnt(0)", "s_nop 0")
        n = NN + 8*h; u = DD + 16*h
        for i in range(8): I(f"v_lshlrev_b32 v{u+2*i}, 16, v{n+i}", f"v_and_b32 v{u+2*i+1}, s27, v{n+i}")
        for i in range(4): I(f"v_pk_add_f32 v[{u+2*i}:{u+2*i+1}], v[{u+2*i}:{u+2*i+1}], v[{u+8+2*i}:{u+8+2*i+1}]")
        for i in range(4): I(f"v_cvt_pk_bf16_f32 v{n+i}, v{u+2*i}, v{u+2*i+1}")
        I(f"buffer_store_dwordx4 v[{n}:{n+3}], v{2+h}, s[8:11], 0 offen{OSTF}")
    I("s_cbranch_vccnz K_SLOW")
    if OPT["diag"]:
        if OPT.get("amp0"): I("s_sub_u32 s94, s94, s96", "s_mul_i32 s94, s94, 10", "s_add_u32 s100, s100, s94")
        I("s_mov_b32 s52, 0", "K_SPIN:", "s_memrealtime s[54:55]", "s_waitcnt lgkmcnt(0)", "s_add_u32 s52, s52, 1", "s_cmp_gt_u32 s52, 20000", "s_cbranch_scc1 K_END",
          "s_sub_u32 s54, s54, s100", "s_cmp_lt_i32 s54, 4000", "s_cbranch_scc1 K_SPIN")
    if OPT["stamp"]:
        I("s_waitcnt vmcnt(0)"); stamp("end")
        I("s_lshl_b32 s3, s2, 2", "s_add_u32 s3, s3, s18", "s_lshl_b32 s3, s3, 7", f"s_add_u32 s3, s3, {STAMP_OFF}", "v_mov_b32 v0, 0")
        for i in range(len(stamps)): I(f"v_mov_b32 v1, s{SLOTS[i]}", f"buffer_store_dword v1, v0, s[12:15], s3 offen offset:{4*i}")
        I("s_lshl_b32 s62, s62, 8", "s_or_b32 s62, s62, s63", "v_mov_b32 v1, s62", "buffer_store_dword v1, v0, s[12:15], s3 offen offset:124")
    I("K_END:", "K_END0:", "s_endpgm")
    I("K_MEA:", f"s_movk_i32 s3, {MS0}", *eadma(190, "s3", 0)); I(*eadma(191, "s3", 1024)); I("s_branch K_MEA_RET")
    CM("rare: empty slots (write zeros) / denominator out of range or non-finite output (redo the bucket on the general path)")
    for tag in ("K_RARE_A", "K_RARE_B"):
        I(f"{tag}:")
        I("s_andn2_b64 vcc, s[42:43], s[38:39]", f"s_cbranch_scc0 {tag}2")
        I(f"v_mov_b32 v{OA+1}, 0", f"v_mov_b32 v{RM}, 1", f"ds_write_b32 v{OA+1}, v{RM} offset:{L_FLAG}")
        I(f"{tag}2:", "s_mov_b64 exec, s[38:39]")
        for i in range(32): I(f"v_mov_b32 v{(QQ if tag == 'K_RARE_B' else T0)+i}, 0")
        I("s_mov_b64 exec, -1", f"s_branch {tag}_RET")
    CM("rare: a segment longer than 40 keys or more than 30 overflow units")
    K2, A2, R2, O2 = 176, 180, 184, 188
    I("K_MORE:", f"s_sub_u32 s40, {MS0}, s23", "s_nop 0")
    I("s_mov_b64 exec, 1", f"ds_add_rtn_u32 v{O2}, v24, v29 offset:{L_FLAG+4}", "s_waitcnt lgkmcnt(0)", f"v_cmp_ne_u32 vcc, 0, v{O2}", "s_mov_b64 exec, -1", "s_cbranch_vccnz K_MORE_F")
    compact(36)
    I(*units(K2, O2, O2+2))
    I("s_mov_b32 s20, 1", "s_waitcnt vmcnt(0)")
    phaseB(K2, A2, R2, 40, O2)
    I("s_waitcnt lgkmcnt(0)")
    I(*phaseC(K2, A2, R2))
    I("v_cmp_lt_i32 vcc, 0, v33", "s_cbranch_vccz K_MORE_RET")
    I("K_MORE_F:", f"ds_write_b32 v24, v29 offset:{L_FLAG}", "s_branch K_MORE_RET")
    CM("general path for any input: one edge per column, plain u/(1+2^u), LDS float accumulation")
    I("K_SLOW0:", *tr2)
    I("K_SLOW:")
    I("s_mov_b64 exec, -1", "s_waitcnt vmcnt(0) lgkmcnt(0)", "s_barrier")
    I("v_mbcnt_lo_u32_b32 v6, -1, 0", "v_mbcnt_hi_u32_b32 v6, -1, v6", "s_lshl_b32 s3, s18, 6", "v_add_u32 v7, s3, v6")
    I(*TABA); I(f"v_lshlrev_b32 v3, {lt}, v7", TABLD)
    I("v_lshrrev_b32 v1, 5, v6", "v_lshlrev_b32 v1, 6, v1", "v_and_b32 v6, 31, v6", "v_lshlrev_b32 v2, 4, v7")
    for i in range(4): I(f"v_mov_b32 v{16+i}, 0")
    for i in range(13): I(f"ds_write_b128 v2, v[16:19] offset:{4096*i}")
    I("s_movk_i32 s53, 0x3f80")
    for b in range(2): I(*onehot(EE+2*b, b))
    I("v_mov_b32 v15, 0x3f803f80")
    I("s_mov_b32 s6, s26", "s_mov_b32 s19, 0", "s_waitcnt vmcnt(0) lgkmcnt(0)", "s_barrier")
    I("K_S_SEG:")
    I("v_readlane_b32 s36, v8, s19", "s_lshl_b32 s3, s18, 6", "s_add_u32 s3, s3, s19", f"s_mul_i32 s3, s3, {CHS}", "s_nop 0",
      "s_lshr_b32 s20, s36, 16", "s_and_b32 s36, s36, 0xffff", "s_add_u32 s36, s36, s3")
    I("K_S_TILE:")
    I("s_cmp_le_i32 s20, 0", "s_cbranch_scc1 K_S_NEXT")
    I("v_add_lshl_u32 v2, s36, v6, 2", "v_lshlrev_b32 v3, 1, v2", "v_cmp_gt_i32 s[38:39], s20, v6")
    I("buffer_load_dword v9, v2, s[12:15], s50 offen sc1", f"buffer_load_dwordx2 a[{AEA}:{AEA+1}], v3, s[12:15], s51 offen sc1", "s_waitcnt vmcnt(0)")
    I("s_mov_b32 exec_lo, 0", f"v_accvgpr_write_b32 a{AEA}, v15", f"v_accvgpr_write_b32 a{AEA+1}, 0", "s_mov_b32 exec_lo, -1")
    I(xaddr(9)); I(*[xload(0, k) for k in range(4)])
    I("v_and_b32 v9, 0xffff, v9", "v_lshl_add_u32 v0, v9, 7, v1", "v_subrev_u32 v9, s16, v9"); I(*[xload(2, k) for k in range(4)])
    I("v_mul_u32_u24 v9, 260, v9", "v_lshl_add_u32 v9, v1, 1, v9", "s_waitcnt vmcnt(0)")
    for b in range(4): I(*qchain(NN+16*b, b)); I(*chain(NN+16*b, b, 0, NN+16*b))
    I(*binit(EE)); I("s_nop 15")
    for b in range(4): I(*E0(b))
    for b in range(4): I(*A0(b))
    for b in range(4): I(*R(b))
    for b in range(4): I(*(U(b) + V(b)))
    I("s_nop 1")
    for b in range(4): I(*G(b))
    I("s_nop 15")
    I("s_mov_b64 exec, s[38:39]")
    for i in range(32): I(f"ds_add_f32 v9, v{T0+i} offset:{4*i}")
    I("s_mov_b64 exec, -1", "s_waitcnt lgkmcnt(0)", "s_sub_u32 s20, s20, 32", "s_add_u32 s36, s36, 32", "s_branch K_S_TILE")
    I("K_S_NEXT:", "s_add_u32 s19, s19, 1", "s_cmp_lt_u32 s19, 64", "s_cbranch_scc1 K_S_SEG")
    I("s_barrier", "v_and_b32 v3, 7, v7", "v_lshlrev_b32 v1, 4, v3", "v_lshrrev_b32 v7, 3, v7", "s_mov_b32 s19, 0")
    I("K_S_OUT:")
    I("v_mul_u32_u24 v2, 260, v7", "v_cmp_gt_u32 vcc, s17, v7", "v_lshl_add_u32 v2, v3, 5, v2", "v_add_lshl_u32 v0, s16, v7, 7", "v_cndmask_b32 v0, 2.0, v0, vcc", "v_or_b32 v0, v0, v1")
    for i in range(8): I(f"ds_read_b32 v{16+i}, v2 offset:{4*i}")
    I("s_waitcnt lgkmcnt(0)")
    for i in range(4): I(f"v_cvt_pk_bf16_f32 v{24+i}, v{16+2*i}, v{17+2*i}")
    I("buffer_store_dwordx4 v[24:27], v0, s[8:11], 0 offen", "v_add_u32 v7, 32, v7", "s_waitcnt vmcnt(0)")
    I("s_add_u32 s19, s19, 1", "s_cmp_lt_u32 s19, 7", "s_cbranch_scc1 K_S_OUT", "s_endpgm")

def desc(name, vgpr, accum, sgpr):
    I(".p2align 6", f".amdhsa_kernel {name}")
    for l in (f"next_free_vgpr {vgpr}", f"next_free_sgpr {sgpr}", f"accum_offset {accum}", "group_segment_fixed_size 0", "kernarg_size 88",
              "user_sgpr_count 2", "user_sgpr_kernarg_segment_ptr 1", "system_sgpr_workgroup_id_x 1", "float_denorm_mode_32 3"):
        out.append("  .amdhsa_" + l)
    I(".end_amdhsa_kernel")

hdr = [l.rstrip("\n") for l in open(f"cdna_kernels/{NAME}.s.ref") if l.startswith(";") and "@launch" not in l][:12]
hdr += [f"; @launch grid=(256,1,1) block=(256,1,1) lds={L_SIZE}"]
hdr2 = """;
; One launch, 256 workgroups (one per CU), 4 waves of 512 registers.
;  phase 1  each workgroup counting-sorts 3125 edges by destination bucket (195/196 nodes) and hands the sorted keys
;           and e_attr to the bucket owners through d_ws (write-through stores; d_debug counts the table clears).
;  phase 2  each workgroup builds per-node edge lists in LDS and packs them into 8 groups of 32 columns.
;  main     per column sum_e silu(t_e) is kept as one fraction N/D (one exp2 and three FMAs per element);
;           the second layer is applied once per node piece. Out-of-range fractions fall back to a general path.
; Generated by the author's script (hand-written schedule).""".split("\n")
hdr += hdr2
I('.amdgcn_target "amdgcn-amd-amdhsa--gfx950"', ".text")
kernel()
I('.section .rodata,"a"')
desc(NAME + "_kernel", 512, 256, 102)
if OPT["stamp"]: hdr.append("; stamps: " + " ".join(stamps))
open(sys.argv[1], "w").write("\n".join(hdr + out) + "\n")
```

```python
import sys, struct, math
NAME = "standalone__edge_featured_mpnn_mpnn__graph"
OPT = dict(stamp=0, diag=0, sl=3, ntr=32, tw=2, hl=12, slp=4, a1=6, f3l='a1', xs='b07', es='a33.a43.a54', w2h='a3', lc=1, hp=-1)
for a in sys.argv[2:]:
    k, v = a.split("="); OPT[k] = int(v) if v.lstrip("-").isdigit() else v

N_NODES = 50000; E = 800000
CH = 3125; CHS = 3200
TP = 64; FS = 4; NR = 2; FL_OFF = 0x40000
KEY_OFF = 0x48000; EA_OFF = 0x368000; STAMP_OFF = 0x1000000
WS_SIZE = 0x10000000
SPIN = 400000
def f32(x): return "0x%08x" % struct.unpack("<I", struct.pack("<f", x))[0]
NLOG2E = f32(-math.log2(math.e)); NLN2 = f32(-math.log(2.0))

out = []
def I(*ls):
    for l in ls:
        for x in l.split("\n"):
            x = x.strip()
            if x: out.append(x if x.endswith(":") or x.startswith(".") else "    " + x)
def CM(*ls):
    for l in ls: out.append("    ; " + l)
vm = []
def VM(tag, *ls):
    for l in ls:
        if l.startswith(("buffer_", "global_")): vm.append(tag)
        I(l)
def vw(tag, k=0):
    idx = [i for i, t in enumerate(vm) if t == tag]
    return len(vm) - 1 - idx[-1-k]
def scan64(v, fill=None):
    fill = list(fill or [])
    def gap():
        n = 0
        while fill and n < 2: I(fill.pop(0)); n += 1
        if n < 2: I(f"s_nop {1-n}")
    for op in ("row_shr:1", "row_shr:2", "row_shr:4", "row_shr:8"):
        gap(); I(f"v_add_u32_dpp v{v}, v{v}, v{v} {op} row_mask:0xf bank_mask:0xf bound_ctrl:0")
    gap(); I(f"v_add_u32_dpp v{v}, v{v}, v{v} row_bcast:15 row_mask:0xa bank_mask:0xf")
    gap(); I(f"v_add_u32_dpp v{v}, v{v}, v{v} row_bcast:31 row_mask:0xc bank_mask:0xf")
    I(*fill)
SLOTS = list(range(86, 98)) + list(range(64, 84))
stamps = []
def stamp(name, lvl=1):
    if OPT.get("amp0") == name: I("s_memrealtime s[96:97]", "s_waitcnt lgkmcnt(0)", "s_nop 0")
    if OPT.get("amp1") == name: I("s_memrealtime s[94:95]", "s_waitcnt lgkmcnt(0)", "s_nop 0")
    if OPT["diag"] == name: I("s_memrealtime s[100:101]", "s_waitcnt lgkmcnt(0)", "s_nop 0")
    if not OPT["stamp"] or lvl > OPT["sl"]: return
    stamps.append(name)
    I(f"{'s_memtime' if OPT['stamp']==1 else 's_memrealtime'} s[98:99]", "s_waitcnt lgkmcnt(0)", f"s_mov_b32 s{SLOTS[len(stamps)-1]}, s98")

CAP = 48; NS = 4 + 4*CAP
MS0 = 256; STG0 = MS0 + 2048
L1_KEY = 0; L1_EA = CHS*4; L1_CNT = 38912; L1_BASE = L1_CNT + 1024
L_H1 = STG0 + 5*8192; L_H2 = L_H1 + 256; L_SN = L_H2 + 256; L_FLAG = L_SN + 256; L_TBL = L_H1 + 1024
L_TB2 = L_TBL + 1024; L_SPL = L_TB2 + 1024; SPL_S = 144
L_W = L_SPL; L_S = L_W + 32768; L_W2 = L_S + 4096
L_OST = L_SPL + 128*SPL_S; OST_W = 32*SPL_S
L_X = L_W2 + 16384
L_NODE = L_X + 200*128
L_SIZE = L_NODE + 196*NS
assert L_SIZE <= 163840 and L_SPL + 123*SPL_S <= L_OST and L_OST + 4*OST_W <= L_W2
OSTF = " sc1"
T0, T1, EE, NN, DD, QQ = 16, 32, 48, 64, 128, 192
AX, AW1A, AW1B, AW1C, AW2, AEA, AB2 = 0, 48, 112, 176, 184, 248, 254
BIG = 0x1000000

import re
V4 = ("v_exp_f32", "v_rcp_f32", "v_add_f32", "v_mul_f32", "v_add_u32", "v_mov_b32", "v_and_b32", "v_lshrrev_b32", "v_lshlrev_b32", "v_cvt_f32_ubyte2",
      "v_mul_u32_u24", "v_cndmask_b32", "v_readfirstlane_b32", "v_or_b32", "v_sub_u32", "v_xor_b32")
def has_lit(s):
    for t in re.split(r"[,\s]+", s.strip())[1:]:
        if re.fullmatch(r"0x[0-9a-fA-F]+|-?\d+", t):
            v = int(t, 0)
            if not -16 <= v <= 64: return True
    return False
def isz(s):
    s = s.strip(); op = s.split()[0]
    if s.endswith(":") or s.startswith("."): return 0
    if op.startswith(("s_waitcnt", "s_nop", "s_cbranch", "s_branch", "s_movk", "s_barrier")): return 4
    if op.startswith("s_memtime") or op.startswith("s_memrealtime"): return 8
    if op.startswith("s_"): return 8 if has_lit(s) else 4
    if op.startswith("v_cmp") and not op.endswith("_e64"): return (8 if has_lit(s) else 4) if s.split()[1] == "vcc," else 8
    if op == "v_cndmask_b32" and not s.endswith("vcc"): return 8
    if op in V4: return 8 if has_lit(s) else 4
    return 8
def align8(seg):
    off = 0; last4 = None
    seg = list(seg); i = 0
    while i <= len(seg):
        s = seg[i] if i < len(seg) else "v_pk_x"
        z = isz(s)
        if z == 8 and off % 8:
            if last4 is not None:
                op = seg[last4].split()[0]
                seg[last4] = seg[last4].replace(op, op + "_e64", 1); off += 4
            elif i == len(seg) or sum(1 for x in seg[i:i+5] if isz(x) == 8) == 5:
                if i < len(seg): print("pad before", s, file=sys.stderr)
                seg.insert(i, "s_nop 0"); off += 4; i += 1
        if z == 8: last4 = None
        if z == 4 and s.split()[0] in V4 and s.split()[0] != "v_readfirstlane_b32" and off % 8 == 0: last4 = i
        off += z; i += 1
    return seg
def xload(buf, kk): return f"buffer_load_dwordx4 a[{AX+16*buf+4*kk}:{AX+16*buf+4*kk+3}], v0, s[4:7], 0 offen offset:{16*kk}"
def xaddr(rec): return f"v_mad_u32_u16 v0, v{rec}, s59, v1 op_sel:[1,0,0,0]"
def eaddr(d, rec): return f"v_and_b32 v{d}, v14, v{rec}"
def earead(buf, r): return f"ds_read_b64 a[{AEA+2*buf}:{AEA+2*buf+1}], v{r}"
def chain(dst, blk, buf, c):
    L = []
    for kk in range(4):
        w = AW1A + 16*blk + 4*kk; x = AX + 16*buf + 4*kk; ci = c if kk == 0 else dst
        L.append(f"v_mfma_f32_32x32x16_bf16 v[{dst}:{dst+15}], a[{w}:{w+3}], a[{x}:{x+3}], v[{ci}:{ci+15}]")
    return L + [f"v_mfma_f32_32x32x8_bf16 v[{dst}:{dst+15}], a[{AW1C+2*blk}:{AW1C+2*blk+1}], a[{AEA+2*buf}:{AEA+2*buf+1}], v[{dst}:{dst+15}]"]
def qchain(dst, blk, order=(0, 1, 2, 3)):
    L = []
    for kk in order:
        w = AW1B + 16*blk + 4*kk; x = AX + 32 + 4*kk
        L.append(f"v_mfma_f32_32x32x16_bf16 v[{dst}:{dst+15}], a[{w}:{w+3}], a[{x}:{x+3}], " + ("0" if kk == order[0] else f"v[{dst}:{dst+15}]"))
    return L
def onehot(r, blk):
    c = "1.0" if blk & 1 else "s53"
    return [f"v_mov_b32 v{r+(blk>>1)}, {c}", f"v_mov_b32 v{r+1-(blk>>1)}, 0"]
def gemm2(blk, hb):
    L = []
    for p in range(2):
        for ob in range(2):
            w = AW2 + 4*((blk*2+p)*2+ob); o = T0 + 16*ob
            L.append(f"v_mfma_f32_32x32x16_bf16 v[{o}:{o+15}], a[{w}:{w+3}], v[{hb+4*p}:{hb+4*p+3}], v[{o}:{o+15}]")
    return L
def weave(ms, fill, cnts, extra=None):
    L = []; fill = list(fill)
    for k, m in enumerate(ms):
        L.append(m)
        if extra: L += extra.get(k, [])
        L += fill[:cnts[k]]; fill = fill[cnts[k]:]
    assert not fill
    return L
def repoll(tag, load, cmp):
    I(f"{tag}:", f"s_mov_b32 s3, {SPIN}", f"{tag}_L:", "s_mov_b64 exec, vcc", f"s_sleep {OPT['slp']}", load, "s_sub_u32 s3, s3, 1", "s_cbranch_scc1 K_END",
      "s_waitcnt vmcnt(0)", cmp, f"s_cbranch_vccnz {tag}_L", "s_mov_b64 exec, -1", f"s_branch {tag}_RET")

def cost(x):
    op = x.split()[0]
    if op.startswith(("v_exp", "v_rcp")): return 8
    if op.startswith("ds_write"): return {"b32": 8, "b64": 12, "b128": 20}[op.split("_")[-1]]
    if op.startswith("buffer_store"): return 12
    return 4
def spread(ms, fill, pre=None, tail=None):
    pre = pre or {}
    L = []; fill = list(fill); n = len(ms)
    if tail is None: tail = 36
    for k, m in enumerate(ms):
        L.append(m); P = pre.get(k, []); L += P
        if k == n-1: break
        room = 32 - (8 if "x16" in m else 4) - sum(cost(x) for x in P)
        if P and P[0].startswith("s_") and "x16" in m: room += 4
        if P and not P[0].startswith(("s_", "v_")) and "x16" not in m: room -= 4
        while fill and room > 0 and sum(map(cost, fill)) - cost(fill[0]) >= tail - sum(cost(x) for x in pre.get(n-1, [])):
            room -= cost(fill[0]); L.append(fill.pop(0))
    return L + fill
def pk3(b, tc):
    n = NN+16*b; d = DD+16*b
    return [f"v_pk_fma_f32 v[{n+2*i}:{n+2*i+1}], v[{n+2*i}:{n+2*i+1}], v[{EE+2*i}:{EE+2*i+1}], v[{n+2*i}:{n+2*i+1}]" for i in range(8)] + \
           [f"v_pk_fma_f32 v[{n+2*i}:{n+2*i+1}], v[{tc+2*i}:{tc+2*i+1}], v[{d+2*i}:{d+2*i+1}], v[{n+2*i}:{n+2*i+1}]" for i in range(8)] + \
           [f"v_pk_fma_f32 v[{d+2*i}:{d+2*i+1}], v[{d+2*i}:{d+2*i+1}], v[{EE+2*i}:{EE+2*i+1}], v[{d+2*i}:{d+2*i+1}]" for i in range(8)]
def exps(tc): return [f"v_exp_f32 v{EE+i}, v{tc+i}" for i in range(16)]
def E0(b): return [f"v_exp_f32 v{DD+16*b+i}, v{NN+16*b+i}" for i in range(16)]
def A0(b): return [f"v_pk_add_f32 v[{DD+16*b+2*i}:{DD+16*b+2*i+1}], v[{DD+16*b+2*i}:{DD+16*b+2*i+1}], 1.0 op_sel_hi:[1,0]" for i in range(8)]
def A1(b): return [f"v_add_f32 v{DD+16*b+i}, 1.0, v{DD+16*b+i}" for i in range(16)]
LB, RM, OA = EE, EE+4, EE+5
def R(b): return [f"v_rcp_f32 v{DD+16*b+i}, v{DD+16*b+i}" for i in range(16)]
def M(b): return [f"v_min3_f32 v{RM}, v{DD+16*b+2*i}, v{DD+16*b+2*i+1}, " + ("1.0" if b == 0 and i == 0 else f"v{RM}") for i in range(8)]
def U(b): return [f"v_pk_mul_f32 v[{NN+16*b+2*i}:{NN+16*b+2*i+1}], v[{NN+16*b+2*i}:{NN+16*b+2*i+1}], v[{DD+16*b+2*i}:{DD+16*b+2*i+1}]" for i in range(8)]
def pkm(d, a, b): return [f"v_pk_mul_f32 v[{d+2*i}:{d+2*i+1}], v[{a+2*i}:{a+2*i+1}], v[{b+2*i}:{b+2*i+1}]" for i in range(8)]
def XX(b): n = NN+16*b; d = DD+16*b; return pkm(n, n, d+16) + pkm(n+16, n+16, d) + pkm(d, d, d+16)
def UU(b): n = NN+16*b; d = DD+16*b; return pkm(n, n, d) + pkm(n+16, n+16, d)
def V(b): return [f"v_cvt_pk_bf16_f32 v{NN+16*b+i}, v{NN+16*b+2*i}, v{NN+16*b+2*i+1}" for i in range(8)]
def G(b): return gemm2(b, NN+16*b)
def lbinit(r): return [f"v_cvt_f32_ubyte2 v{r+2}, v5", f"v_mov_b32 v{r+1}, 0", f"v_mov_b32 v{r+3}, 0", f"v_lshrrev_b32 v{r}, 16, v{r+2}"]
def binit(r): return [f"v_mfma_f32_32x32x8_bf16 v[{T0+16*ob}:{T0+16*ob+15}], a[{AB2}:{AB2+1}], v[{r+2*ob}:{r+2*ob+1}], 0" for ob in range(2)]
def dec2(lb):
    return [f"v_lshrrev_b32 v{OA}, 24, v5", f"v_and_b32 v{OA+2}, s54, v5", f"v_cmp_eq_u32 vcc, s54, v{OA}", f"v_mad_u32_u24 v{OA}, v{OA}, s55, v1",
            f"v_add_lshl_u32 v{OA+2}, s16, v{OA+2}, 7", f"v_cndmask_b32 v{OA}, v{OA}, v8, vcc", f"v_cndmask_b32 v{OA+2}, 2.0, v{OA+2}, vcc",
            f"v_cmp_eq_u32 s[38:39], 0, v{lb+2}"]
CHK0 = [f"v_cmp_nlt_f32 vcc, s57, v{RM}"]
CHK1 = "s_or_b64 s[42:43], vcc, s[38:39]"
def check(tag, scl):
    return [f"v_cmp_class_f32 s[40:41], v{T0}, s58"] + scl + ["s_or_b64 s[42:43], s[42:43], s[40:41]", f"s_cbranch_scc1 {tag}", f"{tag}_RET:"]
OCV = [f"v_cvt_pk_bf16_f32 v{T0+i}, v{T0+2*i}, v{T0+2*i+1}" for i in range(16)]
OCON = ["v_mbcnt_lo_u32_b32 v11, -1, 0", "v_mbcnt_hi_u32_b32 v11, -1, v11", "v_and_or_b32 v8, v11, 31, s45", "v_lshrrev_b32 v9, 3, v11", "v_mad_u32_u24 v8, v8, s55, v1",
        "v_mul_u32_u24 v9, s47, v9", "v_and_b32 v11, 7, v11", "v_add_u32 v9, s46, v9", "v_lshlrev_b32 v11, 4, v11", "v_add_u32 v10, v9, v11"]
OIW = f"ds_write_b32 v8, v{OA+2} offset:{L_SPL+64}"
OSW = [f"ds_write_b128 v{OA}, v[{T0+4*k}:{T0+4*k+3}] offset:{L_SPL+16*k}" for k in range(4)]
OSR = [f"ds_read2_b32 v[{EE+2*k}:{EE+2*k+1}], v9 offset0:{32+72*k} offset1:{68+72*k}" for k in range(2)] + \
      [f"ds_read_b128 v[{T1+4*j}:{T1+4*j+3}], v10 offset:{144*j}" for j in range(4)]
OOR = [f"v_or_b32 v{EE+j}, v{EE+j}, v11" for j in range(4)]
OST = [f"buffer_store_dwordx4 v[{T1+4*j}:{T1+4*j+3}], v{EE+j}, s[8:11], 0 offen{OSTF}" for j in range(4)]
def xrow(d, e, t, base): return [f"v_and_b32 v{d}, s54, v{e}", f"v_and_b32 v{t}, 7, v{e}", f"v_lshl_add_u32 v{d}, v{d}, 7, v{base}", f"v_lshlrev_b32 v{t}, 4, v{t}", f"v_xor_b32 v{d}, v{d}, v{t}"]
def xrd(r): return [f"v_xor_b32 v{r[k]}, {16*k}, v{r[0]}" for k in range(1, 4)], [f"ds_read_b128 a[{AX+32+4*k}:{AX+35+4*k}], v{r[k]}" for k in range(4)]
def recs(d, p): return [f"ds_read2_b32 v[{d}:{d+1}], v{p} offset0:1 offset1:2", f"ds_read2_b32 v[{d+2}:{d+3}], v{p} offset0:3 offset1:4"]
LSET = ["s_max_u32 s20, s20, 2", "s_sub_u32 s37, s20, 3", "s_sub_u32 s20, s20, 1", "s_mov_b32 s19, 1"]

FI, FR = 224, 208
def kernel():
    K = NAME + "_kernel"
    lt = TP.bit_length() - 1
    assert L_W % 256 == 0 and L_X % 128 == 0
    I(".p2align 12", f".globl {K}", ".p2align 8", f".type {K},@function", f"{K}:")
    I("s_cmp_ge_u32 s2, 256", "s_cbranch_scc1 K_END0")
    stamp("start")
    I("s_load_dwordx16 s[64:79], s[0:1], 0", "s_load_dwordx4 s[80:83], s[0:1], 64", "s_load_dwordx2 s[12:13], s[0:1], 80")
    DST, SRC, EAR, AD, RK, P8, CP, WR = 64, 80, 96, 128, 144, 160, 176, 208
    CM("pull this kernel's code into L2 (each workgroup touches an eighth of its lines)")
    I("s_getpc_b64 s[62:63]", "K_PC:", "s_bfe_u32 s3, s2, 0x30003", "v_and_b32 v2, 0xf8, v0", "v_add_lshl_u32 v41, v2, s3, 7",
      "v_min_u32 v2, K_SLOW0-K_PC, v41", "v_mov_b32 v3, 0", "v_lshl_add_u64 v[2:3], v[2:3], 0, s[62:63]", "global_load_dword v10, v[2:3], off")
    CM("constants, hidden behind the kernarg load. s84 = chunk id = bucket id, s18 = wave, nodes [s16, s16+s17)")
    I("v_lshrrev_b32 v2, 6, v0", "v_and_b32 v6, 63, v0", "v_lshlrev_b32 v17, 2, v0", "v_readfirstlane_b32 s18, v2")
    I("v_mov_b32 v24, 0", f"ds_write_b32 v17, v24 offset:{L1_CNT}", "v_lshlrev_b32 v16, 4, v0", "v_lshlrev_b32 v4, 4, v6")
    I("s_and_b32 s84, s2, 7", "s_lshl_b32 s84, s84, 5", "s_lshr_b32 s3, s2, 3", "s_add_u32 s84, s84, s3")
    CID = "s84"
    I("s_mov_b32 s15, 0x20000", f"s_mov_b32 s14, {WS_SIZE}", f"s_mov_b32 s30, {E*4}", "s_mov_b32 s34, s30")
    for r in (31, 35, 43, 47, 51, 55, 7, 11): I(f"s_mov_b32 s{r}, s15")
    I(f"s_mov_b32 s42, {132*256}", f"s_movk_i32 s46, {128*128}", f"s_mov_b32 s54, {E*8}", f"s_mov_b32 s26, {N_NODES*128}", "s_mov_b32 s6, s26", "s_mov_b32 s10, s26")
    I(f"s_lshr_b32 s19, {CID}, 5", f"s_mul_i32 s19, s19, {32*CH*4}", f"s_and_b32 s20, {CID}, 31", f"s_mul_i32 s21, s20, {(CH-3072)*4}", "s_add_u32 s21, s21, s19",
      f"s_add_u32 s21, s21, {3*131072 - 768}", "s_lshl_b32 s20, s20, 12", "s_add_u32 s60, s19, s20", "s_add_u32 s19, s60, 0x20000", "s_add_u32 s20, s60, 0x40000")
    I("v_mov_b32 v20, -1", "v_mov_b32 v21, -1", "v_mov_b32 v22, -1", "v_mov_b32 v23, -1", "s_movk_i32 s58, 256", "s_mov_b32 s59, s15")
    NC = 1 << (NR-2); RID = CID
    I(f"s_and_b32 s37, {RID}, {(1 << NR) - 1}", f"s_lshl_b32 s61, s18, {NR-2}", f"s_add_u32 s61, s61, {RID}", f"s_lshl_b32 s36, s61, {FS}", f"s_add_u32 s36, s36, {FL_OFF}", "s_lshl_b32 s61, s61, 10")
    I("v_mov_b32 v29, 1", "v_lshlrev_b32 v18, 5, v0", "v_lshlrev_b32 v19, 3, v0", "v_lshlrev_b32 v43, 2, v6")
    def lateconst():
        I("s_mul_i32 s16, s84, 12800051", "s_add_u32 s16, s16, 0xffff", "s_add_u32 s17, s16, 12800051", "s_lshr_b32 s16, s16, 16", "s_lshr_b32 s17, s17, 16",
          f"s_min_u32 s17, s17, {N_NODES}", "s_sub_u32 s17, s17, s16", "s_mov_b32 s85, 85899")
        I("v_subrev_u32 v45, 192, v0", f"v_cmp_gt_u32 vcc, {CH-3072}, v45", f"v_mov_b32 v45, {hex(BIG)}", "s_mov_b32 s39, 0x05040100", "v_cndmask_b32 v45, v45, v24, vcc")
        I(f"v_lshrrev_b32 v42, {lt-4}, v6", f"v_lshlrev_b32 v42, {lt+8}, v42", f"v_and_b32 v37, {TP-1}, v4", "v_add_u32 v42, v42, v37")
        I("v_lshrrev_b32 v1, 5, v6", "v_bfe_u32 v52, v6, 2, 2", "v_and_b32 v53, 3, v6", "v_bfe_u32 v54, v6, 4, 1",
          "v_lshlrev_b32 v55, 3, v53", "v_lshl_add_u32 v55, v54, 5, v55",
          "v_lshl_add_u32 v56, v52, 8, v55", "v_lshl_add_u32 v60, v1, 10, v56", f"v_add_u32 v60, {L_S}, v60",
          "v_lshl_add_u32 v56, v1, 13, v56", "v_lshl_add_u32 v56, v52, 6, v56", f"v_add_u32 v56, {L_W}, v56",
          "v_xor_b32 v57, 64, v56", "v_xor_b32 v58, 0x80, v56", "v_xor_b32 v59, 0xc0, v56",
          "v_and_b32 v55, 1, v53", "v_lshlrev_b32 v55, 6, v55", "v_lshl_add_u32 v55, v54, 4, v55", "v_lshrrev_b32 v53, 1, v53", "v_lshl_add_u32 v55, v53, 3, v55",
          "v_lshl_add_u32 v62, v52, 7, v55", "v_lshl_add_u32 v62, v1, 9, v62", f"v_add_u32 v62, {L_W2}, v62",
          "v_and_b32 v52, 1, v52", "v_lshl_add_u32 v63, v52, 5, v55", "v_lshl_add_u32 v63, v1, 8, v63", f"v_add_u32 v63, {L_S + 2048}, v63",
          "v_lshlrev_b32 v1, 6, v1")
    if not OPT["lc"]: lateconst()
    I("s_waitcnt lgkmcnt(0)")
    I("s_mov_b64 s[28:29], s[70:71]")
    so = ("s60", "s19", "s20")
    def dstld():
        for i in range(3): I(f"buffer_load_dwordx4 v[{DST+4*i}:{DST+4*i+3}], v16, s[28:31], {so[i]} offen")
        I(f"buffer_load_dword v{DST+12}, v17, s[28:31], s21 offen", "s_mov_b64 s[32:33], s[68:69]")
    def clears():
        I("s_cmp_lg_u32 s37, 0", "s_cbranch_scc1 R_NOT1")
        for i in range(NC): I(*([f"s_add_u32 s61, s61, 4096"] if i and i % 4 == 0 else []), f"buffer_store_dwordx4 v[20:23], v4, s[12:15], s61 offen offset:{1024*(i&3)} sc1")
        I(f"s_mov_b64 exec, {hex((1 << (NC << (FS-4))) - 1)}", "buffer_store_dwordx4 v[20:23], v4, s[12:15], s36 offen sc1", "s_mov_b64 exec, -1", "R_NOT1:")
    CM("phase 1: load this chunk's dst / src / e_attr; every fourth workgroup clears a slice of the hand-off tables")
    dstld(); clears()
    stamp("issued", lvl=2)
    vm.append("dst")
    def wwarm():
        I("s_mov_b64 s[40:41], s[72:73]", "s_mov_b64 s[44:45], s[76:77]")
        I("s_cmp_eq_u32 s18, 0", "s_cselect_b64 s[48:49], s[74:75], s[78:79]", "s_cselect_b32 s50, 0x100, 0", "s_cmp_eq_u32 s18, 2", "s_cselect_b32 s50, 0x80, s50", "s_mov_b32 s3, 0x8000")
        VM("ww", "buffer_load_dword v10, v41, s[40:43], 0 offen", "buffer_load_dword v10, v41, s[44:47], 0 offen")
        VM("ws", f"buffer_load_dword v{WR+32}, v17, s[40:43], s3 offen", f"buffer_load_dword v{WR+33}, v43, s[48:51], 0 offen")
    for i in range(3): VM("src", f"buffer_load_dwordx4 v[{SRC+4*i}:{SRC+4*i+3}], v16, s[32:35], {so[i]} offen")
    VM("src", f"buffer_load_dword v{SRC+12}, v17, s[32:35], s21 offen", "s_barrier")
    wwarm()
    I("s_mov_b64 s[52:53], s[66:67]")
    for r in ("s60", "s19", "s20", "s21"): I(f"s_lshl_b32 {r}, {r}, 1")
    el = []
    for i in range(3): el += [f"buffer_load_dwordx4 v[{EAR+8*i}:{EAR+8*i+3}], v18, s[52:55], {so[i]} offen", f"buffer_load_dwordx4 v[{EAR+8*i+4}:{EAR+8*i+7}], v18, s[52:55], {so[i]} offen offset:16"]
    el.append(f"buffer_load_dwordx2 v[{EAR+24}:{EAR+25}], v19, s[52:55], s21 offen")
    up, ea2 = 4, 3
    I("v_mov_b32 v25, 0", "v_mov_b32 v26, 0", "v_mov_b32 v27, 0", f"v_add_u32 v5, {L_NODE}, v16")
    for i in range(10): VM("ea", f"ds_write_b128 v5, v[24:27] offset:{4096*i}", *(el[i-10+up:i-9+up] if i >= 10-up else []))
    if OPT["lc"]: lateconst()
    I("v_mov_b32 v28, 0x7a0000ff",
      "v_cmp_eq_u32 vcc, 2, v2", f"ds_write_b32 v17, v28 offset:{L_TBL}", f"v_mov_b32 v28, {hex(BIG)}", "v_cndmask_b32 v3, v24, v28, vcc",
      f"ds_write_b32 v17, v3 offset:{L_H1}", f"ds_write_b32 v17, v28 offset:{L_TB2}")
    I("v_and_b32 v3, 0x7c, v43", f"ds_write_b32 v3, v20 offset:{L1_KEY + CH*4}")
    I(
      "s_mov_b64 s[4:5], s[64:65]", "s_mov_b64 s[8:9], s[80:81]")
    I(f"s_mul_i32 s3, {CID}, {CHS*4}", f"s_add_u32 s3, s3, {KEY_OFF}", "s_add_u32 s28, s12, s3", "s_addc_u32 s29, s13, 0", f"s_movk_i32 s30, 12672")
    I(f"s_mul_i32 s3, {CID}, {CHS*8}", f"s_add_u32 s3, s3, {EA_OFF}", "s_add_u32 s32, s12, s3", "s_addc_u32 s33, s13, 0", f"s_movk_i32 s34, 25216")
    I("s_lshl_b32 s38, s18, 12", "s_mov_b64 s[56:57], s[82:83]")
    I("s_cmp_lg_u32 s37, 0", f"s_waitcnt vmcnt({vw('dst')+NC+1})", "s_cbranch_scc0 R_W")
    I(f"s_waitcnt vmcnt({vw('dst')})", "R_W:")
    stamp("dst", lvl=2)
    CM("counting sort by bucket = (dst * 85899) >> 24: rank by LDS atomics, scan, scatter")
    for i in range(13):
        I(f"v_mul_u32_u24 v{AD+i}, s85, v{DST+i}", f"v_lshlrev_b32_sdwa v{AD+i}, 2, v{AD+i} dst_sel:DWORD dst_unused:UNUSED_PAD src0_sel:DWORD src1_sel:BYTE_3")
        if i == 12: I(f"v_or_b32 v{AD+i}, v45, v{AD+i}")
        I(f"ds_add_rtn_u32 v{RK+i}, v{AD+i}, v29 offset:{L1_CNT}")
    XT = ["v_lshrrev_b32 v11, 3, v0", "v_min_u32 v11, 24, v11", "v_lshlrev_b32 v11, 10, v11", "s_lshl_b32 s3, s16, 7", "buffer_load_dword v10, v11, s[4:7], s3 offen"]
    VM("xt", *XT)
    I("s_lshl2_add_u32 s37, s37, s18", "s_cmp_eq_u32 s18, 0", "s_waitcnt lgkmcnt(0)", "s_barrier")
    stamp("barA", lvl=3)
    HINT = ["s_cmp_lg_u32 s37, 3", "s_cbranch_scc1 K_NOH", f"s_lshr_b32 s3, {RID}, {NR}", "s_and_b32 s3, s3, 3", "s_lshl_b32 s3, s3, 6",
            "s_mov_b64 exec, 1", "buffer_atomic_add v29, v24, s[56:59], s3 offen", "s_mov_b64 exec, -1", "K_NOH:"]
    perm = [f"v_perm_b32 v{DST+i}, v{SRC+i}, v{DST+i}, s39" for i in range(13)]
    CM("wave 0 scans; the others touch the first line of the next code pages")
    I("s_cbranch_scc1 K_SCAN")
    I("s_cmp_eq_u32 s18, 1", "s_cbranch_scc1 PG1", "s_cmp_eq_u32 s18, 2", "s_cbranch_scc1 PG2", "s_branch PG3")
    I("K_SCAN:", f"ds_read_b128 v[32:35], v4 offset:{L1_CNT}", "s_waitcnt lgkmcnt(0)")
    I("v_add_u32 v38, v32, v33", "v_add_u32 v39, v38, v34", "v_add_u32 v41, v39, v35", "v_mov_b32 v36, v41")
    scan64(36)
    I("v_sub_u32 v36, v36, v41", "v_add_u32 v37, v36, v32", "v_add_u32 v38, v36, v38", "v_add_u32 v39, v36, v39")
    I(f"ds_write_b128 v4, v[36:39] offset:{L1_BASE}")
    for i in range(4): I(f"v_lshl_or_b32 v{32+i}, v{32+i}, 16, v{36+i}")
    I("s_waitcnt lgkmcnt(0)", "K_WARM_RET:", "s_barrier")
    stamp("barB", lvl=3)
    wl = [[f"s_movk_i32 s3, {4096*i}", f"buffer_load_dwordx4 v[{WR+4*i}:{WR+4*i+3}], v16, s[40:43], s3 offen"] for i in range(8)]
    W2R = [148, 152, 156, 248]
    wl += [[f"buffer_load_dwordx4 v[{W2R[i]}:{W2R[i]+3}], v4, s[44:47], s38 offen offset:{1024*i}"] for i in range(4)]
    for i in range(13): I(f"ds_read_b32 v{AD+i}, v{AD+i} offset:{L1_BASE}")
    I(f"s_waitcnt vmcnt({vw('src')})", *perm)
    for i in range(13):
        if i in (0, 6): I(f"s_waitcnt lgkmcnt({7 if i == 0 else 6})")
        I(f"v_add_lshl_u32 v{AD+i}, v{AD+i}, v{RK+i}, 2")
        if i == 12: I(f"v_or_b32 v{AD+i}, v45, v{AD+i}")
        I(f"ds_write_b32 v{AD+i}, v{DST+i} offset:{L1_KEY}")
    I("s_waitcnt lgkmcnt(0)", "s_barrier")
    stamp("barC", lvl=2)
    CM("the table clears of this workgroup have landed: count it into d_debug; write the sorted keys (src<<16 | dst) out")
    if OPT["hp"] < 0: I(*HINT)
    for i in range(4): I(f"ds_read_b128 v[{CP+4*i}:{CP+4*i+3}], v16 offset:{L1_KEY+4096*i}")
    for i in range(13): I(f"v_lshlrev_b32 v{P8+i}, 1, v{AD+i}")
    for i in range(4): VM("kst", f"s_movk_i32 s3, {4096*i}", f"s_waitcnt lgkmcnt({3-i})", f"buffer_store_dwordx4 v[{CP+4*i}:{CP+4*i+3}], v16, s[28:31], s3 offen sc1")
    for k in range(ea2+1):
        if OPT["hp"] == k: I(*HINT)
        if k < ea2: VM("ea", el[7-ea2+k])
    TABLD = "buffer_load_dword v8, v3, s[12:15], s36 offen sc1"
    TABCMP = ["v_cmp_eq_u32 vcc, -1, v8"]
    TABA = [f"s_lshr_b32 s36, s84, {lt-2}", f"s_lshl_b32 s36, s36, {lt+8}", f"s_and_b32 s3, s84, {TP//4-1}", "s_lshl2_add_u32 s36, s3, s36"]
    I(*TABA); I(f"v_lshlrev_b32 v3, {lt}, v0")
    I(f"s_lshl_b32 s60, {CID}, {lt}", f"s_lshl_b32 s61, {CID}, {FS}", f"v_lshlrev_b32 v41, {FS}, v0", f"s_add_u32 s61, s61, {FL_OFF}")
    I(f"s_mov_b32 s24, {NLOG2E}", f"s_mov_b32 s25, {NLOG2E}", "s_mov_b32 s27, 0xffff0000", "v_and_b32 v5, 0x300, v16", "v_lshrrev_b32 v5, 2, v5", "v_xor_b32 v5, v5, v16", f"v_add_u32 v5, {L_W}, v5")
    I(f"v_lshl_add_u32 v7, v2, 8, v17", f"v_add_u32 v7, {L_S + 1024}, v7", f"v_add_u32 v9, {L_S}, v17")
    I("s_lshl_b32 s23, s18, 11", "v_and_b32 v48, 0x380, v4", "v_bfe_u32 v49, v6, 2, 1", "v_lshl_add_u32 v48, v49, 10, v48", "v_and_b32 v30, 48, v4",
      "v_lshl_add_u32 v48, v30, 1, v48", "v_add_u32 v48, s23, v48", "v_add_u32 v49, 8, v48", "v_add_u32 v50, 16, v48", "v_add_u32 v51, 24, v48",
      f"s_mul_i32 s22, s16, {NS}", f"s_sub_u32 s22, {L_NODE}, s22", f"v_mov_b32 v28, {NS}",
      "v_and_or_b32 v31, v4, 16, 2.0", f"v_mul_u32_u24 v44, {CHS}, v0", "v_and_b32 v26, 0x70, v4", "v_add_u32 v27, 0x80000000, v30",
      "v_lshrrev_b32 v46, 3, v0", "v_lshlrev_b32 v47, 4, v46", "v_xor_b32 v47, v47, v4", "v_and_b32 v47, 0x70, v47", "v_add_u32 v46, s16, v46", "v_lshl_add_u32 v55, v46, 7, v47",
      "s_lshl_b32 s62, s18, 10", f"s_add_u32 s62, s62, {L_X}", "s_cmp_eq_u32 s18, 0", "s_mov_b32 s63, 0x3f000", f"s_cselect_b32 s63, {L_X + 6*4096}, s63")
    HLD = "buffer_load_dword v20, v43, s[56:59], s37 offen sc1"
    HCMP = "v_cmp_lt_u32 vcc, v20, v22"
    I("v_and_b32 v22, 0xcf, v0", "v_cmp_eq_u32 vcc, 0x80, v22", "s_cmp_eq_u32 s18, 2", "s_cselect_b32 s37, 0, 0x1000", f"v_cndmask_b32_e64 v22, 0, {64 >> NR}, vcc")
    stamp("kout", lvl=3)
    xd = [[f"s_add_u32 m0, s62, {4096*i}" if i < 6 else "s_mov_b32 m0, s63", "v_add_u32 v55, 0x1000, v55" if i else "s_nop 0",
           "buffer_load_dwordx4 v55, s[4:7], 0 offen lds"] for i in range(7)]
    KEY, O4, O8 = 64, 170, 160
    F3LD = "buffer_load_dword v9, v41, s[12:15], s52 offen sc1"
    def eadma(o, base, imm): return [f"s_add_u32 m0, {base}, {imm}", "s_nop 0", f"buffer_load_dwordx4 v{o}, s[12:15], s51 offen sc1 lds"]
    ea = [eadma(O8+n, "s23", STG0 + 8192*(n>>1) + 1024*(n&1)) for n in range(10)]
    def plan(p): return {x[:-1]: int(x[-1], 16) for x in p.split(".")}
    xs, es = plan(OPT["xs"]), plan(OPT["es"])
    assert sum(xs.values()) == 7 and sum(es.values()) == 10
    def hook(h):
        if OPT["f3l"] == h: VM("f3", F3LD)
        for k in range(xs.get(h, 0)): VM("x", *xd.pop(0))
        if OPT["w2h"] == h:
            CM("second-layer weights * -ln2 -> LDS")
            for i in range(16):
                t = 84 + 2*(i % 4); r = W2R[i//4] + i % 4
                I(f"v_lshlrev_b32 v{t}, 16, v{r}", f"v_and_b32 v{t+1}, s53, v{r}", f"v_pk_mul_f32 v[{t}:{t+1}], v[{t}:{t+1}], s[24:25]", f"v_cvt_pk_bf16_f32 v{r}, v{t}, v{t+1}")
                if i % 4 == 3: I(f"ds_write_b128 v5, v[{r-3}:{r}] offset:{256*(i-3)}")
        if es.get(h) and len(ea) == 10:
            CM("e_attr segments -> LDS once their producers have flagged them")
            I(f"s_waitcnt vmcnt({vw('f3')})", "v_cmp_eq_u32 vcc, -1, v9", "s_cbranch_vccnz K_F3", "K_F3_RET:", "s_cmp_lg_u32 s20, 0", "s_cbranch_scc1 K_MEA", "K_MEA_RET:")
            stamp("f3", lvl=3)
        for k in range(es.get(h, 0)): VM("eb", *ea.pop(0))
    hook("ko")
    def bar(tag=None): I("s_waitcnt " + (f"vmcnt({vw(tag)}) " if tag else "") + "lgkmcnt(0)", "s_barrier")
    for i in range(13):
        if i in (0, 4, 8): I(f"s_waitcnt vmcnt({vw('ea', {0: 5, 4: 3, 8: 0}[i])})")
        if i == 8: stamp("ea_in", lvl=3)
        if i == OPT["hl"]: VM("kst", HLD)
        I(f"ds_write_b64 v{P8+i}, v[{EAR+2*i}:{EAR+2*i+1}] offset:{L1_EA}")
        if i >= 1: VM("w", *wl.pop(0))
    def scale(i):
        t = 64 + 2*(i % 4) if i < 32 else 72 + 2*(i-32)
        I(f"v_lshlrev_b32 v{t}, 16, v{WR+i}", f"v_and_b32 v{t+1}, s27, v{WR+i}", f"v_pk_mul_f32 v[{t}:{t+1}], v[{t}:{t+1}], s[24:25]", f"v_cvt_pk_bf16_f32 v{WR+i}, v{t}, v{t+1}")
        if i % 4 == 3: I(f"ds_write_b128 v5, v[{WR+i-3}:{WR+i}] offset:{1024*(i-3)}")
    CM("keys are at the coherence point and all table clears are done: publish (base, count) of every segment")
    I(f"s_waitcnt vmcnt({vw('kst')})")
    I(HCMP, "s_cbranch_vccnz K_H", "K_H_RET:")
    I("s_cmp_lg_u32 s18, 0", "s_waitcnt lgkmcnt(0)", "s_barrier")
    stamp("barD", lvl=2)
    I("s_cbranch_scc1 K_NOTAB", "buffer_store_dwordx4 v[32:35], v42, s[12:15], s60 offen sc1", "K_NOTAB:")
    for i in range(7): I(f"ds_read_b128 v[{CP+4*i}:{CP+4*i+3}], v16 offset:{L1_EA+4096*i}")
    I("s_branch PG1E"); repoll("K_H", HLD, HCMP); I(".p2align 12", "PG1:", "s_branch K_WARM_RET", "s_nop 0", "PG1E:")
    for i in range(7): VM("est", f"s_movk_i32 s3, {4096*i}", f"s_waitcnt lgkmcnt({6-i})", f"buffer_store_dwordx4 v[{CP+4*i}:{CP+4*i+3}], v16, s[32:35], s3 offen sc1")
    stamp("eaout", lvl=3)
    CM("first-layer weights and b1 * -log2(e) -> LDS (the MFMA then yields the exp2 argument directly)")
    I("s_cmp_lg_u32 s18, 0", f"s_waitcnt vmcnt({vw('w') + 1})", "s_cbranch_scc0 K_WW", f"s_waitcnt vmcnt({vw('w')})", "K_WW:", ".p2align 3")
    for i in range(34):
        if i == 33: I("s_cmp_eq_u32 s18, 2", "s_cselect_b32 s24, 1.0, s24", "s_mov_b32 s25, s24", "s_nop 0")
        scale(i)
    I(f"ds_write_b32 v9, v{WR+32}", f"ds_write_b32 v7, v{WR+33}")
    I(f"v_lshlrev_b32 v64, 16, v{WR+33}", f"v_and_b32 v65, s27, v{WR+33}", "v_sub_f32 v64, v74, v64", "v_sub_f32 v65, v75, v65", "v_cvt_pk_bf16_f32 v67, v64, v65", "ds_write_b32 v7, v67 offset:256")
    I(*[f"s_mov_b32 s{40+i}, {STG0 + 8192*i}" for i in range(5)])
    I(f"s_mov_b32 s24, {NLN2}", f"s_mov_b32 s25, {NLN2}", f"s_mov_b32 s50, {KEY_OFF}", f"s_mov_b32 s51, {EA_OFF}", f"s_mov_b32 s52, {FL_OFF}")
    for w in range(3): I(f"s_cmp_eq_u32 s18, {w+1}", f"s_cbranch_scc1 PG{w+4}")
    I("K_WARM_RET2:")
    stamp("wdone", lvl=3)
    tr = []
    for f in range(16):
        for jh in range(2): tr.append(f"ds_read_b64_tr_b16 a[{AW2+4*f+2*jh}:{AW2+4*f+2*jh+1}], v62 offset:{(16*(f>>1) + 8*jh)*128 + 32*(f&1)}")
    for f in range(32):
        for jh in range(2): tr.append(f"ds_read_b64_tr_b16 a[{AW1A+4*f+2*jh}:{AW1A+4*f+2*jh+1}], v{56+((f>>2)&3)} offset:{(64*(f>>4) + 8*(f&3) + 4*jh)*256}")
    for b in range(4): tr.append(f"ds_read_b64_tr_b16 a[{AW1C+2*b}:{AW1C+2*b+1}], v60 offset:{64*b}")
    tr += [f"ds_read_b64_tr_b16 a[{AB2}:{AB2+1}], v63"]
    tr2, tr = tr[:32], tr[32:]
    CM("phase 2: thread c reads the table entry of chunk c; flag own e_attr once it has landed")
    VM("tab", f"s_waitcnt vmcnt({vw('est', OPT['tw'])})", TABLD)
    I("s_cmp_lg_u32 s18, 1"); bar("est")
    I("s_cbranch_scc1 K_NOF3", "s_mov_b64 exec, 1", "buffer_store_dword v24, v24, s[12:15], s61 offen sc1", "s_mov_b64 exec, -1", "K_NOF3:")
    stamp("barE", lvl=2)
    I(*tr[:OPT["ntr"]]); tr = tr[OPT["ntr"]:]
    I(f"s_waitcnt vmcnt({vw('tab')+1})", "s_cbranch_scc0 K_TW", f"s_waitcnt vmcnt({vw('tab')})", "K_TW:")
    I(*TABCMP); I("s_cbranch_vccnz K_TAB", "K_TAB_RET:")
    stamp("tab", lvl=2)
    CM("keys: 16 per segment by a quad of lanes, the rest in units of 8 handed to free lane pairs")
    I("v_and_b32 v33, 0xffff, v8", "v_add_lshl_u32 v32, v44, v33, 2", "v_lshrrev_b32 v33, 16, v8", "v_subrev_u32 v33, 16, v33")
    AD, RK = 96, 128
    def compact(dst):
        I("v_cmp_lt_i32 vcc, 0, v33", "v_cmp_lt_i32 s[46:47], 8, v33", "v_cmp_lt_i32 s[48:49], 16, v33", "v_mbcnt_lo_u32_b32 v35, vcc_lo, 0", "v_mbcnt_hi_u32_b32 v35, vcc_hi, v35",
          "v_mbcnt_lo_u32_b32 v35, s46, v35", "v_mbcnt_hi_u32_b32 v35, s47, v35", "v_mbcnt_lo_u32_b32 v35, s48, v35", "v_mbcnt_hi_u32_b32 v35, s49, v35",
          "v_cmp_gt_u32 s[36:37], 30, v35", "v_lshlrev_b32 v35, 3, v35", "v_add_u32 v45, 8, v35", "v_add_u32 v52, 16, v35", "v_add_u32 v40, 32, v34", "v_add_u32 v53, 64, v34",
          "s_and_b64 vcc, vcc, s[36:37]", "s_and_b64 s[46:47], s[46:47], s[36:37]", "s_and_b64 s[48:49], s[48:49], s[36:37]",
          "v_cndmask_b32 v35, 4, v35, vcc", "v_cndmask_b32 v45, 4, v45, s[46:47]", "v_cndmask_b32 v52, 4, v52, s[48:49]",
          f"ds_permute_b32 v{dst}, v35, v34", "ds_permute_b32 v40, v45, v40", "ds_permute_b32 v53, v52, v53",
          "v_cndmask_b32_e64 v35, 0, 24, vcc", "v_sub_u32 v33, v33, v35", "v_lshl_add_u32 v34, v35, 2, v34")
    def units(k, o4, o8):
        return ["s_waitcnt lgkmcnt(0)", "v_or3_b32 v36, v36, v40, v53", "v_lshlrev_b32 v39, 1, v36", "s_nop 0",
                f"v_add_u32_dpp v{o4}, v36, v31 quad_perm:[0,0,2,2] row_mask:0xf bank_mask:0xf",
                f"buffer_load_dwordx4 v[{k}:{k+3}], v{o4}, s[12:15], s50 offen sc1",
                f"v_add_u32_dpp v{o8}, v39, v27 quad_perm:[0,0,0,0] row_mask:0xf bank_mask:0xf",
                f"v_add_u32_dpp v{o8+1}, v39, v27 quad_perm:[2,2,2,2] row_mask:0xf bank_mask:0xf", f"v_bfe_i32 v{o4}, v{o4}, 30, 1"]
    def octets(src, its, off, o8):
        I(f"v_lshlrev_b32 v39, 1, v{src}", f"v_lshlrev_b32 v37, 1, v{src}", f"v_lshlrev_b32 v38, 1, v{src}", "s_nop 0",
          "v_mov_b32_dpp v37, v39 row_shr:4 row_mask:0xf bank_mask:0xa", "v_mov_b32_dpp v38, v39 row_shl:4 row_mask:0xf bank_mask:0x5", "s_nop 0")
        for n, i in enumerate(its):
            for h in range(2): I(f"v_add_u32_dpp v{o8+2*n+h}, v{37+h}, v{off} quad_perm:[{i},{i},{i},{i}] row_mask:0xf bank_mask:0xf")
    for i in range(4):
        VM(f"k{i}", f"v_add_u32_dpp v{O4+i}, v32, v30 quad_perm:[{i},{i},{i},{i}] row_mask:0xf bank_mask:0xf",
          f"buffer_load_dwordx4 v[{KEY+4*i}:{KEY+4*i+3}], v{O4+i}, s[12:15], s50 offen sc1")
    I(f"v_add_u32 v34, 0xc0000040, v32")
    compact(36)
    octets(32, range(4), 26, O8)
    VM("k4", *units(KEY+16, O4+4, O8+8))
    hook("k")
    I("v_and_b32 v244, 0x3c0, v4", "v_bfe_u32 v245, v6, 1, 1", "v_lshl_add_u32 v244, v245, 10, v244", "v_and_b32 v245, 1, v6",
      "v_lshl_add_u32 v244, v245, 5, v244", "v_add_u32 v244, s23, v244", "v_add_u32 v245, 8, v244", "v_add_u32 v246, 16, v244", "v_add_u32 v247, 24, v244")
    I(f"s_add_u32 s3, s38, {L_W2}", "v_add_u32 v5, s3, v4", "s_mov_b32 s53, s27")
    I(f"v_mul_u32_u24 v21, {NS}, v0", f"v_add_u32 v21, {L_NODE}, v21", "v_cmp_gt_u32 s[38:39], s17, v0")
    I("s_sub_u32 s27, 256, s17", "s_sub_u32 s19, s27, 32", "s_mov_b32 s20, 0")
    I(*tr)
    I("v_mov_b32 v14, 0x3f803f80", "v_mov_b32 v15, 0", "ds_write_b64 v24, v[14:15]", "v_cmp_gt_u32 vcc, 32, v6", "v_mov_b32 v14, 0xffff", "s_nop 0", "v_cndmask_b32 v14, 0, v14, vcc")
    I("v_bfe_u32 v92, v6, 4, 1", "v_lshlrev_b32 v92, 4, v92", f"v_xor_b32 v{FI+1}, v92, v26")
    for j in range(1, 8): I(f"v_xor_b32 v{FI+1+2*j}, {32*(j&3)}, v{FI+1}")
    I("v_and_b32 v92, 3, v6", f"v_mul_u32_u24 v{FR}, 0x420, v92", "v_bfe_u32 v92, v6, 2, 3", f"v_lshl_add_u32 v{FR}, v92, 7, v{FR}", "v_bfe_u32 v92, v6, 3, 1",
      f"v_lshl_add_u32 v{FR}, v92, 4, v{FR}", f"v_xor_b32 v{FR}, v{FR}, v1", "s_lshl_b32 s45, s18, 13", f"s_add_u32 s45, s45, {L_W}", f"v_add_u32 v{FR}, s45, v{FR}")
    for k in range(1, 4): I(f"v_xor_b32 v{FR+k}, {16*k}, v{FR}")
    I("v_and_b32 v93, 31, v6", "s_lshl_b32 s3, s18, 7", "v_lshl_add_u32 v57, v93, 2, s3", "v_and_b32 v59, 0x38, v6", "v_lshl_add_u32 v59, v59, 1, s3",
      "s_sub_u32 s3, 896, s3", "v_lshl_add_u32 v58, v93, 2, s3")
    def phaseB(k, a, r, sreg, m=None):
        if m:
            for j in range(4): I(f"v_or_b32 v{k+j}, v{m}, v{k+j}")
        for j in range(4): I(f"v_mad_u32_u16 v{a+j}, v{k+j}, v28, s22")
        for j in range(4):
            I(f"ds_add_rtn_u32 v{r+j}, v{a+j}, v29",
              f"v_add_u32_sdwa v{k+j}, v{(244 if m else 48)+j}, s{sreg} dst_sel:WORD_0 dst_unused:UNUSED_PRESERVE src0_sel:DWORD src1_sel:DWORD")
    def phaseC(k, a, r):
        L = []
        for j in range(4): L += [f"v_min_u32 v{r+j}, {CAP-1}, v{r+j}", f"v_lshl_add_u32 v{a+j}, v{r+j}, 2, v{a+j}", f"ds_write_b32 v{a+j}, v{k+j} offset:4"]
        return L
    CM("insert the keys into per-node lists (foreign keys fall outside the LDS allocation); own x rows -> LDS")
    I("s_barrier")
    for i in range(5):
        I(f"s_waitcnt vmcnt({vw(f'k{i}')})")
        if i == 0: stamp("key0", lvl=2)
        hook(f"b{i}")
        phaseB(KEY+4*i, AD+4*i, RK+4*i, 40+i, O4+4 if i == 4 else None)
    I("v_cmp_lt_i32 vcc, 0, v33", "s_cbranch_vccnz K_MORE", "K_MORE_RET:", "s_branch PG2E")
    repoll("K_TAB", TABLD, "\n".join(TABCMP))
    I(".p2align 12", "PG2:", "s_branch K_WARM_RET")
    repoll("K_F3", F3LD, "v_cmp_eq_u32 vcc, -1, v9")
    I("PG2E:"); bar()
    stamp("bar1", lvl=2)
    CM("slot assignment: rank nodes by degree, split the largest in two, sort the 256 pieces by length")
    I("s_mov_b64 exec, s[38:39]", "ds_read_b32 v20, v21", "s_mov_b64 exec, -1")
    hook("a1")
    I("s_waitcnt lgkmcnt(0)", "s_mov_b64 exec, s[38:39]")
    I(f"v_cmp_lt_u32 vcc, {CAP}, v20", "v_min_u32 v20, 63, v20", "v_sub_u32 v22, 63, v20", "v_lshlrev_b32 v22, 2, v22",
      f"ds_add_rtn_u32 v23, v22, v29 offset:{L_H1}")
    I("s_cbranch_vccz K_A1", f"ds_write_b32 v24, v29 offset:{L_FLAG}", "K_A1:")
    I("s_mov_b64 exec, -1")
    hook("a2"); bar()
    I(f"ds_read_b32 v25, v43 offset:{L_H1}")
    I(*phaseC(KEY, AD, RK))
    I("s_waitcnt lgkmcnt(4)", "v_mov_b32 v46, v25")
    scan64(46, phaseC(KEY+4, AD+4, RK+4))
    I("v_sub_u32 v46, v46, v25", "ds_bpermute_b32 v46, v22, v46")
    I("v_lshrrev_b32 v30, 1, v20", "v_cmp_lt_u32 s[36:37], 26, v20")
    hook("a3")
    I("s_waitcnt lgkmcnt(0)")
    I("v_add_u32 v23, v23, v46", "v_cmp_gt_u32 vcc, s19, v23", "v_lshlrev_b32 v33, 1, v23", "v_lshlrev_b32 v34, 2, v23",
      "v_cndmask_b32_e64 v31, 8, 10, vcc", "v_cndmask_b32 v31, v31, v30, s[36:37]")
    I("v_cmp_gt_u32 vcc, s27, v23", "v_cmp_gt_u32 s[36:37], v20, v31", "v_mov_b32 v35, 0xff", "v_sub_u32 v37, 63, v31",
      "s_and_b64 vcc, vcc, s[36:37]", "s_and_b64 vcc, vcc, s[38:39]")
    I("v_cndmask_b32 v32, 0, v31, vcc", "v_sub_u32 v32, v20, v32", "v_sub_u32 v36, 63, v32", "v_lshlrev_b32 v36, 2, v36", "v_lshlrev_b32 v37, 2, v37")
    I("s_mov_b64 exec, s[38:39]", f"ds_add_rtn_u32 v38, v36, v29 offset:{L_H2}")
    I("s_mov_b64 exec, vcc", f"ds_add_rtn_u32 v39, v37, v29 offset:{L_H2}", "v_add_lshl_u32 v47, s16, v0, 7", f"ds_write_b32 v34, v47 offset:{L_SN}")
    I("s_mov_b64 exec, -1", "v_cndmask_b32 v35, v35, v33, vcc")
    I("v_lshl_or_b32 v48, v35, 8, v32", "v_lshl_or_b32 v48, v48, 16, v0")
    I("v_or_b32 v33, 1, v33", "v_lshl_or_b32 v49, v33, 8, v31", "v_lshl_or_b32 v49, v49, 8, v32", "v_lshl_or_b32 v49, v49, 8, v0", "v_lshl_add_u32 v50, v32, 2, v21")
    I("s_mov_b64 s[46:47], vcc"); hook("a4"); bar()
    stamp("bar3", lvl=3)
    I(f"ds_read_b32 v25, v43 offset:{L_H2}"); I(*phaseC(KEY+8, AD+8, RK+8)); I("s_waitcnt lgkmcnt(4)", "v_mov_b32 v46, v25")
    scan64(46, phaseC(KEY+12, AD+12, RK+12))
    I("v_sub_u32 v46, v46, v25", "ds_bpermute_b32 v36, v36, v46", "ds_bpermute_b32 v37, v37, v46")
    I(*phaseC(KEY+16, AD+16, RK+16))
    I("s_waitcnt lgkmcnt(4)", "v_add_lshl_u32 v36, v36, v38, 2", "v_add_lshl_u32 v37, v37, v39, 2")
    o0 = L_TBL // 256
    I("s_mov_b64 exec, s[38:39]", f"ds_write2st64_b32 v36, v48, v21 offset0:{o0} offset1:{o0+4}", "s_mov_b64 exec, s[46:47]", f"ds_write2st64_b32 v37, v49, v50 offset0:{o0} offset1:{o0+4}",
      "s_mov_b64 exec, -1")
    hook("a5")
    sr = [f"ds_read_b128 a[{AX+4*k}:{AX+4*k+3}], v{34+(k&3)} offset:{4096*(k>>2)}" for k in range(8)]
    I("s_movk_i32 s54, 0xff", f"s_movk_i32 s55, {SPL_S}", "s_movk_i32 s59, 128",
      f"s_mov_b32 s57, {f32(2.0**-100)}", "s_movk_i32 s58, 0x207", f"v_add_u32 v6, {L_X}, v1")
    I("s_mov_b32 s28, s4", "s_or_b32 s29, s5, 0x800000", f"s_mov_b32 s30, {N_NODES}")
    bar("x")
    stamp("bar4", lvl=2)
    CM("first group: Q = W1b'x[dst], first two tiles of x[src] through LDS, step 0")
    o0 = L_TBL // 256
    I(f"ds_read_b128 v[20:23], v59 offset:{L_TB2}", f"ds_read2st64_b32 v[26:27], v57 offset0:{o0} offset1:{o0+4}",
      f"ds_read_b32 v7, v58 offset:{L_TBL}", f"ds_read_b32 v8, v58 offset:{L_TB2}", f"ds_read_b32 v24, v24 offset:{L_FLAG}")
    for k in range(4): I(f"v_mov_b32 v{34+k}, v{FR+k}")
    assert not ea and not xd
    xx, xr = xrd((28, 29, 30, 31))
    I("s_waitcnt lgkmcnt(3)")
    for j in range(4): I(f"ds_read_u16 v{FI+2*j}, v{20+j} offset:6")
    I(*xrow(28, 26, 29, 6)); I(*xx); I(*xr)
    for j in range(4): I(f"ds_read_u16 v{FI+8+2*j}, v{20+j} offset:10")
    def dma(j, f): return [f"s_add_u32 m0, s45, {1024*j}", f, f"buffer_load_dwordx4 v[{FI+2*j}:{FI+2*j+1}], s[28:31], 0 idxen offen lds"]
    I("s_waitcnt lgkmcnt(8)")
    for j, f in enumerate(["v_mov_b32 v5, v26", "v_mov_b32 v2, v27", "v_bfe_u32 v3, v26, 16, 8", "v_cmp_ne_u32 vcc, 0, v24"]): I(*dma(j, f))
    I("s_waitcnt lgkmcnt(0)", "s_cbranch_vccnz K_SLOW0", ".p2align 3")
    stamp("q1")
    q = sum([qchain(QQ+16*b, b) for b in range(4)], [])
    late2 = ["s_lshl_b32 s45, s18, 5", "s_add_u32 s45, s45, 128", f"s_mul_i32 s46, s18, {OST_W}", f"s_add_u32 s46, s46, {L_OST}", "s_movk_i32 s47, 576", f"s_mov_b32 s48, {L_SN}", "s_mov_b32 s27, 0xffff0000"]
    ex = {0: recs(40, 2) + recs(10, 8), 1: ["v_readfirstlane_b32 s20, v3"] + xrow(9, 7, 29, 6), 2: tr2[0:6],
          3: dma(4, "s_nop 0"), 4: dma(5, "s_nop 0"), 5: dma(6, "s_nop 0"), 6: dma(7, "s_nop 0"),
          7: ["s_waitcnt lgkmcnt(0)", eaddr(44, 40), eaddr(45, 41), eaddr(46, 42), eaddr(4, 43), xaddr(42)], 8: tr2[6:14], 9: tr2[14:23], 10: tr2[23:],
          11: (["s_mov_b32 s62, s20"] if OPT["stamp"] else []) + LSET + late2 + ["s_waitcnt vmcnt(4)", "s_barrier"], 12: sr[0:4], 13: [earead(0, 44), earead(1, 45), earead(2, 46)]}
    I(*weave(q, [], [0]*16, ex)); I(".p2align 3")
    c = chain(NN, 0, 0, QQ)
    seg = ["s_waitcnt lgkmcnt(0)", "s_nop 0", c[0], xload(2, 0), c[1], xload(2, 1), c[2], xload(2, 2), c[3], xload(2, 3), c[4], xaddr(43), "s_nop 8", "s_nop 0"]
    for b in range(3): seg += weave(chain(NN+16*(b+1), b+1, 0, QQ+16*(b+1)), E0(b), (3,3,3,3,4), {0: ["s_waitcnt vmcnt(4)"], 1: sr[4:6], 2: sr[6:8], 3: [xload(0, 0)]} if b == 2 else None) + A0(b)
    seg += ["s_waitcnt lgkmcnt(0)", "s_barrier"] + weave(chain(T0, 0, 1, QQ), E0(3), (3,3,3,3,4), {3: [xload(0, 1)]}) + A0(3)
    I(*align8(seg))
    stamp("loop1")
    I("s_branch K_A0")
    def partA(t):
        cur = (1+t) % 3; prv = t % 3
        seg = []
        for b in range(3):
            tc = T0 + 16*(b % 2); tn = T0 + 16*((b+1) % 2)
            if b == 0: extra = {0: [f"ds_read_b32 v6, v2 offset:{4*(t+5)}"], 3: [xload(prv, 2)], 4: ["v_cmpx_lt_u32 vcc, s19, v3"]}
            elif b == 1: extra = {1: ["s_cmp_lt_i32 s19, s37"], 2: ["s_waitcnt lgkmcnt(0)"], 3: [xload(prv, 3)], 4: [xaddr(6)]}
            else: extra = {0: ["s_cselect_b32 s6, s26, 0"], 1: ["s_cmp_ge_u32 s19, s20"], 2: ["s_waitcnt vmcnt(4)"], 3: [earead(prv, 4)],
                           4: ["s_cbranch_scc1 K_EXIT" if t < 2 else "s_cbranch_scc0 K_LOOP"]}
            ms = chain(tn, b+1, cur, QQ+16*(b+1))
            if b < 2: seg += weave(ms, exps(tc), (3,3,3,3,4), extra) + pk3(b, tc)
            else: seg += weave(ms, exps(tc)[:12], (3,3,3,3,0), extra)
        return seg
    def partB(t):
        cur = (1+t) % 3; nxt = (2+t) % 3
        seg = [xload(cur, 0)] + exps(T0)[12:] + pk3(2, T0)
        seg += weave(chain(T0, 0, nxt, QQ), exps(T1), (3,3,3,3,4), {0: ["s_add_u32 s19, s19, 1"], 3: [xload(cur, 1)], 4: [eaddr(4, 6)] + (["v_add_u32 v2, 12, v2"] if t == 2 else [])}) + pk3(3, T1)
        return seg
    def loop(pg, ret, n, ex):
        I(".p2align 12", f"PG{pg}:", f"s_branch {ret}", "s_nop 0", f"K_LOOP{n}:")
        CM("one edge per slot and step: u = Q + W1a'x[src] + W1c'e + b1', e = 2^u, N = N(1+e) + uD, D = D(1+e)")
        I(*align8(partB(2)))
        I(f"K_A{n}:")
        I(*[x.replace("K_EXIT", ex).replace("K_LOOP", f"K_LOOP{n}") for x in align8(partA(0) + partB(0) + partA(1) + partB(1) + partA(2))[:-1]])
        I(f"s_branch {ex}", f"K_EXIT{n}:")
    loop(3, "K_WARM_RET", 0, "K_MID")
    I(".p2align 12", "PG4:", "s_branch K_WARM_RET2", "s_nop 0", "K_MID:")
    stamp("exit1")
    CM("finish group 1 (h = N/D, out = W2'h + len*b2) woven into the start of group 2")
    def mix(c, g): return c[:4] + g + c[4:]
    xx, xr = xrd((9, 4, 6, 2))
    seg = exps(T0)[12:] + pk3(2, T0) + ["s_mov_b64 s[60:61], exec", "s_mov_b64 exec, -1"] + exps(T1) + xx + ["s_mov_b32 s6, s26", xaddr(10), "s_waitcnt vmcnt(0)", LSET[3]]
    seg += xr + [xload(0, k) for k in range(4)] + ["s_mov_b64 exec, s[60:61]", "s_nop 0"] + pk3(3, T1) + ["s_mov_b64 exec, -1", "s_waitcnt lgkmcnt(0)"]
    q = [qchain(QQ+16*b, b) for b in range(4)]
    seg += spread(q[0] + q[1][:1] + binit(LB), [xaddr(11), "v_bfe_u32 v3, v7, 16, 8"] + lbinit(LB) + ["v_readfirstlane_b32 s20, v3"] + R(0) + M(0),
                  pre={1: [xload(1, 0), xload(1, 1)], 2: [xload(1, 2)], 3: [xload(1, 3)]}) + U(0)
    seg += spread(q[1][1:] + q[2][:1] + G(0), V(0) + [eaddr(4, 10), eaddr(6, 11), eaddr(0, 12), "v_mov_b32 v2, v8"] + R(1) + M(1),
                  pre={2: ([f"s_mov_b32 s63, s20"] if OPT["stamp"] else []) + [LSET[0]], 3: [LSET[1]], 5: [LSET[2]], 4: [earead(0, 4), earead(1, 6), earead(2, 0)]}) + U(1)
    seg += spread(q[2][1:] + G(1), V(1) + R(2) + M(2), pre={5: ["s_waitcnt vmcnt(4) lgkmcnt(0)"]}) + U(2)
    seg += spread(mix(chain(NN, 0, 0, QQ), G(2)), V(2) + OCON + R(3) + M(3)) + U(3)
    c = chain(NN+16, 1, 0, QQ+16)
    seg += spread(c[:2] + G(3) + c[2:], V(3) + dec2(LB) + [xaddr(12), eaddr(4, 13), "v_mov_b32 v5, v7"] + CHK0 + E0(0) + A1(0)[:OPT["a1"]], pre={6: [CHK1]}) + check("K_RARE_A", A0(0)[OPT["a1"]//2:])
    c = chain(NN+32, 2, 0, QQ+32)
    e = E0(1)
    seg += spread(q[3] + c, OCV + e, pre={0: [OIW], 2: [OSW[0]], 4: [OSW[1], xload(2, 0)], 5: [OSW[2], xload(2, 1)], 6: [OSW[3], xload(2, 2)], 7: [xload(2, 3)] + OSR}) + A0(1)
    e = E0(2); c = chain(NN+48, 3, 0, QQ+48)
    seg += [c[0], "s_waitcnt vmcnt(4) lgkmcnt(0)"] + OOR + [xaddr(13)] + e[:1] + [c[1], OST[0], OST[1], c[2], OST[2], OST[3], c[3], xload(0, 0)] + e[1:4] + [c[4]] + e[4:] + A0(2)
    seg += weave(chain(T0, 0, 1, QQ), E0(3), (3,3,3,3,4), {3: [xload(0, 1)]}) + A0(3)
    I(*align8(seg))
    stamp("loop2")
    I("s_branch K_A1X")
    loop(5, "K_WARM_RET2", "1X", "K_LAST")
    I(".p2align 12", "PG6:", "s_branch K_WARM_RET2", "s_nop 0", "K_LAST:")
    stamp("exit2")
    CCON = ["v_mbcnt_lo_u32_b32 v2, -1, 0", "v_mbcnt_hi_u32_b32 v2, -1, v2", "v_lshrrev_b32 v2, 3, v2", "v_lshl_add_u32 v2, s18, 3, v2",
            "v_mul_u32_u24 v4, s55, v2", "v_lshl_add_u32 v4, v4, 1, v11", "v_lshl_add_u32 v2, v2, 2, s48", "v_mov_b32 v12, 0"]
    CM("finish group 2")
    def mv(l):
        return [re.sub(r"\bv(\d+)\b|v\[(\d+):(\d+)\]", lambda m: (f"v{int(m.group(1))+QQ-T0}" if T0 <= int(m.group(1)) < EE else m.group(0)) if m.group(1) else
                       (f"v[{int(m.group(2))+QQ-T0}:{int(m.group(3))+QQ-T0}]" if T0 <= int(m.group(2)) < EE else m.group(0)), x) for x in l]
    L2 = QQ + 32
    g = mv(G(0) + G(1) + G(2) + G(3))
    seg = exps(T0)[12:] + pk3(2, T0) + ["s_mov_b64 s[60:61], exec", "s_mov_b64 exec, -1"] + XX(0) + lbinit(L2)
    seg += R(0)[:2] + weave(mv(binit(L2)), R(0)[2:], (4, 10)) + UU(0) + V(0)[:6]
    seg += spread(g[:5], V(0)[6:] + V(1)[:6] + exps(T1), pre={4: ["s_mov_b64 exec, s[60:61]"]}) + pk3(3, T1) + ["s_mov_b64 exec, -1", "s_nop 0"] + XX(2)
    seg += spread(g[5:8], V(1)[6:] + R(2)) + UU(2) + V(2)[:6]
    ck = mv(check("K_RARE_B", [])); oc = mv(OCV)
    g2 = [g[8], g[10], g[9], g[12], g[14], g[11], g[13], g[15]]
    seg += spread(g2, V(2)[6:] + V(3) + M(0) + M(2) + dec2(L2) + CHK0 + CCON[:7] + [CHK1] + CCON[7:] + ck[:1] + oc[:8], tail=48) + oc[8:] + ck[1:] + [OIW] + mv(OSW) + OSR
    I(*align8(seg))
    stamp("tail")
    CM("add the two pieces of every split node: 8 lanes per output row")
    I("s_waitcnt lgkmcnt(6)", "s_barrier")
    I(f"ds_read_b32 v12, v12 offset:{L_FLAG}", f"ds_read2_b32 v[2:3], v2 offset1:32")
    for h in range(2):
        for r in range(2): I(f"ds_read_b128 v[{NN+8*h+4*r}:{NN+8*h+4*r+3}], v4 offset:{L_SPL + 64*SPL_S*h + SPL_S*r}")
    I("s_waitcnt lgkmcnt(6)", *OOR); I(*OST)
    I("s_waitcnt lgkmcnt(2)", "v_cmp_ne_u32 vcc, 0, v12", "v_or_b32 v2, v2, v11", "v_or_b32 v3, v3, v11")
    for h in range(2):
        if h: I("s_waitcnt lgkmcnt(0)", "s_nop 0")
        n = NN + 8*h; u = DD + 16*h
        for i in range(8): I(f"v_lshlrev_b32 v{u+2*i}, 16, v{n+i}", f"v_and_b32 v{u+2*i+1}, s27, v{n+i}")
        for i in range(4): I(f"v_pk_add_f32 v[{u+2*i}:{u+2*i+1}], v[{u+2*i}:{u+2*i+1}], v[{u+8+2*i}:{u+8+2*i+1}]")
        for i in range(4): I(f"v_cvt_pk_bf16_f32 v{n+i}, v{u+2*i}, v{u+2*i+1}")
        I(f"buffer_store_dwordx4 v[{n}:{n+3}], v{2+h}, s[8:11], 0 offen{OSTF}")
    I("s_cbranch_vccnz K_SLOW")
    if OPT["diag"]:
        if OPT.get("amp0"): I("s_sub_u32 s94, s94, s96", "s_mul_i32 s94, s94, 10", "s_add_u32 s100, s100, s94")
        I("s_mov_b32 s52, 0", "K_SPIN:", "s_memrealtime s[54:55]", "s_waitcnt lgkmcnt(0)", "s_add_u32 s52, s52, 1", "s_cmp_gt_u32 s52, 20000", "s_cbranch_scc1 K_END",
          "s_sub_u32 s54, s54, s100", "s_cmp_lt_i32 s54, 4000", "s_cbranch_scc1 K_SPIN")
    if OPT["stamp"]:
        I("s_waitcnt vmcnt(0)"); stamp("end")
        I("s_lshl_b32 s3, s2, 2", "s_add_u32 s3, s3, s18", "s_lshl_b32 s3, s3, 7", f"s_add_u32 s3, s3, {STAMP_OFF}", "v_mov_b32 v0, 0")
        for i in range(len(stamps)): I(f"v_mov_b32 v1, s{SLOTS[i]}", f"buffer_store_dword v1, v0, s[12:15], s3 offen offset:{4*i}")
        I("s_lshl_b32 s62, s62, 8", "s_or_b32 s62, s62, s63", "v_mov_b32 v1, s62", "buffer_store_dword v1, v0, s[12:15], s3 offen offset:124")
    I("K_END:", "K_END0:", "s_endpgm")
    I("K_MEA:", f"s_movk_i32 s3, {MS0}", *eadma(190, "s3", 0)); I(*eadma(191, "s3", 1024)); I("s_branch K_MEA_RET")
    CM("rare: empty slots (write zeros) / denominator out of range or non-finite output (redo the bucket on the general path)")
    for tag in ("K_RARE_A", "K_RARE_B"):
        I(f"{tag}:")
        I("s_andn2_b64 vcc, s[42:43], s[38:39]", f"s_cbranch_scc0 {tag}2")
        I(f"v_mov_b32 v{OA+1}, 0", f"v_mov_b32 v{RM}, 1", f"ds_write_b32 v{OA+1}, v{RM} offset:{L_FLAG}")
        I(f"{tag}2:", "s_mov_b64 exec, s[38:39]")
        for i in range(16 if tag == "K_RARE_B" else 32): I(f"v_mov_b32 v{(QQ if tag == 'K_RARE_B' else T0)+i}, 0")
        I("s_mov_b64 exec, -1", f"s_branch {tag}_RET")
    CM("rare: a segment longer than 40 keys or more than 30 overflow units")
    K2, A2, R2, O2 = 176, 180, 184, 188
    I("K_MORE:", f"s_sub_u32 s40, {MS0}, s23", "s_nop 0")
    I("s_mov_b64 exec, 1", f"ds_add_rtn_u32 v{O2}, v24, v29 offset:{L_FLAG+4}", "s_waitcnt lgkmcnt(0)", f"v_cmp_ne_u32 vcc, 0, v{O2}", "s_mov_b64 exec, -1", "s_cbranch_vccnz K_MORE_F")
    compact(36)
    I(*units(K2, O2, O2+2))
    I("s_mov_b32 s20, 1", "s_waitcnt vmcnt(0)")
    phaseB(K2, A2, R2, 40, O2)
    I("s_waitcnt lgkmcnt(0)")
    I(*phaseC(K2, A2, R2))
    I("v_cmp_lt_i32 vcc, 0, v33", "s_cbranch_vccz K_MORE_RET")
    I("K_MORE_F:", f"ds_write_b32 v24, v29 offset:{L_FLAG}", "s_branch K_MORE_RET")
    CM("general path for any input: one edge per column, plain u/(1+2^u), LDS float accumulation")
    I("K_SLOW0:", *tr2)
    I("K_SLOW:")
    I("s_mov_b64 exec, -1", "s_waitcnt vmcnt(0) lgkmcnt(0)", "s_barrier")
    I("v_mbcnt_lo_u32_b32 v6, -1, 0", "v_mbcnt_hi_u32_b32 v6, -1, v6", "s_lshl_b32 s3, s18, 6", "v_add_u32 v7, s3, v6")
    I(*TABA); I(f"v_lshlrev_b32 v3, {lt}, v7", TABLD)
    I("v_lshrrev_b32 v1, 5, v6", "v_lshlrev_b32 v1, 6, v1", "v_and_b32 v6, 31, v6", "v_lshlrev_b32 v2, 4, v7")
    for i in range(4): I(f"v_mov_b32 v{16+i}, 0")
    for i in range(13): I(f"ds_write_b128 v2, v[16:19] offset:{4096*i}")
    I("s_movk_i32 s53, 0x3f80")
    for b in range(2): I(*onehot(EE+2*b, b))
    I("v_mov_b32 v15, 0x3f803f80")
    I("s_mov_b32 s6, s26", "s_mov_b32 s19, 0", "s_waitcnt vmcnt(0) lgkmcnt(0)", "s_barrier")
    I("K_S_SEG:")
    I("v_readlane_b32 s36, v8, s19", "s_lshl_b32 s3, s18, 6", "s_add_u32 s3, s3, s19", f"s_mul_i32 s3, s3, {CHS}", "s_nop 0",
      "s_lshr_b32 s20, s36, 16", "s_and_b32 s36, s36, 0xffff", "s_add_u32 s36, s36, s3")
    I("K_S_TILE:")
    I("s_cmp_le_i32 s20, 0", "s_cbranch_scc1 K_S_NEXT")
    I("v_add_lshl_u32 v2, s36, v6, 2", "v_lshlrev_b32 v3, 1, v2", "v_cmp_gt_i32 s[38:39], s20, v6")
    I("buffer_load_dword v9, v2, s[12:15], s50 offen sc1", f"buffer_load_dwordx2 a[{AEA}:{AEA+1}], v3, s[12:15], s51 offen sc1", "s_waitcnt vmcnt(0)")
    I("s_mov_b32 exec_lo, 0", f"v_accvgpr_write_b32 a{AEA}, v15", f"v_accvgpr_write_b32 a{AEA+1}, 0", "s_mov_b32 exec_lo, -1")
    I(xaddr(9)); I(*[xload(0, k) for k in range(4)])
    I("v_and_b32 v9, 0xffff, v9", "v_lshl_add_u32 v0, v9, 7, v1", "v_subrev_u32 v9, s16, v9"); I(*[xload(2, k) for k in range(4)])
    I("v_mul_u32_u24 v9, 260, v9", "v_lshl_add_u32 v9, v1, 1, v9", "s_waitcnt vmcnt(0)")
    for b in range(4): I(*qchain(NN+16*b, b)); I(*chain(NN+16*b, b, 0, NN+16*b))
    I(*binit(EE)); I("s_nop 15")
    for b in range(4): I(*E0(b))
    for b in range(4): I(*A0(b))
    for b in range(4): I(*R(b))
    for b in range(4): I(*(U(b) + V(b)))
    I("s_nop 1")
    for b in range(4): I(*G(b))
    I("s_nop 15")
    I("s_mov_b64 exec, s[38:39]")
    for i in range(32): I(f"ds_add_f32 v9, v{T0+i} offset:{4*i}")
    I("s_mov_b64 exec, -1", "s_waitcnt lgkmcnt(0)", "s_sub_u32 s20, s20, 32", "s_add_u32 s36, s36, 32", "s_branch K_S_TILE")
    I("K_S_NEXT:", "s_add_u32 s19, s19, 1", "s_cmp_lt_u32 s19, 64", "s_cbranch_scc1 K_S_SEG")
    I("s_barrier", "v_and_b32 v3, 7, v7", "v_lshlrev_b32 v1, 4, v3", "v_lshrrev_b32 v7, 3, v7", "s_mov_b32 s19, 0")
    I("K_S_OUT:")
    I("v_mul_u32_u24 v2, 260, v7", "v_cmp_gt_u32 vcc, s17, v7", "v_lshl_add_u32 v2, v3, 5, v2", "v_add_lshl_u32 v0, s16, v7, 7", "v_cndmask_b32 v0, 2.0, v0, vcc", "v_or_b32 v0, v0, v1")
    for i in range(8): I(f"ds_read_b32 v{16+i}, v2 offset:{4*i}")
    I("s_waitcnt lgkmcnt(0)")
    for i in range(4): I(f"v_cvt_pk_bf16_f32 v{24+i}, v{16+2*i}, v{17+2*i}")
    I("buffer_store_dwordx4 v[24:27], v0, s[8:11], 0 offen", "v_add_u32 v7, 32, v7", "s_waitcnt vmcnt(0)")
    I("s_add_u32 s19, s19, 1", "s_cmp_lt_u32 s19, 7", "s_cbranch_scc1 K_S_OUT", "s_endpgm")

def desc(name, vgpr, accum, sgpr):
    I(".p2align 6", f".amdhsa_kernel {name}")
    for l in (f"next_free_vgpr {vgpr}", f"next_free_sgpr {sgpr}", f"accum_offset {accum}", "group_segment_fixed_size 0", "kernarg_size 88",
              "user_sgpr_count 2", "user_sgpr_kernarg_segment_ptr 1", "system_sgpr_workgroup_id_x 1", "float_denorm_mode_32 3"):
        out.append("  .amdhsa_" + l)
    I(".end_amdhsa_kernel")

hdr = [l.rstrip("\n") for l in open(f"cdna_kernels/{NAME}.s.ref") if l.startswith(";") and "@launch" not in l][:12]
hdr += [f"; @launch grid=(256,1,1) block=(256,1,1) lds={L_SIZE}"]
hdr2 = """;
; One launch, 256 workgroups (one per CU), 4 waves of 512 registers.
;  phase 1  each workgroup counting-sorts 3125 edges by destination bucket (195/196 nodes) and hands the sorted keys
;           and e_attr to the bucket owners through d_ws (write-through stores; d_debug counts the table clears).
;  phase 2  each workgroup builds per-node edge lists in LDS and packs them into 8 groups of 32 columns.
;  main     per column sum_e silu(t_e) is kept as one fraction N/D (one exp2 and three FMAs per element);
;           the second layer is applied once per node piece. Out-of-range fractions fall back to a general path.
; Generated by the author's script (hand-written schedule).""".split("\n")
hdr += hdr2
I('.amdgcn_target "amdgcn-amd-amdhsa--gfx950"', ".text")
kernel()
I('.section .rodata,"a"')
desc(NAME + "_kernel", 512, 256, 102)
if OPT["stamp"]: hdr.append("; stamps: " + " ".join(stamps))
open(sys.argv[1], "w").write("\n".join(hdr + out) + "\n")
```

```python
import sys, struct, math
NAME = "standalone__edge_featured_mpnn_mpnn__graph"
OPT = dict(stamp=0, diag=0, sl=3, ntr=32, tw=2, hl=12, slp=4, a1=6, f3l='a1', xs='b07', es='a33.a43.a54', w2h='a3', lc=0, hp=-1, lad=0)
for a in sys.argv[2:]:
    k, v = a.split("="); OPT[k] = int(v) if v.lstrip("-").isdigit() else v

N_NODES = 50000; E = 800000
CH = 3125; CHS = 3200
TP = 64; FS = 4; NR = 2; FL_OFF = 0x40000
KEY_OFF = 0x48000; EA_OFF = 0x368000; STAMP_OFF = 0x1000000
WS_SIZE = 0x10000000
SPIN = 400000
def f32(x): return "0x%08x" % struct.unpack("<I", struct.pack("<f", x))[0]
NLOG2E = f32(-math.log2(math.e)); NLN2 = f32(-math.log(2.0))

out = []
def I(*ls):
    for l in ls:
        for x in l.split("\n"):
            x = x.strip()
            if x: out.append(x if x.endswith(":") or x.startswith(".") else "    " + x)
def CM(*ls):
    for l in ls: out.append("    ; " + l)
vm = []
def VM(tag, *ls):
    for l in ls:
        if l.startswith(("buffer_", "global_")): vm.append(tag)
        I(l)
def vw(tag, k=0):
    idx = [i for i, t in enumerate(vm) if t == tag]
    return len(vm) - 1 - idx[-1-k]
def scan64(v, fill=None):
    fill = list(fill or [])
    def gap():
        n = 0
        while fill and n < 2: I(fill.pop(0)); n += 1
        if n < 2: I(f"s_nop {1-n}")
    for op in ("row_shr:1", "row_shr:2", "row_shr:4", "row_shr:8"):
        gap(); I(f"v_add_u32_dpp v{v}, v{v}, v{v} {op} row_mask:0xf bank_mask:0xf bound_ctrl:0")
    gap(); I(f"v_add_u32_dpp v{v}, v{v}, v{v} row_bcast:15 row_mask:0xa bank_mask:0xf")
    gap(); I(f"v_add_u32_dpp v{v}, v{v}, v{v} row_bcast:31 row_mask:0xc bank_mask:0xf")
    I(*fill)
SLOTS = list(range(86, 98)) + list(range(64, 84))
stamps = []
def stamp(name, lvl=1):
    if OPT.get("amp0") == name: I("s_memrealtime s[96:97]", "s_waitcnt lgkmcnt(0)", "s_nop 0")
    if OPT.get("amp1") == name: I("s_memrealtime s[94:95]", "s_waitcnt lgkmcnt(0)", "s_nop 0")
    if OPT["diag"] == name: I("s_memrealtime s[100:101]", "s_waitcnt lgkmcnt(0)", "s_nop 0")
    if not OPT["stamp"] or lvl > OPT["sl"]: return
    stamps.append(name)
    I(f"{'s_memtime' if OPT['stamp']==1 else 's_memrealtime'} s[98:99]", "s_waitcnt lgkmcnt(0)", f"s_mov_b32 s{SLOTS[len(stamps)-1]}, s98")

CAP = 48; NS = 4 + 4*CAP
MS0 = 256; STG0 = MS0 + 2048
L1_KEY = 0; L1_EA = CHS*4; L1_CNT = 38912; L1_BASE = L1_CNT + 1024
L_H1 = STG0 + 5*8192; L_H2 = L_H1 + 256; L_SN = L_H2 + 256; L_FLAG = L_SN + 256; L_TBL = L_H1 + 1024
L_TB2 = L_TBL + 1024; L_SPL = L_TB2 + 1024; SPL_S = 144
L_W = L_SPL; L_S = L_W + 32768; L_W2 = L_S + 4096
L_OST = L_SPL + 128*SPL_S; OST_W = 32*SPL_S
L_X = L_W2 + 16384
L_NODE = L_X + 200*128
L_SIZE = L_NODE + 196*NS
assert L_SIZE <= 163840 and L_SPL + 123*SPL_S <= L_OST and L_OST + 4*OST_W <= L_W2
OSTF = " sc1"
T0, T1, EE, NN, DD, QQ = 16, 32, 48, 64, 128, 192
AX, AW1A, AW1B, AW1C, AW2, AEA, AB2 = 0, 48, 112, 176, 184, 248, 254
BIG = 0x1000000

import re
V4 = ("v_exp_f32", "v_rcp_f32", "v_add_f32", "v_mul_f32", "v_add_u32", "v_mov_b32", "v_and_b32", "v_lshrrev_b32", "v_lshlrev_b32", "v_cvt_f32_ubyte2",
      "v_mul_u32_u24", "v_cndmask_b32", "v_readfirstlane_b32", "v_or_b32", "v_sub_u32", "v_xor_b32")
def has_lit(s):
    for t in re.split(r"[,\s]+", s.strip())[1:]:
        if re.fullmatch(r"0x[0-9a-fA-F]+|-?\d+", t):
            v = int(t, 0)
            if not -16 <= v <= 64: return True
    return False
def isz(s):
    s = s.strip(); op = s.split()[0]
    if s.endswith(":") or s.startswith("."): return 0
    if op.startswith(("s_waitcnt", "s_nop", "s_cbranch", "s_branch", "s_movk", "s_barrier")): return 4
    if op.startswith("s_memtime") or op.startswith("s_memrealtime"): return 8
    if op.startswith("s_"): return 8 if has_lit(s) else 4
    if op.startswith("v_cmp") and not op.endswith("_e64"): return (8 if has_lit(s) else 4) if s.split()[1] == "vcc," else 8
    if op == "v_cndmask_b32" and not s.endswith("vcc"): return 8
    if op in V4: return 8 if has_lit(s) else 4
    return 8
def align8(seg):
    off = 0; last4 = None
    seg = list(seg); i = 0
    while i <= len(seg):
        s = seg[i] if i < len(seg) else "v_pk_x"
        z = isz(s)
        if z == 8 and off % 8:
            if last4 is not None:
                op = seg[last4].split()[0]
                seg[last4] = seg[last4].replace(op, op + "_e64", 1); off += 4
            elif i == len(seg) or sum(1 for x in seg[i:i+5] if isz(x) == 8) == 5:
                if i < len(seg): print("pad before", s, file=sys.stderr)
                seg.insert(i, "s_nop 0"); off += 4; i += 1
        if z == 8: last4 = None
        if z == 4 and s.split()[0] in V4 and s.split()[0] != "v_readfirstlane_b32" and off % 8 == 0: last4 = i
        off += z; i += 1
    return seg
def xload(buf, kk): return f"buffer_load_dwordx4 a[{AX+16*buf+4*kk}:{AX+16*buf+4*kk+3}], v0, s[4:7], 0 offen offset:{16*kk}"
def xaddr(rec): return f"v_mad_u32_u16 v0, v{rec}, s59, v1 op_sel:[1,0,0,0]"
def eaddr(d, rec): return f"v_and_b32 v{d}, v14, v{rec}"
def earead(buf, r): return f"ds_read_b64 a[{AEA+2*buf}:{AEA+2*buf+1}], v{r}"
def chain(dst, blk, buf, c):
    L = []
    for kk in range(4):
        w = AW1A + 16*blk + 4*kk; x = AX + 16*buf + 4*kk; ci = c if kk == 0 else dst
        L.append(f"v_mfma_f32_32x32x16_bf16 v[{dst}:{dst+15}], a[{w}:{w+3}], a[{x}:{x+3}], v[{ci}:{ci+15}]")
    return L + [f"v_mfma_f32_32x32x8_bf16 v[{dst}:{dst+15}], a[{AW1C+2*blk}:{AW1C+2*blk+1}], a[{AEA+2*buf}:{AEA+2*buf+1}], v[{dst}:{dst+15}]"]
def qchain(dst, blk, order=(0, 1, 2, 3)):
    L = []
    for kk in order:
        w = AW1B + 16*blk + 4*kk; x = AX + 32 + 4*kk
        L.append(f"v_mfma_f32_32x32x16_bf16 v[{dst}:{dst+15}], a[{w}:{w+3}], a[{x}:{x+3}], " + ("0" if kk == order[0] else f"v[{dst}:{dst+15}]"))
    return L
def onehot(r, blk):
    c = "1.0" if blk & 1 else "s53"
    return [f"v_mov_b32 v{r+(blk>>1)}, {c}", f"v_mov_b32 v{r+1-(blk>>1)}, 0"]
def gemm2(blk, hb):
    L = []
    for p in range(2):
        for ob in range(2):
            w = AW2 + 4*((blk*2+p)*2+ob); o = T0 + 16*ob
            L.append(f"v_mfma_f32_32x32x16_bf16 v[{o}:{o+15}], a[{w}:{w+3}], v[{hb+4*p}:{hb+4*p+3}], v[{o}:{o+15}]")
    return L
def weave(ms, fill, cnts, extra=None):
    L = []; fill = list(fill)
    for k, m in enumerate(ms):
        L.append(m)
        if extra: L += extra.get(k, [])
        L += fill[:cnts[k]]; fill = fill[cnts[k]:]
    assert not fill
    return L
def repoll(tag, load, cmp):
    I(f"{tag}:", f"s_mov_b32 s3, {SPIN}", f"{tag}_L:", "s_mov_b64 exec, vcc", f"s_sleep {OPT['slp']}", load, "s_sub_u32 s3, s3, 1", "s_cbranch_scc1 K_END",
      "s_waitcnt vmcnt(0)", cmp, f"s_cbranch_vccnz {tag}_L", "s_mov_b64 exec, -1", f"s_branch {tag}_RET")

def cost(x):
    op = x.split()[0]
    if op.startswith(("v_exp", "v_rcp")): return 8
    if op.startswith("ds_write"): return {"b32": 8, "b64": 12, "b128": 20}[op.split("_")[-1]]
    if op.startswith("buffer_store"): return 12
    return 4
def spread(ms, fill, pre=None, tail=None):
    pre = pre or {}
    L = []; fill = list(fill); n = len(ms)
    if tail is None: tail = 36
    for k, m in enumerate(ms):
        L.append(m); P = pre.get(k, []); L += P
        if k == n-1: break
        room = 32 - (8 if "x16" in m else 4) - sum(cost(x) for x in P)
        if P and P[0].startswith("s_") and "x16" in m: room += 4
        if P and not P[0].startswith(("s_", "v_")) and "x16" not in m: room -= 4
        while fill and room > 0 and sum(map(cost, fill)) - cost(fill[0]) >= tail - sum(cost(x) for x in pre.get(n-1, [])):
            room -= cost(fill[0]); L.append(fill.pop(0))
    return L + fill
def pk3(b, tc):
    n = NN+16*b; d = DD+16*b
    return [f"v_pk_fma_f32 v[{n+2*i}:{n+2*i+1}], v[{n+2*i}:{n+2*i+1}], v[{EE+2*i}:{EE+2*i+1}], v[{n+2*i}:{n+2*i+1}]" for i in range(8)] + \
           [f"v_pk_fma_f32 v[{n+2*i}:{n+2*i+1}], v[{tc+2*i}:{tc+2*i+1}], v[{d+2*i}:{d+2*i+1}], v[{n+2*i}:{n+2*i+1}]" for i in range(8)] + \
           [f"v_pk_fma_f32 v[{d+2*i}:{d+2*i+1}], v[{d+2*i}:{d+2*i+1}], v[{EE+2*i}:{EE+2*i+1}], v[{d+2*i}:{d+2*i+1}]" for i in range(8)]
def exps(tc): return [f"v_exp_f32 v{EE+i}, v{tc+i}" for i in range(16)]
def E0(b): return [f"v_exp_f32 v{DD+16*b+i}, v{NN+16*b+i}" for i in range(16)]
def A0(b): return [f"v_pk_add_f32 v[{DD+16*b+2*i}:{DD+16*b+2*i+1}], v[{DD+16*b+2*i}:{DD+16*b+2*i+1}], 1.0 op_sel_hi:[1,0]" for i in range(8)]
def A1(b): return [f"v_add_f32 v{DD+16*b+i}, 1.0, v{DD+16*b+i}" for i in range(16)]
LB, RM, OA = EE, EE+4, EE+5
def R(b): return [f"v_rcp_f32 v{DD+16*b+i}, v{DD+16*b+i}" for i in range(16)]
def M(b): return [f"v_min3_f32 v{RM}, v{DD+16*b+2*i}, v{DD+16*b+2*i+1}, " + ("1.0" if b == 0 and i == 0 else f"v{RM}") for i in range(8)]
def U(b): return [f"v_pk_mul_f32 v[{NN+16*b+2*i}:{NN+16*b+2*i+1}], v[{NN+16*b+2*i}:{NN+16*b+2*i+1}], v[{DD+16*b+2*i}:{DD+16*b+2*i+1}]" for i in range(8)]
def pkm(d, a, b): return [f"v_pk_mul_f32 v[{d+2*i}:{d+2*i+1}], v[{a+2*i}:{a+2*i+1}], v[{b+2*i}:{b+2*i+1}]" for i in range(8)]
def XX(b): n = NN+16*b; d = DD+16*b; return pkm(n, n, d+16) + pkm(n+16, n+16, d) + pkm(d, d, d+16)
def UU(b): n = NN+16*b; d = DD+16*b; return pkm(n, n, d) + pkm(n+16, n+16, d)
def V(b): return [f"v_cvt_pk_bf16_f32 v{NN+16*b+i}, v{NN+16*b+2*i}, v{NN+16*b+2*i+1}" for i in range(8)]
def G(b): return gemm2(b, NN+16*b)
def lbinit(r): return [f"v_cvt_f32_ubyte2 v{r+2}, v5", f"v_mov_b32 v{r+1}, 0", f"v_mov_b32 v{r+3}, 0", f"v_lshrrev_b32 v{r}, 16, v{r+2}"]
def binit(r): return [f"v_mfma_f32_32x32x8_bf16 v[{T0+16*ob}:{T0+16*ob+15}], a[{AB2}:{AB2+1}], v[{r+2*ob}:{r+2*ob+1}], 0" for ob in range(2)]
def dec2(lb):
    return [f"v_lshrrev_b32 v{OA}, 24, v5", f"v_and_b32 v{OA+2}, s54, v5", f"v_cmp_eq_u32 vcc, s54, v{OA}", f"v_mad_u32_u24 v{OA}, v{OA}, s55, v1",
            f"v_add_lshl_u32 v{OA+2}, s16, v{OA+2}, 7", f"v_cndmask_b32 v{OA}, v{OA}, v8, vcc", f"v_cndmask_b32 v{OA+2}, 2.0, v{OA+2}, vcc",
            f"v_cmp_eq_u32 s[38:39], 0, v{lb+2}"]
CHK0 = [f"v_cmp_nlt_f32 vcc, s57, v{RM}"]
CHK1 = "s_or_b64 s[42:43], vcc, s[38:39]"
def check(tag, scl):
    return [f"v_cmp_class_f32 s[40:41], v{T0}, s58"] + scl + ["s_or_b64 s[42:43], s[42:43], s[40:41]", f"s_cbranch_scc1 {tag}", f"{tag}_RET:"]
OCV = [f"v_cvt_pk_bf16_f32 v{T0+i}, v{T0+2*i}, v{T0+2*i+1}" for i in range(16)]
OCON = ["v_mbcnt_lo_u32_b32 v11, -1, 0", "v_mbcnt_hi_u32_b32 v11, -1, v11", "v_and_or_b32 v8, v11, 31, s45", "v_lshrrev_b32 v9, 3, v11", "v_mad_u32_u24 v8, v8, s55, v1",
        "v_mul_u32_u24 v9, s47, v9", "v_and_b32 v11, 7, v11", "v_add_u32 v9, s46, v9", "v_lshlrev_b32 v11, 4, v11", "v_add_u32 v10, v9, v11"]
OIW = f"ds_write_b32 v8, v{OA+2} offset:{L_SPL+64}"
OSW = [f"ds_write_b128 v{OA}, v[{T0+4*k}:{T0+4*k+3}] offset:{L_SPL+16*k}" for k in range(4)]
OSR = [f"ds_read2_b32 v[{EE+2*k}:{EE+2*k+1}], v9 offset0:{32+72*k} offset1:{68+72*k}" for k in range(2)] + \
      [f"ds_read_b128 v[{T1+4*j}:{T1+4*j+3}], v10 offset:{144*j}" for j in range(4)]
OOR = [f"v_or_b32 v{EE+j}, v{EE+j}, v11" for j in range(4)]
OST = [f"buffer_store_dwordx4 v[{T1+4*j}:{T1+4*j+3}], v{EE+j}, s[8:11], 0 offen{OSTF}" for j in range(4)]
def xrow(d, e, t, base): return [f"v_and_b32 v{d}, s54, v{e}", f"v_and_b32 v{t}, 7, v{e}", f"v_lshl_add_u32 v{d}, v{d}, 7, v{base}", f"v_lshlrev_b32 v{t}, 4, v{t}", f"v_xor_b32 v{d}, v{d}, v{t}"]
def xrd(r): return [f"v_xor_b32 v{r[k]}, {16*k}, v{r[0]}" for k in range(1, 4)], [f"ds_read_b128 a[{AX+32+4*k}:{AX+35+4*k}], v{r[k]}" for k in range(4)]
def recs(d, p): return [f"ds_read2_b32 v[{d}:{d+1}], v{p} offset0:1 offset1:2", f"ds_read2_b32 v[{d+2}:{d+3}], v{p} offset0:3 offset1:4"]
LSET = ["s_max_u32 s20, s20, 2", "s_sub_u32 s37, s20, 3", "s_sub_u32 s20, s20, 1", "s_mov_b32 s19, 1"]

FI, FR = 224, 208
def kernel():
    K = NAME + "_kernel"
    lt = TP.bit_length() - 1
    assert L_W % 256 == 0 and L_X % 128 == 0
    I(".p2align 12", f".globl {K}", ".p2align 8", f".type {K},@function", f"{K}:")
    I("s_cmp_ge_u32 s2, 256", "s_cbranch_scc1 K_END0")
    stamp("start")
    I("s_load_dwordx16 s[64:79], s[0:1], 0", "s_load_dwordx4 s[80:83], s[0:1], 64", "s_load_dwordx2 s[12:13], s[0:1], 80")
    DST, SRC, EAR, AD, RK, P8, CP, WR = 64, 80, 96, 128, 144, 160, 176, 208
    CM("pull this kernel's code into L2 (each workgroup touches an eighth of its lines)")
    I("s_getpc_b64 s[62:63]", "K_PC:", "s_bfe_u32 s3, s2, 0x30003", "v_and_b32 v2, 0xf8, v0", "v_add_lshl_u32 v41, v2, s3, 7",
      "v_min_u32 v2, K_SLOW0-K_PC, v41", "v_mov_b32 v3, 0", "v_lshl_add_u64 v[2:3], v[2:3], 0, s[62:63]", "global_load_dword v10, v[2:3], off")
    CM("constants, hidden behind the kernarg load. s84 = chunk id = bucket id, s18 = wave, nodes [s16, s16+s17)")
    I("v_lshrrev_b32 v2, 6, v0", "v_and_b32 v6, 63, v0", "v_lshlrev_b32 v17, 2, v0", "v_readfirstlane_b32 s18, v2")
    I("v_mov_b32 v24, 0", f"ds_write_b32 v17, v24 offset:{L1_CNT}", "v_lshlrev_b32 v16, 4, v0", "v_lshlrev_b32 v4, 4, v6")
    I("s_and_b32 s84, s2, 7", "s_lshl_b32 s84, s84, 5", "s_lshr_b32 s3, s2, 3", "s_add_u32 s84, s84, s3")
    CID = "s84"
    I("s_mov_b32 s15, 0x20000", f"s_mov_b32 s14, {WS_SIZE}", f"s_mov_b32 s30, {E*4}", "s_mov_b32 s34, s30")
    for r in (31, 35, 43, 47, 51, 55, 7, 11): I(f"s_mov_b32 s{r}, s15")
    I(f"s_mov_b32 s42, {132*256}", f"s_movk_i32 s46, {128*128}", f"s_mov_b32 s54, {E*8}", f"s_mov_b32 s26, {N_NODES*128}", "s_mov_b32 s6, s26", "s_mov_b32 s10, s26")
    I(f"s_lshr_b32 s19, {CID}, 5", f"s_mul_i32 s19, s19, {32*CH*4}", f"s_and_b32 s20, {CID}, 31", f"s_mul_i32 s21, s20, {(CH-3072)*4}", "s_add_u32 s21, s21, s19",
      f"s_add_u32 s21, s21, {3*131072 - 768}", "s_lshl_b32 s20, s20, 12", "s_add_u32 s60, s19, s20", "s_add_u32 s19, s60, 0x20000", "s_add_u32 s20, s60, 0x40000")
    I("v_mov_b32 v20, -1", "v_mov_b32 v21, -1", "v_mov_b32 v22, -1", "v_mov_b32 v23, -1", "s_movk_i32 s58, 256", "s_mov_b32 s59, s15")
    NC = 1 << (NR-2); RID = CID
    I(f"s_and_b32 s37, {RID}, {(1 << NR) - 1}", f"s_lshl_b32 s61, s18, {NR-2}", f"s_add_u32 s61, s61, {RID}", f"s_lshl_b32 s36, s61, {FS}", f"s_add_u32 s36, s36, {FL_OFF}", "s_lshl_b32 s61, s61, 10")
    I("v_mov_b32 v29, 1", "v_lshlrev_b32 v18, 5, v0", "v_lshlrev_b32 v19, 3, v0", "v_lshlrev_b32 v43, 2, v6")
    def lateconst():
        I("s_mul_i32 s16, s84, 12800051", "s_add_u32 s16, s16, 0xffff", "s_add_u32 s17, s16, 12800051", "s_lshr_b32 s16, s16, 16", "s_lshr_b32 s17, s17, 16",
          f"s_min_u32 s17, s17, {N_NODES}", "s_sub_u32 s17, s17, s16", "s_mov_b32 s85, 85899")
        I("v_subrev_u32 v45, 192, v0", f"v_cmp_gt_u32 vcc, {CH-3072}, v45", f"v_mov_b32 v45, {hex(BIG)}", "s_mov_b32 s39, 0x05040100", "v_cndmask_b32 v45, v45, v24, vcc")
        I(f"v_lshrrev_b32 v42, {lt-4}, v6", f"v_lshlrev_b32 v42, {lt+8}, v42", f"v_and_b32 v37, {TP-1}, v4", "v_add_u32 v42, v42, v37")
        I("v_lshrrev_b32 v1, 5, v6", "v_bfe_u32 v52, v6, 2, 2", "v_and_b32 v53, 3, v6", "v_bfe_u32 v54, v6, 4, 1",
          "v_lshlrev_b32 v55, 3, v53", "v_lshl_add_u32 v55, v54, 5, v55",
          "v_lshl_add_u32 v56, v52, 8, v55", "v_lshl_add_u32 v60, v1, 10, v56", f"v_add_u32 v60, {L_S}, v60",
          "v_lshl_add_u32 v56, v1, 13, v56", "v_lshl_add_u32 v56, v52, 6, v56", f"v_add_u32 v56, {L_W}, v56",
          "v_xor_b32 v57, 64, v56", "v_xor_b32 v58, 0x80, v56", "v_xor_b32 v59, 0xc0, v56",
          "v_and_b32 v55, 1, v53", "v_lshlrev_b32 v55, 6, v55", "v_lshl_add_u32 v55, v54, 4, v55", "v_lshrrev_b32 v53, 1, v53", "v_lshl_add_u32 v55, v53, 3, v55",
          "v_lshl_add_u32 v62, v52, 7, v55", "v_lshl_add_u32 v62, v1, 9, v62", f"v_add_u32 v62, {L_W2}, v62",
          "v_and_b32 v52, 1, v52", "v_lshl_add_u32 v63, v52, 5, v55", "v_lshl_add_u32 v63, v1, 8, v63", f"v_add_u32 v63, {L_S + 2048}, v63",
          "v_lshlrev_b32 v1, 6, v1")
    if not OPT["lc"]: lateconst()
    I("s_waitcnt lgkmcnt(0)")
    I("s_mov_b64 s[28:29], s[70:71]")
    so = ("s60", "s19", "s20")
    def dstld():
        for i in range(3): I(f"buffer_load_dwordx4 v[{DST+4*i}:{DST+4*i+3}], v16, s[28:31], {so[i]} offen")
        I(f"buffer_load_dword v{DST+12}, v17, s[28:31], s21 offen", "s_mov_b64 s[32:33], s[68:69]")
    def clears():
        I("s_cmp_lg_u32 s37, 0", "s_cbranch_scc1 R_NOT1")
        for i in range(NC): I(*([f"s_add_u32 s61, s61, 4096"] if i and i % 4 == 0 else []), f"buffer_store_dwordx4 v[20:23], v4, s[12:15], s61 offen offset:{1024*(i&3)} sc1")
        I(f"s_mov_b64 exec, {hex((1 << (NC << (FS-4))) - 1)}", "buffer_store_dwordx4 v[20:23], v4, s[12:15], s36 offen sc1", "s_mov_b64 exec, -1", "R_NOT1:")
    CM("phase 1: load this chunk's dst / src / e_attr; every fourth workgroup clears a slice of the hand-off tables")
    dstld(); clears()
    stamp("issued", lvl=2)
    vm.append("dst")
    def wwarm():
        I("s_mov_b64 s[40:41], s[72:73]", "s_mov_b64 s[44:45], s[76:77]")
        I("s_cmp_eq_u32 s18, 0", "s_cselect_b64 s[48:49], s[74:75], s[78:79]", "s_cselect_b32 s50, 0x100, 0", "s_cmp_eq_u32 s18, 2", "s_cselect_b32 s50, 0x80, s50", "s_mov_b32 s3, 0x8000")
        VM("ww", "buffer_load_dword v10, v41, s[40:43], 0 offen", "buffer_load_dword v10, v41, s[44:47], 0 offen")
        VM("ws", f"buffer_load_dword v{WR+32}, v17, s[40:43], s3 offen", f"buffer_load_dword v{WR+33}, v43, s[48:51], 0 offen")
    for i in range(3): VM("src", f"buffer_load_dwordx4 v[{SRC+4*i}:{SRC+4*i+3}], v16, s[32:35], {so[i]} offen")
    VM("src", f"buffer_load_dword v{SRC+12}, v17, s[32:35], s21 offen", "s_barrier")
    wwarm()
    I("s_mov_b64 s[52:53], s[66:67]")
    for r in ("s60", "s19", "s20", "s21"): I(f"s_lshl_b32 {r}, {r}, 1")
    el = []
    for i in range(3): el += [f"buffer_load_dwordx4 v[{EAR+8*i}:{EAR+8*i+3}], v18, s[52:55], {so[i]} offen", f"buffer_load_dwordx4 v[{EAR+8*i+4}:{EAR+8*i+7}], v18, s[52:55], {so[i]} offen offset:16"]
    el.append(f"buffer_load_dwordx2 v[{EAR+24}:{EAR+25}], v19, s[52:55], s21 offen")
    up, ea2 = 4, 3
    I("v_mov_b32 v25, 0", "v_mov_b32 v26, 0", "v_mov_b32 v27, 0", f"v_add_u32 v5, {L_NODE}, v16")
    for i in range(10): VM("ea", f"ds_write_b128 v5, v[24:27] offset:{4096*i}", *(el[i-10+up:i-9+up] if i >= 10-up else []))
    if OPT["lc"]: lateconst()
    I("v_mov_b32 v28, 0x7a0000ff",
      "v_cmp_eq_u32 vcc, 2, v2", f"ds_write_b32 v17, v28 offset:{L_TBL}", f"v_mov_b32 v28, {hex(BIG)}", "v_cndmask_b32 v3, v24, v28, vcc",
      f"ds_write_b32 v17, v3 offset:{L_H1}", f"ds_write_b32 v17, v28 offset:{L_TB2}")
    I("v_and_b32 v3, 0x7c, v43", f"ds_write_b32 v3, v20 offset:{L1_KEY + CH*4}")
    I(
      "s_mov_b64 s[4:5], s[64:65]", "s_mov_b64 s[8:9], s[80:81]")
    I(f"s_mul_i32 s3, {CID}, {CHS*4}", f"s_add_u32 s3, s3, {KEY_OFF}", "s_add_u32 s28, s12, s3", "s_addc_u32 s29, s13, 0", f"s_movk_i32 s30, 12672")
    I(f"s_mul_i32 s3, {CID}, {CHS*8}", f"s_add_u32 s3, s3, {EA_OFF}", "s_add_u32 s32, s12, s3", "s_addc_u32 s33, s13, 0", f"s_movk_i32 s34, 25216")
    I("s_lshl_b32 s38, s18, 12", "s_mov_b64 s[56:57], s[82:83]")
    def dwait(k, n): I(f"s_waitcnt vmcnt({vw('dst')+NC+1+k})", f"s_cbranch_scc0 R_W{n}", f"s_waitcnt vmcnt({vw('dst')+k})", f"R_W{n}:")
    I("s_cmp_lg_u32 s37, 0"); dwait(3 if OPT["lad"] else 0, 0)
    stamp("dst", lvl=2)
    CM("counting sort by bucket = (dst * 85899) >> 24: rank by LDS atomics, scan, scatter")
    for i in range(13):
        if OPT["lad"] and i in (4, 8): dwait(2 if i == 4 else 0, i)
        I(f"v_mul_u32_u24 v{AD+i}, s85, v{DST+i}", f"v_lshlrev_b32_sdwa v{AD+i}, 2, v{AD+i} dst_sel:DWORD dst_unused:UNUSED_PAD src0_sel:DWORD src1_sel:BYTE_3")
        if i == 12: I(f"v_or_b32 v{AD+i}, v45, v{AD+i}")
        I(f"ds_add_rtn_u32 v{RK+i}, v{AD+i}, v29 offset:{L1_CNT}")
    XT = ["v_lshrrev_b32 v11, 3, v0", "v_min_u32 v11, 24, v11", "v_lshlrev_b32 v11, 10, v11", "s_lshl_b32 s3, s16, 7", "buffer_load_dword v10, v11, s[4:7], s3 offen"]
    VM("xt", *XT)
    I("s_lshl2_add_u32 s37, s37, s18", "s_cmp_eq_u32 s18, 0", "s_waitcnt lgkmcnt(0)", "s_barrier")
    stamp("barA", lvl=3)
    HINT = ["s_cmp_lg_u32 s37, 3", "s_cbranch_scc1 K_NOH", f"s_lshr_b32 s3, {RID}, {NR}", "s_and_b32 s3, s3, 3", "s_lshl_b32 s3, s3, 6",
            "s_mov_b64 exec, 1", "buffer_atomic_add v29, v24, s[56:59], s3 offen", "s_mov_b64 exec, -1", "K_NOH:"]
    perm = [f"v_perm_b32 v{DST+i}, v{SRC+i}, v{DST+i}, s39" for i in range(13)]
    CM("wave 0 scans; the others touch the first line of the next code pages")
    I("s_cbranch_scc1 K_SCAN")
    I("s_cmp_eq_u32 s18, 1", "s_cbranch_scc1 PG1", "s_cmp_eq_u32 s18, 2", "s_cbranch_scc1 PG2", "s_branch PG3")
    I("K_SCAN:", f"ds_read_b128 v[32:35], v4 offset:{L1_CNT}", "s_waitcnt lgkmcnt(0)")
    I("v_add_u32 v38, v32, v33", "v_add_u32 v39, v38, v34", "v_add_u32 v41, v39, v35", "v_mov_b32 v36, v41")
    scan64(36)
    I("v_sub_u32 v36, v36, v41", "v_add_u32 v37, v36, v32", "v_add_u32 v38, v36, v38", "v_add_u32 v39, v36, v39")
    I(f"ds_write_b128 v4, v[36:39] offset:{L1_BASE}")
    for i in range(4): I(f"v_lshl_or_b32 v{32+i}, v{32+i}, 16, v{36+i}")
    I("s_waitcnt lgkmcnt(0)", "K_WARM_RET:", "s_barrier")
    stamp("barB", lvl=3)
    wl = [[f"s_movk_i32 s3, {4096*i}", f"buffer_load_dwordx4 v[{WR+4*i}:{WR+4*i+3}], v16, s[40:43], s3 offen"] for i in range(8)]
    W2R = [148, 152, 156, 248]
    wl += [[f"buffer_load_dwordx4 v[{W2R[i]}:{W2R[i]+3}], v4, s[44:47], s38 offen offset:{1024*i}"] for i in range(4)]
    for i in range(13): I(f"ds_read_b32 v{AD+i}, v{AD+i} offset:{L1_BASE}")
    I(f"s_waitcnt vmcnt({vw('src')})", *perm)
    for i in range(13):
        if i in (0, 6): I(f"s_waitcnt lgkmcnt({7 if i == 0 else 6})")
        I(f"v_add_lshl_u32 v{AD+i}, v{AD+i}, v{RK+i}, 2")
        if i == 12: I(f"v_or_b32 v{AD+i}, v45, v{AD+i}")
        I(f"ds_write_b32 v{AD+i}, v{DST+i} offset:{L1_KEY}")
    I("s_waitcnt lgkmcnt(0)", "s_barrier")
    stamp("barC", lvl=2)
    CM("the table clears of this workgroup have landed: count it into d_debug; write the sorted keys (src<<16 | dst) out")
    if OPT["hp"] < 0: I(*HINT)
    for i in range(4): I(f"ds_read_b128 v[{CP+4*i}:{CP+4*i+3}], v16 offset:{L1_KEY+4096*i}")
    for i in range(13): I(f"v_lshlrev_b32 v{P8+i}, 1, v{AD+i}")
    for i in range(4): VM("kst", f"s_movk_i32 s3, {4096*i}", f"s_waitcnt lgkmcnt({3-i})", f"buffer_store_dwordx4 v[{CP+4*i}:{CP+4*i+3}], v16, s[28:31], s3 offen sc1")
    for k in range(ea2+1):
        if OPT["hp"] == k: I(*HINT)
        if k < ea2: VM("ea", el[7-ea2+k])
    TABLD = "buffer_load_dword v8, v3, s[12:15], s36 offen sc1"
    TABCMP = ["v_cmp_eq_u32 vcc, -1, v8"]
    TABA = [f"s_lshr_b32 s36, s84, {lt-2}", f"s_lshl_b32 s36, s36, {lt+8}", f"s_and_b32 s3, s84, {TP//4-1}", "s_lshl2_add_u32 s36, s3, s36"]
    I(*TABA); I(f"v_lshlrev_b32 v3, {lt}, v0")
    I(f"s_lshl_b32 s60, {CID}, {lt}", f"s_lshl_b32 s61, {CID}, {FS}", f"v_lshlrev_b32 v41, {FS}, v0", f"s_add_u32 s61, s61, {FL_OFF}")
    I(f"s_mov_b32 s24, {NLOG2E}", f"s_mov_b32 s25, {NLOG2E}", "s_mov_b32 s27, 0xffff0000", "v_and_b32 v5, 0x300, v16", "v_lshrrev_b32 v5, 2, v5", "v_xor_b32 v5, v5, v16", f"v_add_u32 v5, {L_W}, v5")
    I(f"v_lshl_add_u32 v7, v2, 8, v17", f"v_add_u32 v7, {L_S + 1024}, v7", f"v_add_u32 v9, {L_S}, v17")
    I("s_lshl_b32 s23, s18, 11", "v_and_b32 v48, 0x380, v4", "v_bfe_u32 v49, v6, 2, 1", "v_lshl_add_u32 v48, v49, 10, v48", "v_and_b32 v30, 48, v4",
      "v_lshl_add_u32 v48, v30, 1, v48", "v_add_u32 v48, s23, v48", "v_add_u32 v49, 8, v48", "v_add_u32 v50, 16, v48", "v_add_u32 v51, 24, v48",
      f"s_mul_i32 s22, s16, {NS}", f"s_sub_u32 s22, {L_NODE}, s22", f"v_mov_b32 v28, {NS}",
      "v_and_or_b32 v31, v4, 16, 2.0", f"v_mul_u32_u24 v44, {CHS}, v0", "v_and_b32 v26, 0x70, v4", "v_add_u32 v27, 0x80000000, v30",
      "v_lshrrev_b32 v46, 3, v0", "v_lshlrev_b32 v47, 4, v46", "v_xor_b32 v47, v47, v4", "v_and_b32 v47, 0x70, v47", "v_add_u32 v46, s16, v46", "v_lshl_add_u32 v55, v46, 7, v47",
      "s_lshl_b32 s62, s18, 10", f"s_add_u32 s62, s62, {L_X}", "s_cmp_eq_u32 s18, 0", "s_mov_b32 s63, 0x3f000", f"s_cselect_b32 s63, {L_X + 6*4096}, s63")
    HLD = "buffer_load_dword v20, v43, s[56:59], s37 offen sc1"
    HCMP = "v_cmp_lt_u32 vcc, v20, v22"
    I("v_and_b32 v22, 0xcf, v0", "v_cmp_eq_u32 vcc, 0x80, v22", "s_cmp_eq_u32 s18, 2", "s_cselect_b32 s37, 0, 0x1000", f"v_cndmask_b32_e64 v22, 0, {64 >> NR}, vcc")
    stamp("kout", lvl=3)
    xd = [[f"s_add_u32 m0, s62, {4096*i}" if i < 6 else "s_mov_b32 m0, s63", "v_add_u32 v55, 0x1000, v55" if i else "s_nop 0",
           "buffer_load_dwordx4 v55, s[4:7], 0 offen lds"] for i in range(7)]
    KEY, O4, O8 = 64, 170, 160
    F3LD = "buffer_load_dword v9, v41, s[12:15], s52 offen sc1"
    def eadma(o, base, imm): return [f"s_add_u32 m0, {base}, {imm}", "s_nop 0", f"buffer_load_dwordx4 v{o}, s[12:15], s51 offen sc1 lds"]
    ea = [eadma(O8+n, "s23", STG0 + 8192*(n>>1) + 1024*(n&1)) for n in range(10)]
    def plan(p): return {x[:-1]: int(x[-1], 16) for x in p.split(".")}
    xs, es = plan(OPT["xs"]), plan(OPT["es"])
    assert sum(xs.values()) == 7 and sum(es.values()) == 10
    def hook(h):
        if OPT["f3l"] == h: VM("f3", F3LD)
        for k in range(xs.get(h, 0)): VM("x", *xd.pop(0))
        if OPT["w2h"] == h:
            CM("second-layer weights * -ln2 -> LDS")
            for i in range(16):
                t = 84 + 2*(i % 4); r = W2R[i//4] + i % 4
                I(f"v_lshlrev_b32 v{t}, 16, v{r}", f"v_and_b32 v{t+1}, s53, v{r}", f"v_pk_mul_f32 v[{t}:{t+1}], v[{t}:{t+1}], s[24:25]", f"v_cvt_pk_bf16_f32 v{r}, v{t}, v{t+1}")
                if i % 4 == 3: I(f"ds_write_b128 v5, v[{r-3}:{r}] offset:{256*(i-3)}")
        if es.get(h) and len(ea) == 10:
            CM("e_attr segments -> LDS once their producers have flagged them")
            I(f"s_waitcnt vmcnt({vw('f3')})", "v_cmp_eq_u32 vcc, -1, v9", "s_cbranch_vccnz K_F3", "K_F3_RET:", "s_cmp_lg_u32 s20, 0", "s_cbranch_scc1 K_MEA", "K_MEA_RET:")
            stamp("f3", lvl=3)
        for k in range(es.get(h, 0)): VM("eb", *ea.pop(0))
    hook("ko")
    def bar(tag=None): I("s_waitcnt " + (f"vmcnt({vw(tag)}) " if tag else "") + "lgkmcnt(0)", "s_barrier")
    for i in range(13):
        if i in (0, 4, 8): I(f"s_waitcnt vmcnt({vw('ea', {0: 5, 4: 3, 8: 0}[i])})")
        if i == 8: stamp("ea_in", lvl=3)
        if i == OPT["hl"]: VM("kst", HLD)
        I(f"ds_write_b64 v{P8+i}, v[{EAR+2*i}:{EAR+2*i+1}] offset:{L1_EA}")
        if i >= 1: VM("w", *wl.pop(0))
    def scale(i):
        t = 64 + 2*(i % 4) if i < 32 else 72 + 2*(i-32)
        I(f"v_lshlrev_b32 v{t}, 16, v{WR+i}", f"v_and_b32 v{t+1}, s27, v{WR+i}", f"v_pk_mul_f32 v[{t}:{t+1}], v[{t}:{t+1}], s[24:25]", f"v_cvt_pk_bf16_f32 v{WR+i}, v{t}, v{t+1}")
        if i % 4 == 3: I(f"ds_write_b128 v5, v[{WR+i-3}:{WR+i}] offset:{1024*(i-3)}")
    CM("keys are at the coherence point and all table clears are done: publish (base, count) of every segment")
    I(f"s_waitcnt vmcnt({vw('kst')})")
    I(HCMP, "s_cbranch_vccnz K_H", "K_H_RET:")
    I("s_cmp_lg_u32 s18, 0", "s_waitcnt lgkmcnt(0)", "s_barrier")
    stamp("barD", lvl=2)
    I("s_cbranch_scc1 K_NOTAB", "buffer_store_dwordx4 v[32:35], v42, s[12:15], s60 offen sc1", "K_NOTAB:")
    for i in range(7): I(f"ds_read_b128 v[{CP+4*i}:{CP+4*i+3}], v16 offset:{L1_EA+4096*i}")
    I("s_branch PG1E"); repoll("K_H", HLD, HCMP); I(".p2align 12", "PG1:", "s_branch K_WARM_RET", "s_nop 0", "PG1E:")
    for i in range(7): VM("est", f"s_movk_i32 s3, {4096*i}", f"s_waitcnt lgkmcnt({6-i})", f"buffer_store_dwordx4 v[{CP+4*i}:{CP+4*i+3}], v16, s[32:35], s3 offen sc1")
    stamp("eaout", lvl=3)
    CM("first-layer weights and b1 * -log2(e) -> LDS (the MFMA then yields the exp2 argument directly)")
    I("s_cmp_lg_u32 s18, 0", f"s_waitcnt vmcnt({vw('w') + 1})", "s_cbranch_scc0 K_WW", f"s_waitcnt vmcnt({vw('w')})", "K_WW:", ".p2align 3")
    for i in range(34):
        if i == 33: I("s_cmp_eq_u32 s18, 2", "s_cselect_b32 s24, 1.0, s24", "s_mov_b32 s25, s24", "s_nop 0")
        scale(i)
    I(f"ds_write_b32 v9, v{WR+32}", f"ds_write_b32 v7, v{WR+33}")
    I(f"v_lshlrev_b32 v64, 16, v{WR+33}", f"v_and_b32 v65, s27, v{WR+33}", "v_sub_f32 v64, v74, v64", "v_sub_f32 v65, v75, v65", "v_cvt_pk_bf16_f32 v67, v64, v65", "ds_write_b32 v7, v67 offset:256")
    I(*[f"s_mov_b32 s{40+i}, {STG0 + 8192*i}" for i in range(5)])
    I(f"s_mov_b32 s24, {NLN2}", f"s_mov_b32 s25, {NLN2}", f"s_mov_b32 s50, {KEY_OFF}", f"s_mov_b32 s51, {EA_OFF}", f"s_mov_b32 s52, {FL_OFF}")
    for w in range(3): I(f"s_cmp_eq_u32 s18, {w+1}", f"s_cbranch_scc1 PG{w+4}")
    I("K_WARM_RET2:")
    stamp("wdone", lvl=3)
    tr = []
    for f in range(16):
        for jh in range(2): tr.append(f"ds_read_b64_tr_b16 a[{AW2+4*f+2*jh}:{AW2+4*f+2*jh+1}], v62 offset:{(16*(f>>1) + 8*jh)*128 + 32*(f&1)}")
    for f in range(32):
        for jh in range(2): tr.append(f"ds_read_b64_tr_b16 a[{AW1A+4*f+2*jh}:{AW1A+4*f+2*jh+1}], v{56+((f>>2)&3)} offset:{(64*(f>>4) + 8*(f&3) + 4*jh)*256}")
    for b in range(4): tr.append(f"ds_read_b64_tr_b16 a[{AW1C+2*b}:{AW1C+2*b+1}], v60 offset:{64*b}")
    tr += [f"ds_read_b64_tr_b16 a[{AB2}:{AB2+1}], v63"]
    tr2, tr = tr[:32], tr[32:]
    CM("phase 2: thread c reads the table entry of chunk c; flag own e_attr once it has landed")
    VM("tab", f"s_waitcnt vmcnt({vw('est', OPT['tw'])})", TABLD)
    I("s_cmp_lg_u32 s18, 1"); bar("est")
    I("s_cbranch_scc1 K_NOF3", "s_mov_b64 exec, 1", "buffer_store_dword v24, v24, s[12:15], s61 offen sc1", "s_mov_b64 exec, -1", "K_NOF3:")
    stamp("barE", lvl=2)
    I(*tr[:OPT["ntr"]]); tr = tr[OPT["ntr"]:]
    I(f"s_waitcnt vmcnt({vw('tab')+1})", "s_cbranch_scc0 K_TW", f"s_waitcnt vmcnt({vw('tab')})", "K_TW:")
    I(*TABCMP); I("s_cbranch_vccnz K_TAB", "K_TAB_RET:")
    stamp("tab", lvl=2)
    CM("keys: 16 per segment by a quad of lanes, the rest in units of 8 handed to free lane pairs")
    I("v_and_b32 v33, 0xffff, v8", "v_add_lshl_u32 v32, v44, v33, 2", "v_lshrrev_b32 v33, 16, v8", "v_subrev_u32 v33, 16, v33")
    AD, RK = 96, 128
    def compact(dst):
        I("v_cmp_lt_i32 vcc, 0, v33", "v_cmp_lt_i32 s[46:47], 8, v33", "v_cmp_lt_i32 s[48:49], 16, v33", "v_mbcnt_lo_u32_b32 v35, vcc_lo, 0", "v_mbcnt_hi_u32_b32 v35, vcc_hi, v35",
          "v_mbcnt_lo_u32_b32 v35, s46, v35", "v_mbcnt_hi_u32_b32 v35, s47, v35", "v_mbcnt_lo_u32_b32 v35, s48, v35", "v_mbcnt_hi_u32_b32 v35, s49, v35",
          "v_cmp_gt_u32 s[36:37], 30, v35", "v_lshlrev_b32 v35, 3, v35", "v_add_u32 v45, 8, v35", "v_add_u32 v52, 16, v35", "v_add_u32 v40, 32, v34", "v_add_u32 v53, 64, v34",
          "s_and_b64 vcc, vcc, s[36:37]", "s_and_b64 s[46:47], s[46:47], s[36:37]", "s_and_b64 s[48:49], s[48:49], s[36:37]",
          "v_cndmask_b32 v35, 4, v35, vcc", "v_cndmask_b32 v45, 4, v45, s[46:47]", "v_cndmask_b32 v52, 4, v52, s[48:49]",
          f"ds_permute_b32 v{dst}, v35, v34", "ds_permute_b32 v40, v45, v40", "ds_permute_b32 v53, v52, v53",
          "v_cndmask_b32_e64 v35, 0, 24, vcc", "v_sub_u32 v33, v33, v35", "v_lshl_add_u32 v34, v35, 2, v34")
    def units(k, o4, o8):
        return ["s_waitcnt lgkmcnt(0)", "v_or3_b32 v36, v36, v40, v53", "v_lshlrev_b32 v39, 1, v36", "s_nop 0",
                f"v_add_u32_dpp v{o4}, v36, v31 quad_perm:[0,0,2,2] row_mask:0xf bank_mask:0xf",
                f"buffer_load_dwordx4 v[{k}:{k+3}], v{o4}, s[12:15], s50 offen sc1",
                f"v_add_u32_dpp v{o8}, v39, v27 quad_perm:[0,0,0,0] row_mask:0xf bank_mask:0xf",
                f"v_add_u32_dpp v{o8+1}, v39, v27 quad_perm:[2,2,2,2] row_mask:0xf bank_mask:0xf", f"v_bfe_i32 v{o4}, v{o4}, 30, 1"]
    def octets(src, its, off, o8):
        I(f"v_lshlrev_b32 v39, 1, v{src}", f"v_lshlrev_b32 v37, 1, v{src}", f"v_lshlrev_b32 v38, 1, v{src}", "s_nop 0",
          "v_mov_b32_dpp v37, v39 row_shr:4 row_mask:0xf bank_mask:0xa", "v_mov_b32_dpp v38, v39 row_shl:4 row_mask:0xf bank_mask:0x5", "s_nop 0")
        for n, i in enumerate(its):
            for h in range(2): I(f"v_add_u32_dpp v{o8+2*n+h}, v{37+h}, v{off} quad_perm:[{i},{i},{i},{i}] row_mask:0xf bank_mask:0xf")
    for i in range(4):
        VM(f"k{i}", f"v_add_u32_dpp v{O4+i}, v32, v30 quad_perm:[{i},{i},{i},{i}] row_mask:0xf bank_mask:0xf",
          f"buffer_load_dwordx4 v[{KEY+4*i}:{KEY+4*i+3}], v{O4+i}, s[12:15], s50 offen sc1")
    I(f"v_add_u32 v34, 0xc0000040, v32")
    compact(36)
    octets(32, range(4), 26, O8)
    VM("k4", *units(KEY+16, O4+4, O8+8))
    hook("k")
    I("v_and_b32 v244, 0x3c0, v4", "v_bfe_u32 v245, v6, 1, 1", "v_lshl_add_u32 v244, v245, 10, v244", "v_and_b32 v245, 1, v6",
      "v_lshl_add_u32 v244, v245, 5, v244", "v_add_u32 v244, s23, v244", "v_add_u32 v245, 8, v244", "v_add_u32 v246, 16, v244", "v_add_u32 v247, 24, v244")
    I(f"s_add_u32 s3, s38, {L_W2}", "v_add_u32 v5, s3, v4", "s_mov_b32 s53, s27")
    I(f"v_mul_u32_u24 v21, {NS}, v0", f"v_add_u32 v21, {L_NODE}, v21", "v_cmp_gt_u32 s[38:39], s17, v0")
    I("s_sub_u32 s27, 256, s17", "s_sub_u32 s19, s27, 32", "s_mov_b32 s20, 0")
    I(*tr)
    I("v_mov_b32 v14, 0x3f803f80", "v_mov_b32 v15, 0", "ds_write_b64 v24, v[14:15]", "v_cmp_gt_u32 vcc, 32, v6", "v_mov_b32 v14, 0xffff", "s_nop 0", "v_cndmask_b32 v14, 0, v14, vcc")
    I("v_bfe_u32 v92, v6, 4, 1", "v_lshlrev_b32 v92, 4, v92", f"v_xor_b32 v{FI+1}, v92, v26")
    for j in range(1, 8): I(f"v_xor_b32 v{FI+1+2*j}, {32*(j&3)}, v{FI+1}")
    I("v_and_b32 v92, 3, v6", f"v_mul_u32_u24 v{FR}, 0x420, v92", "v_bfe_u32 v92, v6, 2, 3", f"v_lshl_add_u32 v{FR}, v92, 7, v{FR}", "v_bfe_u32 v92, v6, 3, 1",
      f"v_lshl_add_u32 v{FR}, v92, 4, v{FR}", f"v_xor_b32 v{FR}, v{FR}, v1", "s_lshl_b32 s45, s18, 13", f"s_add_u32 s45, s45, {L_W}", f"v_add_u32 v{FR}, s45, v{FR}")
    for k in range(1, 4): I(f"v_xor_b32 v{FR+k}, {16*k}, v{FR}")
    I("v_and_b32 v93, 31, v6", "s_lshl_b32 s3, s18, 7", "v_lshl_add_u32 v57, v93, 2, s3", "v_and_b32 v59, 0x38, v6", "v_lshl_add_u32 v59, v59, 1, s3",
      "s_sub_u32 s3, 896, s3", "v_lshl_add_u32 v58, v93, 2, s3")
    def phaseB(k, a, r, sreg, m=None):
        if m:
            for j in range(4): I(f"v_or_b32 v{k+j}, v{m}, v{k+j}")
        for j in range(4): I(f"v_mad_u32_u16 v{a+j}, v{k+j}, v28, s22")
        for j in range(4):
            I(f"ds_add_rtn_u32 v{r+j}, v{a+j}, v29",
              f"v_add_u32_sdwa v{k+j}, v{(244 if m else 48)+j}, s{sreg} dst_sel:WORD_0 dst_unused:UNUSED_PRESERVE src0_sel:DWORD src1_sel:DWORD")
    def phaseC(k, a, r):
        L = []
        for j in range(4): L += [f"v_min_u32 v{r+j}, {CAP-1}, v{r+j}", f"v_lshl_add_u32 v{a+j}, v{r+j}, 2, v{a+j}", f"ds_write_b32 v{a+j}, v{k+j} offset:4"]
        return L
    CM("insert the keys into per-node lists (foreign keys fall outside the LDS allocation); own x rows -> LDS")
    I("s_barrier")
    for i in range(5):
        I(f"s_waitcnt vmcnt({vw(f'k{i}')})")
        if i == 0: stamp("key0", lvl=2)
        hook(f"b{i}")
        phaseB(KEY+4*i, AD+4*i, RK+4*i, 40+i, O4+4 if i == 4 else None)
    I("v_cmp_lt_i32 vcc, 0, v33", "s_cbranch_vccnz K_MORE", "K_MORE_RET:", "s_branch PG2E")
    repoll("K_TAB", TABLD, "\n".join(TABCMP))
    I(".p2align 12", "PG2:", "s_branch K_WARM_RET")
    repoll("K_F3", F3LD, "v_cmp_eq_u32 vcc, -1, v9")
    I("PG2E:"); bar()
    stamp("bar1", lvl=2)
    CM("slot assignment: rank nodes by degree, split the largest in two, sort the 256 pieces by length")
    I("s_mov_b64 exec, s[38:39]", "ds_read_b32 v20, v21", "s_mov_b64 exec, -1")
    hook("a1")
    I("s_waitcnt lgkmcnt(0)", "s_mov_b64 exec, s[38:39]")
    I(f"v_cmp_lt_u32 vcc, {CAP}, v20", "v_min_u32 v20, 63, v20", "v_sub_u32 v22, 63, v20", "v_lshlrev_b32 v22, 2, v22",
      f"ds_add_rtn_u32 v23, v22, v29 offset:{L_H1}")
    I("s_cbranch_vccz K_A1", f"ds_write_b32 v24, v29 offset:{L_FLAG}", "K_A1:")
    I("s_mov_b64 exec, -1")
    hook("a2"); bar()
    I(f"ds_read_b32 v25, v43 offset:{L_H1}")
    I(*phaseC(KEY, AD, RK))
    I("s_waitcnt lgkmcnt(4)", "v_mov_b32 v46, v25")
    scan64(46, phaseC(KEY+4, AD+4, RK+4))
    I("v_sub_u32 v46, v46, v25", "ds_bpermute_b32 v46, v22, v46")
    I("v_lshrrev_b32 v30, 1, v20", "v_cmp_lt_u32 s[36:37], 26, v20")
    hook("a3")
    I("s_waitcnt lgkmcnt(0)")
    I("v_add_u32 v23, v23, v46", "v_cmp_gt_u32 vcc, s19, v23", "v_lshlrev_b32 v33, 1, v23", "v_lshlrev_b32 v34, 2, v23",
      "v_cndmask_b32_e64 v31, 8, 10, vcc", "v_cndmask_b32 v31, v31, v30, s[36:37]")
    I("v_cmp_gt_u32 vcc, s27, v23", "v_cmp_gt_u32 s[36:37], v20, v31", "v_mov_b32 v35, 0xff", "v_sub_u32 v37, 63, v31",
      "s_and_b64 vcc, vcc, s[36:37]", "s_and_b64 vcc, vcc, s[38:39]")
    I("v_cndmask_b32 v32, 0, v31, vcc", "v_sub_u32 v32, v20, v32", "v_sub_u32 v36, 63, v32", "v_lshlrev_b32 v36, 2, v36", "v_lshlrev_b32 v37, 2, v37")
    I("s_mov_b64 exec, s[38:39]", f"ds_add_rtn_u32 v38, v36, v29 offset:{L_H2}")
    I("s_mov_b64 exec, vcc", f"ds_add_rtn_u32 v39, v37, v29 offset:{L_H2}", "v_add_lshl_u32 v47, s16, v0, 7", f"ds_write_b32 v34, v47 offset:{L_SN}")
    I("s_mov_b64 exec, -1", "v_cndmask_b32 v35, v35, v33, vcc")
    I("v_lshl_or_b32 v48, v35, 8, v32", "v_lshl_or_b32 v48, v48, 16, v0")
    I("v_or_b32 v33, 1, v33", "v_lshl_or_b32 v49, v33, 8, v31", "v_lshl_or_b32 v49, v49, 8, v32", "v_lshl_or_b32 v49, v49, 8, v0", "v_lshl_add_u32 v50, v32, 2, v21")
    I("s_mov_b64 s[46:47], vcc"); hook("a4"); bar()
    stamp("bar3", lvl=3)
    I(f"ds_read_b32 v25, v43 offset:{L_H2}"); I(*phaseC(KEY+8, AD+8, RK+8)); I("s_waitcnt lgkmcnt(4)", "v_mov_b32 v46, v25")
    scan64(46, phaseC(KEY+12, AD+12, RK+12))
    I("v_sub_u32 v46, v46, v25", "ds_bpermute_b32 v36, v36, v46", "ds_bpermute_b32 v37, v37, v46")
    I(*phaseC(KEY+16, AD+16, RK+16))
    I("s_waitcnt lgkmcnt(4)", "v_add_lshl_u32 v36, v36, v38, 2", "v_add_lshl_u32 v37, v37, v39, 2")
    o0 = L_TBL // 256
    I("s_mov_b64 exec, s[38:39]", f"ds_write2st64_b32 v36, v48, v21 offset0:{o0} offset1:{o0+4}", "s_mov_b64 exec, s[46:47]", f"ds_write2st64_b32 v37, v49, v50 offset0:{o0} offset1:{o0+4}",
      "s_mov_b64 exec, -1")
    hook("a5")
    sr = [f"ds_read_b128 a[{AX+4*k}:{AX+4*k+3}], v{34+(k&3)} offset:{4096*(k>>2)}" for k in range(8)]
    I("s_movk_i32 s54, 0xff", f"s_movk_i32 s55, {SPL_S}", "s_movk_i32 s59, 128",
      f"s_mov_b32 s57, {f32(2.0**-100)}", "s_movk_i32 s58, 0x207", f"v_add_u32 v6, {L_X}, v1")
    I("s_mov_b32 s28, s4", "s_or_b32 s29, s5, 0x800000", f"s_mov_b32 s30, {N_NODES}")
    bar("x")
    stamp("bar4", lvl=2)
    CM("first group: Q = W1b'x[dst], first two tiles of x[src] through LDS, step 0")
    o0 = L_TBL // 256
    I(f"ds_read_b128 v[20:23], v59 offset:{L_TB2}", f"ds_read2st64_b32 v[26:27], v57 offset0:{o0} offset1:{o0+4}",
      f"ds_read_b32 v7, v58 offset:{L_TBL}", f"ds_read_b32 v8, v58 offset:{L_TB2}", f"ds_read_b32 v24, v24 offset:{L_FLAG}")
    for k in range(4): I(f"v_mov_b32 v{34+k}, v{FR+k}")
    assert not ea and not xd
    xx, xr = xrd((28, 29, 30, 31))
    I("s_waitcnt lgkmcnt(3)")
    for j in range(4): I(f"ds_read_u16 v{FI+2*j}, v{20+j} offset:6")
    I(*xrow(28, 26, 29, 6)); I(*xx); I(*xr)
    for j in range(4): I(f"ds_read_u16 v{FI+8+2*j}, v{20+j} offset:10")
    def dma(j, f): return [f"s_add_u32 m0, s45, {1024*j}", f, f"buffer_load_dwordx4 v[{FI+2*j}:{FI+2*j+1}], s[28:31], 0 idxen offen lds"]
    I("s_waitcnt lgkmcnt(8)")
    for j, f in enumerate(["v_mov_b32 v5, v26", "v_mov_b32 v2, v27", "v_bfe_u32 v3, v26, 16, 8", "v_cmp_ne_u32 vcc, 0, v24"]): I(*dma(j, f))
    I("s_waitcnt lgkmcnt(0)", "s_cbranch_vccnz K_SLOW0", ".p2align 3")
    stamp("q1")
    q = sum([qchain(QQ+16*b, b) for b in range(4)], [])
    late2 = ["s_lshl_b32 s45, s18, 5", "s_add_u32 s45, s45, 128", f"s_mul_i32 s46, s18, {OST_W}", f"s_add_u32 s46, s46, {L_OST}", "s_movk_i32 s47, 576", f"s_mov_b32 s48, {L_SN}", "s_mov_b32 s27, 0xffff0000"]
    ex = {0: recs(40, 2) + recs(10, 8), 1: ["v_readfirstlane_b32 s20, v3"] + xrow(9, 7, 29, 6), 2: tr2[0:6],
          3: dma(4, "s_nop 0"), 4: dma(5, "s_nop 0"), 5: dma(6, "s_nop 0"), 6: dma(7, "s_nop 0"),
          7: ["s_waitcnt lgkmcnt(0)", eaddr(44, 40), eaddr(45, 41), eaddr(46, 42), eaddr(4, 43), xaddr(42)], 8: tr2[6:14], 9: tr2[14:23], 10: tr2[23:],
          11: (["s_mov_b32 s62, s20"] if OPT["stamp"] else []) + LSET + late2 + ["s_waitcnt vmcnt(4)", "s_barrier"], 12: sr[0:4], 13: [earead(0, 44), earead(1, 45), earead(2, 46)]}
    I(*weave(q, [], [0]*16, ex)); I(".p2align 3")
    c = chain(NN, 0, 0, QQ)
    seg = ["s_waitcnt lgkmcnt(0)", "s_nop 0", c[0], xload(2, 0), c[1], xload(2, 1), c[2], xload(2, 2), c[3], xload(2, 3), c[4], xaddr(43), "s_nop 8", "s_nop 0"]
    for b in range(3): seg += weave(chain(NN+16*(b+1), b+1, 0, QQ+16*(b+1)), E0(b), (3,3,3,3,4), {0: ["s_waitcnt vmcnt(4)"], 1: sr[4:6], 2: sr[6:8], 3: [xload(0, 0)]} if b == 2 else None) + A0(b)
    seg += ["s_waitcnt lgkmcnt(0)", "s_barrier"] + weave(chain(T0, 0, 1, QQ), E0(3), (3,3,3,3,4), {3: [xload(0, 1)]}) + A0(3)
    I(*align8(seg))
    stamp("loop1")
    I("s_branch K_A0")
    def partA(t):
        cur = (1+t) % 3; prv = t % 3
        seg = []
        for b in range(3):
            tc = T0 + 16*(b % 2); tn = T0 + 16*((b+1) % 2)
            if b == 0: extra = {0: [f"ds_read_b32 v6, v2 offset:{4*(t+5)}"], 3: [xload(prv, 2)], 4: ["v_cmpx_lt_u32 vcc, s19, v3"]}
            elif b == 1: extra = {1: ["s_cmp_lt_i32 s19, s37"], 2: ["s_waitcnt lgkmcnt(0)"], 3: [xload(prv, 3)], 4: [xaddr(6)]}
            else: extra = {0: ["s_cselect_b32 s6, s26, 0"], 1: ["s_cmp_ge_u32 s19, s20"], 2: ["s_waitcnt vmcnt(4)"], 3: [earead(prv, 4)],
                           4: ["s_cbranch_scc1 K_EXIT" if t < 2 else "s_cbranch_scc0 K_LOOP"]}
            ms = chain(tn, b+1, cur, QQ+16*(b+1))
            if b < 2: seg += weave(ms, exps(tc), (3,3,3,3,4), extra) + pk3(b, tc)
            else: seg += weave(ms, exps(tc)[:12], (3,3,3,3,0), extra)
        return seg
    def partB(t):
        cur = (1+t) % 3; nxt = (2+t) % 3
        seg = [xload(cur, 0)] + exps(T0)[12:] + pk3(2, T0)
        seg += weave(chain(T0, 0, nxt, QQ), exps(T1), (3,3,3,3,4), {0: ["s_add_u32 s19, s19, 1"], 3: [xload(cur, 1)], 4: [eaddr(4, 6)] + (["v_add_u32 v2, 12, v2"] if t == 2 else [])}) + pk3(3, T1)
        return seg
    def loop(pg, ret, n, ex):
        I(".p2align 12", f"PG{pg}:", f"s_branch {ret}", "s_nop 0", f"K_LOOP{n}:")
        CM("one edge per slot and step: u = Q + W1a'x[src] + W1c'e + b1', e = 2^u, N = N(1+e) + uD, D = D(1+e)")
        I(*align8(partB(2)))
        I(f"K_A{n}:")
        I(*[x.replace("K_EXIT", ex).replace("K_LOOP", f"K_LOOP{n}") for x in align8(partA(0) + partB(0) + partA(1) + partB(1) + partA(2))[:-1]])
        I(f"s_branch {ex}", f"K_EXIT{n}:")
    loop(3, "K_WARM_RET", 0, "K_MID")
    I(".p2align 12", "PG4:", "s_branch K_WARM_RET2", "s_nop 0", "K_MID:")
    stamp("exit1")
    CM("finish group 1 (h = N/D, out = W2'h + len*b2) woven into the start of group 2")
    def mix(c, g): return c[:4] + g + c[4:]
    xx, xr = xrd((9, 4, 6, 2))
    seg = exps(T0)[12:] + pk3(2, T0) + ["s_mov_b64 s[60:61], exec", "s_mov_b64 exec, -1"] + exps(T1) + xx + ["s_mov_b32 s6, s26", xaddr(10), "s_waitcnt vmcnt(0)", LSET[3]]
    seg += xr + [xload(0, k) for k in range(4)] + ["s_mov_b64 exec, s[60:61]", "s_nop 0"] + pk3(3, T1) + ["s_mov_b64 exec, -1", "s_waitcnt lgkmcnt(0)"]
    q = [qchain(QQ+16*b, b) for b in range(4)]
    seg += spread(q[0] + q[1][:1] + binit(LB), [xaddr(11), "v_bfe_u32 v3, v7, 16, 8"] + lbinit(LB) + ["v_readfirstlane_b32 s20, v3"] + R(0) + M(0),
                  pre={1: [xload(1, 0), xload(1, 1)], 2: [xload(1, 2)], 3: [xload(1, 3)]}) + U(0)
    seg += spread(q[1][1:] + q[2][:1] + G(0), V(0) + [eaddr(4, 10), eaddr(6, 11), eaddr(0, 12), "v_mov_b32 v2, v8"] + R(1) + M(1),
                  pre={2: ([f"s_mov_b32 s63, s20"] if OPT["stamp"] else []) + [LSET[0]], 3: [LSET[1]], 5: [LSET[2]], 4: [earead(0, 4), earead(1, 6), earead(2, 0)]}) + U(1)
    seg += spread(q[2][1:] + G(1), V(1) + R(2) + M(2), pre={5: ["s_waitcnt vmcnt(4) lgkmcnt(0)"]}) + U(2)
    seg += spread(mix(chain(NN, 0, 0, QQ), G(2)), V(2) + OCON + R(3) + M(3)) + U(3)
    c = chain(NN+16, 1, 0, QQ+16)
    seg += spread(c[:2] + G(3) + c[2:], V(3) + dec2(LB) + [xaddr(12), eaddr(4, 13), "v_mov_b32 v5, v7"] + CHK0 + E0(0) + A1(0)[:OPT["a1"]], pre={6: [CHK1]}) + check("K_RARE_A", A0(0)[OPT["a1"]//2:])
    c = chain(NN+32, 2, 0, QQ+32)
    e = E0(1)
    seg += spread(q[3] + c, OCV + e, pre={0: [OIW], 2: [OSW[0]], 4: [OSW[1], xload(2, 0)], 5: [OSW[2], xload(2, 1)], 6: [OSW[3], xload(2, 2)], 7: [xload(2, 3)] + OSR}) + A0(1)
    e = E0(2); c = chain(NN+48, 3, 0, QQ+48)
    seg += [c[0], "s_waitcnt vmcnt(4) lgkmcnt(0)"] + OOR + [xaddr(13)] + e[:1] + [c[1], OST[0], OST[1], c[2], OST[2], OST[3], c[3], xload(0, 0)] + e[1:4] + [c[4]] + e[4:] + A0(2)
    seg += weave(chain(T0, 0, 1, QQ), E0(3), (3,3,3,3,4), {3: [xload(0, 1)]}) + A0(3)
    I(*align8(seg))
    stamp("loop2")
    I("s_branch K_A1X")
    loop(5, "K_WARM_RET2", "1X", "K_LAST")
    I(".p2align 12", "PG6:", "s_branch K_WARM_RET2", "s_nop 0", "K_LAST:")
    stamp("exit2")
    CCON = ["v_mbcnt_lo_u32_b32 v2, -1, 0", "v_mbcnt_hi_u32_b32 v2, -1, v2", "v_lshrrev_b32 v2, 3, v2", "v_lshl_add_u32 v2, s18, 3, v2",
            "v_mul_u32_u24 v4, s55, v2", "v_lshl_add_u32 v4, v4, 1, v11", "v_lshl_add_u32 v2, v2, 2, s48", "v_mov_b32 v12, 0"]
    CM("finish group 2")
    def mv(l):
        return [re.sub(r"\bv(\d+)\b|v\[(\d+):(\d+)\]", lambda m: (f"v{int(m.group(1))+QQ-T0}" if T0 <= int(m.group(1)) < EE else m.group(0)) if m.group(1) else
                       (f"v[{int(m.group(2))+QQ-T0}:{int(m.group(3))+QQ-T0}]" if T0 <= int(m.group(2)) < EE else m.group(0)), x) for x in l]
    L2 = QQ + 32
    g = mv(G(0) + G(1) + G(2) + G(3))
    seg = exps(T0)[12:] + pk3(2, T0) + ["s_mov_b64 s[60:61], exec", "s_mov_b64 exec, -1"] + XX(0) + lbinit(L2)
    seg += R(0)[:2] + weave(mv(binit(L2)), R(0)[2:], (4, 10)) + UU(0) + V(0)[:6]
    seg += spread(g[:5], V(0)[6:] + V(1)[:6] + exps(T1), pre={4: ["s_mov_b64 exec, s[60:61]"]}) + pk3(3, T1) + ["s_mov_b64 exec, -1", "s_nop 0"] + XX(2)
    seg += spread(g[5:8], V(1)[6:] + R(2)) + UU(2) + V(2)[:6]
    ck = mv(check("K_RARE_B", [])); oc = mv(OCV)
    g2 = [g[8], g[10], g[9], g[12], g[14], g[11], g[13], g[15]]
    seg += spread(g2, V(2)[6:] + V(3) + M(0) + M(2) + dec2(L2) + CHK0 + CCON[:7] + [CHK1] + CCON[7:] + ck[:1] + oc[:8], tail=48) + oc[8:] + ck[1:] + [OIW] + mv(OSW) + OSR
    I(*align8(seg))
    stamp("tail")
    CM("add the two pieces of every split node: 8 lanes per output row")
    I("s_waitcnt lgkmcnt(6)", "s_barrier")
    I(f"ds_read_b32 v12, v12 offset:{L_FLAG}", f"ds_read2_b32 v[2:3], v2 offset1:32")
    for h in range(2):
        for r in range(2): I(f"ds_read_b128 v[{NN+8*h+4*r}:{NN+8*h+4*r+3}], v4 offset:{L_SPL + 64*SPL_S*h + SPL_S*r}")
    I("s_waitcnt lgkmcnt(6)", *OOR); I(*OST)
    I("s_waitcnt lgkmcnt(2)", "v_cmp_ne_u32 vcc, 0, v12", "v_or_b32 v2, v2, v11", "v_or_b32 v3, v3, v11")
    for h in range(2):
        if h: I("s_waitcnt lgkmcnt(0)", "s_nop 0")
        n = NN + 8*h; u = DD + 16*h
        for i in range(8): I(f"v_lshlrev_b32 v{u+2*i}, 16, v{n+i}", f"v_and_b32 v{u+2*i+1}, s27, v{n+i}")
        for i in range(4): I(f"v_pk_add_f32 v[{u+2*i}:{u+2*i+1}], v[{u+2*i}:{u+2*i+1}], v[{u+8+2*i}:{u+8+2*i+1}]")
        for i in range(4): I(f"v_cvt_pk_bf16_f32 v{n+i}, v{u+2*i}, v{u+2*i+1}")
        I(f"buffer_store_dwordx4 v[{n}:{n+3}], v{2+h}, s[8:11], 0 offen{OSTF}")
    I("s_cbranch_vccnz K_SLOW")
    if OPT["diag"]:
        if OPT.get("amp0"): I("s_sub_u32 s94, s94, s96", "s_mul_i32 s94, s94, 10", "s_add_u32 s100, s100, s94")
        I("s_mov_b32 s52, 0", "K_SPIN:", "s_memrealtime s[54:55]", "s_waitcnt lgkmcnt(0)", "s_add_u32 s52, s52, 1", "s_cmp_gt_u32 s52, 20000", "s_cbranch_scc1 K_END",
          "s_sub_u32 s54, s54, s100", "s_cmp_lt_i32 s54, 4000", "s_cbranch_scc1 K_SPIN")
    if OPT["stamp"]:
        I("s_waitcnt vmcnt(0)"); stamp("end")
        I("s_lshl_b32 s3, s2, 2", "s_add_u32 s3, s3, s18", "s_lshl_b32 s3, s3, 7", f"s_add_u32 s3, s3, {STAMP_OFF}", "v_mov_b32 v0, 0")
        for i in range(len(stamps)): I(f"v_mov_b32 v1, s{SLOTS[i]}", f"buffer_store_dword v1, v0, s[12:15], s3 offen offset:{4*i}")
        I("s_lshl_b32 s62, s62, 8", "s_or_b32 s62, s62, s63", "v_mov_b32 v1, s62", "buffer_store_dword v1, v0, s[12:15], s3 offen offset:124")
    I("K_END:", "K_END0:", "s_endpgm")
    I("K_MEA:", f"s_movk_i32 s3, {MS0}", *eadma(190, "s3", 0)); I(*eadma(191, "s3", 1024)); I("s_branch K_MEA_RET")
    CM("rare: empty slots (write zeros) / denominator out of range or non-finite output (redo the bucket on the general path)")
    for tag in ("K_RARE_A", "K_RARE_B"):
        I(f"{tag}:")
        I("s_andn2_b64 vcc, s[42:43], s[38:39]", f"s_cbranch_scc0 {tag}2")
        I(f"v_mov_b32 v{OA+1}, 0", f"v_mov_b32 v{RM}, 1", f"ds_write_b32 v{OA+1}, v{RM} offset:{L_FLAG}")
        I(f"{tag}2:", "s_mov_b64 exec, s[38:39]")
        for i in range(16 if tag == "K_RARE_B" else 32): I(f"v_mov_b32 v{(QQ if tag == 'K_RARE_B' else T0)+i}, 0")
        I("s_mov_b64 exec, -1", f"s_branch {tag}_RET")
    CM("rare: a segment longer than 40 keys or more than 30 overflow units")
    K2, A2, R2, O2 = 176, 180, 184, 188
    I("K_MORE:", f"s_sub_u32 s40, {MS0}, s23", "s_nop 0")
    I("s_mov_b64 exec, 1", f"ds_add_rtn_u32 v{O2}, v24, v29 offset:{L_FLAG+4}", "s_waitcnt lgkmcnt(0)", f"v_cmp_ne_u32 vcc, 0, v{O2}", "s_mov_b64 exec, -1", "s_cbranch_vccnz K_MORE_F")
    compact(36)
    I(*units(K2, O2, O2+2))
    I("s_mov_b32 s20, 1", "s_waitcnt vmcnt(0)")
    phaseB(K2, A2, R2, 40, O2)
    I("s_waitcnt lgkmcnt(0)")
    I(*phaseC(K2, A2, R2))
    I("v_cmp_lt_i32 vcc, 0, v33", "s_cbranch_vccz K_MORE_RET")
    I("K_MORE_F:", f"ds_write_b32 v24, v29 offset:{L_FLAG}", "s_branch K_MORE_RET")
    CM("general path for any input: one edge per column, plain u/(1+2^u), LDS float accumulation")
    I("K_SLOW0:", *tr2)
    I("K_SLOW:")
    I("s_mov_b64 exec, -1", "s_waitcnt vmcnt(0) lgkmcnt(0)", "s_barrier")
    I("v_mbcnt_lo_u32_b32 v6, -1, 0", "v_mbcnt_hi_u32_b32 v6, -1, v6", "s_lshl_b32 s3, s18, 6", "v_add_u32 v7, s3, v6")
    I(*TABA); I(f"v_lshlrev_b32 v3, {lt}, v7", TABLD)
    I("v_lshrrev_b32 v1, 5, v6", "v_lshlrev_b32 v1, 6, v1", "v_and_b32 v6, 31, v6", "v_lshlrev_b32 v2, 4, v7")
    for i in range(4): I(f"v_mov_b32 v{16+i}, 0")
    for i in range(13): I(f"ds_write_b128 v2, v[16:19] offset:{4096*i}")
    I("s_movk_i32 s53, 0x3f80")
    for b in range(2): I(*onehot(EE+2*b, b))
    I("v_mov_b32 v15, 0x3f803f80")
    I("s_mov_b32 s6, s26", "s_mov_b32 s19, 0", "s_waitcnt vmcnt(0) lgkmcnt(0)", "s_barrier")
    I("K_S_SEG:")
    I("v_readlane_b32 s36, v8, s19", "s_lshl_b32 s3, s18, 6", "s_add_u32 s3, s3, s19", f"s_mul_i32 s3, s3, {CHS}", "s_nop 0",
      "s_lshr_b32 s20, s36, 16", "s_and_b32 s36, s36, 0xffff", "s_add_u32 s36, s36, s3")
    I("K_S_TILE:")
    I("s_cmp_le_i32 s20, 0", "s_cbranch_scc1 K_S_NEXT")
    I("v_add_lshl_u32 v2, s36, v6, 2", "v_lshlrev_b32 v3, 1, v2", "v_cmp_gt_i32 s[38:39], s20, v6")
    I("buffer_load_dword v9, v2, s[12:15], s50 offen sc1", f"buffer_load_dwordx2 a[{AEA}:{AEA+1}], v3, s[12:15], s51 offen sc1", "s_waitcnt vmcnt(0)")
    I("s_mov_b32 exec_lo, 0", f"v_accvgpr_write_b32 a{AEA}, v15", f"v_accvgpr_write_b32 a{AEA+1}, 0", "s_mov_b32 exec_lo, -1")
    I(xaddr(9)); I(*[xload(0, k) for k in range(4)])
    I("v_and_b32 v9, 0xffff, v9", "v_lshl_add_u32 v0, v9, 7, v1", "v_subrev_u32 v9, s16, v9"); I(*[xload(2, k) for k in range(4)])
    I("v_mul_u32_u24 v9, 260, v9", "v_lshl_add_u32 v9, v1, 1, v9", "s_waitcnt vmcnt(0)")
    for b in range(4): I(*qchain(NN+16*b, b)); I(*chain(NN+16*b, b, 0, NN+16*b))
    I(*binit(EE)); I("s_nop 15")
    for b in range(4): I(*E0(b))
    for b in range(4): I(*A0(b))
    for b in range(4): I(*R(b))
    for b in range(4): I(*(U(b) + V(b)))
    I("s_nop 1")
    for b in range(4): I(*G(b))
    I("s_nop 15")
    I("s_mov_b64 exec, s[38:39]")
    for i in range(32): I(f"ds_add_f32 v9, v{T0+i} offset:{4*i}")
    I("s_mov_b64 exec, -1", "s_waitcnt lgkmcnt(0)", "s_sub_u32 s20, s20, 32", "s_add_u32 s36, s36, 32", "s_branch K_S_TILE")
    I("K_S_NEXT:", "s_add_u32 s19, s19, 1", "s_cmp_lt_u32 s19, 64", "s_cbranch_scc1 K_S_SEG")
    I("s_barrier", "v_and_b32 v3, 7, v7", "v_lshlrev_b32 v1, 4, v3", "v_lshrrev_b32 v7, 3, v7", "s_mov_b32 s19, 0")
    I("K_S_OUT:")
    I("v_mul_u32_u24 v2, 260, v7", "v_cmp_gt_u32 vcc, s17, v7", "v_lshl_add_u32 v2, v3, 5, v2", "v_add_lshl_u32 v0, s16, v7, 7", "v_cndmask_b32 v0, 2.0, v0, vcc", "v_or_b32 v0, v0, v1")
    for i in range(8): I(f"ds_read_b32 v{16+i}, v2 offset:{4*i}")
    I("s_waitcnt lgkmcnt(0)")
    for i in range(4): I(f"v_cvt_pk_bf16_f32 v{24+i}, v{16+2*i}, v{17+2*i}")
    I("buffer_store_dwordx4 v[24:27], v0, s[8:11], 0 offen", "v_add_u32 v7, 32, v7", "s_waitcnt vmcnt(0)")
    I("s_add_u32 s19, s19, 1", "s_cmp_lt_u32 s19, 7", "s_cbranch_scc1 K_S_OUT", "s_endpgm")

def desc(name, vgpr, accum, sgpr):
    I(".p2align 6", f".amdhsa_kernel {name}")
    for l in (f"next_free_vgpr {vgpr}", f"next_free_sgpr {sgpr}", f"accum_offset {accum}", "group_segment_fixed_size 0", "kernarg_size 88",
              "user_sgpr_count 2", "user_sgpr_kernarg_segment_ptr 1", "system_sgpr_workgroup_id_x 1", "float_denorm_mode_32 3"):
        out.append("  .amdhsa_" + l)
    I(".end_amdhsa_kernel")

hdr = [l.rstrip("\n") for l in open(f"cdna_kernels/{NAME}.s.ref") if l.startswith(";") and "@launch" not in l][:12]
hdr += [f"; @launch grid=(256,1,1) block=(256,1,1) lds={L_SIZE}"]
hdr2 = """;
; One launch, 256 workgroups (one per CU), 4 waves of 512 registers.
;  phase 1  each workgroup counting-sorts 3125 edges by destination bucket (195/196 nodes) and hands the sorted keys
;           and e_attr to the bucket owners through d_ws (write-through stores; d_debug counts the table clears).
;  phase 2  each workgroup builds per-node edge lists in LDS and packs them into 8 groups of 32 columns.
;  main     per column sum_e silu(t_e) is kept as one fraction N/D (one exp2 and three FMAs per element);
;           the second layer is applied once per node piece. Out-of-range fractions fall back to a general path.
; Generated by the author's script (hand-written schedule).""".split("\n")
hdr += hdr2
I('.amdgcn_target "amdgcn-amd-amdhsa--gfx950"', ".text")
kernel()
I('.section .rodata,"a"')
desc(NAME + "_kernel", 512, 256, 102)
if OPT["stamp"]: hdr.append("; stamps: " + " ".join(stamps))
open(sys.argv[1], "w").write("\n".join(hdr + out) + "\n")
```

```python
import sys, struct, math
NAME = "standalone__edge_featured_mpnn_mpnn__graph"
OPT = dict(stamp=0, diag=0, tp=64, ntr=32, ntr0=-1, xpos=0, sl=3, cw=1, ost='sc1', w2q=1, up=4, wpos=2, tw=2, f1pos=0, xa=0, xb=0, ww=1, rm=1, est='d', f3s='E', f3l='a1', xs='b07', es='a33.a43.a54', hs='A', hl=12, fs=4, nr=4, cpos=1, rr=0, f1e=1, slp=4, tl=0, tm=63, wso=0, a1=12, srm=0, bk=0, xt=1, il=1, srl=1, a2=16, a3=16, pb=0)
for a in sys.argv[2:]:
    k, v = a.split("="); OPT[k] = int(v) if v.lstrip("-").isdigit() else v

N_NODES = 50000; E = 800000
CH = 3125; CHS = 3200
TP = OPT['tp']; FL_OFF = 0x40000
TAB_OFF = 0; WP_OFF = 0x48000; KEY_OFF = 0x48000; EA_OFF = 0x368000; STAMP_OFF = 0x1000000
WS_SIZE = 0x10000000 - (OPT['wso'] << 20)
SPIN = 400000
def f32(x): return "0x%08x" % struct.unpack("<I", struct.pack("<f", x))[0]
NLOG2E = f32(-math.log2(math.e)); NLN2 = f32(-math.log(2.0))

out = []
def I(*ls):
    for l in ls:
        for x in l.split("\n"):
            x = x.strip()
            if x: out.append(x if x.endswith(":") or x.startswith(".") else "    " + x)
vm = []
def VM(tag, *ls):
    for l in ls:
        if l.startswith(("buffer_", "global_")): vm.append(tag)
        I(l)
def vw(tag, k=0):
    idx = [i for i, t in enumerate(vm) if t == tag]
    return len(vm) - 1 - idx[-1-k]
def srd(d, lo, hi, size, stride=0):
    I(f"s_mov_b32 s{d}, s{lo}")
    if stride: I(f"s_or_b32 s{d+1}, s{hi}, {hex(stride << 16)}")
    else: I(f"s_mov_b32 s{d+1}, s{hi}")
    I(f"s_mov_b32 s{d+2}, {size}", f"s_mov_b32 s{d+3}, 0x20000")
def scan64(v, fill=None):
    fill = list(fill or [])
    def gap():
        n = 0
        while fill and n < 2: I(fill.pop(0)); n += 1
        if n < 2: I(f"s_nop {1-n}")
    for op in ("row_shr:1", "row_shr:2", "row_shr:4", "row_shr:8"):
        gap(); I(f"v_add_u32_dpp v{v}, v{v}, v{v} {op} row_mask:0xf bank_mask:0xf bound_ctrl:0")
    gap(); I(f"v_add_u32_dpp v{v}, v{v}, v{v} row_bcast:15 row_mask:0xa bank_mask:0xf")
    gap(); I(f"v_add_u32_dpp v{v}, v{v}, v{v} row_bcast:31 row_mask:0xc bank_mask:0xf")
    I(*fill)
SLOTS = list(range(86, 98)) + list(range(64, 84))
stamps = []
def stamp(name, twice=False, lvl=1):
    if OPT.get("amp0") == name: I("s_memrealtime s[96:97]", "s_waitcnt lgkmcnt(0)", "s_nop 0")
    if OPT.get("amp1") == name: I("s_memrealtime s[94:95]", "s_waitcnt lgkmcnt(0)", "s_nop 0")
    if OPT["diag"] == name: I("s_memrealtime s[100:101]", "s_waitcnt lgkmcnt(0)", "s_nop 0")
    if not OPT["stamp"] or lvl > OPT["sl"]: return
    if twice:
        stamps.append(name + "1")
        I(f"s_mov_b32 s{SLOTS[len(stamps)-1]}, s{SLOTS[len(stamps)]}", "s_nop 0")
        name += "2"
    stamps.append(name)
    I(f"{'s_memtime' if OPT['stamp']==1 else 's_memrealtime'} s[98:99]", "s_waitcnt lgkmcnt(0)", f"s_mov_b32 s{SLOTS[len(stamps)-1]}, s98")

CAP = 48; NS = 4 + 4*CAP
STG0 = 2048
L1_KEY = 0; L1_EA = CHS*4; L1_CNT = 38912; L1_BASE = L1_CNT + 1024
L_H1 = STG0 + 5*8192; L_H2 = L_H1 + 256; L_SN = L_H2 + 256; L_FLAG = L_SN + 256; L_TBL = L_H1 + 1024
L_TB2 = L_TBL + 1024; L_SPL = L_TB2 + 1024; SPL_S = 144
L_W = L_SPL; L_S = L_W + 32768; L_W2 = L_S + 4096
L_OST = L_SPL + 128*SPL_S; OST_W = 32*SPL_S
L_X = L_W2 + 16384
L_NODE = L_X + 200*128
L_SIZE = L_NODE + 196*NS
assert L_SIZE <= 163840 and L_SPL + 123*SPL_S <= L_OST and L_OST + 4*OST_W <= L_W2
OSTF = "" if OPT["ost"] == "plain" else " " + OPT["ost"]
T0, T1, EE, NN, DD, QQ = 16, 32, 48, 64, 128, 192
AX, AW1A, AW1B, AW1C, AW2, AEA, AB1 = 0, 48, 112, 176, 184, 248, 254
BIG = 0x1000000

import re
V4 = ("v_exp_f32", "v_rcp_f32", "v_add_f32", "v_mul_f32", "v_add_u32", "v_mov_b32", "v_and_b32", "v_lshrrev_b32", "v_lshlrev_b32", "v_cvt_f32_ubyte2",
      "v_mul_u32_u24", "v_cndmask_b32", "v_readfirstlane_b32", "v_or_b32", "v_sub_u32", "v_xor_b32")
def has_lit(s):
    for t in re.split(r"[,\s]+", s.strip())[1:]:
        if re.fullmatch(r"0x[0-9a-fA-F]+|-?\d+", t):
            v = int(t, 0)
            if not -16 <= v <= 64: return True
    return False
def isz(s):
    s = s.strip(); op = s.split()[0]
    if s.endswith(":") or s.startswith("."): return 0
    if op.startswith(("s_waitcnt", "s_nop", "s_cbranch", "s_branch", "s_movk", "s_barrier")): return 4
    if op.startswith("s_memtime") or op.startswith("s_memrealtime"): return 8
    if op.startswith("s_"): return 8 if has_lit(s) else 4
    if op.startswith("v_cmp") and not op.endswith("_e64"): return (8 if has_lit(s) else 4) if s.split()[1] == "vcc," else 8
    if op == "v_cndmask_b32" and not s.endswith("vcc"): return 8
    if op in V4: return 8 if has_lit(s) else 4
    return 8
def align8(seg):
    off = 0; last4 = None
    seg = list(seg); i = 0
    while i <= len(seg):
        s = seg[i] if i < len(seg) else "v_pk_x"
        z = isz(s)
        if z == 8 and off % 8:
            if last4 is not None:
                op = seg[last4].split()[0]
                seg[last4] = seg[last4].replace(op, op + "_e64", 1); off += 4
            elif i == len(seg) or sum(1 for x in seg[i:i+5] if isz(x) == 8) == 5:
                if i < len(seg): print("pad before", s, file=sys.stderr)
                seg.insert(i, "s_nop 0"); off += 4; i += 1
        if z == 8: last4 = None
        if z == 4 and s.split()[0] in V4 and s.split()[0] != "v_readfirstlane_b32" and off % 8 == 0: last4 = i
        off += z; i += 1
    return seg
def xload(buf, kk): return f"buffer_load_dwordx4 a[{AX+16*buf+4*kk}:{AX+16*buf+4*kk+3}], v0, s[4:7], 0 offen offset:{16*kk}"
def xaddr(rec): return f"v_mad_u32_u16 v0, v{rec}, s59, v1 op_sel:[1,0,0,0]"
def eaddr(d, rec): return f"v_and_b32 v{d}, s49, v{rec}"
def earead(buf, r): return f"ds_read_b64 a[{AEA+2*buf}:{AEA+2*buf+1}], v{r}"
def chain(dst, blk, buf, c):
    L = []
    for kk in range(4):
        w = AW1A + 16*blk + 4*kk; x = AX + 16*buf + 4*kk; ci = c if kk == 0 else dst
        L.append(f"v_mfma_f32_32x32x16_bf16 v[{dst}:{dst+15}], a[{w}:{w+3}], a[{x}:{x+3}], v[{ci}:{ci+15}]")
    return L + [f"v_mfma_f32_32x32x8_bf16 v[{dst}:{dst+15}], a[{AW1C+2*blk}:{AW1C+2*blk+1}], a[{AEA+2*buf}:{AEA+2*buf+1}], v[{dst}:{dst+15}]"]
def qchain(dst, blk, oh, order=(0, 1, 2, 3)):
    L = []
    for kk in order:
        w = AW1B + 16*blk + 4*kk; x = AX + 32 + 4*kk
        L.append(f"v_mfma_f32_32x32x16_bf16 v[{dst}:{dst+15}], a[{w}:{w+3}], a[{x}:{x+3}], " + ("0" if kk == order[0] else f"v[{dst}:{dst+15}]"))
    return L + [f"v_mfma_f32_32x32x8_bf16 v[{dst}:{dst+15}], a[{AB1}:{AB1+1}], v[{oh}:{oh+1}], v[{dst}:{dst+15}]"]
def onehot(r, blk):
    c = "1.0" if blk & 1 else "s53"
    return [f"v_mov_b32 v{r+(blk>>1)}, {c}", f"v_mov_b32 v{r+1-(blk>>1)}, 0"]
def gemm2(blk, hb):
    L = []
    for p in range(2):
        for ob in range(2):
            w = AW2 + 4*((blk*2+p)*2+ob); o = T0 + 16*ob
            L.append(f"v_mfma_f32_32x32x16_bf16 v[{o}:{o+15}], a[{w}:{w+3}], v[{hb+4*p}:{hb+4*p+3}], v[{o}:{o+15}]")
    return L
def weave(ms, fill, cnts, extra=None):
    L = []; fill = list(fill)
    for k, m in enumerate(ms):
        L.append(m)
        if extra: L += extra.get(k, [])
        L += fill[:cnts[k]]; fill = fill[cnts[k]:]
    assert not fill
    return L
def repoll(tag, load, cmp):
    I(f"{tag}:", f"s_mov_b32 s3, {SPIN}", f"{tag}_L:", "s_mov_b64 exec, vcc", f"s_sleep {OPT['slp']}", load, "s_sub_u32 s3, s3, 1", "s_cbranch_scc1 K_END",
      "s_waitcnt vmcnt(0)", cmp, f"s_cbranch_vccnz {tag}_L", "s_mov_b64 exec, -1", f"s_branch {tag}_RET")

def cost(x):
    op = x.split()[0]
    if op.startswith(("v_exp", "v_rcp")): return 8
    if op.startswith("ds_write"): return {"b32": 8, "b64": 12, "b128": 20}[op.split("_")[-1]]
    if op.startswith("buffer_store"): return 12
    return 4
def spread(ms, fill, pre=None, tail=None):
    pre = pre or {}
    L = []; fill = list(fill); n = len(ms)
    if tail is None: tail = 36
    for k, m in enumerate(ms):
        L.append(m); P = pre.get(k, []); L += P
        if k == n-1: break
        room = 32 - (8 if "x16" in m else 4) - sum(cost(x) for x in P)
        if P and P[0].startswith("s_") and "x16" in m: room += 4
        if P and not P[0].startswith(("s_", "v_")) and "x16" not in m: room -= 4
        while fill and room > 0 and sum(map(cost, fill)) - cost(fill[0]) >= tail - sum(cost(x) for x in pre.get(n-1, [])):
            room -= cost(fill[0]); L.append(fill.pop(0))
    return L + fill
def pk3(b, tc):
    n = NN+16*b; d = DD+16*b
    return [f"v_pk_fma_f32 v[{n+2*i}:{n+2*i+1}], v[{n+2*i}:{n+2*i+1}], v[{EE+2*i}:{EE+2*i+1}], v[{n+2*i}:{n+2*i+1}]" for i in range(8)] + \
           [f"v_pk_fma_f32 v[{n+2*i}:{n+2*i+1}], v[{tc+2*i}:{tc+2*i+1}], v[{d+2*i}:{d+2*i+1}], v[{n+2*i}:{n+2*i+1}]" for i in range(8)] + \
           [f"v_pk_fma_f32 v[{d+2*i}:{d+2*i+1}], v[{d+2*i}:{d+2*i+1}], v[{EE+2*i}:{EE+2*i+1}], v[{d+2*i}:{d+2*i+1}]" for i in range(8)]
def exps(tc): return [f"v_exp_f32 v{EE+i}, v{tc+i}" for i in range(16)]
def E0(b): return [f"v_exp_f32 v{DD+16*b+i}, v{NN+16*b+i}" for i in range(16)]
def A0(b): return [f"v_pk_add_f32 v[{DD+16*b+2*i}:{DD+16*b+2*i+1}], v[{DD+16*b+2*i}:{DD+16*b+2*i+1}], 1.0 op_sel_hi:[1,0]" for i in range(8)]
def A1(b): return [f"v_add_f32 v{DD+16*b+i}, 1.0, v{DD+16*b+i}" for i in range(16)]
LB, RM, OA, OH3 = EE, EE+4, EE+5, EE+8
def R(b): return [f"v_rcp_f32 v{DD+16*b+i}, v{DD+16*b+i}" for i in range(16)]
def M(b): return [f"v_min3_f32 v{RM}, v{DD+16*b+2*i}, v{DD+16*b+2*i+1}, " + ("1.0" if b == 0 and i == 0 else f"v{RM}") for i in range(8)]
def U(b): return [f"v_pk_mul_f32 v[{NN+16*b+2*i}:{NN+16*b+2*i+1}], v[{NN+16*b+2*i}:{NN+16*b+2*i+1}], v[{DD+16*b+2*i}:{DD+16*b+2*i+1}]" for i in range(8)]
def pkm(d, a, b): return [f"v_pk_mul_f32 v[{d+2*i}:{d+2*i+1}], v[{a+2*i}:{a+2*i+1}], v[{b+2*i}:{b+2*i+1}]" for i in range(8)]
def XX(b): n = NN+16*b; d = DD+16*b; return pkm(n, n, d+16) + pkm(n+16, n+16, d) + pkm(d, d, d+16)
def UU(b): n = NN+16*b; d = DD+16*b; return pkm(n, n, d) + pkm(n+16, n+16, d)
def V(b): return [f"v_cvt_pk_bf16_f32 v{NN+16*b+i}, v{NN+16*b+2*i}, v{NN+16*b+2*i+1}" for i in range(8)]
def G(b): return gemm2(b, NN+16*b)
def lbinit(r): return [f"v_cvt_f32_ubyte2 v{r+2}, v5", f"v_mov_b32 v{r+1}, 0", f"v_mov_b32 v{r+3}, 0", f"v_lshrrev_b32 v{r}, 16, v{r+2}"]
def binit(r): return [f"v_mfma_f32_32x32x8_bf16 v[{T0+16*ob}:{T0+16*ob+15}], v[14:15], v[{r+2*ob}:{r+2*ob+1}], 0" for ob in range(2)]
def dec2(lb):
    return [f"v_lshrrev_b32 v{OA}, 24, v5", f"v_and_b32 v{OA+2}, s54, v5", f"v_cmp_eq_u32 vcc, s54, v{OA}", f"v_mad_u32_u24 v{OA}, v{OA}, s55, v1",
            f"v_add_lshl_u32 v{OA+2}, s16, v{OA+2}, 7", f"v_cndmask_b32 v{OA}, v{OA}, v8, vcc", f"v_cndmask_b32 v{OA+2}, 2.0, v{OA+2}, vcc",
            f"v_cmp_eq_u32 s[38:39], 0, v{lb+2}"]
SCL = [f"v_pk_mul_f32 v[{T0+2*i}:{T0+2*i+1}], v[{T0+2*i}:{T0+2*i+1}], s[24:25]" for i in range(16)]
def check(tag):
    return [f"v_cmp_class_f32 s[40:41], v{T0}, s58", f"v_cmp_lt_f32 vcc, s57, v{RM}", "s_nop 0", "s_andn2_b64 vcc, vcc, s[40:41]", "s_andn2_b64 s[40:41], vcc, s[38:39]",
            "s_cmp_eq_u64 s[40:41], -1", f"s_cbranch_scc0 {tag}", f"{tag}_RET:"]
OCV = [f"v_cvt_pk_bf16_f32 v{T0+i}, v{T0+2*i}, v{T0+2*i+1}" for i in range(16)]
OCON = ["v_mbcnt_lo_u32_b32 v11, -1, 0", "v_mbcnt_hi_u32_b32 v11, -1, v11", "v_and_or_b32 v8, v11, 31, s45", "v_lshrrev_b32 v9, 3, v11", "v_mad_u32_u24 v8, v8, s55, v1",
        "v_mul_u32_u24 v9, s47, v9", "v_and_b32 v11, 7, v11", "v_add_u32 v9, s46, v9", "v_lshlrev_b32 v11, 4, v11", "v_add_u32 v10, v9, v11"]
OIW = f"ds_write_b32 v8, v{OA+2} offset:{L_SPL+64}"
OSW = [f"ds_write_b128 v{OA}, v[{T0+4*k}:{T0+4*k+3}] offset:{L_SPL+16*k}" for k in range(4)]
OSR = [f"ds_read2_b32 v[{EE+2*k}:{EE+2*k+1}], v9 offset0:{32+72*k} offset1:{68+72*k}" for k in range(2)] + \
      [f"ds_read_b128 v[{T1+4*j}:{T1+4*j+3}], v10 offset:{144*j}" for j in range(4)]
OOR = [f"v_or_b32 v{EE+j}, v{EE+j}, v11" for j in range(4)]
OST = [f"buffer_store_dwordx4 v[{T1+4*j}:{T1+4*j+3}], v{EE+j}, s[8:11], 0 offen{OSTF}" for j in range(4)]
def xrow(d, e, t, base): return [f"v_and_b32 v{d}, s54, v{e}", f"v_and_b32 v{t}, 7, v{e}", f"v_lshl_add_u32 v{d}, v{d}, 7, v{base}", f"v_lshlrev_b32 v{t}, 4, v{t}", f"v_xor_b32 v{d}, v{d}, v{t}"]
def xrd(r): return [f"v_xor_b32 v{r[k]}, {16*k}, v{r[0]}" for k in range(1, 4)], [f"ds_read_b128 a[{AX+32+4*k}:{AX+35+4*k}], v{r[k]}" for k in range(4)]
def recs(d, p): return [f"ds_read2_b32 v[{d}:{d+1}], v{p} offset0:1 offset1:2", f"ds_read2_b32 v[{d+2}:{d+3}], v{p} offset0:3 offset1:4"]
LSET = ["s_max_u32 s20, s20, 2", "s_sub_u32 s37, s20, 3", "s_sub_u32 s20, s20, 1", "s_mov_b32 s19, 1"]

FI, FR = 192, 208
def kernel():
    K = NAME + "_kernel"
    lt = TP.bit_length() - 1
    assert L_W % 256 == 0 and L_X % 128 == 0
    I(".p2align 12", f".globl {K}", ".p2align 8", f".type {K},@function", f"{K}:")
    I("s_cmp_ge_u32 s2, 256", "s_cbranch_scc1 K_END0")
    stamp("start")
    I("s_load_dwordx16 s[64:79], s[0:1], 0", "s_load_dwordx4 s[80:83], s[0:1], 64", "s_load_dwordx2 s[12:13], s[0:1], 80")
    DST, SRC, EAR, AD, RK, P8, CP, WR = 64, 80, 96, 128, 144, 160, 176, 208
    if OPT["cw"]:
        I("s_getpc_b64 s[62:63]", "K_PC:", "s_bfe_u32 s3, s2, 0x30003", "v_and_b32 v2, 0xf8, v0", "v_add_lshl_u32 v41, v2, s3, 7",
          "v_min_u32 v2, K_SLOW0-K_PC, v41", "global_load_dword v10, v2, s[62:63]")
    I("v_lshrrev_b32 v2, 6, v0", "v_and_b32 v6, 63, v0", "v_lshlrev_b32 v17, 2, v0", "v_readfirstlane_b32 s18, v2")
    I("v_mov_b32 v24, 0", f"ds_write_b32 v17, v24 offset:{L1_CNT}", "v_lshlrev_b32 v16, 4, v0", "v_lshlrev_b32 v4, 4, v6")
    I("s_and_b32 s84, s2, 7", "s_lshl_b32 s84, s84, 5", "s_lshr_b32 s3, s2, 3", "s_add_u32 s84, s84, s3")
    CID = "s84" if OPT["rm"] else "s2"; RID = "s84" if OPT["rr"] else "s2"
    I(f"s_mul_i32 s60, {CID}, {CH*4}", "s_mov_b32 s15, 0x20000", f"s_mov_b32 s14, {WS_SIZE}", f"s_mov_b32 s30, {E*4}", "s_mov_b32 s34, s30")
    for r in (31, 35, 43, 47, 51, 55, 7, 11): I(f"s_mov_b32 s{r}, s15")
    I(f"s_mov_b32 s42, {132*256}", f"s_movk_i32 s46, {128*128}", f"s_mov_b32 s54, {E*8}", f"s_mov_b32 s26, {N_NODES*128}", "s_mov_b32 s6, s26", "s_mov_b32 s10, s26")
    if OPT["il"]:
        I(f"s_lshr_b32 s19, {CID}, 5", f"s_mul_i32 s19, s19, {32*CH*4}", f"s_and_b32 s20, {CID}, 31", f"s_mul_i32 s21, s20, {(CH-3072)*4}", "s_add_u32 s21, s21, s19",
          f"s_add_u32 s21, s21, {3*131072 - 768}", "s_lshl_b32 s20, s20, 12", "s_add_u32 s60, s19, s20", "s_add_u32 s19, s60, 0x20000", "s_add_u32 s20, s60, 0x40000")
    else:
        I("s_add_u32 s19, s60, 4096", "s_add_u32 s20, s60, 8192", f"s_add_u32 s21, s60, {(3072-192)*4}")
    I("v_mov_b32 v20, -1", "v_mov_b32 v21, -1", "v_mov_b32 v22, -1", "v_mov_b32 v23, -1", "s_movk_i32 s58, 256", "s_mov_b32 s59, s15")
    NR = OPT["nr"]; NC = 1 << (NR-2)
    I(f"s_and_b32 s37, {CID}, {(1 << NR) - 1}", f"s_lshl_b32 s61, s18, {NR-2}", f"s_add_u32 s61, s61, {CID}", f"s_lshl_b32 s36, s61, {OPT['fs']}", f"s_add_u32 s36, s36, {FL_OFF}", "s_lshl_b32 s61, s61, 10")
    I("s_mul_i32 s16, s84, 12800051", "s_add_u32 s16, s16, 0xffff", "s_add_u32 s17, s16, 12800051", "s_lshr_b32 s16, s16, 16", "s_lshr_b32 s17, s17, 16",
      f"s_min_u32 s17, s17, {N_NODES}", "s_sub_u32 s17, s17, s16", "s_mov_b32 s85, 85899")
    I("v_mov_b32 v29, 1", "v_lshlrev_b32 v18, 5, v0", "v_lshlrev_b32 v19, 3, v0", "v_lshlrev_b32 v43, 2, v6")
    I("v_subrev_u32 v45, 192, v0", f"v_cmp_gt_u32 vcc, {CH-3072}, v45", f"v_mov_b32 v45, {hex(BIG)}", "s_mov_b32 s39, 0x05040100", "v_cndmask_b32 v45, v45, v24, vcc")
    I(f"v_lshrrev_b32 v42, {lt-4}, v6", f"v_lshlrev_b32 v42, {lt+8}, v42", f"v_and_b32 v37, {TP-1}, v4", "v_add_u32 v42, v42, v37")
    I("v_lshrrev_b32 v1, 5, v6", "v_bfe_u32 v52, v6, 2, 2", "v_and_b32 v53, 3, v6", "v_bfe_u32 v54, v6, 4, 1",
      "v_lshlrev_b32 v55, 3, v53", "v_lshl_add_u32 v55, v54, 5, v55",
      "v_lshl_add_u32 v56, v52, 8, v55", "v_lshl_add_u32 v60, v1, 10, v56", f"v_add_u32 v60, {L_S}, v60",
      "v_lshl_add_u32 v56, v1, 13, v56", "v_lshl_add_u32 v56, v52, 6, v56", f"v_add_u32 v56, {L_W}, v56",
      "v_xor_b32 v57, 64, v56", "v_xor_b32 v58, 0x80, v56", "v_xor_b32 v59, 0xc0, v56",
      "v_lshl_add_u32 v61, v52, 6, v55", "v_lshl_add_u32 v61, v1, 8, v61", f"v_add_u32 v61, {L_S + 2048}, v61",
      "v_and_b32 v55, 1, v53", "v_lshlrev_b32 v55, 6, v55", "v_lshl_add_u32 v55, v54, 4, v55", "v_lshrrev_b32 v53, 1, v53", "v_lshl_add_u32 v55, v53, 3, v55",
      "v_lshl_add_u32 v62, v52, 7, v55", "v_lshl_add_u32 v62, v1, 9, v62", f"v_add_u32 v62, {L_W2}, v62",
      "v_and_b32 v52, 1, v52", "v_lshl_add_u32 v63, v52, 5, v55", "v_lshl_add_u32 v63, v1, 8, v63", f"v_add_u32 v63, {L_S + 2560}, v63",
      "v_lshlrev_b32 v1, 6, v1")
    I("s_waitcnt lgkmcnt(0)")
    if OPT.get("probe"):
        base = {"x": 64, "ea": 66, "src": 68, "dst": 70, "out": 80, "ws": 12, "none": 64}[OPT["probe"]]
        I(f"s_mov_b64 s[28:29], s[{base}:{base+1}]", "s_memrealtime s[96:97]", "s_waitcnt lgkmcnt(0)")
        if OPT["probe"] != "none":
            for i, r in enumerate(("s60", "s19", "s20")): I(f"buffer_load_dwordx4 v[{DST+4*i}:{DST+4*i+3}], v16, s[28:31], {r} offen")
        I("s_waitcnt vmcnt(0)", "s_memrealtime s[94:95]", "s_waitcnt lgkmcnt(0)", "s_sub_u32 s94, s94, s96", "s_mul_i32 s94, s94, 10", "s_add_u32 s100, s100, s94", "s_cmp_lg_u32 s61, 1")
    I("s_mov_b64 s[28:29], s[70:71]")
    if OPT["wso"]: I(f"s_add_u32 s12, s12, {OPT['wso'] << 20}", "s_addc_u32 s13, s13, 0", "s_cmp_lg_u32 s61, 1")
    so = ("s60", "s19", "s20")
    def dstld():
        for i in range(3): I(f"buffer_load_dwordx4 v[{DST+4*i}:{DST+4*i+3}], v16, s[28:31], {so[i]} offen")
        I(f"buffer_load_dword v{DST+12}, v17, s[28:31], s21 offen", "s_mov_b64 s[32:33], s[68:69]")
    def clears():
        I("s_cmp_lg_u32 s37, 0", "s_cbranch_scc1 R_NOT1")
        for i in range(NC): I(*([f"s_add_u32 s61, s61, 4096"] if i and i % 4 == 0 else []), f"buffer_store_dwordx4 v[20:23], v4, s[12:15], s61 offen offset:{1024*(i&3)} sc1")
        I(f"s_mov_b64 exec, {hex((1 << (NC << (OPT['fs']-4))) - 1)}", "buffer_store_dwordx4 v[20:23], v4, s[12:15], s36 offen sc1", "s_mov_b64 exec, -1", "R_NOT1:")
    if OPT["cpos"] == 0: clears()
    dstld()
    if OPT["cpos"] == 1: clears()
    stamp("issued", lvl=2)
    def tlbwarm():
        I(f"v_and_b32 v40, {OPT['tm']}, v6", "s_cmp_eq_u32 s18, 1", "s_cbranch_scc1 T_1", "s_cmp_eq_u32 s18, 2", "s_cbranch_scc1 T_2", "s_cmp_eq_u32 s18, 3", "s_cbranch_scc1 T_3")
        I("v_mul_u32_u24 v40, 100000, v40", "global_load_dword v10, v40, s[64:65]", "global_load_dword v10, v24, s[72:73]", "s_branch T_E")
        I("T_1:", f"v_mul_u32_u24 v40, {4*CHS*8}, v40", f"v_add_u32 v40, {EA_OFF + 3*CHS*8 + CHS*8 - 128}, v40", "global_load_dword v10, v40, s[12:13]", "global_load_dword v10, v24, s[82:83]", "s_branch T_E")
        I("T_2:", f"v_mul_u32_u24 v40, {4*CHS*4}, v40", f"v_add_u32 v40, {KEY_OFF + CHS*4 - 128}, v40", "global_load_dword v10, v40, s[12:13]", "global_load_dword v10, v24, s[76:77]", "s_branch T_E")
        I("T_3:", "v_and_b32 v40, 1, v6", "v_mul_u32_u24 v40, 194, v40", "v_add_lshl_u32 v40, s16, v40, 7", "global_load_dword v10, v24, s[74:75]", "global_load_dword v10, v24, s[78:79]", "global_load_dword v10, v40, s[80:81]", "T_E:")
        vm.extend(["tl", "tl"])
    vm.append("dst")
    def wwarm():
        I("s_mov_b64 s[40:41], s[72:73]", "s_mov_b64 s[44:45], s[76:77]")
        I("s_cmp_eq_u32 s18, 0", "s_cselect_b64 s[48:49], s[74:75], s[78:79]", "s_cselect_b32 s50, 2, 1", "s_lshl_b32 s50, s50, 7", "s_mov_b32 s3, 0x8000")
        if OPT["ww"]: VM("ww", "buffer_load_dword v10, v41, s[40:43], 0 offen", "buffer_load_dword v10, v41, s[44:47], 0 offen")
        VM("ws", f"buffer_load_dword v{WR+32}, v17, s[40:43], s3 offen", f"buffer_load_dword v{WR+33}, v43, s[48:51], 0 offen")
    if OPT["ww"] == 1: wwarm()
    if OPT["tl"] == 3: tlbwarm()
    for i in range(3): VM("src", f"buffer_load_dwordx4 v[{SRC+4*i}:{SRC+4*i+3}], v16, s[32:35], {so[i]} offen")
    VM("src", f"buffer_load_dword v{SRC+12}, v17, s[32:35], s21 offen", "s_barrier")
    if OPT["tl"] == 1: tlbwarm()
    if OPT["ww"] != 1: wwarm()
    I("s_mov_b64 s[52:53], s[66:67]")
    for r in ("s60", "s19", "s20", "s21"): I(f"s_lshl_b32 {r}, {r}, 1")
    el = []
    for i in range(3): el += [f"buffer_load_dwordx4 v[{EAR+8*i}:{EAR+8*i+3}], v18, s[52:55], {so[i]} offen", f"buffer_load_dwordx4 v[{EAR+8*i+4}:{EAR+8*i+7}], v18, s[52:55], {so[i]} offen offset:16"]
    el.append(f"buffer_load_dwordx2 v[{EAR+24}:{EAR+25}], v19, s[52:55], s21 offen")
    up = OPT["up"]
    I("v_mov_b32 v25, 0", "v_mov_b32 v26, 0", "v_mov_b32 v27, 0", f"v_add_u32 v5, {L_NODE}, v16")
    for i in range(10): VM("ea", f"ds_write_b128 v5, v[24:27] offset:{4096*i}", *(el[i-10+up:i-9+up] if i >= 10-up else []))
    if OPT["tl"] == 2: tlbwarm()
    I("v_mov_b32 v28, 0x7a0000ff",
      "v_cmp_eq_u32 vcc, 2, v2", f"ds_write_b32 v17, v28 offset:{L_TBL}", f"v_mov_b32 v28, {hex(BIG)}", "v_cndmask_b32 v3, v24, v28, vcc",
      f"ds_write_b32 v17, v3 offset:{L_H1}", f"ds_write_b32 v17, v28 offset:{L_TB2}")
    I("v_and_b32 v3, 0x7c, v43", f"ds_write_b32 v3, v20 offset:{L1_KEY + CH*4}")
    I(
      "s_mov_b64 s[4:5], s[64:65]", "s_mov_b64 s[8:9], s[80:81]")
    I(f"s_mul_i32 s3, {CID}, {CHS*4}", f"s_add_u32 s3, s3, {KEY_OFF}", "s_add_u32 s28, s12, s3", "s_addc_u32 s29, s13, 0", f"s_movk_i32 s30, 12672")
    I(f"s_mul_i32 s3, {CID}, {CHS*8}", f"s_add_u32 s3, s3, {EA_OFF}", "s_add_u32 s32, s12, s3", "s_addc_u32 s33, s13, 0", f"s_movk_i32 s34, 25216")
    I("s_lshl_b32 s38, s18, 12", f"s_add_u32 m0, s38, {L_W2}", "s_mov_b64 s[56:57], s[82:83]")
    if OPT["cpos"] == 1: I("s_cmp_lg_u32 s37, 0", f"s_waitcnt vmcnt({vw('dst')+NC+1})", "s_cbranch_scc0 R_W")
    I(f"s_waitcnt vmcnt({vw('dst')})", "R_W:")
    stamp("dst", lvl=2)
    for i in range(13):
        I(f"v_mul_u32_u24 v{AD+i}, s85, v{DST+i}", f"v_lshlrev_b32_sdwa v{AD+i}, 2, v{AD+i} dst_sel:DWORD dst_unused:UNUSED_PAD src0_sel:DWORD src1_sel:BYTE_3")
        if i == 12: I(f"v_or_b32 v{AD+i}, v45, v{AD+i}")
        I(f"ds_add_rtn_u32 v{RK+i}, v{AD+i}, v29 offset:{L1_CNT}")
        if i >= 6 + up: VM("ea", el[i-6])
    XT = ["v_lshrrev_b32 v11, 3, v0", "v_min_u32 v11, 24, v11", "v_lshlrev_b32 v11, 10, v11", "s_lshl_b32 s3, s16, 7", "buffer_load_dword v10, v11, s[4:7], s3 offen"]
    if OPT["xt"] == 1: VM("xt", *XT)
    I("s_lshl2_add_u32 s37, s37, s18", "s_cmp_eq_u32 s18, 0", "s_waitcnt " + (f"vmcnt({vw('dst')}) " if OPT["hs"] == "A" else "") + "lgkmcnt(0)", "s_barrier")
    stamp("barA", lvl=3)
    HINT = ["s_cmp_lg_u32 s37, 3", "s_cbranch_scc1 K_NOH", f"s_lshr_b32 s3, {CID}, {NR}", "s_and_b32 s3, s3, 3", "s_lshl_b32 s3, s3, 6",
            "s_mov_b64 exec, 1", "buffer_atomic_add v29, v24, s[56:59], s3 offen", "s_mov_b64 exec, -1", "K_NOH:"]
    perm = [f"v_perm_b32 v{DST+i}, v{SRC+i}, v{DST+i}, s39" for i in range(13)]
    I("s_cbranch_scc1 K_SCAN")
    I("s_cmp_eq_u32 s18, 1", "s_cbranch_scc1 PG1", "s_cmp_eq_u32 s18, 2", "s_cbranch_scc1 PG2", *(HINT if OPT["hs"] == "A" else []), "s_branch PG3")
    I("K_SCAN:", f"ds_read_b128 v[32:35], v4 offset:{L1_CNT}", "s_waitcnt lgkmcnt(0)")
    I("v_add_u32 v38, v32, v33", "v_add_u32 v39, v38, v34", "v_add_u32 v41, v39, v35", "v_mov_b32 v36, v41")
    scan64(36)
    I("v_sub_u32 v36, v36, v41", "v_add_u32 v37, v36, v32", "v_add_u32 v38, v36, v38", "v_add_u32 v39, v36, v39")
    I(f"ds_write_b128 v4, v[36:39] offset:{L1_BASE}")
    for i in range(4): I(f"v_lshl_or_b32 v{32+i}, v{32+i}, 16, v{36+i}")
    I("s_waitcnt lgkmcnt(0)", "K_WARM_RET:", "K_NOSCAN:", *([f"s_waitcnt vmcnt({vw('dst')})"] if OPT["hs"] == "B" else []), "s_barrier")
    stamp("barB", lvl=3)
    wl = [[f"s_movk_i32 s3, {4096*i}", f"buffer_load_dwordx4 v[{WR+4*i}:{WR+4*i+3}], v16, s[40:43], s3 offen"] for i in range(8)]
    wl += [[f"buffer_load_dwordx4 v4, s[44:47], s38 offen offset:{1024*i} lds"] for i in range(4)]
    nw = {0: (8, 0, 4), 1: (4, 4, 4), 2: (0, 8, 4), 3: (0, 12, 0), 4: (4, 8, 0)}[OPT["wpos"]]
    for i in range(13): I(f"ds_read_b32 v{AD+i}, v{AD+i} offset:{L1_BASE}")
    if OPT["hs"] == "A": I("s_cmp_lg_u32 s37, 3", f"s_waitcnt vmcnt({vw('src')+1})", "s_cbranch_scc0 K_SW")
    I(f"s_waitcnt vmcnt({vw('src')})", "K_SW:", *perm)
    if OPT["hs"] == "B": I(*HINT)
    for i in range(13):
        if i in (0, 6): I(f"s_waitcnt lgkmcnt({7 if i == 0 else 6})")
        I(f"v_add_lshl_u32 v{AD+i}, v{AD+i}, v{RK+i}, 2")
        if i == 12: I(f"v_or_b32 v{AD+i}, v45, v{AD+i}")
        I(f"ds_write_b32 v{AD+i}, v{DST+i} offset:{L1_KEY}")
        if i >= 13 - nw[0]: VM("w", *wl.pop(0))
    I("s_waitcnt lgkmcnt(0)", "s_barrier")
    stamp("barC", lvl=2)
    if OPT["hs"] == "C": I(*HINT)
    for i in range(4): I(f"ds_read_b128 v[{CP+4*i}:{CP+4*i+3}], v16 offset:{L1_KEY+4096*i}")
    for i in range(13): I(f"v_lshlrev_b32 v{P8+i}, 1, v{AD+i}")
    for i in range(4): VM("kst", f"s_movk_i32 s3, {4096*i}", f"s_waitcnt lgkmcnt({3-i})", f"buffer_store_dwordx4 v[{CP+4*i}:{CP+4*i+3}], v16, s[28:31], s3 offen sc1")
    TABLD = "buffer_load_dword v8, v3, s[12:15], s36 offen sc1"
    TABCMP = ["v_cmp_eq_u32 vcc, -1, v8"]
    TABA = [f"s_lshr_b32 s36, s84, {lt-2}", f"s_lshl_b32 s36, s36, {lt+8}", f"s_and_b32 s3, s84, {TP//4-1}", "s_lshl2_add_u32 s36, s3, s36"]
    I(*TABA); I(f"v_lshlrev_b32 v3, {lt}, v0")
    I(f"s_lshl_b32 s60, {CID}, {lt}", f"s_lshl_b32 s61, {CID}, {OPT['fs']}", f"v_lshlrev_b32 v41, {OPT['fs']}, v0", f"s_add_u32 s61, s61, {FL_OFF}")
    I(f"s_mov_b32 s24, {NLOG2E}", f"s_mov_b32 s25, {NLOG2E}", "s_mov_b32 s27, 0xffff0000", "v_and_b32 v5, 0x300, v16", "v_lshrrev_b32 v5, 2, v5", "v_xor_b32 v5, v5, v16", f"v_add_u32 v5, {L_W}, v5")
    I(f"v_lshl_add_u32 v7, v2, 8, v17", f"v_add_u32 v7, {L_S + 2048}, v7", f"v_add_u32 v9, {L_S}, v17")
    I("s_lshl_b32 s23, s18, 11", "v_and_b32 v48, 0x380, v4", "v_bfe_u32 v49, v6, 2, 1", "v_lshl_add_u32 v48, v49, 10, v48", "v_and_b32 v30, 48, v4",
      "v_lshl_add_u32 v48, v30, 1, v48", "v_add_u32 v48, s23, v48", "v_add_u32 v49, 8, v48", "v_add_u32 v50, 16, v48", "v_add_u32 v51, 24, v48",
      f"s_mul_i32 s22, s16, {NS}", f"s_sub_u32 s22, {L_NODE}, s22", f"v_mov_b32 v28, {NS}",
      "v_and_or_b32 v31, v4, 16, 2.0", f"v_mul_u32_u24 v44, {CHS}, v0", "v_and_b32 v26, 0x70, v4", "v_add_u32 v27, 0x80000000, v30",
      "v_lshrrev_b32 v46, 3, v0", "v_lshlrev_b32 v47, 4, v46", "v_xor_b32 v47, v47, v4", "v_and_b32 v47, 0x70, v47", "v_add_u32 v46, s16, v46", "v_lshl_add_u32 v55, v46, 7, v47",
      "s_lshl_b32 s62, s18, 10", f"s_add_u32 s62, s62, {L_X}", "s_cmp_eq_u32 s18, 0", "s_mov_b32 s63, 0x3f000", f"s_cselect_b32 s63, {L_X + 6*4096}, s63")
    HLD = "buffer_load_dword v20, v43, s[56:59], s37 offen sc1"
    HCMP = "v_cmp_lt_u32 vcc, v20, v22"
    I("v_and_b32 v22, 0xcf, v0", "v_cmp_eq_u32 vcc, 0x80, v22", "s_cmp_eq_u32 s18, 2", "s_cselect_b32 s37, 0, 0x1000", f"v_cndmask_b32_e64 v22, 0, {64 >> NR}, vcc")
    if OPT["xt"] == 2: VM("xt", *XT)
    stamp("kout", lvl=3)
    xd = [[f"s_add_u32 m0, s62, {4096*i}" if i < 6 else "s_mov_b32 m0, s63", "v_add_u32 v55, 0x1000, v55" if i else "s_nop 0",
           "buffer_load_dwordx4 v55, s[4:7], 0 offen lds"] for i in range(7)]
    KEY, O4, O8 = 64, 170, 160
    F3LD = "buffer_load_dword v9, v41, s[12:15], s52 offen sc1"
    def eadma(o, base, imm): return [f"s_add_u32 m0, {base}, {imm}", "s_nop 0", f"buffer_load_dwordx4 v{o}, s[12:15], s51 offen sc1 lds"]
    ea = [eadma(O8+n, "s23", STG0 + 8192*(n>>1) + 1024*(n&1)) for n in range(10)]
    def plan(p): return {x[:-1]: int(x[-1], 16) for x in p.split(".")}
    xs, es = plan(OPT["xs"]), plan(OPT["es"])
    assert sum(xs.values()) == 7 and sum(es.values()) == 10
    def hook(h):
        if OPT["est"] == h:
            for i in range(7): VM("est", f"s_movk_i32 s3, {4096*i}", *([f"s_waitcnt lgkmcnt({6-i})"] if h == "d" else []), f"buffer_store_dwordx4 v[{CP+4*i}:{CP+4*i+3}], v16, s[32:35], s3 offen sc1")
        if OPT["f3l"] == h: VM("f3", F3LD)
        for k in range(xs.get(h, 0)): VM("x", *xd.pop(0))
        if es.get(h) and len(ea) == 10:
            I(f"s_waitcnt vmcnt({vw('f3')})", "v_cmp_eq_u32 vcc, -1, v9", "s_cbranch_vccnz K_F3", "K_F3_RET:", "s_cmp_lg_u32 s20, 0", "s_cbranch_scc1 K_MEA", "K_MEA_RET:")
            stamp("f3", lvl=3)
        for k in range(es.get(h, 0)): VM("eb", *ea.pop(0))
    def bar(n, extra=None):
        w = [vw(t) for t in ([extra] if extra else []) + (["est"] if str(OPT["f3s"]) == n else [])]
        if str(OPT["f3s"]) == n: I("s_cmp_lg_u32 s18, 1")
        I("s_waitcnt " + (f"vmcnt({min(w)}) " if w else "") + "lgkmcnt(0)", "s_barrier")
        if str(OPT["f3s"]) == n: I("s_cbranch_scc1 K_NOF3", "s_mov_b64 exec, 1", "buffer_store_dword v24, v24, s[12:15], s61 offen sc1", "s_mov_b64 exec, -1", "K_NOF3:")
    for i in range(13):
        if i in (0, 4, 8): I(f"s_waitcnt vmcnt({vw('ea', {0: 5, 4: 3, 8: 0}[i])})")
        if i == 8: stamp("ea_in", lvl=3)
        if i == OPT["hl"] and OPT["hs"] != "N": VM("kst", HLD)
        I(f"ds_write_b64 v{P8+i}, v[{EAR+2*i}:{EAR+2*i+1}] offset:{L1_EA}")
        if i >= 13 - nw[1]: VM("w", *wl.pop(0))
    hook("sc")
    I(f"s_waitcnt vmcnt({vw('kst')})")
    if OPT["hs"] != "N": I(HCMP, "s_cbranch_vccnz K_H", "K_H_RET:")
    I("s_cmp_lg_u32 s18, 0", "s_waitcnt lgkmcnt(0)", "s_barrier")
    stamp("barD", lvl=2)
    I("s_cbranch_scc1 K_NOTAB", "buffer_store_dwordx4 v[32:35], v42, s[12:15], s60 offen sc1", "K_NOTAB:")
    for i in range(7): I(f"ds_read_b128 v[{CP+4*i}:{CP+4*i+3}], v16 offset:{L1_EA+4096*i}")
    I("s_branch PG1E")
    if OPT["hs"] != "N": repoll("K_H", HLD, HCMP)
    I(".p2align 12", "PG1:", "s_branch K_WARM_RET", "s_nop 0", "PG1E:")
    hook("d")
    I(f"s_add_u32 m0, s38, {L_W2}")
    while len(wl) > 4: VM("w", *wl.pop(0))
    if OPT["xt"] == 3: VM("xt", *XT)
    stamp("eaout", lvl=3)
    I("s_cmp_lg_u32 s18, 0", f"s_waitcnt vmcnt({vw('w') + (1 if nw[0]+nw[1] >= 8 else 0)})", "s_cbranch_scc0 K_WW", f"s_waitcnt vmcnt({vw('w')})", "K_WW:", ".p2align 3")
    for i in range(34):
        t = 64 + 2*(i % 4) if i < 32 else 72 + 2*(i-32)
        I(f"v_lshlrev_b32 v{t}, 16, v{WR+i}", f"v_and_b32 v{t+1}, s27, v{WR+i}", f"v_pk_mul_f32 v[{t}:{t+1}], v[{t}:{t+1}], s[24:25]", f"v_cvt_pk_bf16_f32 v{WR+i}, v{t}, v{t+1}")
        if i % 4 == 3: I(f"ds_write_b128 v5, v[{WR+i-3}:{WR+i}] offset:{1024*(i-3)}")
        if i in (17, 21, 25, 29) and wl: VM("w2", *wl.pop(0))
    I(f"ds_write_b32 v9, v{WR+32}", f"ds_write_b32 v7, v{WR+33}")
    for i in (32, 33):
        t = 72 + 2*(i-32)
        I(f"v_lshlrev_b32 v64, 16, v{WR+i}", f"v_and_b32 v65, s27, v{WR+i}", f"v_sub_f32 v64, v{t}, v64", f"v_sub_f32 v65, v{t+1}, v65", f"v_cvt_pk_bf16_f32 v{66+i-32}, v64, v65")
    I("ds_write_b32 v9, v66 offset:1024", "ds_write_b32 v7, v67 offset:256")
    I(*[f"s_mov_b32 s{40+i}, {STG0 + 8192*i}" for i in range(5)])
    I(f"s_mov_b32 s24, {NLN2}", f"s_mov_b32 s25, {NLN2}", f"s_mov_b32 s50, {KEY_OFF}", f"s_mov_b32 s51, {EA_OFF}", f"s_mov_b32 s52, {FL_OFF}")
    for w in range(3): I(f"s_cmp_eq_u32 s18, {w+1}", f"s_cbranch_scc1 PG{w+4}")
    I("K_WARM_RET2:")
    stamp("wdone", lvl=3)
    tr = []
    for f in range(16):
        for jh in range(2): tr.append(f"ds_read_b64_tr_b16 a[{AW2+4*f+2*jh}:{AW2+4*f+2*jh+1}], v62 offset:{(16*(f>>1) + 8*jh)*128 + 32*(f&1)}")
    for f in range(32):
        for jh in range(2): tr.append(f"ds_read_b64_tr_b16 a[{AW1A+4*f+2*jh}:{AW1A+4*f+2*jh+1}], v{56+((f>>2)&3)} offset:{(64*(f>>4) + 8*(f&3) + 4*jh)*256}")
    for b in range(4): tr.append(f"ds_read_b64_tr_b16 a[{AW1C+2*b}:{AW1C+2*b+1}], v60 offset:{64*b}")
    tr += [f"ds_read_b64_tr_b16 a[{AB1}:{AB1+1}], v61", "ds_read_b64_tr_b16 v[14:15], v63"]
    tr2, tr = tr[:32], tr[32:]
    if OPT["est"] == "d": I(f"s_waitcnt vmcnt({vw('est', OPT['tw'])})")
    if OPT["ntr0"] < 0: VM("tab", TABLD)
    hook("w")
    bar("E")
    stamp("barE", lvl=2)
    if OPT["ntr0"] >= 0: I(*tr[:OPT["ntr0"]]); tr = tr[OPT["ntr0"]:]; VM("tab", TABLD)
    I(*tr[:OPT["ntr"]]); tr = tr[OPT["ntr"]:]
    if str(OPT["f3s"]) == "E" and OPT["ntr0"] < 0: I(f"s_waitcnt vmcnt({vw('tab')+1})", "s_cbranch_scc0 K_TW")
    I(f"s_waitcnt vmcnt({vw('tab')})", "K_TW:")
    I(*TABCMP); I("s_cbranch_vccnz K_TAB", "K_TAB_RET:")
    stamp("tab", lvl=2)
    I("v_and_b32 v33, 0xffff, v8", "v_add_lshl_u32 v32, v44, v33, 2", "v_lshrrev_b32 v33, 16, v8", "v_subrev_u32 v33, 16, v33")
    AD, RK = 96, 128
    def compact(dst):
        I("v_cmp_lt_i32 vcc, 0, v33", "v_cmp_lt_i32 s[46:47], 8, v33", "v_cmp_lt_i32 s[48:49], 16, v33", "v_mbcnt_lo_u32_b32 v35, vcc_lo, 0", "v_mbcnt_hi_u32_b32 v35, vcc_hi, v35",
          "v_mbcnt_lo_u32_b32 v35, s46, v35", "v_mbcnt_hi_u32_b32 v35, s47, v35", "v_mbcnt_lo_u32_b32 v35, s48, v35", "v_mbcnt_hi_u32_b32 v35, s49, v35",
          "v_cmp_gt_u32 s[36:37], 30, v35", "v_lshlrev_b32 v35, 3, v35", "v_add_u32 v45, 8, v35", "v_add_u32 v52, 16, v35", "v_add_u32 v40, 32, v34", "v_add_u32 v53, 64, v34",
          "s_and_b64 vcc, vcc, s[36:37]", "s_and_b64 s[46:47], s[46:47], s[36:37]", "s_and_b64 s[48:49], s[48:49], s[36:37]",
          "v_cndmask_b32 v35, 4, v35, vcc", "v_cndmask_b32 v45, 4, v45, s[46:47]", "v_cndmask_b32 v52, 4, v52, s[48:49]",
          f"ds_permute_b32 v{dst}, v35, v34", "ds_permute_b32 v40, v45, v40", "ds_permute_b32 v53, v52, v53",
          "v_cndmask_b32_e64 v35, 0, 24, vcc", "v_sub_u32 v33, v33, v35", "v_lshl_add_u32 v34, v35, 2, v34")
    def units(k, o4, o8):
        return ["s_waitcnt lgkmcnt(0)", "v_or3_b32 v36, v36, v40, v53", "v_lshlrev_b32 v39, 1, v36", "s_nop 0",
                f"v_add_u32_dpp v{o4}, v36, v31 quad_perm:[0,0,2,2] row_mask:0xf bank_mask:0xf",
                f"buffer_load_dwordx4 v[{k}:{k+3}], v{o4}, s[12:15], s50 offen sc1",
                f"v_add_u32_dpp v{o8}, v39, v27 quad_perm:[0,0,0,0] row_mask:0xf bank_mask:0xf",
                f"v_add_u32_dpp v{o8+1}, v39, v27 quad_perm:[2,2,2,2] row_mask:0xf bank_mask:0xf", f"v_bfe_i32 v{o4}, v{o4}, 30, 1"]
    def octets(src, its, off, o8):
        I(f"v_lshlrev_b32 v39, 1, v{src}", f"v_lshlrev_b32 v37, 1, v{src}", f"v_lshlrev_b32 v38, 1, v{src}", "s_nop 0",
          "v_mov_b32_dpp v37, v39 row_shr:4 row_mask:0xf bank_mask:0xa", "v_mov_b32_dpp v38, v39 row_shl:4 row_mask:0xf bank_mask:0x5", "s_nop 0")
        for n, i in enumerate(its):
            for h in range(2): I(f"v_add_u32_dpp v{o8+2*n+h}, v{37+h}, v{off} quad_perm:[{i},{i},{i},{i}] row_mask:0xf bank_mask:0xf")
    for i in range(4):
        VM(f"k{i}", f"v_add_u32_dpp v{O4+i}, v32, v30 quad_perm:[{i},{i},{i},{i}] row_mask:0xf bank_mask:0xf",
          f"buffer_load_dwordx4 v[{KEY+4*i}:{KEY+4*i+3}], v{O4+i}, s[12:15], s50 offen sc1")
    I(f"v_add_u32 v34, 0xc0000040, v32")
    compact(36)
    octets(32, range(4), 26, O8)
    VM("k4", *units(KEY+16, O4+4, O8+8))
    hook("k")
    I("v_and_b32 v244, 0x3c0, v4", "v_bfe_u32 v245, v6, 1, 1", "v_lshl_add_u32 v244, v245, 10, v244", "v_and_b32 v245, 1, v6",
      "v_lshl_add_u32 v244, v245, 5, v244", "v_add_u32 v244, s23, v244", "v_add_u32 v245, 8, v244", "v_add_u32 v246, 16, v244", "v_add_u32 v247, 24, v244")
    I(f"v_mul_u32_u24 v21, {NS}, v0", f"v_add_u32 v21, {L_NODE}, v21", "v_cmp_gt_u32 s[38:39], s17, v0")
    I("s_sub_u32 s27, 256, s17", "s_sub_u32 s19, s27, 32", "s_mov_b32 s20, 0")
    I(*tr)
    I("v_bfe_u32 v35, v6, 4, 1", "v_lshlrev_b32 v35, 4, v35", f"v_xor_b32 v{FI+1}, v35, v26")
    for j in range(1, 8): I(f"v_xor_b32 v{FI+1+2*j}, {32*(j&3)}, v{FI+1}")
    I("v_and_b32 v35, 3, v6", f"v_mul_u32_u24 v{FR}, 0x420, v35", "v_bfe_u32 v35, v6, 2, 3", f"v_lshl_add_u32 v{FR}, v35, 7, v{FR}", "v_bfe_u32 v35, v6, 3, 1",
      f"v_lshl_add_u32 v{FR}, v35, 4, v{FR}", f"v_xor_b32 v{FR}, v{FR}, v1", "s_lshl_b32 s45, s18, 13", f"s_add_u32 s45, s45, {L_W}", f"v_add_u32 v{FR}, s45, v{FR}")
    for k in range(1, 4): I(f"v_xor_b32 v{FR+k}, {16*k}, v{FR}")
    I("v_and_b32 v20, 31, v6", "s_lshl_b32 s3, s18, 7", "v_lshl_add_u32 v57, v20, 2, s3", "v_and_b32 v59, 0x38, v6", "v_lshl_add_u32 v59, v59, 1, s3",
      "s_sub_u32 s3, 896, s3", "v_lshl_add_u32 v58, v20, 2, s3")
    def phaseB(k, a, r, sreg, m=None):
        if m:
            for j in range(4): I(f"v_or_b32 v{k+j}, v{m}, v{k+j}")
        for j in range(4): I(f"v_mad_u32_u16 v{a+j}, v{k+j}, v28, s22")
        for j in range(4):
            I(f"ds_add_rtn_u32 v{r+j}, v{a+j}, v29",
              f"v_add_u32_sdwa v{k+j}, v{(244 if m else 48)+j}, s{sreg} dst_sel:WORD_0 dst_unused:UNUSED_PRESERVE src0_sel:DWORD src1_sel:DWORD")
    def phaseC(k, a, r):
        L = []
        for j in range(4): L += [f"v_min_u32 v{r+j}, {CAP-1}, v{r+j}", f"v_lshl_add_u32 v{a+j}, v{r+j}, 2, v{a+j}", f"ds_write_b32 v{a+j}, v{k+j} offset:4"]
        return L
    for i in range(5):
        if OPT["bk"] == i: I("s_barrier")
        I(f"s_waitcnt vmcnt({vw(f'k{i}')})")
        if i == 0: stamp("key0", lvl=2)
        hook(f"b{i}")
        phaseB(KEY+4*i, AD+4*i, RK+4*i, 40+i, O4+4 if i == 4 else None)
    I("v_cmp_lt_i32 vcc, 0, v33", "s_cbranch_vccnz K_MORE", "K_MORE_RET:", "s_branch PG2E")
    repoll("K_TAB", TABLD, "\n".join(TABCMP))
    I(".p2align 12", "PG2:", "s_branch K_WARM_RET")
    repoll("K_F3", F3LD, "v_cmp_eq_u32 vcc, -1, v9")
    I("PG2E:"); bar("1")
    stamp("bar1", lvl=2)
    I("s_mov_b64 exec, s[38:39]", "ds_read_b32 v20, v21", "s_mov_b64 exec, -1")
    hook("a1")
    I("s_waitcnt lgkmcnt(0)", "s_mov_b64 exec, s[38:39]")
    I(f"v_cmp_lt_u32 vcc, {CAP}, v20", "v_min_u32 v20, 63, v20", "v_sub_u32 v22, 63, v20", "v_lshlrev_b32 v22, 2, v22",
      f"ds_add_rtn_u32 v23, v22, v29 offset:{L_H1}")
    I("s_cbranch_vccz K_A1", f"ds_write_b32 v24, v29 offset:{L_FLAG}", "K_A1:")
    I("s_mov_b64 exec, -1")
    hook("a2"); bar("2")
    I(f"ds_read_b32 v25, v43 offset:{L_H1}")
    I(*phaseC(KEY, AD, RK))
    I("s_waitcnt lgkmcnt(4)", "v_mov_b32 v46, v25")
    scan64(46, phaseC(KEY+4, AD+4, RK+4))
    I("v_sub_u32 v46, v46, v25", "ds_bpermute_b32 v46, v22, v46")
    I("v_lshrrev_b32 v30, 1, v20", "v_cmp_lt_u32 s[36:37], 26, v20")
    hook("a3")
    I("s_waitcnt lgkmcnt(0)")
    I("v_add_u32 v23, v23, v46", "v_cmp_gt_u32 vcc, s19, v23", "v_lshlrev_b32 v33, 1, v23", "v_lshlrev_b32 v34, 2, v23",
      "v_cndmask_b32_e64 v31, 8, 10, vcc", "v_cndmask_b32 v31, v31, v30, s[36:37]")
    I("v_cmp_gt_u32 vcc, s27, v23", "v_cmp_gt_u32 s[36:37], v20, v31", "v_mov_b32 v35, 0xff", "v_sub_u32 v37, 63, v31",
      "s_and_b64 vcc, vcc, s[36:37]", "s_and_b64 vcc, vcc, s[38:39]")
    I("v_cndmask_b32 v32, 0, v31, vcc", "v_sub_u32 v32, v20, v32", "v_sub_u32 v36, 63, v32", "v_lshlrev_b32 v36, 2, v36", "v_lshlrev_b32 v37, 2, v37")
    I("s_mov_b64 exec, s[38:39]", f"ds_add_rtn_u32 v38, v36, v29 offset:{L_H2}")
    I("s_mov_b64 exec, vcc", f"ds_add_rtn_u32 v39, v37, v29 offset:{L_H2}", "v_add_lshl_u32 v47, s16, v0, 7", f"ds_write_b32 v34, v47 offset:{L_SN}")
    I("s_mov_b64 exec, -1", "v_cndmask_b32 v35, v35, v33, vcc")
    I("v_lshl_or_b32 v48, v35, 8, v32", "v_lshl_or_b32 v48, v48, 16, v0")
    I("v_or_b32 v33, 1, v33", "v_lshl_or_b32 v49, v33, 8, v31", "v_lshl_or_b32 v49, v49, 8, v32", "v_lshl_or_b32 v49, v49, 8, v0", "v_lshl_add_u32 v50, v32, 2, v21")
    I("s_mov_b64 s[46:47], vcc"); hook("a4"); bar("3")
    stamp("bar3", lvl=3)
    I(f"ds_read_b32 v25, v43 offset:{L_H2}"); I(*phaseC(KEY+8, AD+8, RK+8)); I("s_waitcnt lgkmcnt(4)", "v_mov_b32 v46, v25")
    scan64(46, phaseC(KEY+12, AD+12, RK+12))
    I("v_sub_u32 v46, v46, v25", "ds_bpermute_b32 v36, v36, v46", "ds_bpermute_b32 v37, v37, v46")
    I(*phaseC(KEY+16, AD+16, RK+16))
    I("s_waitcnt lgkmcnt(4)", "v_add_lshl_u32 v36, v36, v38, 2", "v_add_lshl_u32 v37, v37, v39, 2")
    o0 = L_TBL // 256
    I("s_mov_b64 exec, s[38:39]", f"ds_write2st64_b32 v36, v48, v21 offset0:{o0} offset1:{o0+4}", "s_mov_b64 exec, s[46:47]", f"ds_write2st64_b32 v37, v49, v50 offset0:{o0} offset1:{o0+4}",
      "s_mov_b64 exec, -1")
    hook("a5")
    sr = [f"ds_read_b128 a[{AX+4*k}:{AX+4*k+3}], v{34+(k&3)} offset:{4096*(k>>2)}" for k in range(8)]
    I("s_movk_i32 s53, 0x3f80", "s_movk_i32 s54, 0xff", f"s_movk_i32 s55, {SPL_S}", "s_mov_b32 s49, 0xffff", "s_movk_i32 s59, 128",
      f"s_mov_b32 s57, {f32(2.0**-100)}", "s_movk_i32 s58, 0x207", f"v_add_u32 v6, {L_X}, v1")
    I("s_mov_b32 s28, s4", "s_or_b32 s29, s5, 0x800000", f"s_mov_b32 s30, {N_NODES}")
    bar("4", "x")
    stamp("bar4", lvl=2)
    o0 = L_TBL // 256
    I(f"ds_read_b128 v[20:23], v59 offset:{L_TB2}", f"ds_read2st64_b32 v[26:27], v57 offset0:{o0} offset1:{o0+4}",
      f"ds_read_b32 v7, v58 offset:{L_TBL}", f"ds_read_b32 v8, v58 offset:{L_TB2}", f"ds_read_b32 v24, v24 offset:{L_FLAG}")
    for b in range(4): I(*onehot(EE+2*b, b))
    for k in range(4): I(f"v_mov_b32 v{34+k}, v{FR+k}")
    I("s_waitcnt lgkmcnt(4)")
    for j in range(8): I(f"ds_read_u16 v{FI+2*j}, v{20+(j&3)} offset:{6 + 4*(j>>2)}")
    xx, xr = xrd((28, 29, 30, 31))
    I("s_waitcnt lgkmcnt(8)"); I(*xrow(28, 26, 29, 6)); I(*xx); I(*xr)
    I("s_waitcnt lgkmcnt(8)")
    fl = ["v_mov_b32 v5, v26", "v_mov_b32 v2, v27", "v_bfe_u32 v3, v26, 16, 8", "s_nop 0", "s_waitcnt lgkmcnt(4)", "v_cmp_ne_u32 vcc, 0, v24", "v_readfirstlane_b32 s20, v3", "s_nop 0"]
    for j in range(8):
        if j == 4: hook("s0")
        VM(f"s{j>>2}", f"s_add_u32 m0, s45, {1024*j}", fl[j], f"buffer_load_dwordx4 v[{FI+2*j}:{FI+2*j+1}], s[28:31], 0 idxen offen lds")
    assert not ea and not xd
    I(*recs(40, 2)); I(*recs(10, 8)); I(*xrow(9, 7, 29, 6))
    if OPT["stamp"]: I("s_mov_b32 s62, s20")
    I(*LSET)
    I("s_lshl_b32 s45, s18, 5", "s_add_u32 s45, s45, 128", f"s_mul_i32 s46, s18, {OST_W}", f"s_add_u32 s46, s46, {L_OST}", "s_movk_i32 s47, 576", f"s_mov_b32 s48, {L_SN}", "s_mov_b32 s27, 0xffff0000")
    I("s_waitcnt lgkmcnt(0)", "s_cbranch_vccnz K_SLOW0", eaddr(44, 40), eaddr(45, 41), eaddr(46, 42), eaddr(4, 43), xaddr(42), ".p2align 3")
    stamp("q1")
    q = sum([qchain(QQ+16*b, b, EE+2*b) for b in range(4)], [])
    I(*weave(q, [], [0]*20, {**{k: tr2[3*k:3*k+3] for k in range(11)}, 14: ["s_waitcnt vmcnt(4)", "s_barrier"], 15: sr[0:2], 16: sr[2:4], 17: [earead(0, 44), earead(1, 45)], 18: [earead(2, 46)]}))
    c = chain(NN, 0, 0, QQ)
    seg = ["s_waitcnt lgkmcnt(0)", "s_nop 0", c[0], xload(2, 0), c[1], xload(2, 1), c[2], xload(2, 2), c[3], xload(2, 3), c[4], xaddr(43), "s_nop 8", "s_nop 0"]
    for b in range(3): seg += weave(chain(NN+16*(b+1), b+1, 0, QQ+16*(b+1)), E0(b), (3,3,3,3,4), {0: ["s_waitcnt vmcnt(4)"], 1: sr[4:6], 2: sr[6:8], 3: [xload(0, 0)]} if b == 2 else None) + A0(b)
    seg += ["s_waitcnt lgkmcnt(0)", "s_barrier"] + weave(chain(T0, 0, 1, QQ), E0(3), (3,3,3,3,4), {3: [xload(0, 1)]}) + A0(3)
    I(*align8(seg))
    stamp("loop1")
    I("s_branch K_A0")
    def partA(t):
        cur = (1+t) % 3; prv = t % 3
        seg = []
        for b in range(3):
            tc = T0 + 16*(b % 2); tn = T0 + 16*((b+1) % 2)
            if b == 0: extra = {0: [f"ds_read_b32 v6, v2 offset:{4*(t+5)}"], 3: [xload(prv, 2)], 4: ["v_cmpx_lt_u32 vcc, s19, v3"]}
            elif b == 1: extra = {1: ["s_cmp_lt_i32 s19, s37"], 2: ["s_waitcnt lgkmcnt(0)"], 3: [xload(prv, 3)], 4: [xaddr(6)]}
            else: extra = {0: ["s_cselect_b32 s6, s26, 0"], 1: ["s_cmp_ge_u32 s19, s20"], 2: ["s_waitcnt vmcnt(4)"], 3: [earead(prv, 4)],
                           4: ["s_cbranch_scc1 K_EXIT" if t < 2 else "s_cbranch_scc0 K_LOOP"]}
            ms = chain(tn, b+1, cur, QQ+16*(b+1))
            if b < 2: seg += weave(ms, exps(tc), (3,3,3,3,4), extra) + pk3(b, tc)
            else: seg += weave(ms, exps(tc)[:12], (3,3,3,3,0), extra)
        return seg
    def partB(t):
        cur = (1+t) % 3; nxt = (2+t) % 3
        seg = [xload(cur, 0)] + exps(T0)[12:] + pk3(2, T0)
        seg += weave(chain(T0, 0, nxt, QQ), exps(T1), (3,3,3,3,4), {0: ["s_add_u32 s19, s19, 1"], 3: [xload(cur, 1)], 4: [eaddr(4, 6)] + (["v_add_u32 v2, 12, v2"] if t == 2 else [])}) + pk3(3, T1)
        return seg
    def loop(pg, ret, n, ex):
        I(".p2align 12", f"PG{pg}:", f"s_branch {ret}", "s_nop 0", f"K_LOOP{n}:")
        I(*align8(partB(2)))
        I(f"K_A{n}:")
        I(*[x.replace("K_EXIT", ex).replace("K_LOOP", f"K_LOOP{n}") for x in align8(partA(0) + partB(0) + partA(1) + partB(1) + partA(2))[:-1]])
        I(f"s_branch {ex}", f"K_EXIT{n}:")
    loop(3, "K_WARM_RET", 0, "K_MID")
    I(".p2align 12", "PG4:", "s_branch K_WARM_RET2", "s_nop 0", "K_MID:")
    stamp("exit1")
    OH = QQ+48
    def mix(c, g): return c[:4] + g + c[4:]
    def ms(n):
        nonlocal seg
        if OPT.get("ms"): I(*align8(seg)); seg = []; stamp(n)
    xx, xr = xrd((9, 4, 6, 2))
    seg = exps(T0)[12:] + pk3(2, T0) + ["s_mov_b64 s[60:61], exec", "s_mov_b64 exec, -1"] + exps(T1) + xx + ["s_mov_b32 s6, s26", xaddr(10), "s_waitcnt vmcnt(0)", LSET[3]]
    seg += xr + [xload(0, k) for k in range(4)] + ["s_mov_b64 exec, s[60:61]", "s_nop 0"] + pk3(3, T1) + ["s_mov_b64 exec, -1", "s_waitcnt lgkmcnt(0)"]
    ms("m1")
    if not OPT["srm"]:
        seg += spread(mix(qchain(QQ, 0, OH3), binit(LB)), [xaddr(11), "v_bfe_u32 v3, v7, 16, 8"] + lbinit(LB) + ["v_readfirstlane_b32 s20, v3"] + onehot(OH3, 0) + R(0) + M(0),
                      pre={1: [xload(1, 0), xload(1, 1)], 2: [xload(1, 2)], 3: [xload(1, 3)]}) + U(0)
        ms("m2")
        seg += spread(mix(qchain(QQ+16, 1, OH3+2), G(0)), V(0) + onehot(OH3+2, 1) + [eaddr(4, 10), eaddr(6, 11), eaddr(0, 12), "v_mov_b32 v2, v8"] + R(1) + M(1),
                      pre={2: ([f"s_mov_b32 s63, s20"] if OPT["stamp"] else []) + [LSET[0]], 3: [LSET[1]], 5: [LSET[2]], 4: [earead(0, 4), earead(1, 6), earead(2, 0)]}) + U(1)
        ms("m3")
        seg += spread(mix(qchain(QQ+32, 2, OH3), G(1)), V(1) + onehot(OH3, 2) + OCON[:8] + R(2) + M(2), pre={6: ["s_waitcnt vmcnt(4) lgkmcnt(0)"]}) + U(2)
        ms("m4")
        seg += spread(mix(chain(NN, 0, 0, QQ), G(2)), V(2) + OCON[8:] + dec2(LB) + R(3) + M(3)) + U(3)
        seg += spread(mix(chain(NN+16, 1, 0, QQ+16), G(3)), V(3) + onehot(OH3+2, 3) + [xaddr(12), eaddr(4, 13), "v_mov_b32 v5, v7"] + E0(0) + A1(0)[:OPT["a1"]]) + A0(0)[OPT["a1"]//2:] + SCL
        seg += check("K_RARE_A")
        ms("m6")
        q = qchain(QQ+48, 3, OH3+2); c = chain(NN+32, 2, 0, QQ+32)
        seg += spread(q[:4] + c[:1] + q[4:] + c[1:], OCV + E0(1), pre={0: [OIW], 2: [OSW[0]], 4: [OSW[1], xload(2, 0)], 6: [OSW[2], xload(2, 1)], 7: [OSW[3], xload(2, 2)], 8: [xload(2, 3)] + OSR}) + A0(1)
    else:
        seg = seg[:-1] + XX(0) + XX(2) + seg[-1:]
        q0 = qchain(QQ, 0, OH3); q1 = qchain(QQ+16, 1, OH3+2)
        seg += spread(q0[:4] + binit(LB) + q0[4:] + q1, [xaddr(11), "v_bfe_u32 v3, v7, 16, 8"] + lbinit(LB) + ["v_readfirstlane_b32 s20, v3"] + onehot(OH3, 0) + onehot(OH3+2, 1) +
                      R(0)[:6] + [eaddr(4, 10), eaddr(6, 11), eaddr(0, 12), "v_mov_b32 v2, v8"] + R(0)[6:] + OCON + M(0),
                      pre={1: [xload(1, 0), xload(1, 1)], 2: [xload(1, 2)], 3: [xload(1, 3)], 7: ([f"s_mov_b32 s63, s20"] if OPT["stamp"] else []) + [LSET[0]], 8: [earead(0, 4), earead(1, 6), earead(2, 0)],
                           9: [LSET[1]], 10: [LSET[2]]}) + UU(0)
        ms("m2"); ms("m3")
        c = chain(NN, 0, 0, QQ)
        seg += V(0)[:6] + spread(G(0) + G(1)[:2] + c[:4] + G(1)[2:] + c[4:], V(0)[6:] + V(1) + dec2(LB) + onehot(OH3, 2) + onehot(OH3+2, 3) + [xaddr(12), eaddr(4, 13), "v_mov_b32 v5, v7"] + R(2) + M(2),
                               pre={5: ["s_waitcnt vmcnt(4) lgkmcnt(0)"]}) + UU(2)
        ms("m4")
        c = chain(NN+16, 1, 0, QQ+16)
        seg += spread(c[:4] + G(2) + G(3) + c[4:], V(2) + V(3) + E0(0) + A1(0)[:OPT["a2"]]) + A0(0)[OPT["a2"]//2:] + SCL
        seg += check("K_RARE_A")
        ms("m6")
        q2 = qchain(QQ+32, 2, OH3); q3 = qchain(QQ+48, 3, OH3+2); c = chain(NN+32, 2, 0, QQ+32)
        seg += spread(q2[:4] + q3[:1] + q2[4:] + q3[1:] + c, OCV + E0(1) + A1(1)[:OPT["a3"]],
                      pre={0: [OIW], 2: [OSW[0]], 4: [OSW[1]], 6: [OSW[2]], 7: [OSW[3]], 8: OSR, 10: [xload(2, 0)], 11: [xload(2, 1)], 12: [xload(2, 2)], 13: [xload(2, 3)]}) + A0(1)[OPT["a3"]//2:]
    ms("m7")
    e = E0(2); c = chain(NN+48, 3, 0, QQ+48)
    seg += [c[0], "s_waitcnt vmcnt(4) lgkmcnt(0)"] + OOR + [xaddr(13)] + e[:1] + [c[1], OST[0], OST[1], c[2], OST[2], OST[3], c[3], xload(0, 0)] + e[1:4] + [c[4]] + e[4:] + A0(2)
    seg += weave(chain(T0, 0, 1, QQ), E0(3), (3,3,3,3,4), {3: [xload(0, 1)]}) + A0(3)
    I(*align8(seg))
    stamp("loop2")
    I("s_branch K_A1X")
    loop(5, "K_WARM_RET2", "1X", "K_LAST")
    I(".p2align 12", "PG6:", "s_branch K_WARM_RET2", "s_nop 0", "K_LAST:")
    stamp("exit2")
    CCON = ["v_mbcnt_lo_u32_b32 v2, -1, 0", "v_mbcnt_hi_u32_b32 v2, -1, v2", "v_lshrrev_b32 v2, 3, v2", "v_lshl_add_u32 v2, s18, 3, v2",
            "v_mul_u32_u24 v4, s55, v2", "v_lshl_add_u32 v4, v4, 1, v11", "v_lshl_add_u32 v2, v2, 2, s48", "v_mov_b32 v12, 0"]
    if not OPT["srl"]:
        seg = exps(T0)[12:] + pk3(2, T0) + exps(T1) + pk3(3, T1) + ["s_mov_b64 exec, -1"] + lbinit(LB)
        seg += R(0)[:2] + weave(binit(LB), R(0)[2:], (4, 10)) + U(0) + V(0)
        for b in range(3): seg += weave(G(b), R(b+1), (3,3,3,7)) + U(b+1) + V(b+1)
        seg += spread(G(3), M(0) + M(1) + M(2) + M(3) + CCON + dec2(LB), tail=48) + SCL + check("K_RARE_B") + OCV + [OIW] + OSW + OSR
    else:
        def mv(l):
            return [re.sub(r"\bv(\d+)\b|v\[(\d+):(\d+)\]", lambda m: (f"v{int(m.group(1))+QQ-T0}" if T0 <= int(m.group(1)) < EE else m.group(0)) if m.group(1) else
                           (f"v[{int(m.group(2))+QQ-T0}:{int(m.group(3))+QQ-T0}]" if T0 <= int(m.group(2)) < EE else m.group(0)), x) for x in l]
        L2 = QQ + 32
        g = mv(G(0) + G(1) + G(2) + G(3))
        seg = exps(T0)[12:] + pk3(2, T0) + ["s_mov_b64 s[60:61], exec", "s_mov_b64 exec, -1"] + XX(0) + lbinit(L2)
        seg += R(0)[:2] + weave(mv(binit(L2)), R(0)[2:], (4, 10)) + UU(0) + V(0)[:6]
        seg += spread(g[:5], V(0)[6:] + V(1)[:6] + exps(T1), pre={4: ["s_mov_b64 exec, s[60:61]"]}) + pk3(3, T1) + ["s_mov_b64 exec, -1", "s_mov_b32 s3, s27"] + XX(2)
        seg += spread(g[5:8], V(1)[6:] + R(2)) + UU(2) + V(2)[:6]
        seg += spread(g[8:], V(2)[6:] + V(3) + M(0) + M(2) + CCON + dec2(L2), tail=48) + mv(SCL + check("K_RARE_B") + OCV + [OIW] + OSW) + OSR
    I(*align8(seg))
    stamp("tail")
    I(*([] if OPT["srl"] else ["s_mov_b32 s3, s27"]), "s_waitcnt lgkmcnt(6)", "s_barrier")
    I(f"ds_read_b32 v12, v12 offset:{L_FLAG}", f"ds_read2_b32 v[2:3], v2 offset1:32")
    for h in range(2):
        for r in range(2): I(f"ds_read_b128 v[{NN+8*h+4*r}:{NN+8*h+4*r+3}], v4 offset:{L_SPL + 64*SPL_S*h + SPL_S*r}")
    I("s_waitcnt lgkmcnt(6)", *OOR); I(*OST)
    I("s_waitcnt lgkmcnt(2)", "v_cmp_ne_u32 vcc, 0, v12", "v_or_b32 v2, v2, v11", "v_or_b32 v3, v3, v11")
    for h in range(2):
        if h: I("s_waitcnt lgkmcnt(0)", "s_nop 0")
        n = NN + 8*h; u = DD + 16*h
        for i in range(8): I(f"v_lshlrev_b32 v{u+2*i}, 16, v{n+i}", f"v_and_b32 v{u+2*i+1}, s3, v{n+i}")
        for i in range(4): I(f"v_pk_add_f32 v[{u+2*i}:{u+2*i+1}], v[{u+2*i}:{u+2*i+1}], v[{u+8+2*i}:{u+8+2*i+1}]")
        for i in range(4): I(f"v_cvt_pk_bf16_f32 v{n+i}, v{u+2*i}, v{u+2*i+1}")
        I(f"buffer_store_dwordx4 v[{n}:{n+3}], v{2+h}, s[8:11], 0 offen{OSTF}")
    I("s_cbranch_vccnz K_SLOW")
    if OPT["diag"]:
        if OPT.get("amp0"): I("s_sub_u32 s94, s94, s96", "s_mul_i32 s94, s94, 10", "s_add_u32 s100, s100, s94")
        I("s_mov_b32 s52, 0", "K_SPIN:", "s_memrealtime s[54:55]", "s_waitcnt lgkmcnt(0)", "s_add_u32 s52, s52, 1", "s_cmp_gt_u32 s52, 20000", "s_cbranch_scc1 K_END",
          "s_sub_u32 s54, s54, s100", "s_cmp_lt_i32 s54, 4000", "s_cbranch_scc1 K_SPIN")
    if OPT["stamp"]:
        I("s_waitcnt vmcnt(0)"); stamp("end")
        I("s_lshl_b32 s3, s2, 2", "s_add_u32 s3, s3, s18", "s_lshl_b32 s3, s3, 7", f"s_add_u32 s3, s3, {STAMP_OFF}", "v_mov_b32 v0, 0")
        for i in range(len(stamps)): I(f"v_mov_b32 v1, s{SLOTS[i]}", f"buffer_store_dword v1, v0, s[12:15], s3 offen offset:{4*i}")
        I("s_lshl_b32 s62, s62, 8", "s_or_b32 s62, s62, s63", "v_mov_b32 v1, s62", "buffer_store_dword v1, v0, s[12:15], s3 offen offset:124")
    I("K_END:", "K_END0:", "s_endpgm")
    I("K_MEA:", "s_mov_b32 s3, 0", *eadma(190, "s3", 0)); I(*eadma(191, "s3", 1024)); I("s_branch K_MEA_RET")
    for tag in ("K_RARE_A", "K_RARE_B"):
        I(f"{tag}:")
        I("s_or_b64 vcc, vcc, s[38:39]", "s_cmp_eq_u64 vcc, -1", f"s_cbranch_scc1 {tag}2")
        I(f"v_mov_b32 v{OA+1}, 0", f"v_mov_b32 v{RM}, 1", f"ds_write_b32 v{OA+1}, v{RM} offset:{L_FLAG}")
        I(f"{tag}2:", "s_mov_b64 exec, s[38:39]")
        for i in range(32): I(f"v_mov_b32 v{(QQ if tag == 'K_RARE_B' and OPT['srl'] else T0)+i}, 0")
        I("s_mov_b64 exec, -1", f"s_branch {tag}_RET")
    K2, A2, R2, O2 = 176, 180, 184, 188
    I("K_MORE:", "s_sub_u32 s40, 0, s23", "s_nop 0")
    I("s_mov_b64 exec, 1", f"ds_add_rtn_u32 v{O2}, v24, v29 offset:{L_FLAG+4}", "s_waitcnt lgkmcnt(0)", f"v_cmp_ne_u32 vcc, 0, v{O2}", "s_mov_b64 exec, -1", "s_cbranch_vccnz K_MORE_F")
    compact(36)
    I(*units(K2, O2, O2+2))
    I("s_mov_b32 s20, 1", "s_waitcnt vmcnt(0)")
    phaseB(K2, A2, R2, 40, O2)
    I("s_waitcnt lgkmcnt(0)")
    I(*phaseC(K2, A2, R2))
    I("v_cmp_lt_i32 vcc, 0, v33", "s_cbranch_vccz K_MORE_RET")
    I("K_MORE_F:", f"ds_write_b32 v24, v29 offset:{L_FLAG}", "s_branch K_MORE_RET")
    I("K_SLOW0:", *tr2)
    I("K_SLOW:")
    I("s_mov_b64 exec, -1", "s_waitcnt vmcnt(0) lgkmcnt(0)", "s_barrier")
    I("v_mbcnt_lo_u32_b32 v6, -1, 0", "v_mbcnt_hi_u32_b32 v6, -1, v6", "s_lshl_b32 s3, s18, 6", "v_add_u32 v7, s3, v6")
    I(*TABA); I(f"v_lshlrev_b32 v3, {lt}, v7", TABLD)
    I("v_lshrrev_b32 v1, 5, v6", "v_lshlrev_b32 v1, 6, v1", "v_and_b32 v6, 31, v6", "v_lshlrev_b32 v2, 4, v7")
    for i in range(4): I(f"v_mov_b32 v{16+i}, 0")
    for i in range(13): I(f"ds_write_b128 v2, v[16:19] offset:{4096*i}")
    for b in range(4): I(*onehot(EE+2*b, b))
    I("s_mov_b32 s6, s26", "s_mov_b32 s19, 0", "s_waitcnt vmcnt(0) lgkmcnt(0)", "s_barrier")
    I("K_S_SEG:")
    I("v_readlane_b32 s36, v8, s19", "s_lshl_b32 s3, s18, 6", "s_add_u32 s3, s3, s19", f"s_mul_i32 s3, s3, {CHS}", "s_nop 0",
      "s_lshr_b32 s20, s36, 16", "s_and_b32 s36, s36, 0xffff", "s_add_u32 s36, s36, s3")
    I("K_S_TILE:")
    I("s_cmp_le_i32 s20, 0", "s_cbranch_scc1 K_S_NEXT")
    I("v_add_lshl_u32 v2, s36, v6, 2", "v_lshlrev_b32 v3, 1, v2", "v_cmp_gt_i32 s[38:39], s20, v6")
    I("buffer_load_dword v9, v2, s[12:15], s50 offen sc1", f"buffer_load_dwordx2 a[{AEA}:{AEA+1}], v3, s[12:15], s51 offen sc1", "s_waitcnt vmcnt(0)")
    I(xaddr(9)); I(*[xload(0, k) for k in range(4)])
    I("v_and_b32 v9, 0xffff, v9", "v_lshl_add_u32 v0, v9, 7, v1", "v_subrev_u32 v9, s16, v9"); I(*[xload(2, k) for k in range(4)])
    I("v_mul_u32_u24 v9, 260, v9", "v_lshl_add_u32 v9, v1, 1, v9", "s_waitcnt vmcnt(0)")
    for b in range(4): I(*qchain(NN+16*b, b, EE+2*b)); I(*chain(NN+16*b, b, 0, NN+16*b))
    I(*binit(EE)); I("s_nop 15")
    for b in range(4): I(*E0(b))
    for b in range(4): I(*A0(b))
    for b in range(4): I(*R(b))
    for b in range(4): I(*(U(b) + V(b)))
    I("s_nop 1")
    for b in range(4): I(*G(b))
    I("s_nop 15"); I(*SCL)
    I("s_mov_b64 exec, s[38:39]")
    for i in range(32): I(f"ds_add_f32 v9, v{T0+i} offset:{4*i}")
    I("s_mov_b64 exec, -1", "s_waitcnt lgkmcnt(0)", "s_sub_u32 s20, s20, 32", "s_add_u32 s36, s36, 32", "s_branch K_S_TILE")
    I("K_S_NEXT:", "s_add_u32 s19, s19, 1", "s_cmp_lt_u32 s19, 64", "s_cbranch_scc1 K_S_SEG")
    I("s_barrier", "v_and_b32 v3, 7, v7", "v_lshlrev_b32 v1, 4, v3", "v_lshrrev_b32 v7, 3, v7", "s_mov_b32 s19, 0")
    I("K_S_OUT:")
    I("v_mul_u32_u24 v2, 260, v7", "v_cmp_gt_u32 vcc, s17, v7", "v_lshl_add_u32 v2, v3, 5, v2", "v_add_lshl_u32 v0, s16, v7, 7", "v_cndmask_b32 v0, 2.0, v0, vcc", "v_or_b32 v0, v0, v1")
    for i in range(8): I(f"ds_read_b32 v{16+i}, v2 offset:{4*i}")
    I("s_waitcnt lgkmcnt(0)")
    for i in range(4): I(f"v_cvt_pk_bf16_f32 v{24+i}, v{16+2*i}, v{17+2*i}")
    I("buffer_store_dwordx4 v[24:27], v0, s[8:11], 0 offen", "v_add_u32 v7, 32, v7", "s_waitcnt vmcnt(0)")
    I("s_add_u32 s19, s19, 1", "s_cmp_lt_u32 s19, 7", "s_cbranch_scc1 K_S_OUT", "s_endpgm")

def desc(name, vgpr, accum, sgpr):
    I(".p2align 6", f".amdhsa_kernel {name}")
    for l in (f"next_free_vgpr {vgpr}", f"next_free_sgpr {sgpr}", f"accum_offset {accum}", "group_segment_fixed_size 0", "kernarg_size 88",
              "user_sgpr_count 2", "user_sgpr_kernarg_segment_ptr 1", "system_sgpr_workgroup_id_x 1", "float_denorm_mode_32 3"):
        out.append("  .amdhsa_" + l)
    I(".end_amdhsa_kernel")

hdr = [l.rstrip("\n") for l in open(f"cdna_kernels/{NAME}.s.ref") if l.startswith(";") and "@launch" not in l][:12]
hdr += [f"; @launch grid=(256,1,1) block=(256,1,1) lds={L_SIZE}"]
I('.amdgcn_target "amdgcn-amd-amdhsa--gfx950"', ".text")
kernel()
I('.section .rodata,"a"')
desc(NAME + "_kernel", 512, 256, 102)
if OPT["stamp"]: hdr.append("; stamps: " + " ".join(stamps))
open(sys.argv[1], "w").write("\n".join(hdr + out) + "\n")
```
